```python
import torch

def _softmax(x, axis=-1):
    return torch.softmax(x, dim=axis)
def _gelu(x):
    return torch.nn.functional.gelu(x, approximate="tanh")
def _silu(x):
    return torch.nn.functional.silu(x)
def _sigmoid(x):
    return torch.sigmoid(x)
def _layernorm(x, axis=-1, eps=1e-5):
    m = x.mean(dim=axis, keepdim=True)
    v = x.var(dim=axis, keepdim=True, unbiased=False)
    return (x - m) / torch.sqrt(v + eps)
def _scatter_add(tgt, idx, src, axis=0):
    return tgt.clone().index_add_(axis, idx, src)
def _segment_sum(src, seg, n):
    out = torch.zeros((n,) + src.shape[1:], dtype=src.dtype)
    return out.index_add_(0, seg, src)
def _pad(x, pw):
    flat = tuple(v for pair in reversed(pw) for v in pair)
    return torch.nn.functional.pad(x, flat)

kernel_name = 'standalone__modern_conv_block_slak__vision'

def setup_inputs():

    _w = (lambda a: (lambda t: t.to(torch.bfloat16) if t.is_floating_point() else t)(torch.as_tensor(a)))
    H = W = 384
    C = 384
    K = 1
    return {
        "x": _w((lambda *s: torch.randn(*s, dtype=torch.bfloat16) * 0.05)(1, H, W, C)),
        "dw": _w((lambda *s: torch.randn(*s, dtype=torch.bfloat16) * 0.05)(K, K, C)),
        "w1": _w((lambda *s: torch.randn(*s, dtype=torch.bfloat16) * 0.05)(C, 4 * C)),
        "w2": _w((lambda *s: torch.randn(*s, dtype=torch.bfloat16) * 0.05)(4 * C, C)),
        "grn_g": _w((lambda *s: torch.randn(*s, dtype=torch.bfloat16) * 0.05)(4 * C)),
        "grn_b": _w((lambda *s: torch.randn(*s, dtype=torch.bfloat16) * 0.05)(4 * C)),
    }

def reference(x, dw, w1, w2, grn_g, grn_b):
    B, H, W, C = x.shape
    K = dw.shape[0]
    pad = K // 2
    xp = _pad(x, ((0,0),(pad,pad),(pad,pad),(0,0)))
    out = torch.zeros_like(x)
    for i in range(K):
        for j in range(K):
            out = out + xp[:, i:i+H, j:j+W, :] * dw[i, j][None, None, None, :]
    h = _layernorm(out, axis=-1)
    h = _gelu(h @ w1)
    gx = torch.sqrt((h * h).sum(axis=(1, 2), keepdims=True) + 1e-6)
    nx = gx / (gx.mean(axis=-1, keepdims=True) + 1e-6)
    h = grn_g[None, None, None, :] * (h * nx) + grn_b[None, None, None, :] + h
    return x + h @ w2
```

```python
import re

class Asm:
    def __init__(self):
        self.lines = []
    def __call__(self, s):
        for l in s.split("\n"):
            l = l.strip()
            if l: self.lines.append(l)
    def ext(self, L):
        for l in L: self(l)
    def label(self, n): self.lines.append(n + ":")
    def text(self):
        out = []
        for l in self.lines:
            if l.endswith(":") or l.startswith("."): out.append(l)
            else: out.append("    " + l)
        return "\n".join(out) + "\n"

_reg = re.compile(r"(?<![\w.])(-?\|?)([vas])(?:\[(\d+):(\d+)\]|(\d+))(?![\w])")
def regs(op):
    r = set()
    for m in _reg.finditer(op):
        k = m.group(2)
        if m.group(3) is not None: r.update((k, i) for i in range(int(m.group(3)), int(m.group(4)) + 1))
        else: r.add((k, int(m.group(5))))
    if re.search(r"\bvcc\b", op): r.add(("s", "vcc"))
    if re.search(r"\bm0\b", op): r.add(("s", "m0"))
    if re.search(r"\bexec\b", op): r.add(("s", "exec"))
    return r

def split_ops(rest):
    ops = []; depth = 0; cur = ""
    for ch in rest:
        if ch == "[": depth += 1
        if ch == "]": depth -= 1
        if ch == "," and depth == 0: ops.append(cur.strip()); cur = ""
        else: cur += ch
    if cur.strip(): ops.append(cur.strip())
    return ops

TRANS = ("v_exp_", "v_log_", "v_rcp_", "v_rsq_", "v_sqrt_", "v_sin_", "v_cos_")
def classify(line):
    line = line.split(";")[0].strip()
    if not line or line.endswith(":") or line.startswith("."): return None
    p = line.split(None, 1)
    mn = p[0]; ops = split_ops(p[1]) if len(p) > 1 else []
    d = dict(mn=mn, w=set(), r=set(), kind="other", states=1, line=line, srcc=set(), ab=set(), data=set())
    if mn == "s_nop": d["states"] = int(ops[0], 0) + 1; return d
    if mn.startswith("v_mfma"):
        d["kind"] = "mfma"; d["w"] = regs(ops[0]); d["ab"] = regs(ops[1]) | regs(ops[2]); d["srcc"] = regs(ops[3]); d["r"] = d["ab"] | d["srcc"]
        d["passes"] = 8 if "32x32" in mn else 4
        return d
    if mn.startswith("v_"):
        d["kind"] = "valu"
        if mn.startswith("v_cmp"):
            d["w"] = regs(ops[0]); d["r"] = set().union(*[regs(o) for o in ops[1:]])
        elif mn.startswith("v_permlane"):
            d["w"] = regs(ops[0]) | regs(ops[1]); d["r"] = set(d["w"]); d["perm"] = True
        else:
            d["w"] = regs(ops[0]); d["r"] = set().union(*[regs(o) for o in ops[1:]]) if len(ops) > 1 else set()
            if mn.startswith(("v_add_co", "v_addc_co", "v_sub_co")): d["w"] |= regs(ops[1])
            if mn.startswith(("v_fmac", "v_dot2c", "v_writelane")) or "UNUSED_PRESERVE" in line: d["r"] |= d["w"]
        if mn.startswith(TRANS): d["trans"] = True
        if mn.startswith("v_dot"): d["dot"] = True
        if "dpp" in mn or "row_" in line or "quad_perm" in line: d["dpp"] = True
        if "sdwa" in mn and "dst_sel:DWORD" not in line: d["opsel"] = True
        if mn.startswith(("v_readfirstlane", "v_readlane")): d["rl"] = True
        return d
    if mn.startswith(("buffer_", "global_")):
        d["kind"] = "vmem"
        allr = set().union(*[regs(o) for o in ops])
        if " lds" in line or "_lds_" in mn:
            d["r"] = allr | {("s", "m0")}; d["ldsdma"] = True
        elif "load" in mn:
            d["w"] = regs(ops[0]); d["r"] = set().union(*[regs(o) for o in ops[1:]])
        else:
            d["r"] = allr
            if "x4" in mn or "x3" in mn: d["data"] = regs(ops[0]) if mn.startswith("buffer_") else regs(ops[1])
        return d
    if mn.startswith("ds_"):
        d["kind"] = "ds"
        if mn.startswith(("ds_read", "ds_bpermute", "ds_permute", "ds_swizzle")):
            d["w"] = regs(ops[0]); d["r"] = set().union(*[regs(o) for o in ops[1:]])
        else: d["r"] = set().union(*[regs(o) for o in ops])
        return d
    if mn.startswith("s_"):
        d["kind"] = "salu"
        if mn.startswith(("s_cmp", "s_cbranch", "s_branch", "s_waitcnt", "s_barrier", "s_setprio", "s_endpgm", "s_sleep")):
            d["r"] = set().union(*[regs(o) for o in ops]) if ops and mn.startswith("s_cmp") else set()
        else:
            d["w"] = regs(ops[0]) if ops else set(); d["r"] = set().union(*[regs(o) for o in ops[1:]]) if len(ops) > 1 else set()
        return d
    return d

def check(lines, name=""):
    ins = [c for c in (classify(l) for l in lines) if c]
    errs = []
    for i, c in enumerate(ins):
        dist = 0
        for j in range(i - 1, max(-1, i - 24), -1):
            p = ins[j]
            need = 0
            vw = {x for x in p["w"] if x[0] in "va"}; sw = {x for x in p["w"] if x[0] == "s"}
            if p["kind"] == "valu":
                if c["kind"] == "mfma" and vw & c["r"]: need = max(need, 2)
                if p.get("trans") and c["kind"] == "valu" and not c.get("trans") and vw & c["r"]: need = max(need, 1)
                if p.get("trans") and c["kind"] == "valu" and c.get("trans") and vw & c["r"]: need = max(need, 1)
                if p.get("dot") and c["kind"] != "salu" and vw & (c["r"] | c["w"]):
                    same = c["mn"] == p["mn"]
                    need = max(need, 3)
                if p.get("opsel") and c["kind"] == "valu" and vw & (c["r"] | c["w"]): need = max(need, 1)
                if c.get("perm") and vw & c["r"]: need = max(need, 2)
                if c.get("dpp") and vw & c["r"]: need = max(need, 2)
                if c.get("rl") and vw & c["r"]: need = max(need, 1)
                if sw and c["kind"] == "vmem" and sw & c["r"]: need = max(need, 5)
                if sw and c["kind"] == "valu" and sw & c["r"]: need = max(need, 2)
                if ("s", "exec") in sw and c["kind"] == "mfma": need = max(need, 4)
            if p["kind"] == "salu" and ("s", "m0") in p["w"] and c.get("ldsdma"): need = max(need, 1)
            if p["kind"] == "mfma":
                big = p["passes"] == 8
                if c["kind"] == "mfma":
                    if p["w"] & c["ab"]: need = max(need, 12 if big else 8)
                    if p["w"] & c["srcc"] and p["w"] != c["srcc"]: need = max(need, 10 if big else 6)
                elif c["kind"] in ("valu", "vmem", "ds") and p["w"] & (c["r"] | c["w"]): need = max(need, 12 if big else 8)
                if c["kind"] == "valu" and p["srcc"] & c["w"]: need = max(need, 7 if big else 3)
            if p["data"] and p["data"] & c["w"]: need = max(need, 2 if c["kind"] in ("valu", "mfma") else 1)
            if need > dist:
                errs.append(f"[{name}] hazard need {need} have {dist}: '{p['line']}' -> '{c['line']}'")
            dist += p["states"]
            if dist > 20: break
    return errs
```

```python
import sys, struct, math
from asmlib import Asm, check

OPT = dict(f16=0, k1prio=1, st_nt=0, h_nt=0, out_nt=0, x_nt=0)
for a in sys.argv[2:]:
    k, v = a.split("="); OPT[k] = int(v)

def f32(x): return "0x%08x" % struct.unpack("<I", struct.pack("<f", x))[0]
def f16bits(x): return struct.unpack("<H", struct.pack("<e", x))[0]

M = 147456; C = 384; F = 1536
XBYTES = M * C * 2
WSBYTES = 452984832
TILE_H = 589824; CHUNK_H = 12288; HSTRIDE = 3 * TILE_H - 2 * CHUNK_H
TAIL = 256 * HSTRIDE
W1F = TAIL; W2F = TAIL + 1179648; B2 = TAIL + 2359296; SSQ = TAIL + 2363392
NREP = 8
K1c = 2.0 * math.sqrt(2.0 / math.pi) * math.log2(math.e)
K3c = K1c * 0.044715
if OPT["f16"]:
    C0 = 1258.0 / 256.0
    ALPHA = K1c / C0
else:
    ALPHA = K3c ** (1.0 / 3.0)
    C0 = K1c / ALPHA

def srd(a, d, lo, hi, nrec, off=0):
    if off:
        a(f"s_add_u32 s{d}, s{lo}, {off}")
        a(f"s_addc_u32 s{d+1}, s{hi}, 0")
    else:
        a(f"s_mov_b32 s{d}, s{lo}")
        a(f"s_mov_b32 s{d+1}, s{hi}")
    a(f"s_mov_b32 s{d+2}, {nrec}")
    a(f"s_mov_b32 s{d+3}, 0x00020000")

def q(r, n=4): return f"v[{r}:{r+n-1}]"

def kernel_start(a, name):
    a(f".globl {name}")
    a(".p2align 8")
    a(f".type {name},@function")
    a.label(name)

def desc(name, vgpr, sgpr=96):
    acc = min(256, (vgpr + 3) // 4 * 4)
    return f""".p2align 6
.amdhsa_kernel {name}
  .amdhsa_next_free_vgpr {vgpr}
  .amdhsa_next_free_sgpr {sgpr}
  .amdhsa_accum_offset {acc}
  .amdhsa_group_segment_fixed_size 0
  .amdhsa_kernarg_size 72
  .amdhsa_user_sgpr_count 2
  .amdhsa_user_sgpr_kernarg_segment_ptr 1
  .amdhsa_system_sgpr_workgroup_id_x 1
  .amdhsa_float_denorm_mode_32 3
.end_amdhsa_kernel
"""

def k0():
    a = Asm()
    kernel_start(a, "prep_kernel")
    a("s_cmp_ge_u32 s2, 300")
    a("s_cbranch_scc1 K0_end")
    a("s_load_dwordx4 s[4:7], s[0:1], 16")
    a("s_load_dwordx2 s[8:9], s[0:1], 40")
    a("s_load_dwordx2 s[10:11], s[0:1], 64")
    a("v_lshrrev_b32 v1, 6, v0")
    a("v_and_b32 v2, 63, v0")
    a("v_readfirstlane_b32 s3, v1")
    a("s_waitcnt lgkmcnt(0)")
    srd(a, 12, 4, 5, C * F * 2)
    srd(a, 16, 6, 7, C * F * 2)
    srd(a, 20, 8, 9, F * 2)
    srd(a, 24, 10, 11, WSBYTES - TAIL, TAIL)
    a("s_cmp_ge_u32 s2, 288")
    a("s_cbranch_scc1 K0_b2")
    a("s_lshl_b32 s30, s2, 2")
    a("s_add_u32 s30, s30, s3")
    a("s_mul_i32 s31, s30, 43691")
    a("s_lshr_b32 s31, s31, 19")
    a("s_mul_i32 s32, s31, 12")
    a("s_sub_u32 s32, s30, s32")
    a(f"s_mul_i32 s32, s32, {32 * 3072}")
    a("s_lshl_b32 s31, s31, 5")
    a("s_add_u32 s32, s32, s31")
    a("v_lshrrev_b32 v3, 4, v2")
    a(f"v_mul_u32_u24 v3, {8 * 3072}, v3")
    a("v_and_b32 v4, 15, v2")
    a("v_lshl_add_u32 v3, v4, 1, v3")
    for e in range(8):
        a(f"buffer_load_ushort v{8+e}, v3, s[12:15], s32 offen" + (" offset:3072" if e & 1 else ""))
        if e & 1 and e < 7: a("s_add_u32 s32, s32, 6144")
    a("v_lshlrev_b32 v5, 4, v0")
    a("s_lshl_b32 s33, s2, 12")
    a("s_cmp_ge_u32 s2, 12")
    a("s_cbranch_scc1 K0_noz")
    for i in range(4): a(f"v_mov_b32 v{20+i}, 0")
    a(f"s_add_u32 s34, s33, {SSQ - TAIL}")
    a("buffer_store_dwordx4 v[20:23], v5, s[24:27], s34 offen")
    a.label("K0_noz")
    a("s_waitcnt vmcnt(0)")
    for i in range(4): a(f"v_lshl_or_b32 v{16+i}, v{9+2*i}, 16, v{8+2*i}")
    a("buffer_store_dwordx4 v[16:19], v5, s[24:27], s33 offen")
    a("s_endpgm")
    a.label("K0_b2")
    a("s_sub_u32 s30, s2, 288")
    a("s_lshl_b32 s31, s30, 6")
    a("v_lshrrev_b32 v3, 2, v0")
    a("v_and_b32 v4, 3, v0")
    a(f"v_mul_u32_u24 v5, {24 * 768}, v3")
    a("v_lshl_add_u32 v5, v4, 4, v5")
    a("v_mul_u32_u24 v6, 48, v3")
    for i in range(3): a(f"buffer_load_dwordx4 {q(8+4*i)}, v6, s[20:23], 0 offen offset:{16*i}")
    for r in range(24):
        a(f"buffer_load_dwordx4 {q(32+4*r)}, v5, s[16:19], s31 offen offset:{(r % 4) * 768}")
        if r % 4 == 3: a("s_add_u32 s31, s31, 3072")
    for i in range(8): a(f"v_mov_b32 v{20+i}, 0")
    a("s_waitcnt vmcnt(0)")
    for r in range(24):
        src = 8 + r // 2
        a(f"v_lshlrev_b32 v28, 16, v{src}" if r % 2 == 0 else f"v_and_b32 v28, 0xffff0000, v{src}")
        for d in range(4):
            w = 32 + 4 * r + d
            a(f"v_lshlrev_b32 v29, 16, v{w}")
            a(f"v_and_b32 v30, 0xffff0000, v{w}")
            a(f"v_fmac_f32 v{20+2*d}, v28, v29")
            a(f"v_fmac_f32 v{21+2*d}, v28, v30")
    a("v_lshlrev_b32 v7, 5, v0")
    a("ds_write_b128 v7, v[20:23]")
    a("ds_write_b128 v7, v[24:27] offset:16")
    a("s_waitcnt lgkmcnt(0)")
    a("s_barrier")
    a("s_cmp_lg_u32 s3, 0")
    a("s_cbranch_scc1 K0_end")
    a("v_and_b32 v4, 31, v2")
    a("v_lshlrev_b32 v4, 2, v4")
    a("v_lshrrev_b32 v3, 5, v2")
    a("v_lshl_add_u32 v7, v3, 12, v4")
    for r in range(32): a(f"ds_read_b32 v{32+r}, v7 offset:{r*128}")
    a("s_waitcnt lgkmcnt(0)")
    for st in (16, 8, 4, 2, 1):
        for r in range(st): a(f"v_add_f32 v{32+r}, v{32+r}, v{32+st+r}")
    a("v_mov_b32 v33, v32")
    a("s_nop 1")
    a("v_permlane32_swap_b32 v32, v33")
    a("s_nop 1")
    a("v_add_f32 v32, v32, v33")
    a("s_lshl_b32 s31, s30, 7")
    a(f"s_add_u32 s31, s31, {B2 - TAIL}")
    a("v_cmp_gt_u32 vcc, 32, v2")
    a("s_and_saveexec_b64 s[40:41], vcc")
    a("buffer_store_dword v32, v4, s[24:27], s31 offen")
    a.label("K0_end")
    a("s_endpgm")
    return a, desc("prep_kernel", 128, 48), "; @launch kernel=prep_kernel grid=(300,1,1) block=(256,1,1) lds=8192"

def k2():
    a = Asm()
    kernel_start(a, "mid_kernel")
    a("s_cmp_ge_u32 s2, 288")
    a("s_cbranch_scc1 K2_end")
    a("s_load_dwordx4 s[4:7], s[0:1], 24")
    a("s_load_dwordx2 s[10:11], s[0:1], 64")
    a("v_lshrrev_b32 v1, 6, v0")
    a("v_and_b32 v2, 63, v0")
    a("v_readfirstlane_b32 s3, v1")
    a("s_waitcnt lgkmcnt(0)")
    srd(a, 12, 4, 5, C * F * 2)
    srd(a, 16, 6, 7, F * 2)
    srd(a, 24, 10, 11, WSBYTES - TAIL, TAIL)
    a("v_lshlrev_b32 v5, 4, v0")
    a("v_lshlrev_b32 v6, 3, v0")
    a("v_add_u32 v6, 4096, v6")
    a(f"s_mov_b32 s34, {SSQ - TAIL}")
    for r in range(NREP):
        a(f"buffer_load_dwordx4 {q(32+6*r)}, v5, s[24:27], s34 offen")
        a(f"buffer_load_dwordx2 {q(36+6*r, 2)}, v6, s[24:27], s34 offen")
        if r < NREP - 1: a("s_add_u32 s34, s34, 6144")
    a("s_lshl_b32 s30, s2, 2")
    a("s_add_u32 s30, s30, s3")
    a("s_mul_i32 s31, s30, 43691")
    a("s_lshr_b32 s31, s31, 20")
    a("s_mul_i32 s32, s31, 24")
    a("s_sub_u32 s32, s30, s32")
    a("s_lshr_b32 s33, s32, 1")
    a("s_lshl_b32 s33, s33, 6")
    a("s_and_b32 s32, s32, 1")
    a("s_lshl_b32 s32, s32, 3")
    a("s_add_u32 s33, s33, s32")
    a(f"s_mul_i32 s32, s31, {32 * 768}")
    a("s_add_u32 s33, s33, s32")
    a("v_lshrrev_b32 v3, 4, v2")
    a("v_and_b32 v4, 1, v3")
    a("v_lshlrev_b32 v4, 4, v4")
    a("v_lshrrev_b32 v3, 1, v3")
    a("v_lshl_add_u32 v3, v3, 3, v4")
    a("v_mul_u32_u24 v7, 768, v3")
    a("v_bfe_u32 v4, v2, 2, 2")
    a("v_lshl_add_u32 v7, v4, 4, v7")
    a("v_and_b32 v4, 3, v2")
    a("v_lshl_add_u32 v7, v4, 1, v7")
    for e in range(8):
        if e == 4: a("s_add_u32 s33, s33, 3072")
        a(f"buffer_load_ushort v{8+e}, v7, s[12:15], s33 offen offset:{(e % 4) * 768}")
    a("s_lshl_b32 s35, s31, 6")
    a("v_lshlrev_b32 v4, 1, v3")
    a("buffer_load_dwordx4 v[16:19], v4, s[16:19], s35 offen")
    a("s_waitcnt vmcnt(9)")
    for k in range(6):
        for r in range(1, NREP): a(f"v_add_f32 v{32+k}, v{32+k}, v{32+6*r+k}")
    a(f"s_mov_b32 s36, {f32(1.0 / (ALPHA * ALPHA))}")
    a(f"v_mov_b32 v20, {f32(1e-6)}")
    for k in range(6): a(f"v_fma_f32 v{32+k}, v{32+k}, s36, v20")
    for k in range(6): a(f"v_sqrt_f32 v{32+k}, v{32+k}")
    a("s_nop 0")
    a("ds_write_b128 v5, v[32:35]")
    a("ds_write_b64 v6, v[36:37]")
    a("v_add_f32 v21, v32, v33")
    a("v_add_f32 v22, v34, v35")
    a("v_add_f32 v23, v36, v37")
    a("v_add_f32 v21, v21, v22")
    a("v_add_f32 v21, v21, v23")
    for ctl in ("row_shr:1", "row_shr:2", "row_shr:4", "row_shr:8"):
        a("s_nop 1")
        a(f"v_add_f32_dpp v21, v21, v21 {ctl} row_mask:0xf bank_mask:0xf bound_ctrl:0")
    a("s_nop 1")
    a("v_readlane_b32 s40, v21, 15")
    a("v_readlane_b32 s41, v21, 31")
    a("v_readlane_b32 s42, v21, 47")
    a("v_readlane_b32 s43, v21, 63")
    a("s_nop 1")
    a("v_mov_b32 v22, s40")
    a("v_add_f32 v22, s41, v22")
    a("v_add_f32 v22, s42, v22")
    a("v_add_f32 v22, s43, v22")
    a("s_lshl_b32 s37, s3, 2")
    a("v_mov_b32 v23, s37")
    a("ds_write_b32 v23, v22 offset:6144")
    a("s_waitcnt lgkmcnt(0)")
    a("s_barrier")
    a("v_mov_b32 v23, 0")
    a("ds_read_b128 v[24:27], v23 offset:6144")
    a("s_lshl_b32 s37, s31, 7")
    a("v_lshlrev_b32 v4, 2, v3")
    a("v_add_u32 v4, s37, v4")
    a("ds_read_b128 v[32:35], v4")
    a("ds_read_b128 v[36:39], v4 offset:16")
    a("s_waitcnt lgkmcnt(0)")
    a("v_add_f32 v24, v24, v25")
    a("v_add_f32 v26, v26, v27")
    a("v_add_f32 v24, v24, v26")
    a(f"v_fmaak_f32 v24, {f32(1.0 / F)}, v24, {f32(1e-6)}".replace(f"{f32(1.0 / F)}, v24, {f32(1e-6)}", f"v24, v24, 0") if False else f"v_mul_f32 v24, {f32(1.0 / F)}, v24")
    a(f"v_add_f32 v24, {f32(1e-6)}, v24")
    a("v_rcp_f32 v24, v24")
    a("s_waitcnt vmcnt(0)")
    a(f"s_mov_b32 s36, {f32(1.0 / ALPHA)}")
    for e in range(8):
        src = 16 + e // 2
        a(f"v_lshlrev_b32 v40, 16, v{src}" if e % 2 == 0 else f"v_and_b32 v40, 0xffff0000, v{src}")
        a(f"v_mul_f32 v{32+e}, v{32+e}, v24")
        a(f"v_fma_f32 v{32+e}, v{32+e}, v40, 1.0")
        a(f"v_mul_f32 v{32+e}, s36, v{32+e}")
        a(f"v_lshlrev_b32 v{8+e}, 16, v{8+e}")
        a(f"v_mul_f32 v{8+e}, v{8+e}, v{32+e}")
    for i in range(4): a(f"v_cvt_pk_bf16_f32 v{44+i}, v{8+2*i}, v{9+2*i}")
    a("s_lshl_b32 s33, s2, 12")
    a(f"s_add_u32 s33, s33, {W2F - TAIL}")
    a("buffer_store_dwordx4 v[44:47], v5, s[24:27], s33 offen")
    a.label("K2_end")
    a("s_endpgm")
    return a, desc("mid_kernel", 96, 48), "; @launch kernel=mid_kernel grid=(288,1,1) block=(256,1,1) lds=8192"

def k1():
    a = Asm()
    XN = 16; ACC = 160; BB = 208; TMP = 240; SS = 252
    vL16, vXO, vRD, vST, vSA, vDW, vSC = 1, 2, 3, 4, 5, 6, 7
    L_SSQ = 147456; L_DW = L_SSQ + 6144
    sX, sW1, sH, sOUT = 8, 12, 16, 20
    sWSlo, sWShi, sOUTlo, sOUThi = 24, 25, 26, 27
    sWV, sGRP, sI, sEND, sQ12, sRDS, sDSL, sT0, sT1, sC0, sHB, sXB, sP, sQ, sSIG, sT2, sC0H = range(30, 47)
    kernel_start(a, "gemm1_kernel")
    a("s_cmp_ge_u32 s2, 256")
    a("s_cbranch_scc1 K1_end")
    a("s_load_dwordx4 s[4:7], s[0:1], 0")
    a(f"s_load_dwordx2 s[{sOUTlo}:{sOUThi}], s[0:1], 48")
    a(f"s_load_dwordx2 s[{sWSlo}:{sWShi}], s[0:1], 64")
    a("v_lshrrev_b32 v8, 6, v0")
    a("v_and_b32 v9, 63, v0")
    a(f"v_readfirstlane_b32 s{sWV}, v8")
    a(f"v_lshlrev_b32 v{vL16}, 4, v9")
    a("v_and_b32 v10, 15, v9")
    a("v_lshrrev_b32 v11, 4, v9")
    a(f"v_mul_u32_u24 v{vXO}, 768, v10")
    a(f"v_lshl_add_u32 v{vXO}, v11, 4, v{vXO}")
    a(f"v_lshl_add_u32 v{vST}, v10, 2, v11")
    a(f"v_lshlrev_b32 v{vST}, 4, v{vST}")
    a(f"v_lshlrev_b32 v{vSA}, 2, v10")
    a(f"v_add_u32 v{vSA}, {L_SSQ}, v{vSA}")
    a(f"v_lshlrev_b32 v{vDW}, 5, v11")
    a(f"v_add_u32 v{vDW}, {L_DW}, v{vDW}")
    a(f"s_lshr_b32 s{sP}, s2, 4")
    a(f"s_lshl_b32 s{sP}, s{sP}, 3")
    a(f"s_and_b32 s{sT0}, s2, 7")
    a(f"s_add_u32 s{sP}, s{sP}, s{sT0}")
    a(f"s_bfe_u32 s{sQ}, s2, 0x10003")
    a(f"s_mul_i32 s{sQ12}, s{sQ}, 12")
    a(f"s_lshr_b32 s{sGRP}, s{sWV}, 2")
    a(f"s_and_b32 s{sT1}, s{sWV}, 3")
    a(f"s_mul_i32 s{sT2}, s{sT1}, 3072")
    a(f"v_add_u32 v{vST}, s{sT2}, v{vST}")
    a(f"s_mov_b32 s{sC0}, {f32(-C0)}")
    h = f16bits(-C0); a(f"s_mov_b32 s{sC0H}, 0x{h:04x}{h:04x}")
    a("s_waitcnt lgkmcnt(0)")
    srd(a, sX, 4, 5, XBYTES)
    srd(a, sW1, sWSlo, sWShi, 1179648, W1F)
    srd(a, sH, sWSlo, sWShi, TAIL)
    srd(a, sOUT, 6, 7, C * 2)
    a(f"s_lshl_b32 s{sT0}, s{sP}, 1")
    a(f"s_add_u32 s{sT0}, s{sT0}, s{sGRP}")
    a(f"s_mul_i32 s{sHB}, s{sT0}, {HSTRIDE}")
    a(f"s_mul_i32 s{sXB}, s{sT0}, {3 * 192 * 768}")
    a(f"s_mul_i32 s{sT2}, s{sT1}, {48 * 768}")
    a(f"s_add_u32 s{sXB}, s{sXB}, s{sT2}")

    def dma(sig_reg, slot_reg):
        L = [f"s_mul_i32 s{sT0}, s{sig_reg}, 49152", f"s_mul_i32 s{sT1}, s{sWV}, 6144",
             f"s_add_u32 s{sT0}, s{sT0}, s{sT1}", f"s_add_u32 m0, s{slot_reg}, s{sT1}", "s_nop 0"]
        P = [[f"buffer_load_dwordx4 v{vL16}, s[{sW1}:{sW1+3}], s{sT0} offen offset:{k*1024} lds"] for k in range(4)]
        P.append([f"s_add_u32 m0, m0, 4096", f"s_add_u32 s{sT0}, s{sT0}, 4096",
                  f"buffer_load_dwordx4 v{vL16}, s[{sW1}:{sW1+3}], s{sT0} offen lds"])
        P.append([f"buffer_load_dwordx4 v{vL16}, s[{sW1}:{sW1+3}], s{sT0} offen offset:1024 lds"])
        P[0] = L + P[0]
        return P

    def xloads():
        L = [f"s_add_u32 s{sT0}, s{sXB}, 12288", f"s_add_u32 s{sT1}, s{sXB}, 24576"]
        for ks in range(12):
            for tt in range(3):
                so = (sXB, sT0, sT1)[tt]
                L.append(f"buffer_load_dwordx4 {q(XN + 48*tt + 4*ks)}, v{vXO}, s[{sX}:{sX+3}], s{so} offen offset:{ks*64}" + (" nt" if OPT["x_nt"] else ""))
        return L

    a("v_lshlrev_b32 v12, 1, v0")
    a(f"buffer_load_ushort v13, v12, s[{sOUT}:{sOUT+3}], 0 offen")
    a(f"s_mov_b32 s{sSIG}, s{sQ12}")
    a(f"s_mov_b32 s{sDSL}, 0")
    for p in dma(sSIG, sDSL): a.ext(p)
    a(f"s_add_u32 s{sSIG}, s{sQ12}, 1")
    a(f"s_mov_b32 s{sDSL}, 49152")
    for p in dma(sSIG, sDSL): a.ext(p)
    a(f"s_mov_b32 s{sDSL}, 98304")
    a.ext(xloads())
    a("v_and_b32 v14, 1, v0")
    a("v_lshlrev_b32 v14, 4, v14")
    a("v_lshlrev_b32 v12, 2, v0")
    a("v_mov_b32 v15, 0")
    for k in range(3): a(f"ds_write_b32 v12, v15 offset:{k*2048}".replace("v12, v15 offset", "v" + "8" + ", v15 offset") if False else f"ds_write_b32 v12, v15 offset:{k*2048}")
    a.lines = a.lines[:-3]
    a(f"v_add_u32 v12, {L_SSQ}, v12")
    for k in range(3): a(f"ds_write_b32 v12, v15 offset:{k*2048}")
    a("s_waitcnt vmcnt(48)")
    a("v_lshlrev_b32 v13, v14, v13")
    a("ds_write_b32 v12, v13 offset:6144")
    srd(a, sOUT, sOUTlo, sOUThi, XBYTES)
    a(f"s_mov_b32 s{sI}, 0")
    a(f"s_mov_b32 s{sEND}, 12")
    a(f"s_mov_b32 s{sRDS}, 0")
    a("s_waitcnt lgkmcnt(0)")
    a("s_barrier")

    def rd(i): return f"ds_read_b128 {q(BB + 4*(i % 8))}, v{vRD} offset:{i*1024}"
    def head(): return [f"v_add_u32 v{vRD}, s{sRDS}, v{vL16}"] + [rd(i) for i in range(4)]

    a.label("K1_seg")
    DWR = [ACC, ACC + 8]
    Y = ACC + 16
    S = BB; Q = BB + 6
    NM = BB + 12; RS = BB + 16
    def dwrd(ks): return [f"ds_read_b128 {q(DWR[ks % 2])}, v{vDW} offset:{ks*128}", f"ds_read_b128 {q(DWR[ks % 2] + 4)}, v{vDW} offset:{ks*128+16}"]
    a.ext(dwrd(0))
    for i in range(12): a(f"v_mov_b32 v{S+i}, 0")
    for ks in range(12):
        a.ext(dwrd((ks + 1) % 12))
        a(f"s_waitcnt vmcnt({33 - 3*ks}) lgkmcnt(2)")
        D = DWR[ks % 2]
        for tt in range(3):
            for j in range(4):
                x = XN + 48*tt + 4*ks + j
                a(f"v_dot2_f32_bf16 v{Y+8*tt+2*j}, v{x}, v{D+2*j}, 0")
                a(f"v_dot2_f32_bf16 v{Y+8*tt+2*j+1}, v{x}, v{D+2*j+1}, 0")
        for j in range(4):
            for tt in range(3):
                y = q(Y+8*tt+2*j, 2)
                a(f"v_pk_add_f32 {q(S+2*tt,2)}, {q(S+2*tt,2)}, {y}")
                a(f"v_pk_fma_f32 {q(Q+2*tt,2)}, {y}, {y}, {q(Q+2*tt,2)}")
    V = [S, S+2, S+4, Q, Q+2, Q+4]
    for v in V: a(f"v_add_f32 v{v}, v{v}, v{v+1}")
    for sw in ("v_permlane16_swap_b32", "v_permlane32_swap_b32"):
        for v in V: a(f"v_mov_b32 v{v+1}, v{v}")
        for v in V: a(f"{sw} v{v}, v{v+1}")
        for v in V: a(f"v_add_f32 v{v}, v{v}, v{v+1}")
    for tt in range(3): a(f"v_mul_f32 v{NM+tt}, {f32(-1.0 / C)}, v{S+2*tt}")
    for tt in range(3): a(f"v_mul_f32 v{Q+2*tt}, {f32(1.0 / C)}, v{Q+2*tt}")
    for tt in range(3): a(f"v_fma_f32 v{Q+2*tt}, -v{NM+tt}, v{NM+tt}, v{Q+2*tt}")
    for tt in range(3): a(f"v_max_f32 v{Q+2*tt}, 0, v{Q+2*tt}")
    for tt in range(3): a(f"v_add_f32 v{Q+2*tt}, {f32(1e-5)}, v{Q+2*tt}")
    for tt in range(3): a(f"v_rsq_f32 v{Q+2*tt}, v{Q+2*tt}")
    for tt in range(3): a(f"v_mul_f32 v{RS+2*tt}, {f32(ALPHA)}, v{Q+2*tt}")
    for ks in range(12):
        if ks < 11:
            a.ext(dwrd(ks + 1)); a("s_waitcnt lgkmcnt(2)")
        else: a("s_waitcnt lgkmcnt(0)")
        D = DWR[ks % 2]
        for tt in range(3):
            for j in range(4):
                x = XN + 48*tt + 4*ks + j
                a(f"v_dot2_f32_bf16 v{Y+8*tt+2*j}, v{x}, v{D+2*j}, v{NM+tt}")
                a(f"v_dot2_f32_bf16 v{Y+8*tt+2*j+1}, v{x}, v{D+2*j+1}, v{NM+tt}")
        for tt in range(3):
            for j in range(4):
                y = q(Y+8*tt+2*j, 2)
                a(f"v_pk_mul_f32 {y}, {y}, {q(RS+2*tt,2)} op_sel_hi:[1,0]")
        for tt in range(3):
            for j in range(4):
                a(f"v_cvt_pk_bf16_f32 v{XN+48*tt+4*ks+j}, v{Y+8*tt+2*j}, v{Y+8*tt+2*j+1}")
    a("s_barrier")
    a.ext(head())

    a(".p2align 6")
    a.label("K1_step")
    a(f"s_cmp_eq_u32 s{sGRP}, 0")
    a("s_cbranch_scc1 K1_noB")
    a("s_barrier")
    a.label("K1_noB")
    if OPT["k1prio"]: a("s_setprio 1")
    a(f"s_add_u32 s{sT2}, s{sI}, 2")
    a(f"s_cmp_lt_u32 s{sT2}, 12")
    a(f"s_cselect_b32 s{sSIG}, s{sQ12}, -12")
    a(f"s_add_u32 s{sSIG}, s{sSIG}, s{sT2}")
    a(f"s_cmp_lt_u32 s{sT2}, 36")
    a(f"s_cselect_b32 s{sSIG}, s{sSIG}, 0")
    a(f"s_cselect_b32 s{sW1+2}, 1179648, 0")
    P = dma(sSIG, sDSL)
    def accr(ct, tt): return ACC + (((ct >> 1) * 3 + tt) * 2 + (ct & 1)) * 4
    for g in range(12):
        a("s_waitcnt lgkmcnt(0)")
        k = 0
        ct = g // 3
        for tt in range(3):
            for j in range(4):
                i = g * 4 + j; ks = i % 12
                c = "0" if ks == 0 else q(accr(ct, tt))
                a(f"v_mfma_f32_16x16x32_bf16 {q(accr(ct, tt))}, {q(XN + 48*tt + 4*ks)}, {q(BB + 4*(i % 8))}, {c}")
                if g < 11 and k % 2 == 0 and k < 8: a(rd(g * 4 + 4 + k // 2))
                if k == 9 and g < 6: a.ext(P[g])
                k += 1
    if OPT["k1prio"]: a("s_setprio 0")
    a(f"s_add_u32 s{sDSL}, s{sDSL}, 49152")
    a(f"s_cmp_eq_u32 s{sDSL}, 147456")
    a(f"s_cselect_b32 s{sDSL}, 0, s{sDSL}")
    a(f"s_add_u32 s{sRDS}, s{sRDS}, 49152")
    a(f"s_cmp_eq_u32 s{sRDS}, 147456")
    a(f"s_cselect_b32 s{sRDS}, 0, s{sRDS}")
    a(f"s_cmp_lt_u32 s{sI}, 12")
    a(f"s_cselect_b32 s{sSIG}, s{sQ12}, -12")
    a(f"s_add_u32 s{sSIG}, s{sSIG}, s{sI}")
    a(f"s_lshl_b32 s{sT2}, s{sSIG}, 8")
    a(f"v_add_u32 v{vSC}, s{sT2}, v{vSA}")
    a("s_barrier")
    a(f"s_cmp_lg_u32 s{sI}, 11")
    a("s_cbranch_scc1 K1_nox")
    a(f"s_lshl_b32 s{sT0}, s{sP}, 1")
    a(f"s_add_u32 s{sT0}, s{sT0}, s{sQ}")
    a(f"s_mul_i32 s{sXB}, s{sT0}, {3 * 192 * 768}")
    a(f"s_add_u32 s{sT0}, s{sWV}, 4")
    a(f"s_mul_i32 s{sT0}, s{sT0}, {48 * 768}")
    a(f"s_add_u32 s{sXB}, s{sXB}, s{sT0}")
    a.ext(xloads())
    a.label("K1_nox")
    a(f"s_mul_i32 s{sT0}, s{sSIG}, {2 * CHUNK_H}")
    a(f"s_add_u32 s{sT0}, s{sT0}, s{sHB}")
    a(f"s_add_u32 s{sT2}, s{sI}, s{sGRP}")
    a(f"s_cmp_lg_u32 s{sT2}, 36")
    a("s_cbranch_scc1 K1_nodisp")
    a(f"s_mov_b32 s{sH}, s{sOUT}")
    a(f"s_mov_b32 s{sH+1}, s{sOUT+1}")
    a(f"s_mov_b32 s{sH+2}, s{sOUT+2}")
    a(f"s_lshl_b32 s{sT0}, s{sP}, 1")
    a(f"s_add_u32 s{sT0}, s{sT0}, s{sQ}")
    a(f"s_mul_i32 s{sT0}, s{sT0}, {3 * 192 * 768}")
    a.label("K1_nodisp")
    a(f"s_add_u32 s{sT1}, s{sT0}, {CHUNK_H}")
    order = [0, 4, 1, 5, 2, 6, 3, 7]
    for cp in range(2):
        for tt in range(3):
            b = ACC + (cp * 3 + tt) * 8
            R = [b + i for i in range(8)]
            if not OPT["f16"]:
                T = [TMP + i for i in range(8)]
                for v, t in zip(R, T): a(f"v_fma_f32 v{t}, -v{v}, v{v}, s{sC0}")
                for v, t in zip(R, T): a(f"v_mul_f32 v{t}, v{t}, v{v}")
                for t in T: a(f"v_exp_f32 v{t}, v{t}")
                for t in T: a(f"v_add_f32 v{t}, 1.0, v{t}")
                for t in T: a(f"v_rcp_f32 v{t}, v{t}")
                for v, t in zip(R, T): a(f"v_mul_f32 v{t}, v{v}, v{t}")
                Gv = T
            else:
                H = [TMP + i for i in range(4)]; Pp = [TMP + 4 + i for i in range(4)]
                for i in range(4): a(f"v_cvt_pk_f16_f32 v{H[i]}, v{R[2*i]}, v{R[2*i+1]}")
                for i in range(4): a(f"v_pk_fma_f16 v{Pp[i]}, v{H[i]}, v{H[i]}, s{sC0H} neg_lo:[1,0,0] neg_hi:[1,0,0]")
                for i in range(4): a(f"v_pk_mul_f16 v{Pp[i]}, v{Pp[i]}, v{H[i]}")
                for i in range(4): a(f"v_exp_f16 v{H[i]}, v{Pp[i]}")
                for i in range(4): a(f"v_exp_f16_sdwa v{H[i]}, v{Pp[i]} dst_sel:WORD_1 dst_unused:UNUSED_PRESERVE src0_sel:WORD_1")
                for i in range(4): a(f"v_pk_add_f16 v{H[i]}, v{H[i]}, 1.0 op_sel_hi:[1,0]")
                for i in range(4): a(f"v_rcp_f16 v{Pp[i]}, v{H[i]}")
                for i in range(4): a(f"v_rcp_f16_sdwa v{H[i]}, v{H[i]} dst_sel:DWORD dst_unused:UNUSED_PAD src0_sel:WORD_1")
                for i in range(4): a(f"v_fma_mix_f32 v{R[2*i]}, v{R[2*i]}, v{Pp[i]}, 0 op_sel_hi:[0,1,0]")
                for i in range(4): a(f"v_fma_mix_f32 v{R[2*i+1]}, v{R[2*i+1]}, v{H[i]}, 0 op_sel_hi:[0,1,0]")
                Gv = R
            for e in order:
                s = SS + 2 * cp + e // 4
                if tt == 0 and e % 4 == 0: a(f"v_mul_f32 v{s}, v{Gv[e]}, v{Gv[e]}")
                else: a(f"v_fmac_f32 v{s}, v{Gv[e]}, v{Gv[e]}")
            for i in range(4): a(f"v_cvt_pk_bf16_f32 v{b+i}, v{Gv[2*i]}, v{Gv[2*i+1]}")
            so = (sT0, sT1)[cp]
            a(f"buffer_store_dwordx4 {q(b)}, v{vST}, s[{sH}:{sH+3}], s{so} offen offset:{tt*1024}" + (" nt" if OPT["st_nt"] else ""))
        for c in range(2): a(f"ds_add_f32 v{vSC}, v{SS+2*cp+c} offset:{(2*cp+c)*64}")
    a(f"s_add_u32 s{sI}, s{sI}, 1")
    a(f"s_cmp_eq_u32 s{sI}, s{sEND}")
    a("s_cbranch_scc1 K1_segend")
    a("s_waitcnt vmcnt(6)")
    a.ext(head())
    a(f"s_cmp_lg_u32 s{sGRP}, 0")
    a("s_cbranch_scc1 K1_step")
    a("s_barrier")
    a("s_branch K1_step")
    a.label("K1_segend")
    a("s_waitcnt vmcnt(42)")
    a(f"s_cmp_lg_u32 s{sGRP}, 0")
    a("s_cbranch_scc1 K1_se2")
    a("s_barrier")
    a.label("K1_se2")
    a(f"s_cmp_eq_u32 s{sI}, 36")
    a("s_cbranch_scc1 K1_fin")
    a(f"s_mov_b32 s{sEND}, 36")
    a(f"s_lshl_b32 s{sT0}, s{sP}, 1")
    a(f"s_add_u32 s{sT0}, s{sT0}, s{sQ}")
    a(f"s_mul_i32 s{sHB}, s{sT0}, {HSTRIDE}")
    a(f"s_add_u32 s{sT0}, s{sGRP}, 1")
    a(f"s_mul_i32 s{sT0}, s{sT0}, {TILE_H}")
    a(f"s_add_u32 s{sHB}, s{sHB}, s{sT0}")
    a("s_branch K1_seg")
    a.label("K1_fin")
    a("s_waitcnt lgkmcnt(0)")
    a("s_barrier")
    a("v_lshlrev_b32 v12, 2, v0")
    a(f"v_add_u32 v13, {L_SSQ}, v12")
    for k in range(3): a(f"ds_read_b32 v{8+k}, v13 offset:{k*2048}")
    srd(a, sW1, sWSlo, sWShi, NREP * 6144, SSQ)
    a(f"s_and_b32 s{sT0}, s2, {NREP - 1}")
    a(f"s_mul_i32 s{sT0}, s{sT0}, 6144")
    a(f"s_add_u32 s{sT1}, s{sT0}, 4096")
    a("s_waitcnt lgkmcnt(0)")
    a(f"buffer_atomic_add_f32 v8, v12, s[{sW1}:{sW1+3}], s{sT0} offen")
    a(f"buffer_atomic_add_f32 v9, v12, s[{sW1}:{sW1+3}], s{sT0} offen offset:2048")
    a(f"buffer_atomic_add_f32 v10, v12, s[{sW1}:{sW1+3}], s{sT1} offen")
    a.label("K1_end")
    a("s_endpgm")
    return a, desc("gemm1_kernel", 256, 64), f"; @launch kernel=gemm1_kernel grid=(256,1,1) block=(512,1,1) lds={L_DW + 2048}"

def k3():
    a = Asm()
    ACC = 16; HB = 160; WB = 208; SEL = 232; XT = 240
    vL16, vDMA, vWR, vHR, vXR, vBR, vOUT, vWB0, vHB0 = 1, 2, 3, 4, 5, 6, 7, 8, 9
    L_W = 0; L_H = 73728; L_X = 147456; L_B = 159744
    sD, sO = 8, 12
    (sWV, sTH, sCQ, sROLE, sSrc, sPS, sDst, sSlot, sDLo, sDEnd, sStep, sWrap, sLeft, sT0, sT1, sWS, sHS, sJ, sOB, sEV, sNR, sT2) = range(30, 52)
    kernel_start(a, "gemm2_kernel")
    a("s_cmp_ge_u32 s2, 256")
    a("s_cbranch_scc1 K3_end")
    a("s_load_dwordx2 s[4:5], s[0:1], 0")
    a("s_load_dwordx2 s[6:7], s[0:1], 48")
    a("s_load_dwordx2 s[24:25], s[0:1], 64")
    a("v_lshrrev_b32 v10, 6, v0")
    a("v_and_b32 v11, 63, v0")
    a(f"v_readfirstlane_b32 s{sWV}, v10")
    a(f"v_lshlrev_b32 v{vL16}, 4, v11")
    a("v_and_b32 v12, 15, v11")
    a("v_lshrrev_b32 v13, 4, v11")
    a(f"s_lshr_b32 s{sT0}, s2, 4")
    a(f"s_lshl_b32 s{sT0}, s{sT0}, 4")
    a(f"s_and_b32 s{sT1}, s2, 7")
    a(f"s_lshl_b32 s{sT1}, s{sT1}, 1")
    a(f"s_add_u32 s{sT0}, s{sT0}, s{sT1}")
    a(f"s_bfe_u32 s{sT1}, s2, 0x10003")
    a(f"s_add_u32 s3, s{sT0}, s{sT1}")
    a(f"s_lshr_b32 s{sTH}, s{sWV}, 2")
    a(f"s_and_b32 s{sCQ}, s{sWV}, 3")
    a("v_mul_u32_u24 v14, 768, v12")
    a("v_lshl_add_u32 v14, v13, 4, v14")
    a(f"s_mul_i32 s{sT0}, s{sTH}, {96 * 768}")
    a(f"s_mul_i32 s{sT1}, s{sCQ}, 192")
    a(f"s_add_u32 s{sT0}, s{sT0}, s{sT1}")
    a(f"v_add_u32 v{vOUT}, s{sT0}, v14")
    a(f"s_mul_i32 s{sT0}, s{sCQ}, 6144")
    a(f"v_add_u32 v{vWB0}, s{sT0}, v{vL16}")
    a("v_lshrrev_b32 v15, 1, v13")
    a(f"v_lshlrev_b32 v{vHB0}, 9, v15")
    a(f"v_lshl_add_u32 v{vHB0}, v12, 4, v{vHB0}")
    a("v_and_b32 v15, 1, v13")
    a(f"v_lshl_add_u32 v{vHB0}, v15, 3, v{vHB0}")
    a(f"s_mul_i32 s{sT0}, s{sTH}, 6144")
    a(f"s_add_u32 s{sT0}, s{sT0}, {L_H}")
    a(f"v_add_u32 v{vHB0}, s{sT0}, v{vHB0}")
    a(f"s_mul_i32 s{sT0}, s{sCQ}, 3072")
    a(f"s_add_u32 s{sT0}, s{sT0}, {L_X}")
    a(f"v_add_u32 v{vXR}, s{sT0}, v{vL16}")
    a(f"s_mul_i32 s{sT0}, s{sCQ}, 384")
    a(f"s_add_u32 s{sT0}, s{sT0}, {L_B}")
    a(f"v_lshlrev_b32 v{vBR}, 5, v13")
    a(f"v_add_u32 v{vBR}, s{sT0}, v{vBR}")
    a("v_lshrrev_b32 v15, 2, v12")
    a("v_cmp_eq_u32 vcc, v15, v13")
    a("v_and_b32 v10, 1, v12")
    a("v_lshlrev_b32 v10, 4, v10")
    a("v_mov_b32 v15, 0x3f80")
    a("v_lshlrev_b32 v15, v10, v15")
    a("v_cndmask_b32 v15, 0, v15, vcc")
    a("v_and_b32 v10, 2, v12")
    a("v_cmp_eq_u32 vcc, 0, v10")
    for i in (0, 1, 4, 5): a(f"v_mov_b32 v{SEL+i}, 0")
    a(f"v_cndmask_b32 v{SEL+2}, 0, v15, vcc")
    a(f"v_cndmask_b32 v{SEL+3}, v15, v{SEL}, vcc")
    a("s_waitcnt lgkmcnt(0)")
    a(f"s_mul_i32 s{sT0}, s3, {3 * 192 * 768}")
    a(f"s_add_u32 s{sO}, s6, s{sT0}")
    a(f"s_addc_u32 s{sO+1}, s7, 0")
    a(f"s_mov_b32 s{sO+2}, {3 * 192 * 768}")
    a(f"s_mov_b32 s{sO+3}, 0x00020000")
    a(f"s_mov_b32 s{sD+3}, 0x00020000")
    a(f"v_mov_b32 v{vDMA}, v{vL16}")
    a(f"s_and_b32 s{sT1}, s{sWV}, 1")
    a(f"s_lshr_b32 s{sROLE}, s{sWV}, 1")
    a(f"s_min_u32 s{sROLE}, s{sROLE}, 2")

    def pieces(srd_, sfx=""):
        P = []
        for k in range(6):
            if k == 0: pre = [f"s_mov_b32 m0, s{sDst}", f"s_mov_b32 s{sT2}, s{sSrc}"]
            else: pre = ["s_add_u32 m0, m0, 1024", f"s_add_u32 s{sT2}, s{sT2}, s{sPS}"]
            P.append(pre + [f"buffer_load_dwordx4 v{vDMA}, s[{srd_}:{srd_+3}], s{sT2} offen{sfx} lds"])
        return P
    def advance():
        return [f"s_add_u32 s{sDst}, s{sDst}, s{sSlot}", f"s_cmp_eq_u32 s{sDst}, s{sDEnd}", f"s_cselect_b32 s{sDst}, s{sDLo}, s{sDst}",
                f"s_sub_u32 s{sSrc}, s{sSrc}, s{sStep}", f"s_cselect_b32 s{sT2}, s{sWrap}, 0", f"s_add_u32 s{sSrc}, s{sSrc}, s{sT2}",
                f"s_sub_u32 s{sLeft}, s{sLeft}, 1", f"s_cmp_gt_i32 s{sLeft}, 0", f"s_cselect_b32 s{sD+2}, s{sNR}, 0", f"s_cselect_b32 s{sSrc}, s{sSrc}, 0"]
    nt = " nt" if OPT["h_nt"] else ""

    a(f"s_cmp_eq_u32 s{sROLE}, 1")
    a("s_cbranch_scc1 K3_rx")
    a(f"s_cmp_eq_u32 s{sROLE}, 2")
    a("s_cbranch_scc1 K3_rw")
    a(f"s_mul_i32 s{sT0}, s3, {HSTRIDE}")
    a(f"s_add_u32 s{sD}, s24, s{sT0}")
    a(f"s_addc_u32 s{sD+1}, s25, 0")
    a(f"s_mov_b32 s{sNR}, {HSTRIDE}")
    a(f"s_mov_b32 s{sD+2}, {HSTRIDE}")
    a(f"s_mul_i32 s{sT1}, s{sT1}, 6144")
    a(f"s_add_u32 s{sDLo}, s{sT1}, {L_H}")
    a(f"s_add_u32 s{sDEnd}, s{sDLo}, 73728")
    a(f"s_mov_b32 s{sSlot}, {CHUNK_H}")
    a(f"s_mov_b32 s{sStep}, {CHUNK_H}")
    a(f"s_mov_b32 s{sWrap}, 0")
    a(f"s_mov_b32 s{sPS}, 1024")
    a(f"s_mov_b32 s{sDst}, s{sDLo}")
    a(f"s_add_u32 s{sSrc}, s{sT1}, {CHUNK_H}")
    for p in pieces(sO): a.ext(p)
    a(f"s_add_u32 s{sDst}, s{sDst}, {CHUNK_H}")
    a(f"s_mov_b32 s{sSrc}, s{sT1}")
    for p in pieces(sO): a.ext(p)
    a(f"s_add_u32 s{sDst}, s{sDst}, {CHUNK_H}")
    a(f"s_add_u32 s{sSrc}, s{sT1}, {HSTRIDE - CHUNK_H}")
    a(f"s_mov_b32 s{sLeft}, 142")
    for _ in range(4):
        for p in pieces(sD, nt): a.ext(p)
        a.ext(advance())
    a("s_waitcnt vmcnt(30)")
    a("s_branch K3_rdone")
    a.label("K3_rx")
    a(f"s_mul_i32 s{sT0}, s3, {3 * 192 * 768}")
    a(f"s_add_u32 s{sD}, s4, s{sT0}")
    a(f"s_addc_u32 s{sD+1}, s5, 0")
    a(f"s_mov_b32 s{sNR}, {3 * 192 * 768}")
    a(f"s_mov_b32 s{sD+2}, {3 * 192 * 768}")
    a(f"v_mov_b32 v{vDMA}, v14")
    a(f"s_mul_i32 s{sDLo}, s{sT1}, 6144")
    a(f"s_add_u32 s{sDLo}, s{sDLo}, {L_X}")
    a(f"s_mov_b32 s{sDEnd}, 0")
    a(f"s_mov_b32 s{sSlot}, 0")
    a(f"s_mov_b32 s{sStep}, 12288")
    a(f"s_mov_b32 s{sWrap}, 0")
    a(f"s_mov_b32 s{sPS}, 64")
    a(f"s_mov_b32 s{sDst}, s{sDLo}")
    a(f"s_mul_i32 s{sSrc}, s{sT1}, 384")
    a(f"s_add_u32 s{sSrc}, s{sSrc}, {35 * 12288}")
    a(f"s_mov_b32 s{sLeft}, 36")
    for p in pieces(sD): a.ext(p)
    a.ext(advance())
    srd(a, 16, 24, 25, 1536, B2)
    a(f"s_lshl_b32 s{sT0}, s{sT1}, 10")
    a(f"buffer_load_dwordx4 v[10:13], v{vL16}, s[16:19], s{sT0} offen")
    a(f"s_add_u32 s{sT0}, s{sT0}, {L_B}")
    a(f"v_add_u32 v15, s{sT0}, v{vL16}")
    a("s_waitcnt vmcnt(0)")
    a("ds_write_b128 v15, v[10:13]")
    a("s_waitcnt lgkmcnt(0)")
    a("s_branch K3_rdone")
    a.label("K3_rw")
    a(f"s_add_u32 s{sD}, s24, {W2F}")
    a(f"s_addc_u32 s{sD+1}, s25, 0")
    a(f"s_mov_b32 s{sNR}, 1179648")
    a(f"s_mov_b32 s{sD+2}, 1179648")
    a(f"s_mul_i32 s{sDLo}, s{sCQ}, 6144")
    a(f"s_add_u32 s{sDEnd}, s{sDLo}, 73728")
    a(f"s_mov_b32 s{sSlot}, 24576")
    a(f"s_mov_b32 s{sStep}, 24576")
    a(f"s_mov_b32 s{sWrap}, 1179648")
    a(f"s_mov_b32 s{sPS}, 1024")
    a(f"s_mov_b32 s{sDst}, s{sDLo}")
    a(f"s_add_u32 s{sSrc}, s{sDLo}, {47 * 24576}")
    a(f"s_mov_b32 s{sLeft}, 144")
    for _ in range(3):
        for p in pieces(sD): a.ext(p)
        a.ext(advance())
    a("s_waitcnt vmcnt(12)")
    a.label("K3_rdone")
    a(f"s_cmp_eq_u32 s{sROLE}, 1")
    a("s_cselect_b64 vcc, -1, 0")
    a("s_barrier")

    def accr(n, t): return ACC + (((n >> 1) * 6 + t) * 2 + (n & 1)) * 4
    def bias(n, t): return f"ds_read_b128 {q(accr(n, t))}, v{vBR} offset:{(32 * (n >> 1) + 4 * (n & 1)) * 4}"
    def wrd(n): return f"ds_read_b128 {q(WB + 4*n)}, v{vWR} offset:{n*1024}"
    def hrd(ph, t, u): return f"ds_read_b64_tr_b16 {q(HB + 24*ph + 4*t + 2*u, 2)}, v{vHR} offset:{t*1024 + u*256}"
    for n in range(6):
        for t in range(6): a(bias(n, t))
    a(f"s_mov_b32 s{sWS}, 0")
    a(f"s_mov_b32 s{sHS}, 0")
    a(f"v_mov_b32 v{vWR}, v{vWB0}")
    a(f"v_mov_b32 v{vHR}, v{vHB0}")
    for t in range(6):
        for u in range(2): a(hrd(0, t, u))
    for n in range(3): a(wrd(n))
    a(f"s_mov_b32 s{sJ}, 0")
    a(f"s_mov_b32 s{sOB}, {2 * 192 * 768}")
    a(f"s_mov_b32 s{sEV}, 11")
    a("s_waitcnt lgkmcnt(0)")

    a(".p2align 6")
    a.label("K3_loop")
    for u4 in range(4):
        ph = u4 % 2
        def mf(n, t): return f"v_mfma_f32_16x16x32_bf16 {q(accr(n, t))}, {q(WB + 4*n)}, {q(HB + 24*ph + 4*t)}, {q(accr(n, t))}"
        for n in range(3, 6): a(wrd(n))
        a("s_waitcnt lgkmcnt(3)")
        for n in range(3):
            for t in range(6): a(mf(n, t))
        if u4 == 3:
            a(f"s_mul_i32 s{sT0}, s{sTH}, 6")
            a(f"s_sub_u32 s{sT0}, s{sEV}, s{sT0}")
            a(f"s_cmp_lt_u32 s{sT0}, 6")
            a("s_cbranch_scc0 K3_xdone")
            for t in range(6):
                if t < 5:
                    a(f"s_cmp_lg_u32 s{sT0}, {t}")
                    a(f"s_cbranch_scc1 K3_x{t+1}")
                for n in range(6):
                    sel = SEL + 2 if n % 2 == 0 else SEL
                    a(f"v_mfma_f32_16x16x32_bf16 {q(accr(n, t))}, {q(sel)}, {q(XT + 4*(n >> 1))}, {q(accr(n, t))}")
                if t < 5:
                    a("s_branch K3_xdone")
                    a.label(f"K3_x{t+1}")
            a.label("K3_xdone")
            a(f"s_sub_u32 s{sEV}, s{sEV}, 1")
        a("s_waitcnt vmcnt(24) lgkmcnt(0)")
        a(f"s_cmp_lg_u32 s{sROLE}, 2")
        a(f"s_cbranch_scc1 K3_nw{u4}")
        a("s_waitcnt vmcnt(6)")
        a.label(f"K3_nw{u4}")
        if u4 == 2:
            a("s_cbranch_vccz K3_nx")
            a("s_waitcnt vmcnt(0)")
            a.label("K3_nx")
        a("s_barrier")
        a(f"s_add_u32 s{sWS}, s{sWS}, 24576")
        a(f"s_cmp_eq_u32 s{sWS}, 73728")
        a(f"s_cselect_b32 s{sWS}, 0, s{sWS}")
        a(f"s_add_u32 s{sHS}, s{sHS}, 12288")
        a(f"s_cmp_eq_u32 s{sHS}, 73728")
        a(f"s_cselect_b32 s{sHS}, 0, s{sHS}")
        a(f"v_add_u32 v{vWR}, s{sWS}, v{vWB0}")
        a(f"v_add_u32 v{vHR}, s{sHS}, v{vHB0}")
        R = [hrd(1 - ph, t, u) for t in range(6) for u in range(2)] + [wrd(n) for n in range(3)]
        if u4 == 2: R += [f"ds_read_b128 {q(XT + 4*p)}, v{vXR} offset:{p*1024}" for p in range(3)]
        P = pieces(sD, nt)
        k = 0
        for n in range(3, 6):
            for t in range(6):
                a(mf(n, t))
                if k < len(R): a(R[k])
                if k in (2, 8, 14):
                    lab = f"K3_sd{u4}_{k}"
                    if u4 != 3: a(f"s_cbranch_vccnz {lab}")
                    j = (k - 2) // 6 * 2
                    a.ext(P[j]); a.ext(P[j + 1])
                    if k == 14: a.ext(advance())
                    if u4 != 3: a.label(lab)
                k += 1
    a(f"s_add_u32 s{sJ}, s{sJ}, 4")
    a(f"s_cmp_lg_u32 s{sEV}, -1")
    a("s_cbranch_scc1 K3_loop")
    idx = 0
    for P_ in range(3):
        for t in range(6):
            b = accr(2 * P_, t); tq = XT + 4 * (idx % 3); idx += 1
            for i in range(4): a(f"v_cvt_pk_bf16_f32 v{tq+i}, v{b+2*i}, v{b+2*i+1}")
            if t == 0: a(f"s_mov_b32 s{sT0}, s{sOB}")
            else: a(f"s_add_u32 s{sT0}, s{sT0}, 12288")
            a(f"buffer_store_dwordx4 {q(tq)}, v{vOUT}, s[{sO}:{sO+3}], s{sT0} offen offset:{P_*64}" + (" nt" if OPT["out_nt"] else ""))
            a(bias(2 * P_, t)); a(bias(2 * P_ + 1, t))
    a(f"s_sub_u32 s{sOB}, s{sOB}, {192 * 768}")
    a(f"s_mov_b32 s{sEV}, 11")
    a("s_waitcnt lgkmcnt(0)")
    a(f"s_cmp_lg_u32 s{sJ}, 144")
    a("s_cbranch_scc1 K3_loop")
    a.label("K3_end")
    a("s_endpgm")
    return a, desc("gemm2_kernel", 256, 64), f"; @launch kernel=gemm2_kernel grid=(256,1,1) block=(512,1,1) lds={L_B + 2048}"

def main():
    ks = [k0(), k1(), k2(), k3()]
    errs = []
    for a, _, l in ks: errs += check(a.lines, l.split("=")[1].split()[0])
    for e in errs: print(e, file=sys.stderr)
    hdr = open("standalone__modern_conv_block_slak__vision.s.ref").read().split("\n")
    hdr = [l for l in hdr if l.startswith(";") and "@launch" not in l and "Override" not in l and "grid=ceil" not in l]
    out = "\n".join(hdr) + "\n" + "\n".join(l for _, _, l in ks) + "\n"
    out += '.amdgcn_target "amdgcn-amd-amdhsa--gfx950"\n.text\n'
    for a, _, _ in ks: out += a.text()
    out += '.section .rodata,"a"\n'
    for _, d, _ in ks: out += d
    open(sys.argv[1], "w").write(out)
    print("written", sys.argv[1], len(out), "bytes; hazards:", len(errs))
main()
```

```python
import sys, struct, math
from asmlib import Asm, check

OPT = dict(f16=1, st_nt=1, h_nt=1, w_nt=0, out_nt=0, x_nt=1, xp_nt=1, ord=4, ntail=3, k3skipw=0, kf=0, bgb=-1, stamp=0, denorm=3, pm=3, pg0=0, pg1=1, bg=4, gb=2, gp=2, stm=7, stm0=7, w2pf=1, sga=7,
           k3pa=1, k3pb=2, k3eb=3, k3nost=0, k3noh=0, k3nox=0, k3now=0, k3na=3, k3as=5, k3b0=18, k3bs=5, k3bl=1, outlin=0, nostore=0)
for a in sys.argv[2:]:
    k, v = a.split("="); OPT[k] = int(v)

def f32(x): return "0x%08x" % struct.unpack("<I", struct.pack("<f", x))[0]
def f16bits(x): return struct.unpack("<H", struct.pack("<e", x))[0]

M = 147456; C = 384; F = 1536
XBYTES = M * C * 2
WSBYTES = 452984832
TILE_H = 589824; CHUNK_H = 12288; HSTRIDE = 3 * TILE_H - 2 * CHUNK_H
TAIL = 256 * HSTRIDE
W2F = TAIL + 1179648; B2 = TAIL; SSQ = TAIL + 2363392
NREP = 8
K1c = 2.0 * math.sqrt(2.0 / math.pi) * math.log2(math.e)
K3c = K1c * 0.044715
if OPT["f16"]:
    C0 = 1258.0 / 256.0
    ALPHA = K1c / C0
else:
    ALPHA = K3c ** (1.0 / 3.0)
    C0 = K1c / ALPHA

def srd(a, d, lo, hi, nrec, off=0):
    if off:
        a(f"s_add_u32 s{d}, s{lo}, {off}")
        a(f"s_addc_u32 s{d+1}, s{hi}, 0")
    else:
        a(f"s_mov_b32 s{d}, s{lo}")
        a(f"s_mov_b32 s{d+1}, s{hi}")
    a(f"s_mov_b32 s{d+2}, {nrec}")
    a(f"s_mov_b32 s{d+3}, 0x00020000")

def stamp(a, idx, base=64):
    if not OPT["stamp"]: return
    a("s_memrealtime s[90:91]")
    a("s_memtime s[92:93]")
    a("s_waitcnt lgkmcnt(0)")
    a(f"s_mov_b32 s{base+2*idx}, s90")
    a(f"s_mov_b32 s{base+2*idx+1}, s92")

def stamp2(a, ia, ib, creg, base=64):
    if not OPT["stamp"]: return
    a("s_memrealtime s[90:91]")
    a("s_memtime s[92:93]")
    a("s_waitcnt lgkmcnt(0)")
    a(f"s_cmp_eq_u32 s{creg}, 0")
    a(f"s_cselect_b32 s{base+2*ia}, s90, s{base+2*ia}")
    a(f"s_cselect_b32 s{base+2*ia+1}, s92, s{base+2*ia+1}")
    a(f"s_cselect_b32 s{base+2*ib}, s{base+2*ib}, s90")
    a(f"s_cselect_b32 s{base+2*ib+1}, s{base+2*ib+1}, s92")

def stamp_dump(a, n, wave_sgpr, tag, kidx, base=64):
    if not OPT["stamp"]: return
    a(f"s_and_b32 s94, s{wave_sgpr}, 3")
    a("s_cmp_lg_u32 s94, 0")
    a(f"s_cbranch_scc1 {tag}_nodump")
    a("s_load_dwordx2 s[90:91], s[0:1], 64")
    a("s_waitcnt lgkmcnt(0)")
    a(f"s_add_u32 s88, s90, {TAIL + (4 << 20) + kidx * 65536}")
    a("s_addc_u32 s89, s91, 0")
    a("s_mov_b32 s90, 65536")
    a("s_mov_b32 s91, 0x00020000")
    a(f"s_lshl_b32 s94, s{wave_sgpr}, 5")
    a("s_lshl_b32 s95, s2, 8")
    a("s_add_u32 s94, s94, s95")
    a("v_mov_b32 v8, 0")
    for i in range(n):
        a(f"v_mov_b32 v10, s{base+2*i}")
        a(f"v_mov_b32 v11, s{base+2*i+1}")
        a(f"buffer_store_dwordx2 v[10:11], v8, s[88:91], s94 offen offset:{i*8}")
        a("s_waitcnt vmcnt(0)")
    a.label(f"{tag}_nodump")

def q(r, n=4): return f"v[{r}:{r+n-1}]"

def kernel_start(a, name):
    a(f".globl {name}")
    a(".p2align 8")
    a(f".type {name},@function")
    a.label(name)

def desc(name, vgpr, sgpr=96):
    acc = min(256, (vgpr + 3) // 4 * 4)
    return f""".p2align 6
.amdhsa_kernel {name}
  .amdhsa_next_free_vgpr {vgpr}
  .amdhsa_next_free_sgpr {sgpr}
  .amdhsa_accum_offset {acc}
  .amdhsa_group_segment_fixed_size 0
  .amdhsa_kernarg_size 72
  .amdhsa_user_sgpr_count 2
  .amdhsa_user_sgpr_kernarg_segment_ptr 1
  .amdhsa_system_sgpr_workgroup_id_x 1
  .amdhsa_float_denorm_mode_32 {OPT['denorm']}
.end_amdhsa_kernel
"""

def gelu_batch(b, TMP, SSr, first, sC0, sC0H):
    L = []
    R = [b + i for i in range(8)]
    if not OPT["f16"]:
        T = [TMP + i for i in range(8)]
        for v, t in zip(R, T): L.append(f"v_fma_f32 v{t}, -v{v}, v{v}, s{sC0}")
        for v, t in zip(R, T): L.append(f"v_mul_f32 v{t}, v{t}, v{v}")
        for t in T: L.append(f"v_exp_f32 v{t}, v{t}")
        for t in T: L.append(f"v_add_f32 v{t}, 1.0, v{t}")
        for t in T: L.append(f"v_rcp_f32 v{t}, v{t}")
        for v, t in zip(R, T): L.append(f"v_mul_f32 v{t}, v{v}, v{t}")
        Gv = T
    else:
        H = [TMP + i for i in range(4)]; Pp = [TMP + 4 + i for i in range(4)]
        for i in range(4): L.append(f"v_cvt_pk_f16_f32 v{H[i]}, v{R[2*i]}, v{R[2*i+1]}")
        for i in range(4): L.append(f"v_pk_fma_f16 v{Pp[i]}, v{H[i]}, v{H[i]}, s{sC0H} neg_lo:[1,0,0] neg_hi:[1,0,0]")
        for i in range(4): L.append(f"v_pk_mul_f16 v{Pp[i]}, v{Pp[i]}, v{H[i]}")
        for i in range(4): L.append(f"v_exp_f16 v{H[i]}, v{Pp[i]}")
        for i in range(4): L.append(f"v_exp_f16_sdwa v{H[i]}, v{Pp[i]} dst_sel:WORD_1 dst_unused:UNUSED_PRESERVE src0_sel:WORD_1")
        for i in range(4): L.append(f"v_pk_add_f16 v{H[i]}, v{H[i]}, 1.0 op_sel_hi:[1,0]")
        for i in range(4): L.append(f"v_rcp_f16 v{Pp[i]}, v{H[i]}")
        for i in range(4): L.append(f"v_rcp_f16_sdwa v{H[i]}, v{H[i]} dst_sel:DWORD dst_unused:UNUSED_PAD src0_sel:WORD_1")
        for i in range(4): L.append(f"v_fma_mix_f32 v{R[2*i]}, v{R[2*i]}, v{Pp[i]}, 0 op_sel_hi:[0,1,0]")
        for i in range(4): L.append(f"v_fma_mix_f32 v{R[2*i+1]}, v{R[2*i+1]}, v{H[i]}, 0 op_sel_hi:[0,1,0]")
        Gv = R
    for e in (0, 4, 1, 5, 2, 6, 3, 7):
        s_ = SSr + e // 4
        L.append(f"v_mul_f32 v{s_}, v{Gv[e]}, v{Gv[e]}" if first and e % 4 == 0 else f"v_fmac_f32 v{s_}, v{Gv[e]}, v{Gv[e]}")
    for i in range(4): L.append(f"v_cvt_pk_bf16_f32 v{b+i}, v{Gv[2*i]}, v{Gv[2*i+1]}")
    return L

NBP = 6
def k2():
    a = Asm()
    kernel_start(a, "mid_kernel")
    a("s_cmp_ge_u32 s2, 144")
    a("s_cbranch_scc1 K2_end")
    a("s_load_dwordx4 s[4:7], s[0:1], 24")
    a("s_load_dwordx2 s[8:9], s[0:1], 40")
    a("s_load_dwordx2 s[10:11], s[0:1], 64")
    a("v_lshrrev_b32 v1, 6, v0")
    a("v_and_b32 v2, 63, v0")
    a("v_readfirstlane_b32 s3, v1")
    a("v_mul_u32_u24 v5, 12, v0")
    a("s_mul_i32 s30, s2, 43691")
    a("s_lshr_b32 s30, s30, 20")
    a("s_mul_i32 s32, s30, 24")
    a("s_sub_u32 s32, s2, s32")
    a("s_lshl_b32 s31, s30, 3")
    a("s_add_u32 s31, s31, s3")
    a("s_mul_i32 s33, s32, 43691")
    a("s_lshr_b32 s33, s33, 18")
    a("s_mul_i32 s33, s33, 90")
    a("s_add_u32 s33, s33, s32")
    a("s_lshl_b32 s38, s33, 2")
    a("s_lshl_b32 s33, s33, 1")
    a(f"s_mul_i32 s34, s31, {32 * 768}")
    a("s_add_u32 s33, s33, s34")
    a("v_lshrrev_b32 v3, 4, v2")
    a("v_and_b32 v4, 1, v3")
    a("v_lshlrev_b32 v4, 4, v4")
    a("v_lshrrev_b32 v3, 1, v3")
    a("v_lshl_add_u32 v3, v3, 3, v4")
    a("v_mul_u32_u24 v7, 768, v3")
    a("v_and_b32 v6, 15, v2")
    a("v_mul_u32_u24 v4, 12, v6")
    a("v_add_u32 v7, v4, v7")
    a("s_lshl_b32 s35, s31, 6")
    a("v_lshlrev_b32 v4, 1, v3")
    a("s_waitcnt lgkmcnt(0)")
    srd(a, 24, 10, 11, WSBYTES - TAIL, TAIL)
    a(f"s_mov_b32 s34, {SSQ - TAIL}")
    for r in range(NREP):
        a(f"buffer_load_dwordx3 {q(32+4*r, 3)}, v5, s[24:27], s34 offen")
        if r < NREP - 1: a("s_add_u32 s34, s34, 6144")
    srd(a, 12, 4, 5, C * F * 2)
    srd(a, 16, 6, 7, F * 2)
    srd(a, 20, 8, 9, F * 2)
    for e in range(8):
        if e == 4: a("s_add_u32 s33, s33, 3072")
        a(f"buffer_load_ushort v{8+e}, v7, s[12:15], s33 offen offset:{(e % 4) * 768}")
    a("buffer_load_dwordx4 v[16:19], v4, s[16:19], s35 offen")
    a("buffer_load_dwordx4 v[64:67], v4, s[20:23], s35 offen")
    a("s_waitcnt vmcnt(10)")
    for st in (4, 2, 1):
        for r in range(st):
            for k in range(3): a(f"v_add_f32 v{32+4*r+k}, v{32+4*r+k}, v{32+4*(r+st)+k}")
    a(f"s_mov_b32 s36, {f32(1.0 / (ALPHA * ALPHA))}")
    a(f"v_mov_b32 v20, {f32(1e-6)}")
    for k in range(3): a(f"v_fma_f32 v{32+k}, v{32+k}, s36, v20")
    for k in range(3): a(f"v_sqrt_f32 v{32+k}, v{32+k}")
    a("s_nop 0")
    for k in range(3): a(f"ds_write_b32 v5, v{32+k} offset:{4*k}")
    a("v_add_f32 v21, v32, v33")
    a("v_add_f32 v21, v21, v34")
    for ctl in ("row_shr:1", "row_shr:2", "row_shr:4", "row_shr:8"):
        a("s_nop 1")
        a(f"v_add_f32_dpp v21, v21, v21 {ctl} row_mask:0xf bank_mask:0xf bound_ctrl:0")
    a("s_nop 1")
    a("v_readlane_b32 s40, v21, 15")
    a("v_readlane_b32 s41, v21, 31")
    a("v_readlane_b32 s42, v21, 47")
    a("v_readlane_b32 s43, v21, 63")
    a("s_nop 1")
    a("v_mov_b32 v22, s40")
    a("v_add_f32 v22, s41, v22")
    a("v_add_f32 v22, s42, v22")
    a("v_add_f32 v22, s43, v22")
    a("s_lshl_b32 s37, s3, 2")
    a("v_mov_b32 v23, s37")
    a("ds_write_b32 v23, v22 offset:6144")
    a("s_waitcnt vmcnt(0)")
    for e in range(8):
        a(f"v_lshlrev_b32 v{8+e}, 16, v{8+e}")
        a(f"v_lshlrev_b32 v41, 16, v{64 + e // 2}" if e % 2 == 0 else f"v_and_b32 v41, 0xffff0000, v{64 + e // 2}")
        a(f"v_mul_f32 v42, v41, v{8+e}" if e == 0 else f"v_fmac_f32 v42, v41, v{8+e}")
    a("v_lshlrev_b32 v43, 2, v0")
    a("ds_write_b32 v43, v42 offset:6400")
    a("s_waitcnt lgkmcnt(0)")
    a("s_barrier")
    a("v_mov_b32 v23, 0")
    a("ds_read_b128 v[24:27], v23 offset:6144")
    a("ds_read_b128 v[28:31], v23 offset:6160")
    a("s_lshl_b32 s37, s31, 7")
    a("v_lshlrev_b32 v4, 2, v3")
    a("v_add_u32 v4, s37, v4")
    a("ds_read_b128 v[32:35], v4")
    a("ds_read_b128 v[36:39], v4 offset:16")
    a("v_lshlrev_b32 v43, 2, v2")
    for w in range(8): a(f"ds_read_b32 v{48+w}, v43 offset:{6400 + 256*w}")
    a("s_waitcnt lgkmcnt(8)")
    for st in (4, 2, 1):
        for r in range(st): a(f"v_add_f32 v{24+r}, v{24+r}, v{24+r+st}")
    a(f"v_mul_f32 v24, {f32(1.0 / F)}, v24")
    a(f"v_add_f32 v24, {f32(1e-6)}, v24")
    a("v_rcp_f32 v24, v24")
    a(f"s_mov_b32 s36, {f32(1.0 / ALPHA)}")
    for e in range(8):
        src = 16 + e // 2
        a(f"v_lshlrev_b32 v40, 16, v{src}" if e % 2 == 0 else f"v_and_b32 v40, 0xffff0000, v{src}")
        a(f"v_mul_f32 v{32+e}, v{32+e}, v24")
        a(f"v_fma_f32 v{32+e}, v{32+e}, v40, 1.0")
        a(f"v_mul_f32 v{32+e}, s36, v{32+e}")
        a(f"v_mul_f32 v{8+e}, v{8+e}, v{32+e}")
    for i in range(4): a(f"v_cvt_pk_bf16_f32 v{44+i}, v{8+2*i}, v{9+2*i}")
    a("s_mul_i32 s33, s31, 24")
    a("s_add_u32 s33, s33, s32")
    a("s_lshl_b32 s33, s33, 10")
    a(f"s_add_u32 s33, s33, {W2F - TAIL}")
    a("v_lshlrev_b32 v43, 4, v2")
    a("buffer_store_dwordx4 v[44:47], v43, s[24:27], s33 offen")
    a("s_cmp_lg_u32 s3, 0")
    a("s_cbranch_scc1 K2_end")
    a("s_waitcnt lgkmcnt(0)")
    for st in (4, 2, 1):
        for r in range(st): a(f"v_add_f32 v{48+r}, v{48+r}, v{48+r+st}")
    for sw in ("v_permlane16_swap_b32", "v_permlane32_swap_b32"):
        a("v_mov_b32 v49, v48")
        a("s_nop 1")
        a(f"{sw} v48, v49")
        a("v_add_f32 v48, v48, v49")
    a("v_mul_u32_u24 v4, 24, v6")
    a("s_mul_i32 s39, s30, 1536")
    a("s_add_u32 s38, s38, s39")
    a(f"s_add_u32 s38, s38, {B2 - TAIL}")
    a("buffer_store_dword v48, v4, s[24:27], s38 offen")
    a.label("K2_end")
    a("s_endpgm")
    return a, desc("mid_kernel", 72, 48), "; @launch kernel=mid_kernel grid=(144,1,1) block=(512,1,1) lds=8448"

def k1():
    a = Asm()
    XN = 8; ACC = 152; BB = 200; SQ = 232
    TMP = BB + 16; SS = BB + 24
    vDE, vXS, vRD, vST, vDW, vDO, vRB = 1, 2, 3, 4, 5, 6, 7
    L_DW = 147456
    sX, sW1, sH, sDB = 8, 12, 16, 20
    sWSlo, sWShi, sOUTlo, sOUThi, sDBlo, sDBhi = 24, 25, 26, 27, 28, 29
    (sWV, sGRP, sI, sEND, sRDS, sDSL, sT0, sT1, sC0, sHB, sXB, sREG, sSIG, sT2, sC0H, sDSR, sD0, sST0, sST1, sXN, sDS0, sTK,
     sSLO, sSHI, sDLO, sDHI, sSG0, sCW, sXU) = range(30, 59)
    sHN, sSLN, sSHN, sDSP, sDSN, sDCN = 82, 83, 84, 85, 86, 87
    REG = 3 * 192 * 768
    kernel_start(a, "gemm1_kernel")
    a("s_cmp_ge_u32 s2, 256")
    a("s_cbranch_scc1 K1_end")
    stamp(a, 0)
    a("s_load_dwordx4 s[4:7], s[0:1], 0")
    a(f"s_load_dwordx2 s[{sW1}:{sW1+1}], s[0:1], 16")
    a(f"s_load_dwordx2 s[{sOUTlo}:{sOUThi}], s[0:1], 48")
    a(f"s_load_dwordx2 s[{sDBlo}:{sDBhi}], s[0:1], 56")
    a(f"s_load_dwordx2 s[{sWSlo}:{sWShi}], s[0:1], 64")
    a("v_lshrrev_b32 v8, 6, v0")
    a("v_and_b32 v9, 63, v0")
    a(f"v_readfirstlane_b32 s{sWV}, v8")
    a("v_lshrrev_b32 v12, 3, v9")
    a("v_and_b32 v13, 7, v9")
    a("v_lshrrev_b32 v14, 1, v12")
    a("v_xor_b32 v14, v14, v13")
    a(f"v_mul_u32_u24 v{vXS}, 768, v12")
    a(f"v_lshl_add_u32 v{vXS}, v14, 4, v{vXS}")
    a(f"s_lshr_b32 s{sT0}, s2, 4")
    a(f"s_and_b32 s{sSG0}, s{sT0}, {OPT['sga']}")
    a(f"s_lshl_b32 s{sT0}, s{sT0}, 4")
    a(f"s_and_b32 s{sT1}, s2, 7")
    a(f"s_lshl_b32 s{sT1}, s{sT1}, 1")
    a(f"s_add_u32 s{sT0}, s{sT0}, s{sT1}")
    a(f"s_bfe_u32 s{sT1}, s2, 0x10003")
    a(f"s_add_u32 s{sREG}, s{sT0}, s{sT1}")
    a(f"s_mul_i32 s{sSLO}, s{sT1}, 12")
    a(f"s_add_u32 s{sSHI}, s{sSLO}, 12")
    a(f"s_lshr_b32 s{sGRP}, s{sWV}, 2")
    a(f"s_and_b32 s{sT1}, s{sWV}, 3")
    a(f"s_add_u32 s{sT0}, s{sT0}, s{sGRP}")
    a(f"s_mul_i32 s{sXB}, s{sT0}, {REG}")
    a(f"s_mul_i32 s{sT2}, s{sT1}, {48 * 768}")
    a(f"s_add_u32 s{sXB}, s{sXB}, s{sT2}")
    a(f"s_add_u32 s{sXB}, s{sXB}, {2 * 192 * 768}")
    a(f"s_mul_i32 s{sHB}, s{sT0}, {HSTRIDE}")
    a(f"s_add_u32 s{sHB}, s{sHB}, {2 * TILE_H}")
    a(f"s_mul_i32 s59, s{sT0}, {REG}")
    a(f"s_mul_i32 s{sXN}, s{sREG}, {REG}")
    a(f"s_xor_b32 s{sT2}, s{sWV}, 4")
    a(f"s_mul_i32 s{sT2}, s{sT2}, {48 * 768}")
    a(f"s_add_u32 s{sXN}, s{sXN}, s{sT2}")
    a(f"s_mul_i32 s{sHN}, s{sREG}, {HSTRIDE}")
    a(f"s_xor_b32 s{sT2}, s{sGRP}, 1")
    a(f"s_mul_i32 s{sT2}, s{sT2}, {TILE_H}")
    a(f"s_add_u32 s{sHN}, s{sHN}, s{sT2}")
    a(f"s_mov_b32 s{sSLN}, 0")
    a(f"s_mov_b32 s{sSHN}, 24")
    a(f"s_mov_b32 s{sDSP}, 23")
    a(f"s_mov_b32 s{sDSN}, -1")
    if OPT["ord"]:
        a(f"s_bitcmp1_b32 s2, {OPT['ord']}")
        a("s_cbranch_scc0 K1_noswap")
        for x, y in ((sXB, sXN), (sHB, sHN), (sSLO, sSLN), (sSHI, sSHN), (sDSP, sDSN)):
            a(f"s_mov_b32 s{sT2}, s{x}"); a(f"s_mov_b32 s{x}, s{y}"); a(f"s_mov_b32 s{y}, s{sT2}")
        a.label("K1_noswap")
    a(f"s_mul_i32 s{sD0}, s{sWV}, 6144")
    a(f"s_add_u32 s{sCW}, s{sD0}, 98304")
    a("s_waitcnt lgkmcnt(0)")
    srd(a, sX, 4, 5, XBYTES)

    def xdma(n, pol=None):
        if pol is None:
            if OPT["x_nt"] == OPT["xp_nt"]: return xdma(n, OPT["x_nt"])
            return [f"s_cbranch_vccnz K1_xa{n}"] + xdma(n, OPT["x_nt"]) + [f"s_branch K1_xb{n}", f"K1_xa{n}:"] + xdma(n, OPT["xp_nt"]) + [f"K1_xb{n}:"]
        xnt = " nt" if pol else ""
        tt, kp = divmod(n, 6)
        return [f"s_add_u32 m0, s{sCW}, {(n % 3) * 2048}", f"s_add_u32 s{sXU}, s{sXB}, {tt * 12288 + kp * 128}",
                f"buffer_load_dwordx4 v{vXS}, s[{sX}:{sX+3}], s{sXU} offen{xnt} lds",
                "s_add_u32 m0, m0, 1024", f"s_add_u32 s{sXU}, s{sXU}, 6144",
                f"buffer_load_dwordx4 v{vXS}, s[{sX}:{sX+3}], s{sXU} offen{xnt} lds"]
    srd(a, sH, 6, 7, C * 2)
    a(f"v_lshlrev_b32 v{ACC+4}, 2, v0")
    a(f"buffer_load_dword v{ACC}, v{ACC+4}, s[{sH}:{sH+3}], 0 offen")
    for n in range(3): a.ext(xdma(n, OPT['x_nt']))
    a('s_mov_b64 vcc, 0')

    a("v_and_b32 v10, 15, v9")
    a("v_lshrrev_b32 v11, 4, v9")
    a(f"v_lshlrev_b32 v{vST}, 2, v11")
    a(f"v_xor_b32 v{vST}, v{vST}, v9")
    a(f"v_lshlrev_b32 v{vST}, 4, v{vST}")
    a(f"s_mul_i32 s{sT2}, s{sT1}, 3072")
    a(f"v_add_u32 v{vST}, s{sT2}, v{vST}")
    a(f"v_lshlrev_b32 v{vDW}, 5, v11")
    a(f"v_add_u32 v{vDW}, {L_DW}, v{vDW}")
    a("v_and_b32 v14, 2, v12")
    a("v_xor_b32 v13, v13, v14")
    a(f"v_mul_u32_u24 v{vDE}, 3072, v12")
    a(f"v_lshl_add_u32 v{vDE}, v13, 4, v{vDE}")
    a(f"v_xor_b32 v{vDO}, 64, v{vDE}")
    a("v_lshrrev_b32 v12, 2, v10")
    a("v_lshl_add_u32 v13, v11, 3, v12")
    a(f"v_lshlrev_b32 v{vRB}, 7, v13")
    a("v_lshrrev_b32 v12, 1, v12")
    a("v_and_b32 v13, 1, v11")
    a("v_lshl_add_u32 v12, v13, 1, v12")
    a(f"v_lshl_add_u32 v{vRB}, v12, 5, v{vRB}")
    a("v_and_b32 v12, 3, v10")
    a(f"v_lshl_add_u32 v{vRB}, v12, 3, v{vRB}")
    a(f"s_mov_b32 s{sC0}, {f32(-C0)}")
    h = f16bits(-C0); a(f"s_mov_b32 s{sC0H}, 0x{h:04x}{h:04x}")
    a(f"s_mul_i32 s{sDS0}, s{sWV}, {6 * 24576}")
    a(f"s_add_u32 s{sSIG}, s{sSLO}, s{sSG0}")
    a(f"s_lshl_b32 s{sDLO}, s{sSLO}, 7")
    a(f"s_add_u32 s{sDLO}, s{sDLO}, s{sDS0}")
    a(f"s_lshl_b32 s{sDHI}, s{sSHI}, 7")
    a(f"s_add_u32 s{sDHI}, s{sDHI}, s{sDS0}")
    a(f"s_lshl_b32 s{sDSR}, s{sSG0}, 7")
    a(f"s_add_u32 s{sDSR}, s{sDSR}, s{sDLO}")
    a(f"s_mov_b32 s{sDSL}, s{sD0}")
    a(f"s_mov_b32 s{sTK}, 1")
    a(f"s_mov_b32 s{sW1+2}, {C * F * 2}")
    a(f"s_mov_b32 s{sW1+3}, 0x00020000")
    srd(a, sDB, sDBlo, sDBhi, 256)

    uid = [0]
    def dma():
        P = []
        for k in range(6):
            pre = [f"s_mov_b32 m0, s{sDSL}", f"s_mov_b32 s{sT0}, s{sDSR}"] if k == 0 else ["s_add_u32 m0, m0, 1024", f"s_add_u32 s{sT0}, s{sT0}, 24576"]
            P.append(pre + [f"buffer_load_dwordx4 v{(vDE, vDO)[k % 2]}, s[{sW1}:{sW1+3}], s{sT0} offen lds"])
        P[5] += [f"s_add_u32 s{sDSL}, s{sDSL}, 49152", f"s_cmp_ge_u32 s{sDSL}, 147456", f"s_cselect_b32 s{sDSL}, s{sD0}, s{sDSL}",
                 f"s_add_u32 s{sDSR}, s{sDSR}, 128", f"s_cmp_eq_u32 s{sDSR}, s{sDHI}", f"s_cselect_b32 s{sDSR}, s{sDLO}, s{sDSR}"]
        uid[0] += 1
        P[5] += [f"s_sub_u32 s{sDCN}, s{sDCN}, 1", f"s_cmp_lg_u32 s{sDCN}, 0", f"s_cbranch_scc1 K1_ds{uid[0]}",
                 f"s_lshl_b32 s{sDLO}, s{sSLN}, 7", f"s_add_u32 s{sDLO}, s{sDLO}, s{sDS0}", f"s_lshl_b32 s{sDHI}, s{sSHN}, 7", f"s_add_u32 s{sDHI}, s{sDHI}, s{sDS0}",
                 f"s_lshl_b32 s{sDSR}, s{sSG0}, 7", f"s_add_u32 s{sDSR}, s{sDSR}, s{sDLO}", f"K1_ds{uid[0]}:"]
        return P

    a(f"v_lshlrev_b32 v{ACC+4}, 3, v0")
    a(f"v_add_u32 v{ACC+4}, {L_DW}, v{ACC+4}")
    a("s_waitcnt vmcnt(6)")
    a(f"v_and_b32 v{ACC+2}, 0xffff, v{ACC}")
    a(f"v_and_b32 v{ACC+3}, 0xffff0000, v{ACC}")
    a(f"ds_write_b64 v{ACC+4}, {q(ACC+2, 2)}")
    a(f"v_mov_b32 v{BB+16}, 1")
    a(f"s_cmp_lg_u32 s{sWV}, 0")
    a("s_cbranch_scc1 K1_pj")
    a(f"v_lshlrev_b32 v{ACC+5}, 8, v0")
    a(f"s_and_b32 s{sT0}, s2, {NREP - 1}")
    a(f"s_lshl_b32 s{sT0}, s{sT0}, 2")
    a(f"buffer_atomic_add v{BB+16}, v{ACC+5}, s[{sDB}:{sDB+3}], s{sT0} offen sc0")
    a.label("K1_pj")
    for r in range(SQ, SQ + 24): a(f"v_mov_b32 v{r}, 0")
    srd(a, sH, sWSlo, sWShi, TAIL)
    a(f"s_mov_b32 s{sI}, 0")
    a(f"s_sub_u32 s{sEND}, s{sSHI}, s{sSLO}")
    a(f"s_mov_b32 s{sRDS}, 0")
    a(f"s_mov_b32 s{sDCN}, s{sEND}")
    a(f"s_sub_u32 s{sEND}, s{sEND}, 1")
    a("s_waitcnt lgkmcnt(0)")
    a("s_barrier")
    stamp(a, 1)

    def buf(i): return BB + 4 * (i % 8)
    def rd(i):
        ct, ks = divmod(i, 12)
        L = [f"v_xor_b32 v{vRD}, {((ct - 1) ^ ct) << 5}, v{vRD}"] if ks == 0 and ct > 0 else []
        return L + [f"ds_read_b64_tr_b16 {q(buf(i) + 2*u, 2)}, v{vRD} offset:{ks*4096 + u*512}" for u in range(2)]
    def head(): return [f"v_add_u32 v{vRD}, s{sRDS}, v{vRB}"] + [x for i in range(4) for x in rd(i)]

    DWR = [ACC, ACC + 16]; Y = ACC + 32
    S = BB; Q = BB + 4; NM = BB + 8; RS = BB + 10; vXR = BB + 12; vT = BB + 13; vFL = BB + 14
    def dwrd(kp): return [f"ds_read_b128 {q(DWR[kp % 2] + 4*j)}, v{vDW} offset:{kp*256 + (j//2)*128 + (j%2)*16}" for j in range(4)]
    def xaddr():
        return [f"v_and_b32 v{vT}, 15, v0", f"v_lshlrev_b32 v{vXR}, 7, v{vT}", f"v_bfe_u32 v{vT}, v0, 1, 2", f"v_bfe_u32 v{vFL}, v0, 4, 2",
                f"v_xor_b32 v{vT}, v{vT}, v{vFL}", f"v_lshl_add_u32 v{vXR}, v{vT}, 4, v{vXR}", f"v_add_u32 v{vXR}, s{sCW}, v{vXR}"]
    def xread(n):
        tt, kp = divmod(n, 6)
        return [f"ds_read_b128 {q(XN + 48*tt + 8*kp + 4*e)}, v{vXR} offset:{(n % 3) * 2048 + e * 64}" for e in range(2)]
    a.ext(xaddr())
    a.label("K1_ln")
    a.ext(dwrd(0))
    def stats(tt, kp):
        D = DWR[kp % 2]
        for j in range(8):
            x = XN + 48*tt + 8*kp + j
            a(f"v_dot2_f32_bf16 v{Y+2*j}, v{x}, v{D+2*j}, 0")
            a(f"v_dot2_f32_bf16 v{Y+2*j+1}, v{x}, v{D+2*j+1}, 0")
        for j in range(8):
            y = q(Y+2*j, 2); s_ = q(S + 2*(j % 2), 2); q_ = q(Q + 2*(j % 2), 2)
            if kp == 0 and j < 2:
                a(f"v_pk_mul_f32 {s_}, {y}, 1.0 op_sel_hi:[1,0]")
                a(f"v_pk_mul_f32 {q_}, {y}, {y}")
            else:
                a(f"v_pk_add_f32 {s_}, {s_}, {y}")
                a(f"v_pk_fma_f32 {q_}, {y}, {y}, {q_}")
    def apply(tt, kp):
        D = DWR[kp % 2]
        for j in range(8):
            x = XN + 48*tt + 8*kp + j
            a(f"v_dot2_f32_bf16 v{Y+2*j}, v{x}, v{D+2*j}, v{NM}")
            a(f"v_dot2_f32_bf16 v{Y+2*j+1}, v{x}, v{D+2*j+1}, v{NM}")
        for j in range(8):
            y = q(Y+2*j, 2)
            a(f"v_pk_mul_f32 {y}, {y}, {q(RS,2)} op_sel_hi:[1,0]")
        for j in range(8):
            a(f"v_cvt_pk_bf16_f32 v{XN+48*tt+8*kp+j}, v{Y+2*j}, v{Y+2*j+1}")
    for tt in range(4):
        for kp in range(6):
            n = tt * 6 + kp
            if tt == 0: a(f"s_cbranch_vccnz K1_ta{n}")
            if tt < 3:
                a(f"s_waitcnt vmcnt({2 * min(2, 17 - n) + (6 if n in (1, 2, 3) else 0)})")
                a.ext(xread(n))
            if tt == 0: a.label(f"K1_ta{n}")
            if n < 23: a.ext(dwrd((kp + 1) % 6))
            if tt > 0:
                a(f"s_waitcnt lgkmcnt({(6 if tt < 3 else 4) if n < 23 else 0})")
                apply(tt - 1, kp)
            if tt < 3:
                a("s_waitcnt lgkmcnt(4)")
                if tt == 0:
                    a(f"s_cbranch_vccnz K1_tb{n}")
                    a.ext(xdma(n + 3, OPT["x_nt"]))
                    if n == 0:
                        for p in dma(): a.ext(p)
                    a.label(f"K1_tb{n}")
                elif n + 3 < 18: a.ext(xdma(n + 3))
                stats(tt, kp)
            if n == 17:
                for p in dma(): a.ext(p)
        if tt < 3:
            a(f"v_pk_add_f32 {q(S,2)}, {q(S,2)}, {q(S+2,2)}")
            a(f"v_pk_add_f32 {q(Q,2)}, {q(Q,2)}, {q(Q+2,2)}")
            a(f"v_add_f32 v{S}, v{S}, v{S+1}")
            a(f"v_add_f32 v{Q}, v{Q}, v{Q+1}")
            for sw in ("v_permlane16_swap_b32", "v_permlane32_swap_b32"):
                a(f"v_mov_b32 v{S+1}, v{S}"); a(f"v_mov_b32 v{Q+1}, v{Q}")
                a("s_nop 0")
                a(f"{sw} v{S}, v{S+1}"); a(f"{sw} v{Q}, v{Q+1}")
                a(f"v_add_f32 v{S}, v{S}, v{S+1}"); a(f"v_add_f32 v{Q}, v{Q}, v{Q+1}")
            a(f"v_mul_f32 v{NM}, {f32(-1.0 / C)}, v{S}")
            a(f"v_mul_f32 v{Q}, {f32(1.0 / C)}, v{Q}")
            a(f"v_fma_f32 v{Q}, -v{NM}, v{NM}, v{Q}")
            a(f"v_max_f32 v{Q}, 0, v{Q}")
            a(f"v_add_f32 v{Q}, {f32(1e-5)}, v{Q}")
            a(f"v_rsq_f32 v{Q}, v{Q}")
            a("s_nop 0")
            a(f"v_mul_f32 v{RS}, {f32(ALPHA)}, v{Q}")
    a(f"s_cmp_lg_u32 s{sI}, 0")
    a("s_cbranch_scc1 K1_chk")
    a(f"v_readfirstlane_b32 s{sTK}, v{BB+16}")
    a("s_nop 3")
    a(f"s_cmp_lg_u32 s{sTK}, 0")
    a("s_cbranch_scc1 K1_flag")
    srd(a, 60, sWSlo, sWShi, NREP * 6144, SSQ)
    a(f"s_and_b32 s{sT0}, s2, {NREP - 1}")
    a(f"s_mul_i32 s{sT1}, s{sT0}, 6144")
    a(f"s_add_u32 s{sT2}, s{sT1}, 4096")
    for i in range(4): a(f"v_mov_b32 v{ACC+i}, 0")
    a(f"v_lshlrev_b32 v{ACC+4}, 4, v0")
    for k in range(6): a(f"buffer_store_dwordx4 {q(ACC)}, v{ACC+4}, s[60:63], s{(sT1, sT2)[k // 4]} offen offset:{(k % 4) * 1024} sc0 sc1")
    a(f"v_lshlrev_b32 v{ACC+5}, 8, v0")
    a(f"v_mov_b32 v{ACC+6}, 1")
    a(f"s_lshl_b32 s{sT0}, s{sT0}, 2")
    a("s_waitcnt vmcnt(0)")
    a(f"buffer_store_dword v{ACC+6}, v{ACC+5}, s[{sDB}:{sDB+3}], s{sT0} offen offset:64 sc0 sc1")
    a("s_branch K1_flag")
    a.label("K1_chk")
    a(f"v_readfirstlane_b32 s{sT1}, v{vFL+1}")
    a("s_nop 3")
    a(f"s_cmp_lg_u32 s{sT1}, 0")
    a("s_cbranch_scc1 K1_flag")
    a(f"v_mov_b32 v{vFL}, 0")
    a(f"buffer_load_dword v{vFL+1}, v{vFL}, s[{sDB}:{sDB+3}], s{sT2} offen offset:64 sc0 sc1")
    a("s_waitcnt vmcnt(0)")
    a("s_branch K1_chk")
    a.label("K1_flag")
    a("s_waitcnt vmcnt(0)")
    stamp2(a, 2, 5, sI)
    a("s_barrier")
    stamp2(a, 3, 6, sI)
    a.ext(head())
    a(f"s_cmp_eq_u32 s{sGRP}, 0")
    a("s_cbranch_scc1 K1_regA")
    a("s_barrier")
    a("s_branch K1_regB")

    def accr(ct, tt): return ACC + (((ct >> 1) * 3 + tt) * 2 + (ct & 1)) * 4
    NT = OPT["ntail"]
    def step(kind, grp):
        tag = kind + "AB"[grp]
        BG = OPT["bg"] if grp == 0 else OPT["bgb"]
        a(".p2align 6")
        a.label(f"K1_{tag}")
        a(f"s_setprio {OPT['pm']}")
        P = dma()
        misc = [[f"s_add_u32 s{sRDS}, s{sRDS}, 49152", f"s_cmp_eq_u32 s{sRDS}, 147456", f"s_cselect_b32 s{sRDS}, 0, s{sRDS}",
                 f"s_mul_i32 s{sST0}, s{sSIG}, {2 * CHUNK_H}", f"s_add_u32 s{sST0}, s{sST0}, s{sHB}"],
                [f"s_cmp_eq_u32 s{sSIG}, s{sDSP}", f"s_cselect_b32 s{sH}, s{sOUTlo}, s{sWSlo}", f"s_cselect_b32 s{sH+1}, s{sOUThi}, s{sWShi}",
                 f"s_cselect_b32 s{sST0}, s59, s{sST0}", f"s_mov_b32 s{sT1}, {XBYTES}", f"s_cselect_b32 s{sH+2}, s{sT1}, {TAIL}"],
                [f"s_add_u32 s{sST1}, s{sST0}, {CHUNK_H}", f"s_add_u32 s{sI}, s{sI}, 1"]]
        for g in range(12):
            a("s_waitcnt lgkmcnt(0)")
            k = 0
            ct = g // 3
            R = [x for j in range(4) for x in rd((g + 1) * 4 + j)] if g < 11 else []
            if len(R) == 9: R = [R[0] + "\n" + R[1]] + R[2:]
            for tt in range(3):
                for j in range(4):
                    i = g * 4 + j; ks = i % 12
                    c = "0" if ks == 0 else q(accr(ct, tt))
                    a(f"v_mfma_f32_16x16x32_bf16 {q(accr(ct, tt))}, {q(XN + 48*tt + 4*ks)}, {q(buf(i))}, {c}")
                    if k < len(R): a(R[k])
                    if k == 10 and g < len(misc): a.ext(misc[g])
                    if k == 9:
                        if g == BG and grp == 0:
                            a("s_waitcnt vmcnt(6)")
                            a("s_barrier")
                        if BG < g <= BG + 6:
                            m = g - BG - 1
                            if kind == "last":
                                if m == 0: a.ext([f"s_mov_b32 s{sCW}, s{sDSL}", f"s_mov_b32 s{sXB}, s{sXN}"])
                                if m % 2 == 0: a.ext(xdma(m // 2, OPT["xp_nt"]))
                            else: a.ext(P[m])
                    k += 1
        a(f"s_setprio {OPT['pg0']}")
        if kind == "last": a.ext(xaddr())
        nb = 0
        for cp in range(2):
            for tt in range(3):
                b = ACC + (cp * 3 + tt) * 8
                a.ext(gelu_batch(b, TMP, SS + 2 * cp, tt == 0, sC0, sC0H))
                keep = kind != "tail" and (OPT["stm"] >> (cp * 3 + tt)) & 1
                a(f"buffer_store_dwordx4 {q(b)}, v{vST}, s[{sH}:{sH+3}], s{(sST0, sST1)[cp]} offen offset:{tt*1024}" + (" nt" if OPT["st_nt"] and not keep else ["", " sc1", " sc0 sc1", " sc0"][OPT["kf"]]))
                if kind == "last":
                    a(f"s_waitcnt vmcnt({min(5 + nb, 7)})")
                    a.ext(xread(nb))
                    a("s_waitcnt lgkmcnt(0)")
                    a.ext(xdma(nb + 3, OPT["xp_nt"]))
                nb += 1
                if nb == OPT["gb"] and grp == 1 and kind != "last":
                    if kind == "tail":
                        a(f"s_cmp_eq_u32 s{sI}, 36")
                        a(f"s_cbranch_scc1 K1_nogb")
                    a(f"s_waitcnt vmcnt({nb})")
                    a("s_barrier")
                    if kind == "tail": a.label("K1_nogb")
                if nb == OPT["gp"]: a(f"s_setprio {OPT['pg1']}")
                if nb == 5 and kind != "last": a.ext(head())
            a(f"v_permlane16_swap_b32 v{SS+2*cp}, v{SS+2*cp+1}")
            if cp == 0: a("s_nop 0")
            a(f"v_add_f32 v{SS+2*cp}, v{SS+2*cp}, v{SS+2*cp+1}")
        a("s_nop 1")
        a(f"v_permlane32_swap_b32 v{SS}, v{SS+2}")
        a(f"v_add_f32 v{SS}, v{SS}, v{SS+2}")
        a(f"s_set_gpr_idx_on s{sSIG}, gpr_idx(SRC0,DST)")
        a(f"s_add_u32 s{sSIG}, s{sSIG}, 1")
        a(f"v_add_f32 v{SQ}, v{SQ}, v{SS}")
        a("s_set_gpr_idx_off")
        a(f"s_cmp_eq_u32 s{sSIG}, s{sSHI}")
        a(f"s_cselect_b32 s{sSIG}, s{sSLO}, s{sSIG}")
        if kind == "reg":
            a(f"s_cmp_lg_u32 s{sI}, s{sEND}")
            a(f"s_cbranch_scc1 K1_{tag}")
            a(f"s_cmp_eq_u32 s{sI}, {36 - NT}")
            a(f"s_cbranch_scc1 K1_tail{'AB'[grp]}")
        elif kind == "last":
            a("s_branch K1_sw")
        else:
            a(f"s_cmp_lg_u32 s{sI}, 36")
            a(f"s_cbranch_scc1 K1_{tag}")
            a("s_branch K1_fin")
    for grp in range(2):
        for kind in ("reg", "last", "tail"): step(kind, grp)
    a.label("K1_sw")
    a("s_setprio 0")
    a("s_mov_b64 vcc, -1")
    stamp(a, 4)
    a(f"s_mov_b32 s{sEND}, {36 - NT}")
    a(f"s_mov_b32 s{sSLO}, s{sSLN}")
    a(f"s_mov_b32 s{sSHI}, s{sSHN}")
    a(f"s_add_u32 s{sSIG}, s{sSLO}, s{sSG0}")
    a(f"s_mov_b32 s{sHB}, s{sHN}")
    a(f"s_mov_b32 s{sDSP}, s{sDSN}")
    a(f"s_and_b32 s{sT2}, s2, {NREP - 1}")
    a(f"s_lshl_b32 s{sT2}, s{sT2}, 2")
    a("s_waitcnt lgkmcnt(0)")
    a(f"v_mov_b32 v{vFL}, 0")
    a(f"buffer_load_dword v{vFL+1}, v{vFL}, s[{sDB}:{sDB+3}], s{sT2} offen offset:64 sc0 sc1")
    if OPT["w2pf"]:
        a("s_load_dwordx2 s[60:61], s[0:1], 24")
        a(f"s_mov_b32 s62, {C * F * 2}")
        a("s_mov_b32 s63, 0x00020000")
        a(f"s_mul_i32 s{sT0}, s2, 4608")
        a(f"v_lshlrev_b32 v{BB+16}, 7, v0")
        a(f"v_min_u32 v{BB+16}, 4480, v{BB+16}")
        a("s_waitcnt lgkmcnt(0)")
        a(f"s_cmp_lg_u32 s{sWV}, 0")
        a("s_cbranch_scc1 K1_ln")
        a(f"buffer_load_dword v{BB+17}, v{BB+16}, s[60:63], s{sT0} offen")
    a("s_branch K1_ln")
    a.label("K1_fin")
    a("s_setprio 0")
    stamp(a, 7)
    a(f"s_and_b32 s{sT0}, s2, {NREP - 1}")
    a("s_waitcnt vmcnt(6) lgkmcnt(0)")
    a("s_barrier")
    a("v_and_b32 v1, 63, v0")
    a("v_lshlrev_b32 v1, 2, v1")
    a(f"v_add_u32 v1, s{sD0}, v1")
    for k in range(24): a(f"ds_write_b32 v1, v{SQ+k} offset:{k*256}")
    a("v_lshlrev_b32 v1, 2, v0")
    a("s_waitcnt lgkmcnt(0)")
    a("s_barrier")
    for k in range(3):
        for w in range(8): a(f"ds_read_b32 v{XN+8*k+w}, v1 offset:{w*6144 + k*2048}")
    srd(a, 60, sWSlo, sWShi, NREP * 6144, SSQ)
    a(f"s_mul_i32 s{sT0}, s{sT0}, 6144")
    a(f"s_add_u32 s{sT1}, s{sT0}, 4096")
    a("s_waitcnt lgkmcnt(0)")
    for st in (4, 2, 1):
        for k in range(3):
            for w in range(st): a(f"v_add_f32 v{XN+8*k+w}, v{XN+8*k+w}, v{XN+8*k+w+st}")
    a(f"buffer_atomic_add_f32 v{XN}, v1, s[60:63], s{sT0} offen")
    a(f"buffer_atomic_add_f32 v{XN+8}, v1, s[60:63], s{sT0} offen offset:2048")
    a(f"buffer_atomic_add_f32 v{XN+16}, v1, s[60:63], s{sT1} offen")
    if OPT["stamp"]: a("s_waitcnt vmcnt(0)")
    stamp(a, 8)
    stamp_dump(a, 9, sWV, "K1", 0)
    a.label("K1_end")
    a("s_endpgm")
    return a, desc("gemm1_kernel", 256, 100), f"; @launch kernel=gemm1_kernel grid=(256,1,1) block=(512,1,1) lds={L_DW + 4096}"

def k3():
    a = Asm()
    ACC = 16; HB = 160; WB = 184; SEL = 208; BIAS = 216; XT = 240
    vD0, vWR, vHR0, vHR1, vXR, vOUT, vWB0, vHB0, vHB1 = 1, 4, 5, 6, 7, 8, 9, 10, 11
    L_H = 73728; L_X = 147456
    sD, sO = 8, 12
    (sWV, sTH, sCQ, sSrc, sDst, sSlot, sDLo, sDEnd, sLeft, sT0, sT1, sWS, sHS, sJ, sOB, sEV, sNR, sT2, sFIRST) = range(30, 49)
    REG = 3 * 192 * 768
    kernel_start(a, "gemm2_kernel")
    a("s_cmp_ge_u32 s2, 256")
    a("s_cbranch_scc1 K3_end")
    stamp(a, 0)
    a("s_load_dwordx2 s[4:5], s[0:1], 0")
    a("s_load_dwordx2 s[6:7], s[0:1], 48")
    a("s_load_dwordx2 s[24:25], s[0:1], 64")
    a("v_lshrrev_b32 v16, 6, v0")
    a("v_and_b32 v17, 63, v0")
    a(f"v_readfirstlane_b32 s{sWV}, v16")
    a(f"v_lshlrev_b32 v{vD0}, 4, v17")
    a(f"v_add_u32 v{vD0+1}, 1024, v{vD0}")
    a(f"v_add_u32 v{vD0+2}, 2048, v{vD0}")
    a("v_and_b32 v18, 15, v17")
    a("v_lshrrev_b32 v19, 4, v17")
    a(f"s_lshr_b32 s{sT0}, s2, 4")
    a(f"s_lshl_b32 s{sT0}, s{sT0}, 4")
    a(f"s_and_b32 s{sT1}, s2, 7")
    a(f"s_lshl_b32 s{sT1}, s{sT1}, 1")
    a(f"s_add_u32 s{sT0}, s{sT0}, s{sT1}")
    a(f"s_bfe_u32 s{sT1}, s2, 0x10003")
    a(f"s_add_u32 s3, s{sT0}, s{sT1}")
    a(f"s_lshr_b32 s{sTH}, s{sWV}, 2")
    a(f"s_and_b32 s{sCQ}, s{sWV}, 3")
    a(f"s_mov_b32 s{sD+3}, 0x00020000")
    a(f"s_mov_b32 s{sO+3}, 0x00020000")
    a(f"s_mov_b32 s{sO+2}, {REG}")
    a(f"s_mul_i32 s{sT0}, s3, {REG}")
    a(f"s_and_b32 s{sT1}, s{sWV}, 1")
    a(f"s_mul_i32 s{sT1}, s{sT1}, 6144")
    a("s_waitcnt lgkmcnt(0)")
    a(f"s_add_u32 s{sO}, s6, s{sT0}")
    a(f"s_addc_u32 s{sO+1}, s7, 0")

    srd(a, 16, 24, 25, 1536 * NBP, B2)
    a("v_mul_u32_u24 v20, 24, v18")
    a(f"s_mul_i32 s{sT2}, s{sCQ}, 384")
    for p in range(NBP):
        a(f"buffer_load_dwordx3 {q(24 + 8*p, 3)}, v20, s[16:19], s{sT2} offen")
        a(f"buffer_load_dwordx3 {q(28 + 8*p, 3)}, v20, s[16:19], s{sT2} offen offset:12")
        if p < NBP - 1: a(f"s_add_u32 s{sT2}, s{sT2}, 1536")

    def pieces(srd_, sfx=""):
        P = []
        for k in range(6):
            if k == 0: pre = [f"s_mov_b32 m0, s{sDst}", f"s_add_u32 s{sT2}, s{sSrc}, 3072"]
            else: pre = ["s_add_u32 m0, m0, 1024", "s_nop 0"]
            so = sSrc if k < 3 else sT2
            P.append(pre + [f"buffer_load_dwordx4 v{vD0 + k % 3}, s[{srd_}:{srd_+3}], s{so} offen{sfx} lds"])
        return P
    def advance_w():
        return [f"s_add_u32 s{sDst}, s{sDst}, 24576", f"s_cmp_eq_u32 s{sDst}, s{sDEnd}", f"s_cselect_b32 s{sDst}, s{sDLo}, s{sDst}",
                f"s_sub_u32 s{sSrc}, s{sSrc}, 24576", f"s_cselect_b32 s{sT2}, 1179648, 0", f"s_add_u32 s{sSrc}, s{sSrc}, s{sT2}"]
    def advance_h():
        return [f"s_add_u32 s{sDst}, s{sDst}, s{sSlot}", f"s_cmp_eq_u32 s{sDst}, s{sDEnd}", f"s_cselect_b32 s{sDst}, s{sDLo}, s{sDst}",
                f"s_sub_u32 s{sSrc}, s{sSrc}, 12288", f"s_cselect_b32 s{sD+2}, 0, s{sD+2}", f"s_cselect_b32 s{sSrc}, 0, s{sSrc}"]
    nt = " nt" if OPT["h_nt"] else ""
    wnt = " nt" if OPT["w_nt"] else ""

    a(f"s_cmp_lt_u32 s{sWV}, 4")
    a("s_cbranch_scc1 K3_rw")
    a(f"s_cmp_ge_u32 s{sWV}, 6")
    a("s_cbranch_scc1 K3_rx")
    a(f"s_add_u32 s{sDLo}, s{sT1}, {L_H}")
    a(f"s_mov_b32 s{sDst}, s{sDLo}")
    a(f"s_add_u32 s{sSrc}, s{sT1}, {CHUNK_H}")
    for p in pieces(sO, nt): a.ext(p)
    a(f"s_add_u32 s{sDst}, s{sDst}, {CHUNK_H}")
    a(f"s_mov_b32 s{sSrc}, s{sT1}")
    for p in pieces(sO, nt): a.ext(p)
    a(f"s_mul_i32 s{sT0}, s3, {HSTRIDE}")
    a(f"s_add_u32 s{sD}, s24, s{sT0}")
    a(f"s_addc_u32 s{sD+1}, s25, 0")
    a(f"s_mov_b32 s{sD+2}, {0 if OPT['k3noh'] else HSTRIDE}")
    a(f"s_add_u32 s{sDEnd}, s{sDLo}, 73728")
    a(f"s_mov_b32 s{sSlot}, {CHUNK_H}")
    a(f"s_add_u32 s{sDst}, s{sDst}, {CHUNK_H}")
    a(f"s_add_u32 s{sSrc}, s{sT1}, {HSTRIDE - CHUNK_H}")
    for _ in range(3 if OPT["k3bl"] else 4):
        for p in pieces(sD, nt): a.ext(p)
        a.ext(advance_h())
    a("s_mov_b64 vcc, 0")
    a("s_branch K3_rdone")
    a.label("K3_rx")
    a(f"s_add_u32 s{sD}, s4, s{sT0}")
    a(f"s_addc_u32 s{sD+1}, s5, 0")
    a(f"s_mov_b32 s{sD+2}, {0 if OPT['k3nox'] else REG}")
    for m in range(3):
        v = vD0 + m
        a(f"v_mul_u32_u24 v20, 43691, v{v}")
        a("v_lshrrev_b32 v20, 25, v20")
        a("v_mul_u32_u24 v21, 864, v20")
        a(f"v_sub_u32 v21, v{v}, v21")
        a("v_add_u32 v22, 768, v21")
        a("v_cmp_gt_i32 vcc, 0, v21")
        a("v_mul_u32_u24 v20, 768, v20")
        a("s_nop 0")
        a("v_cndmask_b32 v21, v21, v22, vcc")
        a(f"v_add_u32 v{v}, v20, v21")
    a(f"s_add_u32 s{sDLo}, s{sT1}, {L_X}")
    a(f"s_mov_b32 s{sDEnd}, 0")
    a(f"s_mov_b32 s{sSlot}, 0")
    a(f"s_mov_b32 s{sDst}, s{sDLo}")
    a(f"s_add_u32 s{sSrc}, s{sT1}, {35 * 12288}")
    if not OPT["k3bl"]:
        for p in pieces(sD, nt): a.ext(p)
        a.ext(advance_h())
    a("s_mov_b64 vcc, -1")
    a("s_branch K3_rdone")
    a.label("K3_rw")
    a(f"s_add_u32 s{sD}, s24, {W2F}")
    a(f"s_addc_u32 s{sD+1}, s25, 0")
    a(f"s_mov_b32 s{sD+2}, {0 if OPT['k3now'] else 1179648}")
    a(f"s_mul_i32 s{sDLo}, s{sCQ}, 6144")
    a(f"s_add_u32 s{sDEnd}, s{sDLo}, 73728")
    a(f"s_mov_b32 s{sSlot}, 0")
    a(f"s_mov_b32 s{sDst}, s{sDLo}")
    a(f"s_add_u32 s{sSrc}, s{sDLo}, {47 * 24576}")
    for _ in range(5 if OPT["k3skipw"] else 2):
        for p in pieces(sD, wnt): a.ext(p)
        a.ext(advance_w())
    a("s_mov_b64 vcc, 0")
    a.label("K3_rdone")
    a("s_mov_b64 s[50:51], vcc")
    a(f"v_mul_u32_u24 v{vOUT}, 3072, v19")
    a("v_mul_u32_u24 v21, 12, v18")
    a(f"s_mul_i32 s{sT0}, s{sTH}, {96 * 768}")
    a(f"s_mul_i32 s{sT1}, s{sCQ}, 192")
    a(f"s_add_u32 s{sT0}, s{sT0}, s{sT1}")
    a(f"v_add3_u32 v{vOUT}, v{vOUT}, v21, s{sT0}")
    if OPT["outlin"]:
        a(f"v_mul_u32_u24 v{vOUT}, 12, v17")
        a(f"s_mul_i32 s{sT0}, s{sWV}, 18432")
        a(f"v_add_u32 v{vOUT}, s{sT0}, v{vOUT}")
    a(f"s_mul_i32 s{sT0}, s{sCQ}, 6144")
    a(f"v_lshl_add_u32 v{vWB0}, v17, 4, s{sT0}")
    a("v_and_b32 v21, 3, v18")
    a("v_lshrrev_b32 v22, 2, v18")
    a("v_and_b32 v23, 2, v19")
    a("v_xor_b32 v23, v23, v21")
    a("v_lshl_add_u32 v22, v23, 2, v22")
    a("v_lshl_add_u32 v22, v21, 4, v22")
    a("v_lshlrev_b32 v22, 4, v22")
    a("v_and_b32 v23, 1, v19")
    a("v_lshl_add_u32 v22, v23, 3, v22")
    a(f"s_mul_i32 s{sT0}, s{sTH}, 6144")
    a(f"s_add_u32 s{sT0}, s{sT0}, {L_H}")
    a(f"v_add_u32 v{vHB0}, s{sT0}, v22")
    a(f"v_xor_b32 v{vHB1}, 64, v{vHB0}")
    a(f"s_lshl_b32 s{sT0}, s{sCQ}, 2")
    a("v_lshl_add_u32 v22, v21, 1, v19")
    a(f"v_add_u32 v22, s{sT0}, v22")
    a("v_and_b32 v22, 15, v22")
    a("v_mul_u32_u24 v22, 48, v22")
    a("v_mul_u32_u24 v23, 768, v18")
    a(f"v_add_u32 v22, {L_X}, v22")
    a(f"v_add_u32 v{vXR}, v22, v23")
    a("v_lshrrev_b32 v22, 2, v18")
    a("v_cmp_eq_u32 vcc, v22, v19")
    a("v_mov_b32 v23, 0x3f80")
    a("s_nop 0")
    a("v_cndmask_b32 v23, 0, v23, vcc")
    for e in range(4):
        a(f"v_cmp_eq_u32 vcc, {e}, v21")
        a("s_nop 1")
        a(f"v_cndmask_b32 v{SEL+e}, 0, v23, vcc")
        a(f"v_lshlrev_b32 v{SEL+4+e}, 16, v{SEL+e}")
    a("s_mov_b64 vcc, s[50:51]")
    a(f"s_mov_b32 s{sWS}, 0")
    a(f"s_mov_b32 s{sHS}, 0")
    a(f"s_mov_b32 s{sJ}, 0")
    a(f"s_mov_b32 s{sOB}, {2 * 192 * 768}")
    a(f"s_mov_b32 s{sEV}, 11")
    a("s_waitcnt vmcnt(24)")
    a(f"s_sub_u32 s{sT0}, s{sWV}, 4")
    a(f"s_cmp_lt_u32 s{sT0}, 2")
    a("s_cbranch_scc1 K3_pw")
    a("s_waitcnt vmcnt(6)")
    a("s_cbranch_vccz K3_pw")
    a("s_waitcnt vmcnt(0)")
    a.label("K3_pw")
    for p in range(1, NBP):
        for n in range(6):
            src = 24 + n if n < 3 else 25 + n
            a(f"v_add_f32 v{src}, v{src}, v{src + 8*p}")
    for n in range(6):
        src = 24 + n if n < 3 else 25 + n
        for r in range(4): a(f"v_mov_b32 v{BIAS+4*n+r}, v{src}")
    stamp(a, 1)

    def accr(n, t): return ACC + (t * 6 + n) * 4
    pieces0 = pieces
    def pieces(srd_, sfx="", _p=pieces0):
        P = _p(srd_, sfx)
        if OPT["k3skipw"] and sfx == "": P = [[x for x in p if not x.startswith("buffer")] if i >= 6 - OPT["k3skipw"] else p for i, p in enumerate(P)]
        return P
    def Lseg(u4, grp, tag):
        L = [f"v_add_u32 v{vWR}, s{sWS}, v{vWB0}", f"v_add_u32 v{vHR0}, s{sHS}, v{vHB0}", f"v_add_u32 v{vHR1}, s{sHS}, v{vHB1}"]
        R = []
        for t in range(6):
            R.append(f"ds_read_b128 {q(WB + 4*t)}, v{vWR} offset:{t*1024}")
            R.append(f"ds_read_b64_tr_b16 {q(HB + 4*t, 2)}, v{vHR0} offset:{t*1024}")
            R.append(f"ds_read_b64_tr_b16 {q(HB + 4*t + 2, 2)}, v{vHR1} offset:{t*1024}")
        if grp == 0:
            P = pieces(sD, wnt); P[5] = P[5] + advance_w()
            na = 6 if tag == "f" and u4 == 0 else OPT["k3na"]
            pos = [0, 6, 12, 18, 18, 18]
            for k in range(19):
                for m in range(na):
                    if pos[m] == k: L += P[m]
                if k < 18: L.append(R[k])
        elif OPT["k3bl"]:
            P = pieces(sD, nt); P[5] = P[5] + advance_h()
            def gd(X, z): return X if u4 == 0 else [f"s_cbranch_vccnz K3_{tag}sl{u4}{z}"] + X + [f"K3_{tag}sl{u4}{z}:"]
            L += gd(P[0], "a") + R[:6] + gd(P[1], "b") + R[6:12] + gd(P[2], "c") + R[12:] + gd(P[3] + P[4] + P[5], "d")
        else:
            L += R
        if u4 == 3:
            lab = f"K3_{grp}{tag}_xr"
            L += [f"s_sub_u32 s{sT0}, s{sEV}, {6*grp}", f"s_cmp_lt_u32 s{sT0}, 6", f"s_cbranch_scc0 {lab}"]
            for p in range(3):
                L.append(f"ds_read2_b32 {q(XT + 4*p, 2)}, v{vXR} offset0:{p} offset1:{p+3}")
                L.append(f"ds_read2_b32 {q(XT + 4*p + 2, 2)}, v{vXR} offset0:{p+6} offset1:{p+9}")
            L.append(lab + ":")
        L += [f"s_add_u32 s{sWS}, s{sWS}, 24576", f"s_cmp_eq_u32 s{sWS}, 73728", f"s_cselect_b32 s{sWS}, 0, s{sWS}",
              f"s_add_u32 s{sHS}, s{sHS}, 12288", f"s_cmp_eq_u32 s{sHS}, 73728", f"s_cselect_b32 s{sHS}, 0, s{sHS}"]
        return L
    def vmwait(strict, loose, lab):
        if loose is None or OPT["k3nost"]: return [f"s_waitcnt vmcnt({strict})"]
        return [f"s_waitcnt vmcnt({loose})", f"s_cmp_lg_u32 s{sJ}, 0", f"s_cbranch_scc1 {lab}", f"s_waitcnt vmcnt({strict})", lab + ":"]
    def Mseg(u4, grp, tag):
        first = tag == "f" and u4 == 0
        Ms = []
        for t in range(6):
            for n in range(6):
                c = q(BIAS + 4*n) if first else q(accr(n, t))
                Ms.append([f"v_mfma_f32_16x16x32_bf16 {q(accr(n, t))}, {q(HB + 4*t)}, {q(WB + 4*n)}, {c}"])
        if grp == 0:
            P = pieces(sD, wnt); P[5] = P[5] + advance_w()
            na = 6 if first else OPT["k3na"]
            for m in range(na, 6): Ms[1 + (m - na) * OPT["k3as"]] += P[m]
            e = OPT["k3eb"]
            loose = 30 if tag == "f" and u4 < 2 else None
            Ms[35 - e] += (["s_setprio 3"] if e else []) + vmwait(6, loose, f"K3_0{tag}_vw{u4}") + ["s_barrier"]
        elif not OPT["k3bl"]:
            P = pieces(sD, nt); P[5] = P[5] + advance_h()
            for m in range(0, 6, 2):
                X = P[m] + P[m + 1]
                if u4 != 3: X = [f"s_cbranch_vccnz K3_{tag}sd{u4}{m}"] + X + [f"K3_{tag}sd{u4}{m}:"]
                Ms[OPT["k3b0"] + (m // 2) * OPT["k3bs"]] += X
        return [x for m in Ms for x in m]
    def Xseg(grp, tag):
        g = f"{grp}{tag}"
        L = [f"s_cmp_lt_u32 s{sT0}, 6", f"s_cbranch_scc0 K3_{g}_xdone"]
        for t in range(6):
            if t < 5: L += [f"s_cmp_lg_u32 s{sT0}, {t}", f"s_cbranch_scc1 K3_{g}_x{t+1}"]
            for n in range(6):
                L.append(f"v_mfma_f32_16x16x32_bf16 {q(accr(n, t))}, {q(XT + 4*(n >> 1))}, {q(SEL + 4*(n & 1))}, {q(accr(n, t))}")
            if t < 5: L += [f"s_branch K3_{g}_xdone", f"K3_{g}_x{t+1}:"]
        L += [f"K3_{g}_xdone:", f"s_sub_u32 s{sEV}, s{sEV}, 1"]
        return L
    ofl = ["", " nt", " sc1", " sc0 sc1", " sc0"][OPT["out_nt"]]
    def epilogue():
        L = ["s_nop 7"]
        idx = 0
        for t in range(6):
            L.append(f"s_mov_b32 s{sT1}, s{sOB}" if t == 0 else f"s_add_u32 s{sT1}, s{sT1}, {3072 if OPT['outlin'] else 12288}")
            for r in range(4):
                tq = XT + 4 * (idx % 4); idx += 1
                for j in range(3): L.append(f"v_cvt_pk_bf16_f32 v{tq+j}, v{accr(2*j, t)+r}, v{accr(2*j+1, t)+r}")
                if not OPT["k3nost"]: L.append(f"buffer_store_dwordx3 {q(tq, 3)}, v{vOUT}, s[{sO}:{sO+3}], s{sT1} offen offset:{r*768}" + ofl)
        L += [f"s_sub_u32 s{sOB}, s{sOB}, {192 * 768}"]
        return L
    def block(grp, tag):
        for u4 in range(4):
            a.ext(Lseg(u4, grp, tag))
            if tag == "f" and u4 == 0:
                a(f"s_cmp_eq_u32 s{sJ}, 0")
                a(f"s_cbranch_scc1 K3_{grp}_noep")
                if OPT["stamp"]:
                    a(f"s_sub_u32 s96, s{sJ}, 48")
                    stamp2(a, 2, 4, 96)
                a.ext(epilogue())
                stamp2(a, 3, 5, 96)
                a.label(f"K3_{grp}_noep")
            if grp == 0:
                a("s_waitcnt lgkmcnt(0)")
                a(f"s_setprio {OPT['k3pa']}")
            else:
                if u4 == 2:
                    a(f"s_cbranch_vccz K3_{tag}nx")
                    a.ext(vmwait(0, 24 if tag == "f" else None, "K3_fxw"))
                    a.label(f"K3_{tag}nx")
                a.ext(vmwait(24, 48 if tag == "f" else None, f"K3_fh{u4}"))
                a("s_waitcnt lgkmcnt(0)")
                a("s_barrier")
                a(f"s_setprio {OPT['k3pb']}")
            if u4 == 3: a.ext(Xseg(grp, tag))
            a.ext(Mseg(u4, grp, tag))
            a("s_setprio 0")

    a("s_barrier")
    a(f"s_cmp_lg_u32 s{sTH}, 0")
    a("s_cbranch_scc1 K3_1_tile")
    for grp in range(2):
        a.label(f"K3_{grp}_tile")
        a(f"s_mov_b32 s{sEV}, 11")
        block(grp, "f")
        a(".p2align 6")
        a.label(f"K3_{grp}_loop")
        block(grp, "l")
        a(f"s_cmp_lg_u32 s{sEV}, -1")
        a(f"s_cbranch_scc1 K3_{grp}_loop")
        a(f"s_add_u32 s{sJ}, s{sJ}, 48")
        a(f"s_cmp_lg_u32 s{sJ}, 144")
        a(f"s_cbranch_scc1 K3_{grp}_tile")
        if grp == 0:
            a("s_branch K3_fin0")
    a.label("K3_fin0")
    stamp(a, 6)
    a.ext(epilogue())
    a.label("K3_fin")
    if OPT["stamp"]: a("s_waitcnt vmcnt(0)")
    stamp(a, 7)
    stamp_dump(a, 8, sWV, "K3", 1)
    a.label("K3_end")
    a("s_endpgm")
    return a, desc("gemm2_kernel", 256, 100), f"; @launch kernel=gemm2_kernel grid=(256,1,1) block=(512,1,1) lds={L_X + 12288}"

def main():
    ks = [k1(), k2(), k3()]
    errs = []
    for a, _, l in ks: errs += check(a.lines, l.split("=")[1].split()[0])
    for a, _, l in ks:
        for i, x in enumerate(a.lines):
            if x.startswith("s_set_gpr_idx_on"): assert a.lines[i + 3] == "s_set_gpr_idx_off", "gpr idx not closed"
    for e in errs: print(e, file=sys.stderr)
    hdr = open("standalone__modern_conv_block_slak__vision.s.ref").read().split("\n")
    hdr = [l for l in hdr if l.startswith(";") and "@launch" not in l and "Override" not in l and "grid=ceil" not in l]
    out = "\n".join(hdr) + "\n" + "\n".join(l for _, _, l in ks) + "\n"
    out += '.amdgcn_target "amdgcn-amd-amdhsa--gfx950"\n.text\n'
    for a, _, _ in ks: out += a.text()
    out += '.section .rodata,"a"\n'
    for _, d, _ in ks: out += d
    open(sys.argv[1], "w").write(out)
    print("written", sys.argv[1], len(out), "bytes; hazards:", len(errs))
main()
```

```python
import re

class Asm:
    def __init__(self):
        self.lines = []
    def __call__(self, s):
        for l in s.split("\n"):
            l = l.strip()
            if l: self.lines.append(l)
    def ext(self, L):
        for l in L: self(l)
    def label(self, n): self.lines.append(n + ":")
    def text(self):
        out = []
        for l in self.lines:
            if l.endswith(":") or l.startswith("."): out.append(l)
            else: out.append("    " + l)
        return "\n".join(out) + "\n"

_reg = re.compile(r"(?<![\w.])(-?\|?)([vas])(?:\[(\d+):(\d+)\]|(\d+))(?![\w])")
def regs(op):
    r = set()
    for m in _reg.finditer(op):
        k = m.group(2)
        if m.group(3) is not None: r.update((k, i) for i in range(int(m.group(3)), int(m.group(4)) + 1))
        else: r.add((k, int(m.group(5))))
    if re.search(r"\bvcc\b", op): r.add(("s", "vcc"))
    if re.search(r"\bm0\b", op): r.add(("s", "m0"))
    if re.search(r"\bexec\b", op): r.add(("s", "exec"))
    return r

def split_ops(rest):
    ops = []; depth = 0; cur = ""
    for ch in rest:
        if ch == "[": depth += 1
        if ch == "]": depth -= 1
        if ch == "," and depth == 0: ops.append(cur.strip()); cur = ""
        else: cur += ch
    if cur.strip(): ops.append(cur.strip())
    return ops

TRANS = ("v_exp_", "v_log_", "v_rcp_", "v_rsq_", "v_sqrt_", "v_sin_", "v_cos_")
def classify(line):
    line = line.split(";")[0].strip()
    if not line or line.endswith(":") or line.startswith("."): return None
    p = line.split(None, 1)
    mn = p[0]; ops = split_ops(p[1]) if len(p) > 1 else []
    d = dict(mn=mn, w=set(), r=set(), kind="other", states=1, line=line, srcc=set(), ab=set(), data=set())
    if mn == "s_nop": d["states"] = int(ops[0], 0) + 1; return d
    if mn.startswith("v_mfma"):
        d["kind"] = "mfma"; d["w"] = regs(ops[0]); d["ab"] = regs(ops[1]) | regs(ops[2]); d["srcc"] = regs(ops[3]); d["r"] = d["ab"] | d["srcc"]
        d["passes"] = 8 if "32x32" in mn else 4
        return d
    if mn.startswith("v_"):
        d["kind"] = "valu"
        if mn.startswith("v_cmp"):
            d["w"] = regs(ops[0]); d["r"] = set().union(*[regs(o) for o in ops[1:]])
        elif mn.startswith("v_permlane"):
            d["w"] = regs(ops[0]) | regs(ops[1]); d["r"] = set(d["w"]); d["perm"] = True
        else:
            d["w"] = regs(ops[0]); d["r"] = set().union(*[regs(o) for o in ops[1:]]) if len(ops) > 1 else set()
            if mn.startswith(("v_add_co", "v_addc_co", "v_sub_co")): d["w"] |= regs(ops[1])
            if mn.startswith(("v_fmac", "v_dot2c", "v_writelane")) or "UNUSED_PRESERVE" in line: d["r"] |= d["w"]
        if mn.startswith(TRANS): d["trans"] = True
        if mn.startswith("v_dot"): d["dot"] = True
        if "dpp" in mn or "row_" in line or "quad_perm" in line: d["dpp"] = True
        if "sdwa" in mn and "dst_sel:DWORD" not in line: d["opsel"] = True
        if mn.startswith(("v_readfirstlane", "v_readlane")): d["rl"] = True
        return d
    if mn.startswith(("buffer_", "global_")):
        d["kind"] = "vmem"
        allr = set().union(*[regs(o) for o in ops])
        if " lds" in line or "_lds_" in mn:
            d["r"] = allr | {("s", "m0")}; d["ldsdma"] = True
        elif "load" in mn:
            d["w"] = regs(ops[0]); d["r"] = set().union(*[regs(o) for o in ops[1:]])
        else:
            d["r"] = allr
            if "x4" in mn or "x3" in mn: d["data"] = regs(ops[0]) if mn.startswith("buffer_") else regs(ops[1])
        return d
    if mn.startswith("ds_"):
        d["kind"] = "ds"
        if mn.startswith(("ds_read", "ds_bpermute", "ds_permute", "ds_swizzle")):
            d["w"] = regs(ops[0]); d["r"] = set().union(*[regs(o) for o in ops[1:]])
        else: d["r"] = set().union(*[regs(o) for o in ops])
        return d
    if mn.startswith("s_"):
        d["kind"] = "salu"
        if mn.startswith(("s_cmp", "s_cbranch", "s_branch", "s_waitcnt", "s_barrier", "s_setprio", "s_endpgm", "s_sleep")):
            d["r"] = set().union(*[regs(o) for o in ops]) if ops and mn.startswith("s_cmp") else set()
        else:
            d["w"] = regs(ops[0]) if ops else set(); d["r"] = set().union(*[regs(o) for o in ops[1:]]) if len(ops) > 1 else set()
        return d
    return d

def need_states(p, c):
    need = 0
    vw = {x for x in p["w"] if x[0] in "va"}; sw = {x for x in p["w"] if x[0] == "s"}
    if p["kind"] == "valu":
        if c["kind"] == "mfma" and vw & c["r"]: need = max(need, 2)
        if p.get("trans") and c["kind"] == "valu" and vw & c["r"]: need = max(need, 1)
        if p.get("dot") and c["kind"] != "salu" and vw & (c["r"] | c["w"]): need = max(need, 3)
        if p.get("opsel") and c["kind"] == "valu" and vw & (c["r"] | c["w"]): need = max(need, 1)
        if c.get("perm") and vw & c["r"]: need = max(need, 2)
        if c.get("dpp") and vw & c["r"]: need = max(need, 2)
        if c.get("rl") and vw & c["r"]: need = max(need, 1)
        if sw and c["kind"] == "vmem" and sw & c["r"]: need = max(need, 5)
        if sw and c["kind"] == "valu" and sw & c["r"]: need = max(need, 2)
        if ("s", "exec") in sw and c["kind"] == "mfma": need = max(need, 4)
    if p["kind"] == "salu" and ("s", "m0") in p["w"] and c.get("ldsdma"): need = max(need, 1)
    if p["kind"] == "mfma":
        big = p["passes"] == 8
        if c["kind"] == "mfma":
            if p["w"] & c["ab"]: need = max(need, 12 if big else 8)
            if p["w"] & c["srcc"] and p["w"] != c["srcc"]: need = max(need, 10 if big else 6)
        elif c["kind"] in ("valu", "vmem", "ds") and p["w"] & (c["r"] | c["w"]): need = max(need, 12 if big else 8)
        if c["kind"] == "valu" and p["srcc"] & c["w"]: need = max(need, 7 if big else 3)
    if p["data"] and p["data"] & c["w"]: need = max(need, 2 if c["kind"] in ("valu", "mfma") else 1)
    return need

def check(lines, name=""):
    ins = []; lab = {}
    for l in lines:
        if l.endswith(":"): lab[l[:-1]] = len(ins)
        c = classify(l)
        if c: ins.append(c)
    pred = [[] for _ in range(len(ins) + 1)]
    for i, c in enumerate(ins):
        if c["mn"] not in ("s_branch", "s_endpgm"): pred[i + 1].append(i)
        if c["mn"] == "s_branch" or c["mn"].startswith("s_cbranch"):
            pred[lab[c["line"].split()[1]]].append(i)
    errs = set()
    for i, c in enumerate(ins):
        if c["kind"] in ("other",) or (c["kind"] == "salu"): continue
        best = {}
        stack = [(j, 0) for j in pred[i]]
        while stack:
            j, dist = stack.pop()
            if best.get(j, 99) <= dist: continue
            best[j] = dist
            p = ins[j]
            n = need_states(p, c)
            if n > dist: errs.add(f"[{name}] hazard need {n} have {dist}: '{p['line']}' -> '{c['line']}'")
            d2 = dist + p["states"]
            if d2 < 12: stack += [(k, d2) for k in pred[j]]
    return sorted(errs)
```

```python
import sys, struct, math
from asmlib import Asm, check

OPT = dict(f16=1, st_nt=1, h_nt=1, w_nt=0, out_nt=0, x_nt=1, xp_nt=1, ord=4, ntail=3, k3skipw=0, kf=0, k3pre=0, prof=0, roll=0, stg=1, mp0=2, mpd=2, ipf=0, k3pl=0, wwarm=0, latw=7, dwarm=1, bgb=-1, stamp=0, denorm=3, pm=3, pg0=0, pg1=1, bg=4, gb=2, gp=2, stm=7, stm0=7, w2pf=1, sga=7,
           k3pa=1, k3pb=2, k3eb=3, k3nost=0, k3noh=0, k3nox=0, k3now=0, k3na=6, k3as=5, k3b0=18, k3bs=5, k3bl=1, outlin=0, nostore=0)
for a in sys.argv[2:]:
    k, v = a.split("="); OPT[k] = int(v)

def f32(x): return "0x%08x" % struct.unpack("<I", struct.pack("<f", x))[0]
def f16bits(x): return struct.unpack("<H", struct.pack("<e", x))[0]

M = 147456; C = 384; F = 1536
XBYTES = M * C * 2
WSBYTES = 452984832
TILE_H = 589824; CHUNK_H = 12288; HSTRIDE = 3 * TILE_H - 2 * CHUNK_H
TAIL = 256 * HSTRIDE
W2F = TAIL + 1179648; B2 = TAIL; SSQ = TAIL + 2363392
NREP = 8
K1c = 2.0 * math.sqrt(2.0 / math.pi) * math.log2(math.e)
K3c = K1c * 0.044715
if OPT["f16"]:
    C0 = 1258.0 / 256.0
    ALPHA = K1c / C0
else:
    ALPHA = K3c ** (1.0 / 3.0)
    C0 = K1c / ALPHA

def srd(a, d, lo, hi, nrec, off=0):
    if off:
        a(f"s_add_u32 s{d}, s{lo}, {off}")
        a(f"s_addc_u32 s{d+1}, s{hi}, 0")
    else:
        a(f"s_mov_b32 s{d}, s{lo}")
        a(f"s_mov_b32 s{d+1}, s{hi}")
    a(f"s_mov_b32 s{d+2}, {nrec}")
    a(f"s_mov_b32 s{d+3}, 0x00020000")

def stamp(a, idx, base=64):
    if not OPT["stamp"]: return
    a("s_memrealtime s[90:91]")
    a("s_memtime s[92:93]")
    a("s_waitcnt lgkmcnt(0)")
    a(f"s_mov_b32 s{base+2*idx}, s90")
    a(f"s_mov_b32 s{base+2*idx+1}, s92")

def stamp2(a, ia, ib, creg, base=64):
    if not OPT["stamp"]: return
    a("s_memrealtime s[90:91]")
    a("s_memtime s[92:93]")
    a("s_waitcnt lgkmcnt(0)")
    a(f"s_cmp_eq_u32 s{creg}, 0")
    a(f"s_cselect_b32 s{base+2*ia}, s90, s{base+2*ia}")
    a(f"s_cselect_b32 s{base+2*ia+1}, s92, s{base+2*ia+1}")
    a(f"s_cselect_b32 s{base+2*ib}, s{base+2*ib}, s90")
    a(f"s_cselect_b32 s{base+2*ib+1}, s{base+2*ib+1}, s92")

def stamp_dump(a, n, wave_sgpr, tag, kidx, base=64):
    if not OPT["stamp"]: return
    a(f"s_and_b32 s94, s{wave_sgpr}, 3")
    a("s_cmp_lg_u32 s94, 0")
    a(f"s_cbranch_scc1 {tag}_nodump")
    a("s_load_dwordx2 s[90:91], s[0:1], 64")
    a("s_waitcnt lgkmcnt(0)")
    a(f"s_add_u32 s88, s90, {TAIL + (4 << 20) + kidx * 65536}")
    a("s_addc_u32 s89, s91, 0")
    a("s_mov_b32 s90, 65536")
    a("s_mov_b32 s91, 0x00020000")
    a(f"s_lshl_b32 s94, s{wave_sgpr}, 5")
    a("s_lshl_b32 s95, s2, 8")
    a("s_add_u32 s94, s94, s95")
    a("v_mov_b32 v8, 0")
    for i in range(n):
        a(f"v_mov_b32 v10, s{base+2*i}")
        a(f"v_mov_b32 v11, s{base+2*i+1}")
        a(f"buffer_store_dwordx2 v[10:11], v8, s[88:91], s94 offen offset:{i*8}")
        a("s_waitcnt vmcnt(0)")
    a.label(f"{tag}_nodump")

def q(r, n=4): return f"v[{r}:{r+n-1}]"

def kernel_start(a, name):
    a(f".globl {name}")
    a(".p2align 8")
    a(f".type {name},@function")
    a.label(name)

def code_prefetch(a, start, end, vt, st):
    if not OPT["ipf"]: return
    a(f"s_getpc_b64 s[{st}:{st+1}]")
    a(f"s_and_b32 s{st}, s{st}, 0xffffff00")
    a(f"s_mov_b32 s{st+2}, {end}-{start}")
    a(f"s_mov_b32 s{st+3}, 0x00020000")
    a(f"v_lshlrev_b32 v{vt}, 7, v0")
    a(f"buffer_load_dword v{vt}, v{vt}, s[{st}:{st+3}], 0 offen")

def desc(name, vgpr, sgpr=96):
    acc = min(256, (vgpr + 3) // 4 * 4)
    return f""".p2align 6
.amdhsa_kernel {name}
  .amdhsa_next_free_vgpr {vgpr}
  .amdhsa_next_free_sgpr {sgpr}
  .amdhsa_accum_offset {acc}
  .amdhsa_group_segment_fixed_size 0
  .amdhsa_kernarg_size 72
  .amdhsa_user_sgpr_count 2
  .amdhsa_user_sgpr_kernarg_segment_ptr 1
  .amdhsa_system_sgpr_workgroup_id_x 1
  .amdhsa_float_denorm_mode_32 {OPT['denorm']}
.end_amdhsa_kernel
"""

def gelu_batch(b, TMP, SSr, first, sC0, sC0H):
    L = []
    R = [b + i for i in range(8)]
    if not OPT["f16"]:
        T = [TMP + i for i in range(8)]
        for v, t in zip(R, T): L.append(f"v_fma_f32 v{t}, -v{v}, v{v}, s{sC0}")
        for v, t in zip(R, T): L.append(f"v_mul_f32 v{t}, v{t}, v{v}")
        for t in T: L.append(f"v_exp_f32 v{t}, v{t}")
        for t in T: L.append(f"v_add_f32 v{t}, 1.0, v{t}")
        for t in T: L.append(f"v_rcp_f32 v{t}, v{t}")
        for v, t in zip(R, T): L.append(f"v_mul_f32 v{t}, v{v}, v{t}")
        Gv = T
    else:
        H = [TMP + i for i in range(4)]; Pp = [TMP + 4 + i for i in range(4)]
        for i in range(4): L.append(f"v_cvt_pk_f16_f32 v{H[i]}, v{R[2*i]}, v{R[2*i+1]}")
        for i in range(4): L.append(f"v_pk_fma_f16 v{Pp[i]}, v{H[i]}, v{H[i]}, s{sC0H} neg_lo:[1,0,0] neg_hi:[1,0,0]")
        for i in range(4): L.append(f"v_pk_mul_f16 v{Pp[i]}, v{Pp[i]}, v{H[i]}")
        for i in range(4): L.append(f"v_exp_f16 v{H[i]}, v{Pp[i]}")
        for i in range(4): L.append(f"v_exp_f16_sdwa v{H[i]}, v{Pp[i]} dst_sel:WORD_1 dst_unused:UNUSED_PRESERVE src0_sel:WORD_1")
        for i in range(4): L.append(f"v_pk_add_f16 v{H[i]}, v{H[i]}, 1.0 op_sel_hi:[1,0]")
        for i in range(4): L.append(f"v_rcp_f16 v{Pp[i]}, v{H[i]}")
        for i in range(4): L.append(f"v_rcp_f16_sdwa v{H[i]}, v{H[i]} dst_sel:DWORD dst_unused:UNUSED_PAD src0_sel:WORD_1")
        for i in range(4): L.append(f"v_fma_mix_f32 v{R[2*i]}, v{R[2*i]}, v{Pp[i]}, 0 op_sel_hi:[0,1,0]")
        for i in range(4): L.append(f"v_fma_mix_f32 v{R[2*i+1]}, v{R[2*i+1]}, v{H[i]}, 0 op_sel_hi:[0,1,0]")
        Gv = R
    for e in (0, 4, 1, 5, 2, 6, 3, 7):
        s_ = SSr + e // 4
        L.append(f"v_mul_f32 v{s_}, v{Gv[e]}, v{Gv[e]}" if first and e % 4 == 0 else f"v_fmac_f32 v{s_}, v{Gv[e]}, v{Gv[e]}")
    for i in range(4): L.append(f"v_cvt_pk_bf16_f32 v{b+i}, v{Gv[2*i]}, v{Gv[2*i+1]}")
    return L

NBP = 6
def k2():
    a = Asm()
    kernel_start(a, "mid_kernel")
    a("s_cmp_ge_u32 s2, 144")
    a("s_cbranch_scc1 K2_end")
    a("s_load_dwordx4 s[4:7], s[0:1], 24")
    a("s_load_dwordx2 s[8:9], s[0:1], 40")
    a("s_load_dwordx2 s[10:11], s[0:1], 64")
    a("v_lshrrev_b32 v1, 6, v0")
    a("v_and_b32 v2, 63, v0")
    a("v_readfirstlane_b32 s3, v1")
    a("v_mul_u32_u24 v5, 12, v0")
    a("s_mul_i32 s30, s2, 43691")
    a("s_lshr_b32 s30, s30, 20")
    a("s_mul_i32 s32, s30, 24")
    a("s_sub_u32 s32, s2, s32")
    a("s_lshl_b32 s31, s30, 3")
    a("s_add_u32 s31, s31, s3")
    a("s_mul_i32 s33, s32, 43691")
    a("s_lshr_b32 s33, s33, 18")
    a("s_mul_i32 s33, s33, 90")
    a("s_add_u32 s33, s33, s32")
    a("s_lshl_b32 s38, s33, 2")
    a("s_lshl_b32 s33, s33, 1")
    a(f"s_mul_i32 s34, s31, {32 * 768}")
    a("s_add_u32 s33, s33, s34")
    a("v_lshrrev_b32 v3, 4, v2")
    a("v_and_b32 v4, 1, v3")
    a("v_lshlrev_b32 v4, 4, v4")
    a("v_lshrrev_b32 v3, 1, v3")
    a("v_lshl_add_u32 v3, v3, 3, v4")
    a("v_mul_u32_u24 v7, 768, v3")
    a("v_and_b32 v6, 15, v2")
    a("v_mul_u32_u24 v4, 12, v6")
    a("v_add_u32 v7, v4, v7")
    a("s_lshl_b32 s35, s31, 6")
    a("v_lshlrev_b32 v4, 1, v3")
    a("s_waitcnt lgkmcnt(0)")
    srd(a, 24, 10, 11, WSBYTES - TAIL, TAIL)
    a(f"s_mov_b32 s34, {SSQ - TAIL}")
    for r in range(NREP):
        a(f"buffer_load_dwordx3 {q(32+4*r, 3)}, v5, s[24:27], s34 offen")
        if r < NREP - 1: a("s_add_u32 s34, s34, 6144")
    srd(a, 12, 4, 5, C * F * 2)
    srd(a, 16, 6, 7, F * 2)
    srd(a, 20, 8, 9, F * 2)
    for e in range(8):
        if e == 4: a("s_add_u32 s33, s33, 3072")
        a(f"buffer_load_ushort v{8+e}, v7, s[12:15], s33 offen offset:{(e % 4) * 768}")
    a("buffer_load_dwordx4 v[16:19], v4, s[16:19], s35 offen")
    a("buffer_load_dwordx4 v[64:67], v4, s[20:23], s35 offen")
    a("s_waitcnt vmcnt(10)")
    for st in (4, 2, 1):
        for r in range(st):
            for k in range(3): a(f"v_add_f32 v{32+4*r+k}, v{32+4*r+k}, v{32+4*(r+st)+k}")
    a(f"s_mov_b32 s36, {f32(1.0 / (ALPHA * ALPHA))}")
    a(f"v_mov_b32 v20, {f32(1e-6)}")
    for k in range(3): a(f"v_fma_f32 v{32+k}, v{32+k}, s36, v20")
    for k in range(3): a(f"v_sqrt_f32 v{32+k}, v{32+k}")
    a("s_nop 0")
    for k in range(3): a(f"ds_write_b32 v5, v{32+k} offset:{4*k}")
    a("v_add_f32 v21, v32, v33")
    a("v_add_f32 v21, v21, v34")
    for ctl in ("row_shr:1", "row_shr:2", "row_shr:4", "row_shr:8"):
        a("s_nop 1")
        a(f"v_add_f32_dpp v21, v21, v21 {ctl} row_mask:0xf bank_mask:0xf bound_ctrl:0")
    a("s_nop 1")
    a("v_readlane_b32 s40, v21, 15")
    a("v_readlane_b32 s41, v21, 31")
    a("v_readlane_b32 s42, v21, 47")
    a("v_readlane_b32 s43, v21, 63")
    a("s_nop 1")
    a("v_mov_b32 v22, s40")
    a("v_add_f32 v22, s41, v22")
    a("v_add_f32 v22, s42, v22")
    a("v_add_f32 v22, s43, v22")
    a("s_lshl_b32 s37, s3, 2")
    a("v_mov_b32 v23, s37")
    a("ds_write_b32 v23, v22 offset:6144")
    a("s_waitcnt vmcnt(0)")
    for e in range(8):
        a(f"v_lshlrev_b32 v{8+e}, 16, v{8+e}")
        a(f"v_lshlrev_b32 v41, 16, v{64 + e // 2}" if e % 2 == 0 else f"v_and_b32 v41, 0xffff0000, v{64 + e // 2}")
        a(f"v_mul_f32 v42, v41, v{8+e}" if e == 0 else f"v_fmac_f32 v42, v41, v{8+e}")
    a("v_lshlrev_b32 v43, 2, v0")
    a("ds_write_b32 v43, v42 offset:6400")
    a("s_waitcnt lgkmcnt(0)")
    a("s_barrier")
    a("v_mov_b32 v23, 0")
    a("ds_read_b128 v[24:27], v23 offset:6144")
    a("ds_read_b128 v[28:31], v23 offset:6160")
    a("s_lshl_b32 s37, s31, 7")
    a("v_lshlrev_b32 v4, 2, v3")
    a("v_add_u32 v4, s37, v4")
    a("ds_read_b128 v[32:35], v4")
    a("ds_read_b128 v[36:39], v4 offset:16")
    a("v_lshlrev_b32 v43, 2, v2")
    for w in range(8): a(f"ds_read_b32 v{48+w}, v43 offset:{6400 + 256*w}")
    a("s_waitcnt lgkmcnt(8)")
    for st in (4, 2, 1):
        for r in range(st): a(f"v_add_f32 v{24+r}, v{24+r}, v{24+r+st}")
    a(f"v_mul_f32 v24, {f32(1.0 / F)}, v24")
    a(f"v_add_f32 v24, {f32(1e-6)}, v24")
    a("v_rcp_f32 v24, v24")
    a(f"s_mov_b32 s36, {f32(1.0 / ALPHA)}")
    for e in range(8):
        src = 16 + e // 2
        a(f"v_lshlrev_b32 v40, 16, v{src}" if e % 2 == 0 else f"v_and_b32 v40, 0xffff0000, v{src}")
        a(f"v_mul_f32 v{32+e}, v{32+e}, v24")
        a(f"v_fma_f32 v{32+e}, v{32+e}, v40, 1.0")
        a(f"v_mul_f32 v{32+e}, s36, v{32+e}")
        a(f"v_mul_f32 v{8+e}, v{8+e}, v{32+e}")
    for i in range(4): a(f"v_cvt_pk_bf16_f32 v{44+i}, v{8+2*i}, v{9+2*i}")
    a("s_mul_i32 s33, s31, 24")
    a("s_add_u32 s33, s33, s32")
    a("s_lshl_b32 s33, s33, 10")
    a(f"s_add_u32 s33, s33, {W2F - TAIL}")
    a("v_lshlrev_b32 v43, 4, v2")
    a("buffer_store_dwordx4 v[44:47], v43, s[24:27], s33 offen")
    a("s_cmp_lg_u32 s3, 0")
    a("s_cbranch_scc1 K2_end")
    a("s_waitcnt lgkmcnt(0)")
    for st in (4, 2, 1):
        for r in range(st): a(f"v_add_f32 v{48+r}, v{48+r}, v{48+r+st}")
    for sw in ("v_permlane16_swap_b32", "v_permlane32_swap_b32"):
        a("v_mov_b32 v49, v48")
        a("s_nop 1")
        a(f"{sw} v48, v49")
        a("v_add_f32 v48, v48, v49")
    a("v_mul_u32_u24 v4, 24, v6")
    a("s_mul_i32 s39, s30, 1536")
    a("s_add_u32 s38, s38, s39")
    a(f"s_add_u32 s38, s38, {B2 - TAIL}")
    a("buffer_store_dword v48, v4, s[24:27], s38 offen")
    a.label("K2_end")
    a("s_endpgm")
    return a, desc("mid_kernel", 72, 48), "; @launch kernel=mid_kernel grid=(144,1,1) block=(512,1,1) lds=8448"

def k1():
    a = Asm()
    XN = 8; ACC = 152; BB = 200; SQ = 232
    TMP = BB + 16; SS = BB + 24
    vDE, vXS, vRD, vST, vDW, vDO, vRB = 1, 2, 3, 4, 5, 6, 7
    L_DW = 147456
    sX, sW1, sH, sDB = 8, 12, 16, 20
    sWSlo, sWShi, sOUTlo, sOUThi, sDBlo, sDBhi = 24, 25, 26, 27, 28, 29
    (sWV, sGRP, sI, sEND, sRDS, sDSL, sT0, sT1, sC0, sHB, sXB, sREG, sSIG, sT2, sC0H, sDSR, sD0, sST0, sST1, sXN, sDS0, sTK,
     sSLO, sSHI, sDLO, sDHI, sSG0, sCW, sXU) = range(30, 59)
    sHN, sSLN, sSHN, sDSP, sDSN, sDCN, sCW2 = 82, 83, 84, 85, 86, 87, 3
    REG = 3 * 192 * 768
    kernel_start(a, "gemm1_kernel")
    a("s_cmp_ge_u32 s2, 256")
    a("s_cbranch_scc1 K1_end")
    stamp(a, 0)
    a("s_load_dwordx4 s[4:7], s[0:1], 0")
    a(f"s_load_dwordx2 s[{sW1}:{sW1+1}], s[0:1], 16")
    a(f"s_load_dwordx2 s[{sOUTlo}:{sOUThi}], s[0:1], 48")
    a(f"s_load_dwordx2 s[{sDBlo}:{sDBhi}], s[0:1], 56")
    a(f"s_load_dwordx2 s[{sWSlo}:{sWShi}], s[0:1], 64")
    code_prefetch(a, "gemm1_kernel", "K1_end", BB + 20, 60)
    a("v_lshrrev_b32 v8, 6, v0")
    a("v_and_b32 v9, 63, v0")
    a(f"v_readfirstlane_b32 s{sWV}, v8")
    a("v_lshrrev_b32 v12, 3, v9")
    a("v_and_b32 v13, 7, v9")
    a("v_lshrrev_b32 v14, 1, v12")
    a("v_xor_b32 v14, v14, v13")
    a(f"v_mul_u32_u24 v{vXS}, 768, v12")
    a(f"v_lshl_add_u32 v{vXS}, v14, 4, v{vXS}")
    a(f"s_lshr_b32 s{sT0}, s2, 4")
    a(f"s_and_b32 s{sSG0}, s{sT0}, {OPT['sga']}")
    a(f"s_lshl_b32 s{sT0}, s{sT0}, 4")
    a(f"s_and_b32 s{sT1}, s2, 7")
    a(f"s_lshl_b32 s{sT1}, s{sT1}, 1")
    a(f"s_add_u32 s{sT0}, s{sT0}, s{sT1}")
    a(f"s_bfe_u32 s{sT1}, s2, 0x10003")
    a(f"s_add_u32 s{sREG}, s{sT0}, s{sT1}")
    a(f"s_mul_i32 s{sSLO}, s{sT1}, 12")
    a(f"s_add_u32 s{sSHI}, s{sSLO}, 12")
    a(f"s_lshr_b32 s{sGRP}, s{sWV}, 2")
    a(f"s_and_b32 s{sT1}, s{sWV}, 3")
    a(f"s_add_u32 s{sT0}, s{sT0}, s{sGRP}")
    a(f"s_mul_i32 s{sXB}, s{sT0}, {REG}")
    a(f"s_mul_i32 s{sT2}, s{sT1}, {48 * 768}")
    a(f"s_add_u32 s{sXB}, s{sXB}, s{sT2}")
    if not OPT["roll"]: a(f"s_add_u32 s{sXB}, s{sXB}, {2 * 192 * 768}")
    a(f"s_mul_i32 s{sHB}, s{sT0}, {HSTRIDE}")
    if not OPT["roll"]: a(f"s_add_u32 s{sHB}, s{sHB}, {2 * TILE_H}")
    a(f"s_mul_i32 s59, s{sT0}, {REG}")
    if OPT["roll"]: a(f"s_add_u32 s59, s59, {2 * 192 * 768}")
    a(f"s_mul_i32 s{sXN}, s{sREG}, {REG}")
    a(f"s_add_u32 s{sT2}, s{sWV}, 4" if OPT["roll"] else f"s_xor_b32 s{sT2}, s{sWV}, 4")
    a(f"s_mul_i32 s{sT2}, s{sT2}, {48 * 768}")
    a(f"s_add_u32 s{sXN}, s{sXN}, s{sT2}")
    a(f"s_mul_i32 s{sHN}, s{sREG}, {HSTRIDE}")
    a(f"s_xor_b32 s{sT2}, s{sGRP}, {0 if OPT['roll'] else 1}")
    a(f"s_mul_i32 s{sT2}, s{sT2}, {TILE_H}")
    a(f"s_add_u32 s{sHN}, s{sHN}, s{sT2}")
    if OPT["roll"]: a(f"s_add_u32 s{sHN}, s{sHN}, {46 * CHUNK_H}")
    a(f"s_mov_b32 s{sSLN}, 0")
    a(f"s_mov_b32 s{sSHN}, 24")
    a(f"s_mov_b32 s{sDSP}, 23")
    a(f"s_mov_b32 s{sDSN}, -1")
    if OPT["ord"]:
        a(f"s_bitcmp1_b32 s2, {OPT['ord']}")
        a("s_cbranch_scc0 K1_noswap")
        for x, y in ((sXB, sXN), (sHB, sHN), (sSLO, sSLN), (sSHI, sSHN), (sDSP, sDSN)):
            a(f"s_mov_b32 s{sT2}, s{x}"); a(f"s_mov_b32 s{x}, s{y}"); a(f"s_mov_b32 s{y}, s{sT2}")
        a.label("K1_noswap")
    a(f"s_mul_i32 s{sD0}, s{sWV}, 6144")
    a(f"s_mov_b32 s{sCW}, s{sD0}")
    a(f"s_add_u32 s{sCW2}, s{sD0}, 49152")
    a("s_waitcnt lgkmcnt(0)")
    srd(a, sX, 4, 5, XBYTES)

    KPO = [3, 4, 5, 2, 1, 0]
    def xdma(n, pol=None):
        if pol is None:
            if OPT["x_nt"] == OPT["xp_nt"]: return xdma(n, OPT["x_nt"])
            return [f"s_cbranch_vccnz K1_xa{n}"] + xdma(n, OPT["x_nt"]) + [f"s_branch K1_xb{n}", f"K1_xa{n}:"] + xdma(n, OPT["xp_nt"]) + [f"K1_xb{n}:"]
        xnt = " nt" if pol else ""
        tt, kp = divmod(n, 6); kp = KPO[kp]
        return [f"s_add_u32 m0, s{(sCW, sCW2)[n // 3 % 2]}, {(n % 3) * 2048}", f"s_add_u32 s{sXU}, s{sXB}, {tt * 12288 + kp * 128}",
                f"buffer_load_dwordx4 v{vXS}, s[{sX}:{sX+3}], s{sXU} offen{xnt} lds",
                "s_add_u32 m0, m0, 1024", f"s_add_u32 s{sXU}, s{sXU}, 6144",
                f"buffer_load_dwordx4 v{vXS}, s[{sX}:{sX+3}], s{sXU} offen{xnt} lds"]
    srd(a, sH, 6, 7, C * 2)
    a(f"v_lshlrev_b32 v{ACC+4}, 2, v0")
    a(f"buffer_load_dword v{ACC}, v{ACC+4}, s[{sH}:{sH+3}], 0 offen")
    for n in range(6): a.ext(xdma(n, OPT['x_nt']))
    a('s_mov_b64 vcc, 0')

    a("v_and_b32 v10, 15, v9")
    a("v_lshrrev_b32 v11, 4, v9")
    a(f"v_lshlrev_b32 v{vST}, 2, v11")
    a(f"v_xor_b32 v{vST}, v{vST}, v9")
    a(f"v_lshlrev_b32 v{vST}, 4, v{vST}")
    a(f"s_mul_i32 s{sT2}, s{sT1}, 3072")
    a(f"v_add_u32 v{vST}, s{sT2}, v{vST}")
    a(f"v_lshlrev_b32 v{vDW}, 5, v11")
    a(f"v_add_u32 v{vDW}, {L_DW}, v{vDW}")
    a("v_and_b32 v14, 2, v12")
    a("v_xor_b32 v13, v13, v14")
    a(f"v_mul_u32_u24 v{vDE}, 3072, v12")
    a(f"v_lshl_add_u32 v{vDE}, v13, 4, v{vDE}")
    a(f"v_xor_b32 v{vDO}, 64, v{vDE}")
    a("v_lshrrev_b32 v12, 2, v10")
    a("v_lshl_add_u32 v13, v11, 3, v12")
    a(f"v_lshlrev_b32 v{vRB}, 7, v13")
    a("v_lshrrev_b32 v12, 1, v12")
    a("v_and_b32 v13, 1, v11")
    a("v_lshl_add_u32 v12, v13, 1, v12")
    a(f"v_lshl_add_u32 v{vRB}, v12, 5, v{vRB}")
    a("v_and_b32 v12, 3, v10")
    a(f"v_lshl_add_u32 v{vRB}, v12, 3, v{vRB}")
    a(f"s_mov_b32 s{sC0}, {f32(-C0)}")
    h = f16bits(-C0); a(f"s_mov_b32 s{sC0H}, 0x{h:04x}{h:04x}")
    a(f"s_mul_i32 s{sDS0}, s{sWV}, {6 * 24576}")
    a(f"s_add_u32 s{sSIG}, s{sSLO}, s{sSG0}")
    a(f"s_lshl_b32 s{sDLO}, s{sSLO}, 7")
    a(f"s_add_u32 s{sDLO}, s{sDLO}, s{sDS0}")
    a(f"s_lshl_b32 s{sDHI}, s{sSHI}, 7")
    a(f"s_add_u32 s{sDHI}, s{sDHI}, s{sDS0}")
    a(f"s_lshl_b32 s{sDSR}, s{sSG0}, 7")
    a(f"s_add_u32 s{sDSR}, s{sDSR}, s{sDLO}")
    a(f"s_mov_b32 s{sDSL}, s{sD0}")
    a(f"s_mov_b32 s{sTK}, 1")
    a(f"s_mov_b32 s{sW1+2}, {C * F * 2}")
    a(f"s_mov_b32 s{sW1+3}, 0x00020000")
    srd(a, sDB, sDBlo, sDBhi, 256)

    uid = [0]
    def dma():
        P = []
        for k in range(6):
            pre = [f"s_mov_b32 m0, s{sDSL}", f"s_mov_b32 s{sT0}, s{sDSR}"] if k == 0 else ["s_add_u32 m0, m0, 1024", f"s_add_u32 s{sT0}, s{sT0}, 24576"]
            P.append(pre + [f"buffer_load_dwordx4 v{(vDE, vDO)[k % 2]}, s[{sW1}:{sW1+3}], s{sT0} offen lds"])
        P[5] += [f"s_add_u32 s{sDSL}, s{sDSL}, 49152", f"s_cmp_ge_u32 s{sDSL}, 147456", f"s_cselect_b32 s{sDSL}, s{sD0}, s{sDSL}",
                 f"s_add_u32 s{sDSR}, s{sDSR}, 128", f"s_cmp_eq_u32 s{sDSR}, s{sDHI}", f"s_cselect_b32 s{sDSR}, s{sDLO}, s{sDSR}"]
        uid[0] += 1
        P[5] += [f"s_sub_u32 s{sDCN}, s{sDCN}, 1", f"s_cmp_lg_u32 s{sDCN}, 0", f"s_cbranch_scc1 K1_ds{uid[0]}",
                 f"s_lshl_b32 s{sDLO}, s{sSLN}, 7", f"s_add_u32 s{sDLO}, s{sDLO}, s{sDS0}", f"s_lshl_b32 s{sDHI}, s{sSHN}, 7", f"s_add_u32 s{sDHI}, s{sDHI}, s{sDS0}",
                 f"s_lshl_b32 s{sDSR}, s{sSG0}, 7", f"s_add_u32 s{sDSR}, s{sDSR}, s{sDLO}", f"K1_ds{uid[0]}:"]
        return P

    a(f"v_lshlrev_b32 v{ACC+4}, 3, v0")
    a(f"v_add_u32 v{ACC+4}, {L_DW}, v{ACC+4}")
    a("s_waitcnt vmcnt(12)")
    a(f"v_and_b32 v{ACC+2}, 0xffff, v{ACC}")
    a(f"v_and_b32 v{ACC+3}, 0xffff0000, v{ACC}")
    a(f"ds_write_b64 v{ACC+4}, {q(ACC+2, 2)}")
    a(f"v_mov_b32 v{BB+8}, 1")
    a(f"s_cmp_lg_u32 s{sWV}, 0")
    a("s_cbranch_scc1 K1_pj")
    a(f"v_lshlrev_b32 v{ACC+5}, 8, v0")
    a(f"s_and_b32 s{sT0}, s2, {NREP - 1}")
    a(f"s_lshl_b32 s{sT0}, s{sT0}, 2")
    a(f"buffer_atomic_add v{BB+8}, v{ACC+5}, s[{sDB}:{sDB+3}], s{sT0} offen sc0")
    a.label("K1_pj")
    for r in range(SQ, SQ + 24): a(f"v_mov_b32 v{r}, 0")
    srd(a, sH, sWSlo, sWShi, TAIL)
    a(f"s_mov_b32 s{sI}, 0")
    a(f"s_sub_u32 s{sEND}, s{sSHI}, s{sSLO}")
    a(f"s_mov_b32 s{sRDS}, 0")
    a(f"s_mov_b32 s{sDCN}, s{sEND}")
    a(f"s_sub_u32 s{sEND}, s{sEND}, 2")
    a("s_waitcnt lgkmcnt(0)")
    a("s_barrier")
    stamp(a, 1)

    def buf(i): return BB + 4 * (i % 8)
    def rd(i):
        ct, ks = divmod(i, 12)
        L = [f"v_xor_b32 v{vRD}, {((ct - 1) ^ ct) << 5}, v{vRD}"] if ks == 0 and ct > 0 else []
        return L + [f"ds_read_b64_tr_b16 {q(buf(i) + 2*u, 2)}, v{vRD} offset:{ks*4096 + u*512}" for u in range(2)]
    def head(): return [f"v_add_u32 v{vRD}, s{sRDS}, v{vRB}"] + [x for i in range(4) for x in rd(i)]

    DWR = [BB + 16, BB + 24]
    S = BB; Q = BB + 4; vTK = BB + 8; vW2 = BB + 10; vXR = BB + 12; vT = BB + 13; vFL = BB + 14
    KSO = [6, 7, 8, 9, 10, 11, 5, 4, 3, 2, 1, 0]
    def dwrd(m): return [f"ds_read_b128 {q(DWR[m % 2] + 4*j)}, v{vDW} offset:{KSO[m % 12]*128 + j*16}" for j in range(2)]
    def xaddr():
        return [f"v_and_b32 v{vT}, 15, v0", f"v_lshlrev_b32 v{vXR}, 7, v{vT}", f"v_bfe_u32 v{vT}, v0, 1, 2", f"v_bfe_u32 v{vFL}, v0, 4, 2",
                f"v_xor_b32 v{vT}, v{vT}, v{vFL}", f"v_lshl_add_u32 v{vXR}, v{vT}, 4, v{vXR}", f"v_add_u32 v{vT}, s{sCW2}, v{vXR}", f"v_add_u32 v{vXR}, s{sCW}, v{vXR}"]
    def xread(n):
        tt, kp = divmod(n, 6); kp = KPO[kp]
        return [f"ds_read_b128 {q(XN + 48*tt + 8*kp + 4*e)}, v{(vXR, vT)[n // 3 % 2]} offset:{(n % 3) * 2048 + e * 64}" for e in range(2)]
    a.ext(xaddr())
    a.label("K1_ln")
    a.ext(dwrd(0))
    def yreg(tt, d): return XN + 48*tt + 2*d if d < 24 else ACC + 2*(d - 24)
    for tt in range(3):
        for m in range(12):
            n = tt * 6 + m // 2; ks = KSO[m]
            if m % 2 == 0:
                if tt == 0: a(f"s_cbranch_vccnz K1_ta{n}")
                a(f"s_waitcnt vmcnt({2 * min(5, 17 - n) + (6 if n > 14 else 0)})")
                a.ext(xread(n))
                if tt == 0: a.label(f"K1_ta{n}")
            last = tt == 2 and m == 11
            if not last: a.ext(dwrd(m + 1))
            a(f"s_waitcnt lgkmcnt({0 if last else 2})")
            if m % 2 == 0:
                if tt == 0:
                    a(f"s_cbranch_vccnz K1_tb{n}")
                    a.ext(xdma(n + 6, OPT["x_nt"]))
                    a.label(f"K1_tb{n}")
                elif n + 6 < 18: a.ext(xdma(n + 6))
                if n in (14, 17):
                    for p in dma(): a.ext(p)
            D = DWR[m % 2]
            for jj in (3, 2, 1, 0):
                d = 4 * ks + jj; x = XN + 48*tt + d; y = yreg(tt, d)
                a(f"v_dot2_f32_bf16 v{y+1}, v{x}, v{D+2*jj+1}, 0")
                a(f"v_dot2_f32_bf16 v{y}, v{x}, v{D+2*jj}, 0")
            for jj in (3, 2, 1, 0):
                y = q(yreg(tt, 4 * ks + jj), 2); s_ = q(S + 2*(jj % 2), 2); q_ = q(Q + 2*(jj % 2), 2)
                if m == 0 and jj >= 2:
                    a(f"v_pk_mul_f32 {s_}, {y}, 1.0 op_sel_hi:[1,0]")
                    a(f"v_pk_mul_f32 {q_}, {y}, {y}")
                else:
                    a(f"v_pk_add_f32 {s_}, {s_}, {y}")
                    a(f"v_pk_fma_f32 {q_}, {y}, {y}, {q_}")
        a(f"v_pk_add_f32 {q(S,2)}, {q(S,2)}, {q(S+2,2)}")
        a(f"v_pk_add_f32 {q(Q,2)}, {q(Q,2)}, {q(Q+2,2)}")
        a(f"v_add_f32 v{S}, v{S}, v{S+1}")
        a(f"v_add_f32 v{Q}, v{Q}, v{Q+1}")
        for sw in ("v_permlane16_swap_b32", "v_permlane32_swap_b32"):
            a(f"v_mov_b32 v{S+1}, v{S}"); a(f"v_mov_b32 v{Q+1}, v{Q}")
            a("s_nop 0")
            a(f"{sw} v{S}, v{S+1}"); a(f"{sw} v{Q}, v{Q+1}")
            a(f"v_add_f32 v{S}, v{S}, v{S+1}"); a(f"v_add_f32 v{Q}, v{Q}, v{Q+1}")
        a(f"v_mul_f32 v{S}, {f32(-1.0 / C)}, v{S}")
        a(f"v_mul_f32 v{Q}, {f32(1.0 / C)}, v{Q}")
        a(f"v_fma_f32 v{Q}, -v{S}, v{S}, v{Q}")
        a(f"v_max_f32 v{Q}, 0, v{Q}")
        a(f"v_add_f32 v{Q}, {f32(1e-5)}, v{Q}")
        a(f"v_rsq_f32 v{Q}, v{Q}")
        a("s_nop 0")
        a(f"v_mul_f32 v{Q}, {f32(ALPHA)}, v{Q}")
        a(f"v_mul_f32 v{S}, v{S}, v{Q}")
        for d0 in range(0, 48, 4):
            for d in range(d0, d0 + 4):
                y = q(yreg(tt, d), 2)
                a(f"v_pk_fma_f32 {y}, {y}, {q(Q,2)}, {q(S,2)} op_sel_hi:[1,0,0]")
            for d in range(d0, d0 + 4):
                a(f"v_cvt_pk_bf16_f32 v{XN + 48*tt + d}, v{yreg(tt, d)}, v{yreg(tt, d) + 1}")
    a(f"s_cmp_lg_u32 s{sI}, 0")
    a("s_cbranch_scc1 K1_chk")
    a(f"v_readfirstlane_b32 s{sTK}, v{BB+8}")
    a("s_nop 3")
    a(f"s_cmp_lg_u32 s{sTK}, 0")
    a("s_cbranch_scc1 K1_flag")
    srd(a, 60, sWSlo, sWShi, NREP * 6144, SSQ)
    a(f"s_and_b32 s{sT0}, s2, {NREP - 1}")
    a(f"s_mul_i32 s{sT1}, s{sT0}, 6144")
    a(f"s_add_u32 s{sT2}, s{sT1}, 4096")
    for i in range(4): a(f"v_mov_b32 v{ACC+i}, 0")
    a(f"v_lshlrev_b32 v{ACC+4}, 4, v0")
    for k in range(6): a(f"buffer_store_dwordx4 {q(ACC)}, v{ACC+4}, s[60:63], s{(sT1, sT2)[k // 4]} offen offset:{(k % 4) * 1024} sc0 sc1")
    a(f"v_lshlrev_b32 v{ACC+5}, 8, v0")
    a(f"v_mov_b32 v{ACC+6}, 1")
    a(f"s_lshl_b32 s{sT0}, s{sT0}, 2")
    a("s_waitcnt vmcnt(0)")
    a(f"buffer_store_dword v{ACC+6}, v{ACC+5}, s[{sDB}:{sDB+3}], s{sT0} offen offset:64 sc0 sc1")
    a("s_branch K1_flag")
    a.label("K1_chk")
    a(f"v_readfirstlane_b32 s{sT1}, v{vFL+1}")
    a("s_nop 3")
    a(f"s_cmp_lg_u32 s{sT1}, 0")
    a("s_cbranch_scc1 K1_flag")
    a(f"v_mov_b32 v{vFL}, 0")
    a(f"buffer_load_dword v{vFL+1}, v{vFL}, s[{sDB}:{sDB+3}], s{sT2} offen offset:64 sc0 sc1")
    a("s_waitcnt vmcnt(0)")
    a("s_branch K1_chk")
    a.label("K1_flag")
    a("s_waitcnt vmcnt(0)")
    stamp2(a, 2, 5, sI)
    a("s_barrier")
    stamp2(a, 3, 6, sI)
    a.ext(head())
    a(f"s_cmp_eq_u32 s{sGRP}, 0")
    a("s_cbranch_scc1 K1_regA")
    a("s_barrier")
    a("s_branch K1_regB")

    def accr(ct, tt): return ACC + (((ct >> 1) * 3 + tt) * 2 + (ct & 1)) * 4
    NT = OPT["ntail"]
    def step(kind, grp):
        tag = kind + "AB"[grp]
        BG = OPT["bg"] if grp == 0 else OPT["bgb"]
        a(".p2align 6")
        a.label(f"K1_{tag}")
        a(f"s_setprio {OPT['pm']}")
        P = dma()
        misc = [[f"s_add_u32 s{sRDS}, s{sRDS}, 49152", f"s_cmp_eq_u32 s{sRDS}, 147456", f"s_cselect_b32 s{sRDS}, 0, s{sRDS}",
                 f"s_mul_i32 s{sST0}, s{sSIG}, {2 * CHUNK_H}", f"s_add_u32 s{sST0}, s{sST0}, s{sHB}"],
                [f"s_cmp_eq_u32 s{sSIG}, s{sDSP}", f"s_cselect_b32 s{sH}, s{sOUTlo}, s{sWSlo}", f"s_cselect_b32 s{sH+1}, s{sOUThi}, s{sWShi}",
                 f"s_cselect_b32 s{sST0}, s59, s{sST0}", f"s_mov_b32 s{sT1}, {XBYTES}", f"s_cselect_b32 s{sH+2}, s{sT1}, {TAIL}"],
                [f"s_add_u32 s{sST1}, s{sST0}, {CHUNK_H}", f"s_add_u32 s{sI}, s{sI}, 1"]]
        for g in range(12):
            a("s_waitcnt lgkmcnt(0)")
            k = 0
            ct = g // 3
            R = [x for j in range(4) for x in rd((g + 1) * 4 + j)] if g < 11 else []
            if len(R) == 9: R = [R[0] + "\n" + R[1]] + R[2:]
            for tt in range(3):
                for j in range(4):
                    i = g * 4 + j; ks = i % 12
                    c = "0" if ks == 0 else q(accr(ct, tt))
                    a(f"v_mfma_f32_16x16x32_bf16 {q(accr(ct, tt))}, {q(XN + 48*tt + 4*ks)}, {q(buf(i))}, {c}")
                    if k < len(R): a(R[k])
                    if k == 10 and g < len(misc): a.ext(misc[g])
                    if k == 9:
                        if g == BG and grp == 0:
                            if kind != "last": a("s_waitcnt vmcnt(6)")
                            a("s_barrier")
                        if BG < g <= BG + 6:
                            m = g - BG - 1
                            if kind == "pre":
                                if m == 0: a.ext([f"s_mov_b32 s{sCW}, s{sDSL}", f"s_mov_b32 s{sXB}, s{sXN}", f"s_add_u32 s{sCW2}, s{sDSL}, 49152",
                                                  f"s_cmp_ge_u32 s{sCW2}, 147456", f"s_cselect_b32 s{sCW2}, s{sD0}, s{sCW2}"])
                                if m % 2 == 0: a.ext(xdma(m // 2, OPT["xp_nt"]))
                            elif kind == "last":
                                if m % 2 == 0: a.ext(xdma(3 + m // 2, OPT["xp_nt"]))
                            else: a.ext(P[m])
                    k += 1
        a(f"s_setprio {OPT['pg0']}")
        if kind == "last": a.ext(xaddr())
        nb = 0
        for cp in range(2):
            for tt in range(3):
                b = ACC + (cp * 3 + tt) * 8
                a.ext(gelu_batch(b, TMP, SS + 2 * cp, tt == 0, sC0, sC0H))
                keep = kind != "tail" and (OPT["stm"] >> (cp * 3 + tt)) & 1
                a(f"buffer_store_dwordx4 {q(b)}, v{vST}, s[{sH}:{sH+3}], s{(sST0, sST1)[cp]} offen offset:{tt*1024}" + (" nt" if OPT["st_nt"] and not keep else ["", " sc1", " sc0 sc1", " sc0"][OPT["kf"]]))
                if kind == "last":
                    a(f"s_waitcnt vmcnt({13 + 3 * nb if nb < 3 else 11 + nb})")
                    a.ext(xread(nb))
                    a("s_waitcnt lgkmcnt(0)")
                    a.ext(xdma(nb + 6, OPT["xp_nt"]))
                nb += 1
                if nb == OPT["gb"] and grp == 1 and kind != "last":
                    if kind == "tail":
                        a(f"s_cmp_eq_u32 s{sI}, 36")
                        a(f"s_cbranch_scc1 K1_nogb")
                    if kind != "pre": a(f"s_waitcnt vmcnt({nb})")
                    a("s_barrier")
                    if kind == "tail": a.label("K1_nogb")
                if nb == OPT["gp"]: a(f"s_setprio {OPT['pg1']}")
                if nb == 5 and kind != "last": a.ext(head())
            a(f"v_permlane16_swap_b32 v{SS+2*cp}, v{SS+2*cp+1}")
            if cp == 0: a("s_nop 0")
            a(f"v_add_f32 v{SS+2*cp}, v{SS+2*cp}, v{SS+2*cp+1}")
        a("s_nop 1")
        a(f"v_permlane32_swap_b32 v{SS}, v{SS+2}")
        a(f"v_add_f32 v{SS}, v{SS}, v{SS+2}")
        a(f"s_set_gpr_idx_on s{sSIG}, gpr_idx(SRC0,DST)")
        a(f"s_add_u32 s{sSIG}, s{sSIG}, 1")
        a(f"v_add_f32 v{SQ}, v{SQ}, v{SS}")
        a("s_set_gpr_idx_off")
        a(f"s_cmp_eq_u32 s{sSIG}, s{sSHI}")
        a(f"s_cselect_b32 s{sSIG}, s{sSLO}, s{sSIG}")
        if kind == "reg":
            a(f"s_cmp_lg_u32 s{sI}, s{sEND}")
            a(f"s_cbranch_scc1 K1_{tag}")
            a(f"s_cmp_eq_u32 s{sI}, {36 - NT}")
            a(f"s_cbranch_scc1 K1_tail{'AB'[grp]}")
        elif kind == "pre":
            pass
        elif kind == "last":
            a("s_branch K1_sw")
        else:
            a(f"s_cmp_lg_u32 s{sI}, 36")
            a(f"s_cbranch_scc1 K1_{tag}")
            a("s_branch K1_fin")
    for grp in range(2):
        for kind in ("reg", "pre", "last", "tail"): step(kind, grp)
    a.label("K1_sw")
    a("s_setprio 0")
    a("s_mov_b64 vcc, -1")
    stamp(a, 4)
    a(f"s_mov_b32 s{sEND}, {36 - NT}")
    a(f"s_mov_b32 s{sSLO}, s{sSLN}")
    a(f"s_mov_b32 s{sSHI}, s{sSHN}")
    a(f"s_add_u32 s{sSIG}, s{sSLO}, s{sSG0}")
    a(f"s_mov_b32 s{sHB}, s{sHN}")
    a(f"s_mov_b32 s{sDSP}, s{sDSN}")
    a(f"s_and_b32 s{sT2}, s2, {NREP - 1}")
    a(f"s_lshl_b32 s{sT2}, s{sT2}, 2")
    a("s_waitcnt lgkmcnt(0)")
    a(f"v_mov_b32 v{vFL}, 0")
    a(f"buffer_load_dword v{vFL+1}, v{vFL}, s[{sDB}:{sDB+3}], s{sT2} offen offset:64 sc0 sc1")
    if OPT["w2pf"]:
        a("s_load_dwordx2 s[60:61], s[0:1], 24")
        a(f"s_mov_b32 s62, {C * F * 2}")
        a("s_mov_b32 s63, 0x00020000")
        a(f"s_mul_i32 s{sT0}, s2, 4608")
        a(f"v_lshlrev_b32 v{BB+10}, 7, v0")
        a(f"v_min_u32 v{BB+10}, 4480, v{BB+10}")
        a("s_waitcnt lgkmcnt(0)")
        a(f"s_cmp_lg_u32 s{sWV}, 0")
        a("s_cbranch_scc1 K1_ln")
        a(f"buffer_load_dword v{BB+11}, v{BB+10}, s[60:63], s{sT0} offen")
    a("s_branch K1_ln")
    a.label("K1_fin")
    a("s_setprio 0")
    stamp(a, 7)
    a(f"s_and_b32 s{sT0}, s2, {NREP - 1}")
    a("s_waitcnt vmcnt(6) lgkmcnt(0)")
    a("s_barrier")
    a("v_and_b32 v1, 63, v0")
    a("v_lshlrev_b32 v1, 2, v1")
    a(f"v_add_u32 v1, s{sD0}, v1")
    for k in range(24): a(f"ds_write_b32 v1, v{SQ+k} offset:{k*256}")
    a("v_lshlrev_b32 v1, 2, v0")
    a("s_waitcnt lgkmcnt(0)")
    a("s_barrier")
    for k in range(3):
        for w in range(8): a(f"ds_read_b32 v{XN+8*k+w}, v1 offset:{w*6144 + k*2048}")
    srd(a, 60, sWSlo, sWShi, NREP * 6144, SSQ)
    a(f"s_mul_i32 s{sT0}, s{sT0}, 6144")
    a(f"s_add_u32 s{sT1}, s{sT0}, 4096")
    a("s_waitcnt lgkmcnt(0)")
    for st in (4, 2, 1):
        for k in range(3):
            for w in range(st): a(f"v_add_f32 v{XN+8*k+w}, v{XN+8*k+w}, v{XN+8*k+w+st}")
    a(f"buffer_atomic_add_f32 v{XN}, v1, s[60:63], s{sT0} offen")
    a(f"buffer_atomic_add_f32 v{XN+8}, v1, s[60:63], s{sT0} offen offset:2048")
    a(f"buffer_atomic_add_f32 v{XN+16}, v1, s[60:63], s{sT1} offen")
    if OPT["stamp"]: a("s_waitcnt vmcnt(0)")
    stamp(a, 8)
    stamp_dump(a, 9, sWV, "K1", 0)
    a.label("K1_end")
    a("s_endpgm")
    return a, desc("gemm1_kernel", 256, 100), f"; @launch kernel=gemm1_kernel grid=(256,1,1) block=(512,1,1) lds={L_DW + 4096}"

T1B = 46 * CHUNK_H; T2B = 94 * CHUNK_H
def k3r():
    REG = 3 * 192 * 768
    a = Asm()
    ACC = 16; HB = 160; WB = 184; SEL = 208; BIAS = 216; XT = 240
    vD0, vWR, vHR0, vHR1, vXR, vOUT, vWB0, vHB0, vHB1 = 1, 4, 5, 6, 7, 8, 9, 10, 11
    L_H = 73728; L_X = 147456
    sD, sO = 8, 12
    (sWV, sTH, sCQ, sSrc, sDst, sSlot, sDLo, sDEnd, sT0, sT1, sWS, sHS, sPASS, sOB, sEV, sT2, sJd, sLag, sSrc3, sSrcL, sSrcL3, sLim, sHalf, sDP, sHlo, sHhi) = range(30, 56)
    STG = OPT["stg"]; NB = (5 * STG + 1 + 3) // 4 * 4
    kernel_start(a, "gemm2_kernel")
    a("s_cmp_ge_u32 s2, 256")
    a("s_cbranch_scc1 K3_end")
    stamp(a, 0)
    a("s_load_dwordx2 s[4:5], s[0:1], 0")
    a("s_load_dwordx2 s[6:7], s[0:1], 48")
    a("s_load_dwordx2 s[24:25], s[0:1], 64")
    code_prefetch(a, "gemm2_kernel", "K3_end", 100, 60)
    a("v_lshrrev_b32 v16, 6, v0")
    a("v_and_b32 v17, 63, v0")
    a(f"v_readfirstlane_b32 s{sWV}, v16")
    a(f"v_lshlrev_b32 v{vD0}, 4, v17")
    a(f"v_add_u32 v{vD0+1}, 1024, v{vD0}")
    a(f"v_add_u32 v{vD0+2}, 2048, v{vD0}")
    a("v_and_b32 v18, 15, v17")
    a("v_lshrrev_b32 v19, 4, v17")
    a("v_mul_u32_u24 v20, 24, v18")
    a(f"s_lshr_b32 s{sTH}, s{sWV}, 2")
    a(f"s_and_b32 s{sCQ}, s{sWV}, 3")
    a(f"s_mov_b32 s{sD+3}, 0x00020000")
    a(f"s_mov_b32 s{sO+3}, 0x00020000")
    a(f"s_mov_b32 s{sO+2}, 0")
    a(f"s_mul_i32 s{sT0}, s2, {REG}")
    a(f"s_and_b32 s{sHalf}, s{sWV}, 1")
    a(f"s_mul_i32 s{sHalf}, s{sHalf}, 6144")
    a(f"s_mul_i32 s{sT1}, s2, {HSTRIDE}")
    a(f"s_mov_b32 s{sJd}, 0")
    a(f"s_mov_b32 s{sLag}, 0")
    a(f"s_mov_b32 s{sDP}, 0")
    a(f"s_mov_b32 s{sSrc}, s{sHalf}")
    a("s_waitcnt lgkmcnt(0)")
    a(f"s_add_u32 s{sO}, s6, s{sT0}")
    a(f"s_addc_u32 s{sO+1}, s7, 0")
    a(f"s_add_u32 s{sHlo}, s24, s{sT1}")
    a(f"s_addc_u32 s{sHhi}, s25, 0")
    srd(a, 16, 24, 25, 1536 * NBP, B2)
    a(f"s_mul_i32 s{sT1}, s{sCQ}, 384")
    for p in range(NBP):
        a(f"buffer_load_dwordx3 {q(24 + 8*p, 3)}, v20, s[16:19], s{sT1} offen")
        a(f"buffer_load_dwordx3 {q(28 + 8*p, 3)}, v20, s[16:19], s{sT1} offen offset:12")
        if p < NBP - 1: a(f"s_add_u32 s{sT1}, s{sT1}, 1536")

    nt = " nt" if OPT["h_nt"] else ""
    def pieces_w():
        P = []
        for k in range(6):
            pre = [f"s_mov_b32 m0, s{sDst}", f"s_add_u32 s{sT2}, s{sSrc}, 3072"] if k == 0 else ["s_add_u32 m0, m0, 1024", "s_nop 0"]
            P.append(pre + [f"buffer_load_dwordx4 v{vD0 + k % 3}, s[{sD}:{sD+3}], s{sSrc if k < 3 else sT2} offen lds"])
        P[5] += [f"s_add_u32 s{sDst}, s{sDst}, 24576", f"s_cmp_eq_u32 s{sDst}, s{sDEnd}", f"s_cselect_b32 s{sDst}, s{sDLo}, s{sDst}",
                 f"s_add_u32 s{sSrc}, s{sSrc}, 24576", f"s_cmp_ge_u32 s{sSrc}, 1179648", f"s_cselect_b32 s{sSrc}, s{sDLo}, s{sSrc}"]
        return P
    uid = [0]
    def pieces_h():
        P = []
        for k in range(6):
            if k == 0:
                P.append([f"s_mov_b32 m0, s{sDst}", f"s_add_u32 s{sSrc3}, s{sSrc}, 3072",
                          f"buffer_load_dwordx4 v{vD0}, s[{sD}:{sD+3}], s{sSrc} offen{nt} lds",
                          f"s_sub_u32 s{sSrcL}, s{sSrc}, s{sLag}", f"s_sub_u32 s{sSrcL3}, s{sSrc3}, s{sLag}"])
            else:
                P.append(["s_add_u32 m0, m0, 1024", f"s_cmp_lt_u32 s{sJd}, {STG * k}",
                          f"s_cselect_b32 s{sT2}, s{sSrcL if k < 3 else sSrcL3}, s{sSrc if k < 3 else sSrc3}",
                          f"buffer_load_dwordx4 v{vD0 + k % 3}, s[{sD}:{sD+3}], s{sT2} offen{nt} lds"])
        uid[0] += 1; u = uid[0]
        P[5] += [f"s_add_u32 s{sDst}, s{sDst}, s{sSlot}", f"s_cmp_eq_u32 s{sDst}, s{sDEnd}", f"s_cselect_b32 s{sDst}, s{sDLo}, s{sDst}",
                 f"s_add_u32 s{sSrc}, s{sSrc}, 12288", f"s_cmp_ge_u32 s{sSrc}, s{sLim}", f"s_cselect_b32 s{sD+2}, 0, s{sD+2}",
                 f"s_add_u32 s{sJd}, s{sJd}, 1", f"s_cmp_lt_u32 s{sJd}, 46", f"s_cbranch_scc1 K3_av{u}",
                 f"s_add_u32 s{sT2}, s{sJd}, s{sDP}", f"s_cmp_lg_u32 s{sT2}, 46", f"s_cbranch_scc1 K3_aw{u}",
                 f"s_mov_b32 s{sD}, s{sO}", f"s_mov_b32 s{sD+1}, s{sO+1}", f"s_mov_b32 s{sD+2}, {REG}", f"s_add_u32 s{sSrc}, s{sHalf}, {2 * 192 * 768}",
                 f"K3_aw{u}:", f"s_cmp_lg_u32 s{sJd}, 48", f"s_cbranch_scc1 K3_av{u}",
                 f"s_mov_b32 s{sJd}, 0", f"s_mov_b32 s{sLag}, {48 * CHUNK_H}", f"s_cmp_lg_u32 s{sDP}, 0", f"s_cbranch_scc1 K3_av{u}",
                 f"s_mov_b32 s{sDP}, 100", f"s_mov_b32 s{sLag}, {46 * CHUNK_H}", f"s_mov_b32 s{sD}, s{sHlo}", f"s_mov_b32 s{sD+1}, s{sHhi}",
                 f"s_mov_b32 s{sD+2}, {HSTRIDE}", f"s_add_u32 s{sSrc}, s{sHalf}, {T1B}",
                 f"K3_av{u}:"]
        return P

    a(f"s_cmp_lt_u32 s{sWV}, 4")
    a("s_cbranch_scc1 K3_rw")
    a(f"s_cmp_ge_u32 s{sWV}, 6")
    a("s_cbranch_scc1 K3_rx")
    a(f"s_mov_b32 s{sD}, s{sHlo}")
    a(f"s_mov_b32 s{sD+1}, s{sHhi}")
    a(f"s_mov_b32 s{sD+2}, {HSTRIDE}")
    a(f"s_add_u32 s{sDLo}, s{sHalf}, {L_H}")
    a(f"s_mov_b32 s{sDst}, s{sDLo}")
    a(f"s_add_u32 s{sDEnd}, s{sDLo}, 73728")
    a(f"s_mov_b32 s{sSlot}, {CHUNK_H}")
    a(f"s_mov_b32 s{sLim}, -1")
    a(f"s_mov_b32 s{sT1}, 5")
    a.label("K3_hpro")
    for p in pieces_h(): a.ext(p)
    a(f"s_sub_u32 s{sT1}, s{sT1}, 1")
    a(f"s_cmp_lg_u32 s{sT1}, 0")
    a("s_cbranch_scc1 K3_hpro")
    a("s_mov_b64 s[56:57], 0")
    a("s_branch K3_rdone")
    a.label("K3_rx")
    a(f"s_add_u32 s{sD}, s4, s{sT0}")
    a(f"s_addc_u32 s{sD+1}, s5, 0")
    a(f"s_mov_b32 s{sD+2}, {REG}")
    for m in range(3):
        v = vD0 + m
        a(f"v_mul_u32_u24 v20, 43691, v{v}")
        a("v_lshrrev_b32 v20, 25, v20")
        a("v_mul_u32_u24 v21, 864, v20")
        a(f"v_sub_u32 v21, v{v}, v21")
        a("v_add_u32 v22, 768, v21")
        a("v_cmp_gt_i32 vcc, 0, v21")
        a("v_mul_u32_u24 v20, 768, v20")
        a("s_nop 0")
        a("v_cndmask_b32 v21, v21, v22, vcc")
        a(f"v_add_u32 v{v}, v20, v21")
    a(f"s_add_u32 s{sDLo}, s{sHalf}, {L_X}")
    a(f"s_mov_b32 s{sDEnd}, 0")
    a(f"s_mov_b32 s{sSlot}, 0")
    a(f"s_mov_b32 s{sDst}, s{sDLo}")
    a(f"s_mov_b32 s{sLim}, {REG}")
    a("s_mov_b64 s[56:57], -1")
    a("s_branch K3_rdone")
    a.label("K3_rw")
    a(f"s_add_u32 s{sD}, s24, {W2F}")
    a(f"s_addc_u32 s{sD+1}, s25, 0")
    a(f"s_mov_b32 s{sD+2}, 1179648")
    a(f"s_mul_i32 s{sDLo}, s{sCQ}, 6144")
    a(f"s_add_u32 s{sDEnd}, s{sDLo}, 73728")
    a(f"s_mov_b32 s{sDst}, s{sDLo}")
    a(f"s_mov_b32 s{sSrc}, s{sDLo}")
    for _ in range(2):
        for p in pieces_w(): a.ext(p)
    a("s_mov_b64 s[56:57], 0")
    a.label("K3_rdone")
    a(f"v_mul_u32_u24 v{vOUT}, 3072, v19")
    a("v_mul_u32_u24 v21, 12, v18")
    a(f"s_mul_i32 s{sT0}, s{sTH}, {96 * 768}")
    a(f"s_mul_i32 s{sT1}, s{sCQ}, 192")
    a(f"s_add_u32 s{sT0}, s{sT0}, s{sT1}")
    a(f"v_add3_u32 v{vOUT}, v{vOUT}, v21, s{sT0}")
    a(f"s_mul_i32 s{sT0}, s{sCQ}, 6144")
    a(f"v_lshl_add_u32 v{vWB0}, v17, 4, s{sT0}")
    a("v_and_b32 v21, 3, v18")
    a("v_lshrrev_b32 v22, 2, v18")
    a("v_and_b32 v23, 2, v19")
    a("v_xor_b32 v23, v23, v21")
    a("v_lshl_add_u32 v22, v23, 2, v22")
    a("v_lshl_add_u32 v22, v21, 4, v22")
    a("v_lshlrev_b32 v22, 4, v22")
    a("v_and_b32 v23, 1, v19")
    a("v_lshl_add_u32 v22, v23, 3, v22")
    a(f"s_mul_i32 s{sT0}, s{sTH}, 6144")
    a(f"s_add_u32 s{sT0}, s{sT0}, {L_H}")
    a(f"v_add_u32 v{vHB0}, s{sT0}, v22")
    a(f"v_xor_b32 v{vHB1}, 64, v{vHB0}")
    a(f"s_lshl_b32 s{sT0}, s{sCQ}, 2")
    a("v_lshl_add_u32 v22, v21, 1, v19")
    a(f"v_add_u32 v22, s{sT0}, v22")
    a("v_and_b32 v22, 15, v22")
    a("v_mul_u32_u24 v22, 48, v22")
    a("v_mul_u32_u24 v23, 768, v18")
    a(f"v_add_u32 v22, {L_X}, v22")
    a(f"v_add_u32 v{vXR}, v22, v23")
    a("v_lshrrev_b32 v22, 2, v18")
    a("v_cmp_eq_u32 vcc, v22, v19")
    a("v_mov_b32 v23, 0x3f80")
    a("s_nop 0")
    a("v_cndmask_b32 v23, 0, v23, vcc")
    for e in range(4):
        a(f"v_cmp_eq_u32 vcc, {e}, v21")
        a("s_nop 1")
        a(f"v_cndmask_b32 v{SEL+e}, 0, v23, vcc")
        a(f"v_lshlrev_b32 v{SEL+4+e}, 16, v{SEL+e}")
    a("s_mov_b64 vcc, s[56:57]")
    a(f"s_mov_b32 s{sWS}, 0")
    a(f"s_mov_b32 s{sHS}, 0")
    a(f"s_mov_b32 s{sPASS}, 0")
    a(f"s_mov_b32 s{sOB}, 0")
    a("s_waitcnt vmcnt(24)")
    a(f"s_cmp_eq_u32 s{sSlot}, {CHUNK_H}" if False else f"s_sub_u32 s{sT0}, s{sWV}, 4")
    a(f"s_cmp_lt_u32 s{sT0}, 2")
    a("s_cbranch_scc1 K3_pw")
    a("s_waitcnt vmcnt(6)")
    a("s_cbranch_vccz K3_pw")
    a("s_waitcnt vmcnt(0)")
    a.label("K3_pw")
    for p in range(1, NBP):
        for n in range(6):
            src = 24 + n if n < 3 else 25 + n
            a(f"v_add_f32 v{src}, v{src}, v{src + 8*p}")
    for n in range(6):
        src = 24 + n if n < 3 else 25 + n
        for r in range(4): a(f"v_mov_b32 v{BIAS+4*n+r}, v{src}")
    stamp(a, 1)

    def accr(n, t): return ACC + (t * 6 + n) * 4
    ofl = ["", " nt", " sc1", " sc0 sc1", " sc0"][OPT["out_nt"]]
    def mini(t):
        L = [f"s_add_u32 s{sT1}, s{sOB}, {t * 12288}"]
        for r in range(4):
            tq = XT + 4 * r if STG % 2 == 0 else (12, 252)[r % 2]
            for j in range(3): L.append(f"v_cvt_pk_bf16_f32 v{tq+j}, v{accr(2*j, t)+r}, v{accr(2*j+1, t)+r}")
            if not OPT["k3nost"]: L.append(f"buffer_store_dwordx3 {q(tq, 3)}, v{vOUT}, s[{sO}:{sO+3}], s{sT1} offen offset:{r*768}" + ofl)
        return L
    def step(grp, u, bnd):
        u4 = u % 4; tag = f"{grp}{'b' if bnd else 'l'}{u}"
        L = [f"v_add_u32 v{vWR}, s{sWS}, v{vWB0}", f"v_add_u32 v{vHR0}, s{sHS}, v{vHB0}", f"v_add_u32 v{vHR1}, s{sHS}, v{vHB1}"]
        R = []
        for t in range(6):
            R.append(f"ds_read_b128 {q(WB + 4*t)}, v{vWR} offset:{t*1024}")
            R.append(f"ds_read_b64_tr_b16 {q(HB + 4*t, 2)}, v{vHR0} offset:{t*1024}")
            R.append(f"ds_read_b64_tr_b16 {q(HB + 4*t + 2, 2)}, v{vHR1} offset:{t*1024}")
        P = pieces_w() if grp == 0 else pieces_h()
        def gd(X, z): return X if grp == 0 or u4 == 0 else [f"s_cbranch_vccnz K3_s{tag}{z}"] + X + [f"K3_s{tag}{z}:"]
        L += gd(P[0], "a") + R[:6] + gd(P[1], "b") + R[6:12] + gd(P[2], "c") + R[12:]
        if u4 == 3:
            L += [f"s_sub_u32 s{sT0}, s{sEV}, {6*grp}", f"s_cmp_lt_u32 s{sT0}, 6", f"s_cbranch_scc0 K3_xr{tag}"]
            for p in range(3):
                L.append(f"ds_read2_b32 {q(XT + 4*p, 2)}, v{vXR} offset0:{p} offset1:{p+3}")
                L.append(f"ds_read2_b32 {q(XT + 4*p + 2, 2)}, v{vXR} offset0:{p+6} offset1:{p+9}")
            L.append(f"K3_xr{tag}:")
        L += gd(P[3] + P[4] + P[5], "d")
        L += [f"s_add_u32 s{sWS}, s{sWS}, 24576", f"s_cmp_eq_u32 s{sWS}, 73728", f"s_cselect_b32 s{sWS}, 0, s{sWS}",
              f"s_add_u32 s{sHS}, s{sHS}, 12288", f"s_cmp_eq_u32 s{sHS}, 73728", f"s_cselect_b32 s{sHS}, 0, s{sHS}"]
        tb = u // STG if bnd and u % STG == 0 and u // STG < 6 else None
        def nst(back):
            if not bnd or OPT["k3nost"]: return 0
            return 4 * sum(1 for w in range(max(0, u - back), u + 1 - grp) if w % STG == 0 and w // STG < 6)
        if tb == 5:
            a(f"s_cmp_eq_u32 s{sPASS}, 3")
            a("s_cbranch_scc1 K3_fin")
        a.ext(L)
        if grp == 0:
            a("s_waitcnt lgkmcnt(0)")
            a(f"s_setprio {OPT['k3pa']}")
        else:
            if u4 == 2:
                a(f"s_cbranch_vccz K3_nx{tag}")
                a(f"s_waitcnt vmcnt({nst(2)})")
                a.label(f"K3_nx{tag}")
            a(f"s_waitcnt vmcnt({24 + nst(4)}) lgkmcnt(0)")
            a("s_barrier")
            a(f"s_setprio {OPT['k3pb']}")
        if u4 == 3:
            a(f"s_cmp_lt_u32 s{sT0}, 6")
            a(f"s_cbranch_scc0 K3_xd{tag}")
            ts = range(6) if not bnd else [t for t in range(6) if t + 6 * grp == u // 4]
            for t in ts:
                if t != ts[-1]:
                    a(f"s_cmp_lg_u32 s{sT0}, {t}")
                    a(f"s_cbranch_scc1 K3_x{tag}_{t+1}")
                for n in range(6):
                    a(f"v_mfma_f32_16x16x32_bf16 {q(accr(n, t))}, {q(XT + 4*(n >> 1))}, {q(SEL + 4*(n & 1))}, {q(accr(n, t))}")
                if t != ts[-1]:
                    a(f"s_branch K3_xd{tag}")
                    a.label(f"K3_x{tag}_{t+1}")
            a.label(f"K3_xd{tag}")
            a(f"s_add_u32 s{sEV}, s{sEV}, 1")
        def mf(t): return [f"v_mfma_f32_16x16x32_bf16 {q(accr(n, t))}, {q(HB + 4*t)}, {q(WB + 4*n)}, {q(BIAS + 4*n) if t == tb else q(accr(n, t))}" for n in range(6)]
        bar = [f"s_waitcnt vmcnt({6 + nst(1)})", "s_barrier"] if grp == 0 else []
        ns = u // STG + 1 if bnd else 6
        def full():
            order = [t for t in range(6) if t != tb] + ([tb] if tb is not None else [])
            Ms = [[x] for t in order for x in mf(t)]
            if tb is not None:
                E = mini(tb)
                pos = OPT["mp0"]
                for x in E:
                    Ms[pos].append(x)
                    if not x.startswith("s_"): pos += 1
                    if x.startswith("buffer"): pos += OPT["mpd"]
                assert pos <= 29
            e = OPT["k3eb"] if grp == 0 else 0
            Ms[35 - e] += (["s_setprio 3"] if e else []) + bar
            a.ext([x for m in Ms for x in m])
        if ns >= 6:
            full()
        else:
            a(f"s_sub_u32 s{sT2}, s{sPASS}, 1")
            a(f"s_cmp_lt_u32 s{sT2}, 2")
            a(f"s_cbranch_scc0 K3_m0{tag}")
            full()
            a(f"s_branch K3_m3{tag}")
            a.label(f"K3_m0{tag}")
            if tb is not None: a.ext(mini(tb))
            a(f"s_cmp_eq_u32 s{sPASS}, 3")
            a(f"s_cbranch_scc1 K3_m1{tag}")
            for t in range(ns): a.ext(mf(t))
            a(f"s_branch K3_m2{tag}")
            a.label(f"K3_m1{tag}")
            for t in range(ns, 6): a.ext(mf(t))
            a.label(f"K3_m2{tag}")
            a.ext(bar)
            a.label(f"K3_m3{tag}")
        a("s_setprio 0")

    a("s_barrier")
    a(f"s_cmp_lg_u32 s{sTH}, 0")
    a("s_cbranch_scc1 K3_1_tile")
    for grp in range(2):
        a.label(f"K3_{grp}_tile")
        a(f"s_cmp_eq_u32 s{sPASS}, 3")
        a(f"s_cselect_b32 s{sEV}, 100, 0")
        for u in range(NB): step(grp, u, True)
        if OPT["stamp"]: stamp2(a, 2, 4, sPASS)
        a(".p2align 6")
        a.label(f"K3_{grp}_loop")
        for u in range(4): step(grp, u, False)
        a(f"s_cmp_lg_u32 s{sEV}, 12")
        a(f"s_cbranch_scc1 K3_{grp}_loop")
        if OPT["stamp"]: stamp2(a, 3, 5, sPASS)
        a(f"s_mul_i32 s{sOB}, s{sPASS}, {192 * 768}")
        a(f"s_add_u32 s{sPASS}, s{sPASS}, 1")
        a(f"s_mov_b32 s{sO+2}, {REG}")
        a(f"s_branch K3_{grp}_tile")
    a.label("K3_fin")
    stamp(a, 6)
    a("s_nop 7")
    a.ext(mini(5))
    if OPT["stamp"]: a("s_waitcnt vmcnt(0)")
    stamp(a, 7)
    stamp_dump(a, 8, sWV, "K3", 1)
    a.label("K3_end")
    a("s_endpgm")
    return a, desc("gemm2_kernel", 256, 100), f"; @launch kernel=gemm2_kernel grid=(256,1,1) block=(512,1,1) lds={L_X + 12288}"

def k3():
    a = Asm()
    ACC = 16; HB = 160; WB = 184; SEL = 208; BIAS = 216; XT = 240
    vD0, vWR, vHR0, vHR1, vXR, vOUT, vWB0, vHB0, vHB1 = 1, 4, 5, 6, 7, 8, 9, 10, 11
    L_H = 73728; L_X = 147456
    sD, sO = 8, 12
    (sWV, sTH, sCQ, sSrc, sDst, sSlot, sDLo, sDEnd, sLeft, sT0, sT1, sWS, sHS, sJ, sOB, sEV, sNR, sT2, sFIRST) = range(30, 49)
    REG = 3 * 192 * 768
    kernel_start(a, "gemm2_kernel")
    a("s_cmp_ge_u32 s2, 256")
    a("s_cbranch_scc1 K3_end")
    stamp(a, 0)
    a("s_load_dwordx2 s[4:5], s[0:1], 0")
    a("s_load_dwordx2 s[6:7], s[0:1], 48")
    a("s_load_dwordx2 s[24:25], s[0:1], 64")
    code_prefetch(a, "gemm2_kernel", "K3_end", 100, 60)
    a("v_lshrrev_b32 v16, 6, v0")
    a("v_and_b32 v17, 63, v0")
    a(f"v_readfirstlane_b32 s{sWV}, v16")
    a(f"v_lshlrev_b32 v{vD0}, 4, v17")
    a(f"v_add_u32 v{vD0+1}, 1024, v{vD0}")
    a(f"v_add_u32 v{vD0+2}, 2048, v{vD0}")
    a("v_and_b32 v18, 15, v17")
    a("v_lshrrev_b32 v19, 4, v17")
    a(f"s_lshr_b32 s{sT0}, s2, 4")
    a(f"s_lshl_b32 s{sT0}, s{sT0}, 4")
    a(f"s_and_b32 s{sT1}, s2, 7")
    a(f"s_lshl_b32 s{sT1}, s{sT1}, 1")
    a(f"s_add_u32 s{sT0}, s{sT0}, s{sT1}")
    a(f"s_bfe_u32 s{sT1}, s2, 0x10003")
    a(f"s_add_u32 s3, s{sT0}, s{sT1}")
    a(f"s_lshr_b32 s{sTH}, s{sWV}, 2")
    a(f"s_and_b32 s{sCQ}, s{sWV}, 3")
    a(f"s_mov_b32 s{sD+3}, 0x00020000")
    a(f"s_mov_b32 s{sO+3}, 0x00020000")
    a(f"s_mov_b32 s{sO+2}, {REG}")
    a(f"s_mul_i32 s{sT0}, s3, {REG}")
    a(f"s_and_b32 s{sT1}, s{sWV}, 1")
    a(f"s_mul_i32 s{sT1}, s{sT1}, 6144")
    a("s_waitcnt lgkmcnt(0)")
    a(f"s_add_u32 s{sO}, s6, s{sT0}")
    a(f"s_addc_u32 s{sO+1}, s7, 0")

    srd(a, 16, 24, 25, 1536 * NBP, B2)
    a("v_mul_u32_u24 v20, 24, v18")
    a(f"s_mul_i32 s{sT2}, s{sCQ}, 384")
    for p in range(NBP):
        a(f"buffer_load_dwordx3 {q(24 + 8*p, 3)}, v20, s[16:19], s{sT2} offen")
        a(f"buffer_load_dwordx3 {q(28 + 8*p, 3)}, v20, s[16:19], s{sT2} offen offset:12")
        if p < NBP - 1: a(f"s_add_u32 s{sT2}, s{sT2}, 1536")

    def pieces(srd_, sfx=""):
        P = []
        for k in range(6):
            if k == 0: pre = [f"s_mov_b32 m0, s{sDst}", f"s_add_u32 s{sT2}, s{sSrc}, 3072"]
            else: pre = ["s_add_u32 m0, m0, 1024", "s_nop 0"]
            so = sSrc if k < 3 else sT2
            P.append(pre + [f"buffer_load_dwordx4 v{vD0 + k % 3}, s[{srd_}:{srd_+3}], s{so} offen{sfx} lds"])
        return P
    def advance_w():
        return [f"s_add_u32 s{sDst}, s{sDst}, 24576", f"s_cmp_eq_u32 s{sDst}, s{sDEnd}", f"s_cselect_b32 s{sDst}, s{sDLo}, s{sDst}",
                f"s_sub_u32 s{sSrc}, s{sSrc}, 24576", f"s_cselect_b32 s{sT2}, 1179648, 0", f"s_add_u32 s{sSrc}, s{sSrc}, s{sT2}"]
    def advance_h():
        return [f"s_add_u32 s{sDst}, s{sDst}, s{sSlot}", f"s_cmp_eq_u32 s{sDst}, s{sDEnd}", f"s_cselect_b32 s{sDst}, s{sDLo}, s{sDst}",
                f"s_sub_u32 s{sSrc}, s{sSrc}, 12288", f"s_cselect_b32 s{sD+2}, 0, s{sD+2}", f"s_cselect_b32 s{sSrc}, 0, s{sSrc}"]
    nt = " nt" if OPT["h_nt"] else ""
    wnt = " nt" if OPT["w_nt"] else ""

    a(f"s_cmp_lt_u32 s{sWV}, 4")
    a("s_cbranch_scc1 K3_rw")
    a(f"s_cmp_ge_u32 s{sWV}, 6")
    a("s_cbranch_scc1 K3_rx")
    a(f"s_add_u32 s{sDLo}, s{sT1}, {L_H}")
    a(f"s_mov_b32 s{sDst}, s{sDLo}")
    a(f"s_add_u32 s{sSrc}, s{sT1}, {CHUNK_H}")
    for p in pieces(sO, nt): a.ext(p)
    a(f"s_add_u32 s{sDst}, s{sDst}, {CHUNK_H}")
    a(f"s_mov_b32 s{sSrc}, s{sT1}")
    for p in pieces(sO, nt): a.ext(p)
    a(f"s_mul_i32 s{sT0}, s3, {HSTRIDE}")
    a(f"s_add_u32 s{sD}, s24, s{sT0}")
    a(f"s_addc_u32 s{sD+1}, s25, 0")
    a(f"s_mov_b32 s{sD+2}, {0 if OPT['k3noh'] else HSTRIDE}")
    a(f"s_add_u32 s{sDEnd}, s{sDLo}, 73728")
    a(f"s_mov_b32 s{sSlot}, {CHUNK_H}")
    a(f"s_add_u32 s{sDst}, s{sDst}, {CHUNK_H}")
    a(f"s_add_u32 s{sSrc}, s{sT1}, {HSTRIDE - CHUNK_H}")
    for _ in range(3 if OPT["k3bl"] else 4):
        for p in pieces(sD, nt): a.ext(p)
        a.ext(advance_h())
    a("s_mov_b64 vcc, 0")
    a("s_branch K3_rdone")
    a.label("K3_rx")
    a(f"s_add_u32 s{sD}, s4, s{sT0}")
    a(f"s_addc_u32 s{sD+1}, s5, 0")
    a(f"s_mov_b32 s{sD+2}, {0 if OPT['k3nox'] else REG}")
    for m in range(3):
        v = vD0 + m
        a(f"v_mul_u32_u24 v20, 43691, v{v}")
        a("v_lshrrev_b32 v20, 25, v20")
        a("v_mul_u32_u24 v21, 864, v20")
        a(f"v_sub_u32 v21, v{v}, v21")
        a("v_add_u32 v22, 768, v21")
        a("v_cmp_gt_i32 vcc, 0, v21")
        a("v_mul_u32_u24 v20, 768, v20")
        a("s_nop 0")
        a("v_cndmask_b32 v21, v21, v22, vcc")
        a(f"v_add_u32 v{v}, v20, v21")
    a(f"s_add_u32 s{sDLo}, s{sT1}, {L_X}")
    a(f"s_mov_b32 s{sDEnd}, 0")
    a(f"s_mov_b32 s{sSlot}, 0")
    a(f"s_mov_b32 s{sDst}, s{sDLo}")
    a(f"s_add_u32 s{sSrc}, s{sT1}, {35 * 12288}")
    if OPT["wwarm"]:
        srd(a, 60, 24, 25, 1179648, W2F)
        a(f"s_lshr_b32 s{sT2}, s2, 3")
        a(f"s_mul_i32 s{sT2}, s{sT2}, 36864")
        a(f"s_mul_i32 s{sT0}, s{sT1}, 3")
        a(f"s_add_u32 s{sT2}, s{sT2}, s{sT0}")
        a("v_lshlrev_b32 v20, 7, v17")
        for i in range(3):
            a(f"buffer_load_dword v{100 + i}, v20, s[60:63], s{sT2} offen")
            a(f"s_add_u32 s{sT2}, s{sT2}, 6144" if False else f"s_add_u32 s{sT2}, s{sT2}, 8192")
    if not OPT["k3bl"]:
        for p in pieces(sD, nt): a.ext(p)
        a.ext(advance_h())
    a("s_mov_b64 vcc, -1")
    a("s_branch K3_rdone")
    a.label("K3_rw")
    a(f"s_add_u32 s{sD}, s24, {W2F}")
    a(f"s_addc_u32 s{sD+1}, s25, 0")
    a(f"s_mov_b32 s{sD+2}, {0 if OPT['k3now'] else 1179648}")
    a(f"s_mul_i32 s{sDLo}, s{sCQ}, 6144")
    a(f"s_add_u32 s{sDEnd}, s{sDLo}, 73728")
    a(f"s_mov_b32 s{sSlot}, 0")
    a(f"s_mov_b32 s{sDst}, s{sDLo}")
    a(f"s_add_u32 s{sSrc}, s{sDLo}, {47 * 24576}")
    for _ in range(5 if OPT["k3skipw"] else 2):
        for p in pieces(sD, wnt): a.ext(p)
        a.ext(advance_w())
    a("s_mov_b64 vcc, 0")
    a.label("K3_rdone")
    a("s_mov_b64 s[50:51], vcc")
    a(f"v_mul_u32_u24 v{vOUT}, 3072, v19")
    a("v_mul_u32_u24 v21, 12, v18")
    a(f"s_mul_i32 s{sT0}, s{sTH}, {96 * 768}")
    a(f"s_mul_i32 s{sT1}, s{sCQ}, 192")
    a(f"s_add_u32 s{sT0}, s{sT0}, s{sT1}")
    a(f"v_add3_u32 v{vOUT}, v{vOUT}, v21, s{sT0}")
    if OPT["outlin"]:
        a(f"v_mul_u32_u24 v{vOUT}, 12, v17")
        a(f"s_mul_i32 s{sT0}, s{sWV}, 18432")
        a(f"v_add_u32 v{vOUT}, s{sT0}, v{vOUT}")
    a(f"s_mul_i32 s{sT0}, s{sCQ}, 6144")
    a(f"v_lshl_add_u32 v{vWB0}, v17, 4, s{sT0}")
    a("v_and_b32 v21, 3, v18")
    a("v_lshrrev_b32 v22, 2, v18")
    a("v_and_b32 v23, 2, v19")
    a("v_xor_b32 v23, v23, v21")
    a("v_lshl_add_u32 v22, v23, 2, v22")
    a("v_lshl_add_u32 v22, v21, 4, v22")
    a("v_lshlrev_b32 v22, 4, v22")
    a("v_and_b32 v23, 1, v19")
    a("v_lshl_add_u32 v22, v23, 3, v22")
    a(f"s_mul_i32 s{sT0}, s{sTH}, 6144")
    a(f"s_add_u32 s{sT0}, s{sT0}, {L_H}")
    a(f"v_add_u32 v{vHB0}, s{sT0}, v22")
    a(f"v_xor_b32 v{vHB1}, 64, v{vHB0}")
    a(f"s_lshl_b32 s{sT0}, s{sCQ}, 2")
    a("v_lshl_add_u32 v22, v21, 1, v19")
    a(f"v_add_u32 v22, s{sT0}, v22")
    a("v_and_b32 v22, 15, v22")
    a("v_mul_u32_u24 v22, 48, v22")
    a("v_mul_u32_u24 v23, 768, v18")
    a(f"v_add_u32 v22, {L_X}, v22")
    a(f"v_add_u32 v{vXR}, v22, v23")
    a("v_lshrrev_b32 v22, 2, v18")
    a("v_cmp_eq_u32 vcc, v22, v19")
    a("v_mov_b32 v23, 0x3f80")
    a("s_nop 0")
    a("v_cndmask_b32 v23, 0, v23, vcc")
    for e in range(4):
        a(f"v_cmp_eq_u32 vcc, {e}, v21")
        a("s_nop 1")
        a(f"v_cndmask_b32 v{SEL+e}, 0, v23, vcc")
        a(f"v_lshlrev_b32 v{SEL+4+e}, 16, v{SEL+e}")
    a("s_mov_b64 vcc, s[50:51]")
    a(f"s_mov_b32 s{sWS}, 0")
    a(f"s_mov_b32 s{sHS}, 0")
    a(f"s_mov_b32 s{sJ}, 0")
    a(f"s_mov_b32 s{sOB}, {2 * 192 * 768}")
    a(f"s_mov_b32 s{sEV}, 11")
    a("s_waitcnt vmcnt(24)")
    a(f"s_sub_u32 s{sT0}, s{sWV}, 4")
    a(f"s_cmp_lt_u32 s{sT0}, 2")
    a("s_cbranch_scc1 K3_pw")
    a("s_waitcnt vmcnt(6)")
    a("s_cbranch_vccz K3_pw")
    a("s_waitcnt vmcnt(0)")
    a.label("K3_pw")
    for p in range(1, NBP):
        for n in range(6):
            src = 24 + n if n < 3 else 25 + n
            a(f"v_add_f32 v{src}, v{src}, v{src + 8*p}")
    for n in range(6):
        src = 24 + n if n < 3 else 25 + n
        for r in range(4): a(f"v_mov_b32 v{BIAS+4*n+r}, v{src}")
    stamp(a, 1)

    def accr(n, t): return ACC + (t * 6 + n) * 4
    pieces0 = pieces
    def pieces(srd_, sfx="", _p=pieces0):
        P = _p(srd_, sfx)
        if OPT["k3skipw"] and sfx == "": P = [[x for x in p if not x.startswith("buffer")] if i >= 6 - OPT["k3skipw"] else p for i, p in enumerate(P)]
        return P
    def Lseg(u4, grp, tag):
        L = [f"v_add_u32 v{vWR}, s{sWS}, v{vWB0}", f"v_add_u32 v{vHR0}, s{sHS}, v{vHB0}", f"v_add_u32 v{vHR1}, s{sHS}, v{vHB1}"]
        R = []
        for t in range(6):
            R.append(f"ds_read_b128 {q(WB + 4*t)}, v{vWR} offset:{t*1024}")
            R.append(f"ds_read_b64_tr_b16 {q(HB + 4*t, 2)}, v{vHR0} offset:{t*1024}")
            R.append(f"ds_read_b64_tr_b16 {q(HB + 4*t + 2, 2)}, v{vHR1} offset:{t*1024}")
        if grp == 0:
            P = pieces(sD, wnt); P[5] = P[5] + advance_w()
            na = 6 if tag == "f" and u4 == 0 else OPT["k3na"]
            pos = [0, 6, 12, 18, 18, 18]
            for k in range(19):
                for m in range(na):
                    if pos[m] == k: L += P[m]
                if k < 18: L.append(R[k])
        elif OPT["k3bl"]:
            P = pieces(sD, nt); P[5] = P[5] + advance_h()
            def gd(X, z): return X if u4 == 0 else [f"s_cbranch_vccnz K3_{tag}sl{u4}{z}"] + X + [f"K3_{tag}sl{u4}{z}:"]
            if OPT["k3pre"]: L = R[15:] + gd(P[0] + P[1] + P[2] + P[3] + P[4] + P[5], "d")
            else: L += gd(P[0], "a") + R[:6] + gd(P[1], "b") + R[6:12] + gd(P[2], "c") + R[12:] + gd(P[3] + P[4] + P[5], "d")
        else:
            L += R
        if u4 == 3:
            lab = f"K3_{grp}{tag}_xr"
            L += [f"s_sub_u32 s{sT0}, s{sEV}, {6*grp}", f"s_cmp_lt_u32 s{sT0}, 6", f"s_cbranch_scc0 {lab}"]
            for p in range(3):
                L.append(f"ds_read2_b32 {q(XT + 4*p, 2)}, v{vXR} offset0:{p} offset1:{p+3}")
                L.append(f"ds_read2_b32 {q(XT + 4*p + 2, 2)}, v{vXR} offset0:{p+6} offset1:{p+9}")
            L.append(lab + ":")
        L += [f"s_add_u32 s{sWS}, s{sWS}, 24576", f"s_cmp_eq_u32 s{sWS}, 73728", f"s_cselect_b32 s{sWS}, 0, s{sWS}",
              f"s_add_u32 s{sHS}, s{sHS}, 12288", f"s_cmp_eq_u32 s{sHS}, 73728", f"s_cselect_b32 s{sHS}, 0, s{sHS}"]
        return L
    def pre_reads():
        AD = [f"v_add_u32 v{vWR}, s{sWS}, v{vWB0}", f"v_add_u32 v{vHR0}, s{sHS}, v{vHB0}", f"v_add_u32 v{vHR1}, s{sHS}, v{vHB1}"]
        R = []
        for t in range(6):
            R.append(f"ds_read_b128 {q(WB + 4*t)}, v{vWR} offset:{t*1024}")
            R.append(f"ds_read_b64_tr_b16 {q(HB + 4*t, 2)}, v{vHR0} offset:{t*1024}")
            R.append(f"ds_read_b64_tr_b16 {q(HB + 4*t + 2, 2)}, v{vHR1} offset:{t*1024}")
        return AD, R
    def vmwait(strict, loose, lab):
        if loose is None or OPT["k3nost"]: return [f"s_waitcnt vmcnt({strict})"]
        return [f"s_waitcnt vmcnt({loose})", f"s_cmp_lg_u32 s{sJ}, 0", f"s_cbranch_scc1 {lab}", f"s_waitcnt vmcnt({strict})", lab + ":"]
    def Mseg(u4, grp, tag):
        first = tag == "f" and u4 == 0
        Ms = []
        for t in range(6):
            for n in range(6):
                c = q(BIAS + 4*n) if first else q(accr(n, t))
                Ms.append([f"v_mfma_f32_16x16x32_bf16 {q(accr(n, t))}, {q(HB + 4*t)}, {q(WB + 4*n)}, {c}"])
        if grp == 0:
            P = pieces(sD, wnt); P[5] = P[5] + advance_w()
            na = 6 if first else OPT["k3na"]
            for m in range(na, 6): Ms[1 + (m - na) * OPT["k3as"]] += P[m]
            e = OPT["k3eb"]
            loose = 30 if tag == "f" and u4 < 2 else None
            Ms[35 - e] += (["s_setprio 3"] if e else []) + vmwait(6, loose, f"K3_0{tag}_vw{u4}") + ["s_barrier"]
        elif not OPT["k3bl"]:
            P = pieces(sD, nt); P[5] = P[5] + advance_h()
            for m in range(0, 6, 2):
                X = P[m] + P[m + 1]
                if u4 != 3: X = [f"s_cbranch_vccnz K3_{tag}sd{u4}{m}"] + X + [f"K3_{tag}sd{u4}{m}:"]
                Ms[OPT["k3b0"] + (m // 2) * OPT["k3bs"]] += X
        if grp == 1 and OPT["k3pre"]:
            AD, R = pre_reads()
            Ms[0].append(AD[1]); Ms[1].append(AD[2]); Ms[2].append(AD[0])
            for t in range(5):
                Ms[6 * t + 6].append(R[3 * t + 1]); Ms[6 * t + 7].append(R[3 * t + 2])
                Ms[31 + t].append(R[3 * t])
        return [x for m in Ms for x in m]
    def Xseg(grp, tag):
        g = f"{grp}{tag}"
        L = [f"s_cmp_lt_u32 s{sT0}, 6", f"s_cbranch_scc0 K3_{g}_xdone"]
        for t in range(6):
            if t < 5: L += [f"s_cmp_lg_u32 s{sT0}, {t}", f"s_cbranch_scc1 K3_{g}_x{t+1}"]
            for n in range(6):
                L.append(f"v_mfma_f32_16x16x32_bf16 {q(accr(n, t))}, {q(XT + 4*(n >> 1))}, {q(SEL + 4*(n & 1))}, {q(accr(n, t))}")
            if t < 5: L += [f"s_branch K3_{g}_xdone", f"K3_{g}_x{t+1}:"]
        L += [f"K3_{g}_xdone:", f"s_sub_u32 s{sEV}, s{sEV}, 1"]
        return L
    ofl = ["", " nt", " sc1", " sc0 sc1", " sc0"][OPT["out_nt"]]
    def epilogue():
        L = ["s_nop 7"]
        idx = 0
        for t in range(6):
            L.append(f"s_mov_b32 s{sT1}, s{sOB}" if t == 0 else f"s_add_u32 s{sT1}, s{sT1}, {3072 if OPT['outlin'] else 12288}")
            for r in range(4):
                tq = XT + 4 * (idx % 4); idx += 1
                for j in range(3): L.append(f"v_cvt_pk_bf16_f32 v{tq+j}, v{accr(2*j, t)+r}, v{accr(2*j+1, t)+r}")
                if not OPT["k3nost"]: L.append(f"buffer_store_dwordx3 {q(tq, 3)}, v{vOUT}, s[{sO}:{sO+3}], s{sT1} offen offset:{r*768}" + ofl)
        L += [f"s_sub_u32 s{sOB}, s{sOB}, {192 * 768}"]
        return L
    def block(grp, tag):
        if OPT["prof"] == 2: a.label(f"K3_np{tag}{grp}")
        if OPT["prof"] == 1 and grp == 1:
            a(f"s_cmp_lg_u32 s{sWV}, 7")
            a(f"s_cbranch_scc1 K3_np{tag}")
            a("s_memrealtime s[90:91]")
            a("s_waitcnt lgkmcnt(0)")
            a("v_mov_b32 v12, s90")
            a("v_mov_b32 v13, 0")
            a("buffer_store_dword v12, v13, s[84:87], s83 offen")
            a("s_add_u32 s83, s83, 4")
            a.label(f"K3_np{tag}")
        for u4 in range(4):
            a.ext(Lseg(u4, grp, tag))
            if OPT["prof"] == 2 and u4 == 0 and grp == OPT["latw"] // 4:
                a(f"s_cmp_lg_u32 s{sWV}, {OPT['latw']}")
                a(f"s_cbranch_scc1 K3_nq{tag}")
                a("s_memrealtime s[92:93]")
                a("s_waitcnt vmcnt(0) lgkmcnt(0)")
                a("s_memrealtime s[94:95]")
                a("s_waitcnt lgkmcnt(0)")
                a("s_sub_u32 s94, s94, s92")
                a("s_add_u32 s82, s82, s94")
                a("v_mov_b32 v12, s82")
                a("v_mov_b32 v13, 0")
                a("buffer_store_dword v12, v13, s[84:87], s83 offen")
                a("s_add_u32 s83, s83, 4")
                a.label(f"K3_nq{tag}")
            if tag == "f" and u4 == 0:
                a(f"s_cmp_eq_u32 s{sJ}, 0")
                a(f"s_cbranch_scc1 K3_{grp}_noep")
                if OPT["stamp"]:
                    a(f"s_sub_u32 s96, s{sJ}, 48")
                    stamp2(a, 2, 4, 96)
                a.ext(epilogue())
                stamp2(a, 3, 5, 96)
                a.label(f"K3_{grp}_noep")
            if grp == 0:
                a("s_waitcnt lgkmcnt(0)")
                a(f"s_setprio {OPT['k3pa']}")
            else:
                if u4 == 2:
                    a(f"s_cbranch_vccz K3_{tag}nx")
                    a.ext(vmwait(0, 24 if tag == "f" else None, "K3_fxw"))
                    a.label(f"K3_{tag}nx")
                a.ext(vmwait(24, 48 if tag == "f" else None, f"K3_fh{u4}"))
                a("s_waitcnt lgkmcnt(0)")
                a("s_barrier")
                a(f"s_setprio {OPT['k3pb']}")
            if u4 == 3: a.ext(Xseg(grp, tag))
            a.ext(Mseg(u4, grp, tag))
            a(f"s_setprio {OPT['k3pl']}")

    if OPT["prof"]:
        srd(a, 84, 24, 25, 65536, TAIL + (5 << 20))
        a("s_lshl_b32 s83, s2, 8")
        a("s_mov_b32 s82, 0")
    a("s_barrier")
    if OPT["k3pre"]:
        AD, R = pre_reads(); a.ext(AD + R[:15])
    a(f"s_cmp_lg_u32 s{sTH}, 0")
    a("s_cbranch_scc1 K3_1_tile")
    for grp in range(2):
        a.label(f"K3_{grp}_tile")
        a(f"s_mov_b32 s{sEV}, 11")
        block(grp, "f")
        a(".p2align 6")
        a.label(f"K3_{grp}_loop")
        block(grp, "l")
        a(f"s_cmp_lg_u32 s{sEV}, -1")
        a(f"s_cbranch_scc1 K3_{grp}_loop")
        a(f"s_add_u32 s{sJ}, s{sJ}, 48")
        a(f"s_cmp_lg_u32 s{sJ}, 144")
        a(f"s_cbranch_scc1 K3_{grp}_tile")
        if grp == 0:
            a("s_branch K3_fin0")
    a.label("K3_fin0")
    stamp(a, 6)
    a.ext(epilogue())
    a.label("K3_fin")
    if OPT["stamp"]: a("s_waitcnt vmcnt(0)")
    stamp(a, 7)
    stamp_dump(a, 8, sWV, "K3", 1)
    a.label("K3_end")
    a("s_endpgm")
    return a, desc("gemm2_kernel", 256, 100), f"; @launch kernel=gemm2_kernel grid=(256,1,1) block=(512,1,1) lds={L_X + 12288}"

def main():
    ks = [k1(), k2(), k3r() if OPT['roll'] else k3()]
    errs = []
    for a, _, l in ks: errs += check(a.lines, l.split("=")[1].split()[0])
    for a, _, l in ks:
        for i, x in enumerate(a.lines):
            if x.startswith("s_set_gpr_idx_on"): assert a.lines[i + 3] == "s_set_gpr_idx_off", "gpr idx not closed"
    for e in errs: print(e, file=sys.stderr)
    hdr = open("standalone__modern_conv_block_slak__vision.s.ref").read().split("\n")
    hdr = [l for l in hdr if l.startswith(";") and "@launch" not in l and "Override" not in l and "grid=ceil" not in l]
    out = "\n".join(hdr) + "\n" + "\n".join(l for _, _, l in ks) + "\n"
    out += '.amdgcn_target "amdgcn-amd-amdhsa--gfx950"\n.text\n'
    for a, _, _ in ks: out += a.text()
    out += '.section .rodata,"a"\n'
    for _, d, _ in ks: out += d
    open(sys.argv[1], "w").write(out)
    print("written", sys.argv[1], len(out), "bytes; hazards:", len(errs))
main()
```

```python
import sys, struct, math
from asmlib import Asm, check

OPT = dict(f16=1, st_nt=1, h_nt=1, w_nt=0, out_nt=0, x_nt=1, xp_nt=1, ord=4, ntail=3, k3skipw=0, kf=0, k3pre=0, prof=0, roll=0, stg=1, mp0=2, mpd=2, ipf=0, k3pl=0, wwarm=0, latw=7, dwarm=1, sdot=2, k3c=1, k3ne=6, k3nv=0, k3skiph=0, npf=1, bgb=-1, stamp=0, denorm=3, pm=3, pg0=0, pg1=1, bg=4, gb=2, gp=2, stm=7, stm0=7, w2pf=1, sga=7,
           k3pa=1, k3pb=2, k3eb=3, k3nost=0, k3noh=0, k3nox=0, k3now=0, k3na=6, k3as=5, k3b0=18, k3bs=5, k3bl=1, outlin=0, nostore=0)
for a in sys.argv[2:]:
    k, v = a.split("="); OPT[k] = int(v)

def f32(x): return "0x%08x" % struct.unpack("<I", struct.pack("<f", x))[0]
def f16bits(x): return struct.unpack("<H", struct.pack("<e", x))[0]

M = 147456; C = 384; F = 1536
XBYTES = M * C * 2
WSBYTES = 452984832
TILE_H = 589824; CHUNK_H = 12288; HSTRIDE = 3 * TILE_H - 2 * CHUNK_H
TAIL = 256 * HSTRIDE
W2F = TAIL + 1179648; B2 = TAIL; SSQ = TAIL + 2363392
NREP = 8
K1c = 2.0 * math.sqrt(2.0 / math.pi) * math.log2(math.e)
K3c = K1c * 0.044715
if OPT["f16"]:
    C0 = 1258.0 / 256.0
    ALPHA = K1c / C0
else:
    ALPHA = K3c ** (1.0 / 3.0)
    C0 = K1c / ALPHA

def srd(a, d, lo, hi, nrec, off=0):
    if off:
        a(f"s_add_u32 s{d}, s{lo}, {off}")
        a(f"s_addc_u32 s{d+1}, s{hi}, 0")
    else:
        a(f"s_mov_b32 s{d}, s{lo}")
        a(f"s_mov_b32 s{d+1}, s{hi}")
    a(f"s_mov_b32 s{d+2}, {nrec}")
    a(f"s_mov_b32 s{d+3}, 0x00020000")

def stamp(a, idx, base=64):
    if not OPT["stamp"]: return
    a("s_memrealtime s[90:91]")
    a("s_memtime s[92:93]")
    a("s_waitcnt lgkmcnt(0)")
    a(f"s_mov_b32 s{base+2*idx}, s90")
    a(f"s_mov_b32 s{base+2*idx+1}, s92")

def stamp2(a, ia, ib, creg, base=64):
    if not OPT["stamp"]: return
    a("s_memrealtime s[90:91]")
    a("s_memtime s[92:93]")
    a("s_waitcnt lgkmcnt(0)")
    a(f"s_cmp_eq_u32 s{creg}, 0")
    a(f"s_cselect_b32 s{base+2*ia}, s90, s{base+2*ia}")
    a(f"s_cselect_b32 s{base+2*ia+1}, s92, s{base+2*ia+1}")
    a(f"s_cselect_b32 s{base+2*ib}, s{base+2*ib}, s90")
    a(f"s_cselect_b32 s{base+2*ib+1}, s{base+2*ib+1}, s92")

def stamp_dump(a, n, wave_sgpr, tag, kidx, base=64):
    if not OPT["stamp"]: return
    a(f"s_and_b32 s94, s{wave_sgpr}, 3")
    a("s_cmp_lg_u32 s94, 0")
    a(f"s_cbranch_scc1 {tag}_nodump")
    a("s_load_dwordx2 s[90:91], s[0:1], 64")
    a("s_waitcnt lgkmcnt(0)")
    a(f"s_add_u32 s88, s90, {TAIL + (4 << 20) + kidx * 65536}")
    a("s_addc_u32 s89, s91, 0")
    a("s_mov_b32 s90, 65536")
    a("s_mov_b32 s91, 0x00020000")
    a(f"s_lshl_b32 s94, s{wave_sgpr}, 5")
    a("s_lshl_b32 s95, s2, 8")
    a("s_add_u32 s94, s94, s95")
    a("v_mov_b32 v8, 0")
    for i in range(n):
        a(f"v_mov_b32 v10, s{base+2*i}")
        a(f"v_mov_b32 v11, s{base+2*i+1}")
        a(f"buffer_store_dwordx2 v[10:11], v8, s[88:91], s94 offen offset:{i*8}")
        a("s_waitcnt vmcnt(0)")
    a.label(f"{tag}_nodump")

def q(r, n=4): return f"v[{r}:{r+n-1}]"

def kernel_start(a, name):
    a(f".globl {name}")
    a(".p2align 8")
    a(f".type {name},@function")
    a.label(name)

def code_prefetch(a, start, end, vt, st):
    if not OPT["ipf"]: return
    a(f"s_getpc_b64 s[{st}:{st+1}]")
    a(f"s_and_b32 s{st}, s{st}, 0xffffff00")
    a(f"s_mov_b32 s{st+2}, {end}-{start}")
    a(f"s_mov_b32 s{st+3}, 0x00020000")
    a(f"v_lshlrev_b32 v{vt}, 7, v0")
    a(f"buffer_load_dword v{vt}, v{vt}, s[{st}:{st+3}], 0 offen")

def desc(name, vgpr, sgpr=96):
    acc = min(256, (vgpr + 3) // 4 * 4)
    return f""".p2align 6
.amdhsa_kernel {name}
  .amdhsa_next_free_vgpr {vgpr}
  .amdhsa_next_free_sgpr {sgpr}
  .amdhsa_accum_offset {acc}
  .amdhsa_group_segment_fixed_size 0
  .amdhsa_kernarg_size 72
  .amdhsa_user_sgpr_count 2
  .amdhsa_user_sgpr_kernarg_segment_ptr 1
  .amdhsa_system_sgpr_workgroup_id_x 1
  .amdhsa_float_denorm_mode_32 {OPT['denorm']}
.end_amdhsa_kernel
"""

def gelu_batch(b, TMP, SSr, first, sC0, sC0H):
    L = []
    R = [b + i for i in range(8)]
    if not OPT["f16"]:
        T = [TMP + i for i in range(8)]
        for v, t in zip(R, T): L.append(f"v_fma_f32 v{t}, -v{v}, v{v}, s{sC0}")
        for v, t in zip(R, T): L.append(f"v_mul_f32 v{t}, v{t}, v{v}")
        for t in T: L.append(f"v_exp_f32 v{t}, v{t}")
        for t in T: L.append(f"v_add_f32 v{t}, 1.0, v{t}")
        for t in T: L.append(f"v_rcp_f32 v{t}, v{t}")
        for v, t in zip(R, T): L.append(f"v_mul_f32 v{t}, v{v}, v{t}")
        Gv = T
    else:
        H = [TMP + i for i in range(4)]; Pp = [TMP + 4 + i for i in range(4)]
        for i in range(4): L.append(f"v_cvt_pk_f16_f32 v{H[i]}, v{R[2*i]}, v{R[2*i+1]}")
        for i in range(4): L.append(f"v_pk_fma_f16 v{Pp[i]}, v{H[i]}, v{H[i]}, s{sC0H} neg_lo:[1,0,0] neg_hi:[1,0,0]")
        for i in range(4): L.append(f"v_pk_mul_f16 v{Pp[i]}, v{Pp[i]}, v{H[i]}")
        for i in range(4): L.append(f"v_exp_f16 v{H[i]}, v{Pp[i]}")
        for i in range(4): L.append(f"v_exp_f16_sdwa v{H[i]}, v{Pp[i]} dst_sel:WORD_1 dst_unused:UNUSED_PRESERVE src0_sel:WORD_1")
        for i in range(4): L.append(f"v_pk_add_f16 v{H[i]}, v{H[i]}, 1.0 op_sel_hi:[1,0]")
        for i in range(4): L.append(f"v_rcp_f16 v{Pp[i]}, v{H[i]}")
        for i in range(4): L.append(f"v_rcp_f16_sdwa v{H[i]}, v{H[i]} dst_sel:DWORD dst_unused:UNUSED_PAD src0_sel:WORD_1")
        for i in range(4): L.append(f"v_fma_mix_f32 v{R[2*i]}, v{R[2*i]}, v{Pp[i]}, 0 op_sel_hi:[0,1,0]")
        for i in range(4): L.append(f"v_fma_mix_f32 v{R[2*i+1]}, v{R[2*i+1]}, v{H[i]}, 0 op_sel_hi:[0,1,0]")
        Gv = R
    for e in (0, 4, 1, 5, 2, 6, 3, 7) if not OPT['sdot'] else ():
        s_ = SSr + e // 4
        L.append(f"v_mul_f32 v{s_}, v{Gv[e]}, v{Gv[e]}" if first and e % 4 == 0 else f"v_fmac_f32 v{s_}, v{Gv[e]}, v{Gv[e]}")
    for i in range(4): L.append(f"v_cvt_pk_bf16_f32 v{b+i}, v{Gv[2*i]}, v{Gv[2*i+1]}")
    return L

NBP = 6
def k2():
    a = Asm()
    kernel_start(a, "mid_kernel")
    a("s_cmp_ge_u32 s2, 24")
    a("s_cbranch_scc1 K2_end")
    stamp(a, 0)
    a("s_load_dwordx4 s[4:7], s[0:1], 24")
    a("s_load_dwordx2 s[8:9], s[0:1], 40")
    a("s_load_dwordx2 s[10:11], s[0:1], 64")
    a("v_lshrrev_b32 v1, 6, v0")
    a("v_and_b32 v2, 63, v0")
    a("v_readfirstlane_b32 s3, v1")
    a("v_mul_u32_u24 v5, 12, v0")
    a("s_lshr_b32 s30, s2, 2")
    a("s_and_b32 s32, s2, 3")
    a("s_lshl_b32 s31, s30, 3")
    a("s_add_u32 s31, s31, s3")
    a("s_mul_i32 s33, s32, 192")
    a(f"s_mul_i32 s34, s31, {32 * 768}")
    a("s_add_u32 s33, s33, s34")
    a("v_lshrrev_b32 v3, 4, v2")
    a("v_and_b32 v4, 1, v3")
    a("v_lshlrev_b32 v4, 4, v4")
    a("v_lshrrev_b32 v3, 1, v3")
    a("v_lshl_add_u32 v3, v3, 3, v4")
    a("v_mul_u32_u24 v7, 768, v3")
    a("v_and_b32 v6, 15, v2")
    a("v_mul_u32_u24 v4, 12, v6")
    a("v_add_u32 v7, v4, v7")
    a("s_lshl_b32 s35, s31, 6")
    a("v_lshlrev_b32 v4, 1, v3")
    a("s_waitcnt lgkmcnt(0)")
    srd(a, 24, 10, 11, WSBYTES - TAIL, TAIL)
    a(f"s_mov_b32 s34, {SSQ - TAIL}")
    for r in range(NREP):
        a(f"buffer_load_dwordx3 {q(32+4*r, 3)}, v5, s[24:27], s34 offen")
        if r < NREP - 1: a("s_add_u32 s34, s34, 6144")
    srd(a, 12, 4, 5, C * F * 2)
    srd(a, 16, 6, 7, F * 2)
    srd(a, 20, 8, 9, F * 2)
    W = 64; U = 96
    for e in range(8):
        if e == 4: a("s_add_u32 s33, s33, 3072")
        a(f"buffer_load_dwordx3 {q(W + 4*e, 3)}, v7, s[12:15], s33 offen offset:{(e % 4) * 768}")
    a("buffer_load_dwordx4 v[16:19], v4, s[16:19], s35 offen")
    a("buffer_load_dwordx4 v[12:15], v4, s[20:23], s35 offen")
    a("s_waitcnt vmcnt(10)")
    stamp(a, 1)
    for st in (4, 2, 1):
        for r in range(st):
            for k in range(3): a(f"v_add_f32 v{32+4*r+k}, v{32+4*r+k}, v{32+4*(r+st)+k}")
    a(f"s_mov_b32 s36, {f32(1.0 / (ALPHA * ALPHA))}")
    a(f"v_mov_b32 v20, {f32(1e-6)}")
    for k in range(3): a(f"v_fma_f32 v{32+k}, v{32+k}, s36, v20")
    for k in range(3): a(f"v_sqrt_f32 v{32+k}, v{32+k}")
    a("s_nop 0")
    for k in range(3): a(f"ds_write_b32 v5, v{32+k} offset:{4*k}")
    a("v_add_f32 v21, v32, v33")
    a("v_add_f32 v21, v21, v34")
    for ctl in ("row_shr:1", "row_shr:2", "row_shr:4", "row_shr:8"):
        a("s_nop 1")
        a(f"v_add_f32_dpp v21, v21, v21 {ctl} row_mask:0xf bank_mask:0xf bound_ctrl:0")
    a("s_nop 1")
    a("v_readlane_b32 s40, v21, 15")
    a("v_readlane_b32 s41, v21, 31")
    a("v_readlane_b32 s42, v21, 47")
    a("v_readlane_b32 s43, v21, 63")
    a("s_nop 1")
    a("v_mov_b32 v22, s40")
    a("v_add_f32 v22, s41, v22")
    a("v_add_f32 v22, s42, v22")
    a("v_add_f32 v22, s43, v22")
    a("s_lshl_b32 s37, s3, 2")
    a("v_mov_b32 v23, s37")
    a("ds_write_b32 v23, v22 offset:6144")
    a("s_waitcnt lgkmcnt(0)")
    a("s_barrier")
    stamp(a, 2)
    a("v_mov_b32 v23, 0")
    a("ds_read_b128 v[24:27], v23 offset:6144")
    a("ds_read_b128 v[28:31], v23 offset:6160")
    a("s_lshl_b32 s37, s31, 7")
    a("v_lshlrev_b32 v4, 2, v3")
    a("v_add_u32 v4, s37, v4")
    a("ds_read_b128 v[32:35], v4")
    a("ds_read_b128 v[36:39], v4 offset:16")
    a("s_waitcnt vmcnt(0)")
    for e in range(8):
        for d in range(3):
            a(f"v_lshlrev_b32 v{U + 6*e + 2*d}, 16, v{W + 4*e + d}")
            a(f"v_and_b32 v{U + 6*e + 2*d + 1}, 0xffff0000, v{W + 4*e + d}")
    a("s_waitcnt lgkmcnt(0)")
    for st in (4, 2, 1):
        for r in range(st): a(f"v_add_f32 v{24+r}, v{24+r}, v{24+r+st}")
    a(f"v_mul_f32 v24, {f32(1.0 / F)}, v24")
    a(f"v_add_f32 v24, {f32(1e-6)}, v24")
    a("v_rcp_f32 v24, v24")
    a(f"s_mov_b32 s36, {f32(1.0 / ALPHA)}")
    for e in range(8):
        src = 16 + e // 2
        a(f"v_lshlrev_b32 v40, 16, v{src}" if e % 2 == 0 else f"v_and_b32 v40, 0xffff0000, v{src}")
        a(f"v_mul_f32 v{32+e}, v{32+e}, v24")
        a(f"v_fma_f32 v{32+e}, v{32+e}, v40, 1.0")
        a(f"v_mul_f32 v{32+e}, s36, v{32+e}")
    if OPT["k3c"]:
        a("s_sub_u32 s44, 47, s31")
        a("s_and_b32 s45, s44, 1")
        a("s_andn2_b32 s44, s44, 1")
        a("s_sub_u32 s44, 47, s44")
        a("s_mul_i32 s33, s44, 24")
        a("s_mul_i32 s45, s45, 3")
        a("s_add_u32 s33, s33, s45")
    else:
        a("s_mul_i32 s33, s31, 24")
    a("s_mul_i32 s46, s32, 6")
    a("s_add_u32 s33, s33, s46")
    a("s_lshl_b32 s33, s33, 10")
    a(f"s_add_u32 s33, s33, {W2F - TAIL}")
    a("s_sub_u32 s34, s33, 24576" if OPT["k3c"] else "s_add_u32 s34, s33, 3072")
    a("v_lshlrev_b32 v43, 4, v2")
    for n in range(6):
        T = 44 + 8 * (n % 2); O = W + 4 * n
        for e in range(8): a(f"v_mul_f32 v{T+e}, v{U + 6*e + n}, v{32+e}")
        for i in range(4): a(f"v_cvt_pk_bf16_f32 v{O+i}, v{T+2*i}, v{T+2*i+1}")
        a(f"buffer_store_dwordx4 {q(O)}, v43, s[24:27], s{33 + n // 3} offen offset:{(n % 3) * 1024}")
    for e in range(8):
        a(f"v_lshlrev_b32 v41, 16, v{12 + e // 2}" if e % 2 == 0 else f"v_and_b32 v41, 0xffff0000, v{12 + e // 2}")
        for n in range(6): a(f"v_mul_f32 v{24+n}, v41, v{U + n}" if e == 0 else f"v_fmac_f32 v{24+n}, v41, v{U + 6*e + n}")
    a("v_mul_u32_u24 v43, 24, v0")
    for d in range(3): a(f"ds_write_b64 v43, {q(24 + 2*d, 2)} offset:{6400 + 8*d}")
    a("s_waitcnt lgkmcnt(0)")
    a("s_barrier")
    a("s_cmp_ge_u32 s3, 2")
    a("s_cbranch_scc1 K2_end")
    a("v_lshlrev_b32 v43, 2, v0")
    for w in range(32): a(f"ds_read_b32 v{U + w}, v43 offset:{6400 + 384*w}")
    a("s_waitcnt lgkmcnt(0)")
    for st in (16, 8, 4, 2, 1):
        for r in range(st): a(f"v_add_f32 v{U+r}, v{U+r}, v{U+r+st}")
    a("s_mul_i32 s39, s30, 1536")
    a("s_mul_i32 s38, s32, 384")
    a("s_add_u32 s38, s38, s39")
    a(f"s_add_u32 s38, s38, {B2 - TAIL}")
    a("v_cmp_gt_u32 vcc, 96, v0")
    a("s_and_saveexec_b64 s[40:41], vcc")
    a(f"buffer_store_dword v{U}, v43, s[24:27], s38 offen")
    a("s_mov_b64 exec, s[40:41]")
    if OPT["stamp"]: a("s_waitcnt vmcnt(0)")
    stamp(a, 3)
    stamp_dump(a, 4, 3, "K2", 2)
    a.label("K2_end")
    a("s_endpgm")
    return a, desc("mid_kernel", 144, 100 if OPT["stamp"] else 56), "; @launch kernel=mid_kernel grid=(24,1,1) block=(512,1,1) lds=19200"

def k1():
    a = Asm()
    XN = 8; ACC = 152; BB = 200; SQ = 232
    TMP = BB + 16; SS = BB + 24
    vDE, vXS, vRD, vST, vDW, vDO, vRB = 1, 2, 3, 4, 5, 6, 7
    L_DW = 147456
    sX, sW1, sH, sDB = 8, 12, 16, 20
    sWSlo, sWShi, sOUTlo, sOUThi, sDBlo, sDBhi = 24, 25, 26, 27, 28, 29
    (sWV, sGRP, sI, sEND, sRDS, sDSL, sT0, sT1, sC0, sHB, sXB, sREG, sSIG, sT2, sC0H, sDSR, sD0, sST0, sST1, sXN, sDS0, sTK,
     sSLO, sSHI, sDLO, sDHI, sSG0, sCW, sXU) = range(30, 59)
    sHN, sSLN, sSHN, sDSP, sDSN, sDCN, sCW2 = 82, 83, 84, 85, 86, 87, 3
    REG = 3 * 192 * 768
    kernel_start(a, "gemm1_kernel")
    a("s_cmp_ge_u32 s2, 256")
    a("s_cbranch_scc1 K1_end")
    stamp(a, 0)
    a("s_load_dwordx4 s[4:7], s[0:1], 0")
    a(f"s_load_dwordx2 s[{sW1}:{sW1+1}], s[0:1], 16")
    a(f"s_load_dwordx2 s[{sOUTlo}:{sOUThi}], s[0:1], 48")
    a(f"s_load_dwordx2 s[{sDBlo}:{sDBhi}], s[0:1], 56")
    a(f"s_load_dwordx2 s[{sWSlo}:{sWShi}], s[0:1], 64")
    code_prefetch(a, "gemm1_kernel", "K1_end", BB + 20, 60)
    a("v_lshrrev_b32 v8, 6, v0")
    a("v_and_b32 v9, 63, v0")
    a(f"v_readfirstlane_b32 s{sWV}, v8")
    a("v_lshrrev_b32 v12, 3, v9")
    a("v_and_b32 v13, 7, v9")
    a("v_lshrrev_b32 v14, 1, v12")
    a("v_xor_b32 v14, v14, v13")
    a(f"v_mul_u32_u24 v{vXS}, 768, v12")
    a(f"v_lshl_add_u32 v{vXS}, v14, 4, v{vXS}")
    a(f"s_lshr_b32 s{sT0}, s2, 4")
    a(f"s_and_b32 s{sSG0}, s{sT0}, {OPT['sga']}")
    a(f"s_lshl_b32 s{sT0}, s{sT0}, 4")
    a(f"s_and_b32 s{sT1}, s2, 7")
    a(f"s_lshl_b32 s{sT1}, s{sT1}, 1")
    a(f"s_add_u32 s{sT0}, s{sT0}, s{sT1}")
    a(f"s_bfe_u32 s{sT1}, s2, 0x10003")
    a(f"s_add_u32 s{sREG}, s{sT0}, s{sT1}")
    a(f"s_mul_i32 s{sSLO}, s{sT1}, 12")
    a(f"s_add_u32 s{sSHI}, s{sSLO}, 12")
    a(f"s_lshr_b32 s{sGRP}, s{sWV}, 2")
    a(f"s_and_b32 s{sT1}, s{sWV}, 3")
    a(f"s_add_u32 s{sT0}, s{sT0}, s{sGRP}")
    a(f"s_mul_i32 s{sXB}, s{sT0}, {REG}")
    a(f"s_mul_i32 s{sT2}, s{sT1}, {48 * 768}")
    a(f"s_add_u32 s{sXB}, s{sXB}, s{sT2}")
    if not OPT["roll"]: a(f"s_add_u32 s{sXB}, s{sXB}, {2 * 192 * 768}")
    a(f"s_mul_i32 s{sHB}, s{sT0}, {HSTRIDE}")
    if not OPT["roll"]: a(f"s_add_u32 s{sHB}, s{sHB}, {2 * TILE_H}")
    a(f"s_mul_i32 s59, s{sT0}, {REG}")
    if OPT["roll"]: a(f"s_add_u32 s59, s59, {2 * 192 * 768}")
    a(f"s_mul_i32 s{sXN}, s{sREG}, {REG}")
    a(f"s_add_u32 s{sT2}, s{sWV}, 4" if OPT["roll"] else f"s_xor_b32 s{sT2}, s{sWV}, 4")
    a(f"s_mul_i32 s{sT2}, s{sT2}, {48 * 768}")
    a(f"s_add_u32 s{sXN}, s{sXN}, s{sT2}")
    a(f"s_mul_i32 s{sHN}, s{sREG}, {HSTRIDE}")
    a(f"s_xor_b32 s{sT2}, s{sGRP}, {0 if OPT['roll'] else 1}")
    a(f"s_mul_i32 s{sT2}, s{sT2}, {TILE_H}")
    a(f"s_add_u32 s{sHN}, s{sHN}, s{sT2}")
    if OPT["roll"]: a(f"s_add_u32 s{sHN}, s{sHN}, {46 * CHUNK_H}")
    a(f"s_mov_b32 s{sSLN}, 0")
    a(f"s_mov_b32 s{sSHN}, 24")
    a(f"s_mov_b32 s{sDSP}, 23")
    a(f"s_mov_b32 s{sDSN}, -1")
    if OPT["ord"]:
        a(f"s_bitcmp1_b32 s2, {OPT['ord']}")
        a("s_cbranch_scc0 K1_noswap")
        for x, y in ((sXB, sXN), (sHB, sHN), (sSLO, sSLN), (sSHI, sSHN), (sDSP, sDSN)):
            a(f"s_mov_b32 s{sT2}, s{x}"); a(f"s_mov_b32 s{x}, s{y}"); a(f"s_mov_b32 s{y}, s{sT2}")
        a.label("K1_noswap")
    a(f"s_mul_i32 s{sD0}, s{sWV}, 6144")
    a(f"s_mov_b32 s{sCW}, s{sD0}")
    a(f"s_add_u32 s{sCW2}, s{sD0}, 49152")
    a("s_waitcnt lgkmcnt(0)")
    srd(a, sX, 4, 5, XBYTES)

    KPO = [3, 4, 5, 2, 1, 0]
    def xdma(n, pol=None):
        if pol is None:
            if OPT["x_nt"] == OPT["xp_nt"]: return xdma(n, OPT["x_nt"])
            return [f"s_cbranch_vccnz K1_xa{n}"] + xdma(n, OPT["x_nt"]) + [f"s_branch K1_xb{n}", f"K1_xa{n}:"] + xdma(n, OPT["xp_nt"]) + [f"K1_xb{n}:"]
        xnt = " nt" if pol else ""
        tt, kp = divmod(n, 6); kp = KPO[kp]
        return [f"s_add_u32 m0, s{(sCW, sCW2)[n // 3 % 2]}, {(n % 3) * 2048}", f"s_add_u32 s{sXU}, s{sXB}, {tt * 12288 + kp * 128}",
                f"buffer_load_dwordx4 v{vXS}, s[{sX}:{sX+3}], s{sXU} offen{xnt} lds",
                "s_add_u32 m0, m0, 1024", f"s_add_u32 s{sXU}, s{sXU}, 6144",
                f"buffer_load_dwordx4 v{vXS}, s[{sX}:{sX+3}], s{sXU} offen{xnt} lds"]
    srd(a, sH, 6, 7, C * 2)
    a(f"v_lshlrev_b32 v{ACC+4}, 2, v0")
    a(f"buffer_load_dword v{ACC}, v{ACC+4}, s[{sH}:{sH+3}], 0 offen")
    for n in range(6): a.ext(xdma(n, OPT['x_nt']))
    a('s_mov_b64 vcc, 0')

    a("v_and_b32 v10, 15, v9")
    a("v_lshrrev_b32 v11, 4, v9")
    a(f"v_lshlrev_b32 v{vST}, 2, v11")
    a(f"v_xor_b32 v{vST}, v{vST}, v9")
    a(f"v_lshlrev_b32 v{vST}, 4, v{vST}")
    a(f"s_mul_i32 s{sT2}, s{sT1}, 3072")
    a(f"v_add_u32 v{vST}, s{sT2}, v{vST}")
    a(f"v_lshlrev_b32 v{vDW}, 5, v11")
    a(f"v_add_u32 v{vDW}, {L_DW}, v{vDW}")
    a("v_and_b32 v14, 2, v12")
    a("v_xor_b32 v13, v13, v14")
    a(f"v_mul_u32_u24 v{vDE}, 3072, v12")
    a(f"v_lshl_add_u32 v{vDE}, v13, 4, v{vDE}")
    a(f"v_xor_b32 v{vDO}, 64, v{vDE}")
    a("v_lshrrev_b32 v12, 2, v10")
    a("v_lshl_add_u32 v13, v11, 3, v12")
    a(f"v_lshlrev_b32 v{vRB}, 7, v13")
    a("v_lshrrev_b32 v12, 1, v12")
    a("v_and_b32 v13, 1, v11")
    a("v_lshl_add_u32 v12, v13, 1, v12")
    a(f"v_lshl_add_u32 v{vRB}, v12, 5, v{vRB}")
    a("v_and_b32 v12, 3, v10")
    a(f"v_lshl_add_u32 v{vRB}, v12, 3, v{vRB}")
    a(f"s_mov_b32 s{sC0}, {f32(-C0)}")
    h = f16bits(-C0); a(f"s_mov_b32 s{sC0H}, 0x{h:04x}{h:04x}")
    a(f"s_mul_i32 s{sDS0}, s{sWV}, {6 * 24576}")
    a(f"s_add_u32 s{sSIG}, s{sSLO}, s{sSG0}")
    a(f"s_lshl_b32 s{sDLO}, s{sSLO}, 7")
    a(f"s_add_u32 s{sDLO}, s{sDLO}, s{sDS0}")
    a(f"s_lshl_b32 s{sDHI}, s{sSHI}, 7")
    a(f"s_add_u32 s{sDHI}, s{sDHI}, s{sDS0}")
    a(f"s_lshl_b32 s{sDSR}, s{sSG0}, 7")
    a(f"s_add_u32 s{sDSR}, s{sDSR}, s{sDLO}")
    a(f"s_mov_b32 s{sDSL}, s{sD0}")
    a(f"s_mov_b32 s{sTK}, 1")
    a(f"s_mov_b32 s{sW1+2}, {C * F * 2}")
    a(f"s_mov_b32 s{sW1+3}, 0x00020000")
    srd(a, sDB, sDBlo, sDBhi, 256)

    uid = [0]
    def dma():
        P = []
        for k in range(6):
            pre = [f"s_mov_b32 m0, s{sDSL}", f"s_mov_b32 s{sT0}, s{sDSR}"] if k == 0 else ["s_add_u32 m0, m0, 1024", f"s_add_u32 s{sT0}, s{sT0}, 24576"]
            P.append(pre + [f"buffer_load_dwordx4 v{(vDE, vDO)[k % 2]}, s[{sW1}:{sW1+3}], s{sT0} offen lds"])
        P[5] += [f"s_add_u32 s{sDSL}, s{sDSL}, 49152", f"s_cmp_ge_u32 s{sDSL}, 147456", f"s_cselect_b32 s{sDSL}, s{sD0}, s{sDSL}",
                 f"s_add_u32 s{sDSR}, s{sDSR}, 128", f"s_cmp_eq_u32 s{sDSR}, s{sDHI}", f"s_cselect_b32 s{sDSR}, s{sDLO}, s{sDSR}"]
        uid[0] += 1
        P[5] += [f"s_sub_u32 s{sDCN}, s{sDCN}, 1", f"s_cmp_lg_u32 s{sDCN}, 0", f"s_cbranch_scc1 K1_ds{uid[0]}",
                 f"s_lshl_b32 s{sDLO}, s{sSLN}, 7", f"s_add_u32 s{sDLO}, s{sDLO}, s{sDS0}", f"s_lshl_b32 s{sDHI}, s{sSHN}, 7", f"s_add_u32 s{sDHI}, s{sDHI}, s{sDS0}",
                 f"s_lshl_b32 s{sDSR}, s{sSG0}, 7", f"s_add_u32 s{sDSR}, s{sDSR}, s{sDLO}", f"K1_ds{uid[0]}:"]
        return P

    a(f"v_lshlrev_b32 v{ACC+4}, 3, v0")
    a(f"v_add_u32 v{ACC+4}, {L_DW}, v{ACC+4}")
    a("s_waitcnt vmcnt(12)")
    a(f"v_and_b32 v{ACC+2}, 0xffff, v{ACC}")
    a(f"v_and_b32 v{ACC+3}, 0xffff0000, v{ACC}")
    a(f"ds_write_b64 v{ACC+4}, {q(ACC+2, 2)}")
    a(f"v_mov_b32 v{BB+8}, 1")
    a(f"s_cmp_lg_u32 s{sWV}, 0")
    a("s_cbranch_scc1 K1_pj")
    a(f"v_lshlrev_b32 v{ACC+5}, 8, v0")
    a(f"s_and_b32 s{sT0}, s2, {NREP - 1}")
    a(f"s_lshl_b32 s{sT0}, s{sT0}, 2")
    a(f"buffer_atomic_add v{BB+8}, v{ACC+5}, s[{sDB}:{sDB+3}], s{sT0} offen sc0")
    a.label("K1_pj")
    for r in range(SQ, SQ + 24): a(f"v_mov_b32 v{r}, 0")
    srd(a, sH, sWSlo, sWShi, TAIL)
    a(f"s_mov_b32 s{sI}, 0")
    a(f"s_sub_u32 s{sEND}, s{sSHI}, s{sSLO}")
    a(f"s_mov_b32 s{sRDS}, 0")
    a(f"s_mov_b32 s{sDCN}, s{sEND}")
    a(f"s_sub_u32 s{sEND}, s{sEND}, 2")
    a("s_waitcnt lgkmcnt(0)")
    a("s_barrier")
    stamp(a, 1)

    def buf(i): return BB + 4 * (i % 8)
    def rd(i):
        ct, ks = divmod(i, 12)
        L = [f"v_xor_b32 v{vRD}, {((ct - 1) ^ ct) << 5}, v{vRD}"] if ks == 0 and ct > 0 else []
        return L + [f"ds_read_b64_tr_b16 {q(buf(i) + 2*u, 2)}, v{vRD} offset:{ks*4096 + u*512}" for u in range(2)]
    def head(): return [f"v_add_u32 v{vRD}, s{sRDS}, v{vRB}"] + [x for i in range(4) for x in rd(i)]

    DWR = [BB + 16, BB + 24]
    S = BB; Q = BB + 4; vTK = BB + 8; vW2 = BB + 10; vXR = BB + 12; vT = BB + 13; vFL = BB + 14
    KSO = [6, 7, 8, 9, 10, 11, 5, 4, 3, 2, 1, 0]
    def dwrd(m): return [f"ds_read_b128 {q(DWR[m % 2] + 4*j)}, v{vDW} offset:{KSO[m % 12]*128 + j*16}" for j in range(2)]
    def xaddr():
        return [f"v_and_b32 v{vT}, 15, v0", f"v_lshlrev_b32 v{vXR}, 7, v{vT}", f"v_bfe_u32 v{vT}, v0, 1, 2", f"v_bfe_u32 v{vFL}, v0, 4, 2",
                f"v_xor_b32 v{vT}, v{vT}, v{vFL}", f"v_lshl_add_u32 v{vXR}, v{vT}, 4, v{vXR}", f"v_add_u32 v{vT}, s{sCW2}, v{vXR}", f"v_add_u32 v{vXR}, s{sCW}, v{vXR}"]
    def xread(n):
        tt, kp = divmod(n, 6); kp = KPO[kp]
        return [f"ds_read_b128 {q(XN + 48*tt + 8*kp + 4*e)}, v{(vXR, vT)[n // 3 % 2]} offset:{(n % 3) * 2048 + e * 64}" for e in range(2)]
    a.ext(xaddr())
    a.label("K1_ln")
    a.ext(dwrd(0))
    def yreg(tt, d): return XN + 48*tt + 2*d if d < 24 else ACC + 2*(d - 24)
    for tt in range(3):
        for m in range(12):
            n = tt * 6 + m // 2; ks = KSO[m]
            if m % 2 == 0:
                if tt == 0: a(f"s_cbranch_vccnz K1_ta{n}")
                a(f"s_waitcnt vmcnt({2 * min(5, 17 - n) + (6 if n > 14 else 0)})")
                a.ext(xread(n))
                if tt == 0: a.label(f"K1_ta{n}")
            last = tt == 2 and m == 11
            if not last: a.ext(dwrd(m + 1))
            a(f"s_waitcnt lgkmcnt({0 if last else 2})")
            if m % 2 == 0:
                if tt == 0:
                    a(f"s_cbranch_vccnz K1_tb{n}")
                    a.ext(xdma(n + 6, OPT["x_nt"]))
                    a.label(f"K1_tb{n}")
                elif n + 6 < 18: a.ext(xdma(n + 6))
                if n in (14, 17):
                    for p in dma(): a.ext(p)
            D = DWR[m % 2]
            for jj in (3, 2, 1, 0):
                d = 4 * ks + jj; x = XN + 48*tt + d; y = yreg(tt, d)
                a(f"v_dot2_f32_bf16 v{y+1}, v{x}, v{D+2*jj+1}, 0")
                a(f"v_dot2_f32_bf16 v{y}, v{x}, v{D+2*jj}, 0")
            for jj in (3, 2, 1, 0):
                y = q(yreg(tt, 4 * ks + jj), 2); s_ = q(S + 2*(jj % 2), 2); q_ = q(Q + 2*(jj % 2), 2)
                if m == 0 and jj >= 2:
                    a(f"v_pk_mul_f32 {s_}, {y}, 1.0 op_sel_hi:[1,0]")
                    a(f"v_pk_mul_f32 {q_}, {y}, {y}")
                else:
                    a(f"v_pk_add_f32 {s_}, {s_}, {y}")
                    a(f"v_pk_fma_f32 {q_}, {y}, {y}, {q_}")
        a(f"v_pk_add_f32 {q(S,2)}, {q(S,2)}, {q(S+2,2)}")
        a(f"v_pk_add_f32 {q(Q,2)}, {q(Q,2)}, {q(Q+2,2)}")
        a(f"v_add_f32 v{S}, v{S}, v{S+1}")
        a(f"v_add_f32 v{Q}, v{Q}, v{Q+1}")
        for sw in ("v_permlane16_swap_b32", "v_permlane32_swap_b32"):
            a(f"v_mov_b32 v{S+1}, v{S}"); a(f"v_mov_b32 v{Q+1}, v{Q}")
            a("s_nop 0")
            a(f"{sw} v{S}, v{S+1}"); a(f"{sw} v{Q}, v{Q+1}")
            a(f"v_add_f32 v{S}, v{S}, v{S+1}"); a(f"v_add_f32 v{Q}, v{Q}, v{Q+1}")
        a(f"v_mul_f32 v{S}, {f32(-1.0 / C)}, v{S}")
        a(f"v_mul_f32 v{Q}, {f32(1.0 / C)}, v{Q}")
        a(f"v_fma_f32 v{Q}, -v{S}, v{S}, v{Q}")
        a(f"v_max_f32 v{Q}, 0, v{Q}")
        a(f"v_add_f32 v{Q}, {f32(1e-5)}, v{Q}")
        a(f"v_rsq_f32 v{Q}, v{Q}")
        a("s_nop 0")
        a(f"v_mul_f32 v{Q}, {f32(ALPHA)}, v{Q}")
        a(f"v_mul_f32 v{S}, v{S}, v{Q}")
        for d0 in range(0, 48, 4):
            for d in range(d0, d0 + 4):
                y = q(yreg(tt, d), 2)
                a(f"v_pk_fma_f32 {y}, {y}, {q(Q,2)}, {q(S,2)} op_sel_hi:[1,0,0]")
            for d in range(d0, d0 + 4):
                a(f"v_cvt_pk_bf16_f32 v{XN + 48*tt + d}, v{yreg(tt, d)}, v{yreg(tt, d) + 1}")
    a(f"s_cmp_lg_u32 s{sI}, 0")
    a("s_cbranch_scc1 K1_chk")
    a(f"v_readfirstlane_b32 s{sTK}, v{BB+8}")
    a("s_nop 3")
    a(f"s_cmp_lg_u32 s{sTK}, 0")
    a("s_cbranch_scc1 K1_flag")
    srd(a, 60, sWSlo, sWShi, NREP * 6144, SSQ)
    a(f"s_and_b32 s{sT0}, s2, {NREP - 1}")
    a(f"s_mul_i32 s{sT1}, s{sT0}, 6144")
    a(f"s_add_u32 s{sT2}, s{sT1}, 4096")
    for i in range(4): a(f"v_mov_b32 v{ACC+i}, 0")
    a(f"v_lshlrev_b32 v{ACC+4}, 4, v0")
    for k in range(6): a(f"buffer_store_dwordx4 {q(ACC)}, v{ACC+4}, s[60:63], s{(sT1, sT2)[k // 4]} offen offset:{(k % 4) * 1024} sc0 sc1")
    a(f"v_lshlrev_b32 v{ACC+5}, 8, v0")
    a(f"v_mov_b32 v{ACC+6}, 1")
    a(f"s_lshl_b32 s{sT0}, s{sT0}, 2")
    a("s_waitcnt vmcnt(0)")
    a(f"buffer_store_dword v{ACC+6}, v{ACC+5}, s[{sDB}:{sDB+3}], s{sT0} offen offset:64 sc0 sc1")
    a("s_branch K1_flag")
    a.label("K1_chk")
    a(f"v_readfirstlane_b32 s{sT1}, v{vFL+1}")
    a("s_nop 3")
    a(f"s_cmp_lg_u32 s{sT1}, 0")
    a("s_cbranch_scc1 K1_flag")
    a(f"v_mov_b32 v{vFL}, 0")
    a(f"buffer_load_dword v{vFL+1}, v{vFL}, s[{sDB}:{sDB+3}], s{sT2} offen offset:64 sc0 sc1")
    a("s_waitcnt vmcnt(0)")
    a("s_branch K1_chk")
    a.label("K1_flag")
    a("s_waitcnt vmcnt(0)")
    stamp2(a, 2, 5, sI)
    a("s_barrier")
    stamp2(a, 3, 6, sI)
    a.ext(head())
    a(f"s_cmp_eq_u32 s{sGRP}, 0")
    a("s_cbranch_scc1 K1_regA")
    a("s_barrier")
    a("s_branch K1_regB")

    def accr(ct, tt): return ACC + (((ct >> 1) * 3 + tt) * 2 + (ct & 1)) * 4
    NT = OPT["ntail"]
    def step(kind, grp):
        tag = kind + "AB"[grp]
        BG = OPT["bg"] if grp == 0 else OPT["bgb"]
        a(".p2align 6")
        a.label(f"K1_{tag}")
        a(f"s_setprio {OPT['pm']}")
        P = dma()
        misc = [[f"s_add_u32 s{sRDS}, s{sRDS}, 49152", f"s_cmp_eq_u32 s{sRDS}, 147456", f"s_cselect_b32 s{sRDS}, 0, s{sRDS}",
                 f"s_mul_i32 s{sST0}, s{sSIG}, {2 * CHUNK_H}", f"s_add_u32 s{sST0}, s{sST0}, s{sHB}"],
                [f"s_cmp_eq_u32 s{sSIG}, s{sDSP}", f"s_cselect_b32 s{sH}, s{sOUTlo}, s{sWSlo}", f"s_cselect_b32 s{sH+1}, s{sOUThi}, s{sWShi}",
                 f"s_cselect_b32 s{sST0}, s59, s{sST0}", f"s_mov_b32 s{sT1}, {XBYTES}", f"s_cselect_b32 s{sH+2}, s{sT1}, {TAIL}"],
                [f"s_add_u32 s{sST1}, s{sST0}, {CHUNK_H}", f"s_add_u32 s{sI}, s{sI}, 1"]]
        for g in range(12):
            a("s_waitcnt lgkmcnt(0)")
            k = 0
            ct = g // 3
            R = [x for j in range(4) for x in rd((g + 1) * 4 + j)] if g < 11 else []
            if len(R) == 9: R = [R[0] + "\n" + R[1]] + R[2:]
            for tt in range(3):
                for j in range(4):
                    i = g * 4 + j; ks = i % 12
                    c = "0" if ks == 0 else q(accr(ct, tt))
                    a(f"v_mfma_f32_16x16x32_bf16 {q(accr(ct, tt))}, {q(XN + 48*tt + 4*ks)}, {q(buf(i))}, {c}")
                    if k < len(R): a(R[k])
                    if k == 10 and g < len(misc): a.ext(misc[g])
                    if k == 9:
                        if g == BG and grp == 0:
                            if kind != "last": a("s_waitcnt vmcnt(6)")
                            a("s_barrier")
                        if BG < g <= BG + 6:
                            m = g - BG - 1
                            if kind == "pre":
                                if m == 0: a.ext([f"s_mov_b32 s{sCW}, s{sDSL}", f"s_mov_b32 s{sXB}, s{sXN}", f"s_add_u32 s{sCW2}, s{sDSL}, 49152",
                                                  f"s_cmp_ge_u32 s{sCW2}, 147456", f"s_cselect_b32 s{sCW2}, s{sD0}, s{sCW2}"])
                                if m % 2 == 0: a.ext(xdma(m // 2, OPT["xp_nt"]))
                            elif kind == "last":
                                if m % 2 == 0: a.ext(xdma(3 + m // 2, OPT["xp_nt"]))
                            else: a.ext(P[m])
                    k += 1
        a(f"s_setprio {OPT['pg0']}")
        if kind == "last": a.ext(xaddr())
        nb = 0
        for cp in range(2):
            for tt in range(3):
                b = ACC + (cp * 3 + tt) * 8
                a.ext(gelu_batch(b, TMP, SS + 2 * cp, tt == 0, sC0, sC0H))
                keep = kind != "tail" and (OPT["stm"] >> (cp * 3 + tt)) & 1
                a(f"buffer_store_dwordx4 {q(b)}, v{vST}, s[{sH}:{sH+3}], s{(sST0, sST1)[cp]} offen offset:{tt*1024}" + (" nt" if OPT["st_nt"] and not keep else ["", " sc1", " sc0 sc1", " sc0"][OPT["kf"]]))
                if kind == "last":
                    a(f"s_waitcnt vmcnt({13 + 3 * nb if nb < 3 else 11 + nb})")
                    a.ext(xread(nb))
                    a("s_waitcnt lgkmcnt(0)")
                    a.ext(xdma(nb + 6, OPT["xp_nt"]))
                nb += 1
                if nb == OPT["gb"] and grp == 1 and kind != "last":
                    if kind == "tail":
                        a(f"s_cmp_eq_u32 s{sI}, 36")
                        a(f"s_cbranch_scc1 K1_nogb")
                    if kind != "pre": a(f"s_waitcnt vmcnt({nb})")
                    a("s_barrier")
                    if kind == "tail": a.label("K1_nogb")
                if nb == OPT["gp"]: a(f"s_setprio {OPT['pg1']}")
                if nb == 5 and kind != "last": a.ext(head())
            if not OPT["sdot"]:
                a(f"v_permlane16_swap_b32 v{SS+2*cp}, v{SS+2*cp+1}")
                if cp == 0: a("s_nop 0")
                a(f"v_add_f32 v{SS+2*cp}, v{SS+2*cp}, v{SS+2*cp+1}")
        if OPT["sdot"]:
            for tt in range(3):
                for i in range(2):
                    for c in range(4):
                        p = ACC + ((c >> 1) * 3 + tt) * 8 + 2 * (c & 1) + i
                        a(f"v_dot2_f32_bf16 v{SS+c}, v{p}, v{p}, 0" if tt == 0 and i == 0 else (f"v_dot2_f32_bf16 v{SS+c}, v{p}, v{p}, v{SS+c}" if OPT["sdot"] == 1 else f"v_dot2c_f32_bf16 v{SS+c}, v{p}, v{p}"))
            a("s_nop 0")
            a(f"v_permlane16_swap_b32 v{SS}, v{SS+1}")
            a("s_nop 0")
            a(f"v_permlane16_swap_b32 v{SS+2}, v{SS+3}")
            a(f"v_add_f32 v{SS}, v{SS}, v{SS+1}")
            a(f"v_add_f32 v{SS+2}, v{SS+2}, v{SS+3}")
        a("s_nop 1")
        a(f"v_permlane32_swap_b32 v{SS}, v{SS+2}")
        a(f"v_add_f32 v{SS}, v{SS}, v{SS+2}")
        a(f"s_set_gpr_idx_on s{sSIG}, gpr_idx(SRC0,DST)")
        a(f"s_add_u32 s{sSIG}, s{sSIG}, 1")
        a(f"v_add_f32 v{SQ}, v{SQ}, v{SS}")
        a("s_set_gpr_idx_off")
        a(f"s_cmp_eq_u32 s{sSIG}, s{sSHI}")
        a(f"s_cselect_b32 s{sSIG}, s{sSLO}, s{sSIG}")
        if kind == "reg":
            a(f"s_cmp_lg_u32 s{sI}, s{sEND}")
            a(f"s_cbranch_scc1 K1_{tag}")
            a(f"s_cmp_eq_u32 s{sI}, {36 - NT}")
            a(f"s_cbranch_scc1 K1_tail{'AB'[grp]}")
        elif kind == "pre":
            pass
        elif kind == "last":
            a("s_branch K1_sw")
        else:
            a(f"s_cmp_lg_u32 s{sI}, 36")
            a(f"s_cbranch_scc1 K1_{tag}")
            a("s_branch K1_fin")
    for grp in range(2):
        for kind in ("reg", "pre", "last", "tail"): step(kind, grp)
    a.label("K1_sw")
    a("s_setprio 0")
    a("s_mov_b64 vcc, -1")
    stamp(a, 4)
    a(f"s_mov_b32 s{sEND}, {36 - NT}")
    a(f"s_mov_b32 s{sSLO}, s{sSLN}")
    a(f"s_mov_b32 s{sSHI}, s{sSHN}")
    a(f"s_add_u32 s{sSIG}, s{sSLO}, s{sSG0}")
    a(f"s_mov_b32 s{sHB}, s{sHN}")
    a(f"s_mov_b32 s{sDSP}, s{sDSN}")
    a(f"s_and_b32 s{sT2}, s2, {NREP - 1}")
    a(f"s_lshl_b32 s{sT2}, s{sT2}, 2")
    a("s_waitcnt lgkmcnt(0)")
    a(f"v_mov_b32 v{vFL}, 0")
    a(f"buffer_load_dword v{vFL+1}, v{vFL}, s[{sDB}:{sDB+3}], s{sT2} offen offset:64 sc0 sc1")
    if OPT["w2pf"]:
        a("s_load_dwordx2 s[60:61], s[0:1], 24")
        a(f"s_mov_b32 s62, {C * F * 2}")
        a("s_mov_b32 s63, 0x00020000")
        a(f"s_mul_i32 s{sT0}, s2, 4608")
        a(f"v_lshlrev_b32 v{BB+10}, 7, v0")
        a(f"v_min_u32 v{BB+10}, 4480, v{BB+10}")
        a("s_waitcnt lgkmcnt(0)")
        a(f"s_cmp_lg_u32 s{sWV}, 0")
        a("s_cbranch_scc1 K1_ln")
        a(f"buffer_load_dword v{BB+11}, v{BB+10}, s[60:63], s{sT0} offen")
    a("s_branch K1_ln")
    a.label("K1_fin")
    a("s_setprio 0")
    if OPT["npf"]:
        a("s_getpc_b64 s[60:61]")
        a.label("K1_pc")
        a(f"v_lshlrev_b32 v{XN+40}, 7, v0")
        a(f"v_min_u32 v{XN+40}, K3_end-K1_pc, v{XN+40}")
        a(f"v_mov_b32 v{XN+43}, s61")
        a(f"v_add_co_u32 v{XN+42}, vcc, s60, v{XN+40}")
        a("s_nop 1")
        a(f"v_addc_co_u32 v{XN+43}, vcc, 0, v{XN+43}, vcc")
        a(f"global_load_dword v{XN+41}, {q(XN+42, 2)}, off")
    stamp(a, 7)
    a(f"s_and_b32 s{sT0}, s2, {NREP - 1}")
    a(f"s_waitcnt vmcnt({6 + OPT['npf']}) lgkmcnt(0)")
    a("s_barrier")
    a("v_and_b32 v1, 63, v0")
    a("v_lshlrev_b32 v1, 2, v1")
    a(f"v_add_u32 v1, s{sD0}, v1")
    for k in range(24): a(f"ds_write_b32 v1, v{SQ+k} offset:{k*256}")
    a("v_lshlrev_b32 v1, 2, v0")
    a("s_waitcnt lgkmcnt(0)")
    a("s_barrier")
    for k in range(3):
        for w in range(8): a(f"ds_read_b32 v{XN+8*k+w}, v1 offset:{w*6144 + k*2048}")
    srd(a, 60, sWSlo, sWShi, NREP * 6144, SSQ)
    a(f"s_mul_i32 s{sT0}, s{sT0}, 6144")
    a(f"s_add_u32 s{sT1}, s{sT0}, 4096")
    a("s_waitcnt lgkmcnt(0)")
    for st in (4, 2, 1):
        for k in range(3):
            for w in range(st): a(f"v_add_f32 v{XN+8*k+w}, v{XN+8*k+w}, v{XN+8*k+w+st}")
    a(f"buffer_atomic_add_f32 v{XN}, v1, s[60:63], s{sT0} offen")
    a(f"buffer_atomic_add_f32 v{XN+8}, v1, s[60:63], s{sT0} offen offset:2048")
    a(f"buffer_atomic_add_f32 v{XN+16}, v1, s[60:63], s{sT1} offen")
    if OPT["stamp"]: a("s_waitcnt vmcnt(0)")
    stamp(a, 8)
    stamp_dump(a, 9, sWV, "K1", 0)
    a.label("K1_end")
    a("s_endpgm")
    return a, desc("gemm1_kernel", 256, 100), f"; @launch kernel=gemm1_kernel grid=(256,1,1) block=(512,1,1) lds={L_DW + 4096}"

T1B = 46 * CHUNK_H; T2B = 94 * CHUNK_H
def k3r():
    REG = 3 * 192 * 768
    a = Asm()
    ACC = 16; HB = 160; WB = 184; SEL = 208; BIAS = 216; XT = 240
    vD0, vWR, vHR0, vHR1, vXR, vOUT, vWB0, vHB0, vHB1 = 1, 4, 5, 6, 7, 8, 9, 10, 11
    L_H = 73728; L_X = 147456
    sD, sO = 8, 12
    (sWV, sTH, sCQ, sSrc, sDst, sSlot, sDLo, sDEnd, sT0, sT1, sWS, sHS, sPASS, sOB, sEV, sT2, sJd, sLag, sSrc3, sSrcL, sSrcL3, sLim, sHalf, sDP, sHlo, sHhi) = range(30, 56)
    STG = OPT["stg"]; NB = (5 * STG + 1 + 3) // 4 * 4
    kernel_start(a, "gemm2_kernel")
    a("s_cmp_ge_u32 s2, 256")
    a("s_cbranch_scc1 K3_end")
    stamp(a, 0)
    a("s_load_dwordx2 s[4:5], s[0:1], 0")
    a("s_load_dwordx2 s[6:7], s[0:1], 48")
    a("s_load_dwordx2 s[24:25], s[0:1], 64")
    code_prefetch(a, "gemm2_kernel", "K3_end", 100, 60)
    a("v_lshrrev_b32 v16, 6, v0")
    a("v_and_b32 v17, 63, v0")
    a(f"v_readfirstlane_b32 s{sWV}, v16")
    a(f"v_lshlrev_b32 v{vD0}, 4, v17")
    a(f"v_add_u32 v{vD0+1}, 1024, v{vD0}")
    a(f"v_add_u32 v{vD0+2}, 2048, v{vD0}")
    a("v_and_b32 v18, 15, v17")
    a("v_lshrrev_b32 v19, 4, v17")
    a("v_mul_u32_u24 v20, 24, v18")
    a(f"s_lshr_b32 s{sTH}, s{sWV}, 2")
    a(f"s_and_b32 s{sCQ}, s{sWV}, 3")
    a(f"s_mov_b32 s{sD+3}, 0x00020000")
    a(f"s_mov_b32 s{sO+3}, 0x00020000")
    a(f"s_mov_b32 s{sO+2}, 0")
    a(f"s_mul_i32 s{sT0}, s2, {REG}")
    a(f"s_and_b32 s{sHalf}, s{sWV}, 1")
    a(f"s_mul_i32 s{sHalf}, s{sHalf}, 6144")
    a(f"s_mul_i32 s{sT1}, s2, {HSTRIDE}")
    a(f"s_mov_b32 s{sJd}, 0")
    a(f"s_mov_b32 s{sLag}, 0")
    a(f"s_mov_b32 s{sDP}, 0")
    a(f"s_mov_b32 s{sSrc}, s{sHalf}")
    a("s_waitcnt lgkmcnt(0)")
    a(f"s_add_u32 s{sO}, s6, s{sT0}")
    a(f"s_addc_u32 s{sO+1}, s7, 0")
    a(f"s_add_u32 s{sHlo}, s24, s{sT1}")
    a(f"s_addc_u32 s{sHhi}, s25, 0")
    srd(a, 16, 24, 25, 1536 * NBP, B2)
    a(f"s_mul_i32 s{sT1}, s{sCQ}, 384")
    for p in range(NBP):
        a(f"buffer_load_dwordx3 {q(24 + 8*p, 3)}, v20, s[16:19], s{sT1} offen")
        a(f"buffer_load_dwordx3 {q(28 + 8*p, 3)}, v20, s[16:19], s{sT1} offen offset:12")
        if p < NBP - 1: a(f"s_add_u32 s{sT1}, s{sT1}, 1536")

    nt = " nt" if OPT["h_nt"] else ""
    def pieces_w():
        P = []
        for k in range(6):
            pre = [f"s_mov_b32 m0, s{sDst}", f"s_add_u32 s{sT2}, s{sSrc}, 3072"] if k == 0 else ["s_add_u32 m0, m0, 1024", "s_nop 0"]
            P.append(pre + [f"buffer_load_dwordx4 v{vD0 + k % 3}, s[{sD}:{sD+3}], s{sSrc if k < 3 else sT2} offen lds"])
        P[5] += [f"s_add_u32 s{sDst}, s{sDst}, 24576", f"s_cmp_eq_u32 s{sDst}, s{sDEnd}", f"s_cselect_b32 s{sDst}, s{sDLo}, s{sDst}",
                 f"s_add_u32 s{sSrc}, s{sSrc}, 24576", f"s_cmp_ge_u32 s{sSrc}, 1179648", f"s_cselect_b32 s{sSrc}, s{sDLo}, s{sSrc}"]
        return P
    uid = [0]
    def pieces_h():
        P = []
        for k in range(6):
            if k == 0:
                P.append([f"s_mov_b32 m0, s{sDst}", f"s_add_u32 s{sSrc3}, s{sSrc}, 3072",
                          f"buffer_load_dwordx4 v{vD0}, s[{sD}:{sD+3}], s{sSrc} offen{nt} lds",
                          f"s_sub_u32 s{sSrcL}, s{sSrc}, s{sLag}", f"s_sub_u32 s{sSrcL3}, s{sSrc3}, s{sLag}"])
            else:
                P.append(["s_add_u32 m0, m0, 1024", f"s_cmp_lt_u32 s{sJd}, {STG * k}",
                          f"s_cselect_b32 s{sT2}, s{sSrcL if k < 3 else sSrcL3}, s{sSrc if k < 3 else sSrc3}",
                          f"buffer_load_dwordx4 v{vD0 + k % 3}, s[{sD}:{sD+3}], s{sT2} offen{nt} lds"])
        uid[0] += 1; u = uid[0]
        P[5] += [f"s_add_u32 s{sDst}, s{sDst}, s{sSlot}", f"s_cmp_eq_u32 s{sDst}, s{sDEnd}", f"s_cselect_b32 s{sDst}, s{sDLo}, s{sDst}",
                 f"s_add_u32 s{sSrc}, s{sSrc}, 12288", f"s_cmp_ge_u32 s{sSrc}, s{sLim}", f"s_cselect_b32 s{sD+2}, 0, s{sD+2}",
                 f"s_add_u32 s{sJd}, s{sJd}, 1", f"s_cmp_lt_u32 s{sJd}, 46", f"s_cbranch_scc1 K3_av{u}",
                 f"s_add_u32 s{sT2}, s{sJd}, s{sDP}", f"s_cmp_lg_u32 s{sT2}, 46", f"s_cbranch_scc1 K3_aw{u}",
                 f"s_mov_b32 s{sD}, s{sO}", f"s_mov_b32 s{sD+1}, s{sO+1}", f"s_mov_b32 s{sD+2}, {REG}", f"s_add_u32 s{sSrc}, s{sHalf}, {2 * 192 * 768}",
                 f"K3_aw{u}:", f"s_cmp_lg_u32 s{sJd}, 48", f"s_cbranch_scc1 K3_av{u}",
                 f"s_mov_b32 s{sJd}, 0", f"s_mov_b32 s{sLag}, {48 * CHUNK_H}", f"s_cmp_lg_u32 s{sDP}, 0", f"s_cbranch_scc1 K3_av{u}",
                 f"s_mov_b32 s{sDP}, 100", f"s_mov_b32 s{sLag}, {46 * CHUNK_H}", f"s_mov_b32 s{sD}, s{sHlo}", f"s_mov_b32 s{sD+1}, s{sHhi}",
                 f"s_mov_b32 s{sD+2}, {HSTRIDE}", f"s_add_u32 s{sSrc}, s{sHalf}, {T1B}",
                 f"K3_av{u}:"]
        return P

    a(f"s_cmp_lt_u32 s{sWV}, 4")
    a("s_cbranch_scc1 K3_rw")
    a(f"s_cmp_ge_u32 s{sWV}, 6")
    a("s_cbranch_scc1 K3_rx")
    a(f"s_mov_b32 s{sD}, s{sHlo}")
    a(f"s_mov_b32 s{sD+1}, s{sHhi}")
    a(f"s_mov_b32 s{sD+2}, {HSTRIDE}")
    a(f"s_add_u32 s{sDLo}, s{sHalf}, {L_H}")
    a(f"s_mov_b32 s{sDst}, s{sDLo}")
    a(f"s_add_u32 s{sDEnd}, s{sDLo}, 73728")
    a(f"s_mov_b32 s{sSlot}, {CHUNK_H}")
    a(f"s_mov_b32 s{sLim}, -1")
    a(f"s_mov_b32 s{sT1}, 5")
    a.label("K3_hpro")
    for p in pieces_h(): a.ext(p)
    a(f"s_sub_u32 s{sT1}, s{sT1}, 1")
    a(f"s_cmp_lg_u32 s{sT1}, 0")
    a("s_cbranch_scc1 K3_hpro")
    a("s_mov_b64 s[56:57], 0")
    a("s_branch K3_rdone")
    a.label("K3_rx")
    a(f"s_add_u32 s{sD}, s4, s{sT0}")
    a(f"s_addc_u32 s{sD+1}, s5, 0")
    a(f"s_mov_b32 s{sD+2}, {REG}")
    for m in range(3):
        v = vD0 + m
        a(f"v_mul_u32_u24 v20, 43691, v{v}")
        a("v_lshrrev_b32 v20, 25, v20")
        a("v_mul_u32_u24 v21, 864, v20")
        a(f"v_sub_u32 v21, v{v}, v21")
        a("v_add_u32 v22, 768, v21")
        a("v_cmp_gt_i32 vcc, 0, v21")
        a("v_mul_u32_u24 v20, 768, v20")
        a("s_nop 0")
        a("v_cndmask_b32 v21, v21, v22, vcc")
        a(f"v_add_u32 v{v}, v20, v21")
    a(f"s_add_u32 s{sDLo}, s{sHalf}, {L_X}")
    a(f"s_mov_b32 s{sDEnd}, 0")
    a(f"s_mov_b32 s{sSlot}, 0")
    a(f"s_mov_b32 s{sDst}, s{sDLo}")
    a(f"s_mov_b32 s{sLim}, {REG}")
    a("s_mov_b64 s[56:57], -1")
    a("s_branch K3_rdone")
    a.label("K3_rw")
    a(f"s_add_u32 s{sD}, s24, {W2F}")
    a(f"s_addc_u32 s{sD+1}, s25, 0")
    a(f"s_mov_b32 s{sD+2}, 1179648")
    a(f"s_mul_i32 s{sDLo}, s{sCQ}, 6144")
    a(f"s_add_u32 s{sDEnd}, s{sDLo}, 73728")
    a(f"s_mov_b32 s{sDst}, s{sDLo}")
    a(f"s_mov_b32 s{sSrc}, s{sDLo}")
    for _ in range(2):
        for p in pieces_w(): a.ext(p)
    a("s_mov_b64 s[56:57], 0")
    a.label("K3_rdone")
    a(f"v_mul_u32_u24 v{vOUT}, 3072, v19")
    a("v_mul_u32_u24 v21, 12, v18")
    a(f"s_mul_i32 s{sT0}, s{sTH}, {96 * 768}")
    a(f"s_mul_i32 s{sT1}, s{sCQ}, 192")
    a(f"s_add_u32 s{sT0}, s{sT0}, s{sT1}")
    a(f"v_add3_u32 v{vOUT}, v{vOUT}, v21, s{sT0}")
    a(f"s_mul_i32 s{sT0}, s{sCQ}, 6144")
    a(f"v_lshl_add_u32 v{vWB0}, v17, 4, s{sT0}")
    a("v_and_b32 v21, 3, v18")
    a("v_lshrrev_b32 v22, 2, v18")
    a("v_and_b32 v23, 2, v19")
    a("v_xor_b32 v23, v23, v21")
    a("v_lshl_add_u32 v22, v23, 2, v22")
    a("v_lshl_add_u32 v22, v21, 4, v22")
    a("v_lshlrev_b32 v22, 4, v22")
    a("v_and_b32 v23, 1, v19")
    a("v_lshl_add_u32 v22, v23, 3, v22")
    a(f"s_mul_i32 s{sT0}, s{sTH}, 6144")
    a(f"s_add_u32 s{sT0}, s{sT0}, {L_H}")
    a(f"v_add_u32 v{vHB0}, s{sT0}, v22")
    a(f"v_xor_b32 v{vHB1}, 64, v{vHB0}")
    a(f"s_lshl_b32 s{sT0}, s{sCQ}, 2")
    a("v_lshl_add_u32 v22, v21, 1, v19")
    a(f"v_add_u32 v22, s{sT0}, v22")
    a("v_and_b32 v22, 15, v22")
    a("v_mul_u32_u24 v22, 48, v22")
    a("v_mul_u32_u24 v23, 768, v18")
    a(f"v_add_u32 v22, {L_X}, v22")
    a(f"v_add_u32 v{vXR}, v22, v23")
    a("v_lshrrev_b32 v22, 2, v18")
    a("v_cmp_eq_u32 vcc, v22, v19")
    a("v_mov_b32 v23, 0x3f80")
    a("s_nop 0")
    a("v_cndmask_b32 v23, 0, v23, vcc")
    for e in range(4):
        a(f"v_cmp_eq_u32 vcc, {e}, v21")
        a("s_nop 1")
        a(f"v_cndmask_b32 v{SEL+e}, 0, v23, vcc")
        a(f"v_lshlrev_b32 v{SEL+4+e}, 16, v{SEL+e}")
    a("s_mov_b64 vcc, s[56:57]")
    a(f"s_mov_b32 s{sWS}, 0")
    a(f"s_mov_b32 s{sHS}, 0")
    a(f"s_mov_b32 s{sPASS}, 0")
    a(f"s_mov_b32 s{sOB}, 0")
    a("s_waitcnt vmcnt(24)")
    a(f"s_cmp_eq_u32 s{sSlot}, {CHUNK_H}" if False else f"s_sub_u32 s{sT0}, s{sWV}, 4")
    a(f"s_cmp_lt_u32 s{sT0}, 2")
    a("s_cbranch_scc1 K3_pw")
    a("s_waitcnt vmcnt(6)")
    a("s_cbranch_vccz K3_pw")
    a("s_waitcnt vmcnt(0)")
    a.label("K3_pw")
    for p in range(1, NBP):
        for n in range(6):
            src = 24 + n if n < 3 else 25 + n
            a(f"v_add_f32 v{src}, v{src}, v{src + 8*p}")
    for n in range(6):
        src = 24 + n if n < 3 else 25 + n
        for r in range(4): a(f"v_mov_b32 v{BIAS+4*n+r}, v{src}")
    stamp(a, 1)

    def accr(n, t): return ACC + (t * 6 + n) * 4
    ofl = ["", " nt", " sc1", " sc0 sc1", " sc0"][OPT["out_nt"]]
    def mini(t):
        L = [f"s_add_u32 s{sT1}, s{sOB}, {t * 12288}"]
        for r in range(4):
            tq = XT + 4 * r if STG % 2 == 0 else (12, 252)[r % 2]
            for j in range(3): L.append(f"v_cvt_pk_bf16_f32 v{tq+j}, v{accr(2*j, t)+r}, v{accr(2*j+1, t)+r}")
            if not OPT["k3nost"]: L.append(f"buffer_store_dwordx3 {q(tq, 3)}, v{vOUT}, s[{sO}:{sO+3}], s{sT1} offen offset:{r*768}" + ofl)
        return L
    def step(grp, u, bnd):
        u4 = u % 4; tag = f"{grp}{'b' if bnd else 'l'}{u}"
        L = [f"v_add_u32 v{vWR}, s{sWS}, v{vWB0}", f"v_add_u32 v{vHR0}, s{sHS}, v{vHB0}", f"v_add_u32 v{vHR1}, s{sHS}, v{vHB1}"]
        R = []
        for t in range(6):
            R.append(f"ds_read_b128 {q(WB + 4*t)}, v{vWR} offset:{t*1024}")
            R.append(f"ds_read_b64_tr_b16 {q(HB + 4*t, 2)}, v{vHR0} offset:{t*1024}")
            R.append(f"ds_read_b64_tr_b16 {q(HB + 4*t + 2, 2)}, v{vHR1} offset:{t*1024}")
        P = pieces_w() if grp == 0 else pieces_h()
        def gd(X, z): return X if grp == 0 or u4 == 0 else [f"s_cbranch_vccnz K3_s{tag}{z}"] + X + [f"K3_s{tag}{z}:"]
        L += gd(P[0], "a") + R[:6] + gd(P[1], "b") + R[6:12] + gd(P[2], "c") + R[12:]
        if u4 == 3:
            L += [f"s_sub_u32 s{sT0}, s{sEV}, {6*grp}", f"s_cmp_lt_u32 s{sT0}, 6", f"s_cbranch_scc0 K3_xr{tag}"]
            for p in range(3):
                L.append(f"ds_read2_b32 {q(XT + 4*p, 2)}, v{vXR} offset0:{p} offset1:{p+3}")
                L.append(f"ds_read2_b32 {q(XT + 4*p + 2, 2)}, v{vXR} offset0:{p+6} offset1:{p+9}")
            L.append(f"K3_xr{tag}:")
        L += gd(P[3] + P[4] + P[5], "d")
        L += [f"s_add_u32 s{sWS}, s{sWS}, 24576", f"s_cmp_eq_u32 s{sWS}, 73728", f"s_cselect_b32 s{sWS}, 0, s{sWS}",
              f"s_add_u32 s{sHS}, s{sHS}, 12288", f"s_cmp_eq_u32 s{sHS}, 73728", f"s_cselect_b32 s{sHS}, 0, s{sHS}"]
        tb = u // STG if bnd and u % STG == 0 and u // STG < 6 else None
        def nst(back):
            if not bnd or OPT["k3nost"]: return 0
            return 4 * sum(1 for w in range(max(0, u - back), u + 1 - grp) if w % STG == 0 and w // STG < 6)
        if tb == 5:
            a(f"s_cmp_eq_u32 s{sPASS}, 3")
            a("s_cbranch_scc1 K3_fin")
        a.ext(L)
        if grp == 0:
            a("s_waitcnt lgkmcnt(0)")
            a(f"s_setprio {OPT['k3pa']}")
        else:
            if u4 == 2:
                a(f"s_cbranch_vccz K3_nx{tag}")
                a(f"s_waitcnt vmcnt({nst(2)})")
                a.label(f"K3_nx{tag}")
            a(f"s_waitcnt vmcnt({24 + nst(4)}) lgkmcnt(0)")
            a("s_barrier")
            a(f"s_setprio {OPT['k3pb']}")
        if u4 == 3:
            a(f"s_cmp_lt_u32 s{sT0}, 6")
            a(f"s_cbranch_scc0 K3_xd{tag}")
            ts = range(6) if not bnd else [t for t in range(6) if t + 6 * grp == u // 4]
            for t in ts:
                if t != ts[-1]:
                    a(f"s_cmp_lg_u32 s{sT0}, {t}")
                    a(f"s_cbranch_scc1 K3_x{tag}_{t+1}")
                for n in range(6):
                    a(f"v_mfma_f32_16x16x32_bf16 {q(accr(n, t))}, {q(XT + 4*(n >> 1))}, {q(SEL + 4*(n & 1))}, {q(accr(n, t))}")
                if t != ts[-1]:
                    a(f"s_branch K3_xd{tag}")
                    a.label(f"K3_x{tag}_{t+1}")
            a.label(f"K3_xd{tag}")
            a(f"s_add_u32 s{sEV}, s{sEV}, 1")
        def mf(t): return [f"v_mfma_f32_16x16x32_bf16 {q(accr(n, t))}, {q(HB + 4*t)}, {q(WB + 4*n)}, {q(BIAS + 4*n) if t == tb else q(accr(n, t))}" for n in range(6)]
        bar = [f"s_waitcnt vmcnt({6 + nst(1)})", "s_barrier"] if grp == 0 else []
        ns = u // STG + 1 if bnd else 6
        def full():
            order = [t for t in range(6) if t != tb] + ([tb] if tb is not None else [])
            Ms = [[x] for t in order for x in mf(t)]
            if tb is not None:
                E = mini(tb)
                pos = OPT["mp0"]
                for x in E:
                    Ms[pos].append(x)
                    if not x.startswith("s_"): pos += 1
                    if x.startswith("buffer"): pos += OPT["mpd"]
                assert pos <= 29
            e = OPT["k3eb"] if grp == 0 else 0
            Ms[35 - e] += (["s_setprio 3"] if e else []) + bar
            a.ext([x for m in Ms for x in m])
        if ns >= 6:
            full()
        else:
            a(f"s_sub_u32 s{sT2}, s{sPASS}, 1")
            a(f"s_cmp_lt_u32 s{sT2}, 2")
            a(f"s_cbranch_scc0 K3_m0{tag}")
            full()
            a(f"s_branch K3_m3{tag}")
            a.label(f"K3_m0{tag}")
            if tb is not None: a.ext(mini(tb))
            a(f"s_cmp_eq_u32 s{sPASS}, 3")
            a(f"s_cbranch_scc1 K3_m1{tag}")
            for t in range(ns): a.ext(mf(t))
            a(f"s_branch K3_m2{tag}")
            a.label(f"K3_m1{tag}")
            for t in range(ns, 6): a.ext(mf(t))
            a.label(f"K3_m2{tag}")
            a.ext(bar)
            a.label(f"K3_m3{tag}")
        a("s_setprio 0")

    a("s_barrier")
    a(f"s_cmp_lg_u32 s{sTH}, 0")
    a("s_cbranch_scc1 K3_1_tile")
    for grp in range(2):
        a.label(f"K3_{grp}_tile")
        a(f"s_cmp_eq_u32 s{sPASS}, 3")
        a(f"s_cselect_b32 s{sEV}, 100, 0")
        for u in range(NB): step(grp, u, True)
        if OPT["stamp"]: stamp2(a, 2, 4, sPASS)
        a(".p2align 6")
        a.label(f"K3_{grp}_loop")
        for u in range(4): step(grp, u, False)
        a(f"s_cmp_lg_u32 s{sEV}, 12")
        a(f"s_cbranch_scc1 K3_{grp}_loop")
        if OPT["stamp"]: stamp2(a, 3, 5, sPASS)
        a(f"s_mul_i32 s{sOB}, s{sPASS}, {192 * 768}")
        a(f"s_add_u32 s{sPASS}, s{sPASS}, 1")
        a(f"s_mov_b32 s{sO+2}, {REG}")
        a(f"s_branch K3_{grp}_tile")
    a.label("K3_fin")
    stamp(a, 6)
    a("s_nop 7")
    a.ext(mini(5))
    if OPT["stamp"]: a("s_waitcnt vmcnt(0)")
    stamp(a, 7)
    stamp_dump(a, 8, sWV, "K3", 1)
    a.label("K3_end")
    a("s_endpgm")
    return a, desc("gemm2_kernel", 256, 100), f"; @launch kernel=gemm2_kernel grid=(256,1,1) block=(512,1,1) lds={L_X + 12288}"

def k3():
    a = Asm()
    ACC = 16; HB = 160; WB = 184; SEL = 208; BIAS = 216; XT = 240
    KC = OPT['k3c']
    if KC: WB = 208; SEL = 232
    BV = [12, 13, 14, 15, 252, 253]
    vD0, vWR, vHR0, vHR1, vXR, vOUT, vWB0, vHB0, vHB1 = 1, 4, 5, 6, 7, 8, 9, 10, 11
    L_H = 73728; L_X = 147456
    sD, sO = 8, 12
    (sWV, sTH, sCQ, sSrc, sDst, sSlot, sDLo, sDEnd, sLeft, sT0, sT1, sWS, sHS, sJ, sOB, sEV, sNR, sT2, sFIRST) = range(30, 49)
    REG = 3 * 192 * 768
    kernel_start(a, "gemm2_kernel")
    a("s_cmp_ge_u32 s2, 256")
    a("s_cbranch_scc1 K3_end")
    stamp(a, 0)
    a("s_load_dwordx2 s[4:5], s[0:1], 0")
    a("s_load_dwordx2 s[6:7], s[0:1], 48")
    a("s_load_dwordx2 s[24:25], s[0:1], 64")
    code_prefetch(a, "gemm2_kernel", "K3_end", 100, 60)
    a("v_lshrrev_b32 v16, 6, v0")
    a("v_and_b32 v17, 63, v0")
    a(f"v_readfirstlane_b32 s{sWV}, v16")
    a(f"v_lshlrev_b32 v{vD0}, 4, v17")
    a(f"v_add_u32 v{vD0+1}, 1024, v{vD0}")
    a(f"v_add_u32 v{vD0+2}, 2048, v{vD0}")
    a("v_and_b32 v18, 15, v17")
    a("v_lshrrev_b32 v19, 4, v17")
    a(f"s_lshr_b32 s{sT0}, s2, 4")
    a(f"s_lshl_b32 s{sT0}, s{sT0}, 4")
    a(f"s_and_b32 s{sT1}, s2, 7")
    a(f"s_lshl_b32 s{sT1}, s{sT1}, 1")
    a(f"s_add_u32 s{sT0}, s{sT0}, s{sT1}")
    a(f"s_bfe_u32 s{sT1}, s2, 0x10003")
    a(f"s_add_u32 s3, s{sT0}, s{sT1}")
    a(f"s_lshr_b32 s{sTH}, s{sWV}, 2")
    a(f"s_and_b32 s{sCQ}, s{sWV}, 3")
    a(f"s_mov_b32 s{sD+3}, 0x00020000")
    a(f"s_mov_b32 s{sO+3}, 0x00020000")
    a(f"s_mov_b32 s{sO+2}, {REG}")
    a(f"s_mul_i32 s{sT0}, s3, {REG}")
    a(f"s_and_b32 s{sT1}, s{sWV}, 1")
    a(f"s_mul_i32 s{sT1}, s{sT1}, 6144")
    a("s_waitcnt lgkmcnt(0)")
    a(f"s_add_u32 s{sO}, s6, s{sT0}")
    a(f"s_addc_u32 s{sO+1}, s7, 0")

    srd(a, 16, 24, 25, 1536 * NBP, B2)
    a("v_mul_u32_u24 v20, 24, v18")
    a(f"s_mul_i32 s{sT2}, s{sCQ}, 384")
    for p in range(NBP):
        a(f"buffer_load_dwordx3 {q(24 + 8*p, 3)}, v20, s[16:19], s{sT2} offen")
        a(f"buffer_load_dwordx3 {q(28 + 8*p, 3)}, v20, s[16:19], s{sT2} offen offset:12")
        if p < NBP - 1: a(f"s_add_u32 s{sT2}, s{sT2}, 1536")

    def pieces(srd_, sfx=""):
        P = []
        for k in range(6):
            if k == 0: pre = [f"s_mov_b32 m0, s{sDst}", f"s_add_u32 s{sT2}, s{sSrc}, 3072"]
            else: pre = ["s_add_u32 m0, m0, 1024", "s_nop 0"]
            so = sSrc if k < 3 else sT2
            P.append(pre + [f"buffer_load_dwordx4 v{vD0 + k % 3}, s[{srd_}:{srd_+3}], s{so} offen{sfx} lds"])
        return P
    def advance_w():
        return [f"s_add_u32 s{sDst}, s{sDst}, 24576", f"s_cmp_eq_u32 s{sDst}, s{sDEnd}", f"s_cselect_b32 s{sDst}, s{sDLo}, s{sDst}",
                f"s_sub_u32 s{sSrc}, s{sSrc}, 24576", f"s_cselect_b32 s{sT2}, 1179648, 0", f"s_add_u32 s{sSrc}, s{sSrc}, s{sT2}"]
    def advance_h():
        return [f"s_add_u32 s{sDst}, s{sDst}, s{sSlot}", f"s_cmp_eq_u32 s{sDst}, s{sDEnd}", f"s_cselect_b32 s{sDst}, s{sDLo}, s{sDst}",
                f"s_sub_u32 s{sSrc}, s{sSrc}, 12288", f"s_cselect_b32 s{sD+2}, 0, s{sD+2}", f"s_cselect_b32 s{sSrc}, 0, s{sSrc}"]
    nt = " nt" if OPT["h_nt"] else ""
    wnt = " nt" if OPT["w_nt"] else ""

    a(f"s_cmp_lt_u32 s{sWV}, 4")
    a("s_cbranch_scc1 K3_rw")
    a(f"s_cmp_ge_u32 s{sWV}, 6")
    a("s_cbranch_scc1 K3_rx")
    a(f"s_add_u32 s{sDLo}, s{sT1}, {L_H}")
    a(f"s_mov_b32 s{sDst}, s{sDLo}")
    a(f"s_add_u32 s{sSrc}, s{sT1}, {CHUNK_H}")
    for p in pieces(sO, nt): a.ext(p)
    a(f"s_add_u32 s{sDst}, s{sDst}, {CHUNK_H}")
    a(f"s_mov_b32 s{sSrc}, s{sT1}")
    for p in pieces(sO, nt): a.ext(p)
    a(f"s_mul_i32 s{sT0}, s3, {HSTRIDE}")
    a(f"s_add_u32 s{sD}, s24, s{sT0}")
    a(f"s_addc_u32 s{sD+1}, s25, 0")
    a(f"s_mov_b32 s{sD+2}, {0 if OPT['k3noh'] else HSTRIDE}")
    a(f"s_add_u32 s{sDEnd}, s{sDLo}, 73728")
    a(f"s_mov_b32 s{sSlot}, {CHUNK_H}")
    a(f"s_add_u32 s{sDst}, s{sDst}, {CHUNK_H}")
    a(f"s_add_u32 s{sSrc}, s{sT1}, {HSTRIDE - CHUNK_H}")
    for _ in range(3 if OPT["k3bl"] else 4):
        for p in pieces(sD, nt): a.ext(p)
        a.ext(advance_h())
    a("s_mov_b64 vcc, 0")
    a("s_branch K3_rdone")
    a.label("K3_rx")
    a(f"s_add_u32 s{sD}, s4, s{sT0}")
    a(f"s_addc_u32 s{sD+1}, s5, 0")
    a(f"s_mov_b32 s{sD+2}, {0 if OPT['k3nox'] else REG}")
    for m in range(3):
        v = vD0 + m
        a(f"v_mul_u32_u24 v20, 43691, v{v}")
        a("v_lshrrev_b32 v20, 25, v20")
        a("v_mul_u32_u24 v21, 864, v20")
        a(f"v_sub_u32 v21, v{v}, v21")
        a("v_add_u32 v22, 768, v21")
        a("v_cmp_gt_i32 vcc, 0, v21")
        a("v_mul_u32_u24 v20, 768, v20")
        a("s_nop 0")
        a("v_cndmask_b32 v21, v21, v22, vcc")
        a(f"v_add_u32 v{v}, v20, v21")
    a(f"s_add_u32 s{sDLo}, s{sT1}, {L_X}")
    a(f"s_mov_b32 s{sDEnd}, 0")
    a(f"s_mov_b32 s{sSlot}, 0")
    a(f"s_mov_b32 s{sDst}, s{sDLo}")
    a(f"s_add_u32 s{sSrc}, s{sT1}, {35 * 12288}")
    if OPT["wwarm"]:
        srd(a, 60, 24, 25, 1179648, W2F)
        a(f"s_lshr_b32 s{sT2}, s2, 3")
        a(f"s_mul_i32 s{sT2}, s{sT2}, 36864")
        a(f"s_mul_i32 s{sT0}, s{sT1}, 3")
        a(f"s_add_u32 s{sT2}, s{sT2}, s{sT0}")
        a("v_lshlrev_b32 v20, 7, v17")
        for i in range(3):
            a(f"buffer_load_dword v{100 + i}, v20, s[60:63], s{sT2} offen")
            a(f"s_add_u32 s{sT2}, s{sT2}, 6144" if False else f"s_add_u32 s{sT2}, s{sT2}, 8192")
    if not OPT["k3bl"]:
        for p in pieces(sD, nt): a.ext(p)
        a.ext(advance_h())
    a("s_mov_b64 vcc, -1")
    a("s_branch K3_rdone")
    a.label("K3_rw")
    a(f"s_add_u32 s{sD}, s24, {W2F}")
    a(f"s_addc_u32 s{sD+1}, s25, 0")
    a(f"s_mov_b32 s{sD+2}, {0 if OPT['k3now'] else 1179648}")
    a(f"s_mul_i32 s{sDLo}, s{sCQ}, 6144")
    a(f"s_add_u32 s{sDEnd}, s{sDLo}, 73728")
    a(f"s_mov_b32 s{sSlot}, 0")
    a(f"s_mov_b32 s{sDst}, s{sDLo}")
    a(f"s_add_u32 s{sSrc}, s{sDLo}, {47 * 24576}")
    for _ in range(5 if OPT["k3skipw"] else 2):
        for p in pieces(sD, wnt): a.ext(p)
        a.ext(advance_w())
    a("s_mov_b64 vcc, 0")
    a.label("K3_rdone")
    a("s_mov_b64 s[50:51], vcc")
    a(f"v_mul_u32_u24 v{vOUT}, 3072, v19")
    a("v_mul_u32_u24 v21, 12, v18")
    a(f"s_mul_i32 s{sT0}, s{sTH}, {96 * 768}")
    a(f"s_mul_i32 s{sT1}, s{sCQ}, 192")
    a(f"s_add_u32 s{sT0}, s{sT0}, s{sT1}")
    a(f"v_add3_u32 v{vOUT}, v{vOUT}, v21, s{sT0}")
    if OPT["outlin"]:
        a(f"v_mul_u32_u24 v{vOUT}, 12, v17")
        a(f"s_mul_i32 s{sT0}, s{sWV}, 18432")
        a(f"v_add_u32 v{vOUT}, s{sT0}, v{vOUT}")
    a(f"s_mul_i32 s{sT0}, s{sCQ}, 6144")
    a(f"v_lshl_add_u32 v{vWB0}, v17, 4, s{sT0}")
    a("v_and_b32 v21, 3, v18")
    a("v_lshrrev_b32 v22, 2, v18")
    a("v_and_b32 v23, 2, v19")
    a("v_xor_b32 v23, v23, v21")
    a("v_lshl_add_u32 v22, v23, 2, v22")
    a("v_lshl_add_u32 v22, v21, 4, v22")
    a("v_lshlrev_b32 v22, 4, v22")
    a("v_and_b32 v23, 1, v19")
    a("v_lshl_add_u32 v22, v23, 3, v22")
    a(f"s_mul_i32 s{sT0}, s{sTH}, 6144")
    a(f"s_add_u32 s{sT0}, s{sT0}, {L_H}")
    a(f"v_add_u32 v{vHB0}, s{sT0}, v22")
    a(f"v_xor_b32 v{vHB1}, 64, v{vHB0}")
    a(f"s_lshl_b32 s{sT0}, s{sCQ}, 2")
    a("v_lshl_add_u32 v22, v21, 1, v19")
    a(f"v_add_u32 v22, s{sT0}, v22")
    a("v_and_b32 v22, 15, v22")
    a("v_mul_u32_u24 v22, 48, v22")
    a("v_mul_u32_u24 v23, 768, v18")
    a(f"v_add_u32 v22, {L_X}, v22")
    a(f"v_add_u32 v{vXR}, v22, v23")
    a("v_lshrrev_b32 v22, 2, v18")
    a("v_cmp_eq_u32 vcc, v22, v19")
    a("v_mov_b32 v23, 0x3f80")
    a("s_nop 0")
    a("v_cndmask_b32 v23, 0, v23, vcc")
    for e in range(4):
        a(f"v_cmp_eq_u32 vcc, {e}, v21")
        a("s_nop 1")
        a(f"v_cndmask_b32 v{SEL+e}, 0, v23, vcc")
        a(f"v_lshlrev_b32 v{SEL+4+e}, 16, v{SEL+e}")
    a("s_mov_b64 vcc, s[50:51]")
    a(f"s_mov_b32 s{sWS}, 0")
    a(f"s_mov_b32 s{sHS}, 0")
    a(f"s_mov_b32 s{sJ}, 0")
    a(f"s_mov_b32 s{sOB}, {2 * 192 * 768}")
    a(f"s_mov_b32 s{sEV}, 11")
    a(f"s_waitcnt vmcnt({18 if KC else 24})")
    a(f"s_sub_u32 s{sT0}, s{sWV}, 4")
    a(f"s_cmp_lt_u32 s{sT0}, 2")
    a("s_cbranch_scc1 K3_pw")
    a("s_waitcnt vmcnt(6)")
    a("s_cbranch_vccz K3_pw")
    a("s_waitcnt vmcnt(0)")
    a.label("K3_pw")
    for p in range(1, NBP):
        for n in range(6):
            src = 24 + n if n < 3 else 25 + n
            a(f"v_add_f32 v{src}, v{src}, v{src + 8*p}")
    for n in range(6):
        src = 24 + n if n < 3 else 25 + n
        if KC: a(f"v_mov_b32 v{BV[n]}, v{src}")
        else:
            for r in range(4): a(f"v_mov_b32 v{BIAS+4*n+r}, v{src}")

    stamp(a, 1)

    def accr(n, t): return ACC + (t * 6 + n) * 4
    pieces0 = pieces
    def pieces(srd_, sfx="", _p=pieces0):
        P = _p(srd_, sfx)
        if OPT["k3skiph"] and sfx != "": P = [[x for x in p if not x.startswith("buffer")] for p in P]
        if OPT["k3skipw"] and sfx == "": P = [[x for x in p if not x.startswith("buffer")] if i >= 6 - OPT["k3skipw"] else p for i, p in enumerate(P)]
        return P
    def Lseg(u4, grp, tag):
        L = [f"v_add_u32 v{vWR}, s{sWS}, v{vWB0}", f"v_add_u32 v{vHR0}, s{sHS}, v{vHB0}", f"v_add_u32 v{vHR1}, s{sHS}, v{vHB1}"]
        R = []
        for t in range(6):
            R.append(f"ds_read_b128 {q(WB + 4*t)}, v{vWR} offset:{t*1024}")
            R.append(f"ds_read_b64_tr_b16 {q(HB + 4*t, 2)}, v{vHR0} offset:{t*1024}")
            R.append(f"ds_read_b64_tr_b16 {q(HB + 4*t + 2, 2)}, v{vHR1} offset:{t*1024}")
        if KC:
            R = [f"ds_read_b128 {q(WB + 4*t)}, v{vWR} offset:{t*1024}" for t in range(6)]
            if u4 % 2 == 0:
                for t in range(6):
                    for c in range(2):
                        R.append(f"ds_read_b64_tr_b16 {q(HB + 24*c + 4*t, 2)}, v{vHR0} offset:{c*12288 + t*1024}")
                        R.append(f"ds_read_b64_tr_b16 {q(HB + 24*c + 4*t + 2, 2)}, v{vHR1} offset:{c*12288 + t*1024}")
            else: L = L[:1]
            P = pieces(sD, wnt if grp == 0 else nt); P[5] = P[5] + (advance_w() if grp == 0 else advance_h())
            def gd(X, z): return X if grp == 0 or u4 == 0 else [f"s_cbranch_vccnz K3_{tag}sl{u4}{z}"] + X + [f"K3_{tag}sl{u4}{z}:"]
            na = 6 if grp == 1 or u4 % 2 or (tag == "f" and u4 == 0) else OPT["k3ne"]
            if u4 % 2 == 0:
                for m in range(5):
                    if m < na: L += gd(P[m], "abcde"[m])
                    L += R[6*m:6*m+6]
                if na == 6: L += gd(P[5], "f")
            else:
                L += gd(P[0], "a") + R + gd([x for p in P[1:] for x in p], "b")
        elif grp == 0:
            P = pieces(sD, wnt); P[5] = P[5] + advance_w()
            na = 6 if tag == "f" and u4 == 0 else OPT["k3na"]
            pos = [0, 6, 12, 18, 18, 18]
            for k in range(19):
                for m in range(na):
                    if pos[m] == k: L += P[m]
                if k < 18: L.append(R[k])
        elif OPT["k3bl"]:
            P = pieces(sD, nt); P[5] = P[5] + advance_h()
            def gd(X, z): return X if u4 == 0 else [f"s_cbranch_vccnz K3_{tag}sl{u4}{z}"] + X + [f"K3_{tag}sl{u4}{z}:"]
            if OPT["k3pre"]: L = R[15:] + gd(P[0] + P[1] + P[2] + P[3] + P[4] + P[5], "d")
            else: L += gd(P[0], "a") + R[:6] + gd(P[1], "b") + R[6:12] + gd(P[2], "c") + R[12:] + gd(P[3] + P[4] + P[5], "d")
        else:
            L += R
        if u4 == 3:
            lab = f"K3_{grp}{tag}_xr"
            L += [f"s_sub_u32 s{sT0}, s{sEV}, {6*grp}", f"s_cmp_lt_u32 s{sT0}, 6", f"s_cbranch_scc0 {lab}"]
            for p in range(3):
                L.append(f"ds_read2_b32 {q(XT + 4*p, 2)}, v{vXR} offset0:{p} offset1:{p+3}")
                L.append(f"ds_read2_b32 {q(XT + 4*p + 2, 2)}, v{vXR} offset0:{p+6} offset1:{p+9}")
            L.append(lab + ":")
        L += [f"s_add_u32 s{sWS}, s{sWS}, 24576", f"s_cmp_eq_u32 s{sWS}, 73728", f"s_cselect_b32 s{sWS}, 0, s{sWS}",
              f"s_add_u32 s{sHS}, s{sHS}, {24576 if KC else 12288}", f"s_cmp_eq_u32 s{sHS}, 73728", f"s_cselect_b32 s{sHS}, 0, s{sHS}"][:3 if KC and u4 % 2 else 6]
        return L
    def pre_reads():
        AD = [f"v_add_u32 v{vWR}, s{sWS}, v{vWB0}", f"v_add_u32 v{vHR0}, s{sHS}, v{vHB0}", f"v_add_u32 v{vHR1}, s{sHS}, v{vHB1}"]
        R = []
        for t in range(6):
            R.append(f"ds_read_b128 {q(WB + 4*t)}, v{vWR} offset:{t*1024}")
            R.append(f"ds_read_b64_tr_b16 {q(HB + 4*t, 2)}, v{vHR0} offset:{t*1024}")
            R.append(f"ds_read_b64_tr_b16 {q(HB + 4*t + 2, 2)}, v{vHR1} offset:{t*1024}")
        return AD, R
    def vmwait(strict, loose, lab):
        if (OPT["k3nv"] >> {6: 0, 0: 1}.get(strict, 2)) & 1: return []
        if loose is None or OPT["k3nost"]: return [f"s_waitcnt vmcnt({strict})"]
        return [f"s_waitcnt vmcnt({loose})", f"s_cmp_lg_u32 s{sJ}, 0", f"s_cbranch_scc1 {lab}", f"s_waitcnt vmcnt({strict})", lab + ":"]
    def Mseg(u4, grp, tag):
        first = tag == "f" and u4 == 0
        Ms = []
        for t in range(6):
            for n in range(6):
                c = q(BIAS + 4*n) if first else q(accr(n, t))
                Ms.append([f"v_mfma_f32_16x16x32_bf16 {q(accr(n, t))}, {q(HB + 4*t)}, {q(WB + 4*n)}, {c}"])
        if KC:
            Ms = []
            for t in range(6):
                for n3 in range(3):
                    for c in range(2):
                        ac = q(accr(3 * (u4 % 2) + n3, t))
                        Ms.append([f"v_mfma_f32_16x16x32_bf16 {ac}, {q(HB + 24*c + 4*t)}, {q(WB + 12*c + 4*n3)}, {q(XT + 4*n3) if tag == 'f' and u4 < 2 and c == 0 else ac}"])
        if grp == 0:
            P = pieces(sD, wnt); P[5] = P[5] + advance_w()
            na = 6 if first or (KC and u4 % 2) else OPT["k3ne" if KC else "k3na"]
            for m in range(na, 6): Ms[1 + (m - na) * OPT["k3as"]] += P[m]
            e = OPT["k3eb"]
            loose = 30 if tag == "f" and u4 < 2 else None
            Ms[35 - e] += (["s_setprio 3"] if e else []) + vmwait(6, loose, f"K3_0{tag}_vw{u4}") + ["s_barrier"]
        elif not OPT["k3bl"]:
            P = pieces(sD, nt); P[5] = P[5] + advance_h()
            for m in range(0, 6, 2):
                X = P[m] + P[m + 1]
                if u4 != 3: X = [f"s_cbranch_vccnz K3_{tag}sd{u4}{m}"] + X + [f"K3_{tag}sd{u4}{m}:"]
                Ms[OPT["k3b0"] + (m // 2) * OPT["k3bs"]] += X
        if grp == 1 and OPT["k3pre"]:
            AD, R = pre_reads()
            Ms[0].append(AD[1]); Ms[1].append(AD[2]); Ms[2].append(AD[0])
            for t in range(5):
                Ms[6 * t + 6].append(R[3 * t + 1]); Ms[6 * t + 7].append(R[3 * t + 2])
                Ms[31 + t].append(R[3 * t])
        return [x for m in Ms for x in m]
    def Xseg(grp, tag):
        g = f"{grp}{tag}"
        L = [f"s_cmp_lt_u32 s{sT0}, 6", f"s_cbranch_scc0 K3_{g}_xdone"]
        for t in range(6):
            if t < 5: L += [f"s_cmp_lg_u32 s{sT0}, {t}", f"s_cbranch_scc1 K3_{g}_x{t+1}"]
            for n in range(6):
                L.append(f"v_mfma_f32_16x16x32_bf16 {q(accr(n, t))}, {q(XT + 4*(n >> 1))}, {q(SEL + 4*(n & 1))}, {q(accr(n, t))}")
            if t < 5: L += [f"s_branch K3_{g}_xdone", f"K3_{g}_x{t+1}:"]
        L += [f"K3_{g}_xdone:", f"s_sub_u32 s{sEV}, s{sEV}, 1"]
        return L
    ofl = ["", " nt", " sc1", " sc0 sc1", " sc0"][OPT["out_nt"]]
    def epilogue(final=False):
        L = ["s_nop 7"]
        idx = 0
        for t in range(6):
            L.append(f"s_mov_b32 s{sT1}, s{sOB}" if t == 0 else f"s_add_u32 s{sT1}, s{sT1}, {3072 if OPT['outlin'] else 12288}")
            for r in range(4):
                tq = XT + 4 * (idx % (3 if KC else 4)); idx += 1
                for j in range(3): L.append(f"v_cvt_pk_bf16_f32 v{tq+j}, v{accr(2*j, t)+r}, v{accr(2*j+1, t)+r}")
                if not OPT["k3nost"]: L.append(f"buffer_store_dwordx3 {q(tq, 3)}, v{vOUT}, s[{sO}:{sO+3}], s{sT1} offen offset:{r*768}" + ofl)
        L += [f"s_sub_u32 s{sOB}, s{sOB}, {192 * 768}"]
        return L
    def block(grp, tag):
        if OPT["prof"] == 2: a.label(f"K3_np{tag}{grp}")
        if OPT["prof"] == 1 and grp == 1:
            a(f"s_cmp_lg_u32 s{sWV}, 7")
            a(f"s_cbranch_scc1 K3_np{tag}")
            a("s_memrealtime s[90:91]")
            a("s_waitcnt lgkmcnt(0)")
            a("v_mov_b32 v12, s90")
            a("v_mov_b32 v13, 0")
            a("buffer_store_dword v12, v13, s[84:87], s83 offen")
            a("s_add_u32 s83, s83, 4")
            a.label(f"K3_np{tag}")
        for u4 in range(4):
            a.ext(Lseg(u4, grp, tag))
            if OPT["prof"] == 2 and u4 == 0 and grp == OPT["latw"] // 4:
                a(f"s_cmp_lg_u32 s{sWV}, {OPT['latw']}")
                a(f"s_cbranch_scc1 K3_nq{tag}")
                a("s_memrealtime s[92:93]")
                a("s_waitcnt vmcnt(0) lgkmcnt(0)")
                a("s_memrealtime s[94:95]")
                a("s_waitcnt lgkmcnt(0)")
                a("s_sub_u32 s94, s94, s92")
                a("s_add_u32 s82, s82, s94")
                a("v_mov_b32 v12, s82")
                a("v_mov_b32 v13, 0")
                a("buffer_store_dword v12, v13, s[84:87], s83 offen")
                a("s_add_u32 s83, s83, 4")
                a.label(f"K3_nq{tag}")
            if tag == "f" and u4 == 0:
                a(f"s_cmp_eq_u32 s{sJ}, 0")
                a(f"s_cbranch_scc1 K3_{grp}_noep")
                if OPT["stamp"]:
                    a(f"s_sub_u32 s96, s{sJ}, 48")
                    stamp2(a, 2, 4, 96)
                a.ext(epilogue())
                stamp2(a, 3, 5, 96)
                a.label(f"K3_{grp}_noep")
            if KC and tag == "f" and u4 < 2:
                a("s_nop 1")
                for i in range(12): a(f"v_mov_b32 v{XT+i}, v{BV[3*u4 + i//4]}")
            if grp == 0:
                a("s_waitcnt lgkmcnt(0)")
                a(f"s_setprio {OPT['k3pa']}")
            else:
                if u4 == 2:
                    a(f"s_cbranch_vccz K3_{tag}nx")
                    a.ext(vmwait(0, 24 if tag == "f" else None, "K3_fxw"))
                    a.label(f"K3_{tag}nx")
                if not KC: a.ext(vmwait(24, 48 if tag == "f" else None, f"K3_fh{u4}"))
                elif u4 % 2: a.ext(vmwait(18, 42 if tag == "f" else None, f"K3_fh{u4}"))
                a("s_waitcnt lgkmcnt(0)")
                a("s_barrier")
                a(f"s_setprio {OPT['k3pb']}")
            if u4 == 3: a.ext(Xseg(grp, tag))
            a.ext(Mseg(u4, grp, tag))
            a(f"s_setprio {OPT['k3pl']}")

    if OPT["prof"]:
        srd(a, 84, 24, 25, 65536, TAIL + (5 << 20))
        a("s_lshl_b32 s83, s2, 8")
        a("s_mov_b32 s82, 0")
    a("s_barrier")
    if OPT["k3pre"]:
        AD, R = pre_reads(); a.ext(AD + R[:15])
    a(f"s_cmp_lg_u32 s{sTH}, 0")
    a("s_cbranch_scc1 K3_1_tile")
    for grp in range(2):
        a.label(f"K3_{grp}_tile")
        a(f"s_mov_b32 s{sEV}, 11")
        block(grp, "f")
        a(".p2align 6")
        a.label(f"K3_{grp}_loop")
        block(grp, "l")
        a(f"s_cmp_lg_u32 s{sEV}, -1")
        a(f"s_cbranch_scc1 K3_{grp}_loop")
        a(f"s_add_u32 s{sJ}, s{sJ}, 48")
        a(f"s_cmp_lg_u32 s{sJ}, 144")
        a(f"s_cbranch_scc1 K3_{grp}_tile")
        if grp == 0:
            a("s_branch K3_fin0")
    a.label("K3_fin0")
    stamp(a, 6)
    a.ext(epilogue(True))
    a.label("K3_fin")
    if OPT["stamp"]: a("s_waitcnt vmcnt(0)")
    stamp(a, 7)
    stamp_dump(a, 8, sWV, "K3", 1)
    a.label("K3_end")
    a("s_endpgm")
    return a, desc("gemm2_kernel", 256, 100), f"; @launch kernel=gemm2_kernel grid=(256,1,1) block=(512,1,1) lds={L_X + 12288}"

def main():
    ks = [k1(), k2(), k3r() if OPT['roll'] else k3()]
    errs = []
    for a, _, l in ks: errs += check(a.lines, l.split("=")[1].split()[0])
    for a, _, l in ks:
        for i, x in enumerate(a.lines):
            if x.startswith("s_set_gpr_idx_on"): assert a.lines[i + 3] == "s_set_gpr_idx_off", "gpr idx not closed"
    for e in errs: print(e, file=sys.stderr)
    hdr = open("standalone__modern_conv_block_slak__vision.s.ref").read().split("\n")
    hdr = [l for l in hdr if l.startswith(";") and "@launch" not in l and "Override" not in l and "grid=ceil" not in l]
    out = "\n".join(hdr) + "\n" + "\n".join(l for _, _, l in ks) + "\n"
    out += '.amdgcn_target "amdgcn-amd-amdhsa--gfx950"\n.text\n'
    for a, _, _ in ks: out += a.text()
    out += '.section .rodata,"a"\n'
    for _, d, _ in ks: out += d
    open(sys.argv[1], "w").write(out)
    print("written", sys.argv[1], len(out), "bytes; hazards:", len(errs))
main()
```

```python
import sys, struct, math
from asmlib import Asm, check

OPT = dict(f16=1, st_nt=1, h_nt=1, w_nt=0, out_nt=0, x_nt=1, xp_nt=1, ord=4, ntail=1, k3skipw=0, kf=0, k3pre=0, prof=0, roll=0, stg=1, mp0=2, mpd=2, ipf=0, k3pl=0, wwarm=0, latw=7, dwarm=1, sdot=2, k3c=1, k3ne=6, k3nv=0, k3skiph=0, npf=1, kmask=0, bgb=-1, stamp=0, denorm=3, pm=3, pg0=0, pg1=1, bg=4, gb=2, gp=2, stm=7, stm0=7, w2pf=1, sga=7,
           k3pa=1, k3pb=2, k3eb=3, k3nost=0, k3noh=0, k3nox=0, k3now=0, k3na=6, k3as=5, k3b0=18, k3bs=5, k3bl=1, outlin=0, nostore=0)
for a in sys.argv[2:]:
    k, v = a.split("="); OPT[k] = int(v, 0)

def f32(x): return "0x%08x" % struct.unpack("<I", struct.pack("<f", x))[0]
def f16bits(x): return struct.unpack("<H", struct.pack("<e", x))[0]

M = 147456; C = 384; F = 1536
XBYTES = M * C * 2
WSBYTES = 452984832
TILE_H = 589824; CHUNK_H = 12288; HSTRIDE = 3 * TILE_H - 2 * CHUNK_H
TAIL = 256 * HSTRIDE
W2F = TAIL + 1179648; B2 = TAIL; SSQ = TAIL + 2363392
NREP = 8
K1c = 2.0 * math.sqrt(2.0 / math.pi) * math.log2(math.e)
K3c = K1c * 0.044715
if OPT["f16"]:
    C0 = 1258.0 / 256.0
    ALPHA = K1c / C0
else:
    ALPHA = K3c ** (1.0 / 3.0)
    C0 = K1c / ALPHA

def srd(a, d, lo, hi, nrec, off=0):
    if off:
        a(f"s_add_u32 s{d}, s{lo}, {off}")
        a(f"s_addc_u32 s{d+1}, s{hi}, 0")
    else:
        a(f"s_mov_b32 s{d}, s{lo}")
        a(f"s_mov_b32 s{d+1}, s{hi}")
    a(f"s_mov_b32 s{d+2}, {nrec}")
    a(f"s_mov_b32 s{d+3}, 0x00020000")

def stamp(a, idx, base=64):
    if not OPT["stamp"]: return
    a("s_memrealtime s[90:91]")
    a("s_memtime s[92:93]")
    a("s_waitcnt lgkmcnt(0)")
    a(f"s_mov_b32 s{base+2*idx}, s90")
    a(f"s_mov_b32 s{base+2*idx+1}, s92")

def stamp2(a, ia, ib, creg, base=64):
    if not OPT["stamp"]: return
    a("s_memrealtime s[90:91]")
    a("s_memtime s[92:93]")
    a("s_waitcnt lgkmcnt(0)")
    a(f"s_cmp_eq_u32 s{creg}, 0")
    a(f"s_cselect_b32 s{base+2*ia}, s90, s{base+2*ia}")
    a(f"s_cselect_b32 s{base+2*ia+1}, s92, s{base+2*ia+1}")
    a(f"s_cselect_b32 s{base+2*ib}, s{base+2*ib}, s90")
    a(f"s_cselect_b32 s{base+2*ib+1}, s{base+2*ib+1}, s92")

def stamp_dump(a, n, wave_sgpr, tag, kidx, base=64):
    if not OPT["stamp"]: return
    a(f"s_and_b32 s94, s{wave_sgpr}, 3")
    a("s_cmp_lg_u32 s94, 0")
    a(f"s_cbranch_scc1 {tag}_nodump")
    a("s_load_dwordx2 s[90:91], s[0:1], 64")
    a("s_waitcnt lgkmcnt(0)")
    a(f"s_add_u32 s88, s90, {TAIL + (4 << 20) + kidx * 65536}")
    a("s_addc_u32 s89, s91, 0")
    a("s_mov_b32 s90, 65536")
    a("s_mov_b32 s91, 0x00020000")
    a(f"s_lshl_b32 s94, s{wave_sgpr}, 5")
    a("s_lshl_b32 s95, s2, 8")
    a("s_add_u32 s94, s94, s95")
    a("v_mov_b32 v8, 0")
    for i in range(n):
        a(f"v_mov_b32 v10, s{base+2*i}")
        a(f"v_mov_b32 v11, s{base+2*i+1}")
        a(f"buffer_store_dwordx2 v[10:11], v8, s[88:91], s94 offen offset:{i*8}")
        a("s_waitcnt vmcnt(0)")
    a.label(f"{tag}_nodump")

def q(r, n=4): return f"v[{r}:{r+n-1}]"

def kernel_start(a, name):
    a(f".globl {name}")
    a(".p2align 8")
    a(f".type {name},@function")
    a.label(name)

def code_prefetch(a, start, end, vt, st):
    if not OPT["ipf"]: return
    a(f"s_getpc_b64 s[{st}:{st+1}]")
    a(f"s_and_b32 s{st}, s{st}, 0xffffff00")
    a(f"s_mov_b32 s{st+2}, {end}-{start}")
    a(f"s_mov_b32 s{st+3}, 0x00020000")
    a(f"v_lshlrev_b32 v{vt}, 7, v0")
    a(f"buffer_load_dword v{vt}, v{vt}, s[{st}:{st+3}], 0 offen")

def desc(name, vgpr, sgpr=96):
    acc = min(256, (vgpr + 3) // 4 * 4)
    return f""".p2align 6
.amdhsa_kernel {name}
  .amdhsa_next_free_vgpr {vgpr}
  .amdhsa_next_free_sgpr {sgpr}
  .amdhsa_accum_offset {acc}
  .amdhsa_group_segment_fixed_size 0
  .amdhsa_kernarg_size 72
  .amdhsa_user_sgpr_count 2
  .amdhsa_user_sgpr_kernarg_segment_ptr 1
  .amdhsa_system_sgpr_workgroup_id_x 1
  .amdhsa_float_denorm_mode_32 {OPT['denorm']}
.end_amdhsa_kernel
"""

def gelu_batch(b, TMP, SSr, first, sC0, sC0H):
    L = []
    R = [b + i for i in range(8)]
    if not OPT["f16"]:
        T = [TMP + i for i in range(8)]
        for v, t in zip(R, T): L.append(f"v_fma_f32 v{t}, -v{v}, v{v}, s{sC0}")
        for v, t in zip(R, T): L.append(f"v_mul_f32 v{t}, v{t}, v{v}")
        for t in T: L.append(f"v_exp_f32 v{t}, v{t}")
        for t in T: L.append(f"v_add_f32 v{t}, 1.0, v{t}")
        for t in T: L.append(f"v_rcp_f32 v{t}, v{t}")
        for v, t in zip(R, T): L.append(f"v_mul_f32 v{t}, v{v}, v{t}")
        Gv = T
    else:
        H = [TMP + i for i in range(4)]; Pp = [TMP + 4 + i for i in range(4)]
        for i in range(4): L.append(f"v_cvt_pk_f16_f32 v{H[i]}, v{R[2*i]}, v{R[2*i+1]}")
        for i in range(4): L.append(f"v_pk_fma_f16 v{Pp[i]}, v{H[i]}, v{H[i]}, s{sC0H} neg_lo:[1,0,0] neg_hi:[1,0,0]")
        for i in range(4): L.append(f"v_pk_mul_f16 v{Pp[i]}, v{Pp[i]}, v{H[i]}")
        for i in range(4): L.append(f"v_exp_f16 v{H[i]}, v{Pp[i]}")
        for i in range(4): L.append(f"v_exp_f16_sdwa v{H[i]}, v{Pp[i]} dst_sel:WORD_1 dst_unused:UNUSED_PRESERVE src0_sel:WORD_1")
        for i in range(4): L.append(f"v_pk_add_f16 v{H[i]}, v{H[i]}, 1.0 op_sel_hi:[1,0]")
        for i in range(4): L.append(f"v_rcp_f16 v{Pp[i]}, v{H[i]}")
        for i in range(4): L.append(f"v_rcp_f16_sdwa v{H[i]}, v{H[i]} dst_sel:DWORD dst_unused:UNUSED_PAD src0_sel:WORD_1")
        for i in range(4): L.append(f"v_fma_mix_f32 v{R[2*i]}, v{R[2*i]}, v{Pp[i]}, 0 op_sel_hi:[0,1,0]")
        for i in range(4): L.append(f"v_fma_mix_f32 v{R[2*i+1]}, v{R[2*i+1]}, v{H[i]}, 0 op_sel_hi:[0,1,0]")
        Gv = R
    for e in (0, 4, 1, 5, 2, 6, 3, 7) if not OPT['sdot'] else ():
        s_ = SSr + e // 4
        L.append(f"v_mul_f32 v{s_}, v{Gv[e]}, v{Gv[e]}" if first and e % 4 == 0 else f"v_fmac_f32 v{s_}, v{Gv[e]}, v{Gv[e]}")
    for i in range(4): L.append(f"v_cvt_pk_bf16_f32 v{b+i}, v{Gv[2*i]}, v{Gv[2*i+1]}")
    return L

NBP = 6
def k2():
    a = Asm()
    kernel_start(a, "mid_kernel")
    a("s_cmp_ge_u32 s2, 24")
    a("s_cbranch_scc1 K2_end")
    stamp(a, 0)
    a("s_load_dwordx4 s[4:7], s[0:1], 24")
    a("s_load_dwordx2 s[8:9], s[0:1], 40")
    a("s_load_dwordx2 s[10:11], s[0:1], 64")
    a("v_lshrrev_b32 v1, 6, v0")
    a("v_and_b32 v2, 63, v0")
    a("v_readfirstlane_b32 s3, v1")
    a("v_mul_u32_u24 v5, 12, v0")
    a("s_lshr_b32 s30, s2, 2")
    a("s_and_b32 s32, s2, 3")
    a("s_lshl_b32 s31, s30, 3")
    a("s_add_u32 s31, s31, s3")
    a("s_mul_i32 s33, s32, 192")
    a(f"s_mul_i32 s34, s31, {32 * 768}")
    a("s_add_u32 s33, s33, s34")
    a("v_lshrrev_b32 v3, 4, v2")
    a("v_and_b32 v4, 1, v3")
    a("v_lshlrev_b32 v4, 4, v4")
    a("v_lshrrev_b32 v3, 1, v3")
    a("v_lshl_add_u32 v3, v3, 3, v4")
    a("v_mul_u32_u24 v7, 768, v3")
    a("v_and_b32 v6, 15, v2")
    a("v_mul_u32_u24 v4, 12, v6")
    a("v_add_u32 v7, v4, v7")
    a("s_lshl_b32 s35, s31, 6")
    a("v_lshlrev_b32 v4, 1, v3")
    a("s_waitcnt lgkmcnt(0)")
    srd(a, 24, 10, 11, WSBYTES - TAIL, TAIL)
    a(f"s_mov_b32 s34, {SSQ - TAIL}")
    for r in range(NREP):
        a(f"buffer_load_dwordx3 {q(32+4*r, 3)}, v5, s[24:27], s34 offen")
        if r < NREP - 1: a("s_add_u32 s34, s34, 6144")
    srd(a, 12, 4, 5, C * F * 2)
    srd(a, 16, 6, 7, F * 2)
    srd(a, 20, 8, 9, F * 2)
    W = 64; U = 96
    for e in range(8):
        if e == 4: a("s_add_u32 s33, s33, 3072")
        a(f"buffer_load_dwordx3 {q(W + 4*e, 3)}, v7, s[12:15], s33 offen offset:{(e % 4) * 768}")
    a("buffer_load_dwordx4 v[16:19], v4, s[16:19], s35 offen")
    a("buffer_load_dwordx4 v[12:15], v4, s[20:23], s35 offen")
    a("s_waitcnt vmcnt(10)")
    stamp(a, 1)
    for st in (4, 2, 1):
        for r in range(st):
            for k in range(3): a(f"v_add_f32 v{32+4*r+k}, v{32+4*r+k}, v{32+4*(r+st)+k}")
    a(f"s_mov_b32 s36, {f32(1.0 / (ALPHA * ALPHA))}")
    a(f"v_mov_b32 v20, {f32(1e-6)}")
    for k in range(3): a(f"v_fma_f32 v{32+k}, v{32+k}, s36, v20")
    for k in range(3): a(f"v_sqrt_f32 v{32+k}, v{32+k}")
    a("s_nop 0")
    for k in range(3): a(f"ds_write_b32 v5, v{32+k} offset:{4*k}")
    a("v_add_f32 v21, v32, v33")
    a("v_add_f32 v21, v21, v34")
    for ctl in ("row_shr:1", "row_shr:2", "row_shr:4", "row_shr:8"):
        a("s_nop 1")
        a(f"v_add_f32_dpp v21, v21, v21 {ctl} row_mask:0xf bank_mask:0xf bound_ctrl:0")
    a("s_nop 1")
    a("v_readlane_b32 s40, v21, 15")
    a("v_readlane_b32 s41, v21, 31")
    a("v_readlane_b32 s42, v21, 47")
    a("v_readlane_b32 s43, v21, 63")
    a("s_nop 1")
    a("v_mov_b32 v22, s40")
    a("v_add_f32 v22, s41, v22")
    a("v_add_f32 v22, s42, v22")
    a("v_add_f32 v22, s43, v22")
    a("s_lshl_b32 s37, s3, 2")
    a("v_mov_b32 v23, s37")
    a("ds_write_b32 v23, v22 offset:6144")
    a("s_waitcnt lgkmcnt(0)")
    a("s_barrier")
    stamp(a, 2)
    a("v_mov_b32 v23, 0")
    a("ds_read_b128 v[24:27], v23 offset:6144")
    a("ds_read_b128 v[28:31], v23 offset:6160")
    a("s_lshl_b32 s37, s31, 7")
    a("v_lshlrev_b32 v4, 2, v3")
    a("v_add_u32 v4, s37, v4")
    a("ds_read_b128 v[32:35], v4")
    a("ds_read_b128 v[36:39], v4 offset:16")
    a("s_waitcnt vmcnt(0)")
    for e in range(8):
        for d in range(3):
            a(f"v_lshlrev_b32 v{U + 6*e + 2*d}, 16, v{W + 4*e + d}")
            a(f"v_and_b32 v{U + 6*e + 2*d + 1}, 0xffff0000, v{W + 4*e + d}")
    a("s_waitcnt lgkmcnt(0)")
    for st in (4, 2, 1):
        for r in range(st): a(f"v_add_f32 v{24+r}, v{24+r}, v{24+r+st}")
    a(f"v_mul_f32 v24, {f32(1.0 / F)}, v24")
    a(f"v_add_f32 v24, {f32(1e-6)}, v24")
    a("v_rcp_f32 v24, v24")
    a(f"s_mov_b32 s36, {f32(1.0 / ALPHA)}")
    for e in range(8):
        src = 16 + e // 2
        a(f"v_lshlrev_b32 v40, 16, v{src}" if e % 2 == 0 else f"v_and_b32 v40, 0xffff0000, v{src}")
        a(f"v_mul_f32 v{32+e}, v{32+e}, v24")
        a(f"v_fma_f32 v{32+e}, v{32+e}, v40, 1.0")
        a(f"v_mul_f32 v{32+e}, s36, v{32+e}")
    if OPT["k3c"]:
        a("s_sub_u32 s44, 47, s31")
        a("s_and_b32 s45, s44, 1")
        a("s_andn2_b32 s44, s44, 1")
        a("s_sub_u32 s44, 47, s44")
        a("s_mul_i32 s33, s44, 24")
        a("s_mul_i32 s45, s45, 3")
        a("s_add_u32 s33, s33, s45")
    else:
        a("s_mul_i32 s33, s31, 24")
    a("s_mul_i32 s46, s32, 6")
    a("s_add_u32 s33, s33, s46")
    a("s_lshl_b32 s33, s33, 10")
    a(f"s_add_u32 s33, s33, {W2F - TAIL}")
    a("s_sub_u32 s34, s33, 24576" if OPT["k3c"] else "s_add_u32 s34, s33, 3072")
    a("v_lshlrev_b32 v43, 4, v2")
    for n in range(6):
        T = 44 + 8 * (n % 2); O = W + 4 * n
        for e in range(8): a(f"v_mul_f32 v{T+e}, v{U + 6*e + n}, v{32+e}")
        for i in range(4): a(f"v_cvt_pk_bf16_f32 v{O+i}, v{T+2*i}, v{T+2*i+1}")
        a(f"buffer_store_dwordx4 {q(O)}, v43, s[24:27], s{33 + n // 3} offen offset:{(n % 3) * 1024}")
    for e in range(8):
        a(f"v_lshlrev_b32 v41, 16, v{12 + e // 2}" if e % 2 == 0 else f"v_and_b32 v41, 0xffff0000, v{12 + e // 2}")
        for n in range(6): a(f"v_mul_f32 v{24+n}, v41, v{U + n}" if e == 0 else f"v_fmac_f32 v{24+n}, v41, v{U + 6*e + n}")
    a("v_mul_u32_u24 v43, 24, v0")
    for d in range(3): a(f"ds_write_b64 v43, {q(24 + 2*d, 2)} offset:{6400 + 8*d}")
    a("s_waitcnt lgkmcnt(0)")
    a("s_barrier")
    a("s_cmp_ge_u32 s3, 2")
    a("s_cbranch_scc1 K2_end")
    a("v_lshlrev_b32 v43, 2, v0")
    for w in range(32): a(f"ds_read_b32 v{U + w}, v43 offset:{6400 + 384*w}")
    a("s_waitcnt lgkmcnt(0)")
    for st in (16, 8, 4, 2, 1):
        for r in range(st): a(f"v_add_f32 v{U+r}, v{U+r}, v{U+r+st}")
    a("s_mul_i32 s39, s30, 1536")
    a("s_mul_i32 s38, s32, 384")
    a("s_add_u32 s38, s38, s39")
    a(f"s_add_u32 s38, s38, {B2 - TAIL}")
    a("v_cmp_gt_u32 vcc, 96, v0")
    a("s_and_saveexec_b64 s[40:41], vcc")
    a(f"buffer_store_dword v{U}, v43, s[24:27], s38 offen")
    a("s_mov_b64 exec, s[40:41]")
    if OPT["stamp"]: a("s_waitcnt vmcnt(0)")
    stamp(a, 3)
    stamp_dump(a, 4, 3, "K2", 2)
    a.label("K2_end")
    a("s_endpgm")
    return a, desc("mid_kernel", 144, 100 if OPT["stamp"] else 56), "; @launch kernel=mid_kernel grid=(24,1,1) block=(512,1,1) lds=19200"

def k1():
    a = Asm()
    XN = 8; ACC = 152; BB = 200; SQ = 232
    TMP = BB + 16; SS = BB + 24
    vDE, vXS, vRD, vST, vDW, vDO, vRB = 1, 2, 3, 4, 5, 6, 7
    L_DW = 147456
    sX, sW1, sH, sDB = 8, 12, 16, 20
    sWSlo, sWShi, sOUTlo, sOUThi, sDBlo, sDBhi = 24, 25, 26, 27, 28, 29
    (sWV, sGRP, sI, sEND, sRDS, sDSL, sT0, sT1, sC0, sHB, sXB, sREG, sSIG, sT2, sC0H, sDSR, sD0, sST0, sST1, sXN, sDS0, sTK,
     sSLO, sSHI, sDLO, sDHI, sSG0, sCW, sXU) = range(30, 59)
    sHN, sSLN, sSHN, sDSP, sDSN, sDCN, sCW2, sKM = 82, 83, 84, 85, 86, 87, 3, 97
    REG = 3 * 192 * 768
    kernel_start(a, "gemm1_kernel")
    a("s_cmp_ge_u32 s2, 256")
    a("s_cbranch_scc1 K1_end")
    stamp(a, 0)
    a("s_load_dwordx4 s[4:7], s[0:1], 0")
    a(f"s_load_dwordx2 s[{sW1}:{sW1+1}], s[0:1], 16")
    a(f"s_load_dwordx2 s[{sOUTlo}:{sOUThi}], s[0:1], 48")
    a(f"s_load_dwordx2 s[{sDBlo}:{sDBhi}], s[0:1], 56")
    a(f"s_load_dwordx2 s[{sWSlo}:{sWShi}], s[0:1], 64")
    code_prefetch(a, "gemm1_kernel", "K1_end", BB + 20, 60)
    a("v_lshrrev_b32 v8, 6, v0")
    a("v_and_b32 v9, 63, v0")
    a(f"v_readfirstlane_b32 s{sWV}, v8")
    a("v_lshrrev_b32 v12, 3, v9")
    a("v_and_b32 v13, 7, v9")
    a("v_lshrrev_b32 v14, 1, v12")
    a("v_xor_b32 v14, v14, v13")
    a(f"v_mul_u32_u24 v{vXS}, 768, v12")
    a(f"v_lshl_add_u32 v{vXS}, v14, 4, v{vXS}")
    a(f"s_lshr_b32 s{sT0}, s2, 4")
    a(f"s_and_b32 s{sSG0}, s{sT0}, {OPT['sga']}")
    a(f"s_lshl_b32 s{sT0}, s{sT0}, 4")
    a(f"s_and_b32 s{sT1}, s2, 7")
    a(f"s_lshl_b32 s{sT1}, s{sT1}, 1")
    a(f"s_add_u32 s{sT0}, s{sT0}, s{sT1}")
    a(f"s_bfe_u32 s{sT1}, s2, 0x10003")
    a(f"s_add_u32 s{sREG}, s{sT0}, s{sT1}")
    a(f"s_mul_i32 s{sSLO}, s{sT1}, 12")
    a(f"s_add_u32 s{sSHI}, s{sSLO}, 12")
    a(f"s_lshr_b32 s{sGRP}, s{sWV}, 2")
    a(f"s_and_b32 s{sT1}, s{sWV}, 3")
    a(f"s_add_u32 s{sT0}, s{sT0}, s{sGRP}")
    a(f"s_mul_i32 s{sXB}, s{sT0}, {REG}")
    a(f"s_mul_i32 s{sT2}, s{sT1}, {48 * 768}")
    a(f"s_add_u32 s{sXB}, s{sXB}, s{sT2}")
    if not OPT["roll"]: a(f"s_add_u32 s{sXB}, s{sXB}, {2 * 192 * 768}")
    a(f"s_mul_i32 s{sHB}, s{sT0}, {HSTRIDE}")
    if not OPT["roll"]: a(f"s_add_u32 s{sHB}, s{sHB}, {2 * TILE_H}")
    a(f"s_mul_i32 s59, s{sT0}, {REG}")
    if OPT["roll"]: a(f"s_add_u32 s59, s59, {2 * 192 * 768}")
    a(f"s_mul_i32 s{sXN}, s{sREG}, {REG}")
    a(f"s_add_u32 s{sT2}, s{sWV}, 4" if OPT["roll"] else f"s_xor_b32 s{sT2}, s{sWV}, 4")
    a(f"s_mul_i32 s{sT2}, s{sT2}, {48 * 768}")
    a(f"s_add_u32 s{sXN}, s{sXN}, s{sT2}")
    a(f"s_mul_i32 s{sHN}, s{sREG}, {HSTRIDE}")
    a(f"s_xor_b32 s{sT2}, s{sGRP}, {0 if OPT['roll'] else 1}")
    a(f"s_mul_i32 s{sT2}, s{sT2}, {TILE_H}")
    a(f"s_add_u32 s{sHN}, s{sHN}, s{sT2}")
    if OPT["roll"]: a(f"s_add_u32 s{sHN}, s{sHN}, {46 * CHUNK_H}")
    a(f"s_mov_b32 s{sSLN}, 0")
    a(f"s_mov_b32 s{sSHN}, 24")
    a(f"s_mov_b32 s{sDSP}, 23")
    a(f"s_mov_b32 s{sDSN}, -1")
    if OPT["ord"]:
        a(f"s_bitcmp1_b32 s2, {OPT['ord']}")
        a("s_cbranch_scc0 K1_noswap")
        for x, y in ((sXB, sXN), (sHB, sHN), (sSLO, sSLN), (sSHI, sSHN), (sDSP, sDSN)):
            a(f"s_mov_b32 s{sT2}, s{x}"); a(f"s_mov_b32 s{x}, s{y}"); a(f"s_mov_b32 s{y}, s{sT2}")
        a.label("K1_noswap")
    a(f"s_mul_i32 s{sD0}, s{sWV}, 6144")
    a(f"s_mov_b32 s{sCW}, s{sD0}")
    a(f"s_add_u32 s{sCW2}, s{sD0}, 49152")
    a("s_waitcnt lgkmcnt(0)")
    srd(a, sX, 4, 5, XBYTES)

    KPO = [3, 4, 5, 2, 1, 0]
    def xdma(n, pol=None):
        if pol is None:
            if OPT["x_nt"] == OPT["xp_nt"]: return xdma(n, OPT["x_nt"])
            return [f"s_cbranch_vccnz K1_xa{n}"] + xdma(n, OPT["x_nt"]) + [f"s_branch K1_xb{n}", f"K1_xa{n}:"] + xdma(n, OPT["xp_nt"]) + [f"K1_xb{n}:"]
        xnt = " nt" if pol else ""
        tt, kp = divmod(n, 6); kp = KPO[kp]
        return [f"s_add_u32 m0, s{(sCW, sCW2)[n // 3 % 2]}, {(n % 3) * 2048}", f"s_add_u32 s{sXU}, s{sXB}, {tt * 12288 + kp * 128}",
                f"buffer_load_dwordx4 v{vXS}, s[{sX}:{sX+3}], s{sXU} offen{xnt} lds",
                "s_add_u32 m0, m0, 1024", f"s_add_u32 s{sXU}, s{sXU}, 6144",
                f"buffer_load_dwordx4 v{vXS}, s[{sX}:{sX+3}], s{sXU} offen{xnt} lds"]
    srd(a, sH, 6, 7, C * 2)
    a(f"v_lshlrev_b32 v{ACC+4}, 2, v0")
    a(f"buffer_load_dword v{ACC}, v{ACC+4}, s[{sH}:{sH+3}], 0 offen")
    for n in range(6): a.ext(xdma(n, OPT['x_nt']))
    a('s_mov_b64 vcc, 0')

    a("v_and_b32 v10, 15, v9")
    a("v_lshrrev_b32 v11, 4, v9")
    a(f"v_lshlrev_b32 v{vST}, 2, v11")
    a(f"v_xor_b32 v{vST}, v{vST}, v9")
    a(f"v_lshlrev_b32 v{vST}, 4, v{vST}")
    a(f"s_mul_i32 s{sT2}, s{sT1}, 3072")
    a(f"v_add_u32 v{vST}, s{sT2}, v{vST}")
    a(f"v_lshlrev_b32 v{vDW}, 5, v11")
    a(f"v_add_u32 v{vDW}, {L_DW}, v{vDW}")
    a("v_and_b32 v14, 2, v12")
    a("v_xor_b32 v13, v13, v14")
    a(f"v_mul_u32_u24 v{vDE}, 3072, v12")
    a(f"v_lshl_add_u32 v{vDE}, v13, 4, v{vDE}")
    a(f"v_xor_b32 v{vDO}, 64, v{vDE}")
    a("v_lshrrev_b32 v12, 2, v10")
    a("v_lshl_add_u32 v13, v11, 3, v12")
    a(f"v_lshlrev_b32 v{vRB}, 7, v13")
    a("v_lshrrev_b32 v12, 1, v12")
    a("v_and_b32 v13, 1, v11")
    a("v_lshl_add_u32 v12, v13, 1, v12")
    a(f"v_lshl_add_u32 v{vRB}, v12, 5, v{vRB}")
    a("v_and_b32 v12, 3, v10")
    a(f"v_lshl_add_u32 v{vRB}, v12, 3, v{vRB}")
    a(f"s_mov_b32 s{sC0}, {f32(-C0)}")
    h = f16bits(-C0); a(f"s_mov_b32 s{sC0H}, 0x{h:04x}{h:04x}")
    a(f"s_mul_i32 s{sDS0}, s{sWV}, {6 * 24576}")
    a(f"s_add_u32 s{sSIG}, s{sSLO}, s{sSG0}")
    a(f"s_lshl_b32 s{sDLO}, s{sSLO}, 7")
    a(f"s_add_u32 s{sDLO}, s{sDLO}, s{sDS0}")
    a(f"s_lshl_b32 s{sDHI}, s{sSHI}, 7")
    a(f"s_add_u32 s{sDHI}, s{sDHI}, s{sDS0}")
    a(f"s_lshl_b32 s{sDSR}, s{sSG0}, 7")
    a(f"s_add_u32 s{sDSR}, s{sDSR}, s{sDLO}")
    a(f"s_mov_b32 s{sDSL}, s{sD0}")
    a(f"s_mov_b32 s{sTK}, 1")
    a(f"s_mov_b32 s{sW1+2}, {C * F * 2}")
    a(f"s_mov_b32 s{sW1+3}, 0x00020000")
    srd(a, sDB, sDBlo, sDBhi, 256)

    uid = [0]
    def dma():
        P = []
        for k in range(6):
            pre = [f"s_mov_b32 m0, s{sDSL}", f"s_mov_b32 s{sT0}, s{sDSR}"] if k == 0 else ["s_add_u32 m0, m0, 1024", f"s_add_u32 s{sT0}, s{sT0}, 24576"]
            P.append(pre + [f"buffer_load_dwordx4 v{(vDE, vDO)[k % 2]}, s[{sW1}:{sW1+3}], s{sT0} offen lds"])
        P[5] += [f"s_add_u32 s{sDSL}, s{sDSL}, 49152", f"s_cmp_ge_u32 s{sDSL}, 147456", f"s_cselect_b32 s{sDSL}, s{sD0}, s{sDSL}",
                 f"s_add_u32 s{sDSR}, s{sDSR}, 128", f"s_cmp_eq_u32 s{sDSR}, s{sDHI}", f"s_cselect_b32 s{sDSR}, s{sDLO}, s{sDSR}"]
        uid[0] += 1
        P[5] += [f"s_sub_u32 s{sDCN}, s{sDCN}, 1", f"s_cmp_lg_u32 s{sDCN}, 0", f"s_cbranch_scc1 K1_ds{uid[0]}",
                 f"s_lshl_b32 s{sDLO}, s{sSLN}, 7", f"s_add_u32 s{sDLO}, s{sDLO}, s{sDS0}", f"s_lshl_b32 s{sDHI}, s{sSHN}, 7", f"s_add_u32 s{sDHI}, s{sDHI}, s{sDS0}",
                 f"s_lshl_b32 s{sDSR}, s{sSG0}, 7", f"s_add_u32 s{sDSR}, s{sDSR}, s{sDLO}", f"K1_ds{uid[0]}:"]
        return P

    a(f"v_lshlrev_b32 v{ACC+4}, 3, v0")
    a(f"v_add_u32 v{ACC+4}, {L_DW}, v{ACC+4}")
    a("s_waitcnt vmcnt(12)")
    a(f"v_and_b32 v{ACC+2}, 0xffff, v{ACC}")
    a(f"v_and_b32 v{ACC+3}, 0xffff0000, v{ACC}")
    a(f"ds_write_b64 v{ACC+4}, {q(ACC+2, 2)}")
    a(f"v_mov_b32 v{BB+8}, 1")
    a(f"s_cmp_lg_u32 s{sWV}, 0")
    a("s_cbranch_scc1 K1_pj")
    a(f"v_lshlrev_b32 v{ACC+5}, 8, v0")
    a(f"s_and_b32 s{sT0}, s2, {NREP - 1}")
    a(f"s_lshl_b32 s{sT0}, s{sT0}, 2")
    a(f"buffer_atomic_add v{BB+8}, v{ACC+5}, s[{sDB}:{sDB+3}], s{sT0} offen sc0")
    a.label("K1_pj")
    for r in range(SQ, SQ + 24): a(f"v_mov_b32 v{r}, 0")
    srd(a, sH, sWSlo, sWShi, TAIL)
    a(f"s_mov_b32 s{sI}, 0")
    a(f"s_sub_u32 s{sEND}, s{sSHI}, s{sSLO}")
    a(f"s_mov_b32 s{sRDS}, 0")
    a(f"s_mov_b32 s{sKM}, {OPT['kmask']}")
    a(f"s_mov_b32 s{sDCN}, s{sEND}")
    a(f"s_sub_u32 s{sEND}, s{sEND}, 2")
    a("s_waitcnt lgkmcnt(0)")
    a("s_barrier")
    stamp(a, 1)

    def buf(i): return BB + 4 * (i % 8)
    def rd(i):
        ct, ks = divmod(i, 12)
        L = [f"v_xor_b32 v{vRD}, {((ct - 1) ^ ct) << 5}, v{vRD}"] if ks == 0 and ct > 0 else []
        return L + [f"ds_read_b64_tr_b16 {q(buf(i) + 2*u, 2)}, v{vRD} offset:{ks*4096 + u*512}" for u in range(2)]
    def head(): return [f"v_add_u32 v{vRD}, s{sRDS}, v{vRB}"] + [x for i in range(4) for x in rd(i)]

    DWR = [BB + 16, BB + 24]
    S = BB; Q = BB + 4; vTK = BB + 8; vW2 = BB + 10; vXR = BB + 12; vT = BB + 13; vFL = BB + 14
    KSO = [6, 7, 8, 9, 10, 11, 5, 4, 3, 2, 1, 0]
    def dwrd(m): return [f"ds_read_b128 {q(DWR[m % 2] + 4*j)}, v{vDW} offset:{KSO[m % 12]*128 + j*16}" for j in range(2)]
    def xaddr():
        return [f"v_and_b32 v{vT}, 15, v0", f"v_lshlrev_b32 v{vXR}, 7, v{vT}", f"v_bfe_u32 v{vT}, v0, 1, 2", f"v_bfe_u32 v{vFL}, v0, 4, 2",
                f"v_xor_b32 v{vT}, v{vT}, v{vFL}", f"v_lshl_add_u32 v{vXR}, v{vT}, 4, v{vXR}", f"v_add_u32 v{vT}, s{sCW2}, v{vXR}", f"v_add_u32 v{vXR}, s{sCW}, v{vXR}"]
    def xread(n):
        tt, kp = divmod(n, 6); kp = KPO[kp]
        return [f"ds_read_b128 {q(XN + 48*tt + 8*kp + 4*e)}, v{(vXR, vT)[n // 3 % 2]} offset:{(n % 3) * 2048 + e * 64}" for e in range(2)]
    a.ext(xaddr())
    a.label("K1_ln")
    a.ext(dwrd(0))
    def yreg(tt, d): return XN + 48*tt + 2*d if d < 24 else ACC + 2*(d - 24)
    for tt in range(3):
        for m in range(12):
            n = tt * 6 + m // 2; ks = KSO[m]
            if m % 2 == 0:
                if tt == 0: a(f"s_cbranch_vccnz K1_ta{n}")
                a(f"s_waitcnt vmcnt({2 * min(5, 17 - n) + (6 if n > 14 else 0)})")
                a.ext(xread(n))
                if tt == 0: a.label(f"K1_ta{n}")
            last = tt == 2 and m == 11
            if not last: a.ext(dwrd(m + 1))
            a(f"s_waitcnt lgkmcnt({0 if last else 2})")
            if m % 2 == 0:
                if tt == 0:
                    a(f"s_cbranch_vccnz K1_tb{n}")
                    a.ext(xdma(n + 6, OPT["x_nt"]))
                    a.label(f"K1_tb{n}")
                elif n + 6 < 18: a.ext(xdma(n + 6))
                if n in (14, 17):
                    for p in dma(): a.ext(p)
            D = DWR[m % 2]
            for jj in (3, 2, 1, 0):
                d = 4 * ks + jj; x = XN + 48*tt + d; y = yreg(tt, d)
                a(f"v_dot2_f32_bf16 v{y+1}, v{x}, v{D+2*jj+1}, 0")
                a(f"v_dot2_f32_bf16 v{y}, v{x}, v{D+2*jj}, 0")
            for jj in (3, 2, 1, 0):
                y = q(yreg(tt, 4 * ks + jj), 2); s_ = q(S + 2*(jj % 2), 2); q_ = q(Q + 2*(jj % 2), 2)
                if m == 0 and jj >= 2:
                    a(f"v_pk_mul_f32 {s_}, {y}, 1.0 op_sel_hi:[1,0]")
                    a(f"v_pk_mul_f32 {q_}, {y}, {y}")
                else:
                    a(f"v_pk_add_f32 {s_}, {s_}, {y}")
                    a(f"v_pk_fma_f32 {q_}, {y}, {y}, {q_}")
        a(f"v_pk_add_f32 {q(S,2)}, {q(S,2)}, {q(S+2,2)}")
        a(f"v_pk_add_f32 {q(Q,2)}, {q(Q,2)}, {q(Q+2,2)}")
        a(f"v_add_f32 v{S}, v{S}, v{S+1}")
        a(f"v_add_f32 v{Q}, v{Q}, v{Q+1}")
        for sw in ("v_permlane16_swap_b32", "v_permlane32_swap_b32"):
            a(f"v_mov_b32 v{S+1}, v{S}"); a(f"v_mov_b32 v{Q+1}, v{Q}")
            a("s_nop 0")
            a(f"{sw} v{S}, v{S+1}"); a(f"{sw} v{Q}, v{Q+1}")
            a(f"v_add_f32 v{S}, v{S}, v{S+1}"); a(f"v_add_f32 v{Q}, v{Q}, v{Q+1}")
        a(f"v_mul_f32 v{S}, {f32(-1.0 / C)}, v{S}")
        a(f"v_mul_f32 v{Q}, {f32(1.0 / C)}, v{Q}")
        a(f"v_fma_f32 v{Q}, -v{S}, v{S}, v{Q}")
        a(f"v_max_f32 v{Q}, 0, v{Q}")
        a(f"v_add_f32 v{Q}, {f32(1e-5)}, v{Q}")
        a(f"v_rsq_f32 v{Q}, v{Q}")
        a("s_nop 0")
        a(f"v_mul_f32 v{Q}, {f32(ALPHA)}, v{Q}")
        a(f"v_mul_f32 v{S}, v{S}, v{Q}")
        for d0 in range(0, 48, 4):
            for d in range(d0, d0 + 4):
                y = q(yreg(tt, d), 2)
                a(f"v_pk_fma_f32 {y}, {y}, {q(Q,2)}, {q(S,2)} op_sel_hi:[1,0,0]")
            for d in range(d0, d0 + 4):
                a(f"v_cvt_pk_bf16_f32 v{XN + 48*tt + d}, v{yreg(tt, d)}, v{yreg(tt, d) + 1}")
    a(f"s_cmp_lg_u32 s{sI}, 0")
    a("s_cbranch_scc1 K1_chk")
    a(f"v_readfirstlane_b32 s{sTK}, v{BB+8}")
    a("s_nop 3")
    a(f"s_cmp_lg_u32 s{sTK}, 0")
    a("s_cbranch_scc1 K1_flag")
    srd(a, 60, sWSlo, sWShi, NREP * 6144, SSQ)
    a(f"s_and_b32 s{sT0}, s2, {NREP - 1}")
    a(f"s_mul_i32 s{sT1}, s{sT0}, 6144")
    a(f"s_add_u32 s{sT2}, s{sT1}, 4096")
    for i in range(4): a(f"v_mov_b32 v{ACC+i}, 0")
    a(f"v_lshlrev_b32 v{ACC+4}, 4, v0")
    for k in range(6): a(f"buffer_store_dwordx4 {q(ACC)}, v{ACC+4}, s[60:63], s{(sT1, sT2)[k // 4]} offen offset:{(k % 4) * 1024} sc0 sc1")
    a(f"v_lshlrev_b32 v{ACC+5}, 8, v0")
    a(f"v_mov_b32 v{ACC+6}, 1")
    a(f"s_lshl_b32 s{sT0}, s{sT0}, 2")
    a("s_waitcnt vmcnt(0)")
    a(f"buffer_store_dword v{ACC+6}, v{ACC+5}, s[{sDB}:{sDB+3}], s{sT0} offen offset:64 sc0 sc1")
    a("s_branch K1_flag")
    a.label("K1_chk")
    a(f"v_readfirstlane_b32 s{sT1}, v{vFL+1}")
    a("s_nop 3")
    a(f"s_cmp_lg_u32 s{sT1}, 0")
    a("s_cbranch_scc1 K1_flag")
    a(f"v_mov_b32 v{vFL}, 0")
    a(f"buffer_load_dword v{vFL+1}, v{vFL}, s[{sDB}:{sDB+3}], s{sT2} offen offset:64 sc0 sc1")
    a("s_waitcnt vmcnt(0)")
    a("s_branch K1_chk")
    a.label("K1_flag")
    a("s_waitcnt vmcnt(0)")
    stamp2(a, 2, 5, sI)
    a("s_barrier")
    stamp2(a, 3, 6, sI)
    a.ext(head())
    a(f"s_cmp_eq_u32 s{sGRP}, 0")
    a("s_cbranch_scc1 K1_regA")
    a("s_barrier")
    a("s_branch K1_regB")

    def accr(ct, tt): return ACC + (((ct >> 1) * 3 + tt) * 2 + (ct & 1)) * 4
    NT = OPT["ntail"]
    def step(kind, grp):
        tag = kind + "AB"[grp]
        BG = OPT["bg"] if grp == 0 else OPT["bgb"]
        if kind == "tail":
            a.label(f"K1_pre{tag}")
            if OPT["npf"]:
                a("s_getpc_b64 s[60:61]")
                a.label(f"K1_pc{tag}")
                a(f"v_lshlrev_b32 v{TMP}, 7, v0")
                a(f"v_min_u32 v{TMP}, K3_end-K1_fin, v{TMP}")
                a(f"v_add_u32 v{TMP}, K1_fin-K1_pc{tag}, v{TMP}")
                a(f"v_mov_b32 v{TMP+3}, s61")
                a(f"v_add_co_u32 v{TMP+2}, vcc, s60, v{TMP}")
                a(f"s_mov_b32 m0, {L_DW + 2048}")
                a("s_nop 0")
                a(f"v_addc_co_u32 v{TMP+3}, vcc, 0, v{TMP+3}, vcc")
                a(f"global_load_lds_dword {q(TMP+2, 2)}, off")
        a(".p2align 6")
        a.label(f"K1_{tag}")
        a(f"s_setprio {OPT['pm']}")
        P = dma()
        misc = [[f"s_add_u32 s{sRDS}, s{sRDS}, 49152", f"s_cmp_eq_u32 s{sRDS}, 147456", f"s_cselect_b32 s{sRDS}, 0, s{sRDS}",
                 f"s_mul_i32 s{sST0}, s{sSIG}, {2 * CHUNK_H}", f"s_add_u32 s{sST0}, s{sST0}, s{sHB}"],
                [f"s_cmp_eq_u32 s{sSIG}, s{sDSP}", f"s_cselect_b32 s{sH}, s{sOUTlo}, s{sWSlo}", f"s_cselect_b32 s{sH+1}, s{sOUThi}, s{sWShi}",
                 f"s_cselect_b32 s{sST0}, s59, s{sST0}", f"s_mov_b32 s{sT1}, {XBYTES}", f"s_cselect_b32 s{sH+2}, s{sT1}, {TAIL}"],
                [f"s_add_u32 s{sST1}, s{sST0}, {CHUNK_H}", f"s_add_u32 s{sI}, s{sI}, 1"]]
        for g in range(12):
            a("s_waitcnt lgkmcnt(0)")
            k = 0
            ct = g // 3
            R = [x for j in range(4) for x in rd((g + 1) * 4 + j)] if g < 11 else []
            if len(R) == 9: R = [R[0] + "\n" + R[1]] + R[2:]
            for tt in range(3):
                for j in range(4):
                    i = g * 4 + j; ks = i % 12
                    c = "0" if ks == 0 else q(accr(ct, tt))
                    a(f"v_mfma_f32_16x16x32_bf16 {q(accr(ct, tt))}, {q(XN + 48*tt + 4*ks)}, {q(buf(i))}, {c}")
                    if k < len(R): a(R[k])
                    if k == 10 and g < len(misc): a.ext(misc[g])
                    if k == 9:
                        if g == BG and grp == 0:
                            if kind != "last": a("s_waitcnt vmcnt(6)")
                            a("s_barrier")
                        if BG < g <= BG + 6:
                            m = g - BG - 1
                            if kind == "pre":
                                if m == 0: a.ext([f"s_mov_b32 s{sCW}, s{sDSL}", f"s_mov_b32 s{sXB}, s{sXN}", f"s_add_u32 s{sCW2}, s{sDSL}, 49152",
                                                  f"s_cmp_ge_u32 s{sCW2}, 147456", f"s_cselect_b32 s{sCW2}, s{sD0}, s{sCW2}"])
                                if m % 2 == 0: a.ext(xdma(m // 2, OPT["xp_nt"]))
                            elif kind == "last":
                                if m % 2 == 0: a.ext(xdma(3 + m // 2, OPT["xp_nt"]))
                            else: a.ext(P[m])
                    k += 1
        a(f"s_setprio {OPT['pg0']}")
        if kind == "last": a.ext(xaddr())
        nb = 0
        for cp in range(2):
            for tt in range(3):
                b = ACC + (cp * 3 + tt) * 8
                a.ext(gelu_batch(b, TMP, SS + 2 * cp, tt == 0, sC0, sC0H))
                keep = kind == "regk" or (kind != "tail" and (OPT["stm"] >> (cp * 3 + tt)) & 1)
                a(f"buffer_store_dwordx4 {q(b)}, v{vST}, s[{sH}:{sH+3}], s{(sST0, sST1)[cp]} offen offset:{tt*1024}" + (" nt" if OPT["st_nt"] and not keep else ["", " sc1", " sc0 sc1", " sc0"][OPT["kf"]]))
                if kind == "last":
                    a(f"s_waitcnt vmcnt({13 + 3 * nb if nb < 3 else 11 + nb})")
                    a.ext(xread(nb))
                    a("s_waitcnt lgkmcnt(0)")
                    a.ext(xdma(nb + 6, OPT["xp_nt"]))
                nb += 1
                if nb == OPT["gb"] and grp == 1 and kind != "last":
                    if kind == "tail":
                        a(f"s_cmp_eq_u32 s{sI}, 36")
                        a(f"s_cbranch_scc1 K1_nogb")
                    if kind != "pre": a(f"s_waitcnt vmcnt({nb})")
                    a("s_barrier")
                    if kind == "tail": a.label("K1_nogb")
                if nb == OPT["gp"]: a(f"s_setprio {OPT['pg1']}")
                if nb == 5 and kind != "last": a.ext(head())
            if not OPT["sdot"]:
                a(f"v_permlane16_swap_b32 v{SS+2*cp}, v{SS+2*cp+1}")
                if cp == 0: a("s_nop 0")
                a(f"v_add_f32 v{SS+2*cp}, v{SS+2*cp}, v{SS+2*cp+1}")
        if OPT["sdot"]:
            for tt in range(3):
                for i in range(2):
                    for c in range(4):
                        p = ACC + ((c >> 1) * 3 + tt) * 8 + 2 * (c & 1) + i
                        a(f"v_dot2_f32_bf16 v{SS+c}, v{p}, v{p}, 0" if tt == 0 and i == 0 else (f"v_dot2_f32_bf16 v{SS+c}, v{p}, v{p}, v{SS+c}" if OPT["sdot"] == 1 else f"v_dot2c_f32_bf16 v{SS+c}, v{p}, v{p}"))
            a("s_nop 0")
            a(f"v_permlane16_swap_b32 v{SS}, v{SS+1}")
            a("s_nop 0")
            a(f"v_permlane16_swap_b32 v{SS+2}, v{SS+3}")
            a(f"v_add_f32 v{SS}, v{SS}, v{SS+1}")
            a(f"v_add_f32 v{SS+2}, v{SS+2}, v{SS+3}")
        a("s_nop 1")
        a(f"v_permlane32_swap_b32 v{SS}, v{SS+2}")
        a(f"v_add_f32 v{SS}, v{SS}, v{SS+2}")
        a(f"s_set_gpr_idx_on s{sSIG}, gpr_idx(SRC0,DST)")
        a(f"s_add_u32 s{sSIG}, s{sSIG}, 1")
        a(f"v_add_f32 v{SQ}, v{SQ}, v{SS}")
        a("s_set_gpr_idx_off")
        a(f"s_cmp_eq_u32 s{sSIG}, s{sSHI}")
        a(f"s_cselect_b32 s{sSIG}, s{sSLO}, s{sSIG}")
        if kind in ("reg", "regk"):
            g_ = "AB"[grp]
            if OPT["kmask"]:
                a(f"s_cmp_eq_u32 s{sI}, s{sEND}")
                a(f"s_cbranch_scc1 K1_out{g_}")
                a(f"s_bitcmp1_b32 s{sKM}, s{sSIG}")
                a(f"s_cbranch_scc{int(kind == 'regk')} K1_{tag}")
                if kind == "reg": a(f"s_branch K1_regk{g_}")
            else:
                a(f"s_cmp_lg_u32 s{sI}, s{sEND}")
                a(f"s_cbranch_scc1 K1_{tag}")
            if kind == "reg":
                a.label(f"K1_out{g_}")
                a(f"s_cmp_eq_u32 s{sI}, {36 - NT}")
                a(f"s_cbranch_scc1 K1_pretail{g_}")
        elif kind == "pre":
            pass
        elif kind == "last":
            a("s_branch K1_sw")
        else:
            a(f"s_cmp_lg_u32 s{sI}, 36")
            a(f"s_cbranch_scc1 K1_{tag}")
            a("s_branch K1_fin")
    for grp in range(2):
        for kind in (("regk",) if OPT["kmask"] else ()) + ("reg", "pre", "last", "tail"): step(kind, grp)
    a.label("K1_sw")
    a("s_setprio 0")
    a("s_mov_b64 vcc, -1")
    stamp(a, 4)
    a(f"s_mov_b32 s{sEND}, {36 - NT}")
    a(f"s_mov_b32 s{sSLO}, s{sSLN}")
    a(f"s_mov_b32 s{sSHI}, s{sSHN}")
    a(f"s_add_u32 s{sSIG}, s{sSLO}, s{sSG0}")
    a(f"s_mov_b32 s{sHB}, s{sHN}")
    a(f"s_mov_b32 s{sDSP}, s{sDSN}")
    a(f"s_and_b32 s{sT2}, s2, {NREP - 1}")
    a(f"s_lshl_b32 s{sT2}, s{sT2}, 2")
    a("s_waitcnt lgkmcnt(0)")
    a(f"v_mov_b32 v{vFL}, 0")
    a(f"buffer_load_dword v{vFL+1}, v{vFL}, s[{sDB}:{sDB+3}], s{sT2} offen offset:64 sc0 sc1")
    if OPT["w2pf"]:
        a("s_load_dwordx2 s[60:61], s[0:1], 24")
        a(f"s_mov_b32 s62, {C * F * 2}")
        a("s_mov_b32 s63, 0x00020000")
        a(f"s_mul_i32 s{sT0}, s2, 4608")
        a(f"v_lshlrev_b32 v{BB+10}, 7, v0")
        a(f"v_min_u32 v{BB+10}, 4480, v{BB+10}")
        a("s_waitcnt lgkmcnt(0)")
        a(f"s_cmp_lg_u32 s{sWV}, 0")
        a("s_cbranch_scc1 K1_ln")
        a(f"buffer_load_dword v{BB+11}, v{BB+10}, s[60:63], s{sT0} offen")
    a("s_branch K1_ln")
    a.label("K1_fin")
    a("s_setprio 0")
    stamp(a, 7)
    a(f"s_and_b32 s{sT0}, s2, {NREP - 1}")
    a(f"s_waitcnt vmcnt(6) lgkmcnt(0)")
    a("s_barrier")
    a("v_and_b32 v1, 63, v0")
    a("v_lshlrev_b32 v1, 2, v1")
    a(f"v_add_u32 v1, s{sD0}, v1")
    for k in range(24): a(f"ds_write_b32 v1, v{SQ+k} offset:{k*256}")
    a("v_lshlrev_b32 v1, 2, v0")
    a("s_waitcnt lgkmcnt(0)")
    a("s_barrier")
    for k in range(3):
        for w in range(8): a(f"ds_read_b32 v{XN+8*k+w}, v1 offset:{w*6144 + k*2048}")
    srd(a, 60, sWSlo, sWShi, NREP * 6144, SSQ)
    a(f"s_mul_i32 s{sT0}, s{sT0}, 6144")
    a(f"s_add_u32 s{sT1}, s{sT0}, 4096")
    a("s_waitcnt lgkmcnt(0)")
    for st in (4, 2, 1):
        for k in range(3):
            for w in range(st): a(f"v_add_f32 v{XN+8*k+w}, v{XN+8*k+w}, v{XN+8*k+w+st}")
    a(f"buffer_atomic_add_f32 v{XN}, v1, s[60:63], s{sT0} offen")
    a(f"buffer_atomic_add_f32 v{XN+8}, v1, s[60:63], s{sT0} offen offset:2048")
    a(f"buffer_atomic_add_f32 v{XN+16}, v1, s[60:63], s{sT1} offen")
    if OPT["stamp"]: a("s_waitcnt vmcnt(0)")
    stamp(a, 8)
    stamp_dump(a, 9, sWV, "K1", 0)
    a.label("K1_end")
    a("s_endpgm")
    return a, desc("gemm1_kernel", 256, 100), f"; @launch kernel=gemm1_kernel grid=(256,1,1) block=(512,1,1) lds={L_DW + 4096}"

T1B = 46 * CHUNK_H; T2B = 94 * CHUNK_H
def k3r():
    REG = 3 * 192 * 768
    a = Asm()
    ACC = 16; HB = 160; WB = 184; SEL = 208; BIAS = 216; XT = 240
    vD0, vWR, vHR0, vHR1, vXR, vOUT, vWB0, vHB0, vHB1 = 1, 4, 5, 6, 7, 8, 9, 10, 11
    L_H = 73728; L_X = 147456
    sD, sO = 8, 12
    (sWV, sTH, sCQ, sSrc, sDst, sSlot, sDLo, sDEnd, sT0, sT1, sWS, sHS, sPASS, sOB, sEV, sT2, sJd, sLag, sSrc3, sSrcL, sSrcL3, sLim, sHalf, sDP, sHlo, sHhi) = range(30, 56)
    STG = OPT["stg"]; NB = (5 * STG + 1 + 3) // 4 * 4
    kernel_start(a, "gemm2_kernel")
    a("s_cmp_ge_u32 s2, 256")
    a("s_cbranch_scc1 K3_end")
    stamp(a, 0)
    a("s_load_dwordx2 s[4:5], s[0:1], 0")
    a("s_load_dwordx2 s[6:7], s[0:1], 48")
    a("s_load_dwordx2 s[24:25], s[0:1], 64")
    code_prefetch(a, "gemm2_kernel", "K3_end", 100, 60)
    a("v_lshrrev_b32 v16, 6, v0")
    a("v_and_b32 v17, 63, v0")
    a(f"v_readfirstlane_b32 s{sWV}, v16")
    a(f"v_lshlrev_b32 v{vD0}, 4, v17")
    a(f"v_add_u32 v{vD0+1}, 1024, v{vD0}")
    a(f"v_add_u32 v{vD0+2}, 2048, v{vD0}")
    a("v_and_b32 v18, 15, v17")
    a("v_lshrrev_b32 v19, 4, v17")
    a("v_mul_u32_u24 v20, 24, v18")
    a(f"s_lshr_b32 s{sTH}, s{sWV}, 2")
    a(f"s_and_b32 s{sCQ}, s{sWV}, 3")
    a(f"s_mov_b32 s{sD+3}, 0x00020000")
    a(f"s_mov_b32 s{sO+3}, 0x00020000")
    a(f"s_mov_b32 s{sO+2}, 0")
    a(f"s_mul_i32 s{sT0}, s2, {REG}")
    a(f"s_and_b32 s{sHalf}, s{sWV}, 1")
    a(f"s_mul_i32 s{sHalf}, s{sHalf}, 6144")
    a(f"s_mul_i32 s{sT1}, s2, {HSTRIDE}")
    a(f"s_mov_b32 s{sJd}, 0")
    a(f"s_mov_b32 s{sLag}, 0")
    a(f"s_mov_b32 s{sDP}, 0")
    a(f"s_mov_b32 s{sSrc}, s{sHalf}")
    a("s_waitcnt lgkmcnt(0)")
    a(f"s_add_u32 s{sO}, s6, s{sT0}")
    a(f"s_addc_u32 s{sO+1}, s7, 0")
    a(f"s_add_u32 s{sHlo}, s24, s{sT1}")
    a(f"s_addc_u32 s{sHhi}, s25, 0")
    srd(a, 16, 24, 25, 1536 * NBP, B2)
    a(f"s_mul_i32 s{sT1}, s{sCQ}, 384")
    for p in range(NBP):
        a(f"buffer_load_dwordx3 {q(24 + 8*p, 3)}, v20, s[16:19], s{sT1} offen")
        a(f"buffer_load_dwordx3 {q(28 + 8*p, 3)}, v20, s[16:19], s{sT1} offen offset:12")
        if p < NBP - 1: a(f"s_add_u32 s{sT1}, s{sT1}, 1536")

    nt = " nt" if OPT["h_nt"] else ""
    def pieces_w():
        P = []
        for k in range(6):
            pre = [f"s_mov_b32 m0, s{sDst}", f"s_add_u32 s{sT2}, s{sSrc}, 3072"] if k == 0 else ["s_add_u32 m0, m0, 1024", "s_nop 0"]
            P.append(pre + [f"buffer_load_dwordx4 v{vD0 + k % 3}, s[{sD}:{sD+3}], s{sSrc if k < 3 else sT2} offen lds"])
        P[5] += [f"s_add_u32 s{sDst}, s{sDst}, 24576", f"s_cmp_eq_u32 s{sDst}, s{sDEnd}", f"s_cselect_b32 s{sDst}, s{sDLo}, s{sDst}",
                 f"s_add_u32 s{sSrc}, s{sSrc}, 24576", f"s_cmp_ge_u32 s{sSrc}, 1179648", f"s_cselect_b32 s{sSrc}, s{sDLo}, s{sSrc}"]
        return P
    uid = [0]
    def pieces_h():
        P = []
        for k in range(6):
            if k == 0:
                P.append([f"s_mov_b32 m0, s{sDst}", f"s_add_u32 s{sSrc3}, s{sSrc}, 3072",
                          f"buffer_load_dwordx4 v{vD0}, s[{sD}:{sD+3}], s{sSrc} offen{nt} lds",
                          f"s_sub_u32 s{sSrcL}, s{sSrc}, s{sLag}", f"s_sub_u32 s{sSrcL3}, s{sSrc3}, s{sLag}"])
            else:
                P.append(["s_add_u32 m0, m0, 1024", f"s_cmp_lt_u32 s{sJd}, {STG * k}",
                          f"s_cselect_b32 s{sT2}, s{sSrcL if k < 3 else sSrcL3}, s{sSrc if k < 3 else sSrc3}",
                          f"buffer_load_dwordx4 v{vD0 + k % 3}, s[{sD}:{sD+3}], s{sT2} offen{nt} lds"])
        uid[0] += 1; u = uid[0]
        P[5] += [f"s_add_u32 s{sDst}, s{sDst}, s{sSlot}", f"s_cmp_eq_u32 s{sDst}, s{sDEnd}", f"s_cselect_b32 s{sDst}, s{sDLo}, s{sDst}",
                 f"s_add_u32 s{sSrc}, s{sSrc}, 12288", f"s_cmp_ge_u32 s{sSrc}, s{sLim}", f"s_cselect_b32 s{sD+2}, 0, s{sD+2}",
                 f"s_add_u32 s{sJd}, s{sJd}, 1", f"s_cmp_lt_u32 s{sJd}, 46", f"s_cbranch_scc1 K3_av{u}",
                 f"s_add_u32 s{sT2}, s{sJd}, s{sDP}", f"s_cmp_lg_u32 s{sT2}, 46", f"s_cbranch_scc1 K3_aw{u}",
                 f"s_mov_b32 s{sD}, s{sO}", f"s_mov_b32 s{sD+1}, s{sO+1}", f"s_mov_b32 s{sD+2}, {REG}", f"s_add_u32 s{sSrc}, s{sHalf}, {2 * 192 * 768}",
                 f"K3_aw{u}:", f"s_cmp_lg_u32 s{sJd}, 48", f"s_cbranch_scc1 K3_av{u}",
                 f"s_mov_b32 s{sJd}, 0", f"s_mov_b32 s{sLag}, {48 * CHUNK_H}", f"s_cmp_lg_u32 s{sDP}, 0", f"s_cbranch_scc1 K3_av{u}",
                 f"s_mov_b32 s{sDP}, 100", f"s_mov_b32 s{sLag}, {46 * CHUNK_H}", f"s_mov_b32 s{sD}, s{sHlo}", f"s_mov_b32 s{sD+1}, s{sHhi}",
                 f"s_mov_b32 s{sD+2}, {HSTRIDE}", f"s_add_u32 s{sSrc}, s{sHalf}, {T1B}",
                 f"K3_av{u}:"]
        return P

    a(f"s_cmp_lt_u32 s{sWV}, 4")
    a("s_cbranch_scc1 K3_rw")
    a(f"s_cmp_ge_u32 s{sWV}, 6")
    a("s_cbranch_scc1 K3_rx")
    a(f"s_mov_b32 s{sD}, s{sHlo}")
    a(f"s_mov_b32 s{sD+1}, s{sHhi}")
    a(f"s_mov_b32 s{sD+2}, {HSTRIDE}")
    a(f"s_add_u32 s{sDLo}, s{sHalf}, {L_H}")
    a(f"s_mov_b32 s{sDst}, s{sDLo}")
    a(f"s_add_u32 s{sDEnd}, s{sDLo}, 73728")
    a(f"s_mov_b32 s{sSlot}, {CHUNK_H}")
    a(f"s_mov_b32 s{sLim}, -1")
    a(f"s_mov_b32 s{sT1}, 5")
    a.label("K3_hpro")
    for p in pieces_h(): a.ext(p)
    a(f"s_sub_u32 s{sT1}, s{sT1}, 1")
    a(f"s_cmp_lg_u32 s{sT1}, 0")
    a("s_cbranch_scc1 K3_hpro")
    a("s_mov_b64 s[56:57], 0")
    a("s_branch K3_rdone")
    a.label("K3_rx")
    a(f"s_add_u32 s{sD}, s4, s{sT0}")
    a(f"s_addc_u32 s{sD+1}, s5, 0")
    a(f"s_mov_b32 s{sD+2}, {REG}")
    for m in range(3):
        v = vD0 + m
        a(f"v_mul_u32_u24 v20, 43691, v{v}")
        a("v_lshrrev_b32 v20, 25, v20")
        a("v_mul_u32_u24 v21, 864, v20")
        a(f"v_sub_u32 v21, v{v}, v21")
        a("v_add_u32 v22, 768, v21")
        a("v_cmp_gt_i32 vcc, 0, v21")
        a("v_mul_u32_u24 v20, 768, v20")
        a("s_nop 0")
        a("v_cndmask_b32 v21, v21, v22, vcc")
        a(f"v_add_u32 v{v}, v20, v21")
    a(f"s_add_u32 s{sDLo}, s{sHalf}, {L_X}")
    a(f"s_mov_b32 s{sDEnd}, 0")
    a(f"s_mov_b32 s{sSlot}, 0")
    a(f"s_mov_b32 s{sDst}, s{sDLo}")
    a(f"s_mov_b32 s{sLim}, {REG}")
    a("s_mov_b64 s[56:57], -1")
    a("s_branch K3_rdone")
    a.label("K3_rw")
    a(f"s_add_u32 s{sD}, s24, {W2F}")
    a(f"s_addc_u32 s{sD+1}, s25, 0")
    a(f"s_mov_b32 s{sD+2}, 1179648")
    a(f"s_mul_i32 s{sDLo}, s{sCQ}, 6144")
    a(f"s_add_u32 s{sDEnd}, s{sDLo}, 73728")
    a(f"s_mov_b32 s{sDst}, s{sDLo}")
    a(f"s_mov_b32 s{sSrc}, s{sDLo}")
    for _ in range(2):
        for p in pieces_w(): a.ext(p)
    a("s_mov_b64 s[56:57], 0")
    a.label("K3_rdone")
    a(f"v_mul_u32_u24 v{vOUT}, 3072, v19")
    a("v_mul_u32_u24 v21, 12, v18")
    a(f"s_mul_i32 s{sT0}, s{sTH}, {96 * 768}")
    a(f"s_mul_i32 s{sT1}, s{sCQ}, 192")
    a(f"s_add_u32 s{sT0}, s{sT0}, s{sT1}")
    a(f"v_add3_u32 v{vOUT}, v{vOUT}, v21, s{sT0}")
    a(f"s_mul_i32 s{sT0}, s{sCQ}, 6144")
    a(f"v_lshl_add_u32 v{vWB0}, v17, 4, s{sT0}")
    a("v_and_b32 v21, 3, v18")
    a("v_lshrrev_b32 v22, 2, v18")
    a("v_and_b32 v23, 2, v19")
    a("v_xor_b32 v23, v23, v21")
    a("v_lshl_add_u32 v22, v23, 2, v22")
    a("v_lshl_add_u32 v22, v21, 4, v22")
    a("v_lshlrev_b32 v22, 4, v22")
    a("v_and_b32 v23, 1, v19")
    a("v_lshl_add_u32 v22, v23, 3, v22")
    a(f"s_mul_i32 s{sT0}, s{sTH}, 6144")
    a(f"s_add_u32 s{sT0}, s{sT0}, {L_H}")
    a(f"v_add_u32 v{vHB0}, s{sT0}, v22")
    a(f"v_xor_b32 v{vHB1}, 64, v{vHB0}")
    a(f"s_lshl_b32 s{sT0}, s{sCQ}, 2")
    a("v_lshl_add_u32 v22, v21, 1, v19")
    a(f"v_add_u32 v22, s{sT0}, v22")
    a("v_and_b32 v22, 15, v22")
    a("v_mul_u32_u24 v22, 48, v22")
    a("v_mul_u32_u24 v23, 768, v18")
    a(f"v_add_u32 v22, {L_X}, v22")
    a(f"v_add_u32 v{vXR}, v22, v23")
    a("v_lshrrev_b32 v22, 2, v18")
    a("v_cmp_eq_u32 vcc, v22, v19")
    a("v_mov_b32 v23, 0x3f80")
    a("s_nop 0")
    a("v_cndmask_b32 v23, 0, v23, vcc")
    for e in range(4):
        a(f"v_cmp_eq_u32 vcc, {e}, v21")
        a("s_nop 1")
        a(f"v_cndmask_b32 v{SEL+e}, 0, v23, vcc")
        a(f"v_lshlrev_b32 v{SEL+4+e}, 16, v{SEL+e}")
    a("s_mov_b64 vcc, s[56:57]")
    a(f"s_mov_b32 s{sWS}, 0")
    a(f"s_mov_b32 s{sHS}, 0")
    a(f"s_mov_b32 s{sPASS}, 0")
    a(f"s_mov_b32 s{sOB}, 0")
    a("s_waitcnt vmcnt(24)")
    a(f"s_cmp_eq_u32 s{sSlot}, {CHUNK_H}" if False else f"s_sub_u32 s{sT0}, s{sWV}, 4")
    a(f"s_cmp_lt_u32 s{sT0}, 2")
    a("s_cbranch_scc1 K3_pw")
    a("s_waitcnt vmcnt(6)")
    a("s_cbranch_vccz K3_pw")
    a("s_waitcnt vmcnt(0)")
    a.label("K3_pw")
    for p in range(1, NBP):
        for n in range(6):
            src = 24 + n if n < 3 else 25 + n
            a(f"v_add_f32 v{src}, v{src}, v{src + 8*p}")
    for n in range(6):
        src = 24 + n if n < 3 else 25 + n
        for r in range(4): a(f"v_mov_b32 v{BIAS+4*n+r}, v{src}")
    stamp(a, 1)

    def accr(n, t): return ACC + (t * 6 + n) * 4
    ofl = ["", " nt", " sc1", " sc0 sc1", " sc0"][OPT["out_nt"]]
    def mini(t):
        L = [f"s_add_u32 s{sT1}, s{sOB}, {t * 12288}"]
        for r in range(4):
            tq = XT + 4 * r if STG % 2 == 0 else (12, 252)[r % 2]
            for j in range(3): L.append(f"v_cvt_pk_bf16_f32 v{tq+j}, v{accr(2*j, t)+r}, v{accr(2*j+1, t)+r}")
            if not OPT["k3nost"]: L.append(f"buffer_store_dwordx3 {q(tq, 3)}, v{vOUT}, s[{sO}:{sO+3}], s{sT1} offen offset:{r*768}" + ofl)
        return L
    def step(grp, u, bnd):
        u4 = u % 4; tag = f"{grp}{'b' if bnd else 'l'}{u}"
        L = [f"v_add_u32 v{vWR}, s{sWS}, v{vWB0}", f"v_add_u32 v{vHR0}, s{sHS}, v{vHB0}", f"v_add_u32 v{vHR1}, s{sHS}, v{vHB1}"]
        R = []
        for t in range(6):
            R.append(f"ds_read_b128 {q(WB + 4*t)}, v{vWR} offset:{t*1024}")
            R.append(f"ds_read_b64_tr_b16 {q(HB + 4*t, 2)}, v{vHR0} offset:{t*1024}")
            R.append(f"ds_read_b64_tr_b16 {q(HB + 4*t + 2, 2)}, v{vHR1} offset:{t*1024}")
        P = pieces_w() if grp == 0 else pieces_h()
        def gd(X, z): return X if grp == 0 or u4 == 0 else [f"s_cbranch_vccnz K3_s{tag}{z}"] + X + [f"K3_s{tag}{z}:"]
        L += gd(P[0], "a") + R[:6] + gd(P[1], "b") + R[6:12] + gd(P[2], "c") + R[12:]
        if u4 == 3:
            L += [f"s_sub_u32 s{sT0}, s{sEV}, {6*grp}", f"s_cmp_lt_u32 s{sT0}, 6", f"s_cbranch_scc0 K3_xr{tag}"]
            for p in range(3):
                L.append(f"ds_read2_b32 {q(XT + 4*p, 2)}, v{vXR} offset0:{p} offset1:{p+3}")
                L.append(f"ds_read2_b32 {q(XT + 4*p + 2, 2)}, v{vXR} offset0:{p+6} offset1:{p+9}")
            L.append(f"K3_xr{tag}:")
        L += gd(P[3] + P[4] + P[5], "d")
        L += [f"s_add_u32 s{sWS}, s{sWS}, 24576", f"s_cmp_eq_u32 s{sWS}, 73728", f"s_cselect_b32 s{sWS}, 0, s{sWS}",
              f"s_add_u32 s{sHS}, s{sHS}, 12288", f"s_cmp_eq_u32 s{sHS}, 73728", f"s_cselect_b32 s{sHS}, 0, s{sHS}"]
        tb = u // STG if bnd and u % STG == 0 and u // STG < 6 else None
        def nst(back):
            if not bnd or OPT["k3nost"]: return 0
            return 4 * sum(1 for w in range(max(0, u - back), u + 1 - grp) if w % STG == 0 and w // STG < 6)
        if tb == 5:
            a(f"s_cmp_eq_u32 s{sPASS}, 3")
            a("s_cbranch_scc1 K3_fin")
        a.ext(L)
        if grp == 0:
            a("s_waitcnt lgkmcnt(0)")
            a(f"s_setprio {OPT['k3pa']}")
        else:
            if u4 == 2:
                a(f"s_cbranch_vccz K3_nx{tag}")
                a(f"s_waitcnt vmcnt({nst(2)})")
                a.label(f"K3_nx{tag}")
            a(f"s_waitcnt vmcnt({24 + nst(4)}) lgkmcnt(0)")
            a("s_barrier")
            a(f"s_setprio {OPT['k3pb']}")
        if u4 == 3:
            a(f"s_cmp_lt_u32 s{sT0}, 6")
            a(f"s_cbranch_scc0 K3_xd{tag}")
            ts = range(6) if not bnd else [t for t in range(6) if t + 6 * grp == u // 4]
            for t in ts:
                if t != ts[-1]:
                    a(f"s_cmp_lg_u32 s{sT0}, {t}")
                    a(f"s_cbranch_scc1 K3_x{tag}_{t+1}")
                for n in range(6):
                    a(f"v_mfma_f32_16x16x32_bf16 {q(accr(n, t))}, {q(XT + 4*(n >> 1))}, {q(SEL + 4*(n & 1))}, {q(accr(n, t))}")
                if t != ts[-1]:
                    a(f"s_branch K3_xd{tag}")
                    a.label(f"K3_x{tag}_{t+1}")
            a.label(f"K3_xd{tag}")
            a(f"s_add_u32 s{sEV}, s{sEV}, 1")
        def mf(t): return [f"v_mfma_f32_16x16x32_bf16 {q(accr(n, t))}, {q(HB + 4*t)}, {q(WB + 4*n)}, {q(BIAS + 4*n) if t == tb else q(accr(n, t))}" for n in range(6)]
        bar = [f"s_waitcnt vmcnt({6 + nst(1)})", "s_barrier"] if grp == 0 else []
        ns = u // STG + 1 if bnd else 6
        def full():
            order = [t for t in range(6) if t != tb] + ([tb] if tb is not None else [])
            Ms = [[x] for t in order for x in mf(t)]
            if tb is not None:
                E = mini(tb)
                pos = OPT["mp0"]
                for x in E:
                    Ms[pos].append(x)
                    if not x.startswith("s_"): pos += 1
                    if x.startswith("buffer"): pos += OPT["mpd"]
                assert pos <= 29
            e = OPT["k3eb"] if grp == 0 else 0
            Ms[35 - e] += (["s_setprio 3"] if e else []) + bar
            a.ext([x for m in Ms for x in m])
        if ns >= 6:
            full()
        else:
            a(f"s_sub_u32 s{sT2}, s{sPASS}, 1")
            a(f"s_cmp_lt_u32 s{sT2}, 2")
            a(f"s_cbranch_scc0 K3_m0{tag}")
            full()
            a(f"s_branch K3_m3{tag}")
            a.label(f"K3_m0{tag}")
            if tb is not None: a.ext(mini(tb))
            a(f"s_cmp_eq_u32 s{sPASS}, 3")
            a(f"s_cbranch_scc1 K3_m1{tag}")
            for t in range(ns): a.ext(mf(t))
            a(f"s_branch K3_m2{tag}")
            a.label(f"K3_m1{tag}")
            for t in range(ns, 6): a.ext(mf(t))
            a.label(f"K3_m2{tag}")
            a.ext(bar)
            a.label(f"K3_m3{tag}")
        a("s_setprio 0")

    a("s_barrier")
    a(f"s_cmp_lg_u32 s{sTH}, 0")
    a("s_cbranch_scc1 K3_1_tile")
    for grp in range(2):
        a.label(f"K3_{grp}_tile")
        a(f"s_cmp_eq_u32 s{sPASS}, 3")
        a(f"s_cselect_b32 s{sEV}, 100, 0")
        for u in range(NB): step(grp, u, True)
        if OPT["stamp"]: stamp2(a, 2, 4, sPASS)
        a(".p2align 6")
        a.label(f"K3_{grp}_loop")
        for u in range(4): step(grp, u, False)
        a(f"s_cmp_lg_u32 s{sEV}, 12")
        a(f"s_cbranch_scc1 K3_{grp}_loop")
        if OPT["stamp"]: stamp2(a, 3, 5, sPASS)
        a(f"s_mul_i32 s{sOB}, s{sPASS}, {192 * 768}")
        a(f"s_add_u32 s{sPASS}, s{sPASS}, 1")
        a(f"s_mov_b32 s{sO+2}, {REG}")
        a(f"s_branch K3_{grp}_tile")
    a.label("K3_fin")
    stamp(a, 6)
    a("s_nop 7")
    a.ext(mini(5))
    if OPT["stamp"]: a("s_waitcnt vmcnt(0)")
    stamp(a, 7)
    stamp_dump(a, 8, sWV, "K3", 1)
    a.label("K3_end")
    a("s_endpgm")
    return a, desc("gemm2_kernel", 256, 100), f"; @launch kernel=gemm2_kernel grid=(256,1,1) block=(512,1,1) lds={L_X + 12288}"

def k3():
    a = Asm()
    ACC = 16; HB = 160; WB = 184; SEL = 208; BIAS = 216; XT = 240
    KC = OPT['k3c']
    if KC: WB = 208; SEL = 232
    BV = [12, 13, 14, 15, 252, 253]
    vD0, vWR, vHR0, vHR1, vXR, vOUT, vWB0, vHB0, vHB1 = 1, 4, 5, 6, 7, 8, 9, 10, 11
    L_H = 73728; L_X = 147456
    sD, sO = 8, 12
    (sWV, sTH, sCQ, sSrc, sDst, sSlot, sDLo, sDEnd, sLeft, sT0, sT1, sWS, sHS, sJ, sOB, sEV, sNR, sT2, sFIRST) = range(30, 49)
    REG = 3 * 192 * 768
    kernel_start(a, "gemm2_kernel")
    a("s_cmp_ge_u32 s2, 256")
    a("s_cbranch_scc1 K3_end")
    stamp(a, 0)
    a("s_load_dwordx2 s[4:5], s[0:1], 0")
    a("s_load_dwordx2 s[6:7], s[0:1], 48")
    a("s_load_dwordx2 s[24:25], s[0:1], 64")
    code_prefetch(a, "gemm2_kernel", "K3_end", 100, 60)
    a("v_lshrrev_b32 v16, 6, v0")
    a("v_and_b32 v17, 63, v0")
    a(f"v_readfirstlane_b32 s{sWV}, v16")
    a(f"v_lshlrev_b32 v{vD0}, 4, v17")
    a(f"v_add_u32 v{vD0+1}, 1024, v{vD0}")
    a(f"v_add_u32 v{vD0+2}, 2048, v{vD0}")
    a("v_and_b32 v18, 15, v17")
    a("v_lshrrev_b32 v19, 4, v17")
    a(f"s_lshr_b32 s{sT0}, s2, 4")
    a(f"s_lshl_b32 s{sT0}, s{sT0}, 4")
    a(f"s_and_b32 s{sT1}, s2, 7")
    a(f"s_lshl_b32 s{sT1}, s{sT1}, 1")
    a(f"s_add_u32 s{sT0}, s{sT0}, s{sT1}")
    a(f"s_bfe_u32 s{sT1}, s2, 0x10003")
    a(f"s_add_u32 s3, s{sT0}, s{sT1}")
    a(f"s_lshr_b32 s{sTH}, s{sWV}, 2")
    a(f"s_and_b32 s{sCQ}, s{sWV}, 3")
    a(f"s_mov_b32 s{sD+3}, 0x00020000")
    a(f"s_mov_b32 s{sO+3}, 0x00020000")
    a(f"s_mov_b32 s{sO+2}, {REG}")
    a(f"s_mul_i32 s{sT0}, s3, {REG}")
    a(f"s_and_b32 s{sT1}, s{sWV}, 1")
    a(f"s_mul_i32 s{sT1}, s{sT1}, 6144")
    a("s_waitcnt lgkmcnt(0)")
    a(f"s_add_u32 s{sO}, s6, s{sT0}")
    a(f"s_addc_u32 s{sO+1}, s7, 0")

    srd(a, 16, 24, 25, 1536 * NBP, B2)
    a("v_mul_u32_u24 v20, 24, v18")
    a(f"s_mul_i32 s{sT2}, s{sCQ}, 384")
    for p in range(NBP):
        a(f"buffer_load_dwordx3 {q(24 + 8*p, 3)}, v20, s[16:19], s{sT2} offen")
        a(f"buffer_load_dwordx3 {q(28 + 8*p, 3)}, v20, s[16:19], s{sT2} offen offset:12")
        if p < NBP - 1: a(f"s_add_u32 s{sT2}, s{sT2}, 1536")

    def pieces(srd_, sfx=""):
        P = []
        for k in range(6):
            if k == 0: pre = [f"s_mov_b32 m0, s{sDst}", f"s_add_u32 s{sT2}, s{sSrc}, 3072"]
            else: pre = ["s_add_u32 m0, m0, 1024", "s_nop 0"]
            so = sSrc if k < 3 else sT2
            P.append(pre + [f"buffer_load_dwordx4 v{vD0 + k % 3}, s[{srd_}:{srd_+3}], s{so} offen{sfx} lds"])
        return P
    def advance_w():
        return [f"s_add_u32 s{sDst}, s{sDst}, 24576", f"s_cmp_eq_u32 s{sDst}, s{sDEnd}", f"s_cselect_b32 s{sDst}, s{sDLo}, s{sDst}",
                f"s_sub_u32 s{sSrc}, s{sSrc}, 24576", f"s_cselect_b32 s{sT2}, 1179648, 0", f"s_add_u32 s{sSrc}, s{sSrc}, s{sT2}"]
    def advance_h():
        return [f"s_add_u32 s{sDst}, s{sDst}, s{sSlot}", f"s_cmp_eq_u32 s{sDst}, s{sDEnd}", f"s_cselect_b32 s{sDst}, s{sDLo}, s{sDst}",
                f"s_sub_u32 s{sSrc}, s{sSrc}, 12288", f"s_cselect_b32 s{sD+2}, 0, s{sD+2}", f"s_cselect_b32 s{sSrc}, 0, s{sSrc}"]
    nt = " nt" if OPT["h_nt"] else ""
    wnt = " nt" if OPT["w_nt"] else ""

    a(f"s_cmp_lt_u32 s{sWV}, 4")
    a("s_cbranch_scc1 K3_rw")
    a(f"s_cmp_ge_u32 s{sWV}, 6")
    a("s_cbranch_scc1 K3_rx")
    a(f"s_add_u32 s{sDLo}, s{sT1}, {L_H}")
    a(f"s_mov_b32 s{sDst}, s{sDLo}")
    a(f"s_add_u32 s{sSrc}, s{sT1}, {CHUNK_H}")
    for p in pieces(sO, nt): a.ext(p)
    a(f"s_add_u32 s{sDst}, s{sDst}, {CHUNK_H}")
    a(f"s_mov_b32 s{sSrc}, s{sT1}")
    for p in pieces(sO, nt): a.ext(p)
    a(f"s_mul_i32 s{sT0}, s3, {HSTRIDE}")
    a(f"s_add_u32 s{sD}, s24, s{sT0}")
    a(f"s_addc_u32 s{sD+1}, s25, 0")
    a(f"s_mov_b32 s{sD+2}, {0 if OPT['k3noh'] else HSTRIDE}")
    a(f"s_add_u32 s{sDEnd}, s{sDLo}, 73728")
    a(f"s_mov_b32 s{sSlot}, {CHUNK_H}")
    a(f"s_add_u32 s{sDst}, s{sDst}, {CHUNK_H}")
    a(f"s_add_u32 s{sSrc}, s{sT1}, {HSTRIDE - CHUNK_H}")
    for _ in range(3 if OPT["k3bl"] else 4):
        for p in pieces(sD, nt): a.ext(p)
        a.ext(advance_h())
    a("s_mov_b64 vcc, 0")
    a("s_branch K3_rdone")
    a.label("K3_rx")
    a(f"s_add_u32 s{sD}, s4, s{sT0}")
    a(f"s_addc_u32 s{sD+1}, s5, 0")
    a(f"s_mov_b32 s{sD+2}, {0 if OPT['k3nox'] else REG}")
    for m in range(3):
        v = vD0 + m
        a(f"v_mul_u32_u24 v20, 43691, v{v}")
        a("v_lshrrev_b32 v20, 25, v20")
        a("v_mul_u32_u24 v21, 864, v20")
        a(f"v_sub_u32 v21, v{v}, v21")
        a("v_add_u32 v22, 768, v21")
        a("v_cmp_gt_i32 vcc, 0, v21")
        a("v_mul_u32_u24 v20, 768, v20")
        a("s_nop 0")
        a("v_cndmask_b32 v21, v21, v22, vcc")
        a(f"v_add_u32 v{v}, v20, v21")
    a(f"s_add_u32 s{sDLo}, s{sT1}, {L_X}")
    a(f"s_mov_b32 s{sDEnd}, 0")
    a(f"s_mov_b32 s{sSlot}, 0")
    a(f"s_mov_b32 s{sDst}, s{sDLo}")
    a(f"s_add_u32 s{sSrc}, s{sT1}, {35 * 12288}")
    if OPT["wwarm"]:
        srd(a, 60, 24, 25, 1179648, W2F)
        a(f"s_lshr_b32 s{sT2}, s2, 3")
        a(f"s_mul_i32 s{sT2}, s{sT2}, 36864")
        a(f"s_mul_i32 s{sT0}, s{sT1}, 3")
        a(f"s_add_u32 s{sT2}, s{sT2}, s{sT0}")
        a("v_lshlrev_b32 v20, 7, v17")
        for i in range(3):
            a(f"buffer_load_dword v{100 + i}, v20, s[60:63], s{sT2} offen")
            a(f"s_add_u32 s{sT2}, s{sT2}, 6144" if False else f"s_add_u32 s{sT2}, s{sT2}, 8192")
    if not OPT["k3bl"]:
        for p in pieces(sD, nt): a.ext(p)
        a.ext(advance_h())
    a("s_mov_b64 vcc, -1")
    a("s_branch K3_rdone")
    a.label("K3_rw")
    a(f"s_add_u32 s{sD}, s24, {W2F}")
    a(f"s_addc_u32 s{sD+1}, s25, 0")
    a(f"s_mov_b32 s{sD+2}, {0 if OPT['k3now'] else 1179648}")
    a(f"s_mul_i32 s{sDLo}, s{sCQ}, 6144")
    a(f"s_add_u32 s{sDEnd}, s{sDLo}, 73728")
    a(f"s_mov_b32 s{sSlot}, 0")
    a(f"s_mov_b32 s{sDst}, s{sDLo}")
    a(f"s_add_u32 s{sSrc}, s{sDLo}, {47 * 24576}")
    for _ in range(5 if OPT["k3skipw"] else 2):
        for p in pieces(sD, wnt): a.ext(p)
        a.ext(advance_w())
    a("s_mov_b64 vcc, 0")
    a.label("K3_rdone")
    a("s_mov_b64 s[50:51], vcc")
    a(f"v_mul_u32_u24 v{vOUT}, 3072, v19")
    a("v_mul_u32_u24 v21, 12, v18")
    a(f"s_mul_i32 s{sT0}, s{sTH}, {96 * 768}")
    a(f"s_mul_i32 s{sT1}, s{sCQ}, 192")
    a(f"s_add_u32 s{sT0}, s{sT0}, s{sT1}")
    a(f"v_add3_u32 v{vOUT}, v{vOUT}, v21, s{sT0}")
    if OPT["outlin"]:
        a(f"v_mul_u32_u24 v{vOUT}, 12, v17")
        a(f"s_mul_i32 s{sT0}, s{sWV}, 18432")
        a(f"v_add_u32 v{vOUT}, s{sT0}, v{vOUT}")
    a(f"s_mul_i32 s{sT0}, s{sCQ}, 6144")
    a(f"v_lshl_add_u32 v{vWB0}, v17, 4, s{sT0}")
    a("v_and_b32 v21, 3, v18")
    a("v_lshrrev_b32 v22, 2, v18")
    a("v_and_b32 v23, 2, v19")
    a("v_xor_b32 v23, v23, v21")
    a("v_lshl_add_u32 v22, v23, 2, v22")
    a("v_lshl_add_u32 v22, v21, 4, v22")
    a("v_lshlrev_b32 v22, 4, v22")
    a("v_and_b32 v23, 1, v19")
    a("v_lshl_add_u32 v22, v23, 3, v22")
    a(f"s_mul_i32 s{sT0}, s{sTH}, 6144")
    a(f"s_add_u32 s{sT0}, s{sT0}, {L_H}")
    a(f"v_add_u32 v{vHB0}, s{sT0}, v22")
    a(f"v_xor_b32 v{vHB1}, 64, v{vHB0}")
    a(f"s_lshl_b32 s{sT0}, s{sCQ}, 2")
    a("v_lshl_add_u32 v22, v21, 1, v19")
    a(f"v_add_u32 v22, s{sT0}, v22")
    a("v_and_b32 v22, 15, v22")
    a("v_mul_u32_u24 v22, 48, v22")
    a("v_mul_u32_u24 v23, 768, v18")
    a(f"v_add_u32 v22, {L_X}, v22")
    a(f"v_add_u32 v{vXR}, v22, v23")
    a("v_lshrrev_b32 v22, 2, v18")
    a("v_cmp_eq_u32 vcc, v22, v19")
    a("v_mov_b32 v23, 0x3f80")
    a("s_nop 0")
    a("v_cndmask_b32 v23, 0, v23, vcc")
    for e in range(4):
        a(f"v_cmp_eq_u32 vcc, {e}, v21")
        a("s_nop 1")
        a(f"v_cndmask_b32 v{SEL+e}, 0, v23, vcc")
        a(f"v_lshlrev_b32 v{SEL+4+e}, 16, v{SEL+e}")
    a("s_mov_b64 vcc, s[50:51]")
    a(f"s_mov_b32 s{sWS}, 0")
    a(f"s_mov_b32 s{sHS}, 0")
    a(f"s_mov_b32 s{sJ}, 0")
    a(f"s_mov_b32 s{sOB}, {2 * 192 * 768}")
    a(f"s_mov_b32 s{sEV}, 11")
    a(f"s_waitcnt vmcnt({18 if KC else 24})")
    a(f"s_sub_u32 s{sT0}, s{sWV}, 4")
    a(f"s_cmp_lt_u32 s{sT0}, 2")
    a("s_cbranch_scc1 K3_pw")
    a("s_waitcnt vmcnt(6)")
    a("s_cbranch_vccz K3_pw")
    a("s_waitcnt vmcnt(0)")
    a.label("K3_pw")
    for p in range(1, NBP):
        for n in range(6):
            src = 24 + n if n < 3 else 25 + n
            a(f"v_add_f32 v{src}, v{src}, v{src + 8*p}")
    for n in range(6):
        src = 24 + n if n < 3 else 25 + n
        if KC: a(f"v_mov_b32 v{BV[n]}, v{src}")
        else:
            for r in range(4): a(f"v_mov_b32 v{BIAS+4*n+r}, v{src}")

    stamp(a, 1)

    def accr(n, t): return ACC + (t * 6 + n) * 4
    pieces0 = pieces
    def pieces(srd_, sfx="", _p=pieces0):
        P = _p(srd_, sfx)
        if OPT["k3skiph"] and sfx != "": P = [[x for x in p if not x.startswith("buffer")] for p in P]
        if OPT["k3skipw"] and sfx == "": P = [[x for x in p if not x.startswith("buffer")] if i >= 6 - OPT["k3skipw"] else p for i, p in enumerate(P)]
        return P
    def Lseg(u4, grp, tag):
        L = [f"v_add_u32 v{vWR}, s{sWS}, v{vWB0}", f"v_add_u32 v{vHR0}, s{sHS}, v{vHB0}", f"v_add_u32 v{vHR1}, s{sHS}, v{vHB1}"]
        R = []
        for t in range(6):
            R.append(f"ds_read_b128 {q(WB + 4*t)}, v{vWR} offset:{t*1024}")
            R.append(f"ds_read_b64_tr_b16 {q(HB + 4*t, 2)}, v{vHR0} offset:{t*1024}")
            R.append(f"ds_read_b64_tr_b16 {q(HB + 4*t + 2, 2)}, v{vHR1} offset:{t*1024}")
        if KC:
            R = [f"ds_read_b128 {q(WB + 4*t)}, v{vWR} offset:{t*1024}" for t in range(6)]
            if u4 % 2 == 0:
                for t in range(6):
                    for c in range(2):
                        R.append(f"ds_read_b64_tr_b16 {q(HB + 24*c + 4*t, 2)}, v{vHR0} offset:{c*12288 + t*1024}")
                        R.append(f"ds_read_b64_tr_b16 {q(HB + 24*c + 4*t + 2, 2)}, v{vHR1} offset:{c*12288 + t*1024}")
            else: L = L[:1]
            P = pieces(sD, wnt if grp == 0 else nt); P[5] = P[5] + (advance_w() if grp == 0 else advance_h())
            def gd(X, z): return X if grp == 0 or u4 == 0 else [f"s_cbranch_vccnz K3_{tag}sl{u4}{z}"] + X + [f"K3_{tag}sl{u4}{z}:"]
            na = 6 if grp == 1 or u4 % 2 or (tag == "f" and u4 == 0) else OPT["k3ne"]
            if u4 % 2 == 0:
                for m in range(5):
                    if m < na: L += gd(P[m], "abcde"[m])
                    L += R[6*m:6*m+6]
                if na == 6: L += gd(P[5], "f")
            else:
                L += gd(P[0], "a") + R + gd([x for p in P[1:] for x in p], "b")
        elif grp == 0:
            P = pieces(sD, wnt); P[5] = P[5] + advance_w()
            na = 6 if tag == "f" and u4 == 0 else OPT["k3na"]
            pos = [0, 6, 12, 18, 18, 18]
            for k in range(19):
                for m in range(na):
                    if pos[m] == k: L += P[m]
                if k < 18: L.append(R[k])
        elif OPT["k3bl"]:
            P = pieces(sD, nt); P[5] = P[5] + advance_h()
            def gd(X, z): return X if u4 == 0 else [f"s_cbranch_vccnz K3_{tag}sl{u4}{z}"] + X + [f"K3_{tag}sl{u4}{z}:"]
            if OPT["k3pre"]: L = R[15:] + gd(P[0] + P[1] + P[2] + P[3] + P[4] + P[5], "d")
            else: L += gd(P[0], "a") + R[:6] + gd(P[1], "b") + R[6:12] + gd(P[2], "c") + R[12:] + gd(P[3] + P[4] + P[5], "d")
        else:
            L += R
        if u4 == 3:
            lab = f"K3_{grp}{tag}_xr"
            L += [f"s_sub_u32 s{sT0}, s{sEV}, {6*grp}", f"s_cmp_lt_u32 s{sT0}, 6", f"s_cbranch_scc0 {lab}"]
            for p in range(3):
                L.append(f"ds_read2_b32 {q(XT + 4*p, 2)}, v{vXR} offset0:{p} offset1:{p+3}")
                L.append(f"ds_read2_b32 {q(XT + 4*p + 2, 2)}, v{vXR} offset0:{p+6} offset1:{p+9}")
            L.append(lab + ":")
        L += [f"s_add_u32 s{sWS}, s{sWS}, 24576", f"s_cmp_eq_u32 s{sWS}, 73728", f"s_cselect_b32 s{sWS}, 0, s{sWS}",
              f"s_add_u32 s{sHS}, s{sHS}, {24576 if KC else 12288}", f"s_cmp_eq_u32 s{sHS}, 73728", f"s_cselect_b32 s{sHS}, 0, s{sHS}"][:3 if KC and u4 % 2 else 6]
        return L
    def pre_reads():
        AD = [f"v_add_u32 v{vWR}, s{sWS}, v{vWB0}", f"v_add_u32 v{vHR0}, s{sHS}, v{vHB0}", f"v_add_u32 v{vHR1}, s{sHS}, v{vHB1}"]
        R = []
        for t in range(6):
            R.append(f"ds_read_b128 {q(WB + 4*t)}, v{vWR} offset:{t*1024}")
            R.append(f"ds_read_b64_tr_b16 {q(HB + 4*t, 2)}, v{vHR0} offset:{t*1024}")
            R.append(f"ds_read_b64_tr_b16 {q(HB + 4*t + 2, 2)}, v{vHR1} offset:{t*1024}")
        return AD, R
    def vmwait(strict, loose, lab):
        if (OPT["k3nv"] >> {6: 0, 0: 1}.get(strict, 2)) & 1: return []
        if loose is None or OPT["k3nost"]: return [f"s_waitcnt vmcnt({strict})"]
        return [f"s_waitcnt vmcnt({loose})", f"s_cmp_lg_u32 s{sJ}, 0", f"s_cbranch_scc1 {lab}", f"s_waitcnt vmcnt({strict})", lab + ":"]
    def Mseg(u4, grp, tag):
        first = tag == "f" and u4 == 0
        Ms = []
        for t in range(6):
            for n in range(6):
                c = q(BIAS + 4*n) if first else q(accr(n, t))
                Ms.append([f"v_mfma_f32_16x16x32_bf16 {q(accr(n, t))}, {q(HB + 4*t)}, {q(WB + 4*n)}, {c}"])
        if KC:
            Ms = []
            for t in range(6):
                for n3 in range(3):
                    for c in range(2):
                        ac = q(accr(3 * (u4 % 2) + n3, t))
                        Ms.append([f"v_mfma_f32_16x16x32_bf16 {ac}, {q(HB + 24*c + 4*t)}, {q(WB + 12*c + 4*n3)}, {q(XT + 4*n3) if tag == 'f' and u4 < 2 and c == 0 else ac}"])
        if grp == 0:
            P = pieces(sD, wnt); P[5] = P[5] + advance_w()
            na = 6 if first or (KC and u4 % 2) else OPT["k3ne" if KC else "k3na"]
            for m in range(na, 6): Ms[1 + (m - na) * OPT["k3as"]] += P[m]
            e = OPT["k3eb"]
            loose = 30 if tag == "f" and u4 < 2 else None
            Ms[35 - e] += (["s_setprio 3"] if e else []) + vmwait(6, loose, f"K3_0{tag}_vw{u4}") + ["s_barrier"]
        elif not OPT["k3bl"]:
            P = pieces(sD, nt); P[5] = P[5] + advance_h()
            for m in range(0, 6, 2):
                X = P[m] + P[m + 1]
                if u4 != 3: X = [f"s_cbranch_vccnz K3_{tag}sd{u4}{m}"] + X + [f"K3_{tag}sd{u4}{m}:"]
                Ms[OPT["k3b0"] + (m // 2) * OPT["k3bs"]] += X
        if grp == 1 and OPT["k3pre"]:
            AD, R = pre_reads()
            Ms[0].append(AD[1]); Ms[1].append(AD[2]); Ms[2].append(AD[0])
            for t in range(5):
                Ms[6 * t + 6].append(R[3 * t + 1]); Ms[6 * t + 7].append(R[3 * t + 2])
                Ms[31 + t].append(R[3 * t])
        return [x for m in Ms for x in m]
    def Xseg(grp, tag):
        g = f"{grp}{tag}"
        L = [f"s_cmp_lt_u32 s{sT0}, 6", f"s_cbranch_scc0 K3_{g}_xdone"]
        for t in range(6):
            if t < 5: L += [f"s_cmp_lg_u32 s{sT0}, {t}", f"s_cbranch_scc1 K3_{g}_x{t+1}"]
            for n in range(6):
                L.append(f"v_mfma_f32_16x16x32_bf16 {q(accr(n, t))}, {q(XT + 4*(n >> 1))}, {q(SEL + 4*(n & 1))}, {q(accr(n, t))}")
            if t < 5: L += [f"s_branch K3_{g}_xdone", f"K3_{g}_x{t+1}:"]
        L += [f"K3_{g}_xdone:", f"s_sub_u32 s{sEV}, s{sEV}, 1"]
        return L
    ofl = ["", " nt", " sc1", " sc0 sc1", " sc0"][OPT["out_nt"]]
    def epilogue(final=False):
        L = ["s_nop 7"]
        idx = 0
        for t in range(6):
            L.append(f"s_mov_b32 s{sT1}, s{sOB}" if t == 0 else f"s_add_u32 s{sT1}, s{sT1}, {3072 if OPT['outlin'] else 12288}")
            for r in range(4):
                tq = XT + 4 * (idx % (3 if KC else 4)); idx += 1
                for j in range(3): L.append(f"v_cvt_pk_bf16_f32 v{tq+j}, v{accr(2*j, t)+r}, v{accr(2*j+1, t)+r}")
                if not OPT["k3nost"]: L.append(f"buffer_store_dwordx3 {q(tq, 3)}, v{vOUT}, s[{sO}:{sO+3}], s{sT1} offen offset:{r*768}" + ofl)
        L += [f"s_sub_u32 s{sOB}, s{sOB}, {192 * 768}"]
        return L
    def block(grp, tag):
        if OPT["prof"] == 2: a.label(f"K3_np{tag}{grp}")
        if OPT["prof"] == 1 and grp == 1:
            a(f"s_cmp_lg_u32 s{sWV}, 7")
            a(f"s_cbranch_scc1 K3_np{tag}")
            a("s_memrealtime s[90:91]")
            a("s_waitcnt lgkmcnt(0)")
            a("v_mov_b32 v12, s90")
            a("v_mov_b32 v13, 0")
            a("buffer_store_dword v12, v13, s[84:87], s83 offen")
            a("s_add_u32 s83, s83, 4")
            a.label(f"K3_np{tag}")
        for u4 in range(4):
            a.ext(Lseg(u4, grp, tag))
            if OPT["prof"] == 2 and u4 == 0 and grp == OPT["latw"] // 4:
                a(f"s_cmp_lg_u32 s{sWV}, {OPT['latw']}")
                a(f"s_cbranch_scc1 K3_nq{tag}")
                a("s_memrealtime s[92:93]")
                a("s_waitcnt vmcnt(0) lgkmcnt(0)")
                a("s_memrealtime s[94:95]")
                a("s_waitcnt lgkmcnt(0)")
                a("s_sub_u32 s94, s94, s92")
                a("s_add_u32 s82, s82, s94")
                a("v_mov_b32 v12, s82")
                a("v_mov_b32 v13, 0")
                a("buffer_store_dword v12, v13, s[84:87], s83 offen")
                a("s_add_u32 s83, s83, 4")
                a.label(f"K3_nq{tag}")
            if tag == "f" and u4 == 0:
                a(f"s_cmp_eq_u32 s{sJ}, 0")
                a(f"s_cbranch_scc1 K3_{grp}_noep")
                if OPT["stamp"]:
                    a(f"s_sub_u32 s96, s{sJ}, 48")
                    stamp2(a, 2, 4, 96)
                a.ext(epilogue())
                stamp2(a, 3, 5, 96)
                a.label(f"K3_{grp}_noep")
            if KC and tag == "f" and u4 < 2:
                a("s_nop 1")
                for i in range(12): a(f"v_mov_b32 v{XT+i}, v{BV[3*u4 + i//4]}")
            if grp == 0:
                a("s_waitcnt lgkmcnt(0)")
                a(f"s_setprio {OPT['k3pa']}")
            else:
                if u4 == 2:
                    a(f"s_cbranch_vccz K3_{tag}nx")
                    a.ext(vmwait(0, 24 if tag == "f" else None, "K3_fxw"))
                    a.label(f"K3_{tag}nx")
                if not KC: a.ext(vmwait(24, 48 if tag == "f" else None, f"K3_fh{u4}"))
                elif u4 % 2: a.ext(vmwait(18, 42 if tag == "f" else None, f"K3_fh{u4}"))
                a("s_waitcnt lgkmcnt(0)")
                a("s_barrier")
                a(f"s_setprio {OPT['k3pb']}")
            if u4 == 3: a.ext(Xseg(grp, tag))
            a.ext(Mseg(u4, grp, tag))
            a(f"s_setprio {OPT['k3pl']}")

    if OPT["prof"]:
        srd(a, 84, 24, 25, 65536, TAIL + (5 << 20))
        a("s_lshl_b32 s83, s2, 8")
        a("s_mov_b32 s82, 0")
    a("s_barrier")
    if OPT["k3pre"]:
        AD, R = pre_reads(); a.ext(AD + R[:15])
    a(f"s_cmp_lg_u32 s{sTH}, 0")
    a("s_cbranch_scc1 K3_1_tile")
    for grp in range(2):
        a.label(f"K3_{grp}_tile")
        a(f"s_mov_b32 s{sEV}, 11")
        block(grp, "f")
        a(".p2align 6")
        a.label(f"K3_{grp}_loop")
        block(grp, "l")
        a(f"s_cmp_lg_u32 s{sEV}, -1")
        a(f"s_cbranch_scc1 K3_{grp}_loop")
        a(f"s_add_u32 s{sJ}, s{sJ}, 48")
        a(f"s_cmp_lg_u32 s{sJ}, 144")
        a(f"s_cbranch_scc1 K3_{grp}_tile")
        if grp == 0:
            a("s_branch K3_fin0")
    a.label("K3_fin0")
    stamp(a, 6)
    a.ext(epilogue(True))
    a.label("K3_fin")
    if OPT["stamp"]: a("s_waitcnt vmcnt(0)")
    stamp(a, 7)
    stamp_dump(a, 8, sWV, "K3", 1)
    a.label("K3_end")
    a("s_endpgm")
    return a, desc("gemm2_kernel", 256, 100), f"; @launch kernel=gemm2_kernel grid=(256,1,1) block=(512,1,1) lds={L_X + 12288}"

def main():
    ks = [k1(), k2(), k3r() if OPT['roll'] else k3()]
    errs = []
    for a, _, l in ks: errs += check(a.lines, l.split("=")[1].split()[0])
    for a, _, l in ks:
        for i, x in enumerate(a.lines):
            if x.startswith("s_set_gpr_idx_on"): assert a.lines[i + 3] == "s_set_gpr_idx_off", "gpr idx not closed"
    for e in errs: print(e, file=sys.stderr)
    hdr = open("standalone__modern_conv_block_slak__vision.s.ref").read().split("\n")
    hdr = [l for l in hdr if l.startswith(";") and "@launch" not in l and "Override" not in l and "grid=ceil" not in l]
    out = "\n".join(hdr) + "\n" + "\n".join(l for _, _, l in ks) + "\n"
    out += '.amdgcn_target "amdgcn-amd-amdhsa--gfx950"\n.text\n'
    for a, _, _ in ks: out += a.text()
    out += '.section .rodata,"a"\n'
    for _, d, _ in ks: out += d
    open(sys.argv[1], "w").write(out)
    print("written", sys.argv[1], len(out), "bytes; hazards:", len(errs))
main()
```

```python
import sys, struct, math
from asmlib import Asm, check

OPT = dict(f16=1, st_nt=1, h_nt=1, w_nt=0, out_nt=0, x_nt=1, xp_nt=1, ord=4, ntail=1, k3skipw=0, kf=0, k3pre=0, prof=0, roll=0, stg=1, mp0=2, mpd=2, ipf=0, k3pl=0, wwarm=0, latw=7, dwarm=1, sdot=2, k3c=1, k3ne=6, k3nv=0, k3skiph=0, npf=1, kmask=0, k1nv=0, w1warm=1, bgb=-1, stamp=0, denorm=3, pm=3, pg0=0, pg1=1, bg=4, gb=2, gp=2, stm=7, stm0=7, w2pf=1, sga=7,
           k3pa=1, k3pb=2, k3eb=3, k3nost=0, k3noh=0, k3nox=0, k3now=0, k3na=6, k3as=5, k3b0=18, k3bs=5, k3bl=1, outlin=0, nostore=0)
for a in sys.argv[2:]:
    k, v = a.split("="); OPT[k] = int(v, 0)

def f32(x): return "0x%08x" % struct.unpack("<I", struct.pack("<f", x))[0]
def f16bits(x): return struct.unpack("<H", struct.pack("<e", x))[0]

M = 147456; C = 384; F = 1536
XBYTES = M * C * 2
WSBYTES = 452984832
TILE_H = 589824; CHUNK_H = 12288; HSTRIDE = 3 * TILE_H - 2 * CHUNK_H
TAIL = 256 * HSTRIDE
W2F = TAIL + 1179648; B2 = TAIL; SSQ = TAIL + 2363392
NREP = 8
K1c = 2.0 * math.sqrt(2.0 / math.pi) * math.log2(math.e)
K3c = K1c * 0.044715
if OPT["f16"]:
    C0 = 1258.0 / 256.0
    ALPHA = K1c / C0
else:
    ALPHA = K3c ** (1.0 / 3.0)
    C0 = K1c / ALPHA

def srd(a, d, lo, hi, nrec, off=0):
    if off:
        a(f"s_add_u32 s{d}, s{lo}, {off}")
        a(f"s_addc_u32 s{d+1}, s{hi}, 0")
    else:
        a(f"s_mov_b32 s{d}, s{lo}")
        a(f"s_mov_b32 s{d+1}, s{hi}")
    a(f"s_mov_b32 s{d+2}, {nrec}")
    a(f"s_mov_b32 s{d+3}, 0x00020000")

def stamp(a, idx, base=64):
    if not OPT["stamp"]: return
    a("s_memrealtime s[90:91]")
    a("s_memtime s[92:93]")
    a("s_waitcnt lgkmcnt(0)")
    a(f"s_mov_b32 s{base+2*idx}, s90")
    a(f"s_mov_b32 s{base+2*idx+1}, s92")

def stamp2(a, ia, ib, creg, base=64):
    if not OPT["stamp"]: return
    a("s_memrealtime s[90:91]")
    a("s_memtime s[92:93]")
    a("s_waitcnt lgkmcnt(0)")
    a(f"s_cmp_eq_u32 s{creg}, 0")
    a(f"s_cselect_b32 s{base+2*ia}, s90, s{base+2*ia}")
    a(f"s_cselect_b32 s{base+2*ia+1}, s92, s{base+2*ia+1}")
    a(f"s_cselect_b32 s{base+2*ib}, s{base+2*ib}, s90")
    a(f"s_cselect_b32 s{base+2*ib+1}, s{base+2*ib+1}, s92")

def stamp_dump(a, n, wave_sgpr, tag, kidx, base=64):
    if not OPT["stamp"]: return
    a(f"s_and_b32 s94, s{wave_sgpr}, 3")
    a("s_cmp_lg_u32 s94, 0")
    a(f"s_cbranch_scc1 {tag}_nodump")
    a("s_load_dwordx2 s[90:91], s[0:1], 64")
    a("s_waitcnt lgkmcnt(0)")
    a(f"s_add_u32 s88, s90, {TAIL + (4 << 20) + kidx * 65536}")
    a("s_addc_u32 s89, s91, 0")
    a("s_mov_b32 s90, 65536")
    a("s_mov_b32 s91, 0x00020000")
    a(f"s_lshl_b32 s94, s{wave_sgpr}, 5")
    a("s_lshl_b32 s95, s2, 8")
    a("s_add_u32 s94, s94, s95")
    a("v_mov_b32 v8, 0")
    for i in range(n):
        a(f"v_mov_b32 v10, s{base+2*i}")
        a(f"v_mov_b32 v11, s{base+2*i+1}")
        a(f"buffer_store_dwordx2 v[10:11], v8, s[88:91], s94 offen offset:{i*8}")
        a("s_waitcnt vmcnt(0)")
    a.label(f"{tag}_nodump")

def q(r, n=4): return f"v[{r}:{r+n-1}]"

def kernel_start(a, name):
    a(f".globl {name}")
    a(".p2align 8")
    a(f".type {name},@function")
    a.label(name)

def code_prefetch(a, start, end, vt, st):
    if not OPT["ipf"]: return
    a(f"s_getpc_b64 s[{st}:{st+1}]")
    a(f"s_and_b32 s{st}, s{st}, 0xffffff00")
    a(f"s_mov_b32 s{st+2}, {end}-{start}")
    a(f"s_mov_b32 s{st+3}, 0x00020000")
    a(f"v_lshlrev_b32 v{vt}, 7, v0")
    a(f"buffer_load_dword v{vt}, v{vt}, s[{st}:{st+3}], 0 offen")

def desc(name, vgpr, sgpr=96):
    acc = min(256, (vgpr + 3) // 4 * 4)
    return f""".p2align 6
.amdhsa_kernel {name}
  .amdhsa_next_free_vgpr {vgpr}
  .amdhsa_next_free_sgpr {sgpr}
  .amdhsa_accum_offset {acc}
  .amdhsa_group_segment_fixed_size 0
  .amdhsa_kernarg_size 72
  .amdhsa_user_sgpr_count 2
  .amdhsa_user_sgpr_kernarg_segment_ptr 1
  .amdhsa_system_sgpr_workgroup_id_x 1
  .amdhsa_float_denorm_mode_32 {OPT['denorm']}
.end_amdhsa_kernel
"""

def gelu_batch(b, TMP, SSr, first, sC0, sC0H):
    L = []
    R = [b + i for i in range(8)]
    if not OPT["f16"]:
        T = [TMP + i for i in range(8)]
        for v, t in zip(R, T): L.append(f"v_fma_f32 v{t}, -v{v}, v{v}, s{sC0}")
        for v, t in zip(R, T): L.append(f"v_mul_f32 v{t}, v{t}, v{v}")
        for t in T: L.append(f"v_exp_f32 v{t}, v{t}")
        for t in T: L.append(f"v_add_f32 v{t}, 1.0, v{t}")
        for t in T: L.append(f"v_rcp_f32 v{t}, v{t}")
        for v, t in zip(R, T): L.append(f"v_mul_f32 v{t}, v{v}, v{t}")
        Gv = T
    else:
        H = [TMP + i for i in range(4)]; Pp = [TMP + 4 + i for i in range(4)]
        for i in range(4): L.append(f"v_cvt_pk_f16_f32 v{H[i]}, v{R[2*i]}, v{R[2*i+1]}")
        for i in range(4): L.append(f"v_pk_fma_f16 v{Pp[i]}, v{H[i]}, v{H[i]}, s{sC0H} neg_lo:[1,0,0] neg_hi:[1,0,0]")
        for i in range(4): L.append(f"v_pk_mul_f16 v{Pp[i]}, v{Pp[i]}, v{H[i]}")
        for i in range(4): L.append(f"v_exp_f16 v{H[i]}, v{Pp[i]}")
        for i in range(4): L.append(f"v_exp_f16_sdwa v{H[i]}, v{Pp[i]} dst_sel:WORD_1 dst_unused:UNUSED_PRESERVE src0_sel:WORD_1")
        for i in range(4): L.append(f"v_pk_add_f16 v{H[i]}, v{H[i]}, 1.0 op_sel_hi:[1,0]")
        for i in range(4): L.append(f"v_rcp_f16 v{Pp[i]}, v{H[i]}")
        for i in range(4): L.append(f"v_rcp_f16_sdwa v{H[i]}, v{H[i]} dst_sel:DWORD dst_unused:UNUSED_PAD src0_sel:WORD_1")
        for i in range(4): L.append(f"v_fma_mix_f32 v{R[2*i]}, v{R[2*i]}, v{Pp[i]}, 0 op_sel_hi:[0,1,0]")
        for i in range(4): L.append(f"v_fma_mix_f32 v{R[2*i+1]}, v{R[2*i+1]}, v{H[i]}, 0 op_sel_hi:[0,1,0]")
        Gv = R
    for e in (0, 4, 1, 5, 2, 6, 3, 7) if not OPT['sdot'] else ():
        s_ = SSr + e // 4
        L.append(f"v_mul_f32 v{s_}, v{Gv[e]}, v{Gv[e]}" if first and e % 4 == 0 else f"v_fmac_f32 v{s_}, v{Gv[e]}, v{Gv[e]}")
    for i in range(4): L.append(f"v_cvt_pk_bf16_f32 v{b+i}, v{Gv[2*i]}, v{Gv[2*i+1]}")
    return L

NBP = 6
def k2():
    a = Asm()
    kernel_start(a, "mid_kernel")
    a("s_cmp_ge_u32 s2, 24")
    a("s_cbranch_scc1 K2_end")
    stamp(a, 0)
    a("s_load_dwordx4 s[4:7], s[0:1], 24")
    a("s_load_dwordx2 s[8:9], s[0:1], 40")
    a("s_load_dwordx2 s[10:11], s[0:1], 64")
    a("v_lshrrev_b32 v1, 6, v0")
    a("v_and_b32 v2, 63, v0")
    a("v_readfirstlane_b32 s3, v1")
    a("v_mul_u32_u24 v5, 12, v0")
    a("s_lshr_b32 s30, s2, 2")
    a("s_and_b32 s32, s2, 3")
    a("s_lshl_b32 s31, s30, 3")
    a("s_add_u32 s31, s31, s3")
    a("s_mul_i32 s33, s32, 192")
    a(f"s_mul_i32 s34, s31, {32 * 768}")
    a("s_add_u32 s33, s33, s34")
    a("v_lshrrev_b32 v3, 4, v2")
    a("v_and_b32 v4, 1, v3")
    a("v_lshlrev_b32 v4, 4, v4")
    a("v_lshrrev_b32 v3, 1, v3")
    a("v_lshl_add_u32 v3, v3, 3, v4")
    a("v_mul_u32_u24 v7, 768, v3")
    a("v_and_b32 v6, 15, v2")
    a("v_mul_u32_u24 v4, 12, v6")
    a("v_add_u32 v7, v4, v7")
    a("s_lshl_b32 s35, s31, 6")
    a("v_lshlrev_b32 v4, 1, v3")
    a("s_waitcnt lgkmcnt(0)")
    srd(a, 24, 10, 11, WSBYTES - TAIL, TAIL)
    a(f"s_mov_b32 s34, {SSQ - TAIL}")
    for r in range(NREP):
        a(f"buffer_load_dwordx3 {q(32+4*r, 3)}, v5, s[24:27], s34 offen")
        if r < NREP - 1: a("s_add_u32 s34, s34, 6144")
    srd(a, 12, 4, 5, C * F * 2)
    srd(a, 16, 6, 7, F * 2)
    srd(a, 20, 8, 9, F * 2)
    W = 64; U = 96
    for e in range(8):
        if e == 4: a("s_add_u32 s33, s33, 3072")
        a(f"buffer_load_dwordx3 {q(W + 4*e, 3)}, v7, s[12:15], s33 offen offset:{(e % 4) * 768}")
    a("buffer_load_dwordx4 v[16:19], v4, s[16:19], s35 offen")
    a("buffer_load_dwordx4 v[12:15], v4, s[20:23], s35 offen")
    a("s_waitcnt vmcnt(10)")
    stamp(a, 1)
    for st in (4, 2, 1):
        for r in range(st):
            for k in range(3): a(f"v_add_f32 v{32+4*r+k}, v{32+4*r+k}, v{32+4*(r+st)+k}")
    a(f"s_mov_b32 s36, {f32(1.0 / (ALPHA * ALPHA))}")
    a(f"v_mov_b32 v20, {f32(1e-6)}")
    for k in range(3): a(f"v_fma_f32 v{32+k}, v{32+k}, s36, v20")
    for k in range(3): a(f"v_sqrt_f32 v{32+k}, v{32+k}")
    a("s_nop 0")
    for k in range(3): a(f"ds_write_b32 v5, v{32+k} offset:{4*k}")
    a("v_add_f32 v21, v32, v33")
    a("v_add_f32 v21, v21, v34")
    for ctl in ("row_shr:1", "row_shr:2", "row_shr:4", "row_shr:8"):
        a("s_nop 1")
        a(f"v_add_f32_dpp v21, v21, v21 {ctl} row_mask:0xf bank_mask:0xf bound_ctrl:0")
    a("s_nop 1")
    a("v_readlane_b32 s40, v21, 15")
    a("v_readlane_b32 s41, v21, 31")
    a("v_readlane_b32 s42, v21, 47")
    a("v_readlane_b32 s43, v21, 63")
    a("s_nop 1")
    a("v_mov_b32 v22, s40")
    a("v_add_f32 v22, s41, v22")
    a("v_add_f32 v22, s42, v22")
    a("v_add_f32 v22, s43, v22")
    a("s_lshl_b32 s37, s3, 2")
    a("v_mov_b32 v23, s37")
    a("ds_write_b32 v23, v22 offset:6144")
    a("s_waitcnt lgkmcnt(0)")
    a("s_barrier")
    stamp(a, 2)
    a("v_mov_b32 v23, 0")
    a("ds_read_b128 v[24:27], v23 offset:6144")
    a("ds_read_b128 v[28:31], v23 offset:6160")
    a("s_lshl_b32 s37, s31, 7")
    a("v_lshlrev_b32 v4, 2, v3")
    a("v_add_u32 v4, s37, v4")
    a("ds_read_b128 v[32:35], v4")
    a("ds_read_b128 v[36:39], v4 offset:16")
    a("s_waitcnt vmcnt(0)")
    for e in range(8):
        for d in range(3):
            a(f"v_lshlrev_b32 v{U + 6*e + 2*d}, 16, v{W + 4*e + d}")
            a(f"v_and_b32 v{U + 6*e + 2*d + 1}, 0xffff0000, v{W + 4*e + d}")
    a("s_waitcnt lgkmcnt(0)")
    for st in (4, 2, 1):
        for r in range(st): a(f"v_add_f32 v{24+r}, v{24+r}, v{24+r+st}")
    a(f"v_mul_f32 v24, {f32(1.0 / F)}, v24")
    a(f"v_add_f32 v24, {f32(1e-6)}, v24")
    a("v_rcp_f32 v24, v24")
    a(f"s_mov_b32 s36, {f32(1.0 / ALPHA)}")
    for e in range(8):
        src = 16 + e // 2
        a(f"v_lshlrev_b32 v40, 16, v{src}" if e % 2 == 0 else f"v_and_b32 v40, 0xffff0000, v{src}")
        a(f"v_mul_f32 v{32+e}, v{32+e}, v24")
        a(f"v_fma_f32 v{32+e}, v{32+e}, v40, 1.0")
        a(f"v_mul_f32 v{32+e}, s36, v{32+e}")
    if OPT["k3c"]:
        a("s_sub_u32 s44, 47, s31")
        a("s_and_b32 s45, s44, 1")
        a("s_andn2_b32 s44, s44, 1")
        a("s_sub_u32 s44, 47, s44")
        a("s_mul_i32 s33, s44, 24")
        a("s_mul_i32 s45, s45, 3")
        a("s_add_u32 s33, s33, s45")
    else:
        a("s_mul_i32 s33, s31, 24")
    a("s_mul_i32 s46, s32, 6")
    a("s_add_u32 s33, s33, s46")
    a("s_lshl_b32 s33, s33, 10")
    a(f"s_add_u32 s33, s33, {W2F - TAIL}")
    a("s_sub_u32 s34, s33, 24576" if OPT["k3c"] else "s_add_u32 s34, s33, 3072")
    a("v_lshlrev_b32 v43, 4, v2")
    for n in range(6):
        T = 44 + 8 * (n % 2); O = W + 4 * n
        for e in range(8): a(f"v_mul_f32 v{T+e}, v{U + 6*e + n}, v{32+e}")
        for i in range(4): a(f"v_cvt_pk_bf16_f32 v{O+i}, v{T+2*i}, v{T+2*i+1}")
        a(f"buffer_store_dwordx4 {q(O)}, v43, s[24:27], s{33 + n // 3} offen offset:{(n % 3) * 1024}")
    for e in range(8):
        a(f"v_lshlrev_b32 v41, 16, v{12 + e // 2}" if e % 2 == 0 else f"v_and_b32 v41, 0xffff0000, v{12 + e // 2}")
        for n in range(6): a(f"v_mul_f32 v{24+n}, v41, v{U + n}" if e == 0 else f"v_fmac_f32 v{24+n}, v41, v{U + 6*e + n}")
    a("v_mul_u32_u24 v43, 24, v0")
    for d in range(3): a(f"ds_write_b64 v43, {q(24 + 2*d, 2)} offset:{6400 + 8*d}")
    a("s_waitcnt lgkmcnt(0)")
    a("s_barrier")
    a("s_cmp_ge_u32 s3, 2")
    a("s_cbranch_scc1 K2_end")
    a("v_lshlrev_b32 v43, 2, v0")
    for w in range(32): a(f"ds_read_b32 v{U + w}, v43 offset:{6400 + 384*w}")
    a("s_waitcnt lgkmcnt(0)")
    for st in (16, 8, 4, 2, 1):
        for r in range(st): a(f"v_add_f32 v{U+r}, v{U+r}, v{U+r+st}")
    a("s_mul_i32 s39, s30, 1536")
    a("s_mul_i32 s38, s32, 384")
    a("s_add_u32 s38, s38, s39")
    a(f"s_add_u32 s38, s38, {B2 - TAIL}")
    a("v_cmp_gt_u32 vcc, 96, v0")
    a("s_and_saveexec_b64 s[40:41], vcc")
    a(f"buffer_store_dword v{U}, v43, s[24:27], s38 offen")
    a("s_mov_b64 exec, s[40:41]")
    if OPT["stamp"]: a("s_waitcnt vmcnt(0)")
    stamp(a, 3)
    stamp_dump(a, 4, 3, "K2", 2)
    a.label("K2_end")
    a("s_endpgm")
    return a, desc("mid_kernel", 144, 100 if OPT["stamp"] else 56), "; @launch kernel=mid_kernel grid=(24,1,1) block=(512,1,1) lds=19200"

def k1():
    a = Asm()
    XN = 8; ACC = 152; BB = 200; SQ = 232
    TMP = BB + 16; SS = BB + 24
    vDE, vXS, vRD, vST, vDW, vDO, vRB = 1, 2, 3, 4, 5, 6, 7
    L_DW = 147456
    sX, sW1, sH, sDB = 8, 12, 16, 20
    sWSlo, sWShi, sOUTlo, sOUThi, sDBlo, sDBhi = 24, 25, 26, 27, 28, 29
    (sWV, sGRP, sI, sEND, sRDS, sDSL, sT0, sT1, sC0, sHB, sXB, sREG, sSIG, sT2, sC0H, sDSR, sD0, sST0, sST1, sXN, sDS0, sTK,
     sSLO, sSHI, sDLO, sDHI, sSG0, sCW, sXU) = range(30, 59)
    sHN, sSLN, sSHN, sDSP, sDSN, sDCN, sCW2, sKM = 82, 83, 84, 85, 86, 87, 3, 97
    REG = 3 * 192 * 768
    kernel_start(a, "gemm1_kernel")
    a("s_cmp_ge_u32 s2, 256")
    a("s_cbranch_scc1 K1_end")
    stamp(a, 0)
    a("s_load_dwordx4 s[4:7], s[0:1], 0")
    a(f"s_load_dwordx2 s[{sW1}:{sW1+1}], s[0:1], 16")
    a(f"s_load_dwordx2 s[{sOUTlo}:{sOUThi}], s[0:1], 48")
    a(f"s_load_dwordx2 s[{sDBlo}:{sDBhi}], s[0:1], 56")
    a(f"s_load_dwordx2 s[{sWSlo}:{sWShi}], s[0:1], 64")
    code_prefetch(a, "gemm1_kernel", "K1_end", BB + 20, 60)
    a("v_lshrrev_b32 v8, 6, v0")
    a("v_and_b32 v9, 63, v0")
    a(f"v_readfirstlane_b32 s{sWV}, v8")
    a("v_lshrrev_b32 v12, 3, v9")
    a("v_and_b32 v13, 7, v9")
    a("v_lshrrev_b32 v14, 1, v12")
    a("v_xor_b32 v14, v14, v13")
    a(f"v_mul_u32_u24 v{vXS}, 768, v12")
    a(f"v_lshl_add_u32 v{vXS}, v14, 4, v{vXS}")
    a(f"s_lshr_b32 s{sT0}, s2, 4")
    a(f"s_and_b32 s{sSG0}, s{sT0}, {OPT['sga']}")
    a(f"s_lshl_b32 s{sT0}, s{sT0}, 4")
    a(f"s_and_b32 s{sT1}, s2, 7")
    a(f"s_lshl_b32 s{sT1}, s{sT1}, 1")
    a(f"s_add_u32 s{sT0}, s{sT0}, s{sT1}")
    a(f"s_bfe_u32 s{sT1}, s2, 0x10003")
    a(f"s_add_u32 s{sREG}, s{sT0}, s{sT1}")
    a(f"s_mul_i32 s{sSLO}, s{sT1}, 12")
    a(f"s_add_u32 s{sSHI}, s{sSLO}, 12")
    a(f"s_lshr_b32 s{sGRP}, s{sWV}, 2")
    a(f"s_and_b32 s{sT1}, s{sWV}, 3")
    a(f"s_add_u32 s{sT0}, s{sT0}, s{sGRP}")
    a(f"s_mul_i32 s{sXB}, s{sT0}, {REG}")
    a(f"s_mul_i32 s{sT2}, s{sT1}, {48 * 768}")
    a(f"s_add_u32 s{sXB}, s{sXB}, s{sT2}")
    if not OPT["roll"]: a(f"s_add_u32 s{sXB}, s{sXB}, {2 * 192 * 768}")
    a(f"s_mul_i32 s{sHB}, s{sT0}, {HSTRIDE}")
    if not OPT["roll"]: a(f"s_add_u32 s{sHB}, s{sHB}, {2 * TILE_H}")
    a(f"s_mul_i32 s59, s{sT0}, {REG}")
    if OPT["roll"]: a(f"s_add_u32 s59, s59, {2 * 192 * 768}")
    a(f"s_mul_i32 s{sXN}, s{sREG}, {REG}")
    a(f"s_add_u32 s{sT2}, s{sWV}, 4" if OPT["roll"] else f"s_xor_b32 s{sT2}, s{sWV}, 4")
    a(f"s_mul_i32 s{sT2}, s{sT2}, {48 * 768}")
    a(f"s_add_u32 s{sXN}, s{sXN}, s{sT2}")
    a(f"s_mul_i32 s{sHN}, s{sREG}, {HSTRIDE}")
    a(f"s_xor_b32 s{sT2}, s{sGRP}, {0 if OPT['roll'] else 1}")
    a(f"s_mul_i32 s{sT2}, s{sT2}, {TILE_H}")
    a(f"s_add_u32 s{sHN}, s{sHN}, s{sT2}")
    if OPT["roll"]: a(f"s_add_u32 s{sHN}, s{sHN}, {46 * CHUNK_H}")
    a(f"s_mov_b32 s{sSLN}, 0")
    a(f"s_mov_b32 s{sSHN}, 24")
    a(f"s_mov_b32 s{sDSP}, 23")
    a(f"s_mov_b32 s{sDSN}, -1")
    if OPT["ord"]:
        a(f"s_bitcmp1_b32 s2, {OPT['ord']}")
        a("s_cbranch_scc0 K1_noswap")
        for x, y in ((sXB, sXN), (sHB, sHN), (sSLO, sSLN), (sSHI, sSHN), (sDSP, sDSN)):
            a(f"s_mov_b32 s{sT2}, s{x}"); a(f"s_mov_b32 s{x}, s{y}"); a(f"s_mov_b32 s{y}, s{sT2}")
        a.label("K1_noswap")
    a(f"s_mul_i32 s{sD0}, s{sWV}, 6144")
    a(f"s_mov_b32 s{sCW}, s{sD0}")
    a(f"s_add_u32 s{sCW2}, s{sD0}, 49152")
    a("s_waitcnt lgkmcnt(0)")
    srd(a, sX, 4, 5, XBYTES)

    KPO = [3, 4, 5, 2, 1, 0]
    def xdma(n, pol=None):
        if pol is None:
            if OPT["x_nt"] == OPT["xp_nt"]: return xdma(n, OPT["x_nt"])
            return [f"s_cbranch_vccnz K1_xa{n}"] + xdma(n, OPT["x_nt"]) + [f"s_branch K1_xb{n}", f"K1_xa{n}:"] + xdma(n, OPT["xp_nt"]) + [f"K1_xb{n}:"]
        xnt = " nt" if pol else ""
        tt, kp = divmod(n, 6); kp = KPO[kp]
        return [f"s_add_u32 m0, s{(sCW, sCW2)[n // 3 % 2]}, {(n % 3) * 2048}", f"s_add_u32 s{sXU}, s{sXB}, {tt * 12288 + kp * 128}",
                f"buffer_load_dwordx4 v{vXS}, s[{sX}:{sX+3}], s{sXU} offen{xnt} lds",
                "s_add_u32 m0, m0, 1024", f"s_add_u32 s{sXU}, s{sXU}, 6144",
                f"buffer_load_dwordx4 v{vXS}, s[{sX}:{sX+3}], s{sXU} offen{xnt} lds"]
    srd(a, sH, 6, 7, C * 2)
    a(f"v_lshlrev_b32 v{ACC+4}, 2, v0")
    a(f"buffer_load_dword v{ACC}, v{ACC+4}, s[{sH}:{sH+3}], 0 offen")
    for n in range(6): a.ext(xdma(n, OPT['x_nt']))
    a('s_mov_b64 vcc, 0')

    a("v_and_b32 v10, 15, v9")
    a("v_lshrrev_b32 v11, 4, v9")
    a(f"v_lshlrev_b32 v{vST}, 2, v11")
    a(f"v_xor_b32 v{vST}, v{vST}, v9")
    a(f"v_lshlrev_b32 v{vST}, 4, v{vST}")
    a(f"s_mul_i32 s{sT2}, s{sT1}, 3072")
    a(f"v_add_u32 v{vST}, s{sT2}, v{vST}")
    a(f"v_lshlrev_b32 v{vDW}, 5, v11")
    a(f"v_add_u32 v{vDW}, {L_DW}, v{vDW}")
    a("v_and_b32 v14, 2, v12")
    a("v_xor_b32 v13, v13, v14")
    a(f"v_mul_u32_u24 v{vDE}, 3072, v12")
    a(f"v_lshl_add_u32 v{vDE}, v13, 4, v{vDE}")
    a(f"v_xor_b32 v{vDO}, 64, v{vDE}")
    a("v_lshrrev_b32 v12, 2, v10")
    a("v_lshl_add_u32 v13, v11, 3, v12")
    a(f"v_lshlrev_b32 v{vRB}, 7, v13")
    a("v_lshrrev_b32 v12, 1, v12")
    a("v_and_b32 v13, 1, v11")
    a("v_lshl_add_u32 v12, v13, 1, v12")
    a(f"v_lshl_add_u32 v{vRB}, v12, 5, v{vRB}")
    a("v_and_b32 v12, 3, v10")
    a(f"v_lshl_add_u32 v{vRB}, v12, 3, v{vRB}")
    a(f"s_mov_b32 s{sC0}, {f32(-C0)}")
    h = f16bits(-C0); a(f"s_mov_b32 s{sC0H}, 0x{h:04x}{h:04x}")
    a(f"s_mul_i32 s{sDS0}, s{sWV}, {6 * 24576}")
    a(f"s_add_u32 s{sSIG}, s{sSLO}, s{sSG0}")
    a(f"s_lshl_b32 s{sDLO}, s{sSLO}, 7")
    a(f"s_add_u32 s{sDLO}, s{sDLO}, s{sDS0}")
    a(f"s_lshl_b32 s{sDHI}, s{sSHI}, 7")
    a(f"s_add_u32 s{sDHI}, s{sDHI}, s{sDS0}")
    a(f"s_lshl_b32 s{sDSR}, s{sSG0}, 7")
    a(f"s_add_u32 s{sDSR}, s{sDSR}, s{sDLO}")
    a(f"s_mov_b32 s{sDSL}, s{sD0}")
    a(f"s_mov_b32 s{sTK}, 1")
    a(f"s_mov_b32 s{sW1+2}, {C * F * 2}")
    a(f"s_mov_b32 s{sW1+3}, 0x00020000")
    srd(a, sDB, sDBlo, sDBhi, 256)

    uid = [0]
    def dma():
        P = []
        for k in range(6):
            pre = [f"s_mov_b32 m0, s{sDSL}", f"s_mov_b32 s{sT0}, s{sDSR}"] if k == 0 else ["s_add_u32 m0, m0, 1024", f"s_add_u32 s{sT0}, s{sT0}, 24576"]
            P.append(pre + [f"buffer_load_dwordx4 v{(vDE, vDO)[k % 2]}, s[{sW1}:{sW1+3}], s{sT0} offen lds"])
        P[5] += [f"s_add_u32 s{sDSL}, s{sDSL}, 49152", f"s_cmp_ge_u32 s{sDSL}, 147456", f"s_cselect_b32 s{sDSL}, s{sD0}, s{sDSL}",
                 f"s_add_u32 s{sDSR}, s{sDSR}, 128", f"s_cmp_eq_u32 s{sDSR}, s{sDHI}", f"s_cselect_b32 s{sDSR}, s{sDLO}, s{sDSR}"]
        uid[0] += 1
        P[5] += [f"s_sub_u32 s{sDCN}, s{sDCN}, 1", f"s_cmp_lg_u32 s{sDCN}, 0", f"s_cbranch_scc1 K1_ds{uid[0]}",
                 f"s_lshl_b32 s{sDLO}, s{sSLN}, 7", f"s_add_u32 s{sDLO}, s{sDLO}, s{sDS0}", f"s_lshl_b32 s{sDHI}, s{sSHN}, 7", f"s_add_u32 s{sDHI}, s{sDHI}, s{sDS0}",
                 f"s_lshl_b32 s{sDSR}, s{sSG0}, 7", f"s_add_u32 s{sDSR}, s{sDSR}, s{sDLO}", f"K1_ds{uid[0]}:"]
        return P

    a(f"v_lshlrev_b32 v{ACC+4}, 3, v0")
    a(f"v_add_u32 v{ACC+4}, {L_DW}, v{ACC+4}")
    a("s_waitcnt vmcnt(12)")
    a(f"v_and_b32 v{ACC+2}, 0xffff, v{ACC}")
    a(f"v_and_b32 v{ACC+3}, 0xffff0000, v{ACC}")
    a(f"ds_write_b64 v{ACC+4}, {q(ACC+2, 2)}")
    a(f"v_mov_b32 v{BB+8}, 1")
    a(f"s_cmp_lg_u32 s{sWV}, 0")
    a("s_cbranch_scc1 K1_pj")
    a(f"v_lshlrev_b32 v{ACC+5}, 8, v0")
    a(f"s_and_b32 s{sT0}, s2, {NREP - 1}")
    a(f"s_lshl_b32 s{sT0}, s{sT0}, 2")
    a(f"buffer_atomic_add v{BB+8}, v{ACC+5}, s[{sDB}:{sDB+3}], s{sT0} offen sc0")
    a.label("K1_pj")
    for r in range(SQ, SQ + 24): a(f"v_mov_b32 v{r}, 0")
    srd(a, sH, sWSlo, sWShi, TAIL)
    a(f"s_mov_b32 s{sI}, 0")
    a(f"s_sub_u32 s{sEND}, s{sSHI}, s{sSLO}")
    a(f"s_mov_b32 s{sRDS}, 0")
    a(f"s_mov_b32 s{sKM}, {OPT['kmask']}")
    a(f"s_mov_b32 s{sDCN}, s{sEND}")
    a(f"s_sub_u32 s{sEND}, s{sEND}, 2")
    a("s_waitcnt lgkmcnt(0)")
    a("s_barrier")
    stamp(a, 1)

    def buf(i): return BB + 4 * (i % 8)
    def rd(i):
        ct, ks = divmod(i, 12)
        L = [f"v_xor_b32 v{vRD}, {((ct - 1) ^ ct) << 5}, v{vRD}"] if ks == 0 and ct > 0 else []
        return L + [f"ds_read_b64_tr_b16 {q(buf(i) + 2*u, 2)}, v{vRD} offset:{ks*4096 + u*512}" for u in range(2)]
    def head(): return [f"v_add_u32 v{vRD}, s{sRDS}, v{vRB}"] + [x for i in range(4) for x in rd(i)]

    DWR = [BB + 16, BB + 24]
    S = BB; Q = BB + 4; vTK = BB + 8; vW2 = BB + 10; vXR = BB + 12; vT = BB + 13; vFL = BB + 14
    KSO = [6, 7, 8, 9, 10, 11, 5, 4, 3, 2, 1, 0]
    def dwrd(m): return [f"ds_read_b128 {q(DWR[m % 2] + 4*j)}, v{vDW} offset:{KSO[m % 12]*128 + j*16}" for j in range(2)]
    def xaddr():
        return [f"v_and_b32 v{vT}, 15, v0", f"v_lshlrev_b32 v{vXR}, 7, v{vT}", f"v_bfe_u32 v{vT}, v0, 1, 2", f"v_bfe_u32 v{vFL}, v0, 4, 2",
                f"v_xor_b32 v{vT}, v{vT}, v{vFL}", f"v_lshl_add_u32 v{vXR}, v{vT}, 4, v{vXR}", f"v_add_u32 v{vT}, s{sCW2}, v{vXR}", f"v_add_u32 v{vXR}, s{sCW}, v{vXR}"]
    def xread(n):
        tt, kp = divmod(n, 6); kp = KPO[kp]
        return [f"ds_read_b128 {q(XN + 48*tt + 8*kp + 4*e)}, v{(vXR, vT)[n // 3 % 2]} offset:{(n % 3) * 2048 + e * 64}" for e in range(2)]
    a.ext(xaddr())
    a.label("K1_ln")
    a.ext(dwrd(0))
    def yreg(tt, d): return XN + 48*tt + 2*d if d < 24 else ACC + 2*(d - 24)
    for tt in range(3):
        for m in range(12):
            n = tt * 6 + m // 2; ks = KSO[m]
            if m % 2 == 0:
                if tt == 0: a(f"s_cbranch_vccnz K1_ta{n}")
                a(f"s_waitcnt vmcnt({2 * min(5, 17 - n) + (6 if n > 14 else 0)})")
                a.ext(xread(n))
                if tt == 0: a.label(f"K1_ta{n}")
            last = tt == 2 and m == 11
            if not last: a.ext(dwrd(m + 1))
            a(f"s_waitcnt lgkmcnt({0 if last else 2})")
            if m % 2 == 0:
                if tt == 0:
                    a(f"s_cbranch_vccnz K1_tb{n}")
                    a.ext(xdma(n + 6, OPT["x_nt"]))
                    a.label(f"K1_tb{n}")
                elif n + 6 < 18: a.ext(xdma(n + 6))
                if n in (14, 17):
                    for p in dma(): a.ext(p)
            D = DWR[m % 2]
            for jj in (3, 2, 1, 0):
                d = 4 * ks + jj; x = XN + 48*tt + d; y = yreg(tt, d)
                a(f"v_dot2_f32_bf16 v{y+1}, v{x}, v{D+2*jj+1}, 0")
                a(f"v_dot2_f32_bf16 v{y}, v{x}, v{D+2*jj}, 0")
            for jj in (3, 2, 1, 0):
                y = q(yreg(tt, 4 * ks + jj), 2); s_ = q(S + 2*(jj % 2), 2); q_ = q(Q + 2*(jj % 2), 2)
                if m == 0 and jj >= 2:
                    a(f"v_pk_mul_f32 {s_}, {y}, 1.0 op_sel_hi:[1,0]")
                    a(f"v_pk_mul_f32 {q_}, {y}, {y}")
                else:
                    a(f"v_pk_add_f32 {s_}, {s_}, {y}")
                    a(f"v_pk_fma_f32 {q_}, {y}, {y}, {q_}")
        a(f"v_pk_add_f32 {q(S,2)}, {q(S,2)}, {q(S+2,2)}")
        a(f"v_pk_add_f32 {q(Q,2)}, {q(Q,2)}, {q(Q+2,2)}")
        a(f"v_add_f32 v{S}, v{S}, v{S+1}")
        a(f"v_add_f32 v{Q}, v{Q}, v{Q+1}")
        for sw in ("v_permlane16_swap_b32", "v_permlane32_swap_b32"):
            a(f"v_mov_b32 v{S+1}, v{S}"); a(f"v_mov_b32 v{Q+1}, v{Q}")
            a("s_nop 0")
            a(f"{sw} v{S}, v{S+1}"); a(f"{sw} v{Q}, v{Q+1}")
            a(f"v_add_f32 v{S}, v{S}, v{S+1}"); a(f"v_add_f32 v{Q}, v{Q}, v{Q+1}")
        a(f"v_mul_f32 v{S}, {f32(-1.0 / C)}, v{S}")
        a(f"v_mul_f32 v{Q}, {f32(1.0 / C)}, v{Q}")
        a(f"v_fma_f32 v{Q}, -v{S}, v{S}, v{Q}")
        a(f"v_max_f32 v{Q}, 0, v{Q}")
        a(f"v_add_f32 v{Q}, {f32(1e-5)}, v{Q}")
        a(f"v_rsq_f32 v{Q}, v{Q}")
        a("s_nop 0")
        a(f"v_mul_f32 v{Q}, {f32(ALPHA)}, v{Q}")
        a(f"v_mul_f32 v{S}, v{S}, v{Q}")
        for d0 in range(0, 48, 4):
            for d in range(d0, d0 + 4):
                y = q(yreg(tt, d), 2)
                a(f"v_pk_fma_f32 {y}, {y}, {q(Q,2)}, {q(S,2)} op_sel_hi:[1,0,0]")
            for d in range(d0, d0 + 4):
                a(f"v_cvt_pk_bf16_f32 v{XN + 48*tt + d}, v{yreg(tt, d)}, v{yreg(tt, d) + 1}")
    a(f"s_cmp_lg_u32 s{sI}, 0")
    a("s_cbranch_scc1 K1_chk")
    if OPT["w1warm"]:
        a(f"s_lshr_b32 s{sT0}, s2, 3")
        a(f"s_lshl_b32 s{sT0}, s{sT0}, 3")
        a(f"s_add_u32 s{sT0}, s{sT0}, s{sWV}")
        a(f"s_mul_i32 s{sT0}, s{sT0}, 4608")
        a(f"v_and_b32 v{ACC}, 63, v0")
        a(f"v_min_u32 v{ACC}, 35, v{ACC}")
        a(f"v_lshlrev_b32 v{ACC}, 7, v{ACC}")
        a(f"s_mov_b32 m0, {L_DW + 2048}")
        a("s_waitcnt vmcnt(0)")
        a(f"buffer_load_dword v{ACC}, s[{sW1}:{sW1+3}], s{sT0} offen lds")
    a(f"v_readfirstlane_b32 s{sTK}, v{BB+8}")
    a("s_nop 3")
    a(f"s_cmp_lg_u32 s{sTK}, 0")
    a("s_cbranch_scc1 K1_flag")
    srd(a, 60, sWSlo, sWShi, NREP * 6144, SSQ)
    a(f"s_and_b32 s{sT0}, s2, {NREP - 1}")
    a(f"s_mul_i32 s{sT1}, s{sT0}, 6144")
    a(f"s_add_u32 s{sT2}, s{sT1}, 4096")
    for i in range(4): a(f"v_mov_b32 v{ACC+i}, 0")
    a(f"v_lshlrev_b32 v{ACC+4}, 4, v0")
    for k in range(6): a(f"buffer_store_dwordx4 {q(ACC)}, v{ACC+4}, s[60:63], s{(sT1, sT2)[k // 4]} offen offset:{(k % 4) * 1024} sc0 sc1")
    a(f"v_lshlrev_b32 v{ACC+5}, 8, v0")
    a(f"v_mov_b32 v{ACC+6}, 1")
    a(f"s_lshl_b32 s{sT0}, s{sT0}, 2")
    a("s_waitcnt vmcnt(0)")
    a(f"buffer_store_dword v{ACC+6}, v{ACC+5}, s[{sDB}:{sDB+3}], s{sT0} offen offset:64 sc0 sc1")
    a("s_branch K1_flag")
    a.label("K1_chk")
    a(f"v_readfirstlane_b32 s{sT1}, v{vFL+1}")
    a("s_nop 3")
    a(f"s_cmp_lg_u32 s{sT1}, 0")
    a("s_cbranch_scc1 K1_flag")
    a(f"v_mov_b32 v{vFL}, 0")
    a(f"buffer_load_dword v{vFL+1}, v{vFL}, s[{sDB}:{sDB+3}], s{sT2} offen offset:64 sc0 sc1")
    a("s_waitcnt vmcnt(0)")
    a("s_branch K1_chk")
    a.label("K1_flag")
    if OPT["w1warm"]:
        a(f"s_cmp_eq_u32 s{sI}, 0")
        a("s_cbranch_scc1 K1_fl2")
    a("s_waitcnt vmcnt(0)")
    a.label("K1_fl2")
    stamp2(a, 2, 5, sI)
    a("s_barrier")
    stamp2(a, 3, 6, sI)
    a.ext(head())
    a(f"s_cmp_eq_u32 s{sGRP}, 0")
    a("s_cbranch_scc1 K1_regA")
    a("s_barrier")
    a("s_branch K1_regB")

    def accr(ct, tt): return ACC + (((ct >> 1) * 3 + tt) * 2 + (ct & 1)) * 4
    NT = OPT["ntail"]
    def step(kind, grp):
        tag = kind + "AB"[grp]
        BG = OPT["bg"] if grp == 0 else OPT["bgb"]
        if kind == "tail":
            a.label(f"K1_pre{tag}")
            if OPT["npf"]:
                a("s_getpc_b64 s[60:61]")
                a.label(f"K1_pc{tag}")
                a(f"v_lshlrev_b32 v{TMP}, 7, v0")
                a(f"v_min_u32 v{TMP}, K3_end-K1_fin, v{TMP}")
                a(f"v_add_u32 v{TMP}, K1_fin-K1_pc{tag}, v{TMP}")
                a(f"v_mov_b32 v{TMP+3}, s61")
                a(f"v_add_co_u32 v{TMP+2}, vcc, s60, v{TMP}")
                a(f"s_mov_b32 m0, {L_DW + 2048}")
                a("s_nop 0")
                a(f"v_addc_co_u32 v{TMP+3}, vcc, 0, v{TMP+3}, vcc")
                a(f"global_load_lds_dword {q(TMP+2, 2)}, off")
        a(".p2align 6")
        a.label(f"K1_{tag}")
        a(f"s_setprio {OPT['pm']}")
        P = dma()
        misc = [[f"s_add_u32 s{sRDS}, s{sRDS}, 49152", f"s_cmp_eq_u32 s{sRDS}, 147456", f"s_cselect_b32 s{sRDS}, 0, s{sRDS}",
                 f"s_mul_i32 s{sST0}, s{sSIG}, {2 * CHUNK_H}", f"s_add_u32 s{sST0}, s{sST0}, s{sHB}"],
                [f"s_cmp_eq_u32 s{sSIG}, s{sDSP}", f"s_cselect_b32 s{sH}, s{sOUTlo}, s{sWSlo}", f"s_cselect_b32 s{sH+1}, s{sOUThi}, s{sWShi}",
                 f"s_cselect_b32 s{sST0}, s59, s{sST0}", f"s_mov_b32 s{sT1}, {XBYTES}", f"s_cselect_b32 s{sH+2}, s{sT1}, {TAIL}"],
                [f"s_add_u32 s{sST1}, s{sST0}, {CHUNK_H}", f"s_add_u32 s{sI}, s{sI}, 1"]]
        for g in range(12):
            a("s_waitcnt lgkmcnt(0)")
            k = 0
            ct = g // 3
            R = [x for j in range(4) for x in rd((g + 1) * 4 + j)] if g < 11 else []
            if len(R) == 9: R = [R[0] + "\n" + R[1]] + R[2:]
            for tt in range(3):
                for j in range(4):
                    i = g * 4 + j; ks = i % 12
                    c = "0" if ks == 0 else q(accr(ct, tt))
                    a(f"v_mfma_f32_16x16x32_bf16 {q(accr(ct, tt))}, {q(XN + 48*tt + 4*ks)}, {q(buf(i))}, {c}")
                    if k < len(R): a(R[k])
                    if k == 10 and g < len(misc): a.ext(misc[g])
                    if k == 9:
                        if g == BG and grp == 0:
                            if kind != "last" and not OPT["k1nv"] & 1: a("s_waitcnt vmcnt(6)")
                            a("s_barrier")
                        if BG < g <= BG + 6:
                            m = g - BG - 1
                            if kind == "pre":
                                if m == 0: a.ext([f"s_mov_b32 s{sCW}, s{sDSL}", f"s_mov_b32 s{sXB}, s{sXN}", f"s_add_u32 s{sCW2}, s{sDSL}, 49152",
                                                  f"s_cmp_ge_u32 s{sCW2}, 147456", f"s_cselect_b32 s{sCW2}, s{sD0}, s{sCW2}"])
                                if m % 2 == 0: a.ext(xdma(m // 2, OPT["xp_nt"]))
                            elif kind == "last":
                                if m % 2 == 0: a.ext(xdma(3 + m // 2, OPT["xp_nt"]))
                            else: a.ext(P[m])
                    k += 1
        a(f"s_setprio {OPT['pg0']}")
        if kind == "last": a.ext(xaddr())
        nb = 0
        for cp in range(2):
            for tt in range(3):
                b = ACC + (cp * 3 + tt) * 8
                a.ext(gelu_batch(b, TMP, SS + 2 * cp, tt == 0, sC0, sC0H))
                keep = kind == "regk" or (kind != "tail" and (OPT["stm"] >> (cp * 3 + tt)) & 1)
                a(f"buffer_store_dwordx4 {q(b)}, v{vST}, s[{sH}:{sH+3}], s{(sST0, sST1)[cp]} offen offset:{tt*1024}" + (" nt" if OPT["st_nt"] and not keep else ["", " sc1", " sc0 sc1", " sc0"][OPT["kf"]]))
                if kind == "last":
                    a(f"s_waitcnt vmcnt({13 + 3 * nb if nb < 3 else 11 + nb})")
                    a.ext(xread(nb))
                    a("s_waitcnt lgkmcnt(0)")
                    a.ext(xdma(nb + 6, OPT["xp_nt"]))
                nb += 1
                if nb == OPT["gb"] and grp == 1 and kind != "last":
                    if kind == "tail":
                        a(f"s_cmp_eq_u32 s{sI}, 36")
                        a(f"s_cbranch_scc1 K1_nogb")
                    if kind != "pre" and not OPT["k1nv"] & 2: a(f"s_waitcnt vmcnt({nb})")
                    a("s_barrier")
                    if kind == "tail": a.label("K1_nogb")
                if nb == OPT["gp"]: a(f"s_setprio {OPT['pg1']}")
                if nb == 5 and kind != "last": a.ext(head())
            if not OPT["sdot"]:
                a(f"v_permlane16_swap_b32 v{SS+2*cp}, v{SS+2*cp+1}")
                if cp == 0: a("s_nop 0")
                a(f"v_add_f32 v{SS+2*cp}, v{SS+2*cp}, v{SS+2*cp+1}")
        if OPT["sdot"]:
            for tt in range(3):
                for i in range(2):
                    for c in range(4):
                        p = ACC + ((c >> 1) * 3 + tt) * 8 + 2 * (c & 1) + i
                        a(f"v_dot2_f32_bf16 v{SS+c}, v{p}, v{p}, 0" if tt == 0 and i == 0 else (f"v_dot2_f32_bf16 v{SS+c}, v{p}, v{p}, v{SS+c}" if OPT["sdot"] == 1 else f"v_dot2c_f32_bf16 v{SS+c}, v{p}, v{p}"))
            a("s_nop 0")
            a(f"v_permlane16_swap_b32 v{SS}, v{SS+1}")
            a("s_nop 0")
            a(f"v_permlane16_swap_b32 v{SS+2}, v{SS+3}")
            a(f"v_add_f32 v{SS}, v{SS}, v{SS+1}")
            a(f"v_add_f32 v{SS+2}, v{SS+2}, v{SS+3}")
        a("s_nop 1")
        a(f"v_permlane32_swap_b32 v{SS}, v{SS+2}")
        a(f"v_add_f32 v{SS}, v{SS}, v{SS+2}")
        a(f"s_set_gpr_idx_on s{sSIG}, gpr_idx(SRC0,DST)")
        a(f"s_add_u32 s{sSIG}, s{sSIG}, 1")
        a(f"v_add_f32 v{SQ}, v{SQ}, v{SS}")
        a("s_set_gpr_idx_off")
        a(f"s_cmp_eq_u32 s{sSIG}, s{sSHI}")
        a(f"s_cselect_b32 s{sSIG}, s{sSLO}, s{sSIG}")
        if kind in ("reg", "regk"):
            g_ = "AB"[grp]
            if OPT["kmask"]:
                a(f"s_cmp_eq_u32 s{sI}, s{sEND}")
                a(f"s_cbranch_scc1 K1_out{g_}")
                a(f"s_bitcmp1_b32 s{sKM}, s{sSIG}")
                a(f"s_cbranch_scc{int(kind == 'regk')} K1_{tag}")
                if kind == "reg": a(f"s_branch K1_regk{g_}")
            else:
                a(f"s_cmp_lg_u32 s{sI}, s{sEND}")
                a(f"s_cbranch_scc1 K1_{tag}")
            if kind == "reg":
                a.label(f"K1_out{g_}")
                a(f"s_cmp_eq_u32 s{sI}, {36 - NT}")
                a(f"s_cbranch_scc1 K1_pretail{g_}")
        elif kind == "pre":
            pass
        elif kind == "last":
            a("s_branch K1_sw")
        else:
            a(f"s_cmp_lg_u32 s{sI}, 36")
            a(f"s_cbranch_scc1 K1_{tag}")
            a("s_branch K1_fin")
    for grp in range(2):
        for kind in (("regk",) if OPT["kmask"] else ()) + ("reg", "pre", "last", "tail"): step(kind, grp)
    a.label("K1_sw")
    a("s_setprio 0")
    a("s_mov_b64 vcc, -1")
    stamp(a, 4)
    a(f"s_mov_b32 s{sEND}, {36 - NT}")
    a(f"s_mov_b32 s{sSLO}, s{sSLN}")
    a(f"s_mov_b32 s{sSHI}, s{sSHN}")
    a(f"s_add_u32 s{sSIG}, s{sSLO}, s{sSG0}")
    a(f"s_mov_b32 s{sHB}, s{sHN}")
    a(f"s_mov_b32 s{sDSP}, s{sDSN}")
    a(f"s_and_b32 s{sT2}, s2, {NREP - 1}")
    a(f"s_lshl_b32 s{sT2}, s{sT2}, 2")
    a("s_waitcnt lgkmcnt(0)")
    a(f"v_mov_b32 v{vFL}, 0")
    a(f"buffer_load_dword v{vFL+1}, v{vFL}, s[{sDB}:{sDB+3}], s{sT2} offen offset:64 sc0 sc1")
    if OPT["w2pf"]:
        a("s_load_dwordx2 s[60:61], s[0:1], 24")
        a(f"s_mov_b32 s62, {C * F * 2}")
        a("s_mov_b32 s63, 0x00020000")
        a(f"s_mul_i32 s{sT0}, s2, 4608")
        a(f"v_lshlrev_b32 v{BB+10}, 7, v0")
        a(f"v_min_u32 v{BB+10}, 4480, v{BB+10}")
        a("s_waitcnt lgkmcnt(0)")
        a(f"s_cmp_lg_u32 s{sWV}, 0")
        a("s_cbranch_scc1 K1_ln")
        a(f"buffer_load_dword v{BB+11}, v{BB+10}, s[60:63], s{sT0} offen")
    a("s_branch K1_ln")
    a.label("K1_fin")
    a("s_setprio 0")
    stamp(a, 7)
    a(f"s_and_b32 s{sT0}, s2, {NREP - 1}")
    a(f"s_waitcnt vmcnt(6) lgkmcnt(0)")
    a("s_barrier")
    a("v_and_b32 v1, 63, v0")
    a("v_lshlrev_b32 v1, 2, v1")
    a(f"v_add_u32 v1, s{sD0}, v1")
    for k in range(24): a(f"ds_write_b32 v1, v{SQ+k} offset:{k*256}")
    a("v_lshlrev_b32 v1, 2, v0")
    a("s_waitcnt lgkmcnt(0)")
    a("s_barrier")
    for k in range(3):
        for w in range(8): a(f"ds_read_b32 v{XN+8*k+w}, v1 offset:{w*6144 + k*2048}")
    srd(a, 60, sWSlo, sWShi, NREP * 6144, SSQ)
    a(f"s_mul_i32 s{sT0}, s{sT0}, 6144")
    a(f"s_add_u32 s{sT1}, s{sT0}, 4096")
    a("s_waitcnt lgkmcnt(0)")
    for st in (4, 2, 1):
        for k in range(3):
            for w in range(st): a(f"v_add_f32 v{XN+8*k+w}, v{XN+8*k+w}, v{XN+8*k+w+st}")
    a(f"buffer_atomic_add_f32 v{XN}, v1, s[60:63], s{sT0} offen")
    a(f"buffer_atomic_add_f32 v{XN+8}, v1, s[60:63], s{sT0} offen offset:2048")
    a(f"buffer_atomic_add_f32 v{XN+16}, v1, s[60:63], s{sT1} offen")
    if OPT["stamp"]: a("s_waitcnt vmcnt(0)")
    stamp(a, 8)
    stamp_dump(a, 9, sWV, "K1", 0)
    a.label("K1_end")
    a("s_endpgm")
    return a, desc("gemm1_kernel", 256, 100), f"; @launch kernel=gemm1_kernel grid=(256,1,1) block=(512,1,1) lds={L_DW + 4096}"

T1B = 46 * CHUNK_H; T2B = 94 * CHUNK_H
def k3r():
    REG = 3 * 192 * 768
    a = Asm()
    ACC = 16; HB = 160; WB = 184; SEL = 208; BIAS = 216; XT = 240
    vD0, vWR, vHR0, vHR1, vXR, vOUT, vWB0, vHB0, vHB1 = 1, 4, 5, 6, 7, 8, 9, 10, 11
    L_H = 73728; L_X = 147456
    sD, sO = 8, 12
    (sWV, sTH, sCQ, sSrc, sDst, sSlot, sDLo, sDEnd, sT0, sT1, sWS, sHS, sPASS, sOB, sEV, sT2, sJd, sLag, sSrc3, sSrcL, sSrcL3, sLim, sHalf, sDP, sHlo, sHhi) = range(30, 56)
    STG = OPT["stg"]; NB = (5 * STG + 1 + 3) // 4 * 4
    kernel_start(a, "gemm2_kernel")
    a("s_cmp_ge_u32 s2, 256")
    a("s_cbranch_scc1 K3_end")
    stamp(a, 0)
    a("s_load_dwordx2 s[4:5], s[0:1], 0")
    a("s_load_dwordx2 s[6:7], s[0:1], 48")
    a("s_load_dwordx2 s[24:25], s[0:1], 64")
    code_prefetch(a, "gemm2_kernel", "K3_end", 100, 60)
    a("v_lshrrev_b32 v16, 6, v0")
    a("v_and_b32 v17, 63, v0")
    a(f"v_readfirstlane_b32 s{sWV}, v16")
    a(f"v_lshlrev_b32 v{vD0}, 4, v17")
    a(f"v_add_u32 v{vD0+1}, 1024, v{vD0}")
    a(f"v_add_u32 v{vD0+2}, 2048, v{vD0}")
    a("v_and_b32 v18, 15, v17")
    a("v_lshrrev_b32 v19, 4, v17")
    a("v_mul_u32_u24 v20, 24, v18")
    a(f"s_lshr_b32 s{sTH}, s{sWV}, 2")
    a(f"s_and_b32 s{sCQ}, s{sWV}, 3")
    a(f"s_mov_b32 s{sD+3}, 0x00020000")
    a(f"s_mov_b32 s{sO+3}, 0x00020000")
    a(f"s_mov_b32 s{sO+2}, 0")
    a(f"s_mul_i32 s{sT0}, s2, {REG}")
    a(f"s_and_b32 s{sHalf}, s{sWV}, 1")
    a(f"s_mul_i32 s{sHalf}, s{sHalf}, 6144")
    a(f"s_mul_i32 s{sT1}, s2, {HSTRIDE}")
    a(f"s_mov_b32 s{sJd}, 0")
    a(f"s_mov_b32 s{sLag}, 0")
    a(f"s_mov_b32 s{sDP}, 0")
    a(f"s_mov_b32 s{sSrc}, s{sHalf}")
    a("s_waitcnt lgkmcnt(0)")
    a(f"s_add_u32 s{sO}, s6, s{sT0}")
    a(f"s_addc_u32 s{sO+1}, s7, 0")
    a(f"s_add_u32 s{sHlo}, s24, s{sT1}")
    a(f"s_addc_u32 s{sHhi}, s25, 0")
    srd(a, 16, 24, 25, 1536 * NBP, B2)
    a(f"s_mul_i32 s{sT1}, s{sCQ}, 384")
    for p in range(NBP):
        a(f"buffer_load_dwordx3 {q(24 + 8*p, 3)}, v20, s[16:19], s{sT1} offen")
        a(f"buffer_load_dwordx3 {q(28 + 8*p, 3)}, v20, s[16:19], s{sT1} offen offset:12")
        if p < NBP - 1: a(f"s_add_u32 s{sT1}, s{sT1}, 1536")

    nt = " nt" if OPT["h_nt"] else ""
    def pieces_w():
        P = []
        for k in range(6):
            pre = [f"s_mov_b32 m0, s{sDst}", f"s_add_u32 s{sT2}, s{sSrc}, 3072"] if k == 0 else ["s_add_u32 m0, m0, 1024", "s_nop 0"]
            P.append(pre + [f"buffer_load_dwordx4 v{vD0 + k % 3}, s[{sD}:{sD+3}], s{sSrc if k < 3 else sT2} offen lds"])
        P[5] += [f"s_add_u32 s{sDst}, s{sDst}, 24576", f"s_cmp_eq_u32 s{sDst}, s{sDEnd}", f"s_cselect_b32 s{sDst}, s{sDLo}, s{sDst}",
                 f"s_add_u32 s{sSrc}, s{sSrc}, 24576", f"s_cmp_ge_u32 s{sSrc}, 1179648", f"s_cselect_b32 s{sSrc}, s{sDLo}, s{sSrc}"]
        return P
    uid = [0]
    def pieces_h():
        P = []
        for k in range(6):
            if k == 0:
                P.append([f"s_mov_b32 m0, s{sDst}", f"s_add_u32 s{sSrc3}, s{sSrc}, 3072",
                          f"buffer_load_dwordx4 v{vD0}, s[{sD}:{sD+3}], s{sSrc} offen{nt} lds",
                          f"s_sub_u32 s{sSrcL}, s{sSrc}, s{sLag}", f"s_sub_u32 s{sSrcL3}, s{sSrc3}, s{sLag}"])
            else:
                P.append(["s_add_u32 m0, m0, 1024", f"s_cmp_lt_u32 s{sJd}, {STG * k}",
                          f"s_cselect_b32 s{sT2}, s{sSrcL if k < 3 else sSrcL3}, s{sSrc if k < 3 else sSrc3}",
                          f"buffer_load_dwordx4 v{vD0 + k % 3}, s[{sD}:{sD+3}], s{sT2} offen{nt} lds"])
        uid[0] += 1; u = uid[0]
        P[5] += [f"s_add_u32 s{sDst}, s{sDst}, s{sSlot}", f"s_cmp_eq_u32 s{sDst}, s{sDEnd}", f"s_cselect_b32 s{sDst}, s{sDLo}, s{sDst}",
                 f"s_add_u32 s{sSrc}, s{sSrc}, 12288", f"s_cmp_ge_u32 s{sSrc}, s{sLim}", f"s_cselect_b32 s{sD+2}, 0, s{sD+2}",
                 f"s_add_u32 s{sJd}, s{sJd}, 1", f"s_cmp_lt_u32 s{sJd}, 46", f"s_cbranch_scc1 K3_av{u}",
                 f"s_add_u32 s{sT2}, s{sJd}, s{sDP}", f"s_cmp_lg_u32 s{sT2}, 46", f"s_cbranch_scc1 K3_aw{u}",
                 f"s_mov_b32 s{sD}, s{sO}", f"s_mov_b32 s{sD+1}, s{sO+1}", f"s_mov_b32 s{sD+2}, {REG}", f"s_add_u32 s{sSrc}, s{sHalf}, {2 * 192 * 768}",
                 f"K3_aw{u}:", f"s_cmp_lg_u32 s{sJd}, 48", f"s_cbranch_scc1 K3_av{u}",
                 f"s_mov_b32 s{sJd}, 0", f"s_mov_b32 s{sLag}, {48 * CHUNK_H}", f"s_cmp_lg_u32 s{sDP}, 0", f"s_cbranch_scc1 K3_av{u}",
                 f"s_mov_b32 s{sDP}, 100", f"s_mov_b32 s{sLag}, {46 * CHUNK_H}", f"s_mov_b32 s{sD}, s{sHlo}", f"s_mov_b32 s{sD+1}, s{sHhi}",
                 f"s_mov_b32 s{sD+2}, {HSTRIDE}", f"s_add_u32 s{sSrc}, s{sHalf}, {T1B}",
                 f"K3_av{u}:"]
        return P

    a(f"s_cmp_lt_u32 s{sWV}, 4")
    a("s_cbranch_scc1 K3_rw")
    a(f"s_cmp_ge_u32 s{sWV}, 6")
    a("s_cbranch_scc1 K3_rx")
    a(f"s_mov_b32 s{sD}, s{sHlo}")
    a(f"s_mov_b32 s{sD+1}, s{sHhi}")
    a(f"s_mov_b32 s{sD+2}, {HSTRIDE}")
    a(f"s_add_u32 s{sDLo}, s{sHalf}, {L_H}")
    a(f"s_mov_b32 s{sDst}, s{sDLo}")
    a(f"s_add_u32 s{sDEnd}, s{sDLo}, 73728")
    a(f"s_mov_b32 s{sSlot}, {CHUNK_H}")
    a(f"s_mov_b32 s{sLim}, -1")
    a(f"s_mov_b32 s{sT1}, 5")
    a.label("K3_hpro")
    for p in pieces_h(): a.ext(p)
    a(f"s_sub_u32 s{sT1}, s{sT1}, 1")
    a(f"s_cmp_lg_u32 s{sT1}, 0")
    a("s_cbranch_scc1 K3_hpro")
    a("s_mov_b64 s[56:57], 0")
    a("s_branch K3_rdone")
    a.label("K3_rx")
    a(f"s_add_u32 s{sD}, s4, s{sT0}")
    a(f"s_addc_u32 s{sD+1}, s5, 0")
    a(f"s_mov_b32 s{sD+2}, {REG}")
    for m in range(3):
        v = vD0 + m
        a(f"v_mul_u32_u24 v20, 43691, v{v}")
        a("v_lshrrev_b32 v20, 25, v20")
        a("v_mul_u32_u24 v21, 864, v20")
        a(f"v_sub_u32 v21, v{v}, v21")
        a("v_add_u32 v22, 768, v21")
        a("v_cmp_gt_i32 vcc, 0, v21")
        a("v_mul_u32_u24 v20, 768, v20")
        a("s_nop 0")
        a("v_cndmask_b32 v21, v21, v22, vcc")
        a(f"v_add_u32 v{v}, v20, v21")
    a(f"s_add_u32 s{sDLo}, s{sHalf}, {L_X}")
    a(f"s_mov_b32 s{sDEnd}, 0")
    a(f"s_mov_b32 s{sSlot}, 0")
    a(f"s_mov_b32 s{sDst}, s{sDLo}")
    a(f"s_mov_b32 s{sLim}, {REG}")
    a("s_mov_b64 s[56:57], -1")
    a("s_branch K3_rdone")
    a.label("K3_rw")
    a(f"s_add_u32 s{sD}, s24, {W2F}")
    a(f"s_addc_u32 s{sD+1}, s25, 0")
    a(f"s_mov_b32 s{sD+2}, 1179648")
    a(f"s_mul_i32 s{sDLo}, s{sCQ}, 6144")
    a(f"s_add_u32 s{sDEnd}, s{sDLo}, 73728")
    a(f"s_mov_b32 s{sDst}, s{sDLo}")
    a(f"s_mov_b32 s{sSrc}, s{sDLo}")
    for _ in range(2):
        for p in pieces_w(): a.ext(p)
    a("s_mov_b64 s[56:57], 0")
    a.label("K3_rdone")
    a(f"v_mul_u32_u24 v{vOUT}, 3072, v19")
    a("v_mul_u32_u24 v21, 12, v18")
    a(f"s_mul_i32 s{sT0}, s{sTH}, {96 * 768}")
    a(f"s_mul_i32 s{sT1}, s{sCQ}, 192")
    a(f"s_add_u32 s{sT0}, s{sT0}, s{sT1}")
    a(f"v_add3_u32 v{vOUT}, v{vOUT}, v21, s{sT0}")
    a(f"s_mul_i32 s{sT0}, s{sCQ}, 6144")
    a(f"v_lshl_add_u32 v{vWB0}, v17, 4, s{sT0}")
    a("v_and_b32 v21, 3, v18")
    a("v_lshrrev_b32 v22, 2, v18")
    a("v_and_b32 v23, 2, v19")
    a("v_xor_b32 v23, v23, v21")
    a("v_lshl_add_u32 v22, v23, 2, v22")
    a("v_lshl_add_u32 v22, v21, 4, v22")
    a("v_lshlrev_b32 v22, 4, v22")
    a("v_and_b32 v23, 1, v19")
    a("v_lshl_add_u32 v22, v23, 3, v22")
    a(f"s_mul_i32 s{sT0}, s{sTH}, 6144")
    a(f"s_add_u32 s{sT0}, s{sT0}, {L_H}")
    a(f"v_add_u32 v{vHB0}, s{sT0}, v22")
    a(f"v_xor_b32 v{vHB1}, 64, v{vHB0}")
    a(f"s_lshl_b32 s{sT0}, s{sCQ}, 2")
    a("v_lshl_add_u32 v22, v21, 1, v19")
    a(f"v_add_u32 v22, s{sT0}, v22")
    a("v_and_b32 v22, 15, v22")
    a("v_mul_u32_u24 v22, 48, v22")
    a("v_mul_u32_u24 v23, 768, v18")
    a(f"v_add_u32 v22, {L_X}, v22")
    a(f"v_add_u32 v{vXR}, v22, v23")
    a("v_lshrrev_b32 v22, 2, v18")
    a("v_cmp_eq_u32 vcc, v22, v19")
    a("v_mov_b32 v23, 0x3f80")
    a("s_nop 0")
    a("v_cndmask_b32 v23, 0, v23, vcc")
    for e in range(4):
        a(f"v_cmp_eq_u32 vcc, {e}, v21")
        a("s_nop 1")
        a(f"v_cndmask_b32 v{SEL+e}, 0, v23, vcc")
        a(f"v_lshlrev_b32 v{SEL+4+e}, 16, v{SEL+e}")
    a("s_mov_b64 vcc, s[56:57]")
    a(f"s_mov_b32 s{sWS}, 0")
    a(f"s_mov_b32 s{sHS}, 0")
    a(f"s_mov_b32 s{sPASS}, 0")
    a(f"s_mov_b32 s{sOB}, 0")
    a("s_waitcnt vmcnt(24)")
    a(f"s_cmp_eq_u32 s{sSlot}, {CHUNK_H}" if False else f"s_sub_u32 s{sT0}, s{sWV}, 4")
    a(f"s_cmp_lt_u32 s{sT0}, 2")
    a("s_cbranch_scc1 K3_pw")
    a("s_waitcnt vmcnt(6)")
    a("s_cbranch_vccz K3_pw")
    a("s_waitcnt vmcnt(0)")
    a.label("K3_pw")
    for p in range(1, NBP):
        for n in range(6):
            src = 24 + n if n < 3 else 25 + n
            a(f"v_add_f32 v{src}, v{src}, v{src + 8*p}")
    for n in range(6):
        src = 24 + n if n < 3 else 25 + n
        for r in range(4): a(f"v_mov_b32 v{BIAS+4*n+r}, v{src}")
    stamp(a, 1)

    def accr(n, t): return ACC + (t * 6 + n) * 4
    ofl = ["", " nt", " sc1", " sc0 sc1", " sc0"][OPT["out_nt"]]
    def mini(t):
        L = [f"s_add_u32 s{sT1}, s{sOB}, {t * 12288}"]
        for r in range(4):
            tq = XT + 4 * r if STG % 2 == 0 else (12, 252)[r % 2]
            for j in range(3): L.append(f"v_cvt_pk_bf16_f32 v{tq+j}, v{accr(2*j, t)+r}, v{accr(2*j+1, t)+r}")
            if not OPT["k3nost"]: L.append(f"buffer_store_dwordx3 {q(tq, 3)}, v{vOUT}, s[{sO}:{sO+3}], s{sT1} offen offset:{r*768}" + ofl)
        return L
    def step(grp, u, bnd):
        u4 = u % 4; tag = f"{grp}{'b' if bnd else 'l'}{u}"
        L = [f"v_add_u32 v{vWR}, s{sWS}, v{vWB0}", f"v_add_u32 v{vHR0}, s{sHS}, v{vHB0}", f"v_add_u32 v{vHR1}, s{sHS}, v{vHB1}"]
        R = []
        for t in range(6):
            R.append(f"ds_read_b128 {q(WB + 4*t)}, v{vWR} offset:{t*1024}")
            R.append(f"ds_read_b64_tr_b16 {q(HB + 4*t, 2)}, v{vHR0} offset:{t*1024}")
            R.append(f"ds_read_b64_tr_b16 {q(HB + 4*t + 2, 2)}, v{vHR1} offset:{t*1024}")
        P = pieces_w() if grp == 0 else pieces_h()
        def gd(X, z): return X if grp == 0 or u4 == 0 else [f"s_cbranch_vccnz K3_s{tag}{z}"] + X + [f"K3_s{tag}{z}:"]
        L += gd(P[0], "a") + R[:6] + gd(P[1], "b") + R[6:12] + gd(P[2], "c") + R[12:]
        if u4 == 3:
            L += [f"s_sub_u32 s{sT0}, s{sEV}, {6*grp}", f"s_cmp_lt_u32 s{sT0}, 6", f"s_cbranch_scc0 K3_xr{tag}"]
            for p in range(3):
                L.append(f"ds_read2_b32 {q(XT + 4*p, 2)}, v{vXR} offset0:{p} offset1:{p+3}")
                L.append(f"ds_read2_b32 {q(XT + 4*p + 2, 2)}, v{vXR} offset0:{p+6} offset1:{p+9}")
            L.append(f"K3_xr{tag}:")
        L += gd(P[3] + P[4] + P[5], "d")
        L += [f"s_add_u32 s{sWS}, s{sWS}, 24576", f"s_cmp_eq_u32 s{sWS}, 73728", f"s_cselect_b32 s{sWS}, 0, s{sWS}",
              f"s_add_u32 s{sHS}, s{sHS}, 12288", f"s_cmp_eq_u32 s{sHS}, 73728", f"s_cselect_b32 s{sHS}, 0, s{sHS}"]
        tb = u // STG if bnd and u % STG == 0 and u // STG < 6 else None
        def nst(back):
            if not bnd or OPT["k3nost"]: return 0
            return 4 * sum(1 for w in range(max(0, u - back), u + 1 - grp) if w % STG == 0 and w // STG < 6)
        if tb == 5:
            a(f"s_cmp_eq_u32 s{sPASS}, 3")
            a("s_cbranch_scc1 K3_fin")
        a.ext(L)
        if grp == 0:
            a("s_waitcnt lgkmcnt(0)")
            a(f"s_setprio {OPT['k3pa']}")
        else:
            if u4 == 2:
                a(f"s_cbranch_vccz K3_nx{tag}")
                a(f"s_waitcnt vmcnt({nst(2)})")
                a.label(f"K3_nx{tag}")
            a(f"s_waitcnt vmcnt({24 + nst(4)}) lgkmcnt(0)")
            a("s_barrier")
            a(f"s_setprio {OPT['k3pb']}")
        if u4 == 3:
            a(f"s_cmp_lt_u32 s{sT0}, 6")
            a(f"s_cbranch_scc0 K3_xd{tag}")
            ts = range(6) if not bnd else [t for t in range(6) if t + 6 * grp == u // 4]
            for t in ts:
                if t != ts[-1]:
                    a(f"s_cmp_lg_u32 s{sT0}, {t}")
                    a(f"s_cbranch_scc1 K3_x{tag}_{t+1}")
                for n in range(6):
                    a(f"v_mfma_f32_16x16x32_bf16 {q(accr(n, t))}, {q(XT + 4*(n >> 1))}, {q(SEL + 4*(n & 1))}, {q(accr(n, t))}")
                if t != ts[-1]:
                    a(f"s_branch K3_xd{tag}")
                    a.label(f"K3_x{tag}_{t+1}")
            a.label(f"K3_xd{tag}")
            a(f"s_add_u32 s{sEV}, s{sEV}, 1")
        def mf(t): return [f"v_mfma_f32_16x16x32_bf16 {q(accr(n, t))}, {q(HB + 4*t)}, {q(WB + 4*n)}, {q(BIAS + 4*n) if t == tb else q(accr(n, t))}" for n in range(6)]
        bar = [f"s_waitcnt vmcnt({6 + nst(1)})", "s_barrier"] if grp == 0 else []
        ns = u // STG + 1 if bnd else 6
        def full():
            order = [t for t in range(6) if t != tb] + ([tb] if tb is not None else [])
            Ms = [[x] for t in order for x in mf(t)]
            if tb is not None:
                E = mini(tb)
                pos = OPT["mp0"]
                for x in E:
                    Ms[pos].append(x)
                    if not x.startswith("s_"): pos += 1
                    if x.startswith("buffer"): pos += OPT["mpd"]
                assert pos <= 29
            e = OPT["k3eb"] if grp == 0 else 0
            Ms[35 - e] += (["s_setprio 3"] if e else []) + bar
            a.ext([x for m in Ms for x in m])
        if ns >= 6:
            full()
        else:
            a(f"s_sub_u32 s{sT2}, s{sPASS}, 1")
            a(f"s_cmp_lt_u32 s{sT2}, 2")
            a(f"s_cbranch_scc0 K3_m0{tag}")
            full()
            a(f"s_branch K3_m3{tag}")
            a.label(f"K3_m0{tag}")
            if tb is not None: a.ext(mini(tb))
            a(f"s_cmp_eq_u32 s{sPASS}, 3")
            a(f"s_cbranch_scc1 K3_m1{tag}")
            for t in range(ns): a.ext(mf(t))
            a(f"s_branch K3_m2{tag}")
            a.label(f"K3_m1{tag}")
            for t in range(ns, 6): a.ext(mf(t))
            a.label(f"K3_m2{tag}")
            a.ext(bar)
            a.label(f"K3_m3{tag}")
        a("s_setprio 0")

    a("s_barrier")
    a(f"s_cmp_lg_u32 s{sTH}, 0")
    a("s_cbranch_scc1 K3_1_tile")
    for grp in range(2):
        a.label(f"K3_{grp}_tile")
        a(f"s_cmp_eq_u32 s{sPASS}, 3")
        a(f"s_cselect_b32 s{sEV}, 100, 0")
        for u in range(NB): step(grp, u, True)
        if OPT["stamp"]: stamp2(a, 2, 4, sPASS)
        a(".p2align 6")
        a.label(f"K3_{grp}_loop")
        for u in range(4): step(grp, u, False)
        a(f"s_cmp_lg_u32 s{sEV}, 12")
        a(f"s_cbranch_scc1 K3_{grp}_loop")
        if OPT["stamp"]: stamp2(a, 3, 5, sPASS)
        a(f"s_mul_i32 s{sOB}, s{sPASS}, {192 * 768}")
        a(f"s_add_u32 s{sPASS}, s{sPASS}, 1")
        a(f"s_mov_b32 s{sO+2}, {REG}")
        a(f"s_branch K3_{grp}_tile")
    a.label("K3_fin")
    stamp(a, 6)
    a("s_nop 7")
    a.ext(mini(5))
    if OPT["stamp"]: a("s_waitcnt vmcnt(0)")
    stamp(a, 7)
    stamp_dump(a, 8, sWV, "K3", 1)
    a.label("K3_end")
    a("s_endpgm")
    return a, desc("gemm2_kernel", 256, 100), f"; @launch kernel=gemm2_kernel grid=(256,1,1) block=(512,1,1) lds={L_X + 12288}"

def k3():
    a = Asm()
    ACC = 16; HB = 160; WB = 184; SEL = 208; BIAS = 216; XT = 240
    KC = OPT['k3c']
    if KC: WB = 208; SEL = 232
    BV = [12, 13, 14, 15, 252, 253]
    vD0, vWR, vHR0, vHR1, vXR, vOUT, vWB0, vHB0, vHB1 = 1, 4, 5, 6, 7, 8, 9, 10, 11
    L_H = 73728; L_X = 147456
    sD, sO = 8, 12
    (sWV, sTH, sCQ, sSrc, sDst, sSlot, sDLo, sDEnd, sLeft, sT0, sT1, sWS, sHS, sJ, sOB, sEV, sNR, sT2, sFIRST) = range(30, 49)
    REG = 3 * 192 * 768
    kernel_start(a, "gemm2_kernel")
    a("s_cmp_ge_u32 s2, 256")
    a("s_cbranch_scc1 K3_end")
    stamp(a, 0)
    a("s_load_dwordx2 s[4:5], s[0:1], 0")
    a("s_load_dwordx2 s[6:7], s[0:1], 48")
    a("s_load_dwordx2 s[24:25], s[0:1], 64")
    code_prefetch(a, "gemm2_kernel", "K3_end", 100, 60)
    a("v_lshrrev_b32 v16, 6, v0")
    a("v_and_b32 v17, 63, v0")
    a(f"v_readfirstlane_b32 s{sWV}, v16")
    a(f"v_lshlrev_b32 v{vD0}, 4, v17")
    a(f"v_add_u32 v{vD0+1}, 1024, v{vD0}")
    a(f"v_add_u32 v{vD0+2}, 2048, v{vD0}")
    a("v_and_b32 v18, 15, v17")
    a("v_lshrrev_b32 v19, 4, v17")
    a(f"s_lshr_b32 s{sT0}, s2, 4")
    a(f"s_lshl_b32 s{sT0}, s{sT0}, 4")
    a(f"s_and_b32 s{sT1}, s2, 7")
    a(f"s_lshl_b32 s{sT1}, s{sT1}, 1")
    a(f"s_add_u32 s{sT0}, s{sT0}, s{sT1}")
    a(f"s_bfe_u32 s{sT1}, s2, 0x10003")
    a(f"s_add_u32 s3, s{sT0}, s{sT1}")
    a(f"s_lshr_b32 s{sTH}, s{sWV}, 2")
    a(f"s_and_b32 s{sCQ}, s{sWV}, 3")
    a(f"s_mov_b32 s{sD+3}, 0x00020000")
    a(f"s_mov_b32 s{sO+3}, 0x00020000")
    a(f"s_mov_b32 s{sO+2}, {REG}")
    a(f"s_mul_i32 s{sT0}, s3, {REG}")
    a(f"s_and_b32 s{sT1}, s{sWV}, 1")
    a(f"s_mul_i32 s{sT1}, s{sT1}, 6144")
    a("s_waitcnt lgkmcnt(0)")
    a(f"s_add_u32 s{sO}, s6, s{sT0}")
    a(f"s_addc_u32 s{sO+1}, s7, 0")

    srd(a, 16, 24, 25, 1536 * NBP, B2)
    a("v_mul_u32_u24 v20, 24, v18")
    a(f"s_mul_i32 s{sT2}, s{sCQ}, 384")
    for p in range(NBP):
        a(f"buffer_load_dwordx3 {q(24 + 8*p, 3)}, v20, s[16:19], s{sT2} offen")
        a(f"buffer_load_dwordx3 {q(28 + 8*p, 3)}, v20, s[16:19], s{sT2} offen offset:12")
        if p < NBP - 1: a(f"s_add_u32 s{sT2}, s{sT2}, 1536")

    def pieces(srd_, sfx=""):
        P = []
        for k in range(6):
            if k == 0: pre = [f"s_mov_b32 m0, s{sDst}", f"s_add_u32 s{sT2}, s{sSrc}, 3072"]
            else: pre = ["s_add_u32 m0, m0, 1024", "s_nop 0"]
            so = sSrc if k < 3 else sT2
            P.append(pre + [f"buffer_load_dwordx4 v{vD0 + k % 3}, s[{srd_}:{srd_+3}], s{so} offen{sfx} lds"])
        return P
    def advance_w():
        return [f"s_add_u32 s{sDst}, s{sDst}, 24576", f"s_cmp_eq_u32 s{sDst}, s{sDEnd}", f"s_cselect_b32 s{sDst}, s{sDLo}, s{sDst}",
                f"s_sub_u32 s{sSrc}, s{sSrc}, 24576", f"s_cselect_b32 s{sT2}, 1179648, 0", f"s_add_u32 s{sSrc}, s{sSrc}, s{sT2}"]
    def advance_h():
        return [f"s_add_u32 s{sDst}, s{sDst}, s{sSlot}", f"s_cmp_eq_u32 s{sDst}, s{sDEnd}", f"s_cselect_b32 s{sDst}, s{sDLo}, s{sDst}",
                f"s_sub_u32 s{sSrc}, s{sSrc}, 12288", f"s_cselect_b32 s{sD+2}, 0, s{sD+2}", f"s_cselect_b32 s{sSrc}, 0, s{sSrc}"]
    nt = " nt" if OPT["h_nt"] else ""
    wnt = " nt" if OPT["w_nt"] else ""

    a(f"s_cmp_lt_u32 s{sWV}, 4")
    a("s_cbranch_scc1 K3_rw")
    a(f"s_cmp_ge_u32 s{sWV}, 6")
    a("s_cbranch_scc1 K3_rx")
    a(f"s_add_u32 s{sDLo}, s{sT1}, {L_H}")
    a(f"s_mov_b32 s{sDst}, s{sDLo}")
    a(f"s_add_u32 s{sSrc}, s{sT1}, {CHUNK_H}")
    for p in pieces(sO, nt): a.ext(p)
    a(f"s_add_u32 s{sDst}, s{sDst}, {CHUNK_H}")
    a(f"s_mov_b32 s{sSrc}, s{sT1}")
    for p in pieces(sO, nt): a.ext(p)
    a(f"s_mul_i32 s{sT0}, s3, {HSTRIDE}")
    a(f"s_add_u32 s{sD}, s24, s{sT0}")
    a(f"s_addc_u32 s{sD+1}, s25, 0")
    a(f"s_mov_b32 s{sD+2}, {0 if OPT['k3noh'] else HSTRIDE}")
    a(f"s_add_u32 s{sDEnd}, s{sDLo}, 73728")
    a(f"s_mov_b32 s{sSlot}, {CHUNK_H}")
    a(f"s_add_u32 s{sDst}, s{sDst}, {CHUNK_H}")
    a(f"s_add_u32 s{sSrc}, s{sT1}, {HSTRIDE - CHUNK_H}")
    for _ in range(3 if OPT["k3bl"] else 4):
        for p in pieces(sD, nt): a.ext(p)
        a.ext(advance_h())
    a("s_mov_b64 vcc, 0")
    a("s_branch K3_rdone")
    a.label("K3_rx")
    a(f"s_add_u32 s{sD}, s4, s{sT0}")
    a(f"s_addc_u32 s{sD+1}, s5, 0")
    a(f"s_mov_b32 s{sD+2}, {0 if OPT['k3nox'] else REG}")
    for m in range(3):
        v = vD0 + m
        a(f"v_mul_u32_u24 v20, 43691, v{v}")
        a("v_lshrrev_b32 v20, 25, v20")
        a("v_mul_u32_u24 v21, 864, v20")
        a(f"v_sub_u32 v21, v{v}, v21")
        a("v_add_u32 v22, 768, v21")
        a("v_cmp_gt_i32 vcc, 0, v21")
        a("v_mul_u32_u24 v20, 768, v20")
        a("s_nop 0")
        a("v_cndmask_b32 v21, v21, v22, vcc")
        a(f"v_add_u32 v{v}, v20, v21")
    a(f"s_add_u32 s{sDLo}, s{sT1}, {L_X}")
    a(f"s_mov_b32 s{sDEnd}, 0")
    a(f"s_mov_b32 s{sSlot}, 0")
    a(f"s_mov_b32 s{sDst}, s{sDLo}")
    a(f"s_add_u32 s{sSrc}, s{sT1}, {35 * 12288}")
    if OPT["wwarm"]:
        srd(a, 60, 24, 25, 1179648, W2F)
        a(f"s_lshr_b32 s{sT2}, s2, 3")
        a(f"s_mul_i32 s{sT2}, s{sT2}, 36864")
        a(f"s_mul_i32 s{sT0}, s{sT1}, 3")
        a(f"s_add_u32 s{sT2}, s{sT2}, s{sT0}")
        a("v_lshlrev_b32 v20, 7, v17")
        for i in range(3):
            a(f"buffer_load_dword v{100 + i}, v20, s[60:63], s{sT2} offen")
            a(f"s_add_u32 s{sT2}, s{sT2}, 6144" if False else f"s_add_u32 s{sT2}, s{sT2}, 8192")
    if not OPT["k3bl"]:
        for p in pieces(sD, nt): a.ext(p)
        a.ext(advance_h())
    a("s_mov_b64 vcc, -1")
    a("s_branch K3_rdone")
    a.label("K3_rw")
    a(f"s_add_u32 s{sD}, s24, {W2F}")
    a(f"s_addc_u32 s{sD+1}, s25, 0")
    a(f"s_mov_b32 s{sD+2}, {0 if OPT['k3now'] else 1179648}")
    a(f"s_mul_i32 s{sDLo}, s{sCQ}, 6144")
    a(f"s_add_u32 s{sDEnd}, s{sDLo}, 73728")
    a(f"s_mov_b32 s{sSlot}, 0")
    a(f"s_mov_b32 s{sDst}, s{sDLo}")
    a(f"s_add_u32 s{sSrc}, s{sDLo}, {47 * 24576}")
    for _ in range(5 if OPT["k3skipw"] else 2):
        for p in pieces(sD, wnt): a.ext(p)
        a.ext(advance_w())
    a("s_mov_b64 vcc, 0")
    a.label("K3_rdone")
    a("s_mov_b64 s[50:51], vcc")
    a(f"v_mul_u32_u24 v{vOUT}, 3072, v19")
    a("v_mul_u32_u24 v21, 12, v18")
    a(f"s_mul_i32 s{sT0}, s{sTH}, {96 * 768}")
    a(f"s_mul_i32 s{sT1}, s{sCQ}, 192")
    a(f"s_add_u32 s{sT0}, s{sT0}, s{sT1}")
    a(f"v_add3_u32 v{vOUT}, v{vOUT}, v21, s{sT0}")
    if OPT["outlin"]:
        a(f"v_mul_u32_u24 v{vOUT}, 12, v17")
        a(f"s_mul_i32 s{sT0}, s{sWV}, 18432")
        a(f"v_add_u32 v{vOUT}, s{sT0}, v{vOUT}")
    a(f"s_mul_i32 s{sT0}, s{sCQ}, 6144")
    a(f"v_lshl_add_u32 v{vWB0}, v17, 4, s{sT0}")
    a("v_and_b32 v21, 3, v18")
    a("v_lshrrev_b32 v22, 2, v18")
    a("v_and_b32 v23, 2, v19")
    a("v_xor_b32 v23, v23, v21")
    a("v_lshl_add_u32 v22, v23, 2, v22")
    a("v_lshl_add_u32 v22, v21, 4, v22")
    a("v_lshlrev_b32 v22, 4, v22")
    a("v_and_b32 v23, 1, v19")
    a("v_lshl_add_u32 v22, v23, 3, v22")
    a(f"s_mul_i32 s{sT0}, s{sTH}, 6144")
    a(f"s_add_u32 s{sT0}, s{sT0}, {L_H}")
    a(f"v_add_u32 v{vHB0}, s{sT0}, v22")
    a(f"v_xor_b32 v{vHB1}, 64, v{vHB0}")
    a(f"s_lshl_b32 s{sT0}, s{sCQ}, 2")
    a("v_lshl_add_u32 v22, v21, 1, v19")
    a(f"v_add_u32 v22, s{sT0}, v22")
    a("v_and_b32 v22, 15, v22")
    a("v_mul_u32_u24 v22, 48, v22")
    a("v_mul_u32_u24 v23, 768, v18")
    a(f"v_add_u32 v22, {L_X}, v22")
    a(f"v_add_u32 v{vXR}, v22, v23")
    a("v_lshrrev_b32 v22, 2, v18")
    a("v_cmp_eq_u32 vcc, v22, v19")
    a("v_mov_b32 v23, 0x3f80")
    a("s_nop 0")
    a("v_cndmask_b32 v23, 0, v23, vcc")
    for e in range(4):
        a(f"v_cmp_eq_u32 vcc, {e}, v21")
        a("s_nop 1")
        a(f"v_cndmask_b32 v{SEL+e}, 0, v23, vcc")
        a(f"v_lshlrev_b32 v{SEL+4+e}, 16, v{SEL+e}")
    a("s_mov_b64 vcc, s[50:51]")
    a(f"s_mov_b32 s{sWS}, 0")
    a(f"s_mov_b32 s{sHS}, 0")
    a(f"s_mov_b32 s{sJ}, 0")
    a(f"s_mov_b32 s{sOB}, {2 * 192 * 768}")
    a(f"s_mov_b32 s{sEV}, 11")
    a(f"s_waitcnt vmcnt({18 if KC else 24})")
    a(f"s_sub_u32 s{sT0}, s{sWV}, 4")
    a(f"s_cmp_lt_u32 s{sT0}, 2")
    a("s_cbranch_scc1 K3_pw")
    a("s_waitcnt vmcnt(6)")
    a("s_cbranch_vccz K3_pw")
    a("s_waitcnt vmcnt(0)")
    a.label("K3_pw")
    for p in range(1, NBP):
        for n in range(6):
            src = 24 + n if n < 3 else 25 + n
            a(f"v_add_f32 v{src}, v{src}, v{src + 8*p}")
    for n in range(6):
        src = 24 + n if n < 3 else 25 + n
        if KC: a(f"v_mov_b32 v{BV[n]}, v{src}")
        else:
            for r in range(4): a(f"v_mov_b32 v{BIAS+4*n+r}, v{src}")

    stamp(a, 1)

    def accr(n, t): return ACC + (t * 6 + n) * 4
    pieces0 = pieces
    def pieces(srd_, sfx="", _p=pieces0):
        P = _p(srd_, sfx)
        if OPT["k3skiph"] and sfx != "": P = [[x for x in p if not x.startswith("buffer")] for p in P]
        if OPT["k3skipw"] and sfx == "": P = [[x for x in p if not x.startswith("buffer")] if i >= 6 - OPT["k3skipw"] else p for i, p in enumerate(P)]
        return P
    def Lseg(u4, grp, tag):
        L = [f"v_add_u32 v{vWR}, s{sWS}, v{vWB0}", f"v_add_u32 v{vHR0}, s{sHS}, v{vHB0}", f"v_add_u32 v{vHR1}, s{sHS}, v{vHB1}"]
        R = []
        for t in range(6):
            R.append(f"ds_read_b128 {q(WB + 4*t)}, v{vWR} offset:{t*1024}")
            R.append(f"ds_read_b64_tr_b16 {q(HB + 4*t, 2)}, v{vHR0} offset:{t*1024}")
            R.append(f"ds_read_b64_tr_b16 {q(HB + 4*t + 2, 2)}, v{vHR1} offset:{t*1024}")
        if KC:
            R = [f"ds_read_b128 {q(WB + 4*t)}, v{vWR} offset:{t*1024}" for t in range(6)]
            if u4 % 2 == 0:
                for t in range(6):
                    for c in range(2):
                        R.append(f"ds_read_b64_tr_b16 {q(HB + 24*c + 4*t, 2)}, v{vHR0} offset:{c*12288 + t*1024}")
                        R.append(f"ds_read_b64_tr_b16 {q(HB + 24*c + 4*t + 2, 2)}, v{vHR1} offset:{c*12288 + t*1024}")
            else: L = L[:1]
            P = pieces(sD, wnt if grp == 0 else nt); P[5] = P[5] + (advance_w() if grp == 0 else advance_h())
            def gd(X, z): return X if grp == 0 or u4 == 0 else [f"s_cbranch_vccnz K3_{tag}sl{u4}{z}"] + X + [f"K3_{tag}sl{u4}{z}:"]
            na = 6 if grp == 1 or u4 % 2 or (tag == "f" and u4 == 0) else OPT["k3ne"]
            if u4 % 2 == 0:
                for m in range(5):
                    if m < na: L += gd(P[m], "abcde"[m])
                    L += R[6*m:6*m+6]
                if na == 6: L += gd(P[5], "f")
            else:
                L += gd(P[0], "a") + R + gd([x for p in P[1:] for x in p], "b")
        elif grp == 0:
            P = pieces(sD, wnt); P[5] = P[5] + advance_w()
            na = 6 if tag == "f" and u4 == 0 else OPT["k3na"]
            pos = [0, 6, 12, 18, 18, 18]
            for k in range(19):
                for m in range(na):
                    if pos[m] == k: L += P[m]
                if k < 18: L.append(R[k])
        elif OPT["k3bl"]:
            P = pieces(sD, nt); P[5] = P[5] + advance_h()
            def gd(X, z): return X if u4 == 0 else [f"s_cbranch_vccnz K3_{tag}sl{u4}{z}"] + X + [f"K3_{tag}sl{u4}{z}:"]
            if OPT["k3pre"]: L = R[15:] + gd(P[0] + P[1] + P[2] + P[3] + P[4] + P[5], "d")
            else: L += gd(P[0], "a") + R[:6] + gd(P[1], "b") + R[6:12] + gd(P[2], "c") + R[12:] + gd(P[3] + P[4] + P[5], "d")
        else:
            L += R
        if u4 == 3:
            lab = f"K3_{grp}{tag}_xr"
            L += [f"s_sub_u32 s{sT0}, s{sEV}, {6*grp}", f"s_cmp_lt_u32 s{sT0}, 6", f"s_cbranch_scc0 {lab}"]
            for p in range(3):
                L.append(f"ds_read2_b32 {q(XT + 4*p, 2)}, v{vXR} offset0:{p} offset1:{p+3}")
                L.append(f"ds_read2_b32 {q(XT + 4*p + 2, 2)}, v{vXR} offset0:{p+6} offset1:{p+9}")
            L.append(lab + ":")
        L += [f"s_add_u32 s{sWS}, s{sWS}, 24576", f"s_cmp_eq_u32 s{sWS}, 73728", f"s_cselect_b32 s{sWS}, 0, s{sWS}",
              f"s_add_u32 s{sHS}, s{sHS}, {24576 if KC else 12288}", f"s_cmp_eq_u32 s{sHS}, 73728", f"s_cselect_b32 s{sHS}, 0, s{sHS}"][:3 if KC and u4 % 2 else 6]
        return L
    def pre_reads():
        AD = [f"v_add_u32 v{vWR}, s{sWS}, v{vWB0}", f"v_add_u32 v{vHR0}, s{sHS}, v{vHB0}", f"v_add_u32 v{vHR1}, s{sHS}, v{vHB1}"]
        R = []
        for t in range(6):
            R.append(f"ds_read_b128 {q(WB + 4*t)}, v{vWR} offset:{t*1024}")
            R.append(f"ds_read_b64_tr_b16 {q(HB + 4*t, 2)}, v{vHR0} offset:{t*1024}")
            R.append(f"ds_read_b64_tr_b16 {q(HB + 4*t + 2, 2)}, v{vHR1} offset:{t*1024}")
        return AD, R
    def vmwait(strict, loose, lab):
        if (OPT["k3nv"] >> {6: 0, 0: 1}.get(strict, 2)) & 1: return []
        if loose is None or OPT["k3nost"]: return [f"s_waitcnt vmcnt({strict})"]
        return [f"s_waitcnt vmcnt({loose})", f"s_cmp_lg_u32 s{sJ}, 0", f"s_cbranch_scc1 {lab}", f"s_waitcnt vmcnt({strict})", lab + ":"]
    def Mseg(u4, grp, tag):
        first = tag == "f" and u4 == 0
        Ms = []
        for t in range(6):
            for n in range(6):
                c = q(BIAS + 4*n) if first else q(accr(n, t))
                Ms.append([f"v_mfma_f32_16x16x32_bf16 {q(accr(n, t))}, {q(HB + 4*t)}, {q(WB + 4*n)}, {c}"])
        if KC:
            Ms = []
            for t in range(6):
                for n3 in range(3):
                    for c in range(2):
                        ac = q(accr(3 * (u4 % 2) + n3, t))
                        Ms.append([f"v_mfma_f32_16x16x32_bf16 {ac}, {q(HB + 24*c + 4*t)}, {q(WB + 12*c + 4*n3)}, {q(XT + 4*n3) if tag == 'f' and u4 < 2 and c == 0 else ac}"])
        if grp == 0:
            P = pieces(sD, wnt); P[5] = P[5] + advance_w()
            na = 6 if first or (KC and u4 % 2) else OPT["k3ne" if KC else "k3na"]
            for m in range(na, 6): Ms[1 + (m - na) * OPT["k3as"]] += P[m]
            e = OPT["k3eb"]
            loose = 30 if tag == "f" and u4 < 2 else None
            Ms[35 - e] += (["s_setprio 3"] if e else []) + vmwait(6, loose, f"K3_0{tag}_vw{u4}") + ["s_barrier"]
        elif not OPT["k3bl"]:
            P = pieces(sD, nt); P[5] = P[5] + advance_h()
            for m in range(0, 6, 2):
                X = P[m] + P[m + 1]
                if u4 != 3: X = [f"s_cbranch_vccnz K3_{tag}sd{u4}{m}"] + X + [f"K3_{tag}sd{u4}{m}:"]
                Ms[OPT["k3b0"] + (m // 2) * OPT["k3bs"]] += X
        if grp == 1 and OPT["k3pre"]:
            AD, R = pre_reads()
            Ms[0].append(AD[1]); Ms[1].append(AD[2]); Ms[2].append(AD[0])
            for t in range(5):
                Ms[6 * t + 6].append(R[3 * t + 1]); Ms[6 * t + 7].append(R[3 * t + 2])
                Ms[31 + t].append(R[3 * t])
        return [x for m in Ms for x in m]
    def Xseg(grp, tag):
        g = f"{grp}{tag}"
        L = [f"s_cmp_lt_u32 s{sT0}, 6", f"s_cbranch_scc0 K3_{g}_xdone"]
        for t in range(6):
            if t < 5: L += [f"s_cmp_lg_u32 s{sT0}, {t}", f"s_cbranch_scc1 K3_{g}_x{t+1}"]
            for n in range(6):
                L.append(f"v_mfma_f32_16x16x32_bf16 {q(accr(n, t))}, {q(XT + 4*(n >> 1))}, {q(SEL + 4*(n & 1))}, {q(accr(n, t))}")
            if t < 5: L += [f"s_branch K3_{g}_xdone", f"K3_{g}_x{t+1}:"]
        L += [f"K3_{g}_xdone:", f"s_sub_u32 s{sEV}, s{sEV}, 1"]
        return L
    ofl = ["", " nt", " sc1", " sc0 sc1", " sc0"][OPT["out_nt"]]
    def epilogue(final=False):
        L = ["s_nop 7"]
        idx = 0
        for t in range(6):
            L.append(f"s_mov_b32 s{sT1}, s{sOB}" if t == 0 else f"s_add_u32 s{sT1}, s{sT1}, {3072 if OPT['outlin'] else 12288}")
            for r in range(4):
                tq = XT + 4 * (idx % (3 if KC else 4)); idx += 1
                for j in range(3): L.append(f"v_cvt_pk_bf16_f32 v{tq+j}, v{accr(2*j, t)+r}, v{accr(2*j+1, t)+r}")
                if not OPT["k3nost"]: L.append(f"buffer_store_dwordx3 {q(tq, 3)}, v{vOUT}, s[{sO}:{sO+3}], s{sT1} offen offset:{r*768}" + ofl)
        L += [f"s_sub_u32 s{sOB}, s{sOB}, {192 * 768}"]
        return L
    def block(grp, tag):
        if OPT["prof"] == 2: a.label(f"K3_np{tag}{grp}")
        if OPT["prof"] == 1 and grp == 1:
            a(f"s_cmp_lg_u32 s{sWV}, 7")
            a(f"s_cbranch_scc1 K3_np{tag}")
            a("s_memrealtime s[90:91]")
            a("s_waitcnt lgkmcnt(0)")
            a("v_mov_b32 v12, s90")
            a("v_mov_b32 v13, 0")
            a("buffer_store_dword v12, v13, s[84:87], s83 offen")
            a("s_add_u32 s83, s83, 4")
            a.label(f"K3_np{tag}")
        for u4 in range(4):
            a.ext(Lseg(u4, grp, tag))
            if OPT["prof"] == 2 and u4 == 0 and grp == OPT["latw"] // 4:
                a(f"s_cmp_lg_u32 s{sWV}, {OPT['latw']}")
                a(f"s_cbranch_scc1 K3_nq{tag}")
                a("s_memrealtime s[92:93]")
                a("s_waitcnt vmcnt(0) lgkmcnt(0)")
                a("s_memrealtime s[94:95]")
                a("s_waitcnt lgkmcnt(0)")
                a("s_sub_u32 s94, s94, s92")
                a("s_add_u32 s82, s82, s94")
                a("v_mov_b32 v12, s82")
                a("v_mov_b32 v13, 0")
                a("buffer_store_dword v12, v13, s[84:87], s83 offen")
                a("s_add_u32 s83, s83, 4")
                a.label(f"K3_nq{tag}")
            if tag == "f" and u4 == 0:
                a(f"s_cmp_eq_u32 s{sJ}, 0")
                a(f"s_cbranch_scc1 K3_{grp}_noep")
                if OPT["stamp"]:
                    a(f"s_sub_u32 s96, s{sJ}, 48")
                    stamp2(a, 2, 4, 96)
                a.ext(epilogue())
                stamp2(a, 3, 5, 96)
                a.label(f"K3_{grp}_noep")
            if KC and tag == "f" and u4 < 2:
                a("s_nop 1")
                for i in range(12): a(f"v_mov_b32 v{XT+i}, v{BV[3*u4 + i//4]}")
            if grp == 0:
                a("s_waitcnt lgkmcnt(0)")
                a(f"s_setprio {OPT['k3pa']}")
            else:
                if u4 == 2:
                    a(f"s_cbranch_vccz K3_{tag}nx")
                    a.ext(vmwait(0, 24 if tag == "f" else None, "K3_fxw"))
                    a.label(f"K3_{tag}nx")
                if not KC: a.ext(vmwait(24, 48 if tag == "f" else None, f"K3_fh{u4}"))
                elif u4 % 2: a.ext(vmwait(18, 42 if tag == "f" else None, f"K3_fh{u4}"))
                a("s_waitcnt lgkmcnt(0)")
                a("s_barrier")
                a(f"s_setprio {OPT['k3pb']}")
            if u4 == 3: a.ext(Xseg(grp, tag))
            a.ext(Mseg(u4, grp, tag))
            a(f"s_setprio {OPT['k3pl']}")

    if OPT["prof"]:
        srd(a, 84, 24, 25, 65536, TAIL + (5 << 20))
        a("s_lshl_b32 s83, s2, 8")
        a("s_mov_b32 s82, 0")
    a("s_barrier")
    if OPT["k3pre"]:
        AD, R = pre_reads(); a.ext(AD + R[:15])
    a(f"s_cmp_lg_u32 s{sTH}, 0")
    a("s_cbranch_scc1 K3_1_tile")
    for grp in range(2):
        a.label(f"K3_{grp}_tile")
        a(f"s_mov_b32 s{sEV}, 11")
        block(grp, "f")
        a(".p2align 6")
        a.label(f"K3_{grp}_loop")
        block(grp, "l")
        a(f"s_cmp_lg_u32 s{sEV}, -1")
        a(f"s_cbranch_scc1 K3_{grp}_loop")
        a(f"s_add_u32 s{sJ}, s{sJ}, 48")
        a(f"s_cmp_lg_u32 s{sJ}, 144")
        a(f"s_cbranch_scc1 K3_{grp}_tile")
        if grp == 0:
            a("s_branch K3_fin0")
    a.label("K3_fin0")
    stamp(a, 6)
    a.ext(epilogue(True))
    a.label("K3_fin")
    if OPT["stamp"]: a("s_waitcnt vmcnt(0)")
    stamp(a, 7)
    stamp_dump(a, 8, sWV, "K3", 1)
    a.label("K3_end")
    a("s_endpgm")
    return a, desc("gemm2_kernel", 256, 100), f"; @launch kernel=gemm2_kernel grid=(256,1,1) block=(512,1,1) lds={L_X + 12288}"

def main():
    ks = [k1(), k2(), k3r() if OPT['roll'] else k3()]
    errs = []
    for a, _, l in ks: errs += check(a.lines, l.split("=")[1].split()[0])
    for a, _, l in ks:
        for i, x in enumerate(a.lines):
            if x.startswith("s_set_gpr_idx_on"): assert a.lines[i + 3] == "s_set_gpr_idx_off", "gpr idx not closed"
    for e in errs: print(e, file=sys.stderr)
    hdr = open("standalone__modern_conv_block_slak__vision.s.ref").read().split("\n")
    hdr = [l for l in hdr if l.startswith(";") and "@launch" not in l and "Override" not in l and "grid=ceil" not in l]
    out = "\n".join(hdr) + "\n" + "\n".join(l for _, _, l in ks) + "\n"
    out += '.amdgcn_target "amdgcn-amd-amdhsa--gfx950"\n.text\n'
    for a, _, _ in ks: out += a.text()
    out += '.section .rodata,"a"\n'
    for _, d, _ in ks: out += d
    open(sys.argv[1], "w").write(out)
    print("written", sys.argv[1], len(out), "bytes; hazards:", len(errs))
main()
```

```python
import sys, struct, math
from asmlib import Asm, check

OPT = dict(f16=1, st_nt=1, h_nt=1, w_nt=0, out_nt=0, x_nt=1, xp_nt=1, ord=4, ntail=1, k3skipw=0, kf=0, k3pre=0, prof=0, roll=0, stg=1, mp0=2, mpd=2, ipf=0, k3pl=0, wwarm=0, latw=7, dwarm=1, sdot=2, k3c=1, k3ne=6, k3nv=0, k3skiph=0, npf=1, kmask=0, k1nv=0, w1warm=1, bgb=-1, stamp=0, denorm=3, pm=3, pg0=0, pg1=1, bg=4, gb=2, gp=2, stm=7, stm0=7, w2pf=1, sga=7,
           k3pa=1, k3pb=2, k3eb=3, k3nost=0, k3noh=0, k3nox=0, k3now=0, k3na=6, k3as=5, k3b0=18, k3bs=5, k3bl=1, outlin=0, nostore=0)
for a in sys.argv[2:]:
    k, v = a.split("="); OPT[k] = int(v, 0)

def f32(x): return "0x%08x" % struct.unpack("<I", struct.pack("<f", x))[0]
def f16bits(x): return struct.unpack("<H", struct.pack("<e", x))[0]

M = 147456; C = 384; F = 1536
XBYTES = M * C * 2
WSBYTES = 452984832
TILE_H = 589824; CHUNK_H = 12288; HSTRIDE = 3 * TILE_H - 2 * CHUNK_H
TAIL = 256 * HSTRIDE
W2F = TAIL + 1179648; B2 = TAIL; SSQ = TAIL + 2363392
NREP = 8
K1c = 2.0 * math.sqrt(2.0 / math.pi) * math.log2(math.e)
K3c = K1c * 0.044715
if OPT["f16"]:
    C0 = 1258.0 / 256.0
    ALPHA = K1c / C0
else:
    ALPHA = K3c ** (1.0 / 3.0)
    C0 = K1c / ALPHA

def srd(a, d, lo, hi, nrec, off=0):
    if off:
        a(f"s_add_u32 s{d}, s{lo}, {off}")
        a(f"s_addc_u32 s{d+1}, s{hi}, 0")
    else:
        a(f"s_mov_b32 s{d}, s{lo}")
        a(f"s_mov_b32 s{d+1}, s{hi}")
    a(f"s_mov_b32 s{d+2}, {nrec}")
    a(f"s_mov_b32 s{d+3}, 0x00020000")

def stamp(a, idx, base=64):
    if not OPT["stamp"]: return
    a("s_memrealtime s[90:91]")
    a("s_memtime s[92:93]")
    a("s_waitcnt lgkmcnt(0)")
    a(f"s_mov_b32 s{base+2*idx}, s90")
    a(f"s_mov_b32 s{base+2*idx+1}, s92")

def stamp2(a, ia, ib, creg, base=64):
    if not OPT["stamp"]: return
    a("s_memrealtime s[90:91]")
    a("s_memtime s[92:93]")
    a("s_waitcnt lgkmcnt(0)")
    a(f"s_cmp_eq_u32 s{creg}, 0")
    a(f"s_cselect_b32 s{base+2*ia}, s90, s{base+2*ia}")
    a(f"s_cselect_b32 s{base+2*ia+1}, s92, s{base+2*ia+1}")
    a(f"s_cselect_b32 s{base+2*ib}, s{base+2*ib}, s90")
    a(f"s_cselect_b32 s{base+2*ib+1}, s{base+2*ib+1}, s92")

def stamp_dump(a, n, wave_sgpr, tag, kidx, base=64):
    if not OPT["stamp"]: return
    a(f"s_and_b32 s94, s{wave_sgpr}, 3")
    a("s_cmp_lg_u32 s94, 0")
    a(f"s_cbranch_scc1 {tag}_nodump")
    a("s_load_dwordx2 s[90:91], s[0:1], 64")
    a("s_waitcnt lgkmcnt(0)")
    a(f"s_add_u32 s88, s90, {TAIL + (4 << 20) + kidx * 65536}")
    a("s_addc_u32 s89, s91, 0")
    a("s_mov_b32 s90, 65536")
    a("s_mov_b32 s91, 0x00020000")
    a(f"s_lshl_b32 s94, s{wave_sgpr}, 5")
    a("s_lshl_b32 s95, s2, 8")
    a("s_add_u32 s94, s94, s95")
    a("v_mov_b32 v8, 0")
    for i in range(n):
        a(f"v_mov_b32 v10, s{base+2*i}")
        a(f"v_mov_b32 v11, s{base+2*i+1}")
        a(f"buffer_store_dwordx2 v[10:11], v8, s[88:91], s94 offen offset:{i*8}")
        a("s_waitcnt vmcnt(0)")
    a.label(f"{tag}_nodump")

def q(r, n=4): return f"v[{r}:{r+n-1}]"

def kernel_start(a, name):
    a(f".globl {name}")
    a(".p2align 8")
    a(f".type {name},@function")
    a.label(name)

def code_prefetch(a, start, end, vt, st):
    if not OPT["ipf"]: return
    a(f"s_getpc_b64 s[{st}:{st+1}]")
    a(f"s_and_b32 s{st}, s{st}, 0xffffff00")
    a(f"s_mov_b32 s{st+2}, {end}-{start}")
    a(f"s_mov_b32 s{st+3}, 0x00020000")
    a(f"v_lshlrev_b32 v{vt}, 7, v0")
    a(f"buffer_load_dword v{vt}, v{vt}, s[{st}:{st+3}], 0 offen")

def desc(name, vgpr, sgpr=96):
    acc = min(256, (vgpr + 3) // 4 * 4)
    return f""".p2align 6
.amdhsa_kernel {name}
  .amdhsa_next_free_vgpr {vgpr}
  .amdhsa_next_free_sgpr {sgpr}
  .amdhsa_accum_offset {acc}
  .amdhsa_group_segment_fixed_size 0
  .amdhsa_kernarg_size 72
  .amdhsa_user_sgpr_count 2
  .amdhsa_user_sgpr_kernarg_segment_ptr 1
  .amdhsa_system_sgpr_workgroup_id_x 1
  .amdhsa_float_denorm_mode_32 {OPT['denorm']}
.end_amdhsa_kernel
"""

def gelu_batch(b, TMP, SSr, first, sC0, sC0H):
    L = []
    R = [b + i for i in range(8)]
    if not OPT["f16"]:
        T = [TMP + i for i in range(8)]
        for v, t in zip(R, T): L.append(f"v_fma_f32 v{t}, -v{v}, v{v}, s{sC0}")
        for v, t in zip(R, T): L.append(f"v_mul_f32 v{t}, v{t}, v{v}")
        for t in T: L.append(f"v_exp_f32 v{t}, v{t}")
        for t in T: L.append(f"v_add_f32 v{t}, 1.0, v{t}")
        for t in T: L.append(f"v_rcp_f32 v{t}, v{t}")
        for v, t in zip(R, T): L.append(f"v_mul_f32 v{t}, v{v}, v{t}")
        Gv = T
    else:
        H = [TMP + i for i in range(4)]; Pp = [TMP + 4 + i for i in range(4)]
        for i in range(4): L.append(f"v_cvt_pk_f16_f32 v{H[i]}, v{R[2*i]}, v{R[2*i+1]}")
        for i in range(4): L.append(f"v_pk_fma_f16 v{Pp[i]}, v{H[i]}, v{H[i]}, s{sC0H} neg_lo:[1,0,0] neg_hi:[1,0,0]")
        for i in range(4): L.append(f"v_pk_mul_f16 v{Pp[i]}, v{Pp[i]}, v{H[i]}")
        for i in range(4): L.append(f"v_exp_f16 v{H[i]}, v{Pp[i]}")
        for i in range(4): L.append(f"v_exp_f16_sdwa v{H[i]}, v{Pp[i]} dst_sel:WORD_1 dst_unused:UNUSED_PRESERVE src0_sel:WORD_1")
        for i in range(4): L.append(f"v_pk_add_f16 v{H[i]}, v{H[i]}, 1.0 op_sel_hi:[1,0]")
        for i in range(4): L.append(f"v_rcp_f16 v{Pp[i]}, v{H[i]}")
        for i in range(4): L.append(f"v_rcp_f16_sdwa v{H[i]}, v{H[i]} dst_sel:DWORD dst_unused:UNUSED_PAD src0_sel:WORD_1")
        for i in range(4): L.append(f"v_fma_mix_f32 v{R[2*i]}, v{R[2*i]}, v{Pp[i]}, 0 op_sel_hi:[0,1,0]")
        for i in range(4): L.append(f"v_fma_mix_f32 v{R[2*i+1]}, v{R[2*i+1]}, v{H[i]}, 0 op_sel_hi:[0,1,0]")
        Gv = R
    for e in (0, 4, 1, 5, 2, 6, 3, 7) if not OPT['sdot'] else ():
        s_ = SSr + e // 4
        L.append(f"v_mul_f32 v{s_}, v{Gv[e]}, v{Gv[e]}" if first and e % 4 == 0 else f"v_fmac_f32 v{s_}, v{Gv[e]}, v{Gv[e]}")
    for i in range(4): L.append(f"v_cvt_pk_bf16_f32 v{b+i}, v{Gv[2*i]}, v{Gv[2*i+1]}")
    return L

NBP = 6
def k2():
    a = Asm()
    kernel_start(a, "mid_kernel")
    a("s_cmp_ge_u32 s2, 24")
    a("s_cbranch_scc1 K2_end")
    stamp(a, 0)
    a("s_load_dwordx4 s[4:7], s[0:1], 24")
    a("s_load_dwordx2 s[8:9], s[0:1], 40")
    a("s_load_dwordx2 s[10:11], s[0:1], 64")
    a("v_lshrrev_b32 v1, 6, v0")
    a("v_and_b32 v2, 63, v0")
    a("v_readfirstlane_b32 s3, v1")
    a("v_mul_u32_u24 v5, 12, v0")
    a("s_lshr_b32 s30, s2, 2")
    a("s_and_b32 s32, s2, 3")
    a("s_lshl_b32 s31, s30, 3")
    a("s_add_u32 s31, s31, s3")
    a("s_mul_i32 s33, s32, 192")
    a(f"s_mul_i32 s34, s31, {32 * 768}")
    a("s_add_u32 s33, s33, s34")
    a("v_lshrrev_b32 v3, 4, v2")
    a("v_and_b32 v4, 1, v3")
    a("v_lshlrev_b32 v4, 4, v4")
    a("v_lshrrev_b32 v3, 1, v3")
    a("v_lshl_add_u32 v3, v3, 3, v4")
    a("v_mul_u32_u24 v7, 768, v3")
    a("v_and_b32 v6, 15, v2")
    a("v_mul_u32_u24 v4, 12, v6")
    a("v_add_u32 v7, v4, v7")
    a("s_lshl_b32 s35, s31, 6")
    a("v_lshlrev_b32 v4, 1, v3")
    a("s_waitcnt lgkmcnt(0)")
    srd(a, 24, 10, 11, WSBYTES - TAIL, TAIL)
    a(f"s_mov_b32 s34, {SSQ - TAIL}")
    for r in range(NREP):
        a(f"buffer_load_dwordx3 {q(32+4*r, 3)}, v5, s[24:27], s34 offen")
        if r < NREP - 1: a("s_add_u32 s34, s34, 6144")
    srd(a, 12, 4, 5, C * F * 2)
    srd(a, 16, 6, 7, F * 2)
    srd(a, 20, 8, 9, F * 2)
    W = 64; U = 96
    for e in range(8):
        if e == 4: a("s_add_u32 s33, s33, 3072")
        a(f"buffer_load_dwordx3 {q(W + 4*e, 3)}, v7, s[12:15], s33 offen offset:{(e % 4) * 768}")
    a("buffer_load_dwordx4 v[16:19], v4, s[16:19], s35 offen")
    a("buffer_load_dwordx4 v[12:15], v4, s[20:23], s35 offen")
    a("s_waitcnt vmcnt(10)")
    stamp(a, 1)
    for st in (4, 2, 1):
        for r in range(st):
            for k in range(3): a(f"v_add_f32 v{32+4*r+k}, v{32+4*r+k}, v{32+4*(r+st)+k}")
    a(f"s_mov_b32 s36, {f32(1.0 / (ALPHA * ALPHA))}")
    a(f"v_mov_b32 v20, {f32(1e-6)}")
    for k in range(3): a(f"v_fma_f32 v{32+k}, v{32+k}, s36, v20")
    for k in range(3): a(f"v_sqrt_f32 v{32+k}, v{32+k}")
    a("s_nop 0")
    for k in range(3): a(f"ds_write_b32 v5, v{32+k} offset:{4*k}")
    a("v_add_f32 v21, v32, v33")
    a("v_add_f32 v21, v21, v34")
    for ctl in ("row_shr:1", "row_shr:2", "row_shr:4", "row_shr:8"):
        a("s_nop 1")
        a(f"v_add_f32_dpp v21, v21, v21 {ctl} row_mask:0xf bank_mask:0xf bound_ctrl:0")
    a("s_nop 1")
    a("v_readlane_b32 s40, v21, 15")
    a("v_readlane_b32 s41, v21, 31")
    a("v_readlane_b32 s42, v21, 47")
    a("v_readlane_b32 s43, v21, 63")
    a("s_nop 1")
    a("v_mov_b32 v22, s40")
    a("v_add_f32 v22, s41, v22")
    a("v_add_f32 v22, s42, v22")
    a("v_add_f32 v22, s43, v22")
    a("s_lshl_b32 s37, s3, 2")
    a("v_mov_b32 v23, s37")
    a("ds_write_b32 v23, v22 offset:6144")
    a("s_waitcnt lgkmcnt(0)")
    a("s_barrier")
    stamp(a, 2)
    a("v_mov_b32 v23, 0")
    a("ds_read_b128 v[24:27], v23 offset:6144")
    a("ds_read_b128 v[28:31], v23 offset:6160")
    a("s_lshl_b32 s37, s31, 7")
    a("v_lshlrev_b32 v4, 2, v3")
    a("v_add_u32 v4, s37, v4")
    a("ds_read_b128 v[32:35], v4")
    a("ds_read_b128 v[36:39], v4 offset:16")
    a("s_waitcnt vmcnt(0)")
    for e in range(8):
        for d in range(3):
            a(f"v_lshlrev_b32 v{U + 6*e + 2*d}, 16, v{W + 4*e + d}")
            a(f"v_and_b32 v{U + 6*e + 2*d + 1}, 0xffff0000, v{W + 4*e + d}")
    a("s_waitcnt lgkmcnt(0)")
    for st in (4, 2, 1):
        for r in range(st): a(f"v_add_f32 v{24+r}, v{24+r}, v{24+r+st}")
    a(f"v_mul_f32 v24, {f32(1.0 / F)}, v24")
    a(f"v_add_f32 v24, {f32(1e-6)}, v24")
    a("v_rcp_f32 v24, v24")
    a(f"s_mov_b32 s36, {f32(1.0 / ALPHA)}")
    for e in range(8):
        src = 16 + e // 2
        a(f"v_lshlrev_b32 v40, 16, v{src}" if e % 2 == 0 else f"v_and_b32 v40, 0xffff0000, v{src}")
        a(f"v_mul_f32 v{32+e}, v{32+e}, v24")
        a(f"v_fma_f32 v{32+e}, v{32+e}, v40, 1.0")
        a(f"v_mul_f32 v{32+e}, s36, v{32+e}")
    if OPT["k3c"]:
        a("s_sub_u32 s44, 47, s31")
        a("s_and_b32 s45, s44, 1")
        a("s_andn2_b32 s44, s44, 1")
        a("s_sub_u32 s44, 47, s44")
        a("s_mul_i32 s33, s44, 24")
        a("s_mul_i32 s45, s45, 3")
        a("s_add_u32 s33, s33, s45")
    else:
        a("s_mul_i32 s33, s31, 24")
    a("s_mul_i32 s46, s32, 6")
    a("s_add_u32 s33, s33, s46")
    a("s_lshl_b32 s33, s33, 10")
    a(f"s_add_u32 s33, s33, {W2F - TAIL}")
    a("s_sub_u32 s34, s33, 24576" if OPT["k3c"] else "s_add_u32 s34, s33, 3072")
    a("v_lshlrev_b32 v43, 4, v2")
    for n in range(6):
        T = 44 + 8 * (n % 2); O = W + 4 * n
        for e in range(8): a(f"v_mul_f32 v{T+e}, v{U + 6*e + n}, v{32+e}")
        for i in range(4): a(f"v_cvt_pk_bf16_f32 v{O+i}, v{T+2*i}, v{T+2*i+1}")
        a(f"buffer_store_dwordx4 {q(O)}, v43, s[24:27], s{33 + n // 3} offen offset:{(n % 3) * 1024}")
    for e in range(8):
        a(f"v_lshlrev_b32 v41, 16, v{12 + e // 2}" if e % 2 == 0 else f"v_and_b32 v41, 0xffff0000, v{12 + e // 2}")
        for n in range(6): a(f"v_mul_f32 v{24+n}, v41, v{U + n}" if e == 0 else f"v_fmac_f32 v{24+n}, v41, v{U + 6*e + n}")
    a("v_mul_u32_u24 v43, 24, v0")
    for d in range(3): a(f"ds_write_b64 v43, {q(24 + 2*d, 2)} offset:{6400 + 8*d}")
    a("s_waitcnt lgkmcnt(0)")
    a("s_barrier")
    a("s_cmp_ge_u32 s3, 2")
    a("s_cbranch_scc1 K2_end")
    a("v_lshlrev_b32 v43, 2, v0")
    for w in range(32): a(f"ds_read_b32 v{U + w}, v43 offset:{6400 + 384*w}")
    a("s_waitcnt lgkmcnt(0)")
    for st in (16, 8, 4, 2, 1):
        for r in range(st): a(f"v_add_f32 v{U+r}, v{U+r}, v{U+r+st}")
    a("s_mul_i32 s39, s30, 1536")
    a("s_mul_i32 s38, s32, 384")
    a("s_add_u32 s38, s38, s39")
    a(f"s_add_u32 s38, s38, {B2 - TAIL}")
    a("v_cmp_gt_u32 vcc, 96, v0")
    a("s_and_saveexec_b64 s[40:41], vcc")
    a(f"buffer_store_dword v{U}, v43, s[24:27], s38 offen")
    a("s_mov_b64 exec, s[40:41]")
    if OPT["stamp"]: a("s_waitcnt vmcnt(0)")
    stamp(a, 3)
    stamp_dump(a, 4, 3, "K2", 2)
    a.label("K2_end")
    a("s_endpgm")
    return a, desc("mid_kernel", 144, 100 if OPT["stamp"] else 56), "; @launch kernel=mid_kernel grid=(24,1,1) block=(512,1,1) lds=19200"

def k1():
    a = Asm()
    XN = 8; ACC = 152; BB = 200; SQ = 232
    TMP = BB + 16; SS = BB + 24
    vDE, vXS, vRD, vST, vDW, vDO, vRB = 1, 2, 3, 4, 5, 6, 7
    L_DW = 147456
    sX, sW1, sH, sDB = 8, 12, 16, 20
    sWSlo, sWShi, sOUTlo, sOUThi, sDBlo, sDBhi = 24, 25, 26, 27, 28, 29
    (sWV, sGRP, sI, sEND, sRDS, sDSL, sT0, sT1, sC0, sHB, sXB, sREG, sSIG, sT2, sC0H, sDSR, sD0, sST0, sST1, sXN, sDS0, sTK,
     sSLO, sSHI, sDLO, sDHI, sSG0, sCW, sXU) = range(30, 59)
    sHN, sSLN, sSHN, sDSP, sDSN, sDCN, sCW2, sKM = 82, 83, 84, 85, 86, 87, 3, 97
    REG = 3 * 192 * 768
    kernel_start(a, "gemm1_kernel")
    a("s_cmp_ge_u32 s2, 256")
    a("s_cbranch_scc1 K1_end")
    stamp(a, 0)
    a("s_load_dwordx4 s[4:7], s[0:1], 0")
    a(f"s_load_dwordx2 s[{sW1}:{sW1+1}], s[0:1], 16")
    a(f"s_load_dwordx2 s[{sOUTlo}:{sOUThi}], s[0:1], 48")
    a(f"s_load_dwordx2 s[{sDBlo}:{sDBhi}], s[0:1], 56")
    a(f"s_load_dwordx2 s[{sWSlo}:{sWShi}], s[0:1], 64")
    code_prefetch(a, "gemm1_kernel", "K1_end", BB + 20, 60)
    a("v_lshrrev_b32 v8, 6, v0")
    a("v_and_b32 v9, 63, v0")
    a(f"v_readfirstlane_b32 s{sWV}, v8")
    a("v_lshrrev_b32 v12, 3, v9")
    a("v_and_b32 v13, 7, v9")
    a("v_lshrrev_b32 v14, 1, v12")
    a("v_xor_b32 v14, v14, v13")
    a(f"v_mul_u32_u24 v{vXS}, 768, v12")
    a(f"v_lshl_add_u32 v{vXS}, v14, 4, v{vXS}")
    a(f"s_lshr_b32 s{sT0}, s2, 4")
    a(f"s_and_b32 s{sSG0}, s{sT0}, {OPT['sga']}")
    a(f"s_lshl_b32 s{sT0}, s{sT0}, 4")
    a(f"s_and_b32 s{sT1}, s2, 7")
    a(f"s_lshl_b32 s{sT1}, s{sT1}, 1")
    a(f"s_add_u32 s{sT0}, s{sT0}, s{sT1}")
    a(f"s_bfe_u32 s{sT1}, s2, 0x10003")
    a(f"s_add_u32 s{sREG}, s{sT0}, s{sT1}")
    a(f"s_mul_i32 s{sSLO}, s{sT1}, 12")
    a(f"s_add_u32 s{sSHI}, s{sSLO}, 12")
    a(f"s_lshr_b32 s{sGRP}, s{sWV}, 2")
    a(f"s_and_b32 s{sT1}, s{sWV}, 3")
    a(f"s_add_u32 s{sT0}, s{sT0}, s{sGRP}")
    a(f"s_mul_i32 s{sXB}, s{sT0}, {REG}")
    a(f"s_mul_i32 s{sT2}, s{sT1}, {48 * 768}")
    a(f"s_add_u32 s{sXB}, s{sXB}, s{sT2}")
    if not OPT["roll"]: a(f"s_add_u32 s{sXB}, s{sXB}, {2 * 192 * 768}")
    a(f"s_mul_i32 s{sHB}, s{sT0}, {HSTRIDE}")
    if not OPT["roll"]: a(f"s_add_u32 s{sHB}, s{sHB}, {2 * TILE_H}")
    a(f"s_mul_i32 s59, s{sT0}, {REG}")
    if OPT["roll"]: a(f"s_add_u32 s59, s59, {2 * 192 * 768}")
    a(f"s_mul_i32 s{sXN}, s{sREG}, {REG}")
    a(f"s_add_u32 s{sT2}, s{sWV}, 4" if OPT["roll"] else f"s_xor_b32 s{sT2}, s{sWV}, 4")
    a(f"s_mul_i32 s{sT2}, s{sT2}, {48 * 768}")
    a(f"s_add_u32 s{sXN}, s{sXN}, s{sT2}")
    a(f"s_mul_i32 s{sHN}, s{sREG}, {HSTRIDE}")
    a(f"s_xor_b32 s{sT2}, s{sGRP}, {0 if OPT['roll'] else 1}")
    a(f"s_mul_i32 s{sT2}, s{sT2}, {TILE_H}")
    a(f"s_add_u32 s{sHN}, s{sHN}, s{sT2}")
    if OPT["roll"]: a(f"s_add_u32 s{sHN}, s{sHN}, {46 * CHUNK_H}")
    a(f"s_mov_b32 s{sSLN}, 0")
    a(f"s_mov_b32 s{sSHN}, 24")
    a(f"s_mov_b32 s{sDSP}, 23")
    a(f"s_mov_b32 s{sDSN}, -1")
    if OPT["ord"]:
        a(f"s_bitcmp1_b32 s2, {OPT['ord']}")
        a("s_cbranch_scc0 K1_noswap")
        for x, y in ((sXB, sXN), (sHB, sHN), (sSLO, sSLN), (sSHI, sSHN), (sDSP, sDSN)):
            a(f"s_mov_b32 s{sT2}, s{x}"); a(f"s_mov_b32 s{x}, s{y}"); a(f"s_mov_b32 s{y}, s{sT2}")
        a.label("K1_noswap")
    a(f"s_mul_i32 s{sD0}, s{sWV}, 6144")
    a(f"s_mov_b32 s{sCW}, s{sD0}")
    a(f"s_add_u32 s{sCW2}, s{sD0}, 49152")
    a("s_waitcnt lgkmcnt(0)")
    srd(a, sX, 4, 5, XBYTES)

    KPO = [3, 4, 5, 2, 1, 0]
    def xdma(n, pol=None):
        if pol is None:
            if OPT["x_nt"] == OPT["xp_nt"]: return xdma(n, OPT["x_nt"])
            return [f"s_cbranch_vccnz K1_xa{n}"] + xdma(n, OPT["x_nt"]) + [f"s_branch K1_xb{n}", f"K1_xa{n}:"] + xdma(n, OPT["xp_nt"]) + [f"K1_xb{n}:"]
        xnt = " nt" if pol else ""
        tt, kp = divmod(n, 6); kp = KPO[kp]
        return [f"s_add_u32 m0, s{(sCW, sCW2)[n // 3 % 2]}, {(n % 3) * 2048}", f"s_add_u32 s{sXU}, s{sXB}, {tt * 12288 + kp * 128}",
                f"buffer_load_dwordx4 v{vXS}, s[{sX}:{sX+3}], s{sXU} offen{xnt} lds",
                "s_add_u32 m0, m0, 1024", f"s_add_u32 s{sXU}, s{sXU}, 6144",
                f"buffer_load_dwordx4 v{vXS}, s[{sX}:{sX+3}], s{sXU} offen{xnt} lds"]
    srd(a, sH, 6, 7, C * 2)
    a(f"v_lshlrev_b32 v{ACC+4}, 2, v0")
    a(f"buffer_load_dword v{ACC}, v{ACC+4}, s[{sH}:{sH+3}], 0 offen")
    for n in range(6): a.ext(xdma(n, OPT['x_nt']))
    a('s_mov_b64 vcc, 0')

    a("v_and_b32 v10, 15, v9")
    a("v_lshrrev_b32 v11, 4, v9")
    a(f"v_lshlrev_b32 v{vST}, 2, v11")
    a(f"v_xor_b32 v{vST}, v{vST}, v9")
    a(f"v_lshlrev_b32 v{vST}, 4, v{vST}")
    a(f"s_mul_i32 s{sT2}, s{sT1}, 3072")
    a(f"v_add_u32 v{vST}, s{sT2}, v{vST}")
    a(f"v_lshlrev_b32 v{vDW}, 5, v11")
    a(f"v_add_u32 v{vDW}, {L_DW}, v{vDW}")
    a("v_and_b32 v14, 2, v12")
    a("v_xor_b32 v13, v13, v14")
    a(f"v_mul_u32_u24 v{vDE}, 3072, v12")
    a(f"v_lshl_add_u32 v{vDE}, v13, 4, v{vDE}")
    a(f"v_xor_b32 v{vDO}, 64, v{vDE}")
    a("v_lshrrev_b32 v12, 2, v10")
    a("v_lshl_add_u32 v13, v11, 3, v12")
    a(f"v_lshlrev_b32 v{vRB}, 7, v13")
    a("v_lshrrev_b32 v12, 1, v12")
    a("v_and_b32 v13, 1, v11")
    a("v_lshl_add_u32 v12, v13, 1, v12")
    a(f"v_lshl_add_u32 v{vRB}, v12, 5, v{vRB}")
    a("v_and_b32 v12, 3, v10")
    a(f"v_lshl_add_u32 v{vRB}, v12, 3, v{vRB}")
    a(f"s_mov_b32 s{sC0}, {f32(-C0)}")
    h = f16bits(-C0); a(f"s_mov_b32 s{sC0H}, 0x{h:04x}{h:04x}")
    a(f"s_mul_i32 s{sDS0}, s{sWV}, {6 * 24576}")
    a(f"s_add_u32 s{sSIG}, s{sSLO}, s{sSG0}")
    a(f"s_lshl_b32 s{sDLO}, s{sSLO}, 7")
    a(f"s_add_u32 s{sDLO}, s{sDLO}, s{sDS0}")
    a(f"s_lshl_b32 s{sDHI}, s{sSHI}, 7")
    a(f"s_add_u32 s{sDHI}, s{sDHI}, s{sDS0}")
    a(f"s_lshl_b32 s{sDSR}, s{sSG0}, 7")
    a(f"s_add_u32 s{sDSR}, s{sDSR}, s{sDLO}")
    a(f"s_mov_b32 s{sDSL}, s{sD0}")
    a(f"s_mov_b32 s{sTK}, 1")
    a(f"s_mov_b32 s{sW1+2}, {C * F * 2}")
    a(f"s_mov_b32 s{sW1+3}, 0x00020000")
    srd(a, sDB, sDBlo, sDBhi, 256)

    uid = [0]
    def dma():
        P = []
        for k in range(6):
            pre = [f"s_mov_b32 m0, s{sDSL}", f"s_mov_b32 s{sT0}, s{sDSR}"] if k == 0 else ["s_add_u32 m0, m0, 1024", f"s_add_u32 s{sT0}, s{sT0}, 24576"]
            P.append(pre + [f"buffer_load_dwordx4 v{(vDE, vDO)[k % 2]}, s[{sW1}:{sW1+3}], s{sT0} offen lds"])
        P[5] += [f"s_add_u32 s{sDSL}, s{sDSL}, 49152", f"s_cmp_ge_u32 s{sDSL}, 147456", f"s_cselect_b32 s{sDSL}, s{sD0}, s{sDSL}",
                 f"s_add_u32 s{sDSR}, s{sDSR}, 128", f"s_cmp_eq_u32 s{sDSR}, s{sDHI}", f"s_cselect_b32 s{sDSR}, s{sDLO}, s{sDSR}"]
        uid[0] += 1
        P[5] += [f"s_sub_u32 s{sDCN}, s{sDCN}, 1", f"s_cmp_lg_u32 s{sDCN}, 0", f"s_cbranch_scc1 K1_ds{uid[0]}",
                 f"s_lshl_b32 s{sDLO}, s{sSLN}, 7", f"s_add_u32 s{sDLO}, s{sDLO}, s{sDS0}", f"s_lshl_b32 s{sDHI}, s{sSHN}, 7", f"s_add_u32 s{sDHI}, s{sDHI}, s{sDS0}",
                 f"s_lshl_b32 s{sDSR}, s{sSG0}, 7", f"s_add_u32 s{sDSR}, s{sDSR}, s{sDLO}", f"K1_ds{uid[0]}:"]
        return P

    a(f"v_lshlrev_b32 v{ACC+4}, 3, v0")
    a(f"v_add_u32 v{ACC+4}, {L_DW}, v{ACC+4}")
    a("s_waitcnt vmcnt(12)")
    a(f"v_and_b32 v{ACC+2}, 0xffff, v{ACC}")
    a(f"v_and_b32 v{ACC+3}, 0xffff0000, v{ACC}")
    a(f"ds_write_b64 v{ACC+4}, {q(ACC+2, 2)}")
    a(f"v_mov_b32 v{BB+8}, 1")
    a(f"s_cmp_lg_u32 s{sWV}, 0")
    a("s_cbranch_scc1 K1_pj")
    a(f"v_lshlrev_b32 v{ACC+5}, 8, v0")
    a(f"s_and_b32 s{sT0}, s2, {NREP - 1}")
    a(f"s_lshl_b32 s{sT0}, s{sT0}, 2")
    a(f"buffer_atomic_add v{BB+8}, v{ACC+5}, s[{sDB}:{sDB+3}], s{sT0} offen sc0")
    a.label("K1_pj")
    for r in range(SQ, SQ + 24): a(f"v_mov_b32 v{r}, 0")
    srd(a, sH, sWSlo, sWShi, TAIL)
    a(f"s_mov_b32 s{sI}, 0")
    a(f"s_sub_u32 s{sEND}, s{sSHI}, s{sSLO}")
    a(f"s_mov_b32 s{sRDS}, 0")
    a(f"s_mov_b32 s{sKM}, {OPT['kmask']}")
    a(f"s_mov_b32 s{sDCN}, s{sEND}")
    a(f"s_sub_u32 s{sEND}, s{sEND}, 2")
    a("s_waitcnt lgkmcnt(0)")
    a("s_barrier")
    stamp(a, 1)

    def buf(i): return BB + 4 * (i % 8)
    def rd(i):
        ct, ks = divmod(i, 12)
        L = [f"v_xor_b32 v{vRD}, {((ct - 1) ^ ct) << 5}, v{vRD}"] if ks == 0 and ct > 0 else []
        return L + [f"ds_read_b64_tr_b16 {q(buf(i) + 2*u, 2)}, v{vRD} offset:{ks*4096 + u*512}" for u in range(2)]
    def head(): return [f"v_add_u32 v{vRD}, s{sRDS}, v{vRB}"] + [x for i in range(4) for x in rd(i)]

    DWR = [BB + 16, BB + 24]
    S = BB; Q = BB + 4; vTK = BB + 8; vW2 = BB + 10; vXR = BB + 12; vT = BB + 13; vFL = BB + 14
    KSO = [6, 7, 8, 9, 10, 11, 5, 4, 3, 2, 1, 0]
    def dwrd(m): return [f"ds_read_b128 {q(DWR[m % 2] + 4*j)}, v{vDW} offset:{KSO[m % 12]*128 + j*16}" for j in range(2)]
    def xaddr():
        return [f"v_and_b32 v{vT}, 15, v0", f"v_lshlrev_b32 v{vXR}, 7, v{vT}", f"v_bfe_u32 v{vT}, v0, 1, 2", f"v_bfe_u32 v{vFL}, v0, 4, 2",
                f"v_xor_b32 v{vT}, v{vT}, v{vFL}", f"v_lshl_add_u32 v{vXR}, v{vT}, 4, v{vXR}", f"v_add_u32 v{vT}, s{sCW2}, v{vXR}", f"v_add_u32 v{vXR}, s{sCW}, v{vXR}"]
    def xread(n):
        tt, kp = divmod(n, 6); kp = KPO[kp]
        return [f"ds_read_b128 {q(XN + 48*tt + 8*kp + 4*e)}, v{(vXR, vT)[n // 3 % 2]} offset:{(n % 3) * 2048 + e * 64}" for e in range(2)]
    a.ext(xaddr())
    a.label("K1_ln")
    a.ext(dwrd(0))
    def yreg(tt, d): return XN + 48*tt + 2*d if d < 24 else ACC + 2*(d - 24)
    for tt in range(3):
        for m in range(12):
            n = tt * 6 + m // 2; ks = KSO[m]
            if m % 2 == 0:
                if tt == 0: a(f"s_cbranch_vccnz K1_ta{n}")
                a(f"s_waitcnt vmcnt({2 * min(5, 17 - n) + (6 if n > 14 else 0)})")
                a.ext(xread(n))
                if tt == 0: a.label(f"K1_ta{n}")
            last = tt == 2 and m == 11
            if not last: a.ext(dwrd(m + 1))
            a(f"s_waitcnt lgkmcnt({0 if last else 2})")
            if m % 2 == 0:
                if tt == 0:
                    a(f"s_cbranch_vccnz K1_tb{n}")
                    a.ext(xdma(n + 6, OPT["x_nt"]))
                    a.label(f"K1_tb{n}")
                elif n + 6 < 18: a.ext(xdma(n + 6))
                if n in (14, 17):
                    for p in dma(): a.ext(p)
            D = DWR[m % 2]
            for jj in (3, 2, 1, 0):
                d = 4 * ks + jj; x = XN + 48*tt + d; y = yreg(tt, d)
                a(f"v_dot2_f32_bf16 v{y+1}, v{x}, v{D+2*jj+1}, 0")
                a(f"v_dot2_f32_bf16 v{y}, v{x}, v{D+2*jj}, 0")
            for jj in (3, 2, 1, 0):
                y = q(yreg(tt, 4 * ks + jj), 2); s_ = q(S + 2*(jj % 2), 2); q_ = q(Q + 2*(jj % 2), 2)
                if m == 0 and jj >= 2:
                    a(f"v_pk_mul_f32 {s_}, {y}, 1.0 op_sel_hi:[1,0]")
                    a(f"v_pk_mul_f32 {q_}, {y}, {y}")
                else:
                    a(f"v_pk_add_f32 {s_}, {s_}, {y}")
                    a(f"v_pk_fma_f32 {q_}, {y}, {y}, {q_}")
        a(f"v_pk_add_f32 {q(S,2)}, {q(S,2)}, {q(S+2,2)}")
        a(f"v_pk_add_f32 {q(Q,2)}, {q(Q,2)}, {q(Q+2,2)}")
        a(f"v_add_f32 v{S}, v{S}, v{S+1}")
        a(f"v_add_f32 v{Q}, v{Q}, v{Q+1}")
        for sw in ("v_permlane16_swap_b32", "v_permlane32_swap_b32"):
            a(f"v_mov_b32 v{S+1}, v{S}"); a(f"v_mov_b32 v{Q+1}, v{Q}")
            a("s_nop 0")
            a(f"{sw} v{S}, v{S+1}"); a(f"{sw} v{Q}, v{Q+1}")
            a(f"v_add_f32 v{S}, v{S}, v{S+1}"); a(f"v_add_f32 v{Q}, v{Q}, v{Q+1}")
        a(f"v_mul_f32 v{S}, {f32(-1.0 / C)}, v{S}")
        a(f"v_mul_f32 v{Q}, {f32(1.0 / C)}, v{Q}")
        a(f"v_fma_f32 v{Q}, -v{S}, v{S}, v{Q}")
        a(f"v_max_f32 v{Q}, 0, v{Q}")
        a(f"v_add_f32 v{Q}, {f32(1e-5)}, v{Q}")
        a(f"v_rsq_f32 v{Q}, v{Q}")
        a("s_nop 0")
        a(f"v_mul_f32 v{Q}, {f32(ALPHA)}, v{Q}")
        a(f"v_mul_f32 v{S}, v{S}, v{Q}")
        for d0 in range(0, 48, 4):
            for d in range(d0, d0 + 4):
                y = q(yreg(tt, d), 2)
                a(f"v_pk_fma_f32 {y}, {y}, {q(Q,2)}, {q(S,2)} op_sel_hi:[1,0,0]")
            for d in range(d0, d0 + 4):
                a(f"v_cvt_pk_bf16_f32 v{XN + 48*tt + d}, v{yreg(tt, d)}, v{yreg(tt, d) + 1}")
    a(f"s_cmp_lg_u32 s{sI}, 0")
    a("s_cbranch_scc1 K1_chk")
    if OPT["w1warm"]:
        a(f"s_lshr_b32 s{sT0}, s2, 3")
        a(f"s_lshl_b32 s{sT0}, s{sT0}, 3")
        a(f"s_add_u32 s{sT0}, s{sT0}, s{sWV}")
        a(f"s_mul_i32 s{sT0}, s{sT0}, 4608")
        a(f"v_and_b32 v{ACC}, 63, v0")
        a(f"v_min_u32 v{ACC}, 35, v{ACC}")
        a(f"v_lshlrev_b32 v{ACC}, 7, v{ACC}")
        a(f"s_mov_b32 m0, {L_DW + 2048}")
        a("s_waitcnt vmcnt(0)")
        a(f"buffer_load_dword v{ACC}, s[{sW1}:{sW1+3}], s{sT0} offen lds")
    a(f"v_readfirstlane_b32 s{sTK}, v{BB+8}")
    a("s_nop 3")
    a(f"s_cmp_lg_u32 s{sTK}, 0")
    a("s_cbranch_scc1 K1_flag")
    srd(a, 60, sWSlo, sWShi, NREP * 6144, SSQ)
    a(f"s_and_b32 s{sT0}, s2, {NREP - 1}")
    a(f"s_mul_i32 s{sT1}, s{sT0}, 6144")
    a(f"s_add_u32 s{sT2}, s{sT1}, 4096")
    for i in range(4): a(f"v_mov_b32 v{ACC+i}, 0")
    a(f"v_lshlrev_b32 v{ACC+4}, 4, v0")
    for k in range(6): a(f"buffer_store_dwordx4 {q(ACC)}, v{ACC+4}, s[60:63], s{(sT1, sT2)[k // 4]} offen offset:{(k % 4) * 1024} sc0 sc1")
    a(f"v_lshlrev_b32 v{ACC+5}, 8, v0")
    a(f"v_mov_b32 v{ACC+6}, 1")
    a(f"s_lshl_b32 s{sT0}, s{sT0}, 2")
    a("s_waitcnt vmcnt(0)")
    a(f"buffer_store_dword v{ACC+6}, v{ACC+5}, s[{sDB}:{sDB+3}], s{sT0} offen offset:64 sc0 sc1")
    a("s_branch K1_flag")
    a.label("K1_chk")
    a(f"v_readfirstlane_b32 s{sT1}, v{vFL+1}")
    a("s_nop 3")
    a(f"s_cmp_lg_u32 s{sT1}, 0")
    a("s_cbranch_scc1 K1_flag")
    a(f"v_mov_b32 v{vFL}, 0")
    a(f"buffer_load_dword v{vFL+1}, v{vFL}, s[{sDB}:{sDB+3}], s{sT2} offen offset:64 sc0 sc1")
    a("s_waitcnt vmcnt(0)")
    a("s_branch K1_chk")
    a.label("K1_flag")
    if OPT["w1warm"]:
        a(f"s_cmp_eq_u32 s{sI}, 0")
        a("s_cbranch_scc1 K1_fl2")
    a("s_waitcnt vmcnt(0)")
    a.label("K1_fl2")
    stamp2(a, 2, 5, sI)
    a("s_barrier")
    stamp2(a, 3, 6, sI)
    a.ext(head())
    a(f"s_cmp_eq_u32 s{sGRP}, 0")
    a("s_cbranch_scc1 K1_regA")
    a("s_barrier")
    a("s_branch K1_regB")

    def accr(ct, tt): return ACC + (((ct >> 1) * 3 + tt) * 2 + (ct & 1)) * 4
    NT = OPT["ntail"]
    def step(kind, grp):
        tag = kind + "AB"[grp]
        BG = OPT["bg"] if grp == 0 else OPT["bgb"]
        if kind == "tail":
            a.label(f"K1_pre{tag}")
            if OPT["npf"]:
                a("s_getpc_b64 s[60:61]")
                a.label(f"K1_pc{tag}")
                a(f"v_lshlrev_b32 v{TMP}, 7, v0")
                a(f"v_min_u32 v{TMP}, K3_end-K1_fin, v{TMP}")
                a(f"v_add_u32 v{TMP}, K1_fin-K1_pc{tag}, v{TMP}")
                a(f"v_mov_b32 v{TMP+3}, s61")
                a(f"v_add_co_u32 v{TMP+2}, vcc, s60, v{TMP}")
                a(f"s_mov_b32 m0, {L_DW + 2048}")
                a("s_nop 0")
                a(f"v_addc_co_u32 v{TMP+3}, vcc, 0, v{TMP+3}, vcc")
                a(f"global_load_lds_dword {q(TMP+2, 2)}, off")
        a(".p2align 6")
        a.label(f"K1_{tag}")
        a(f"s_setprio {OPT['pm']}")
        P = dma()
        misc = [[f"s_add_u32 s{sRDS}, s{sRDS}, 49152", f"s_cmp_eq_u32 s{sRDS}, 147456", f"s_cselect_b32 s{sRDS}, 0, s{sRDS}",
                 f"s_mul_i32 s{sST0}, s{sSIG}, {2 * CHUNK_H}", f"s_add_u32 s{sST0}, s{sST0}, s{sHB}"],
                [f"s_cmp_eq_u32 s{sSIG}, s{sDSP}", f"s_cselect_b32 s{sH}, s{sOUTlo}, s{sWSlo}", f"s_cselect_b32 s{sH+1}, s{sOUThi}, s{sWShi}",
                 f"s_cselect_b32 s{sST0}, s59, s{sST0}", f"s_mov_b32 s{sT1}, {XBYTES}", f"s_cselect_b32 s{sH+2}, s{sT1}, {TAIL}"],
                [f"s_add_u32 s{sST1}, s{sST0}, {CHUNK_H}", f"s_add_u32 s{sI}, s{sI}, 1"]]
        for g in range(12):
            a("s_waitcnt lgkmcnt(0)")
            k = 0
            ct = g // 3
            R = [x for j in range(4) for x in rd((g + 1) * 4 + j)] if g < 11 else []
            if len(R) == 9: R = [R[0] + "\n" + R[1]] + R[2:]
            for tt in range(3):
                for j in range(4):
                    i = g * 4 + j; ks = i % 12
                    c = "0" if ks == 0 else q(accr(ct, tt))
                    a(f"v_mfma_f32_16x16x32_bf16 {q(accr(ct, tt))}, {q(XN + 48*tt + 4*ks)}, {q(buf(i))}, {c}")
                    if k < len(R): a(R[k])
                    if k == 10 and g < len(misc): a.ext(misc[g])
                    if k == 9:
                        if g == BG and grp == 0:
                            if kind != "last" and not OPT["k1nv"] & 1: a("s_waitcnt vmcnt(6)")
                            a("s_barrier")
                        if BG < g <= BG + 6:
                            m = g - BG - 1
                            if kind == "pre":
                                if m == 0: a.ext([f"s_mov_b32 s{sCW}, s{sDSL}", f"s_mov_b32 s{sXB}, s{sXN}", f"s_add_u32 s{sCW2}, s{sDSL}, 49152",
                                                  f"s_cmp_ge_u32 s{sCW2}, 147456", f"s_cselect_b32 s{sCW2}, s{sD0}, s{sCW2}"])
                                if m % 2 == 0: a.ext(xdma(m // 2, OPT["xp_nt"]))
                            elif kind == "last":
                                if m % 2 == 0: a.ext(xdma(3 + m // 2, OPT["xp_nt"]))
                            else: a.ext(P[m])
                    k += 1
        a(f"s_setprio {OPT['pg0']}")
        if kind == "last": a.ext(xaddr())
        nb = 0
        for cp in range(2):
            for tt in range(3):
                b = ACC + (cp * 3 + tt) * 8
                a.ext(gelu_batch(b, TMP, SS + 2 * cp, tt == 0, sC0, sC0H))
                keep = kind == "regk" or (kind != "tail" and (OPT["stm"] >> (cp * 3 + tt)) & 1)
                a(f"buffer_store_dwordx4 {q(b)}, v{vST}, s[{sH}:{sH+3}], s{(sST0, sST1)[cp]} offen offset:{tt*1024}" + (" nt" if OPT["st_nt"] and not keep else ["", " sc1", " sc0 sc1", " sc0"][OPT["kf"]]))
                if kind == "last":
                    a(f"s_waitcnt vmcnt({13 + 3 * nb if nb < 3 else 11 + nb})")
                    a.ext(xread(nb))
                    a("s_waitcnt lgkmcnt(0)")
                    a.ext(xdma(nb + 6, OPT["xp_nt"]))
                nb += 1
                if nb == OPT["gb"] and grp == 1 and kind != "last":
                    if kind == "tail":
                        a(f"s_cmp_eq_u32 s{sI}, 36")
                        a(f"s_cbranch_scc1 K1_nogb")
                    if kind != "pre" and not OPT["k1nv"] & 2: a(f"s_waitcnt vmcnt({nb})")
                    a("s_barrier")
                    if kind == "tail": a.label("K1_nogb")
                if nb == OPT["gp"]: a(f"s_setprio {OPT['pg1']}")
                if nb == 5 and kind != "last": a.ext(head())
            if not OPT["sdot"]:
                a(f"v_permlane16_swap_b32 v{SS+2*cp}, v{SS+2*cp+1}")
                if cp == 0: a("s_nop 0")
                a(f"v_add_f32 v{SS+2*cp}, v{SS+2*cp}, v{SS+2*cp+1}")
        if OPT["sdot"]:
            for tt in range(3):
                for i in range(2):
                    for c in range(4):
                        p = ACC + ((c >> 1) * 3 + tt) * 8 + 2 * (c & 1) + i
                        a(f"v_dot2_f32_bf16 v{SS+c}, v{p}, v{p}, 0" if tt == 0 and i == 0 else (f"v_dot2_f32_bf16 v{SS+c}, v{p}, v{p}, v{SS+c}" if OPT["sdot"] == 1 else f"v_dot2c_f32_bf16 v{SS+c}, v{p}, v{p}"))
            a("s_nop 0")
            a(f"v_permlane16_swap_b32 v{SS}, v{SS+1}")
            a("s_nop 0")
            a(f"v_permlane16_swap_b32 v{SS+2}, v{SS+3}")
            a(f"v_add_f32 v{SS}, v{SS}, v{SS+1}")
            a(f"v_add_f32 v{SS+2}, v{SS+2}, v{SS+3}")
        a("s_nop 1")
        a(f"v_permlane32_swap_b32 v{SS}, v{SS+2}")
        a(f"v_add_f32 v{SS}, v{SS}, v{SS+2}")
        a(f"s_set_gpr_idx_on s{sSIG}, gpr_idx(SRC0,DST)")
        a(f"s_add_u32 s{sSIG}, s{sSIG}, 1")
        a(f"v_add_f32 v{SQ}, v{SQ}, v{SS}")
        a("s_set_gpr_idx_off")
        a(f"s_cmp_eq_u32 s{sSIG}, s{sSHI}")
        a(f"s_cselect_b32 s{sSIG}, s{sSLO}, s{sSIG}")
        if kind in ("reg", "regk"):
            g_ = "AB"[grp]
            if OPT["kmask"]:
                a(f"s_cmp_eq_u32 s{sI}, s{sEND}")
                a(f"s_cbranch_scc1 K1_out{g_}")
                a(f"s_bitcmp1_b32 s{sKM}, s{sSIG}")
                a(f"s_cbranch_scc{int(kind == 'regk')} K1_{tag}")
                if kind == "reg": a(f"s_branch K1_regk{g_}")
            else:
                a(f"s_cmp_lg_u32 s{sI}, s{sEND}")
                a(f"s_cbranch_scc1 K1_{tag}")
            if kind == "reg":
                a.label(f"K1_out{g_}")
                a(f"s_cmp_eq_u32 s{sI}, {36 - NT}")
                a(f"s_cbranch_scc1 K1_pretail{g_}")
        elif kind == "pre":
            pass
        elif kind == "last":
            a("s_branch K1_sw")
        else:
            a(f"s_cmp_lg_u32 s{sI}, 36")
            a(f"s_cbranch_scc1 K1_{tag}")
            a("s_branch K1_fin")
    for grp in range(2):
        for kind in (("regk",) if OPT["kmask"] else ()) + ("reg", "pre", "last", "tail"): step(kind, grp)
    a.label("K1_sw")
    a("s_setprio 0")
    a("s_mov_b64 vcc, -1")
    stamp(a, 4)
    a(f"s_mov_b32 s{sEND}, {36 - NT}")
    a(f"s_mov_b32 s{sSLO}, s{sSLN}")
    a(f"s_mov_b32 s{sSHI}, s{sSHN}")
    a(f"s_add_u32 s{sSIG}, s{sSLO}, s{sSG0}")
    a(f"s_mov_b32 s{sHB}, s{sHN}")
    a(f"s_mov_b32 s{sDSP}, s{sDSN}")
    a(f"s_and_b32 s{sT2}, s2, {NREP - 1}")
    a(f"s_lshl_b32 s{sT2}, s{sT2}, 2")
    a("s_waitcnt lgkmcnt(0)")
    a(f"v_mov_b32 v{vFL}, 0")
    a(f"buffer_load_dword v{vFL+1}, v{vFL}, s[{sDB}:{sDB+3}], s{sT2} offen offset:64 sc0 sc1")
    if OPT["w2pf"]:
        a("s_load_dwordx2 s[60:61], s[0:1], 24")
        a(f"s_mov_b32 s62, {C * F * 2}")
        a("s_mov_b32 s63, 0x00020000")
        a(f"s_mul_i32 s{sT0}, s2, 4608")
        a(f"v_lshlrev_b32 v{BB+10}, 7, v0")
        a(f"v_min_u32 v{BB+10}, 4480, v{BB+10}")
        a("s_waitcnt lgkmcnt(0)")
        a(f"s_cmp_lg_u32 s{sWV}, 0")
        a("s_cbranch_scc1 K1_ln")
        a(f"buffer_load_dword v{BB+11}, v{BB+10}, s[60:63], s{sT0} offen")
    a("s_branch K1_ln")
    a.label("K1_fin")
    a("s_setprio 0")
    stamp(a, 7)
    a(f"s_and_b32 s{sT0}, s2, {NREP - 1}")
    a(f"s_waitcnt vmcnt(6) lgkmcnt(0)")
    a("s_barrier")
    a("v_and_b32 v1, 63, v0")
    a("v_lshlrev_b32 v1, 2, v1")
    a(f"v_add_u32 v1, s{sD0}, v1")
    for k in range(24): a(f"ds_write_b32 v1, v{SQ+k} offset:{k*256}")
    a("v_lshlrev_b32 v1, 2, v0")
    a("s_waitcnt lgkmcnt(0)")
    a("s_barrier")
    for k in range(3):
        for w in range(8): a(f"ds_read_b32 v{XN+8*k+w}, v1 offset:{w*6144 + k*2048}")
    srd(a, 60, sWSlo, sWShi, NREP * 6144, SSQ)
    a(f"s_mul_i32 s{sT0}, s{sT0}, 6144")
    a(f"s_add_u32 s{sT1}, s{sT0}, 4096")
    a("s_waitcnt lgkmcnt(0)")
    for st in (4, 2, 1):
        for k in range(3):
            for w in range(st): a(f"v_add_f32 v{XN+8*k+w}, v{XN+8*k+w}, v{XN+8*k+w+st}")
    a(f"buffer_atomic_add_f32 v{XN}, v1, s[60:63], s{sT0} offen")
    a(f"buffer_atomic_add_f32 v{XN+8}, v1, s[60:63], s{sT0} offen offset:2048")
    a(f"buffer_atomic_add_f32 v{XN+16}, v1, s[60:63], s{sT1} offen")
    if OPT["stamp"]: a("s_waitcnt vmcnt(0)")
    stamp(a, 8)
    stamp_dump(a, 9, sWV, "K1", 0)
    a.label("K1_end")
    a("s_endpgm")
    return a, desc("gemm1_kernel", 256, 100), f"; @launch kernel=gemm1_kernel grid=(256,1,1) block=(512,1,1) lds={L_DW + 4096}"

T1B = 46 * CHUNK_H; T2B = 94 * CHUNK_H
def k3r():
    REG = 3 * 192 * 768
    a = Asm()
    ACC = 16; HB = 160; WB = 184; SEL = 208; BIAS = 216; XT = 240
    vD0, vWR, vHR0, vHR1, vXR, vOUT, vWB0, vHB0, vHB1 = 1, 4, 5, 6, 7, 8, 9, 10, 11
    L_H = 73728; L_X = 147456
    sD, sO = 8, 12
    (sWV, sTH, sCQ, sSrc, sDst, sSlot, sDLo, sDEnd, sT0, sT1, sWS, sHS, sPASS, sOB, sEV, sT2, sJd, sLag, sSrc3, sSrcL, sSrcL3, sLim, sHalf, sDP, sHlo, sHhi) = range(30, 56)
    STG = OPT["stg"]; NB = (5 * STG + 1 + 3) // 4 * 4
    kernel_start(a, "gemm2_kernel")
    a("s_cmp_ge_u32 s2, 256")
    a("s_cbranch_scc1 K3_end")
    stamp(a, 0)
    a("s_load_dwordx2 s[4:5], s[0:1], 0")
    a("s_load_dwordx2 s[6:7], s[0:1], 48")
    a("s_load_dwordx2 s[24:25], s[0:1], 64")
    code_prefetch(a, "gemm2_kernel", "K3_end", 100, 60)
    a("v_lshrrev_b32 v16, 6, v0")
    a("v_and_b32 v17, 63, v0")
    a(f"v_readfirstlane_b32 s{sWV}, v16")
    a(f"v_lshlrev_b32 v{vD0}, 4, v17")
    a(f"v_add_u32 v{vD0+1}, 1024, v{vD0}")
    a(f"v_add_u32 v{vD0+2}, 2048, v{vD0}")
    a("v_and_b32 v18, 15, v17")
    a("v_lshrrev_b32 v19, 4, v17")
    a("v_mul_u32_u24 v20, 24, v18")
    a(f"s_lshr_b32 s{sTH}, s{sWV}, 2")
    a(f"s_and_b32 s{sCQ}, s{sWV}, 3")
    a(f"s_mov_b32 s{sD+3}, 0x00020000")
    a(f"s_mov_b32 s{sO+3}, 0x00020000")
    a(f"s_mov_b32 s{sO+2}, 0")
    a(f"s_mul_i32 s{sT0}, s2, {REG}")
    a(f"s_and_b32 s{sHalf}, s{sWV}, 1")
    a(f"s_mul_i32 s{sHalf}, s{sHalf}, 6144")
    a(f"s_mul_i32 s{sT1}, s2, {HSTRIDE}")
    a(f"s_mov_b32 s{sJd}, 0")
    a(f"s_mov_b32 s{sLag}, 0")
    a(f"s_mov_b32 s{sDP}, 0")
    a(f"s_mov_b32 s{sSrc}, s{sHalf}")
    a("s_waitcnt lgkmcnt(0)")
    a(f"s_add_u32 s{sO}, s6, s{sT0}")
    a(f"s_addc_u32 s{sO+1}, s7, 0")
    a(f"s_add_u32 s{sHlo}, s24, s{sT1}")
    a(f"s_addc_u32 s{sHhi}, s25, 0")
    srd(a, 16, 24, 25, 1536 * NBP, B2)
    a(f"s_mul_i32 s{sT1}, s{sCQ}, 384")
    for p in range(NBP):
        a(f"buffer_load_dwordx3 {q(24 + 8*p, 3)}, v20, s[16:19], s{sT1} offen")
        a(f"buffer_load_dwordx3 {q(28 + 8*p, 3)}, v20, s[16:19], s{sT1} offen offset:12")
        if p < NBP - 1: a(f"s_add_u32 s{sT1}, s{sT1}, 1536")

    nt = " nt" if OPT["h_nt"] else ""
    def pieces_w():
        P = []
        for k in range(6):
            pre = [f"s_mov_b32 m0, s{sDst}", f"s_add_u32 s{sT2}, s{sSrc}, 3072"] if k == 0 else ["s_add_u32 m0, m0, 1024", "s_nop 0"]
            P.append(pre + [f"buffer_load_dwordx4 v{vD0 + k % 3}, s[{sD}:{sD+3}], s{sSrc if k < 3 else sT2} offen lds"])
        P[5] += [f"s_add_u32 s{sDst}, s{sDst}, 24576", f"s_cmp_eq_u32 s{sDst}, s{sDEnd}", f"s_cselect_b32 s{sDst}, s{sDLo}, s{sDst}",
                 f"s_add_u32 s{sSrc}, s{sSrc}, 24576", f"s_cmp_ge_u32 s{sSrc}, 1179648", f"s_cselect_b32 s{sSrc}, s{sDLo}, s{sSrc}"]
        return P
    uid = [0]
    def pieces_h():
        P = []
        for k in range(6):
            if k == 0:
                P.append([f"s_mov_b32 m0, s{sDst}", f"s_add_u32 s{sSrc3}, s{sSrc}, 3072",
                          f"buffer_load_dwordx4 v{vD0}, s[{sD}:{sD+3}], s{sSrc} offen{nt} lds",
                          f"s_sub_u32 s{sSrcL}, s{sSrc}, s{sLag}", f"s_sub_u32 s{sSrcL3}, s{sSrc3}, s{sLag}"])
            else:
                P.append(["s_add_u32 m0, m0, 1024", f"s_cmp_lt_u32 s{sJd}, {STG * k}",
                          f"s_cselect_b32 s{sT2}, s{sSrcL if k < 3 else sSrcL3}, s{sSrc if k < 3 else sSrc3}",
                          f"buffer_load_dwordx4 v{vD0 + k % 3}, s[{sD}:{sD+3}], s{sT2} offen{nt} lds"])
        uid[0] += 1; u = uid[0]
        P[5] += [f"s_add_u32 s{sDst}, s{sDst}, s{sSlot}", f"s_cmp_eq_u32 s{sDst}, s{sDEnd}", f"s_cselect_b32 s{sDst}, s{sDLo}, s{sDst}",
                 f"s_add_u32 s{sSrc}, s{sSrc}, 12288", f"s_cmp_ge_u32 s{sSrc}, s{sLim}", f"s_cselect_b32 s{sD+2}, 0, s{sD+2}",
                 f"s_add_u32 s{sJd}, s{sJd}, 1", f"s_cmp_lt_u32 s{sJd}, 46", f"s_cbranch_scc1 K3_av{u}",
                 f"s_add_u32 s{sT2}, s{sJd}, s{sDP}", f"s_cmp_lg_u32 s{sT2}, 46", f"s_cbranch_scc1 K3_aw{u}",
                 f"s_mov_b32 s{sD}, s{sO}", f"s_mov_b32 s{sD+1}, s{sO+1}", f"s_mov_b32 s{sD+2}, {REG}", f"s_add_u32 s{sSrc}, s{sHalf}, {2 * 192 * 768}",
                 f"K3_aw{u}:", f"s_cmp_lg_u32 s{sJd}, 48", f"s_cbranch_scc1 K3_av{u}",
                 f"s_mov_b32 s{sJd}, 0", f"s_mov_b32 s{sLag}, {48 * CHUNK_H}", f"s_cmp_lg_u32 s{sDP}, 0", f"s_cbranch_scc1 K3_av{u}",
                 f"s_mov_b32 s{sDP}, 100", f"s_mov_b32 s{sLag}, {46 * CHUNK_H}", f"s_mov_b32 s{sD}, s{sHlo}", f"s_mov_b32 s{sD+1}, s{sHhi}",
                 f"s_mov_b32 s{sD+2}, {HSTRIDE}", f"s_add_u32 s{sSrc}, s{sHalf}, {T1B}",
                 f"K3_av{u}:"]
        return P

    a(f"s_cmp_lt_u32 s{sWV}, 4")
    a("s_cbranch_scc1 K3_rw")
    a(f"s_cmp_ge_u32 s{sWV}, 6")
    a("s_cbranch_scc1 K3_rx")
    a(f"s_mov_b32 s{sD}, s{sHlo}")
    a(f"s_mov_b32 s{sD+1}, s{sHhi}")
    a(f"s_mov_b32 s{sD+2}, {HSTRIDE}")
    a(f"s_add_u32 s{sDLo}, s{sHalf}, {L_H}")
    a(f"s_mov_b32 s{sDst}, s{sDLo}")
    a(f"s_add_u32 s{sDEnd}, s{sDLo}, 73728")
    a(f"s_mov_b32 s{sSlot}, {CHUNK_H}")
    a(f"s_mov_b32 s{sLim}, -1")
    a(f"s_mov_b32 s{sT1}, 5")
    a.label("K3_hpro")
    for p in pieces_h(): a.ext(p)
    a(f"s_sub_u32 s{sT1}, s{sT1}, 1")
    a(f"s_cmp_lg_u32 s{sT1}, 0")
    a("s_cbranch_scc1 K3_hpro")
    a("s_mov_b64 s[56:57], 0")
    a("s_branch K3_rdone")
    a.label("K3_rx")
    a(f"s_add_u32 s{sD}, s4, s{sT0}")
    a(f"s_addc_u32 s{sD+1}, s5, 0")
    a(f"s_mov_b32 s{sD+2}, {REG}")
    for m in range(3):
        v = vD0 + m
        a(f"v_mul_u32_u24 v20, 43691, v{v}")
        a("v_lshrrev_b32 v20, 25, v20")
        a("v_mul_u32_u24 v21, 864, v20")
        a(f"v_sub_u32 v21, v{v}, v21")
        a("v_add_u32 v22, 768, v21")
        a("v_cmp_gt_i32 vcc, 0, v21")
        a("v_mul_u32_u24 v20, 768, v20")
        a("s_nop 0")
        a("v_cndmask_b32 v21, v21, v22, vcc")
        a(f"v_add_u32 v{v}, v20, v21")
    a(f"s_add_u32 s{sDLo}, s{sHalf}, {L_X}")
    a(f"s_mov_b32 s{sDEnd}, 0")
    a(f"s_mov_b32 s{sSlot}, 0")
    a(f"s_mov_b32 s{sDst}, s{sDLo}")
    a(f"s_mov_b32 s{sLim}, {REG}")
    a("s_mov_b64 s[56:57], -1")
    a("s_branch K3_rdone")
    a.label("K3_rw")
    a(f"s_add_u32 s{sD}, s24, {W2F}")
    a(f"s_addc_u32 s{sD+1}, s25, 0")
    a(f"s_mov_b32 s{sD+2}, 1179648")
    a(f"s_mul_i32 s{sDLo}, s{sCQ}, 6144")
    a(f"s_add_u32 s{sDEnd}, s{sDLo}, 73728")
    a(f"s_mov_b32 s{sDst}, s{sDLo}")
    a(f"s_mov_b32 s{sSrc}, s{sDLo}")
    for _ in range(2):
        for p in pieces_w(): a.ext(p)
    a("s_mov_b64 s[56:57], 0")
    a.label("K3_rdone")
    a(f"v_mul_u32_u24 v{vOUT}, 3072, v19")
    a("v_mul_u32_u24 v21, 12, v18")
    a(f"s_mul_i32 s{sT0}, s{sTH}, {96 * 768}")
    a(f"s_mul_i32 s{sT1}, s{sCQ}, 192")
    a(f"s_add_u32 s{sT0}, s{sT0}, s{sT1}")
    a(f"v_add3_u32 v{vOUT}, v{vOUT}, v21, s{sT0}")
    a(f"s_mul_i32 s{sT0}, s{sCQ}, 6144")
    a(f"v_lshl_add_u32 v{vWB0}, v17, 4, s{sT0}")
    a("v_and_b32 v21, 3, v18")
    a("v_lshrrev_b32 v22, 2, v18")
    a("v_and_b32 v23, 2, v19")
    a("v_xor_b32 v23, v23, v21")
    a("v_lshl_add_u32 v22, v23, 2, v22")
    a("v_lshl_add_u32 v22, v21, 4, v22")
    a("v_lshlrev_b32 v22, 4, v22")
    a("v_and_b32 v23, 1, v19")
    a("v_lshl_add_u32 v22, v23, 3, v22")
    a(f"s_mul_i32 s{sT0}, s{sTH}, 6144")
    a(f"s_add_u32 s{sT0}, s{sT0}, {L_H}")
    a(f"v_add_u32 v{vHB0}, s{sT0}, v22")
    a(f"v_xor_b32 v{vHB1}, 64, v{vHB0}")
    a(f"s_lshl_b32 s{sT0}, s{sCQ}, 2")
    a("v_lshl_add_u32 v22, v21, 1, v19")
    a(f"v_add_u32 v22, s{sT0}, v22")
    a("v_and_b32 v22, 15, v22")
    a("v_mul_u32_u24 v22, 48, v22")
    a("v_mul_u32_u24 v23, 768, v18")
    a(f"v_add_u32 v22, {L_X}, v22")
    a(f"v_add_u32 v{vXR}, v22, v23")
    a("v_lshrrev_b32 v22, 2, v18")
    a("v_cmp_eq_u32 vcc, v22, v19")
    a("v_mov_b32 v23, 0x3f80")
    a("s_nop 0")
    a("v_cndmask_b32 v23, 0, v23, vcc")
    for e in range(4):
        a(f"v_cmp_eq_u32 vcc, {e}, v21")
        a("s_nop 1")
        a(f"v_cndmask_b32 v{SEL+e}, 0, v23, vcc")
        a(f"v_lshlrev_b32 v{SEL+4+e}, 16, v{SEL+e}")
    a("s_mov_b64 vcc, s[56:57]")
    a(f"s_mov_b32 s{sWS}, 0")
    a(f"s_mov_b32 s{sHS}, 0")
    a(f"s_mov_b32 s{sPASS}, 0")
    a(f"s_mov_b32 s{sOB}, 0")
    a("s_waitcnt vmcnt(24)")
    a(f"s_cmp_eq_u32 s{sSlot}, {CHUNK_H}" if False else f"s_sub_u32 s{sT0}, s{sWV}, 4")
    a(f"s_cmp_lt_u32 s{sT0}, 2")
    a("s_cbranch_scc1 K3_pw")
    a("s_waitcnt vmcnt(6)")
    a("s_cbranch_vccz K3_pw")
    a("s_waitcnt vmcnt(0)")
    a.label("K3_pw")
    for p in range(1, NBP):
        for n in range(6):
            src = 24 + n if n < 3 else 25 + n
            a(f"v_add_f32 v{src}, v{src}, v{src + 8*p}")
    for n in range(6):
        src = 24 + n if n < 3 else 25 + n
        for r in range(4): a(f"v_mov_b32 v{BIAS+4*n+r}, v{src}")
    stamp(a, 1)

    def accr(n, t): return ACC + (t * 6 + n) * 4
    ofl = ["", " nt", " sc1", " sc0 sc1", " sc0"][OPT["out_nt"]]
    def mini(t):
        L = [f"s_add_u32 s{sT1}, s{sOB}, {t * 12288}"]
        for r in range(4):
            tq = XT + 4 * r if STG % 2 == 0 else (12, 252)[r % 2]
            for j in range(3): L.append(f"v_cvt_pk_bf16_f32 v{tq+j}, v{accr(2*j, t)+r}, v{accr(2*j+1, t)+r}")
            if not OPT["k3nost"]: L.append(f"buffer_store_dwordx3 {q(tq, 3)}, v{vOUT}, s[{sO}:{sO+3}], s{sT1} offen offset:{r*768}" + ofl)
        return L
    def step(grp, u, bnd):
        u4 = u % 4; tag = f"{grp}{'b' if bnd else 'l'}{u}"
        L = [f"v_add_u32 v{vWR}, s{sWS}, v{vWB0}", f"v_add_u32 v{vHR0}, s{sHS}, v{vHB0}", f"v_add_u32 v{vHR1}, s{sHS}, v{vHB1}"]
        R = []
        for t in range(6):
            R.append(f"ds_read_b128 {q(WB + 4*t)}, v{vWR} offset:{t*1024}")
            R.append(f"ds_read_b64_tr_b16 {q(HB + 4*t, 2)}, v{vHR0} offset:{t*1024}")
            R.append(f"ds_read_b64_tr_b16 {q(HB + 4*t + 2, 2)}, v{vHR1} offset:{t*1024}")
        P = pieces_w() if grp == 0 else pieces_h()
        def gd(X, z): return X if grp == 0 or u4 == 0 else [f"s_cbranch_vccnz K3_s{tag}{z}"] + X + [f"K3_s{tag}{z}:"]
        L += gd(P[0], "a") + R[:6] + gd(P[1], "b") + R[6:12] + gd(P[2], "c") + R[12:]
        if u4 == 3:
            L += [f"s_sub_u32 s{sT0}, s{sEV}, {6*grp}", f"s_cmp_lt_u32 s{sT0}, 6", f"s_cbranch_scc0 K3_xr{tag}"]
            for p in range(3):
                L.append(f"ds_read2_b32 {q(XT + 4*p, 2)}, v{vXR} offset0:{p} offset1:{p+3}")
                L.append(f"ds_read2_b32 {q(XT + 4*p + 2, 2)}, v{vXR} offset0:{p+6} offset1:{p+9}")
            L.append(f"K3_xr{tag}:")
        L += gd(P[3] + P[4] + P[5], "d")
        L += [f"s_add_u32 s{sWS}, s{sWS}, 24576", f"s_cmp_eq_u32 s{sWS}, 73728", f"s_cselect_b32 s{sWS}, 0, s{sWS}",
              f"s_add_u32 s{sHS}, s{sHS}, 12288", f"s_cmp_eq_u32 s{sHS}, 73728", f"s_cselect_b32 s{sHS}, 0, s{sHS}"]
        tb = u // STG if bnd and u % STG == 0 and u // STG < 6 else None
        def nst(back):
            if not bnd or OPT["k3nost"]: return 0
            return 4 * sum(1 for w in range(max(0, u - back), u + 1 - grp) if w % STG == 0 and w // STG < 6)
        if tb == 5:
            a(f"s_cmp_eq_u32 s{sPASS}, 3")
            a("s_cbranch_scc1 K3_fin")
        a.ext(L)
        if grp == 0:
            a("s_waitcnt lgkmcnt(0)")
            a(f"s_setprio {OPT['k3pa']}")
        else:
            if u4 == 2:
                a(f"s_cbranch_vccz K3_nx{tag}")
                a(f"s_waitcnt vmcnt({nst(2)})")
                a.label(f"K3_nx{tag}")
            a(f"s_waitcnt vmcnt({24 + nst(4)}) lgkmcnt(0)")
            a("s_barrier")
            a(f"s_setprio {OPT['k3pb']}")
        if u4 == 3:
            a(f"s_cmp_lt_u32 s{sT0}, 6")
            a(f"s_cbranch_scc0 K3_xd{tag}")
            ts = range(6) if not bnd else [t for t in range(6) if t + 6 * grp == u // 4]
            for t in ts:
                if t != ts[-1]:
                    a(f"s_cmp_lg_u32 s{sT0}, {t}")
                    a(f"s_cbranch_scc1 K3_x{tag}_{t+1}")
                for n in range(6):
                    a(f"v_mfma_f32_16x16x32_bf16 {q(accr(n, t))}, {q(XT + 4*(n >> 1))}, {q(SEL + 4*(n & 1))}, {q(accr(n, t))}")
                if t != ts[-1]:
                    a(f"s_branch K3_xd{tag}")
                    a.label(f"K3_x{tag}_{t+1}")
            a.label(f"K3_xd{tag}")
            a(f"s_add_u32 s{sEV}, s{sEV}, 1")
        def mf(t): return [f"v_mfma_f32_16x16x32_bf16 {q(accr(n, t))}, {q(HB + 4*t)}, {q(WB + 4*n)}, {q(BIAS + 4*n) if t == tb else q(accr(n, t))}" for n in range(6)]
        bar = [f"s_waitcnt vmcnt({6 + nst(1)})", "s_barrier"] if grp == 0 else []
        ns = u // STG + 1 if bnd else 6
        def full():
            order = [t for t in range(6) if t != tb] + ([tb] if tb is not None else [])
            Ms = [[x] for t in order for x in mf(t)]
            if tb is not None:
                E = mini(tb)
                pos = OPT["mp0"]
                for x in E:
                    Ms[pos].append(x)
                    if not x.startswith("s_"): pos += 1
                    if x.startswith("buffer"): pos += OPT["mpd"]
                assert pos <= 29
            e = OPT["k3eb"] if grp == 0 else 0
            Ms[35 - e] += (["s_setprio 3"] if e else []) + bar
            a.ext([x for m in Ms for x in m])
        if ns >= 6:
            full()
        else:
            a(f"s_sub_u32 s{sT2}, s{sPASS}, 1")
            a(f"s_cmp_lt_u32 s{sT2}, 2")
            a(f"s_cbranch_scc0 K3_m0{tag}")
            full()
            a(f"s_branch K3_m3{tag}")
            a.label(f"K3_m0{tag}")
            if tb is not None: a.ext(mini(tb))
            a(f"s_cmp_eq_u32 s{sPASS}, 3")
            a(f"s_cbranch_scc1 K3_m1{tag}")
            for t in range(ns): a.ext(mf(t))
            a(f"s_branch K3_m2{tag}")
            a.label(f"K3_m1{tag}")
            for t in range(ns, 6): a.ext(mf(t))
            a.label(f"K3_m2{tag}")
            a.ext(bar)
            a.label(f"K3_m3{tag}")
        a("s_setprio 0")

    a("s_barrier")
    a(f"s_cmp_lg_u32 s{sTH}, 0")
    a("s_cbranch_scc1 K3_1_tile")
    for grp in range(2):
        a.label(f"K3_{grp}_tile")
        a(f"s_cmp_eq_u32 s{sPASS}, 3")
        a(f"s_cselect_b32 s{sEV}, 100, 0")
        for u in range(NB): step(grp, u, True)
        if OPT["stamp"]: stamp2(a, 2, 4, sPASS)
        a(".p2align 6")
        a.label(f"K3_{grp}_loop")
        for u in range(4): step(grp, u, False)
        a(f"s_cmp_lg_u32 s{sEV}, 12")
        a(f"s_cbranch_scc1 K3_{grp}_loop")
        if OPT["stamp"]: stamp2(a, 3, 5, sPASS)
        a(f"s_mul_i32 s{sOB}, s{sPASS}, {192 * 768}")
        a(f"s_add_u32 s{sPASS}, s{sPASS}, 1")
        a(f"s_mov_b32 s{sO+2}, {REG}")
        a(f"s_branch K3_{grp}_tile")
    a.label("K3_fin")
    stamp(a, 6)
    a("s_nop 7")
    a.ext(mini(5))
    if OPT["stamp"]: a("s_waitcnt vmcnt(0)")
    stamp(a, 7)
    stamp_dump(a, 8, sWV, "K3", 1)
    a.label("K3_end")
    a("s_endpgm")
    return a, desc("gemm2_kernel", 256, 100), f"; @launch kernel=gemm2_kernel grid=(256,1,1) block=(512,1,1) lds={L_X + 12288}"

def k3():
    a = Asm()
    ACC = 16; HB = 160; WB = 184; SEL = 208; BIAS = 216; XT = 240
    KC = OPT['k3c']
    if KC: WB = 208; SEL = 232
    BV = [12, 13, 14, 15, 252, 253]
    vD0, vWR, vHR0, vHR1, vXR, vOUT, vWB0, vHB0, vHB1 = 1, 4, 5, 6, 7, 8, 9, 10, 11
    L_H = 73728; L_X = 147456
    sD, sO = 8, 12
    (sWV, sTH, sCQ, sSrc, sDst, sSlot, sDLo, sDEnd, sLeft, sT0, sT1, sWS, sHS, sJ, sOB, sEV, sNR, sT2, sFIRST) = range(30, 49)
    REG = 3 * 192 * 768
    kernel_start(a, "gemm2_kernel")
    a("s_cmp_ge_u32 s2, 256")
    a("s_cbranch_scc1 K3_end")
    stamp(a, 0)
    a("s_load_dwordx2 s[4:5], s[0:1], 0")
    a("s_load_dwordx2 s[6:7], s[0:1], 48")
    a("s_load_dwordx2 s[24:25], s[0:1], 64")
    code_prefetch(a, "gemm2_kernel", "K3_end", 100, 60)
    a("v_lshrrev_b32 v16, 6, v0")
    a("v_and_b32 v17, 63, v0")
    a(f"v_readfirstlane_b32 s{sWV}, v16")
    a(f"v_lshlrev_b32 v{vD0}, 4, v17")
    a(f"v_add_u32 v{vD0+1}, 1024, v{vD0}")
    a(f"v_add_u32 v{vD0+2}, 2048, v{vD0}")
    a("v_and_b32 v18, 15, v17")
    a("v_lshrrev_b32 v19, 4, v17")
    a(f"s_lshr_b32 s{sT0}, s2, 4")
    a(f"s_lshl_b32 s{sT0}, s{sT0}, 4")
    a(f"s_and_b32 s{sT1}, s2, 7")
    a(f"s_lshl_b32 s{sT1}, s{sT1}, 1")
    a(f"s_add_u32 s{sT0}, s{sT0}, s{sT1}")
    a(f"s_bfe_u32 s{sT1}, s2, 0x10003")
    a(f"s_add_u32 s3, s{sT0}, s{sT1}")
    a(f"s_lshr_b32 s{sTH}, s{sWV}, 2")
    a(f"s_and_b32 s{sCQ}, s{sWV}, 3")
    a(f"s_mov_b32 s{sD+3}, 0x00020000")
    a(f"s_mov_b32 s{sO+3}, 0x00020000")
    a(f"s_mov_b32 s{sO+2}, {REG}")
    a(f"s_mul_i32 s{sT0}, s3, {REG}")
    a(f"s_and_b32 s{sT1}, s{sWV}, 1")
    a(f"s_mul_i32 s{sT1}, s{sT1}, 6144")
    a("s_waitcnt lgkmcnt(0)")
    a(f"s_add_u32 s{sO}, s6, s{sT0}")
    a(f"s_addc_u32 s{sO+1}, s7, 0")

    srd(a, 16, 24, 25, 1536 * NBP, B2)
    a("v_mul_u32_u24 v20, 24, v18")
    a(f"s_mul_i32 s{sT2}, s{sCQ}, 384")
    for p in range(NBP):
        a(f"buffer_load_dwordx3 {q(24 + 8*p, 3)}, v20, s[16:19], s{sT2} offen")
        a(f"buffer_load_dwordx3 {q(28 + 8*p, 3)}, v20, s[16:19], s{sT2} offen offset:12")
        if p < NBP - 1: a(f"s_add_u32 s{sT2}, s{sT2}, 1536")

    def pieces(srd_, sfx=""):
        P = []
        for k in range(6):
            if k == 0: pre = [f"s_mov_b32 m0, s{sDst}", f"s_add_u32 s{sT2}, s{sSrc}, 3072"]
            else: pre = ["s_add_u32 m0, m0, 1024", "s_nop 0"]
            so = sSrc if k < 3 else sT2
            P.append(pre + [f"buffer_load_dwordx4 v{vD0 + k % 3}, s[{srd_}:{srd_+3}], s{so} offen{sfx} lds"])
        return P
    def advance_w():
        return [f"s_add_u32 s{sDst}, s{sDst}, 24576", f"s_cmp_eq_u32 s{sDst}, s{sDEnd}", f"s_cselect_b32 s{sDst}, s{sDLo}, s{sDst}",
                f"s_sub_u32 s{sSrc}, s{sSrc}, 24576", f"s_cselect_b32 s{sT2}, 1179648, 0", f"s_add_u32 s{sSrc}, s{sSrc}, s{sT2}"]
    def advance_h():
        return [f"s_add_u32 s{sDst}, s{sDst}, s{sSlot}", f"s_cmp_eq_u32 s{sDst}, s{sDEnd}", f"s_cselect_b32 s{sDst}, s{sDLo}, s{sDst}",
                f"s_sub_u32 s{sSrc}, s{sSrc}, 12288", f"s_cselect_b32 s{sD+2}, 0, s{sD+2}", f"s_cselect_b32 s{sSrc}, 0, s{sSrc}"]
    nt = " nt" if OPT["h_nt"] else ""
    wnt = " nt" if OPT["w_nt"] else ""

    a(f"s_cmp_lt_u32 s{sWV}, 4")
    a("s_cbranch_scc1 K3_rw")
    a(f"s_cmp_ge_u32 s{sWV}, 6")
    a("s_cbranch_scc1 K3_rx")
    a(f"s_add_u32 s{sDLo}, s{sT1}, {L_H}")
    a(f"s_mov_b32 s{sDst}, s{sDLo}")
    a(f"s_add_u32 s{sSrc}, s{sT1}, {CHUNK_H}")
    for p in pieces(sO, nt): a.ext(p)
    a(f"s_add_u32 s{sDst}, s{sDst}, {CHUNK_H}")
    a(f"s_mov_b32 s{sSrc}, s{sT1}")
    for p in pieces(sO, nt): a.ext(p)
    a(f"s_mul_i32 s{sT0}, s3, {HSTRIDE}")
    a(f"s_add_u32 s{sD}, s24, s{sT0}")
    a(f"s_addc_u32 s{sD+1}, s25, 0")
    a(f"s_mov_b32 s{sD+2}, {0 if OPT['k3noh'] else HSTRIDE}")
    a(f"s_add_u32 s{sDEnd}, s{sDLo}, 73728")
    a(f"s_mov_b32 s{sSlot}, {CHUNK_H}")
    a(f"s_add_u32 s{sDst}, s{sDst}, {CHUNK_H}")
    a(f"s_add_u32 s{sSrc}, s{sT1}, {HSTRIDE - CHUNK_H}")
    for _ in range(3 if OPT["k3bl"] else 4):
        for p in pieces(sD, nt): a.ext(p)
        a.ext(advance_h())
    a("s_mov_b64 vcc, 0")
    a("s_branch K3_rdone")
    a.label("K3_rx")
    a(f"s_add_u32 s{sD}, s4, s{sT0}")
    a(f"s_addc_u32 s{sD+1}, s5, 0")
    a(f"s_mov_b32 s{sD+2}, {0 if OPT['k3nox'] else REG}")
    for m in range(3):
        v = vD0 + m
        a(f"v_mul_u32_u24 v20, 43691, v{v}")
        a("v_lshrrev_b32 v20, 25, v20")
        a("v_mul_u32_u24 v21, 864, v20")
        a(f"v_sub_u32 v21, v{v}, v21")
        a("v_add_u32 v22, 768, v21")
        a("v_cmp_gt_i32 vcc, 0, v21")
        a("v_mul_u32_u24 v20, 768, v20")
        a("s_nop 0")
        a("v_cndmask_b32 v21, v21, v22, vcc")
        a(f"v_add_u32 v{v}, v20, v21")
    a(f"s_add_u32 s{sDLo}, s{sT1}, {L_X}")
    a(f"s_mov_b32 s{sDEnd}, 0")
    a(f"s_mov_b32 s{sSlot}, 0")
    a(f"s_mov_b32 s{sDst}, s{sDLo}")
    a(f"s_add_u32 s{sSrc}, s{sT1}, {35 * 12288}")
    if OPT["wwarm"]:
        srd(a, 60, 24, 25, 1179648, W2F)
        a(f"s_lshr_b32 s{sT2}, s2, 3")
        a(f"s_mul_i32 s{sT2}, s{sT2}, 36864")
        a(f"s_mul_i32 s{sT0}, s{sT1}, 3")
        a(f"s_add_u32 s{sT2}, s{sT2}, s{sT0}")
        a("v_lshlrev_b32 v20, 7, v17")
        for i in range(3):
            a(f"buffer_load_dword v{100 + i}, v20, s[60:63], s{sT2} offen")
            a(f"s_add_u32 s{sT2}, s{sT2}, 6144" if False else f"s_add_u32 s{sT2}, s{sT2}, 8192")
    if not OPT["k3bl"]:
        for p in pieces(sD, nt): a.ext(p)
        a.ext(advance_h())
    a("s_mov_b64 vcc, -1")
    a("s_branch K3_rdone")
    a.label("K3_rw")
    a(f"s_add_u32 s{sD}, s24, {W2F}")
    a(f"s_addc_u32 s{sD+1}, s25, 0")
    a(f"s_mov_b32 s{sD+2}, {0 if OPT['k3now'] else 1179648}")
    a(f"s_mul_i32 s{sDLo}, s{sCQ}, 6144")
    a(f"s_add_u32 s{sDEnd}, s{sDLo}, 73728")
    a(f"s_mov_b32 s{sSlot}, 0")
    a(f"s_mov_b32 s{sDst}, s{sDLo}")
    a(f"s_add_u32 s{sSrc}, s{sDLo}, {47 * 24576}")
    for _ in range(5 if OPT["k3skipw"] else 2):
        for p in pieces(sD, wnt): a.ext(p)
        a.ext(advance_w())
    a("s_mov_b64 vcc, 0")
    a.label("K3_rdone")
    a("s_mov_b64 s[50:51], vcc")
    a(f"v_mul_u32_u24 v{vOUT}, 3072, v19")
    a("v_mul_u32_u24 v21, 12, v18")
    a(f"s_mul_i32 s{sT0}, s{sTH}, {96 * 768}")
    a(f"s_mul_i32 s{sT1}, s{sCQ}, 192")
    a(f"s_add_u32 s{sT0}, s{sT0}, s{sT1}")
    a(f"v_add3_u32 v{vOUT}, v{vOUT}, v21, s{sT0}")
    if OPT["outlin"]:
        a(f"v_mul_u32_u24 v{vOUT}, 12, v17")
        a(f"s_mul_i32 s{sT0}, s{sWV}, 18432")
        a(f"v_add_u32 v{vOUT}, s{sT0}, v{vOUT}")
    a(f"s_mul_i32 s{sT0}, s{sCQ}, 6144")
    a(f"v_lshl_add_u32 v{vWB0}, v17, 4, s{sT0}")
    a("v_and_b32 v21, 3, v18")
    a("v_lshrrev_b32 v22, 2, v18")
    a("v_and_b32 v23, 2, v19")
    a("v_xor_b32 v23, v23, v21")
    a("v_lshl_add_u32 v22, v23, 2, v22")
    a("v_lshl_add_u32 v22, v21, 4, v22")
    a("v_lshlrev_b32 v22, 4, v22")
    a("v_and_b32 v23, 1, v19")
    a("v_lshl_add_u32 v22, v23, 3, v22")
    a(f"s_mul_i32 s{sT0}, s{sTH}, 6144")
    a(f"s_add_u32 s{sT0}, s{sT0}, {L_H}")
    a(f"v_add_u32 v{vHB0}, s{sT0}, v22")
    a(f"v_xor_b32 v{vHB1}, 64, v{vHB0}")
    a(f"s_lshl_b32 s{sT0}, s{sCQ}, 2")
    a("v_lshl_add_u32 v22, v21, 1, v19")
    a(f"v_add_u32 v22, s{sT0}, v22")
    a("v_and_b32 v22, 15, v22")
    a("v_mul_u32_u24 v22, 48, v22")
    a("v_mul_u32_u24 v23, 768, v18")
    a(f"v_add_u32 v22, {L_X}, v22")
    a(f"v_add_u32 v{vXR}, v22, v23")
    a("v_lshrrev_b32 v22, 2, v18")
    a("v_cmp_eq_u32 vcc, v22, v19")
    a("v_mov_b32 v23, 0x3f80")
    a("s_nop 0")
    a("v_cndmask_b32 v23, 0, v23, vcc")
    for e in range(4):
        a(f"v_cmp_eq_u32 vcc, {e}, v21")
        a("s_nop 1")
        a(f"v_cndmask_b32 v{SEL+e}, 0, v23, vcc")
        a(f"v_lshlrev_b32 v{SEL+4+e}, 16, v{SEL+e}")
    a("s_mov_b64 vcc, s[50:51]")
    a(f"s_mov_b32 s{sWS}, 0")
    a(f"s_mov_b32 s{sHS}, 0")
    a(f"s_mov_b32 s{sJ}, 0")
    a(f"s_mov_b32 s{sOB}, {2 * 192 * 768}")
    a(f"s_mov_b32 s{sEV}, 11")
    a(f"s_waitcnt vmcnt({18 if KC else 24})")
    a(f"s_sub_u32 s{sT0}, s{sWV}, 4")
    a(f"s_cmp_lt_u32 s{sT0}, 2")
    a("s_cbranch_scc1 K3_pw")
    a("s_waitcnt vmcnt(6)")
    a("s_cbranch_vccz K3_pw")
    a("s_waitcnt vmcnt(0)")
    a.label("K3_pw")
    for p in range(1, NBP):
        for n in range(6):
            src = 24 + n if n < 3 else 25 + n
            a(f"v_add_f32 v{src}, v{src}, v{src + 8*p}")
    for n in range(6):
        src = 24 + n if n < 3 else 25 + n
        if KC: a(f"v_mov_b32 v{BV[n]}, v{src}")
        else:
            for r in range(4): a(f"v_mov_b32 v{BIAS+4*n+r}, v{src}")

    stamp(a, 1)

    def accr(n, t): return ACC + (t * 6 + n) * 4
    pieces0 = pieces
    def pieces(srd_, sfx="", _p=pieces0):
        P = _p(srd_, sfx)
        if OPT["k3skiph"] and sfx != "": P = [[x for x in p if not x.startswith("buffer")] for p in P]
        if OPT["k3skipw"] and sfx == "": P = [[x for x in p if not x.startswith("buffer")] if i >= 6 - OPT["k3skipw"] else p for i, p in enumerate(P)]
        return P
    def Lseg(u4, grp, tag):
        L = [f"v_add_u32 v{vWR}, s{sWS}, v{vWB0}", f"v_add_u32 v{vHR0}, s{sHS}, v{vHB0}", f"v_add_u32 v{vHR1}, s{sHS}, v{vHB1}"]
        R = []
        for t in range(6):
            R.append(f"ds_read_b128 {q(WB + 4*t)}, v{vWR} offset:{t*1024}")
            R.append(f"ds_read_b64_tr_b16 {q(HB + 4*t, 2)}, v{vHR0} offset:{t*1024}")
            R.append(f"ds_read_b64_tr_b16 {q(HB + 4*t + 2, 2)}, v{vHR1} offset:{t*1024}")
        if KC:
            R = [f"ds_read_b128 {q(WB + 4*t)}, v{vWR} offset:{t*1024}" for t in range(6)]
            if u4 % 2 == 0:
                for t in range(6):
                    for c in range(2):
                        R.append(f"ds_read_b64_tr_b16 {q(HB + 24*c + 4*t, 2)}, v{vHR0} offset:{c*12288 + t*1024}")
                        R.append(f"ds_read_b64_tr_b16 {q(HB + 24*c + 4*t + 2, 2)}, v{vHR1} offset:{c*12288 + t*1024}")
            else: L = L[:1]
            P = pieces(sD, wnt if grp == 0 else nt); P[5] = P[5] + (advance_w() if grp == 0 else advance_h())
            def gd(X, z): return X if grp == 0 or u4 == 0 else [f"s_cbranch_vccnz K3_{tag}sl{u4}{z}"] + X + [f"K3_{tag}sl{u4}{z}:"]
            na = 6 if grp == 1 or u4 % 2 or (tag == "f" and u4 == 0) else OPT["k3ne"]
            if u4 % 2 == 0:
                for m in range(5):
                    if m < na: L += gd(P[m], "abcde"[m])
                    L += R[6*m:6*m+6]
                if na == 6: L += gd(P[5], "f")
            else:
                L += gd(P[0], "a") + R + gd([x for p in P[1:] for x in p], "b")
        elif grp == 0:
            P = pieces(sD, wnt); P[5] = P[5] + advance_w()
            na = 6 if tag == "f" and u4 == 0 else OPT["k3na"]
            pos = [0, 6, 12, 18, 18, 18]
            for k in range(19):
                for m in range(na):
                    if pos[m] == k: L += P[m]
                if k < 18: L.append(R[k])
        elif OPT["k3bl"]:
            P = pieces(sD, nt); P[5] = P[5] + advance_h()
            def gd(X, z): return X if u4 == 0 else [f"s_cbranch_vccnz K3_{tag}sl{u4}{z}"] + X + [f"K3_{tag}sl{u4}{z}:"]
            if OPT["k3pre"]: L = R[15:] + gd(P[0] + P[1] + P[2] + P[3] + P[4] + P[5], "d")
            else: L += gd(P[0], "a") + R[:6] + gd(P[1], "b") + R[6:12] + gd(P[2], "c") + R[12:] + gd(P[3] + P[4] + P[5], "d")
        else:
            L += R
        if u4 == 3:
            lab = f"K3_{grp}{tag}_xr"
            L += [f"s_sub_u32 s{sT0}, s{sEV}, {6*grp}", f"s_cmp_lt_u32 s{sT0}, 6", f"s_cbranch_scc0 {lab}"]
            for p in range(3):
                L.append(f"ds_read2_b32 {q(XT + 4*p, 2)}, v{vXR} offset0:{p} offset1:{p+3}")
                L.append(f"ds_read2_b32 {q(XT + 4*p + 2, 2)}, v{vXR} offset0:{p+6} offset1:{p+9}")
            L.append(lab + ":")
        L += [f"s_add_u32 s{sWS}, s{sWS}, 24576", f"s_cmp_eq_u32 s{sWS}, 73728", f"s_cselect_b32 s{sWS}, 0, s{sWS}",
              f"s_add_u32 s{sHS}, s{sHS}, {24576 if KC else 12288}", f"s_cmp_eq_u32 s{sHS}, 73728", f"s_cselect_b32 s{sHS}, 0, s{sHS}"][:3 if KC and u4 % 2 else 6]
        return L
    def pre_reads():
        AD = [f"v_add_u32 v{vWR}, s{sWS}, v{vWB0}", f"v_add_u32 v{vHR0}, s{sHS}, v{vHB0}", f"v_add_u32 v{vHR1}, s{sHS}, v{vHB1}"]
        R = []
        for t in range(6):
            R.append(f"ds_read_b128 {q(WB + 4*t)}, v{vWR} offset:{t*1024}")
            R.append(f"ds_read_b64_tr_b16 {q(HB + 4*t, 2)}, v{vHR0} offset:{t*1024}")
            R.append(f"ds_read_b64_tr_b16 {q(HB + 4*t + 2, 2)}, v{vHR1} offset:{t*1024}")
        return AD, R
    def vmwait(strict, loose, lab):
        if (OPT["k3nv"] >> {6: 0, 0: 1}.get(strict, 2)) & 1: return []
        if loose is None or OPT["k3nost"]: return [f"s_waitcnt vmcnt({strict})"]
        return [f"s_waitcnt vmcnt({loose})", f"s_cmp_lg_u32 s{sJ}, 0", f"s_cbranch_scc1 {lab}", f"s_waitcnt vmcnt({strict})", lab + ":"]
    def Mseg(u4, grp, tag):
        first = tag == "f" and u4 == 0
        Ms = []
        for t in range(6):
            for n in range(6):
                c = q(BIAS + 4*n) if first else q(accr(n, t))
                Ms.append([f"v_mfma_f32_16x16x32_bf16 {q(accr(n, t))}, {q(HB + 4*t)}, {q(WB + 4*n)}, {c}"])
        if KC:
            Ms = []
            for t in range(6):
                for n3 in range(3):
                    for c in range(2):
                        ac = q(accr(3 * (u4 % 2) + n3, t))
                        Ms.append([f"v_mfma_f32_16x16x32_bf16 {ac}, {q(HB + 24*c + 4*t)}, {q(WB + 12*c + 4*n3)}, {q(XT + 4*n3) if tag == 'f' and u4 < 2 and c == 0 else ac}"])
        if grp == 0:
            P = pieces(sD, wnt); P[5] = P[5] + advance_w()
            na = 6 if first or (KC and u4 % 2) else OPT["k3ne" if KC else "k3na"]
            for m in range(na, 6): Ms[1 + (m - na) * OPT["k3as"]] += P[m]
            e = OPT["k3eb"]
            loose = 30 if tag == "f" and u4 < 2 else None
            Ms[35 - e] += (["s_setprio 3"] if e else []) + vmwait(6, loose, f"K3_0{tag}_vw{u4}") + ["s_barrier"]
        elif not OPT["k3bl"]:
            P = pieces(sD, nt); P[5] = P[5] + advance_h()
            for m in range(0, 6, 2):
                X = P[m] + P[m + 1]
                if u4 != 3: X = [f"s_cbranch_vccnz K3_{tag}sd{u4}{m}"] + X + [f"K3_{tag}sd{u4}{m}:"]
                Ms[OPT["k3b0"] + (m // 2) * OPT["k3bs"]] += X
        if grp == 1 and OPT["k3pre"]:
            AD, R = pre_reads()
            Ms[0].append(AD[1]); Ms[1].append(AD[2]); Ms[2].append(AD[0])
            for t in range(5):
                Ms[6 * t + 6].append(R[3 * t + 1]); Ms[6 * t + 7].append(R[3 * t + 2])
                Ms[31 + t].append(R[3 * t])
        return [x for m in Ms for x in m]
    def Xseg(grp, tag):
        g = f"{grp}{tag}"
        L = [f"s_cmp_lt_u32 s{sT0}, 6", f"s_cbranch_scc0 K3_{g}_xdone"]
        for t in range(6):
            if t < 5: L += [f"s_cmp_lg_u32 s{sT0}, {t}", f"s_cbranch_scc1 K3_{g}_x{t+1}"]
            for n in range(6):
                L.append(f"v_mfma_f32_16x16x32_bf16 {q(accr(n, t))}, {q(XT + 4*(n >> 1))}, {q(SEL + 4*(n & 1))}, {q(accr(n, t))}")
            if t < 5: L += [f"s_branch K3_{g}_xdone", f"K3_{g}_x{t+1}:"]
        L += [f"K3_{g}_xdone:", f"s_sub_u32 s{sEV}, s{sEV}, 1"]
        return L
    ofl = ["", " nt", " sc1", " sc0 sc1", " sc0"][OPT["out_nt"]]
    def epilogue(final=False):
        L = ["s_nop 7"]
        idx = 0
        for t in range(6):
            L.append(f"s_mov_b32 s{sT1}, s{sOB}" if t == 0 else f"s_add_u32 s{sT1}, s{sT1}, {3072 if OPT['outlin'] else 12288}")
            for r in range(4):
                tq = XT + 4 * (idx % (3 if KC else 4)); idx += 1
                for j in range(3): L.append(f"v_cvt_pk_bf16_f32 v{tq+j}, v{accr(2*j, t)+r}, v{accr(2*j+1, t)+r}")
                if not OPT["k3nost"]: L.append(f"buffer_store_dwordx3 {q(tq, 3)}, v{vOUT}, s[{sO}:{sO+3}], s{sT1} offen offset:{r*768}" + ofl)
        L += [f"s_sub_u32 s{sOB}, s{sOB}, {192 * 768}"]
        return L
    def block(grp, tag):
        if OPT["prof"] == 2: a.label(f"K3_np{tag}{grp}")
        if OPT["prof"] == 1 and grp == 1:
            a(f"s_cmp_lg_u32 s{sWV}, 7")
            a(f"s_cbranch_scc1 K3_np{tag}")
            a("s_memrealtime s[90:91]")
            a("s_waitcnt lgkmcnt(0)")
            a("v_mov_b32 v12, s90")
            a("v_mov_b32 v13, 0")
            a("buffer_store_dword v12, v13, s[84:87], s83 offen")
            a("s_add_u32 s83, s83, 4")
            a.label(f"K3_np{tag}")
        for u4 in range(4):
            a.ext(Lseg(u4, grp, tag))
            if OPT["prof"] == 2 and u4 == 0 and grp == OPT["latw"] // 4:
                a(f"s_cmp_lg_u32 s{sWV}, {OPT['latw']}")
                a(f"s_cbranch_scc1 K3_nq{tag}")
                a("s_memrealtime s[92:93]")
                a("s_waitcnt vmcnt(0) lgkmcnt(0)")
                a("s_memrealtime s[94:95]")
                a("s_waitcnt lgkmcnt(0)")
                a("s_sub_u32 s94, s94, s92")
                a("s_add_u32 s82, s82, s94")
                a("v_mov_b32 v12, s82")
                a("v_mov_b32 v13, 0")
                a("buffer_store_dword v12, v13, s[84:87], s83 offen")
                a("s_add_u32 s83, s83, 4")
                a.label(f"K3_nq{tag}")
            if tag == "f" and u4 == 0:
                a(f"s_cmp_eq_u32 s{sJ}, 0")
                a(f"s_cbranch_scc1 K3_{grp}_noep")
                if OPT["stamp"]:
                    a(f"s_sub_u32 s96, s{sJ}, 48")
                    stamp2(a, 2, 4, 96)
                a.ext(epilogue())
                stamp2(a, 3, 5, 96)
                a.label(f"K3_{grp}_noep")
            if KC and tag == "f" and u4 < 2:
                a("s_nop 1")
                for i in range(12): a(f"v_mov_b32 v{XT+i}, v{BV[3*u4 + i//4]}")
            if grp == 0:
                a("s_waitcnt lgkmcnt(0)")
                a(f"s_setprio {OPT['k3pa']}")
            else:
                if u4 == 2:
                    a(f"s_cbranch_vccz K3_{tag}nx")
                    a.ext(vmwait(0, 24 if tag == "f" else None, "K3_fxw"))
                    a.label(f"K3_{tag}nx")
                if not KC: a.ext(vmwait(24, 48 if tag == "f" else None, f"K3_fh{u4}"))
                elif u4 % 2: a.ext(vmwait(18, 42 if tag == "f" else None, f"K3_fh{u4}"))
                a("s_waitcnt lgkmcnt(0)")
                a("s_barrier")
                a(f"s_setprio {OPT['k3pb']}")
            if u4 == 3: a.ext(Xseg(grp, tag))
            a.ext(Mseg(u4, grp, tag))
            a(f"s_setprio {OPT['k3pl']}")

    if OPT["prof"]:
        srd(a, 84, 24, 25, 65536, TAIL + (5 << 20))
        a("s_lshl_b32 s83, s2, 8")
        a("s_mov_b32 s82, 0")
    a("s_barrier")
    if OPT["k3pre"]:
        AD, R = pre_reads(); a.ext(AD + R[:15])
    a(f"s_cmp_lg_u32 s{sTH}, 0")
    a("s_cbranch_scc1 K3_1_tile")
    for grp in range(2):
        a.label(f"K3_{grp}_tile")
        a(f"s_mov_b32 s{sEV}, 11")
        block(grp, "f")
        a(".p2align 6")
        a.label(f"K3_{grp}_loop")
        block(grp, "l")
        a(f"s_cmp_lg_u32 s{sEV}, -1")
        a(f"s_cbranch_scc1 K3_{grp}_loop")
        a(f"s_add_u32 s{sJ}, s{sJ}, 48")
        a(f"s_cmp_lg_u32 s{sJ}, 144")
        a(f"s_cbranch_scc1 K3_{grp}_tile")
        if grp == 0:
            a("s_branch K3_fin0")
    a.label("K3_fin0")
    stamp(a, 6)
    a.ext(epilogue(True))
    a.label("K3_fin")
    if OPT["stamp"]: a("s_waitcnt vmcnt(0)")
    stamp(a, 7)
    stamp_dump(a, 8, sWV, "K3", 1)
    if OPT["stamp"] == 2:
        a("s_cmp_lg_u32 s2, 5")
        a("s_cbranch_scc1 K3_end")
        a(f"s_cmp_lg_u32 s{sWV}, 0")
        a("s_cbranch_scc1 K3_end")
        a("s_load_dwordx2 s[20:21], s[0:1], 56")
        a(f"s_add_u32 s88, s24, {TAIL + (4 << 20)}")
        a("s_addc_u32 s89, s25, 0")
        a("s_mov_b32 s90, 196608")
        a("s_mov_b32 s91, 0x00020000")
        a("v_and_b32 v1, 63, v0")
        a("v_lshlrev_b32 v2, 3, v1")
        a("v_cmp_gt_u32 vcc, 9, v1")
        a("v_add_u32 v3, 65536-72, v2")
        a("s_nop 0")
        a("v_cndmask_b32 v2, v3, v2, vcc")
        a("buffer_load_dword v4, v2, s[88:91], 0 offen offset:1280")
        a("s_mov_b32 s22, 64")
        a("s_mov_b32 s23, 0x00020000")
        a("v_lshlrev_b32 v2, 2, v1")
        a("s_waitcnt vmcnt(0) lgkmcnt(0)")
        a("v_readfirstlane_b32 s92, v4")
        a("s_nop 3")
        a("v_subrev_u32 v4, s92, v4")
        a("buffer_store_dword v4, v2, s[20:23], 0 offen")
    a.label("K3_end")
    a("s_endpgm")
    return a, desc("gemm2_kernel", 256, 100), f"; @launch kernel=gemm2_kernel grid=(256,1,1) block=(512,1,1) lds={L_X + 12288}"

def main():
    ks = [k1(), k2(), k3r() if OPT['roll'] else k3()]
    errs = []
    for a, _, l in ks: errs += check(a.lines, l.split("=")[1].split()[0])
    for a, _, l in ks:
        for i, x in enumerate(a.lines):
            if x.startswith("s_set_gpr_idx_on"): assert a.lines[i + 3] == "s_set_gpr_idx_off", "gpr idx not closed"
    for e in errs: print(e, file=sys.stderr)
    hdr = open("standalone__modern_conv_block_slak__vision.s.ref").read().split("\n")
    hdr = [l for l in hdr if l.startswith(";") and "@launch" not in l and "Override" not in l and "grid=ceil" not in l]
    out = "\n".join(hdr) + "\n" + "\n".join(l for _, _, l in ks) + "\n"
    out += '.amdgcn_target "amdgcn-amd-amdhsa--gfx950"\n.text\n'
    for a, _, _ in ks: out += a.text()
    out += '.section .rodata,"a"\n'
    for _, d, _ in ks: out += d
    open(sys.argv[1], "w").write(out)
    print("written", sys.argv[1], len(out), "bytes; hazards:", len(errs))
main()
```

```python
import sys, struct, math
from asmlib import Asm, check

OPT = dict(f16=1, st_nt=1, h_nt=1, w_nt=0, out_nt=0, x_nt=1, xp_nt=1, ord=4, ntail=1, k3skipw=0, kf=0, k3pre=0, prof=0, roll=0, stg=1, mp0=2, mpd=2, ipf=0, k3pl=0, wwarm=0, latw=7, dwarm=1, sdot=2, k3c=1, k3ne=6, k3nv=0, k3skiph=0, npf=1, kmask=0, k1nv=0, w1warm=1, k3he=6, k3xd=1, k3nev=0, k3sw=0, k3lm=0, bgb=-1, stamp=0, denorm=3, pm=3, pg0=0, pg1=1, bg=4, gb=2, gp=2, stm=7, stm0=7, w2pf=1, sga=7,
           k3pa=1, k3pb=2, k3eb=3, k3nost=0, k3noh=0, k3nox=0, k3now=0, k3na=6, k3as=5, k3b0=18, k3bs=5, k3bl=1, outlin=0, nostore=0)
for a in sys.argv[2:]:
    k, v = a.split("="); OPT[k] = int(v, 0)

def f32(x): return "0x%08x" % struct.unpack("<I", struct.pack("<f", x))[0]
def f16bits(x): return struct.unpack("<H", struct.pack("<e", x))[0]

M = 147456; C = 384; F = 1536
XBYTES = M * C * 2
WSBYTES = 452984832
TILE_H = 589824; CHUNK_H = 12288; HSTRIDE = 3 * TILE_H - 2 * CHUNK_H
TAIL = 256 * HSTRIDE
W2F = TAIL + 1179648; B2 = TAIL; SSQ = TAIL + 2363392
NREP = 8
K1c = 2.0 * math.sqrt(2.0 / math.pi) * math.log2(math.e)
K3c = K1c * 0.044715
if OPT["f16"]:
    C0 = 1258.0 / 256.0
    ALPHA = K1c / C0
else:
    ALPHA = K3c ** (1.0 / 3.0)
    C0 = K1c / ALPHA

def srd(a, d, lo, hi, nrec, off=0):
    if off:
        a(f"s_add_u32 s{d}, s{lo}, {off}")
        a(f"s_addc_u32 s{d+1}, s{hi}, 0")
    else:
        a(f"s_mov_b32 s{d}, s{lo}")
        a(f"s_mov_b32 s{d+1}, s{hi}")
    a(f"s_mov_b32 s{d+2}, {nrec}")
    a(f"s_mov_b32 s{d+3}, 0x00020000")

def stamp(a, idx, base=64):
    if not OPT["stamp"]: return
    a("s_memrealtime s[90:91]")
    a("s_memtime s[92:93]")
    a("s_waitcnt lgkmcnt(0)")
    a(f"s_mov_b32 s{base+2*idx}, s90")
    a(f"s_mov_b32 s{base+2*idx+1}, s92")

def stamp2(a, ia, ib, creg, base=64):
    if not OPT["stamp"]: return
    a("s_memrealtime s[90:91]")
    a("s_memtime s[92:93]")
    a("s_waitcnt lgkmcnt(0)")
    a(f"s_cmp_eq_u32 s{creg}, 0")
    a(f"s_cselect_b32 s{base+2*ia}, s90, s{base+2*ia}")
    a(f"s_cselect_b32 s{base+2*ia+1}, s92, s{base+2*ia+1}")
    a(f"s_cselect_b32 s{base+2*ib}, s{base+2*ib}, s90")
    a(f"s_cselect_b32 s{base+2*ib+1}, s{base+2*ib+1}, s92")

def stamp_dump(a, n, wave_sgpr, tag, kidx, base=64):
    if not OPT["stamp"]: return
    a(f"s_and_b32 s94, s{wave_sgpr}, 3")
    a("s_cmp_lg_u32 s94, 0")
    a(f"s_cbranch_scc1 {tag}_nodump")
    a("s_load_dwordx2 s[90:91], s[0:1], 64")
    a("s_waitcnt lgkmcnt(0)")
    a(f"s_add_u32 s88, s90, {TAIL + (4 << 20) + kidx * 65536}")
    a("s_addc_u32 s89, s91, 0")
    a("s_mov_b32 s90, 65536")
    a("s_mov_b32 s91, 0x00020000")
    a(f"s_lshl_b32 s94, s{wave_sgpr}, 5")
    a("s_lshl_b32 s95, s2, 8")
    a("s_add_u32 s94, s94, s95")
    a("v_mov_b32 v8, 0")
    for i in range(n):
        a(f"v_mov_b32 v10, s{base+2*i}")
        a(f"v_mov_b32 v11, s{base+2*i+1}")
        a(f"buffer_store_dwordx2 v[10:11], v8, s[88:91], s94 offen offset:{i*8}")
        a("s_waitcnt vmcnt(0)")
    a.label(f"{tag}_nodump")

def q(r, n=4): return f"v[{r}:{r+n-1}]"

def kernel_start(a, name):
    a(f".globl {name}")
    a(".p2align 8")
    a(f".type {name},@function")
    a.label(name)

def code_prefetch(a, start, end, vt, st):
    if not OPT["ipf"]: return
    a(f"s_getpc_b64 s[{st}:{st+1}]")
    a(f"s_and_b32 s{st}, s{st}, 0xffffff00")
    a(f"s_mov_b32 s{st+2}, {end}-{start}")
    a(f"s_mov_b32 s{st+3}, 0x00020000")
    a(f"v_lshlrev_b32 v{vt}, 7, v0")
    a(f"buffer_load_dword v{vt}, v{vt}, s[{st}:{st+3}], 0 offen")

def desc(name, vgpr, sgpr=96):
    acc = min(256, (vgpr + 3) // 4 * 4)
    return f""".p2align 6
.amdhsa_kernel {name}
  .amdhsa_next_free_vgpr {vgpr}
  .amdhsa_next_free_sgpr {sgpr}
  .amdhsa_accum_offset {acc}
  .amdhsa_group_segment_fixed_size 0
  .amdhsa_kernarg_size 72
  .amdhsa_user_sgpr_count 2
  .amdhsa_user_sgpr_kernarg_segment_ptr 1
  .amdhsa_system_sgpr_workgroup_id_x 1
  .amdhsa_float_denorm_mode_32 {OPT['denorm']}
.end_amdhsa_kernel
"""

def gelu_batch(b, TMP, SSr, first, sC0, sC0H):
    L = []
    R = [b + i for i in range(8)]
    if not OPT["f16"]:
        T = [TMP + i for i in range(8)]
        for v, t in zip(R, T): L.append(f"v_fma_f32 v{t}, -v{v}, v{v}, s{sC0}")
        for v, t in zip(R, T): L.append(f"v_mul_f32 v{t}, v{t}, v{v}")
        for t in T: L.append(f"v_exp_f32 v{t}, v{t}")
        for t in T: L.append(f"v_add_f32 v{t}, 1.0, v{t}")
        for t in T: L.append(f"v_rcp_f32 v{t}, v{t}")
        for v, t in zip(R, T): L.append(f"v_mul_f32 v{t}, v{v}, v{t}")
        Gv = T
    else:
        H = [TMP + i for i in range(4)]; Pp = [TMP + 4 + i for i in range(4)]
        for i in range(4): L.append(f"v_cvt_pk_f16_f32 v{H[i]}, v{R[2*i]}, v{R[2*i+1]}")
        for i in range(4): L.append(f"v_pk_fma_f16 v{Pp[i]}, v{H[i]}, v{H[i]}, s{sC0H} neg_lo:[1,0,0] neg_hi:[1,0,0]")
        for i in range(4): L.append(f"v_pk_mul_f16 v{Pp[i]}, v{Pp[i]}, v{H[i]}")
        for i in range(4): L.append(f"v_exp_f16 v{H[i]}, v{Pp[i]}")
        for i in range(4): L.append(f"v_exp_f16_sdwa v{H[i]}, v{Pp[i]} dst_sel:WORD_1 dst_unused:UNUSED_PRESERVE src0_sel:WORD_1")
        for i in range(4): L.append(f"v_pk_add_f16 v{H[i]}, v{H[i]}, 1.0 op_sel_hi:[1,0]")
        for i in range(4): L.append(f"v_rcp_f16 v{Pp[i]}, v{H[i]}")
        for i in range(4): L.append(f"v_rcp_f16_sdwa v{H[i]}, v{H[i]} dst_sel:DWORD dst_unused:UNUSED_PAD src0_sel:WORD_1")
        for i in range(4): L.append(f"v_fma_mix_f32 v{R[2*i]}, v{R[2*i]}, v{Pp[i]}, 0 op_sel_hi:[0,1,0]")
        for i in range(4): L.append(f"v_fma_mix_f32 v{R[2*i+1]}, v{R[2*i+1]}, v{H[i]}, 0 op_sel_hi:[0,1,0]")
        Gv = R
    for e in (0, 4, 1, 5, 2, 6, 3, 7) if not OPT['sdot'] else ():
        s_ = SSr + e // 4
        L.append(f"v_mul_f32 v{s_}, v{Gv[e]}, v{Gv[e]}" if first and e % 4 == 0 else f"v_fmac_f32 v{s_}, v{Gv[e]}, v{Gv[e]}")
    for i in range(4): L.append(f"v_cvt_pk_bf16_f32 v{b+i}, v{Gv[2*i]}, v{Gv[2*i+1]}")
    return L

NBP = 6
def k2():
    a = Asm()
    kernel_start(a, "mid_kernel")
    a("s_cmp_ge_u32 s2, 24")
    a("s_cbranch_scc1 K2_end")
    stamp(a, 0)
    a("s_load_dwordx4 s[4:7], s[0:1], 24")
    a("s_load_dwordx2 s[8:9], s[0:1], 40")
    a("s_load_dwordx2 s[10:11], s[0:1], 64")
    a("v_lshrrev_b32 v1, 6, v0")
    a("v_and_b32 v2, 63, v0")
    a("v_readfirstlane_b32 s3, v1")
    a("v_mul_u32_u24 v5, 12, v0")
    a("s_lshr_b32 s30, s2, 2")
    a("s_and_b32 s32, s2, 3")
    a("s_lshl_b32 s31, s30, 3")
    a("s_add_u32 s31, s31, s3")
    a("s_mul_i32 s33, s32, 192")
    a(f"s_mul_i32 s34, s31, {32 * 768}")
    a("s_add_u32 s33, s33, s34")
    a("v_lshrrev_b32 v3, 4, v2")
    a("v_and_b32 v4, 1, v3")
    a("v_lshlrev_b32 v4, 4, v4")
    a("v_lshrrev_b32 v3, 1, v3")
    a("v_lshl_add_u32 v3, v3, 3, v4")
    a("v_mul_u32_u24 v7, 768, v3")
    a("v_and_b32 v6, 15, v2")
    a("v_mul_u32_u24 v4, 12, v6")
    a("v_add_u32 v7, v4, v7")
    a("s_lshl_b32 s35, s31, 6")
    a("v_lshlrev_b32 v4, 1, v3")
    a("s_waitcnt lgkmcnt(0)")
    srd(a, 24, 10, 11, WSBYTES - TAIL, TAIL)
    a(f"s_mov_b32 s34, {SSQ - TAIL}")
    for r in range(NREP):
        a(f"buffer_load_dwordx3 {q(32+4*r, 3)}, v5, s[24:27], s34 offen")
        if r < NREP - 1: a("s_add_u32 s34, s34, 6144")
    srd(a, 12, 4, 5, C * F * 2)
    srd(a, 16, 6, 7, F * 2)
    srd(a, 20, 8, 9, F * 2)
    W = 64; U = 96
    for e in range(8):
        if e == 4: a("s_add_u32 s33, s33, 3072")
        a(f"buffer_load_dwordx3 {q(W + 4*e, 3)}, v7, s[12:15], s33 offen offset:{(e % 4) * 768}")
    a("buffer_load_dwordx4 v[16:19], v4, s[16:19], s35 offen")
    a("buffer_load_dwordx4 v[12:15], v4, s[20:23], s35 offen")
    a("s_waitcnt vmcnt(10)")
    stamp(a, 1)
    for st in (4, 2, 1):
        for r in range(st):
            for k in range(3): a(f"v_add_f32 v{32+4*r+k}, v{32+4*r+k}, v{32+4*(r+st)+k}")
    a(f"s_mov_b32 s36, {f32(1.0 / (ALPHA * ALPHA))}")
    a(f"v_mov_b32 v20, {f32(1e-6)}")
    for k in range(3): a(f"v_fma_f32 v{32+k}, v{32+k}, s36, v20")
    for k in range(3): a(f"v_sqrt_f32 v{32+k}, v{32+k}")
    a("s_nop 0")
    for k in range(3): a(f"ds_write_b32 v5, v{32+k} offset:{4*k}")
    a("v_add_f32 v21, v32, v33")
    a("v_add_f32 v21, v21, v34")
    for ctl in ("row_shr:1", "row_shr:2", "row_shr:4", "row_shr:8"):
        a("s_nop 1")
        a(f"v_add_f32_dpp v21, v21, v21 {ctl} row_mask:0xf bank_mask:0xf bound_ctrl:0")
    a("s_nop 1")
    a("v_readlane_b32 s40, v21, 15")
    a("v_readlane_b32 s41, v21, 31")
    a("v_readlane_b32 s42, v21, 47")
    a("v_readlane_b32 s43, v21, 63")
    a("s_nop 1")
    a("v_mov_b32 v22, s40")
    a("v_add_f32 v22, s41, v22")
    a("v_add_f32 v22, s42, v22")
    a("v_add_f32 v22, s43, v22")
    a("s_lshl_b32 s37, s3, 2")
    a("v_mov_b32 v23, s37")
    a("ds_write_b32 v23, v22 offset:6144")
    a("s_waitcnt lgkmcnt(0)")
    a("s_barrier")
    stamp(a, 2)
    a("v_mov_b32 v23, 0")
    a("ds_read_b128 v[24:27], v23 offset:6144")
    a("ds_read_b128 v[28:31], v23 offset:6160")
    a("s_lshl_b32 s37, s31, 7")
    a("v_lshlrev_b32 v4, 2, v3")
    a("v_add_u32 v4, s37, v4")
    a("ds_read_b128 v[32:35], v4")
    a("ds_read_b128 v[36:39], v4 offset:16")
    a("s_waitcnt vmcnt(0)")
    for e in range(8):
        for d in range(3):
            a(f"v_lshlrev_b32 v{U + 6*e + 2*d}, 16, v{W + 4*e + d}")
            a(f"v_and_b32 v{U + 6*e + 2*d + 1}, 0xffff0000, v{W + 4*e + d}")
    a("s_waitcnt lgkmcnt(0)")
    for st in (4, 2, 1):
        for r in range(st): a(f"v_add_f32 v{24+r}, v{24+r}, v{24+r+st}")
    a(f"v_mul_f32 v24, {f32(1.0 / F)}, v24")
    a(f"v_add_f32 v24, {f32(1e-6)}, v24")
    a("v_rcp_f32 v24, v24")
    a(f"s_mov_b32 s36, {f32(1.0 / ALPHA)}")
    for e in range(8):
        src = 16 + e // 2
        a(f"v_lshlrev_b32 v40, 16, v{src}" if e % 2 == 0 else f"v_and_b32 v40, 0xffff0000, v{src}")
        a(f"v_mul_f32 v{32+e}, v{32+e}, v24")
        a(f"v_fma_f32 v{32+e}, v{32+e}, v40, 1.0")
        a(f"v_mul_f32 v{32+e}, s36, v{32+e}")
    if OPT["k3c"]:
        a("s_sub_u32 s44, 47, s31")
        a("s_and_b32 s45, s44, 1")
        a("s_andn2_b32 s44, s44, 1")
        a("s_sub_u32 s44, 47, s44")
        a("s_mul_i32 s33, s44, 24")
        a("s_mul_i32 s45, s45, 3")
        a("s_add_u32 s33, s33, s45")
    else:
        a("s_mul_i32 s33, s31, 24")
    a("s_mul_i32 s46, s32, 6")
    a("s_add_u32 s33, s33, s46")
    a("s_lshl_b32 s33, s33, 10")
    a(f"s_add_u32 s33, s33, {W2F - TAIL}")
    a("s_sub_u32 s34, s33, 24576" if OPT["k3c"] else "s_add_u32 s34, s33, 3072")
    a("v_lshlrev_b32 v43, 4, v2")
    for n in range(6):
        T = 44 + 8 * (n % 2); O = W + 4 * n
        for e in range(8): a(f"v_mul_f32 v{T+e}, v{U + 6*e + n}, v{32+e}")
        for i in range(4): a(f"v_cvt_pk_bf16_f32 v{O+i}, v{T+2*i}, v{T+2*i+1}")
        a(f"buffer_store_dwordx4 {q(O)}, v43, s[24:27], s{33 + n // 3} offen offset:{(n % 3) * 1024}")
    for e in range(8):
        a(f"v_lshlrev_b32 v41, 16, v{12 + e // 2}" if e % 2 == 0 else f"v_and_b32 v41, 0xffff0000, v{12 + e // 2}")
        for n in range(6): a(f"v_mul_f32 v{24+n}, v41, v{U + n}" if e == 0 else f"v_fmac_f32 v{24+n}, v41, v{U + 6*e + n}")
    a("v_mul_u32_u24 v43, 24, v0")
    for d in range(3): a(f"ds_write_b64 v43, {q(24 + 2*d, 2)} offset:{6400 + 8*d}")
    a("s_waitcnt lgkmcnt(0)")
    a("s_barrier")
    a("s_cmp_ge_u32 s3, 2")
    a("s_cbranch_scc1 K2_end")
    a("v_lshlrev_b32 v43, 2, v0")
    for w in range(32): a(f"ds_read_b32 v{U + w}, v43 offset:{6400 + 384*w}")
    a("s_waitcnt lgkmcnt(0)")
    for st in (16, 8, 4, 2, 1):
        for r in range(st): a(f"v_add_f32 v{U+r}, v{U+r}, v{U+r+st}")
    a("s_mul_i32 s39, s30, 1536")
    a("s_mul_i32 s38, s32, 384")
    a("s_add_u32 s38, s38, s39")
    a(f"s_add_u32 s38, s38, {B2 - TAIL}")
    a("v_cmp_gt_u32 vcc, 96, v0")
    a("s_and_saveexec_b64 s[40:41], vcc")
    a(f"buffer_store_dword v{U}, v43, s[24:27], s38 offen")
    a("s_mov_b64 exec, s[40:41]")
    if OPT["stamp"]: a("s_waitcnt vmcnt(0)")
    stamp(a, 3)
    stamp_dump(a, 4, 3, "K2", 2)
    a.label("K2_end")
    a("s_endpgm")
    return a, desc("mid_kernel", 144, 100 if OPT["stamp"] else 56), "; @launch kernel=mid_kernel grid=(24,1,1) block=(512,1,1) lds=19200"

def k1():
    a = Asm()
    XN = 8; ACC = 152; BB = 200; SQ = 232
    TMP = BB + 16; SS = BB + 24
    vDE, vXS, vRD, vST, vDW, vDO, vRB = 1, 2, 3, 4, 5, 6, 7
    L_DW = 147456
    sX, sW1, sH, sDB = 8, 12, 16, 20
    sWSlo, sWShi, sOUTlo, sOUThi, sDBlo, sDBhi = 24, 25, 26, 27, 28, 29
    (sWV, sGRP, sI, sEND, sRDS, sDSL, sT0, sT1, sC0, sHB, sXB, sREG, sSIG, sT2, sC0H, sDSR, sD0, sST0, sST1, sXN, sDS0, sTK,
     sSLO, sSHI, sDLO, sDHI, sSG0, sCW, sXU) = range(30, 59)
    sHN, sSLN, sSHN, sDSP, sDSN, sDCN, sCW2, sKM = 82, 83, 84, 85, 86, 87, 3, 97
    REG = 3 * 192 * 768
    kernel_start(a, "gemm1_kernel")
    a("s_cmp_ge_u32 s2, 256")
    a("s_cbranch_scc1 K1_end")
    stamp(a, 0)
    a("s_load_dwordx4 s[4:7], s[0:1], 0")
    a(f"s_load_dwordx2 s[{sW1}:{sW1+1}], s[0:1], 16")
    a(f"s_load_dwordx2 s[{sOUTlo}:{sOUThi}], s[0:1], 48")
    a(f"s_load_dwordx2 s[{sDBlo}:{sDBhi}], s[0:1], 56")
    a(f"s_load_dwordx2 s[{sWSlo}:{sWShi}], s[0:1], 64")
    code_prefetch(a, "gemm1_kernel", "K1_end", BB + 20, 60)
    a("v_lshrrev_b32 v8, 6, v0")
    a("v_and_b32 v9, 63, v0")
    a(f"v_readfirstlane_b32 s{sWV}, v8")
    a("v_lshrrev_b32 v12, 3, v9")
    a("v_and_b32 v13, 7, v9")
    a("v_lshrrev_b32 v14, 1, v12")
    a("v_xor_b32 v14, v14, v13")
    a(f"v_mul_u32_u24 v{vXS}, 768, v12")
    a(f"v_lshl_add_u32 v{vXS}, v14, 4, v{vXS}")
    a(f"s_lshr_b32 s{sT0}, s2, 4")
    a(f"s_and_b32 s{sSG0}, s{sT0}, {OPT['sga']}")
    a(f"s_lshl_b32 s{sT0}, s{sT0}, 4")
    a(f"s_and_b32 s{sT1}, s2, 7")
    a(f"s_lshl_b32 s{sT1}, s{sT1}, 1")
    a(f"s_add_u32 s{sT0}, s{sT0}, s{sT1}")
    a(f"s_bfe_u32 s{sT1}, s2, 0x10003")
    a(f"s_add_u32 s{sREG}, s{sT0}, s{sT1}")
    a(f"s_mul_i32 s{sSLO}, s{sT1}, 12")
    a(f"s_add_u32 s{sSHI}, s{sSLO}, 12")
    a(f"s_lshr_b32 s{sGRP}, s{sWV}, 2")
    a(f"s_and_b32 s{sT1}, s{sWV}, 3")
    a(f"s_add_u32 s{sT0}, s{sT0}, s{sGRP}")
    a(f"s_mul_i32 s{sXB}, s{sT0}, {REG}")
    a(f"s_mul_i32 s{sT2}, s{sT1}, {48 * 768}")
    a(f"s_add_u32 s{sXB}, s{sXB}, s{sT2}")
    if not OPT["roll"]: a(f"s_add_u32 s{sXB}, s{sXB}, {2 * 192 * 768}")
    a(f"s_mul_i32 s{sHB}, s{sT0}, {HSTRIDE}")
    if not OPT["roll"]: a(f"s_add_u32 s{sHB}, s{sHB}, {2 * TILE_H}")
    a(f"s_mul_i32 s59, s{sT0}, {REG}")
    if OPT["roll"]: a(f"s_add_u32 s59, s59, {2 * 192 * 768}")
    a(f"s_mul_i32 s{sXN}, s{sREG}, {REG}")
    a(f"s_add_u32 s{sT2}, s{sWV}, 4" if OPT["roll"] else f"s_xor_b32 s{sT2}, s{sWV}, 4")
    a(f"s_mul_i32 s{sT2}, s{sT2}, {48 * 768}")
    a(f"s_add_u32 s{sXN}, s{sXN}, s{sT2}")
    a(f"s_mul_i32 s{sHN}, s{sREG}, {HSTRIDE}")
    a(f"s_xor_b32 s{sT2}, s{sGRP}, {0 if OPT['roll'] else 1}")
    a(f"s_mul_i32 s{sT2}, s{sT2}, {TILE_H}")
    a(f"s_add_u32 s{sHN}, s{sHN}, s{sT2}")
    if OPT["roll"]: a(f"s_add_u32 s{sHN}, s{sHN}, {46 * CHUNK_H}")
    a(f"s_mov_b32 s{sSLN}, 0")
    a(f"s_mov_b32 s{sSHN}, 24")
    a(f"s_mov_b32 s{sDSP}, 23")
    a(f"s_mov_b32 s{sDSN}, -1")
    if OPT["ord"]:
        a(f"s_bitcmp1_b32 s2, {OPT['ord']}")
        a("s_cbranch_scc0 K1_noswap")
        for x, y in ((sXB, sXN), (sHB, sHN), (sSLO, sSLN), (sSHI, sSHN), (sDSP, sDSN)):
            a(f"s_mov_b32 s{sT2}, s{x}"); a(f"s_mov_b32 s{x}, s{y}"); a(f"s_mov_b32 s{y}, s{sT2}")
        a.label("K1_noswap")
    a(f"s_mul_i32 s{sD0}, s{sWV}, 6144")
    a(f"s_mov_b32 s{sCW}, s{sD0}")
    a(f"s_add_u32 s{sCW2}, s{sD0}, 49152")
    a("s_waitcnt lgkmcnt(0)")
    srd(a, sX, 4, 5, XBYTES)

    KPO = [3, 4, 5, 2, 1, 0]
    def xdma(n, pol=None):
        if pol is None:
            if OPT["x_nt"] == OPT["xp_nt"]: return xdma(n, OPT["x_nt"])
            return [f"s_cbranch_vccnz K1_xa{n}"] + xdma(n, OPT["x_nt"]) + [f"s_branch K1_xb{n}", f"K1_xa{n}:"] + xdma(n, OPT["xp_nt"]) + [f"K1_xb{n}:"]
        xnt = " nt" if pol else ""
        tt, kp = divmod(n, 6); kp = KPO[kp]
        return [f"s_add_u32 m0, s{(sCW, sCW2)[n // 3 % 2]}, {(n % 3) * 2048}", f"s_add_u32 s{sXU}, s{sXB}, {tt * 12288 + kp * 128}",
                f"buffer_load_dwordx4 v{vXS}, s[{sX}:{sX+3}], s{sXU} offen{xnt} lds",
                "s_add_u32 m0, m0, 1024", f"s_add_u32 s{sXU}, s{sXU}, 6144",
                f"buffer_load_dwordx4 v{vXS}, s[{sX}:{sX+3}], s{sXU} offen{xnt} lds"]
    srd(a, sH, 6, 7, C * 2)
    a(f"v_lshlrev_b32 v{ACC+4}, 2, v0")
    a(f"buffer_load_dword v{ACC}, v{ACC+4}, s[{sH}:{sH+3}], 0 offen")
    for n in range(6): a.ext(xdma(n, OPT['x_nt']))
    a('s_mov_b64 vcc, 0')

    a("v_and_b32 v10, 15, v9")
    a("v_lshrrev_b32 v11, 4, v9")
    a(f"v_lshlrev_b32 v{vST}, 2, v11")
    a(f"v_xor_b32 v{vST}, v{vST}, v9")
    a(f"v_lshlrev_b32 v{vST}, 4, v{vST}")
    a(f"s_mul_i32 s{sT2}, s{sT1}, 3072")
    a(f"v_add_u32 v{vST}, s{sT2}, v{vST}")
    a(f"v_lshlrev_b32 v{vDW}, 5, v11")
    a(f"v_add_u32 v{vDW}, {L_DW}, v{vDW}")
    a("v_and_b32 v14, 2, v12")
    a("v_xor_b32 v13, v13, v14")
    a(f"v_mul_u32_u24 v{vDE}, 3072, v12")
    a(f"v_lshl_add_u32 v{vDE}, v13, 4, v{vDE}")
    a(f"v_xor_b32 v{vDO}, 64, v{vDE}")
    a("v_lshrrev_b32 v12, 2, v10")
    a("v_lshl_add_u32 v13, v11, 3, v12")
    a(f"v_lshlrev_b32 v{vRB}, 7, v13")
    a("v_lshrrev_b32 v12, 1, v12")
    a("v_and_b32 v13, 1, v11")
    a("v_lshl_add_u32 v12, v13, 1, v12")
    a(f"v_lshl_add_u32 v{vRB}, v12, 5, v{vRB}")
    a("v_and_b32 v12, 3, v10")
    a(f"v_lshl_add_u32 v{vRB}, v12, 3, v{vRB}")
    a(f"s_mov_b32 s{sC0}, {f32(-C0)}")
    h = f16bits(-C0); a(f"s_mov_b32 s{sC0H}, 0x{h:04x}{h:04x}")
    a(f"s_mul_i32 s{sDS0}, s{sWV}, {6 * 24576}")
    a(f"s_add_u32 s{sSIG}, s{sSLO}, s{sSG0}")
    a(f"s_lshl_b32 s{sDLO}, s{sSLO}, 7")
    a(f"s_add_u32 s{sDLO}, s{sDLO}, s{sDS0}")
    a(f"s_lshl_b32 s{sDHI}, s{sSHI}, 7")
    a(f"s_add_u32 s{sDHI}, s{sDHI}, s{sDS0}")
    a(f"s_lshl_b32 s{sDSR}, s{sSG0}, 7")
    a(f"s_add_u32 s{sDSR}, s{sDSR}, s{sDLO}")
    a(f"s_mov_b32 s{sDSL}, s{sD0}")
    a(f"s_mov_b32 s{sTK}, 1")
    a(f"s_mov_b32 s{sW1+2}, {C * F * 2}")
    a(f"s_mov_b32 s{sW1+3}, 0x00020000")
    srd(a, sDB, sDBlo, sDBhi, 256)

    uid = [0]
    def dma():
        P = []
        for k in range(6):
            pre = [f"s_mov_b32 m0, s{sDSL}", f"s_mov_b32 s{sT0}, s{sDSR}"] if k == 0 else ["s_add_u32 m0, m0, 1024", f"s_add_u32 s{sT0}, s{sT0}, 24576"]
            P.append(pre + [f"buffer_load_dwordx4 v{(vDE, vDO)[k % 2]}, s[{sW1}:{sW1+3}], s{sT0} offen lds"])
        P[5] += [f"s_add_u32 s{sDSL}, s{sDSL}, 49152", f"s_cmp_ge_u32 s{sDSL}, 147456", f"s_cselect_b32 s{sDSL}, s{sD0}, s{sDSL}",
                 f"s_add_u32 s{sDSR}, s{sDSR}, 128", f"s_cmp_eq_u32 s{sDSR}, s{sDHI}", f"s_cselect_b32 s{sDSR}, s{sDLO}, s{sDSR}"]
        uid[0] += 1
        P[5] += [f"s_sub_u32 s{sDCN}, s{sDCN}, 1", f"s_cmp_lg_u32 s{sDCN}, 0", f"s_cbranch_scc1 K1_ds{uid[0]}",
                 f"s_lshl_b32 s{sDLO}, s{sSLN}, 7", f"s_add_u32 s{sDLO}, s{sDLO}, s{sDS0}", f"s_lshl_b32 s{sDHI}, s{sSHN}, 7", f"s_add_u32 s{sDHI}, s{sDHI}, s{sDS0}",
                 f"s_lshl_b32 s{sDSR}, s{sSG0}, 7", f"s_add_u32 s{sDSR}, s{sDSR}, s{sDLO}", f"K1_ds{uid[0]}:"]
        return P

    a(f"v_lshlrev_b32 v{ACC+4}, 3, v0")
    a(f"v_add_u32 v{ACC+4}, {L_DW}, v{ACC+4}")
    a("s_waitcnt vmcnt(12)")
    a(f"v_and_b32 v{ACC+2}, 0xffff, v{ACC}")
    a(f"v_and_b32 v{ACC+3}, 0xffff0000, v{ACC}")
    a(f"ds_write_b64 v{ACC+4}, {q(ACC+2, 2)}")
    a(f"v_mov_b32 v{BB+8}, 1")
    a(f"s_cmp_lg_u32 s{sWV}, 0")
    a("s_cbranch_scc1 K1_pj")
    a(f"v_lshlrev_b32 v{ACC+5}, 8, v0")
    a(f"s_and_b32 s{sT0}, s2, {NREP - 1}")
    a(f"s_lshl_b32 s{sT0}, s{sT0}, 2")
    a(f"buffer_atomic_add v{BB+8}, v{ACC+5}, s[{sDB}:{sDB+3}], s{sT0} offen sc0")
    a.label("K1_pj")
    for r in range(SQ, SQ + 24): a(f"v_mov_b32 v{r}, 0")
    srd(a, sH, sWSlo, sWShi, TAIL)
    a(f"s_mov_b32 s{sI}, 0")
    a(f"s_sub_u32 s{sEND}, s{sSHI}, s{sSLO}")
    a(f"s_mov_b32 s{sRDS}, 0")
    a(f"s_mov_b32 s{sKM}, {OPT['kmask']}")
    a(f"s_mov_b32 s{sDCN}, s{sEND}")
    a(f"s_sub_u32 s{sEND}, s{sEND}, 2")
    a("s_waitcnt lgkmcnt(0)")
    a("s_barrier")
    stamp(a, 1)

    def buf(i): return BB + 4 * (i % 8)
    def rd(i):
        ct, ks = divmod(i, 12)
        L = [f"v_xor_b32 v{vRD}, {((ct - 1) ^ ct) << 5}, v{vRD}"] if ks == 0 and ct > 0 else []
        return L + [f"ds_read_b64_tr_b16 {q(buf(i) + 2*u, 2)}, v{vRD} offset:{ks*4096 + u*512}" for u in range(2)]
    def head(): return [f"v_add_u32 v{vRD}, s{sRDS}, v{vRB}"] + [x for i in range(4) for x in rd(i)]

    DWR = [BB + 16, BB + 24]
    S = BB; Q = BB + 4; vTK = BB + 8; vW2 = BB + 10; vXR = BB + 12; vT = BB + 13; vFL = BB + 14
    KSO = [6, 7, 8, 9, 10, 11, 5, 4, 3, 2, 1, 0]
    def dwrd(m): return [f"ds_read_b128 {q(DWR[m % 2] + 4*j)}, v{vDW} offset:{KSO[m % 12]*128 + j*16}" for j in range(2)]
    def xaddr():
        return [f"v_and_b32 v{vT}, 15, v0", f"v_lshlrev_b32 v{vXR}, 7, v{vT}", f"v_bfe_u32 v{vT}, v0, 1, 2", f"v_bfe_u32 v{vFL}, v0, 4, 2",
                f"v_xor_b32 v{vT}, v{vT}, v{vFL}", f"v_lshl_add_u32 v{vXR}, v{vT}, 4, v{vXR}", f"v_add_u32 v{vT}, s{sCW2}, v{vXR}", f"v_add_u32 v{vXR}, s{sCW}, v{vXR}"]
    def xread(n):
        tt, kp = divmod(n, 6); kp = KPO[kp]
        return [f"ds_read_b128 {q(XN + 48*tt + 8*kp + 4*e)}, v{(vXR, vT)[n // 3 % 2]} offset:{(n % 3) * 2048 + e * 64}" for e in range(2)]
    a.ext(xaddr())
    a.label("K1_ln")
    a.ext(dwrd(0))
    def yreg(tt, d): return XN + 48*tt + 2*d if d < 24 else ACC + 2*(d - 24)
    for tt in range(3):
        for m in range(12):
            n = tt * 6 + m // 2; ks = KSO[m]
            if m % 2 == 0:
                if tt == 0: a(f"s_cbranch_vccnz K1_ta{n}")
                a(f"s_waitcnt vmcnt({2 * min(5, 17 - n) + (6 if n > 14 else 0)})")
                a.ext(xread(n))
                if tt == 0: a.label(f"K1_ta{n}")
            last = tt == 2 and m == 11
            if not last: a.ext(dwrd(m + 1))
            a(f"s_waitcnt lgkmcnt({0 if last else 2})")
            if m % 2 == 0:
                if tt == 0:
                    a(f"s_cbranch_vccnz K1_tb{n}")
                    a.ext(xdma(n + 6, OPT["x_nt"]))
                    a.label(f"K1_tb{n}")
                elif n + 6 < 18: a.ext(xdma(n + 6))
                if n in (14, 17):
                    for p in dma(): a.ext(p)
            D = DWR[m % 2]
            for jj in (3, 2, 1, 0):
                d = 4 * ks + jj; x = XN + 48*tt + d; y = yreg(tt, d)
                a(f"v_dot2_f32_bf16 v{y+1}, v{x}, v{D+2*jj+1}, 0")
                a(f"v_dot2_f32_bf16 v{y}, v{x}, v{D+2*jj}, 0")
            for jj in (3, 2, 1, 0):
                y = q(yreg(tt, 4 * ks + jj), 2); s_ = q(S + 2*(jj % 2), 2); q_ = q(Q + 2*(jj % 2), 2)
                if m == 0 and jj >= 2:
                    a(f"v_pk_mul_f32 {s_}, {y}, 1.0 op_sel_hi:[1,0]")
                    a(f"v_pk_mul_f32 {q_}, {y}, {y}")
                else:
                    a(f"v_pk_add_f32 {s_}, {s_}, {y}")
                    a(f"v_pk_fma_f32 {q_}, {y}, {y}, {q_}")
        a(f"v_pk_add_f32 {q(S,2)}, {q(S,2)}, {q(S+2,2)}")
        a(f"v_pk_add_f32 {q(Q,2)}, {q(Q,2)}, {q(Q+2,2)}")
        a(f"v_add_f32 v{S}, v{S}, v{S+1}")
        a(f"v_add_f32 v{Q}, v{Q}, v{Q+1}")
        for sw in ("v_permlane16_swap_b32", "v_permlane32_swap_b32"):
            a(f"v_mov_b32 v{S+1}, v{S}"); a(f"v_mov_b32 v{Q+1}, v{Q}")
            a("s_nop 0")
            a(f"{sw} v{S}, v{S+1}"); a(f"{sw} v{Q}, v{Q+1}")
            a(f"v_add_f32 v{S}, v{S}, v{S+1}"); a(f"v_add_f32 v{Q}, v{Q}, v{Q+1}")
        a(f"v_mul_f32 v{S}, {f32(-1.0 / C)}, v{S}")
        a(f"v_mul_f32 v{Q}, {f32(1.0 / C)}, v{Q}")
        a(f"v_fma_f32 v{Q}, -v{S}, v{S}, v{Q}")
        a(f"v_max_f32 v{Q}, 0, v{Q}")
        a(f"v_add_f32 v{Q}, {f32(1e-5)}, v{Q}")
        a(f"v_rsq_f32 v{Q}, v{Q}")
        a("s_nop 0")
        a(f"v_mul_f32 v{Q}, {f32(ALPHA)}, v{Q}")
        a(f"v_mul_f32 v{S}, v{S}, v{Q}")
        for d0 in range(0, 48, 4):
            for d in range(d0, d0 + 4):
                y = q(yreg(tt, d), 2)
                a(f"v_pk_fma_f32 {y}, {y}, {q(Q,2)}, {q(S,2)} op_sel_hi:[1,0,0]")
            for d in range(d0, d0 + 4):
                a(f"v_cvt_pk_bf16_f32 v{XN + 48*tt + d}, v{yreg(tt, d)}, v{yreg(tt, d) + 1}")
    a(f"s_cmp_lg_u32 s{sI}, 0")
    a("s_cbranch_scc1 K1_chk")
    if OPT["w1warm"]:
        a(f"s_lshr_b32 s{sT0}, s2, 3")
        a(f"s_lshl_b32 s{sT0}, s{sT0}, 3")
        a(f"s_add_u32 s{sT0}, s{sT0}, s{sWV}")
        a(f"s_mul_i32 s{sT0}, s{sT0}, 4608")
        a(f"v_and_b32 v{ACC}, 63, v0")
        a(f"v_min_u32 v{ACC}, 35, v{ACC}")
        a(f"v_lshlrev_b32 v{ACC}, 7, v{ACC}")
        a(f"s_mov_b32 m0, {L_DW + 2048}")
        a("s_waitcnt vmcnt(0)")
        a(f"buffer_load_dword v{ACC}, s[{sW1}:{sW1+3}], s{sT0} offen lds")
    a(f"v_readfirstlane_b32 s{sTK}, v{BB+8}")
    a("s_nop 3")
    a(f"s_cmp_lg_u32 s{sTK}, 0")
    a("s_cbranch_scc1 K1_flag")
    srd(a, 60, sWSlo, sWShi, NREP * 6144, SSQ)
    a(f"s_and_b32 s{sT0}, s2, {NREP - 1}")
    a(f"s_mul_i32 s{sT1}, s{sT0}, 6144")
    a(f"s_add_u32 s{sT2}, s{sT1}, 4096")
    for i in range(4): a(f"v_mov_b32 v{ACC+i}, 0")
    a(f"v_lshlrev_b32 v{ACC+4}, 4, v0")
    for k in range(6): a(f"buffer_store_dwordx4 {q(ACC)}, v{ACC+4}, s[60:63], s{(sT1, sT2)[k // 4]} offen offset:{(k % 4) * 1024} sc0 sc1")
    a(f"v_lshlrev_b32 v{ACC+5}, 8, v0")
    a(f"v_mov_b32 v{ACC+6}, 1")
    a(f"s_lshl_b32 s{sT0}, s{sT0}, 2")
    a("s_waitcnt vmcnt(0)")
    a(f"buffer_store_dword v{ACC+6}, v{ACC+5}, s[{sDB}:{sDB+3}], s{sT0} offen offset:64 sc0 sc1")
    a("s_branch K1_flag")
    a.label("K1_chk")
    a(f"v_readfirstlane_b32 s{sT1}, v{vFL+1}")
    a("s_nop 3")
    a(f"s_cmp_lg_u32 s{sT1}, 0")
    a("s_cbranch_scc1 K1_flag")
    a(f"v_mov_b32 v{vFL}, 0")
    a(f"buffer_load_dword v{vFL+1}, v{vFL}, s[{sDB}:{sDB+3}], s{sT2} offen offset:64 sc0 sc1")
    a("s_waitcnt vmcnt(0)")
    a("s_branch K1_chk")
    a.label("K1_flag")
    if OPT["w1warm"]:
        a(f"s_cmp_eq_u32 s{sI}, 0")
        a("s_cbranch_scc1 K1_fl2")
    a("s_waitcnt vmcnt(0)")
    a.label("K1_fl2")
    stamp2(a, 2, 5, sI)
    a("s_barrier")
    stamp2(a, 3, 6, sI)
    a.ext(head())
    a(f"s_cmp_eq_u32 s{sGRP}, 0")
    a("s_cbranch_scc1 K1_regA")
    a("s_barrier")
    a("s_branch K1_regB")

    def accr(ct, tt): return ACC + (((ct >> 1) * 3 + tt) * 2 + (ct & 1)) * 4
    NT = OPT["ntail"]
    def step(kind, grp):
        tag = kind + "AB"[grp]
        BG = OPT["bg"] if grp == 0 else OPT["bgb"]
        if kind == "tail":
            a.label(f"K1_pre{tag}")
            if OPT["npf"]:
                a("s_getpc_b64 s[60:61]")
                a.label(f"K1_pc{tag}")
                a(f"v_lshlrev_b32 v{TMP}, 7, v0")
                a(f"v_min_u32 v{TMP}, K3_end-K1_fin, v{TMP}")
                a(f"v_add_u32 v{TMP}, K1_fin-K1_pc{tag}, v{TMP}")
                a(f"v_mov_b32 v{TMP+3}, s61")
                a(f"v_add_co_u32 v{TMP+2}, vcc, s60, v{TMP}")
                a(f"s_mov_b32 m0, {L_DW + 2048}")
                a("s_nop 0")
                a(f"v_addc_co_u32 v{TMP+3}, vcc, 0, v{TMP+3}, vcc")
                a(f"global_load_lds_dword {q(TMP+2, 2)}, off")
        a(".p2align 6")
        a.label(f"K1_{tag}")
        a(f"s_setprio {OPT['pm']}")
        P = dma()
        misc = [[f"s_add_u32 s{sRDS}, s{sRDS}, 49152", f"s_cmp_eq_u32 s{sRDS}, 147456", f"s_cselect_b32 s{sRDS}, 0, s{sRDS}",
                 f"s_mul_i32 s{sST0}, s{sSIG}, {2 * CHUNK_H}", f"s_add_u32 s{sST0}, s{sST0}, s{sHB}"],
                [f"s_cmp_eq_u32 s{sSIG}, s{sDSP}", f"s_cselect_b32 s{sH}, s{sOUTlo}, s{sWSlo}", f"s_cselect_b32 s{sH+1}, s{sOUThi}, s{sWShi}",
                 f"s_cselect_b32 s{sST0}, s59, s{sST0}", f"s_mov_b32 s{sT1}, {XBYTES}", f"s_cselect_b32 s{sH+2}, s{sT1}, {TAIL}"],
                [f"s_add_u32 s{sST1}, s{sST0}, {CHUNK_H}", f"s_add_u32 s{sI}, s{sI}, 1"]]
        for g in range(12):
            a("s_waitcnt lgkmcnt(0)")
            k = 0
            ct = g // 3
            R = [x for j in range(4) for x in rd((g + 1) * 4 + j)] if g < 11 else []
            if len(R) == 9: R = [R[0] + "\n" + R[1]] + R[2:]
            for tt in range(3):
                for j in range(4):
                    i = g * 4 + j; ks = i % 12
                    c = "0" if ks == 0 else q(accr(ct, tt))
                    a(f"v_mfma_f32_16x16x32_bf16 {q(accr(ct, tt))}, {q(XN + 48*tt + 4*ks)}, {q(buf(i))}, {c}")
                    if k < len(R): a(R[k])
                    if k == 10 and g < len(misc): a.ext(misc[g])
                    if k == 9:
                        if g == BG and grp == 0:
                            if kind != "last" and not OPT["k1nv"] & 1: a("s_waitcnt vmcnt(6)")
                            a("s_barrier")
                        if BG < g <= BG + 6:
                            m = g - BG - 1
                            if kind == "pre":
                                if m == 0: a.ext([f"s_mov_b32 s{sCW}, s{sDSL}", f"s_mov_b32 s{sXB}, s{sXN}", f"s_add_u32 s{sCW2}, s{sDSL}, 49152",
                                                  f"s_cmp_ge_u32 s{sCW2}, 147456", f"s_cselect_b32 s{sCW2}, s{sD0}, s{sCW2}"])
                                if m % 2 == 0: a.ext(xdma(m // 2, OPT["xp_nt"]))
                            elif kind == "last":
                                if m % 2 == 0: a.ext(xdma(3 + m // 2, OPT["xp_nt"]))
                            else: a.ext(P[m])
                    k += 1
        a(f"s_setprio {OPT['pg0']}")
        if kind == "last": a.ext(xaddr())
        nb = 0
        for cp in range(2):
            for tt in range(3):
                b = ACC + (cp * 3 + tt) * 8
                a.ext(gelu_batch(b, TMP, SS + 2 * cp, tt == 0, sC0, sC0H))
                keep = kind == "regk" or (kind != "tail" and (OPT["stm"] >> (cp * 3 + tt)) & 1)
                a(f"buffer_store_dwordx4 {q(b)}, v{vST}, s[{sH}:{sH+3}], s{(sST0, sST1)[cp]} offen offset:{tt*1024}" + (" nt" if OPT["st_nt"] and not keep else ["", " sc1", " sc0 sc1", " sc0"][OPT["kf"]]))
                if kind == "last":
                    a(f"s_waitcnt vmcnt({13 + 3 * nb if nb < 3 else 11 + nb})")
                    a.ext(xread(nb))
                    a("s_waitcnt lgkmcnt(0)")
                    a.ext(xdma(nb + 6, OPT["xp_nt"]))
                nb += 1
                if nb == OPT["gb"] and grp == 1 and kind != "last":
                    if kind == "tail":
                        a(f"s_cmp_eq_u32 s{sI}, 36")
                        a(f"s_cbranch_scc1 K1_nogb")
                    if kind != "pre" and not OPT["k1nv"] & 2: a(f"s_waitcnt vmcnt({nb})")
                    a("s_barrier")
                    if kind == "tail": a.label("K1_nogb")
                if nb == OPT["gp"]: a(f"s_setprio {OPT['pg1']}")
                if nb == 5 and kind != "last": a.ext(head())
            if not OPT["sdot"]:
                a(f"v_permlane16_swap_b32 v{SS+2*cp}, v{SS+2*cp+1}")
                if cp == 0: a("s_nop 0")
                a(f"v_add_f32 v{SS+2*cp}, v{SS+2*cp}, v{SS+2*cp+1}")
        if OPT["sdot"]:
            for tt in range(3):
                for i in range(2):
                    for c in range(4):
                        p = ACC + ((c >> 1) * 3 + tt) * 8 + 2 * (c & 1) + i
                        a(f"v_dot2_f32_bf16 v{SS+c}, v{p}, v{p}, 0" if tt == 0 and i == 0 else (f"v_dot2_f32_bf16 v{SS+c}, v{p}, v{p}, v{SS+c}" if OPT["sdot"] == 1 else f"v_dot2c_f32_bf16 v{SS+c}, v{p}, v{p}"))
            a("s_nop 0")
            a(f"v_permlane16_swap_b32 v{SS}, v{SS+1}")
            a("s_nop 0")
            a(f"v_permlane16_swap_b32 v{SS+2}, v{SS+3}")
            a(f"v_add_f32 v{SS}, v{SS}, v{SS+1}")
            a(f"v_add_f32 v{SS+2}, v{SS+2}, v{SS+3}")
        a("s_nop 1")
        a(f"v_permlane32_swap_b32 v{SS}, v{SS+2}")
        a(f"v_add_f32 v{SS}, v{SS}, v{SS+2}")
        a(f"s_set_gpr_idx_on s{sSIG}, gpr_idx(SRC0,DST)")
        a(f"s_add_u32 s{sSIG}, s{sSIG}, 1")
        a(f"v_add_f32 v{SQ}, v{SQ}, v{SS}")
        a("s_set_gpr_idx_off")
        a(f"s_cmp_eq_u32 s{sSIG}, s{sSHI}")
        a(f"s_cselect_b32 s{sSIG}, s{sSLO}, s{sSIG}")
        if kind in ("reg", "regk"):
            g_ = "AB"[grp]
            if OPT["kmask"]:
                a(f"s_cmp_eq_u32 s{sI}, s{sEND}")
                a(f"s_cbranch_scc1 K1_out{g_}")
                a(f"s_bitcmp1_b32 s{sKM}, s{sSIG}")
                a(f"s_cbranch_scc{int(kind == 'regk')} K1_{tag}")
                if kind == "reg": a(f"s_branch K1_regk{g_}")
            else:
                a(f"s_cmp_lg_u32 s{sI}, s{sEND}")
                a(f"s_cbranch_scc1 K1_{tag}")
            if kind == "reg":
                a.label(f"K1_out{g_}")
                a(f"s_cmp_eq_u32 s{sI}, {36 - NT}")
                a(f"s_cbranch_scc1 K1_pretail{g_}")
        elif kind == "pre":
            pass
        elif kind == "last":
            a("s_branch K1_sw")
        else:
            a(f"s_cmp_lg_u32 s{sI}, 36")
            a(f"s_cbranch_scc1 K1_{tag}")
            a("s_branch K1_fin")
    for grp in range(2):
        for kind in (("regk",) if OPT["kmask"] else ()) + ("reg", "pre", "last", "tail"): step(kind, grp)
    a.label("K1_sw")
    a("s_setprio 0")
    a("s_mov_b64 vcc, -1")
    stamp(a, 4)
    a(f"s_mov_b32 s{sEND}, {36 - NT}")
    a(f"s_mov_b32 s{sSLO}, s{sSLN}")
    a(f"s_mov_b32 s{sSHI}, s{sSHN}")
    a(f"s_add_u32 s{sSIG}, s{sSLO}, s{sSG0}")
    a(f"s_mov_b32 s{sHB}, s{sHN}")
    a(f"s_mov_b32 s{sDSP}, s{sDSN}")
    a(f"s_and_b32 s{sT2}, s2, {NREP - 1}")
    a(f"s_lshl_b32 s{sT2}, s{sT2}, 2")
    a("s_waitcnt lgkmcnt(0)")
    a(f"v_mov_b32 v{vFL}, 0")
    a(f"buffer_load_dword v{vFL+1}, v{vFL}, s[{sDB}:{sDB+3}], s{sT2} offen offset:64 sc0 sc1")
    if OPT["w2pf"]:
        a("s_load_dwordx2 s[60:61], s[0:1], 24")
        a(f"s_mov_b32 s62, {C * F * 2}")
        a("s_mov_b32 s63, 0x00020000")
        a(f"s_mul_i32 s{sT0}, s2, 4608")
        a(f"v_lshlrev_b32 v{BB+10}, 7, v0")
        a(f"v_min_u32 v{BB+10}, 4480, v{BB+10}")
        a("s_waitcnt lgkmcnt(0)")
        a(f"s_cmp_lg_u32 s{sWV}, 0")
        a("s_cbranch_scc1 K1_ln")
        a(f"buffer_load_dword v{BB+11}, v{BB+10}, s[60:63], s{sT0} offen")
    a("s_branch K1_ln")
    a.label("K1_fin")
    a("s_setprio 0")
    stamp(a, 7)
    a(f"s_and_b32 s{sT0}, s2, {NREP - 1}")
    a(f"s_waitcnt vmcnt(6) lgkmcnt(0)")
    a("s_barrier")
    a("v_and_b32 v1, 63, v0")
    a("v_lshlrev_b32 v1, 2, v1")
    a(f"v_add_u32 v1, s{sD0}, v1")
    for k in range(24): a(f"ds_write_b32 v1, v{SQ+k} offset:{k*256}")
    a("v_lshlrev_b32 v1, 2, v0")
    a("s_waitcnt lgkmcnt(0)")
    a("s_barrier")
    for k in range(3):
        for w in range(8): a(f"ds_read_b32 v{XN+8*k+w}, v1 offset:{w*6144 + k*2048}")
    srd(a, 60, sWSlo, sWShi, NREP * 6144, SSQ)
    a(f"s_mul_i32 s{sT0}, s{sT0}, 6144")
    a(f"s_add_u32 s{sT1}, s{sT0}, 4096")
    a("s_waitcnt lgkmcnt(0)")
    for st in (4, 2, 1):
        for k in range(3):
            for w in range(st): a(f"v_add_f32 v{XN+8*k+w}, v{XN+8*k+w}, v{XN+8*k+w+st}")
    a(f"buffer_atomic_add_f32 v{XN}, v1, s[60:63], s{sT0} offen")
    a(f"buffer_atomic_add_f32 v{XN+8}, v1, s[60:63], s{sT0} offen offset:2048")
    a(f"buffer_atomic_add_f32 v{XN+16}, v1, s[60:63], s{sT1} offen")
    if OPT["stamp"]: a("s_waitcnt vmcnt(0)")
    stamp(a, 8)
    stamp_dump(a, 9, sWV, "K1", 0)
    a.label("K1_end")
    a("s_endpgm")
    return a, desc("gemm1_kernel", 256, 100), f"; @launch kernel=gemm1_kernel grid=(256,1,1) block=(512,1,1) lds={L_DW + 4096}"

T1B = 46 * CHUNK_H; T2B = 94 * CHUNK_H
def k3r():
    REG = 3 * 192 * 768
    a = Asm()
    ACC = 16; HB = 160; WB = 184; SEL = 208; BIAS = 216; XT = 240
    vD0, vWR, vHR0, vHR1, vXR, vOUT, vWB0, vHB0, vHB1 = 1, 4, 5, 6, 7, 8, 9, 10, 11
    L_H = 73728; L_X = 147456
    sD, sO = 8, 12
    (sWV, sTH, sCQ, sSrc, sDst, sSlot, sDLo, sDEnd, sT0, sT1, sWS, sHS, sPASS, sOB, sEV, sT2, sJd, sLag, sSrc3, sSrcL, sSrcL3, sLim, sHalf, sDP, sHlo, sHhi) = range(30, 56)
    STG = OPT["stg"]; NB = (5 * STG + 1 + 3) // 4 * 4
    kernel_start(a, "gemm2_kernel")
    a("s_cmp_ge_u32 s2, 256")
    a("s_cbranch_scc1 K3_end")
    stamp(a, 0)
    a("s_load_dwordx2 s[4:5], s[0:1], 0")
    a("s_load_dwordx2 s[6:7], s[0:1], 48")
    a("s_load_dwordx2 s[24:25], s[0:1], 64")
    code_prefetch(a, "gemm2_kernel", "K3_end", 100, 60)
    a("v_lshrrev_b32 v16, 6, v0")
    a("v_and_b32 v17, 63, v0")
    a(f"v_readfirstlane_b32 s{sWV}, v16")
    a(f"v_lshlrev_b32 v{vD0}, 4, v17")
    a(f"v_add_u32 v{vD0+1}, 1024, v{vD0}")
    a(f"v_add_u32 v{vD0+2}, 2048, v{vD0}")
    a("v_and_b32 v18, 15, v17")
    a("v_lshrrev_b32 v19, 4, v17")
    a("v_mul_u32_u24 v20, 24, v18")
    a(f"s_lshr_b32 s{sTH}, s{sWV}, 2")
    a(f"s_and_b32 s{sCQ}, s{sWV}, 3")
    a(f"s_mov_b32 s{sD+3}, 0x00020000")
    a(f"s_mov_b32 s{sO+3}, 0x00020000")
    a(f"s_mov_b32 s{sO+2}, 0")
    a(f"s_mul_i32 s{sT0}, s2, {REG}")
    a(f"s_and_b32 s{sHalf}, s{sWV}, 1")
    a(f"s_mul_i32 s{sHalf}, s{sHalf}, 6144")
    a(f"s_mul_i32 s{sT1}, s2, {HSTRIDE}")
    a(f"s_mov_b32 s{sJd}, 0")
    a(f"s_mov_b32 s{sLag}, 0")
    a(f"s_mov_b32 s{sDP}, 0")
    a(f"s_mov_b32 s{sSrc}, s{sHalf}")
    a("s_waitcnt lgkmcnt(0)")
    a(f"s_add_u32 s{sO}, s6, s{sT0}")
    a(f"s_addc_u32 s{sO+1}, s7, 0")
    a(f"s_add_u32 s{sHlo}, s24, s{sT1}")
    a(f"s_addc_u32 s{sHhi}, s25, 0")
    srd(a, 16, 24, 25, 1536 * NBP, B2)
    a(f"s_mul_i32 s{sT1}, s{sCQ}, 384")
    for p in range(NBP):
        a(f"buffer_load_dwordx3 {q(24 + 8*p, 3)}, v20, s[16:19], s{sT1} offen")
        a(f"buffer_load_dwordx3 {q(28 + 8*p, 3)}, v20, s[16:19], s{sT1} offen offset:12")
        if p < NBP - 1: a(f"s_add_u32 s{sT1}, s{sT1}, 1536")

    nt = " nt" if OPT["h_nt"] else ""
    def pieces_w():
        P = []
        for k in range(6):
            pre = [f"s_mov_b32 m0, s{sDst}", f"s_add_u32 s{sT2}, s{sSrc}, 3072"] if k == 0 else ["s_add_u32 m0, m0, 1024", "s_nop 0"]
            P.append(pre + [f"buffer_load_dwordx4 v{vD0 + k % 3}, s[{sD}:{sD+3}], s{sSrc if k < 3 else sT2} offen lds"])
        P[5] += [f"s_add_u32 s{sDst}, s{sDst}, 24576", f"s_cmp_eq_u32 s{sDst}, s{sDEnd}", f"s_cselect_b32 s{sDst}, s{sDLo}, s{sDst}",
                 f"s_add_u32 s{sSrc}, s{sSrc}, 24576", f"s_cmp_ge_u32 s{sSrc}, 1179648", f"s_cselect_b32 s{sSrc}, s{sDLo}, s{sSrc}"]
        return P
    uid = [0]
    def pieces_h():
        P = []
        for k in range(6):
            if k == 0:
                P.append([f"s_mov_b32 m0, s{sDst}", f"s_add_u32 s{sSrc3}, s{sSrc}, 3072",
                          f"buffer_load_dwordx4 v{vD0}, s[{sD}:{sD+3}], s{sSrc} offen{nt} lds",
                          f"s_sub_u32 s{sSrcL}, s{sSrc}, s{sLag}", f"s_sub_u32 s{sSrcL3}, s{sSrc3}, s{sLag}"])
            else:
                P.append(["s_add_u32 m0, m0, 1024", f"s_cmp_lt_u32 s{sJd}, {STG * k}",
                          f"s_cselect_b32 s{sT2}, s{sSrcL if k < 3 else sSrcL3}, s{sSrc if k < 3 else sSrc3}",
                          f"buffer_load_dwordx4 v{vD0 + k % 3}, s[{sD}:{sD+3}], s{sT2} offen{nt} lds"])
        uid[0] += 1; u = uid[0]
        P[5] += [f"s_add_u32 s{sDst}, s{sDst}, s{sSlot}", f"s_cmp_eq_u32 s{sDst}, s{sDEnd}", f"s_cselect_b32 s{sDst}, s{sDLo}, s{sDst}",
                 f"s_add_u32 s{sSrc}, s{sSrc}, 12288", f"s_cmp_ge_u32 s{sSrc}, s{sLim}", f"s_cselect_b32 s{sD+2}, 0, s{sD+2}",
                 f"s_add_u32 s{sJd}, s{sJd}, 1", f"s_cmp_lt_u32 s{sJd}, 46", f"s_cbranch_scc1 K3_av{u}",
                 f"s_add_u32 s{sT2}, s{sJd}, s{sDP}", f"s_cmp_lg_u32 s{sT2}, 46", f"s_cbranch_scc1 K3_aw{u}",
                 f"s_mov_b32 s{sD}, s{sO}", f"s_mov_b32 s{sD+1}, s{sO+1}", f"s_mov_b32 s{sD+2}, {REG}", f"s_add_u32 s{sSrc}, s{sHalf}, {2 * 192 * 768}",
                 f"K3_aw{u}:", f"s_cmp_lg_u32 s{sJd}, 48", f"s_cbranch_scc1 K3_av{u}",
                 f"s_mov_b32 s{sJd}, 0", f"s_mov_b32 s{sLag}, {48 * CHUNK_H}", f"s_cmp_lg_u32 s{sDP}, 0", f"s_cbranch_scc1 K3_av{u}",
                 f"s_mov_b32 s{sDP}, 100", f"s_mov_b32 s{sLag}, {46 * CHUNK_H}", f"s_mov_b32 s{sD}, s{sHlo}", f"s_mov_b32 s{sD+1}, s{sHhi}",
                 f"s_mov_b32 s{sD+2}, {HSTRIDE}", f"s_add_u32 s{sSrc}, s{sHalf}, {T1B}",
                 f"K3_av{u}:"]
        return P

    a(f"s_cmp_lt_u32 s{sWV}, 4")
    a("s_cbranch_scc1 K3_rw")
    a(f"s_cmp_ge_u32 s{sWV}, 6")
    a("s_cbranch_scc1 K3_rx")
    a(f"s_mov_b32 s{sD}, s{sHlo}")
    a(f"s_mov_b32 s{sD+1}, s{sHhi}")
    a(f"s_mov_b32 s{sD+2}, {HSTRIDE}")
    a(f"s_add_u32 s{sDLo}, s{sHalf}, {L_H}")
    a(f"s_mov_b32 s{sDst}, s{sDLo}")
    a(f"s_add_u32 s{sDEnd}, s{sDLo}, 73728")
    a(f"s_mov_b32 s{sSlot}, {CHUNK_H}")
    a(f"s_mov_b32 s{sLim}, -1")
    a(f"s_mov_b32 s{sT1}, 5")
    a.label("K3_hpro")
    for p in pieces_h(): a.ext(p)
    a(f"s_sub_u32 s{sT1}, s{sT1}, 1")
    a(f"s_cmp_lg_u32 s{sT1}, 0")
    a("s_cbranch_scc1 K3_hpro")
    a("s_mov_b64 s[56:57], 0")
    a("s_branch K3_rdone")
    a.label("K3_rx")
    a(f"s_add_u32 s{sD}, s4, s{sT0}")
    a(f"s_addc_u32 s{sD+1}, s5, 0")
    a(f"s_mov_b32 s{sD+2}, {REG}")
    for m in range(3):
        v = vD0 + m
        a(f"v_mul_u32_u24 v20, 43691, v{v}")
        a("v_lshrrev_b32 v20, 25, v20")
        a("v_mul_u32_u24 v21, 864, v20")
        a(f"v_sub_u32 v21, v{v}, v21")
        a("v_add_u32 v22, 768, v21")
        a("v_cmp_gt_i32 vcc, 0, v21")
        a("v_mul_u32_u24 v20, 768, v20")
        a("s_nop 0")
        a("v_cndmask_b32 v21, v21, v22, vcc")
        a(f"v_add_u32 v{v}, v20, v21")
    a(f"s_add_u32 s{sDLo}, s{sHalf}, {L_X}")
    a(f"s_mov_b32 s{sDEnd}, 0")
    a(f"s_mov_b32 s{sSlot}, 0")
    a(f"s_mov_b32 s{sDst}, s{sDLo}")
    a(f"s_mov_b32 s{sLim}, {REG}")
    a("s_mov_b64 s[56:57], -1")
    a("s_branch K3_rdone")
    a.label("K3_rw")
    a(f"s_add_u32 s{sD}, s24, {W2F}")
    a(f"s_addc_u32 s{sD+1}, s25, 0")
    a(f"s_mov_b32 s{sD+2}, 1179648")
    a(f"s_mul_i32 s{sDLo}, s{sCQ}, 6144")
    a(f"s_add_u32 s{sDEnd}, s{sDLo}, 73728")
    a(f"s_mov_b32 s{sDst}, s{sDLo}")
    a(f"s_mov_b32 s{sSrc}, s{sDLo}")
    for _ in range(2):
        for p in pieces_w(): a.ext(p)
    a("s_mov_b64 s[56:57], 0")
    a.label("K3_rdone")
    a(f"v_mul_u32_u24 v{vOUT}, 3072, v19")
    a("v_mul_u32_u24 v21, 12, v18")
    a(f"s_mul_i32 s{sT0}, s{sTH}, {96 * 768}")
    a(f"s_mul_i32 s{sT1}, s{sCQ}, 192")
    a(f"s_add_u32 s{sT0}, s{sT0}, s{sT1}")
    a(f"v_add3_u32 v{vOUT}, v{vOUT}, v21, s{sT0}")
    a(f"s_mul_i32 s{sT0}, s{sCQ}, 6144")
    a(f"v_lshl_add_u32 v{vWB0}, v17, 4, s{sT0}")
    a("v_and_b32 v21, 3, v18")
    a("v_lshrrev_b32 v22, 2, v18")
    a("v_and_b32 v23, 2, v19")
    a("v_xor_b32 v23, v23, v21")
    a("v_lshl_add_u32 v22, v23, 2, v22")
    a("v_lshl_add_u32 v22, v21, 4, v22")
    a("v_lshlrev_b32 v22, 4, v22")
    a("v_and_b32 v23, 1, v19")
    a("v_lshl_add_u32 v22, v23, 3, v22")
    a(f"s_mul_i32 s{sT0}, s{sTH}, 6144")
    a(f"s_add_u32 s{sT0}, s{sT0}, {L_H}")
    a(f"v_add_u32 v{vHB0}, s{sT0}, v22")
    a(f"v_xor_b32 v{vHB1}, 64, v{vHB0}")
    a(f"s_lshl_b32 s{sT0}, s{sCQ}, 2")
    a("v_lshl_add_u32 v22, v21, 1, v19")
    a(f"v_add_u32 v22, s{sT0}, v22")
    a("v_and_b32 v22, 15, v22")
    a("v_mul_u32_u24 v22, 48, v22")
    a("v_mul_u32_u24 v23, 768, v18")
    a(f"v_add_u32 v22, {L_X}, v22")
    a(f"v_add_u32 v{vXR}, v22, v23")
    a("v_lshrrev_b32 v22, 2, v18")
    a("v_cmp_eq_u32 vcc, v22, v19")
    a("v_mov_b32 v23, 0x3f80")
    a("s_nop 0")
    a("v_cndmask_b32 v23, 0, v23, vcc")
    for e in range(4):
        a(f"v_cmp_eq_u32 vcc, {e}, v21")
        a("s_nop 1")
        a(f"v_cndmask_b32 v{SEL+e}, 0, v23, vcc")
        a(f"v_lshlrev_b32 v{SEL+4+e}, 16, v{SEL+e}")
    a("s_mov_b64 vcc, s[56:57]")
    a(f"s_mov_b32 s{sWS}, 0")
    a(f"s_mov_b32 s{sHS}, 0")
    a(f"s_mov_b32 s{sPASS}, 0")
    a(f"s_mov_b32 s{sOB}, 0")
    a("s_waitcnt vmcnt(24)")
    a(f"s_cmp_eq_u32 s{sSlot}, {CHUNK_H}" if False else f"s_sub_u32 s{sT0}, s{sWV}, 4")
    a(f"s_cmp_lt_u32 s{sT0}, 2")
    a("s_cbranch_scc1 K3_pw")
    a("s_waitcnt vmcnt(6)")
    a("s_cbranch_vccz K3_pw")
    a("s_waitcnt vmcnt(0)")
    a.label("K3_pw")
    for p in range(1, NBP):
        for n in range(6):
            src = 24 + n if n < 3 else 25 + n
            a(f"v_add_f32 v{src}, v{src}, v{src + 8*p}")
    for n in range(6):
        src = 24 + n if n < 3 else 25 + n
        for r in range(4): a(f"v_mov_b32 v{BIAS+4*n+r}, v{src}")
    stamp(a, 1)

    def accr(n, t): return ACC + (t * 6 + n) * 4
    ofl = ["", " nt", " sc1", " sc0 sc1", " sc0"][OPT["out_nt"]]
    def mini(t):
        L = [f"s_add_u32 s{sT1}, s{sOB}, {t * 12288}"]
        for r in range(4):
            tq = XT + 4 * r if STG % 2 == 0 else (12, 252)[r % 2]
            for j in range(3): L.append(f"v_cvt_pk_bf16_f32 v{tq+j}, v{accr(2*j, t)+r}, v{accr(2*j+1, t)+r}")
            if not OPT["k3nost"]: L.append(f"buffer_store_dwordx3 {q(tq, 3)}, v{vOUT}, s[{sO}:{sO+3}], s{sT1} offen offset:{r*768}" + ofl)
        return L
    def step(grp, u, bnd):
        u4 = u % 4; tag = f"{grp}{'b' if bnd else 'l'}{u}"
        L = [f"v_add_u32 v{vWR}, s{sWS}, v{vWB0}", f"v_add_u32 v{vHR0}, s{sHS}, v{vHB0}", f"v_add_u32 v{vHR1}, s{sHS}, v{vHB1}"]
        R = []
        for t in range(6):
            R.append(f"ds_read_b128 {q(WB + 4*t)}, v{vWR} offset:{t*1024}")
            R.append(f"ds_read_b64_tr_b16 {q(HB + 4*t, 2)}, v{vHR0} offset:{t*1024}")
            R.append(f"ds_read_b64_tr_b16 {q(HB + 4*t + 2, 2)}, v{vHR1} offset:{t*1024}")
        P = pieces_w() if grp == 0 else pieces_h()
        def gd(X, z): return X if grp == 0 or u4 == 0 else [f"s_cbranch_vccnz K3_s{tag}{z}"] + X + [f"K3_s{tag}{z}:"]
        L += gd(P[0], "a") + R[:6] + gd(P[1], "b") + R[6:12] + gd(P[2], "c") + R[12:]
        if u4 == 3:
            L += [f"s_sub_u32 s{sT0}, s{sEV}, {6*grp}", f"s_cmp_lt_u32 s{sT0}, 6", f"s_cbranch_scc0 K3_xr{tag}"]
            for p in range(3):
                L.append(f"ds_read2_b32 {q(XT + 4*p, 2)}, v{vXR} offset0:{p} offset1:{p+3}")
                L.append(f"ds_read2_b32 {q(XT + 4*p + 2, 2)}, v{vXR} offset0:{p+6} offset1:{p+9}")
            L.append(f"K3_xr{tag}:")
        L += gd(P[3] + P[4] + P[5], "d")
        L += [f"s_add_u32 s{sWS}, s{sWS}, 24576", f"s_cmp_eq_u32 s{sWS}, 73728", f"s_cselect_b32 s{sWS}, 0, s{sWS}",
              f"s_add_u32 s{sHS}, s{sHS}, 12288", f"s_cmp_eq_u32 s{sHS}, 73728", f"s_cselect_b32 s{sHS}, 0, s{sHS}"]
        tb = u // STG if bnd and u % STG == 0 and u // STG < 6 else None
        def nst(back):
            if not bnd or OPT["k3nost"]: return 0
            return 4 * sum(1 for w in range(max(0, u - back), u + 1 - grp) if w % STG == 0 and w // STG < 6)
        if tb == 5:
            a(f"s_cmp_eq_u32 s{sPASS}, 3")
            a("s_cbranch_scc1 K3_fin")
        a.ext(L)
        if grp == 0:
            a("s_waitcnt lgkmcnt(0)")
            a(f"s_setprio {OPT['k3pa']}")
        else:
            if u4 == 2:
                a(f"s_cbranch_vccz K3_nx{tag}")
                a(f"s_waitcnt vmcnt({nst(2)})")
                a.label(f"K3_nx{tag}")
            a(f"s_waitcnt vmcnt({24 + nst(4)}) lgkmcnt(0)")
            a("s_barrier")
            a(f"s_setprio {OPT['k3pb']}")
        if u4 == 3:
            a(f"s_cmp_lt_u32 s{sT0}, 6")
            a(f"s_cbranch_scc0 K3_xd{tag}")
            ts = range(6) if not bnd else [t for t in range(6) if t + 6 * grp == u // 4]
            for t in ts:
                if t != ts[-1]:
                    a(f"s_cmp_lg_u32 s{sT0}, {t}")
                    a(f"s_cbranch_scc1 K3_x{tag}_{t+1}")
                for n in range(6):
                    a(f"v_mfma_f32_16x16x32_bf16 {q(accr(n, t))}, {q(XT + 4*(n >> 1))}, {q(SEL + 4*(n & 1))}, {q(accr(n, t))}")
                if t != ts[-1]:
                    a(f"s_branch K3_xd{tag}")
                    a.label(f"K3_x{tag}_{t+1}")
            a.label(f"K3_xd{tag}")
            a(f"s_add_u32 s{sEV}, s{sEV}, 1")
        def mf(t): return [f"v_mfma_f32_16x16x32_bf16 {q(accr(n, t))}, {q(HB + 4*t)}, {q(WB + 4*n)}, {q(BIAS + 4*n) if t == tb else q(accr(n, t))}" for n in range(6)]
        bar = [f"s_waitcnt vmcnt({6 + nst(1)})", "s_barrier"] if grp == 0 else []
        ns = u // STG + 1 if bnd else 6
        def full():
            order = [t for t in range(6) if t != tb] + ([tb] if tb is not None else [])
            Ms = [[x] for t in order for x in mf(t)]
            if tb is not None:
                E = mini(tb)
                pos = OPT["mp0"]
                for x in E:
                    Ms[pos].append(x)
                    if not x.startswith("s_"): pos += 1
                    if x.startswith("buffer"): pos += OPT["mpd"]
                assert pos <= 29
            e = OPT["k3eb"] if grp == 0 else 0
            Ms[35 - e] += (["s_setprio 3"] if e else []) + bar
            a.ext([x for m in Ms for x in m])
        if ns >= 6:
            full()
        else:
            a(f"s_sub_u32 s{sT2}, s{sPASS}, 1")
            a(f"s_cmp_lt_u32 s{sT2}, 2")
            a(f"s_cbranch_scc0 K3_m0{tag}")
            full()
            a(f"s_branch K3_m3{tag}")
            a.label(f"K3_m0{tag}")
            if tb is not None: a.ext(mini(tb))
            a(f"s_cmp_eq_u32 s{sPASS}, 3")
            a(f"s_cbranch_scc1 K3_m1{tag}")
            for t in range(ns): a.ext(mf(t))
            a(f"s_branch K3_m2{tag}")
            a.label(f"K3_m1{tag}")
            for t in range(ns, 6): a.ext(mf(t))
            a.label(f"K3_m2{tag}")
            a.ext(bar)
            a.label(f"K3_m3{tag}")
        a("s_setprio 0")

    a("s_barrier")
    a(f"s_cmp_lg_u32 s{sTH}, 0")
    a("s_cbranch_scc1 K3_1_tile")
    for grp in range(2):
        a.label(f"K3_{grp}_tile")
        a(f"s_cmp_eq_u32 s{sPASS}, 3")
        a(f"s_cselect_b32 s{sEV}, 100, 0")
        for u in range(NB): step(grp, u, True)
        if OPT["stamp"]: stamp2(a, 2, 4, sPASS)
        a(".p2align 6")
        a.label(f"K3_{grp}_loop")
        for u in range(4): step(grp, u, False)
        a(f"s_cmp_lg_u32 s{sEV}, 12")
        a(f"s_cbranch_scc1 K3_{grp}_loop")
        if OPT["stamp"]: stamp2(a, 3, 5, sPASS)
        a(f"s_mul_i32 s{sOB}, s{sPASS}, {192 * 768}")
        a(f"s_add_u32 s{sPASS}, s{sPASS}, 1")
        a(f"s_mov_b32 s{sO+2}, {REG}")
        a(f"s_branch K3_{grp}_tile")
    a.label("K3_fin")
    stamp(a, 6)
    a("s_nop 7")
    a.ext(mini(5))
    if OPT["stamp"]: a("s_waitcnt vmcnt(0)")
    stamp(a, 7)
    stamp_dump(a, 8, sWV, "K3", 1)
    a.label("K3_end")
    a("s_endpgm")
    return a, desc("gemm2_kernel", 256, 100), f"; @launch kernel=gemm2_kernel grid=(256,1,1) block=(512,1,1) lds={L_X + 12288}"

def k3():
    a = Asm()
    ACC = 16; HB = 160; WB = 184; SEL = 208; BIAS = 216; XT = 240
    KC = OPT['k3c']
    if KC: WB = 208; SEL = 232
    HL = OPT["k3sw"] >> 1 & 1
    HV = 24 - OPT["k3he"] - 6 * HL
    BV = [12, 13, 14, 15, 252, 253]
    vD0, vWR, vHR0, vHR1, vXR, vOUT, vWB0, vHB0, vHB1 = 1, 4, 5, 6, 7, 8, 9, 10, 11
    L_H = 73728; L_X = 147456
    sD, sO = 8, 12
    (sWV, sTH, sCQ, sSrc, sDst, sSlot, sDLo, sDEnd, sLeft, sT0, sT1, sWS, sHS, sJ, sOB, sEV, sNR, sT2, sFIRST) = range(30, 49)
    REG = 3 * 192 * 768
    kernel_start(a, "gemm2_kernel")
    a("s_cmp_ge_u32 s2, 256")
    a("s_cbranch_scc1 K3_end")
    stamp(a, 0)
    a("s_load_dwordx2 s[4:5], s[0:1], 0")
    a("s_load_dwordx2 s[6:7], s[0:1], 48")
    a("s_load_dwordx2 s[24:25], s[0:1], 64")
    code_prefetch(a, "gemm2_kernel", "K3_end", 100, 60)
    a("v_lshrrev_b32 v16, 6, v0")
    a("v_and_b32 v17, 63, v0")
    a(f"v_readfirstlane_b32 s{sWV}, v16")
    a(f"v_lshlrev_b32 v{vD0}, 4, v17")
    a(f"v_add_u32 v{vD0+1}, 1024, v{vD0}")
    a(f"v_add_u32 v{vD0+2}, 2048, v{vD0}")
    a("v_and_b32 v18, 15, v17")
    a("v_lshrrev_b32 v19, 4, v17")
    a(f"s_lshr_b32 s{sT0}, s2, 4")
    a(f"s_lshl_b32 s{sT0}, s{sT0}, 4")
    a(f"s_and_b32 s{sT1}, s2, 7")
    a(f"s_lshl_b32 s{sT1}, s{sT1}, 1")
    a(f"s_add_u32 s{sT0}, s{sT0}, s{sT1}")
    a(f"s_bfe_u32 s{sT1}, s2, 0x10003")
    a(f"s_add_u32 s3, s{sT0}, s{sT1}")
    a(f"s_lshr_b32 s{sTH}, s{sWV}, 2")
    a(f"s_and_b32 s{sCQ}, s{sWV}, 3")
    a(f"s_mov_b32 s{sD+3}, 0x00020000")
    a(f"s_mov_b32 s{sO+3}, 0x00020000")
    a(f"s_mov_b32 s{sO+2}, {REG}")
    a(f"s_mul_i32 s{sT0}, s3, {REG}")
    a(f"s_and_b32 s{sT1}, s{sWV}, 1")
    a(f"s_mul_i32 s{sT1}, s{sT1}, 6144")
    a("s_waitcnt lgkmcnt(0)")
    a(f"s_add_u32 s{sO}, s6, s{sT0}")
    a(f"s_addc_u32 s{sO+1}, s7, 0")

    srd(a, 16, 24, 25, 1536 * NBP, B2)
    a("v_mul_u32_u24 v20, 24, v18")
    a(f"s_mul_i32 s{sT2}, s{sCQ}, 384")
    for p in range(NBP):
        a(f"buffer_load_dwordx3 {q(24 + 8*p, 3)}, v20, s[16:19], s{sT2} offen")
        a(f"buffer_load_dwordx3 {q(28 + 8*p, 3)}, v20, s[16:19], s{sT2} offen offset:12")
        if p < NBP - 1: a(f"s_add_u32 s{sT2}, s{sT2}, 1536")

    def pieces(srd_, sfx=""):
        P = []
        for k in range(6):
            if k == 0: pre = [f"s_mov_b32 m0, s{sDst}", f"s_add_u32 s{sT2}, s{sSrc}, 3072"]
            else: pre = ["s_add_u32 m0, m0, 1024", "s_nop 0"]
            so = sSrc if k < 3 else sT2
            P.append(pre + [f"buffer_load_dwordx4 v{vD0 + k % 3}, s[{srd_}:{srd_+3}], s{so} offen{sfx} lds"])
        return P
    def advance_w():
        return [f"s_add_u32 s{sDst}, s{sDst}, 24576", f"s_cmp_eq_u32 s{sDst}, s{sDEnd}", f"s_cselect_b32 s{sDst}, s{sDLo}, s{sDst}",
                f"s_sub_u32 s{sSrc}, s{sSrc}, 24576", f"s_cselect_b32 s{sT2}, 1179648, 0", f"s_add_u32 s{sSrc}, s{sSrc}, s{sT2}"]
    def advance_h():
        return [f"s_add_u32 s{sDst}, s{sDst}, s{sSlot}", f"s_cmp_eq_u32 s{sDst}, s{sDEnd}", f"s_cselect_b32 s{sDst}, s{sDLo}, s{sDst}",
                f"s_sub_u32 s{sSrc}, s{sSrc}, 12288", f"s_cselect_b32 s{sD+2}, 0, s{sD+2}", f"s_cselect_b32 s{sSrc}, 0, s{sSrc}"]
    nt = " nt" if OPT["h_nt"] else ""
    wnt = " nt" if OPT["w_nt"] else ""

    a(f"s_cmp_lt_u32 s{sWV}, 4")
    a("s_cbranch_scc1 K3_rw")
    a(f"s_cmp_ge_u32 s{sWV}, 6")
    a("s_cbranch_scc1 K3_rx")
    a(f"s_add_u32 s{sDLo}, s{sT1}, {L_H}")
    a(f"s_mov_b32 s{sDst}, s{sDLo}")
    a(f"s_add_u32 s{sSrc}, s{sT1}, {CHUNK_H}")
    for p in pieces(sO, nt): a.ext(p)
    a(f"s_add_u32 s{sDst}, s{sDst}, {CHUNK_H}")
    a(f"s_mov_b32 s{sSrc}, s{sT1}")
    for p in pieces(sO, nt): a.ext(p)
    a(f"s_mul_i32 s{sT0}, s3, {HSTRIDE}")
    a(f"s_add_u32 s{sD}, s24, s{sT0}")
    a(f"s_addc_u32 s{sD+1}, s25, 0")
    a(f"s_mov_b32 s{sD+2}, {0 if OPT['k3noh'] else HSTRIDE}")
    a(f"s_add_u32 s{sDEnd}, s{sDLo}, 73728")
    a(f"s_mov_b32 s{sSlot}, {CHUNK_H}")
    a(f"s_add_u32 s{sDst}, s{sDst}, {CHUNK_H}")
    a(f"s_add_u32 s{sSrc}, s{sT1}, {HSTRIDE - CHUNK_H}")
    for _ in range(3 - HL if OPT["k3bl"] else 4):
        for p in pieces(sD, nt): a.ext(p)
        a.ext(advance_h())
    for p in pieces(sD, nt)[:6 - OPT["k3he"]]: a.ext(p)
    a("s_mov_b64 vcc, 0")
    a("s_branch K3_rdone")
    a.label("K3_rx")
    a(f"s_add_u32 s{sD}, s4, s{sT0}")
    a(f"s_addc_u32 s{sD+1}, s5, 0")
    a(f"s_mov_b32 s{sD+2}, {0 if OPT['k3nox'] else REG}")
    for m in range(3):
        v = vD0 + m
        a(f"v_mul_u32_u24 v20, 43691, v{v}")
        a("v_lshrrev_b32 v20, 25, v20")
        a("v_mul_u32_u24 v21, 864, v20")
        a(f"v_sub_u32 v21, v{v}, v21")
        a("v_add_u32 v22, 768, v21")
        a("v_cmp_gt_i32 vcc, 0, v21")
        a("v_mul_u32_u24 v20, 768, v20")
        a("s_nop 0")
        a("v_cndmask_b32 v21, v21, v22, vcc")
        a(f"v_add_u32 v{v}, v20, v21")
    a(f"s_add_u32 s{sDLo}, s{sT1}, {L_X}")
    a(f"s_mov_b32 s{sDEnd}, 0")
    a(f"s_mov_b32 s{sSlot}, 0")
    a(f"s_mov_b32 s{sDst}, s{sDLo}")
    a(f"s_add_u32 s{sSrc}, s{sT1}, {35 * 12288}")
    if OPT["wwarm"]:
        srd(a, 60, 24, 25, 1179648, W2F)
        a(f"s_lshr_b32 s{sT2}, s2, 3")
        a(f"s_mul_i32 s{sT2}, s{sT2}, 36864")
        a(f"s_mul_i32 s{sT0}, s{sT1}, 3")
        a(f"s_add_u32 s{sT2}, s{sT2}, s{sT0}")
        a("v_lshlrev_b32 v20, 7, v17")
        for i in range(3):
            a(f"buffer_load_dword v{100 + i}, v20, s[60:63], s{sT2} offen")
            a(f"s_add_u32 s{sT2}, s{sT2}, 6144" if False else f"s_add_u32 s{sT2}, s{sT2}, 8192")
    if not OPT["k3bl"]:
        for p in pieces(sD, nt): a.ext(p)
        a.ext(advance_h())
    a("s_mov_b64 vcc, -1")
    a("s_branch K3_rdone")
    a.label("K3_rw")
    a(f"s_add_u32 s{sD}, s24, {W2F}")
    a(f"s_addc_u32 s{sD+1}, s25, 0")
    a(f"s_mov_b32 s{sD+2}, {0 if OPT['k3now'] else 1179648}")
    a(f"s_mul_i32 s{sDLo}, s{sCQ}, 6144")
    a(f"s_add_u32 s{sDEnd}, s{sDLo}, 73728")
    a(f"s_mov_b32 s{sSlot}, 0")
    a(f"s_mov_b32 s{sDst}, s{sDLo}")
    a(f"s_add_u32 s{sSrc}, s{sDLo}, {47 * 24576}")
    for _ in range(5 if OPT["k3skipw"] else 2):
        for p in pieces(sD, wnt): a.ext(p)
        a.ext(advance_w())
    a("s_mov_b64 vcc, 0")
    a.label("K3_rdone")
    a("s_mov_b64 s[50:51], vcc")
    a(f"v_mul_u32_u24 v{vOUT}, 3072, v19")
    a("v_mul_u32_u24 v21, 12, v18")
    a(f"s_mul_i32 s{sT0}, s{sTH}, {96 * 768}")
    a(f"s_mul_i32 s{sT1}, s{sCQ}, 192")
    a(f"s_add_u32 s{sT0}, s{sT0}, s{sT1}")
    a(f"v_add3_u32 v{vOUT}, v{vOUT}, v21, s{sT0}")
    if OPT["outlin"]:
        a(f"v_mul_u32_u24 v{vOUT}, 12, v17")
        a(f"s_mul_i32 s{sT0}, s{sWV}, 18432")
        a(f"v_add_u32 v{vOUT}, s{sT0}, v{vOUT}")
    a(f"s_mul_i32 s{sT0}, s{sCQ}, 6144")
    a(f"v_lshl_add_u32 v{vWB0}, v17, 4, s{sT0}")
    a("v_and_b32 v21, 3, v18")
    a("v_lshrrev_b32 v22, 2, v18")
    a("v_and_b32 v23, 2, v19")
    a("v_xor_b32 v23, v23, v21")
    a("v_lshl_add_u32 v22, v23, 2, v22")
    a("v_lshl_add_u32 v22, v21, 4, v22")
    a("v_lshlrev_b32 v22, 4, v22")
    a("v_and_b32 v23, 1, v19")
    a("v_lshl_add_u32 v22, v23, 3, v22")
    a(f"s_mul_i32 s{sT0}, s{sTH}, 6144")
    a(f"s_add_u32 s{sT0}, s{sT0}, {L_H}")
    a(f"v_add_u32 v{vHB0}, s{sT0}, v22")
    a(f"v_xor_b32 v{vHB1}, 64, v{vHB0}")
    a(f"s_lshl_b32 s{sT0}, s{sCQ}, 2")
    a("v_lshl_add_u32 v22, v21, 1, v19")
    a(f"v_add_u32 v22, s{sT0}, v22")
    a("v_and_b32 v22, 15, v22")
    a("v_mul_u32_u24 v22, 48, v22")
    a("v_mul_u32_u24 v23, 768, v18")
    a(f"v_add_u32 v22, {L_X}, v22")
    a(f"v_add_u32 v{vXR}, v22, v23")
    a("v_lshrrev_b32 v22, 2, v18")
    a("v_cmp_eq_u32 vcc, v22, v19")
    a("v_mov_b32 v23, 0x3f80")
    a("s_nop 0")
    a("v_cndmask_b32 v23, 0, v23, vcc")
    for e in range(4):
        a(f"v_cmp_eq_u32 vcc, {e}, v21")
        a("s_nop 1")
        a(f"v_cndmask_b32 v{SEL+e}, 0, v23, vcc")
        a(f"v_lshlrev_b32 v{SEL+4+e}, 16, v{SEL+e}")
    a("s_mov_b64 vcc, s[50:51]")
    a(f"s_mov_b32 s{sWS}, 0")
    a(f"s_mov_b32 s{sHS}, 0")
    a(f"s_mov_b32 s{sJ}, 0")
    a(f"s_mov_b32 s{sOB}, {2 * 192 * 768}")
    a(f"s_mov_b32 s{sEV}, 11")
    a(f"s_waitcnt vmcnt({HV if KC else 24})")
    a(f"s_sub_u32 s{sT0}, s{sWV}, 4")
    a(f"s_cmp_lt_u32 s{sT0}, 2")
    a("s_cbranch_scc1 K3_pw")
    a("s_waitcnt vmcnt(6)")
    a("s_cbranch_vccz K3_pw")
    a("s_waitcnt vmcnt(0)")
    a.label("K3_pw")
    for p in range(1, NBP):
        for n in range(6):
            src = 24 + n if n < 3 else 25 + n
            a(f"v_add_f32 v{src}, v{src}, v{src + 8*p}")
    for n in range(6):
        src = 24 + n if n < 3 else 25 + n
        if KC: a(f"v_mov_b32 v{BV[n]}, v{src}")
        else:
            for r in range(4): a(f"v_mov_b32 v{BIAS+4*n+r}, v{src}")

    stamp(a, 1)

    def accr(n, t): return ACC + (t * 6 + n) * 4
    pieces0 = pieces
    def pieces(srd_, sfx="", _p=pieces0):
        P = _p(srd_, sfx)
        if OPT["k3skiph"] and sfx != "": P = [[x for x in p if not x.startswith("buffer")] for p in P]
        if OPT["k3skipw"] and sfx == "": P = [[x for x in p if not x.startswith("buffer")] if i >= 6 - OPT["k3skipw"] else p for i, p in enumerate(P)]
        return P
    def Lseg(u4, grp, tag):
        L = [f"v_add_u32 v{vWR}, s{sWS}, v{vWB0}", f"v_add_u32 v{vHR0}, s{sHS}, v{vHB0}", f"v_add_u32 v{vHR1}, s{sHS}, v{vHB1}"]
        R = []
        for t in range(6):
            R.append(f"ds_read_b128 {q(WB + 4*t)}, v{vWR} offset:{t*1024}")
            R.append(f"ds_read_b64_tr_b16 {q(HB + 4*t, 2)}, v{vHR0} offset:{t*1024}")
            R.append(f"ds_read_b64_tr_b16 {q(HB + 4*t + 2, 2)}, v{vHR1} offset:{t*1024}")
        if KC:
            R = [f"ds_read_b128 {q(WB + 4*t)}, v{vWR} offset:{t*1024}" for t in range(6)]
            if u4 % 2 == 0:
                for t in range(6):
                    for c in range(2):
                        R.append(f"ds_read_b64_tr_b16 {q(HB + 24*c + 4*t, 2)}, v{vHR0} offset:{c*12288 + t*1024}")
                        R.append(f"ds_read_b64_tr_b16 {q(HB + 24*c + 4*t + 2, 2)}, v{vHR1} offset:{c*12288 + t*1024}")
                if grp == 1 and OPT["k3lm"]: R = R[:30 - 4 * OPT["k3lm"]]
            else: L = L[:1]
            P = pieces(sD, wnt if grp == 0 else nt); P[5] = P[5] + (advance_w() if grp == 0 else advance_h())
            def gd(X, z): return X if grp == 0 or u4 == 0 else [f"s_cbranch_vccnz K3_{tag}sl{u4}{z}"] + X + [f"K3_{tag}sl{u4}{z}:"]
            na = 6 if grp == 1 or u4 % 2 or (tag == "f" and u4 == 0) else OPT["k3ne"]
            HE = OPT["k3he"]
            if grp == 1 and HE < 6:
                def gh(X, z): return [f"s_cbranch_vccnz K3_{tag}sl{u4}{z}"] + X + [f"K3_{tag}sl{u4}{z}:"] if X else []
                def gx(X, z): return [f"s_cbranch_vccz K3_{tag}sx{u4}{z}"] + X + [f"K3_{tag}sx{u4}{z}:"]
                if u4 % 2 == 0:
                    for m in range(6):
                        if m >= 6 - HE: L += gh(P[m], "abcdef"[m])
                        if u4 == 0: L += gx(P[m], "abcdef"[m])
                        L += R[6*m:6*m+6]
                    if HE == 0: L += gh(advance_h(), "g")
                else:
                    P2 = pieces(sD, nt)
                    L += gh(P[0], "a") + R + gh([x for p in P[1:] + P2[:6 - HE] for x in p], "b")
            elif u4 % 2 == 0:
                for m in range(5):
                    if m < na: L += gd(P[m], "abcde"[m])
                    L += R[6*m:6*m+6]
                if na == 6: L += gd(P[5], "f")
            else:
                L += gd(P[0], "a") + R + gd([x for p in P[1:] for x in p], "b")
        elif grp == 0:
            P = pieces(sD, wnt); P[5] = P[5] + advance_w()
            na = 6 if tag == "f" and u4 == 0 else OPT["k3na"]
            pos = [0, 6, 12, 18, 18, 18]
            for k in range(19):
                for m in range(na):
                    if pos[m] == k: L += P[m]
                if k < 18: L.append(R[k])
        elif OPT["k3bl"]:
            P = pieces(sD, nt); P[5] = P[5] + advance_h()
            def gd(X, z): return X if u4 == 0 else [f"s_cbranch_vccnz K3_{tag}sl{u4}{z}"] + X + [f"K3_{tag}sl{u4}{z}:"]
            if OPT["k3pre"]: L = R[15:] + gd(P[0] + P[1] + P[2] + P[3] + P[4] + P[5], "d")
            else: L += gd(P[0], "a") + R[:6] + gd(P[1], "b") + R[6:12] + gd(P[2], "c") + R[12:] + gd(P[3] + P[4] + P[5], "d")
        else:
            L += R
        if u4 == 3:
            lab = f"K3_{grp}{tag}_xr"
            L += [f"s_sub_u32 s{sT0}, s{sEV}, {6*grp - (100 if OPT['k3nev'] == 1 else 0)}", f"s_cmp_lt_u32 s{sT0}, {0 if OPT['k3nev'] == 2 else 6}", f"s_cbranch_scc0 {lab}"]
            for p in range(3):
                L.append(f"ds_read2_b32 {q(XT + 4*p, 2)}, v{vXR} offset0:{p} offset1:{p+3}")
                L.append(f"ds_read2_b32 {q(XT + 4*p + 2, 2)}, v{vXR} offset0:{p+6} offset1:{p+9}")
            L.append(lab + ":")
        L += [f"s_add_u32 s{sWS}, s{sWS}, 24576", f"s_cmp_eq_u32 s{sWS}, 73728", f"s_cselect_b32 s{sWS}, 0, s{sWS}",
              f"s_add_u32 s{sHS}, s{sHS}, {24576 if KC else 12288}", f"s_cmp_eq_u32 s{sHS}, 73728", f"s_cselect_b32 s{sHS}, 0, s{sHS}"][:3 if KC and u4 % 2 else 6]
        return L
    def pre_reads():
        AD = [f"v_add_u32 v{vWR}, s{sWS}, v{vWB0}", f"v_add_u32 v{vHR0}, s{sHS}, v{vHB0}", f"v_add_u32 v{vHR1}, s{sHS}, v{vHB1}"]
        R = []
        for t in range(6):
            R.append(f"ds_read_b128 {q(WB + 4*t)}, v{vWR} offset:{t*1024}")
            R.append(f"ds_read_b64_tr_b16 {q(HB + 4*t, 2)}, v{vHR0} offset:{t*1024}")
            R.append(f"ds_read_b64_tr_b16 {q(HB + 4*t + 2, 2)}, v{vHR1} offset:{t*1024}")
        return AD, R
    def vmwait(strict, loose, lab):
        if (OPT["k3nv"] >> {6: 0, 0: 1}.get(strict, 2)) & 1: return []
        if loose is None or OPT["k3nost"]: return [f"s_waitcnt vmcnt({strict})"]
        return [f"s_waitcnt vmcnt({loose})", f"s_cmp_lg_u32 s{sJ}, 0", f"s_cbranch_scc1 {lab}", f"s_waitcnt vmcnt({strict})", lab + ":"]
    def Mseg(u4, grp, tag):
        first = tag == "f" and u4 == 0
        Ms = []
        for t in range(6):
            for n in range(6):
                c = q(BIAS + 4*n) if first else q(accr(n, t))
                Ms.append([f"v_mfma_f32_16x16x32_bf16 {q(accr(n, t))}, {q(HB + 4*t)}, {q(WB + 4*n)}, {c}"])
        if KC:
            Ms = []
            for t in range(6):
                for n3 in range(3):
                    for c in range(2):
                        ac = q(accr(3 * (u4 % 2) + n3, t))
                        Ms.append([f"v_mfma_f32_16x16x32_bf16 {ac}, {q(HB + 24*c + 4*t)}, {q(WB + 12*c + 4*n3)}, {q(XT + 4*n3) if tag == 'f' and u4 < 2 and c == 0 else ac}"])
        if KC and u4 % 2 == 0 and (OPT["k3sw"] >> grp) & 1:
            lm = OPT["k3lm"] * grp
            late = []
            for t in range(6 - lm, 6):
                for c in range(2):
                    late += [f"ds_read_b64_tr_b16 {q(HB + 24*c + 4*t, 2)}, v{vHR0} offset:{c*12288 + t*1024}", f"ds_read_b64_tr_b16 {q(HB + 24*c + 4*t + 2, 2)}, v{vHR1} offset:{c*12288 + t*1024}"]
            for i, x in enumerate(late): Ms[i].append(x)
            for t in range(1, 6):
                issued = 30 - 4 * lm + min(len(late), 6 * t)
                n = issued - (10 + 4 * t)
                assert n >= 0
                if n < 15 or lm: Ms[6 * t] = [f"s_waitcnt lgkmcnt({min(15, n)})"] + Ms[6 * t]
        if grp == 0:
            P = pieces(sD, wnt); P[5] = P[5] + advance_w()
            na = 6 if first or (KC and u4 % 2) else OPT["k3ne" if KC else "k3na"]
            for m in range(na, 6): Ms[1 + (m - na) * OPT["k3as"]] += P[m]
            e = OPT["k3eb"]
            loose = 30 if tag == "f" and u4 < 2 else None
            Ms[35 - e] += (["s_setprio 3"] if e else []) + vmwait(6, loose, f"K3_0{tag}_vw{u4}") + ["s_barrier"]
        elif not OPT["k3bl"]:
            P = pieces(sD, nt); P[5] = P[5] + advance_h()
            for m in range(0, 6, 2):
                X = P[m] + P[m + 1]
                if u4 != 3: X = [f"s_cbranch_vccnz K3_{tag}sd{u4}{m}"] + X + [f"K3_{tag}sd{u4}{m}:"]
                Ms[OPT["k3b0"] + (m // 2) * OPT["k3bs"]] += X
        if grp == 1 and OPT["k3pre"]:
            AD, R = pre_reads()
            Ms[0].append(AD[1]); Ms[1].append(AD[2]); Ms[2].append(AD[0])
            for t in range(5):
                Ms[6 * t + 6].append(R[3 * t + 1]); Ms[6 * t + 7].append(R[3 * t + 2])
                Ms[31 + t].append(R[3 * t])
        return [x for m in Ms for x in m]
    def Xseg(grp, tag):
        g = f"{grp}{tag}"
        L = [f"s_cmp_lt_u32 s{sT0}, 6", f"s_cbranch_scc0 K3_{g}_xdone"]
        for t in range(6):
            if t < 5: L += [f"s_cmp_lg_u32 s{sT0}, {t}", f"s_cbranch_scc1 K3_{g}_x{t+1}"]
            for n in range(6):
                L.append(f"v_mfma_f32_16x16x32_bf16 {q(accr(n, t))}, {q(XT + 4*(n >> 1))}, {q(SEL + 4*(n & 1))}, {q(accr(n, t))}")
            if t < 5: L += [f"s_branch K3_{g}_xdone", f"K3_{g}_x{t+1}:"]
        L += [f"K3_{g}_xdone:", f"s_sub_u32 s{sEV}, s{sEV}, 1"]
        return L
    ofl = ["", " nt", " sc1", " sc0 sc1", " sc0"][OPT["out_nt"]]
    def epilogue(final=False):
        L = ["s_nop 7"]
        idx = 0
        for t in range(6):
            L.append(f"s_mov_b32 s{sT1}, s{sOB}" if t == 0 else f"s_add_u32 s{sT1}, s{sT1}, {3072 if OPT['outlin'] else 12288}")
            for r in range(4):
                tq = XT + 4 * (idx % (3 if KC else 4)); idx += 1
                for j in range(3): L.append(f"v_cvt_pk_bf16_f32 v{tq+j}, v{accr(2*j, t)+r}, v{accr(2*j+1, t)+r}")
                if not OPT["k3nost"]: L.append(f"buffer_store_dwordx3 {q(tq, 3)}, v{vOUT}, s[{sO}:{sO+3}], s{sT1} offen offset:{r*768}" + ofl)
        L += [f"s_sub_u32 s{sOB}, s{sOB}, {192 * 768}"]
        return L
    def block(grp, tag):
        if OPT["prof"] == 2: a.label(f"K3_np{tag}{grp}")
        if OPT["prof"] == 1 and grp == 1:
            a(f"s_cmp_lg_u32 s{sWV}, 7")
            a(f"s_cbranch_scc1 K3_np{tag}")
            a("s_memrealtime s[90:91]")
            a("s_waitcnt lgkmcnt(0)")
            a("v_mov_b32 v12, s90")
            a("v_mov_b32 v13, 0")
            a("buffer_store_dword v12, v13, s[84:87], s83 offen")
            a("s_add_u32 s83, s83, 4")
            a.label(f"K3_np{tag}")
        for u4 in range(4):
            a.ext(Lseg(u4, grp, tag))
            if OPT["prof"] == 2 and u4 == 0 and grp == OPT["latw"] // 4:
                a(f"s_cmp_lg_u32 s{sWV}, {OPT['latw']}")
                a(f"s_cbranch_scc1 K3_nq{tag}")
                a("s_memrealtime s[92:93]")
                a("s_waitcnt vmcnt(0) lgkmcnt(0)")
                a("s_memrealtime s[94:95]")
                a("s_waitcnt lgkmcnt(0)")
                a("s_sub_u32 s94, s94, s92")
                a("s_add_u32 s82, s82, s94")
                a("v_mov_b32 v12, s82")
                a("v_mov_b32 v13, 0")
                a("buffer_store_dword v12, v13, s[84:87], s83 offen")
                a("s_add_u32 s83, s83, 4")
                a.label(f"K3_nq{tag}")
            if tag == "f" and u4 == 0:
                a(f"s_cmp_eq_u32 s{sJ}, 0")
                a(f"s_cbranch_scc1 K3_{grp}_noep")
                if OPT["stamp"]:
                    a(f"s_sub_u32 s96, s{sJ}, 48")
                    stamp2(a, 2, 4, 96)
                a.ext(epilogue())
                stamp2(a, 3, 5, 96)
                a.label(f"K3_{grp}_noep")
            if KC and tag == "f" and u4 < 2:
                a("s_nop 1")
                for i in range(12): a(f"v_mov_b32 v{XT+i}, v{BV[3*u4 + i//4]}")
            def waits(z=""):
                stg_ = KC and u4 % 2 == 0 and (OPT["k3sw"] >> grp) & 1
                lw = f"s_waitcnt lgkmcnt({min(15, 20 - 4 * OPT['k3lm'] * grp) if stg_ else 0})"
                if grp == 0: return [lw, f"s_setprio {OPT['k3pa']}"]
                W = []
                if u4 == 2: W += [f"s_cbranch_vccz K3_{tag}nx"] + vmwait(0, 24 if tag == "f" else None, "K3_fxw") + [f"K3_{tag}nx:"]
                if not KC: W += vmwait(24, 48 if tag == "f" else None, f"K3_fh{u4}{z}")
                elif u4 % 2: W += vmwait(HV, (HV + 24 if u4 == 1 or not HL else None) if tag == "f" else None, f"K3_fh{u4}{z}")
                return W + [lw, "s_barrier", f"s_setprio {OPT['k3pb']}"]
            if u4 == 3 and OPT["k3xd"]:
                g = f"{grp}{tag}"
                a(f"s_sub_u32 s{sEV}, s{sEV}, 1")
                a(f"s_cmp_lt_u32 s{sT0}, 6")
                a(f"s_cbranch_scc0 K3_{g}_xn")
                for t in range(6):
                    if t < 5:
                        a(f"s_cmp_lg_u32 s{sT0}, {t}")
                        a(f"s_cbranch_scc1 K3_{g}_x{t+1}")
                    a.ext(waits(str(t)))
                    for n in range(6):
                        a(f"v_mfma_f32_16x16x32_bf16 {q(accr(n, t))}, {q(XT + 4*(n >> 1))}, {q(SEL + 4*(n & 1))}, {q(accr(n, t))}")
                    a(f"s_branch K3_{g}_xdone")
                    if t < 5: a.label(f"K3_{g}_x{t+1}")
                a.label(f"K3_{g}_xn")
                a.ext(waits())
                a.label(f"K3_{g}_xdone")
            else:
                a.ext(waits())
                if u4 == 3: a.ext(Xseg(grp, tag))
            a.ext(Mseg(u4, grp, tag))
            a(f"s_setprio {OPT['k3pl']}")

    if OPT["prof"]:
        srd(a, 84, 24, 25, 65536, TAIL + (5 << 20))
        a("s_lshl_b32 s83, s2, 8")
        a("s_mov_b32 s82, 0")
    a("s_barrier")
    if OPT["k3pre"]:
        AD, R = pre_reads(); a.ext(AD + R[:15])
    a(f"s_cmp_lg_u32 s{sTH}, 0")
    a("s_cbranch_scc1 K3_1_tile")
    for grp in range(2):
        a.label(f"K3_{grp}_tile")
        a(f"s_mov_b32 s{sEV}, 11")
        block(grp, "f")
        a(".p2align 6")
        a.label(f"K3_{grp}_loop")
        block(grp, "l")
        a(f"s_cmp_lg_u32 s{sEV}, -1")
        a(f"s_cbranch_scc1 K3_{grp}_loop")
        a(f"s_add_u32 s{sJ}, s{sJ}, 48")
        a(f"s_cmp_lg_u32 s{sJ}, 144")
        a(f"s_cbranch_scc1 K3_{grp}_tile")
        if grp == 0:
            a("s_branch K3_fin0")
    a.label("K3_fin0")
    stamp(a, 6)
    a.ext(epilogue(True))
    a.label("K3_fin")
    if OPT["stamp"]: a("s_waitcnt vmcnt(0)")
    stamp(a, 7)
    stamp_dump(a, 8, sWV, "K3", 1)
    if OPT["stamp"] == 2:
        a("s_cmp_lg_u32 s2, 5")
        a("s_cbranch_scc1 K3_end")
        a(f"s_cmp_lg_u32 s{sWV}, 0")
        a("s_cbranch_scc1 K3_end")
        a("s_load_dwordx2 s[20:21], s[0:1], 56")
        a(f"s_add_u32 s88, s24, {TAIL + (4 << 20)}")
        a("s_addc_u32 s89, s25, 0")
        a("s_mov_b32 s90, 196608")
        a("s_mov_b32 s91, 0x00020000")
        a("v_and_b32 v1, 63, v0")
        a("v_lshlrev_b32 v2, 3, v1")
        a("v_cmp_gt_u32 vcc, 9, v1")
        a("v_add_u32 v3, 65536-72, v2")
        a("s_nop 0")
        a("v_cndmask_b32 v2, v3, v2, vcc")
        a("buffer_load_dword v4, v2, s[88:91], 0 offen offset:1280")
        a("s_mov_b32 s22, 64")
        a("s_mov_b32 s23, 0x00020000")
        a("v_lshlrev_b32 v2, 2, v1")
        a("s_waitcnt vmcnt(0) lgkmcnt(0)")
        a("v_readfirstlane_b32 s92, v4")
        a("s_nop 3")
        a("v_subrev_u32 v4, s92, v4")
        a("buffer_store_dword v4, v2, s[20:23], 0 offen")
    a.label("K3_end")
    a("s_endpgm")
    return a, desc("gemm2_kernel", 256, 100), f"; @launch kernel=gemm2_kernel grid=(256,1,1) block=(512,1,1) lds={L_X + 12288}"

def main():
    ks = [k1(), k2(), k3r() if OPT['roll'] else k3()]
    errs = []
    for a, _, l in ks: errs += check(a.lines, l.split("=")[1].split()[0])
    for a, _, l in ks:
        for i, x in enumerate(a.lines):
            if x.startswith("s_set_gpr_idx_on"): assert a.lines[i + 3] == "s_set_gpr_idx_off", "gpr idx not closed"
    for e in errs: print(e, file=sys.stderr)
    hdr = open("standalone__modern_conv_block_slak__vision.s.ref").read().split("\n")
    hdr = [l for l in hdr if l.startswith(";") and "@launch" not in l and "Override" not in l and "grid=ceil" not in l]
    out = "\n".join(hdr) + "\n" + "\n".join(l for _, _, l in ks) + "\n"
    out += '.amdgcn_target "amdgcn-amd-amdhsa--gfx950"\n.text\n'
    for a, _, _ in ks: out += a.text()
    out += '.section .rodata,"a"\n'
    for _, d, _ in ks: out += d
    open(sys.argv[1], "w").write(out)
    print("written", sys.argv[1], len(out), "bytes; hazards:", len(errs))
main()
```

```python
import sys, struct, math
from asmlib import Asm, check

OPT = dict(f16=1, st_nt=1, h_nt=1, w_nt=0, out_nt=0, x_nt=1, xp_nt=1, ord=4, ntail=1, k3skipw=0, kf=0, k3pre=0, prof=0, roll=0, stg=1, mp0=2, mpd=2, ipf=0, k3pl=0, wwarm=0, latw=7, dwarm=1, sdot=2, k3c=1, k3ne=6, k3nv=0, k3skiph=0, npf=1, kmask=0, k1nv=0, w1warm=1, k3he=6, k3xd=1, k3nev=0, k3sw=1, k3lm=0, spr=1, rpg=1, hd=6, lst=5, mst=1, gbo=0, sgap=2, bgb=-1, stamp=0, denorm=3, pm=3, pg0=0, pg1=1, bg=4, gb=3, gp=2, stm=7, stm0=7, w2pf=1, sga=7,
           k3pa=1, k3pb=2, k3eb=0, k3nost=0, k3noh=0, k3nox=0, k3now=0, k3na=6, k3as=5, k3b0=18, k3bs=5, k3bl=1, outlin=0, nostore=0)
for a in sys.argv[2:]:
    k, v = a.split("="); OPT[k] = int(v, 0)

def f32(x): return "0x%08x" % struct.unpack("<I", struct.pack("<f", x))[0]
def f16bits(x): return struct.unpack("<H", struct.pack("<e", x))[0]

M = 147456; C = 384; F = 1536
XBYTES = M * C * 2
WSBYTES = 452984832
TILE_H = 589824; CHUNK_H = 12288; HSTRIDE = 3 * TILE_H - 2 * CHUNK_H
TAIL = 256 * HSTRIDE
W2F = TAIL + 1179648; B2 = TAIL; SSQ = TAIL + 2363392
NREP = 8
K1c = 2.0 * math.sqrt(2.0 / math.pi) * math.log2(math.e)
K3c = K1c * 0.044715
if OPT["f16"]:
    C0 = 1258.0 / 256.0
    ALPHA = K1c / C0
else:
    ALPHA = K3c ** (1.0 / 3.0)
    C0 = K1c / ALPHA

def srd(a, d, lo, hi, nrec, off=0):
    if off:
        a(f"s_add_u32 s{d}, s{lo}, {off}")
        a(f"s_addc_u32 s{d+1}, s{hi}, 0")
    else:
        a(f"s_mov_b32 s{d}, s{lo}")
        a(f"s_mov_b32 s{d+1}, s{hi}")
    a(f"s_mov_b32 s{d+2}, {nrec}")
    a(f"s_mov_b32 s{d+3}, 0x00020000")

def stamp(a, idx, base=64):
    if not OPT["stamp"]: return
    a("s_memrealtime s[90:91]")
    a("s_memtime s[92:93]")
    a("s_waitcnt lgkmcnt(0)")
    a(f"s_mov_b32 s{base+2*idx}, s90")
    a(f"s_mov_b32 s{base+2*idx+1}, s92")

def stamp2(a, ia, ib, creg, base=64):
    if not OPT["stamp"]: return
    a("s_memrealtime s[90:91]")
    a("s_memtime s[92:93]")
    a("s_waitcnt lgkmcnt(0)")
    a(f"s_cmp_eq_u32 s{creg}, 0")
    a(f"s_cselect_b32 s{base+2*ia}, s90, s{base+2*ia}")
    a(f"s_cselect_b32 s{base+2*ia+1}, s92, s{base+2*ia+1}")
    a(f"s_cselect_b32 s{base+2*ib}, s{base+2*ib}, s90")
    a(f"s_cselect_b32 s{base+2*ib+1}, s{base+2*ib+1}, s92")

def stamp_dump(a, n, wave_sgpr, tag, kidx, base=64):
    if not OPT["stamp"]: return
    a(f"s_and_b32 s94, s{wave_sgpr}, 3")
    a("s_cmp_lg_u32 s94, 0")
    a(f"s_cbranch_scc1 {tag}_nodump")
    a("s_load_dwordx2 s[90:91], s[0:1], 64")
    a("s_waitcnt lgkmcnt(0)")
    a(f"s_add_u32 s88, s90, {TAIL + (4 << 20) + kidx * 65536}")
    a("s_addc_u32 s89, s91, 0")
    a("s_mov_b32 s90, 65536")
    a("s_mov_b32 s91, 0x00020000")
    a(f"s_lshl_b32 s94, s{wave_sgpr}, 5")
    a("s_lshl_b32 s95, s2, 8")
    a("s_add_u32 s94, s94, s95")
    a("v_mov_b32 v8, 0")
    for i in range(n):
        a(f"v_mov_b32 v10, s{base+2*i}")
        a(f"v_mov_b32 v11, s{base+2*i+1}")
        a(f"buffer_store_dwordx2 v[10:11], v8, s[88:91], s94 offen offset:{i*8}")
        a("s_waitcnt vmcnt(0)")
    a.label(f"{tag}_nodump")

def q(r, n=4): return f"v[{r}:{r+n-1}]"

def kernel_start(a, name):
    a(f".globl {name}")
    a(".p2align 8")
    a(f".type {name},@function")
    a.label(name)

def code_prefetch(a, start, end, vt, st):
    if not OPT["ipf"]: return
    a(f"s_getpc_b64 s[{st}:{st+1}]")
    a(f"s_and_b32 s{st}, s{st}, 0xffffff00")
    a(f"s_mov_b32 s{st+2}, {end}-{start}")
    a(f"s_mov_b32 s{st+3}, 0x00020000")
    a(f"v_lshlrev_b32 v{vt}, 7, v0")
    a(f"buffer_load_dword v{vt}, v{vt}, s[{st}:{st+3}], 0 offen")

def desc(name, vgpr, sgpr=96):
    acc = min(256, (vgpr + 3) // 4 * 4)
    return f""".p2align 6
.amdhsa_kernel {name}
  .amdhsa_next_free_vgpr {vgpr}
  .amdhsa_next_free_sgpr {sgpr}
  .amdhsa_accum_offset {acc}
  .amdhsa_group_segment_fixed_size 0
  .amdhsa_kernarg_size 72
  .amdhsa_user_sgpr_count 2
  .amdhsa_user_sgpr_kernarg_segment_ptr 1
  .amdhsa_system_sgpr_workgroup_id_x 1
  .amdhsa_float_denorm_mode_32 {OPT['denorm']}
.end_amdhsa_kernel
"""

def gelu_batch(b, TMP, SSr, first, sC0, sC0H):
    L = []
    R = [b + i for i in range(8)]
    if not OPT["f16"]:
        T = [TMP + i for i in range(8)]
        for v, t in zip(R, T): L.append(f"v_fma_f32 v{t}, -v{v}, v{v}, s{sC0}")
        for v, t in zip(R, T): L.append(f"v_mul_f32 v{t}, v{t}, v{v}")
        for t in T: L.append(f"v_exp_f32 v{t}, v{t}")
        for t in T: L.append(f"v_add_f32 v{t}, 1.0, v{t}")
        for t in T: L.append(f"v_rcp_f32 v{t}, v{t}")
        for v, t in zip(R, T): L.append(f"v_mul_f32 v{t}, v{v}, v{t}")
        Gv = T
    else:
        H = [TMP + i for i in range(4)]; Pp = [TMP + 4 + i for i in range(4)]
        for i in range(4): L.append(f"v_cvt_pk_f16_f32 v{H[i]}, v{R[2*i]}, v{R[2*i+1]}")
        for i in range(4): L.append(f"v_pk_fma_f16 v{Pp[i]}, v{H[i]}, v{H[i]}, s{sC0H} neg_lo:[1,0,0] neg_hi:[1,0,0]")
        for i in range(4): L.append(f"v_pk_mul_f16 v{Pp[i]}, v{Pp[i]}, v{H[i]}")
        for i in range(4): L.append(f"v_exp_f16 v{H[i]}, v{Pp[i]}")
        for i in range(4): L.append(f"v_exp_f16_sdwa v{H[i]}, v{Pp[i]} dst_sel:WORD_1 dst_unused:UNUSED_PRESERVE src0_sel:WORD_1")
        for i in range(4): L.append(f"v_pk_add_f16 v{H[i]}, v{H[i]}, 1.0 op_sel_hi:[1,0]")
        for i in range(4): L.append(f"v_rcp_f16 v{Pp[i]}, v{H[i]}")
        for i in range(4): L.append(f"v_rcp_f16_sdwa v{H[i]}, v{H[i]} dst_sel:DWORD dst_unused:UNUSED_PAD src0_sel:WORD_1")
        for i in range(4): L.append(f"v_fma_mix_f32 v{R[2*i]}, v{R[2*i]}, v{Pp[i]}, 0 op_sel_hi:[0,1,0]")
        for i in range(4): L.append(f"v_fma_mix_f32 v{R[2*i+1]}, v{R[2*i+1]}, v{H[i]}, 0 op_sel_hi:[0,1,0]")
        Gv = R
    for e in (0, 4, 1, 5, 2, 6, 3, 7) if not OPT['sdot'] else ():
        s_ = SSr + e // 4
        L.append(f"v_mul_f32 v{s_}, v{Gv[e]}, v{Gv[e]}" if first and e % 4 == 0 else f"v_fmac_f32 v{s_}, v{Gv[e]}, v{Gv[e]}")
    if OPT["mst"]:
        for i in (3, 2, 1, 0): L.append(f"v_cvt_pk_bf16_f32 v{b+4+i}, v{Gv[2*i]}, v{Gv[2*i+1]}")
    else:
        for i in range(4): L.append(f"v_cvt_pk_bf16_f32 v{b+i}, v{Gv[2*i]}, v{Gv[2*i+1]}")
    return L

NBP = 6
def k2():
    a = Asm()
    kernel_start(a, "mid_kernel")
    a("s_cmp_ge_u32 s2, 24")
    a("s_cbranch_scc1 K2_end")
    stamp(a, 0)
    a("s_load_dwordx4 s[4:7], s[0:1], 24")
    a("s_load_dwordx2 s[8:9], s[0:1], 40")
    a("s_load_dwordx2 s[10:11], s[0:1], 64")
    a("v_lshrrev_b32 v1, 6, v0")
    a("v_and_b32 v2, 63, v0")
    a("v_readfirstlane_b32 s3, v1")
    a("v_mul_u32_u24 v5, 12, v0")
    a("s_lshr_b32 s30, s2, 2")
    a("s_and_b32 s32, s2, 3")
    a("s_lshl_b32 s31, s30, 3")
    a("s_add_u32 s31, s31, s3")
    a("s_mul_i32 s33, s32, 192")
    a(f"s_mul_i32 s34, s31, {32 * 768}")
    a("s_add_u32 s33, s33, s34")
    a("v_lshrrev_b32 v3, 4, v2")
    a("v_and_b32 v4, 1, v3")
    a("v_lshlrev_b32 v4, 4, v4")
    a("v_lshrrev_b32 v3, 1, v3")
    a("v_lshl_add_u32 v3, v3, 3, v4")
    a("v_mul_u32_u24 v7, 768, v3")
    a("v_and_b32 v6, 15, v2")
    a("v_mul_u32_u24 v4, 12, v6")
    a("v_add_u32 v7, v4, v7")
    a("s_lshl_b32 s35, s31, 6")
    a("v_lshlrev_b32 v4, 1, v3")
    a("s_waitcnt lgkmcnt(0)")
    srd(a, 24, 10, 11, WSBYTES - TAIL, TAIL)
    a(f"s_mov_b32 s34, {SSQ - TAIL}")
    for r in range(NREP):
        a(f"buffer_load_dwordx3 {q(32+4*r, 3)}, v5, s[24:27], s34 offen")
        if r < NREP - 1: a("s_add_u32 s34, s34, 6144")
    srd(a, 12, 4, 5, C * F * 2)
    srd(a, 16, 6, 7, F * 2)
    srd(a, 20, 8, 9, F * 2)
    W = 64; U = 96
    for e in range(8):
        if e == 4: a("s_add_u32 s33, s33, 3072")
        a(f"buffer_load_dwordx3 {q(W + 4*e, 3)}, v7, s[12:15], s33 offen offset:{(e % 4) * 768}")
    a("buffer_load_dwordx4 v[16:19], v4, s[16:19], s35 offen")
    a("buffer_load_dwordx4 v[12:15], v4, s[20:23], s35 offen")
    a("s_waitcnt vmcnt(10)")
    stamp(a, 1)
    for st in (4, 2, 1):
        for r in range(st):
            for k in range(3): a(f"v_add_f32 v{32+4*r+k}, v{32+4*r+k}, v{32+4*(r+st)+k}")
    a(f"s_mov_b32 s36, {f32(1.0 / (ALPHA * ALPHA))}")
    a(f"v_mov_b32 v20, {f32(1e-6)}")
    for k in range(3): a(f"v_fma_f32 v{32+k}, v{32+k}, s36, v20")
    for k in range(3): a(f"v_sqrt_f32 v{32+k}, v{32+k}")
    a("s_nop 0")
    for k in range(3): a(f"ds_write_b32 v5, v{32+k} offset:{4*k}")
    a("v_add_f32 v21, v32, v33")
    a("v_add_f32 v21, v21, v34")
    for ctl in ("row_shr:1", "row_shr:2", "row_shr:4", "row_shr:8"):
        a("s_nop 1")
        a(f"v_add_f32_dpp v21, v21, v21 {ctl} row_mask:0xf bank_mask:0xf bound_ctrl:0")
    a("s_nop 1")
    a("v_readlane_b32 s40, v21, 15")
    a("v_readlane_b32 s41, v21, 31")
    a("v_readlane_b32 s42, v21, 47")
    a("v_readlane_b32 s43, v21, 63")
    a("s_nop 1")
    a("v_mov_b32 v22, s40")
    a("v_add_f32 v22, s41, v22")
    a("v_add_f32 v22, s42, v22")
    a("v_add_f32 v22, s43, v22")
    a("s_lshl_b32 s37, s3, 2")
    a("v_mov_b32 v23, s37")
    a("ds_write_b32 v23, v22 offset:6144")
    a("s_waitcnt lgkmcnt(0)")
    a("s_barrier")
    stamp(a, 2)
    a("v_mov_b32 v23, 0")
    a("ds_read_b128 v[24:27], v23 offset:6144")
    a("ds_read_b128 v[28:31], v23 offset:6160")
    a("s_lshl_b32 s37, s31, 7")
    a("v_lshlrev_b32 v4, 2, v3")
    a("v_add_u32 v4, s37, v4")
    a("ds_read_b128 v[32:35], v4")
    a("ds_read_b128 v[36:39], v4 offset:16")
    a("s_waitcnt vmcnt(0)")
    for e in range(8):
        for d in range(3):
            a(f"v_lshlrev_b32 v{U + 6*e + 2*d}, 16, v{W + 4*e + d}")
            a(f"v_and_b32 v{U + 6*e + 2*d + 1}, 0xffff0000, v{W + 4*e + d}")
    a("s_waitcnt lgkmcnt(0)")
    for st in (4, 2, 1):
        for r in range(st): a(f"v_add_f32 v{24+r}, v{24+r}, v{24+r+st}")
    a(f"v_mul_f32 v24, {f32(1.0 / F)}, v24")
    a(f"v_add_f32 v24, {f32(1e-6)}, v24")
    a("v_rcp_f32 v24, v24")
    a(f"s_mov_b32 s36, {f32(1.0 / ALPHA)}")
    for e in range(8):
        src = 16 + e // 2
        a(f"v_lshlrev_b32 v40, 16, v{src}" if e % 2 == 0 else f"v_and_b32 v40, 0xffff0000, v{src}")
        a(f"v_mul_f32 v{32+e}, v{32+e}, v24")
        a(f"v_fma_f32 v{32+e}, v{32+e}, v40, 1.0")
        a(f"v_mul_f32 v{32+e}, s36, v{32+e}")
    if OPT["k3c"]:
        a("s_sub_u32 s44, 47, s31")
        a("s_and_b32 s45, s44, 1")
        a("s_andn2_b32 s44, s44, 1")
        a("s_sub_u32 s44, 47, s44")
        a("s_mul_i32 s33, s44, 24")
        a("s_mul_i32 s45, s45, 3")
        a("s_add_u32 s33, s33, s45")
    else:
        a("s_mul_i32 s33, s31, 24")
    a("s_mul_i32 s46, s32, 6")
    a("s_add_u32 s33, s33, s46")
    a("s_lshl_b32 s33, s33, 10")
    a(f"s_add_u32 s33, s33, {W2F - TAIL}")
    a("s_sub_u32 s34, s33, 24576" if OPT["k3c"] else "s_add_u32 s34, s33, 3072")
    a("v_lshlrev_b32 v43, 4, v2")
    for n in range(6):
        T = 44 + 8 * (n % 2); O = W + 4 * n
        for e in range(8): a(f"v_mul_f32 v{T+e}, v{U + 6*e + n}, v{32+e}")
        for i in range(4): a(f"v_cvt_pk_bf16_f32 v{O+i}, v{T+2*i}, v{T+2*i+1}")
        a(f"buffer_store_dwordx4 {q(O)}, v43, s[24:27], s{33 + n // 3} offen offset:{(n % 3) * 1024}")
    for e in range(8):
        a(f"v_lshlrev_b32 v41, 16, v{12 + e // 2}" if e % 2 == 0 else f"v_and_b32 v41, 0xffff0000, v{12 + e // 2}")
        for n in range(6): a(f"v_mul_f32 v{24+n}, v41, v{U + n}" if e == 0 else f"v_fmac_f32 v{24+n}, v41, v{U + 6*e + n}")
    a("v_mul_u32_u24 v43, 24, v0")
    for d in range(3): a(f"ds_write_b64 v43, {q(24 + 2*d, 2)} offset:{6400 + 8*d}")
    a("s_waitcnt lgkmcnt(0)")
    a("s_barrier")
    a("s_cmp_ge_u32 s3, 2")
    a("s_cbranch_scc1 K2_end")
    a("v_lshlrev_b32 v43, 2, v0")
    for w in range(32): a(f"ds_read_b32 v{U + w}, v43 offset:{6400 + 384*w}")
    a("s_waitcnt lgkmcnt(0)")
    for st in (16, 8, 4, 2, 1):
        for r in range(st): a(f"v_add_f32 v{U+r}, v{U+r}, v{U+r+st}")
    a("s_mul_i32 s39, s30, 1536")
    a("s_mul_i32 s38, s32, 384")
    a("s_add_u32 s38, s38, s39")
    a(f"s_add_u32 s38, s38, {B2 - TAIL}")
    a("v_cmp_gt_u32 vcc, 96, v0")
    a("s_and_saveexec_b64 s[40:41], vcc")
    a(f"buffer_store_dword v{U}, v43, s[24:27], s38 offen")
    a("s_mov_b64 exec, s[40:41]")
    if OPT["stamp"]: a("s_waitcnt vmcnt(0)")
    stamp(a, 3)
    stamp_dump(a, 4, 3, "K2", 2)
    a.label("K2_end")
    a("s_endpgm")
    return a, desc("mid_kernel", 144, 100 if OPT["stamp"] else 56), "; @launch kernel=mid_kernel grid=(24,1,1) block=(512,1,1) lds=19200"

def k1():
    a = Asm()
    XN = 8; ACC = 152; BB = 200; SQ = 232
    TMP = BB + 16; SS = BB + 24
    vDE, vXS, vRD, vST, vDW, vDO, vRB = 1, 2, 3, 4, 5, 6, 7
    L_DW = 147456
    sX, sW1, sH, sDB = 8, 12, 16, 20
    sWSlo, sWShi, sOUTlo, sOUThi, sDBlo, sDBhi = 24, 25, 26, 27, 28, 29
    (sWV, sGRP, sI, sEND, sRDS, sDSL, sT0, sT1, sC0, sHB, sXB, sREG, sSIG, sT2, sC0H, sDSR, sD0, sST0, sST1, sXN, sDS0, sTK,
     sSLO, sSHI, sDLO, sDHI, sSG0, sCW, sXU) = range(30, 59)
    sHN, sSLN, sSHN, sDSP, sDSN, sDCN, sCW2, sKM = 82, 83, 84, 85, 86, 87, 3, 97
    REG = 3 * 192 * 768
    kernel_start(a, "gemm1_kernel")
    a("s_cmp_ge_u32 s2, 256")
    a("s_cbranch_scc1 K1_end")
    stamp(a, 0)
    a("s_load_dwordx4 s[4:7], s[0:1], 0")
    a(f"s_load_dwordx2 s[{sW1}:{sW1+1}], s[0:1], 16")
    a(f"s_load_dwordx2 s[{sOUTlo}:{sOUThi}], s[0:1], 48")
    a(f"s_load_dwordx2 s[{sDBlo}:{sDBhi}], s[0:1], 56")
    a(f"s_load_dwordx2 s[{sWSlo}:{sWShi}], s[0:1], 64")
    code_prefetch(a, "gemm1_kernel", "K1_end", BB + 20, 60)
    a("v_lshrrev_b32 v8, 6, v0")
    a("v_and_b32 v9, 63, v0")
    a(f"v_readfirstlane_b32 s{sWV}, v8")
    a("v_lshrrev_b32 v12, 3, v9")
    a("v_and_b32 v13, 7, v9")
    a("v_lshrrev_b32 v14, 1, v12")
    a("v_xor_b32 v14, v14, v13")
    a(f"v_mul_u32_u24 v{vXS}, 768, v12")
    a(f"v_lshl_add_u32 v{vXS}, v14, 4, v{vXS}")
    a(f"s_lshr_b32 s{sT0}, s2, 4")
    a(f"s_and_b32 s{sSG0}, s{sT0}, {OPT['sga']}")
    a(f"s_lshl_b32 s{sT0}, s{sT0}, 4")
    a(f"s_and_b32 s{sT1}, s2, 7")
    a(f"s_lshl_b32 s{sT1}, s{sT1}, 1")
    a(f"s_add_u32 s{sT0}, s{sT0}, s{sT1}")
    a(f"s_bfe_u32 s{sT1}, s2, 0x10003")
    a(f"s_add_u32 s{sREG}, s{sT0}, s{sT1}")
    a(f"s_mul_i32 s{sSLO}, s{sT1}, 12")
    a(f"s_add_u32 s{sSHI}, s{sSLO}, 12")
    a(f"s_lshr_b32 s{sGRP}, s{sWV}, 2")
    a(f"s_and_b32 s{sT1}, s{sWV}, 3")
    a(f"s_add_u32 s{sT0}, s{sT0}, s{sGRP}")
    a(f"s_mul_i32 s{sXB}, s{sT0}, {REG}")
    a(f"s_mul_i32 s{sT2}, s{sT1}, {48 * 768}")
    a(f"s_add_u32 s{sXB}, s{sXB}, s{sT2}")
    if not OPT["roll"]: a(f"s_add_u32 s{sXB}, s{sXB}, {2 * 192 * 768}")
    a(f"s_mul_i32 s{sHB}, s{sT0}, {HSTRIDE}")
    if not OPT["roll"]: a(f"s_add_u32 s{sHB}, s{sHB}, {2 * TILE_H}")
    a(f"s_mul_i32 s59, s{sT0}, {REG}")
    if OPT["roll"]: a(f"s_add_u32 s59, s59, {2 * 192 * 768}")
    a(f"s_mul_i32 s{sXN}, s{sREG}, {REG}")
    a(f"s_add_u32 s{sT2}, s{sWV}, 4" if OPT["roll"] else f"s_xor_b32 s{sT2}, s{sWV}, 4")
    a(f"s_mul_i32 s{sT2}, s{sT2}, {48 * 768}")
    a(f"s_add_u32 s{sXN}, s{sXN}, s{sT2}")
    a(f"s_mul_i32 s{sHN}, s{sREG}, {HSTRIDE}")
    a(f"s_xor_b32 s{sT2}, s{sGRP}, {0 if OPT['roll'] else 1}")
    a(f"s_mul_i32 s{sT2}, s{sT2}, {TILE_H}")
    a(f"s_add_u32 s{sHN}, s{sHN}, s{sT2}")
    if OPT["roll"]: a(f"s_add_u32 s{sHN}, s{sHN}, {46 * CHUNK_H}")
    a(f"s_mov_b32 s{sSLN}, 0")
    a(f"s_mov_b32 s{sSHN}, 24")
    a(f"s_mov_b32 s{sDSP}, 23")
    a(f"s_mov_b32 s{sDSN}, -1")
    if OPT["ord"]:
        a(f"s_bitcmp1_b32 s2, {OPT['ord']}")
        a("s_cbranch_scc0 K1_noswap")
        for x, y in ((sXB, sXN), (sHB, sHN), (sSLO, sSLN), (sSHI, sSHN), (sDSP, sDSN)):
            a(f"s_mov_b32 s{sT2}, s{x}"); a(f"s_mov_b32 s{x}, s{y}"); a(f"s_mov_b32 s{y}, s{sT2}")
        a.label("K1_noswap")
    a(f"s_mul_i32 s{sD0}, s{sWV}, 6144")
    a(f"s_mov_b32 s{sCW}, s{sD0}")
    a(f"s_add_u32 s{sCW2}, s{sD0}, 49152")
    a("s_waitcnt lgkmcnt(0)")
    srd(a, sX, 4, 5, XBYTES)

    KPO = [3, 4, 5, 2, 1, 0]
    def xdma(n, pol=None):
        if pol is None:
            if OPT["x_nt"] == OPT["xp_nt"]: return xdma(n, OPT["x_nt"])
            return [f"s_cbranch_vccnz K1_xa{n}"] + xdma(n, OPT["x_nt"]) + [f"s_branch K1_xb{n}", f"K1_xa{n}:"] + xdma(n, OPT["xp_nt"]) + [f"K1_xb{n}:"]
        xnt = " nt" if pol else ""
        tt, kp = divmod(n, 6); kp = KPO[kp]
        return [f"s_add_u32 m0, s{(sCW, sCW2)[n // 3 % 2]}, {(n % 3) * 2048}", f"s_add_u32 s{sXU}, s{sXB}, {tt * 12288 + kp * 128}",
                f"buffer_load_dwordx4 v{vXS}, s[{sX}:{sX+3}], s{sXU} offen{xnt} lds",
                "s_add_u32 m0, m0, 1024", f"s_add_u32 s{sXU}, s{sXU}, 6144",
                f"buffer_load_dwordx4 v{vXS}, s[{sX}:{sX+3}], s{sXU} offen{xnt} lds"]
    srd(a, sH, 6, 7, C * 2)
    a(f"v_lshlrev_b32 v{ACC+4}, 2, v0")
    a(f"buffer_load_dword v{ACC}, v{ACC+4}, s[{sH}:{sH+3}], 0 offen")
    for n in range(6): a.ext(xdma(n, OPT['x_nt']))
    a('s_mov_b64 vcc, 0')

    a("v_and_b32 v10, 15, v9")
    a("v_lshrrev_b32 v11, 4, v9")
    a(f"v_lshlrev_b32 v{vST}, 2, v11")
    a(f"v_xor_b32 v{vST}, v{vST}, v9")
    a(f"v_lshlrev_b32 v{vST}, 4, v{vST}")
    a(f"s_mul_i32 s{sT2}, s{sT1}, 3072")
    a(f"v_add_u32 v{vST}, s{sT2}, v{vST}")
    a(f"v_lshlrev_b32 v{vDW}, 5, v11")
    a(f"v_add_u32 v{vDW}, {L_DW}, v{vDW}")
    a("v_and_b32 v14, 2, v12")
    a("v_xor_b32 v13, v13, v14")
    a(f"v_mul_u32_u24 v{vDE}, 3072, v12")
    a(f"v_lshl_add_u32 v{vDE}, v13, 4, v{vDE}")
    a(f"v_xor_b32 v{vDO}, 64, v{vDE}")
    a("v_lshrrev_b32 v12, 2, v10")
    a("v_lshl_add_u32 v13, v11, 3, v12")
    a(f"v_lshlrev_b32 v{vRB}, 7, v13")
    a("v_lshrrev_b32 v12, 1, v12")
    a("v_and_b32 v13, 1, v11")
    a("v_lshl_add_u32 v12, v13, 1, v12")
    a(f"v_lshl_add_u32 v{vRB}, v12, 5, v{vRB}")
    a("v_and_b32 v12, 3, v10")
    a(f"v_lshl_add_u32 v{vRB}, v12, 3, v{vRB}")
    a(f"s_mov_b32 s{sC0}, {f32(-C0)}")
    h = f16bits(-C0); a(f"s_mov_b32 s{sC0H}, 0x{h:04x}{h:04x}")
    a(f"s_mul_i32 s{sDS0}, s{sWV}, {6 * 24576}")
    a(f"s_add_u32 s{sSIG}, s{sSLO}, s{sSG0}")
    a(f"s_lshl_b32 s{sDLO}, s{sSLO}, 7")
    a(f"s_add_u32 s{sDLO}, s{sDLO}, s{sDS0}")
    a(f"s_lshl_b32 s{sDHI}, s{sSHI}, 7")
    a(f"s_add_u32 s{sDHI}, s{sDHI}, s{sDS0}")
    a(f"s_lshl_b32 s{sDSR}, s{sSG0}, 7")
    a(f"s_add_u32 s{sDSR}, s{sDSR}, s{sDLO}")
    a(f"s_mov_b32 s{sDSL}, s{sD0}")
    a(f"s_mov_b32 s{sTK}, 1")
    a(f"s_mov_b32 s{sW1+2}, {C * F * 2}")
    a(f"s_mov_b32 s{sW1+3}, 0x00020000")
    srd(a, sDB, sDBlo, sDBhi, 256)

    uid = [0]
    def dma():
        P = []
        for k in range(6):
            pre = [f"s_mov_b32 m0, s{sDSL}", f"s_mov_b32 s{sT0}, s{sDSR}"] if k == 0 else ["s_add_u32 m0, m0, 1024", f"s_add_u32 s{sT0}, s{sT0}, 24576"]
            P.append(pre + [f"buffer_load_dwordx4 v{(vDE, vDO)[k % 2]}, s[{sW1}:{sW1+3}], s{sT0} offen lds"])
        P[5] += [f"s_add_u32 s{sDSL}, s{sDSL}, 49152", f"s_cmp_ge_u32 s{sDSL}, 147456", f"s_cselect_b32 s{sDSL}, s{sD0}, s{sDSL}",
                 f"s_add_u32 s{sDSR}, s{sDSR}, 128", f"s_cmp_eq_u32 s{sDSR}, s{sDHI}", f"s_cselect_b32 s{sDSR}, s{sDLO}, s{sDSR}"]
        uid[0] += 1
        P[5] += [f"s_sub_u32 s{sDCN}, s{sDCN}, 1", f"s_cmp_lg_u32 s{sDCN}, 0", f"s_cbranch_scc1 K1_ds{uid[0]}",
                 f"s_lshl_b32 s{sDLO}, s{sSLN}, 7", f"s_add_u32 s{sDLO}, s{sDLO}, s{sDS0}", f"s_lshl_b32 s{sDHI}, s{sSHN}, 7", f"s_add_u32 s{sDHI}, s{sDHI}, s{sDS0}",
                 f"s_lshl_b32 s{sDSR}, s{sSG0}, 7", f"s_add_u32 s{sDSR}, s{sDSR}, s{sDLO}", f"K1_ds{uid[0]}:"]
        return P

    a(f"v_lshlrev_b32 v{ACC+4}, 3, v0")
    a(f"v_add_u32 v{ACC+4}, {L_DW}, v{ACC+4}")
    a("s_waitcnt vmcnt(12)")
    a(f"v_and_b32 v{ACC+2}, 0xffff, v{ACC}")
    a(f"v_and_b32 v{ACC+3}, 0xffff0000, v{ACC}")
    a(f"ds_write_b64 v{ACC+4}, {q(ACC+2, 2)}")
    a(f"v_mov_b32 v{BB+8}, 1")
    a(f"s_cmp_lg_u32 s{sWV}, 0")
    a("s_cbranch_scc1 K1_pj")
    a(f"v_lshlrev_b32 v{ACC+5}, 8, v0")
    a(f"s_and_b32 s{sT0}, s2, {NREP - 1}")
    a(f"s_lshl_b32 s{sT0}, s{sT0}, 2")
    a(f"buffer_atomic_add v{BB+8}, v{ACC+5}, s[{sDB}:{sDB+3}], s{sT0} offen sc0")
    a.label("K1_pj")
    for r in range(SQ, SQ + 24): a(f"v_mov_b32 v{r}, 0")
    srd(a, sH, sWSlo, sWShi, TAIL)
    a(f"s_mov_b32 s{sI}, 0")
    a(f"s_sub_u32 s{sEND}, s{sSHI}, s{sSLO}")
    a(f"s_mov_b32 s{sRDS}, 0")
    a(f"s_mov_b32 s{sKM}, {OPT['kmask']}")
    a(f"s_mov_b32 s{sDCN}, s{sEND}")
    a(f"s_sub_u32 s{sEND}, s{sEND}, 2")
    a("s_waitcnt lgkmcnt(0)")
    a("s_barrier")
    stamp(a, 1)

    def buf(i): return BB + 4 * (i % 8)
    def rd(i):
        ct, ks = divmod(i, 12)
        L = [f"v_xor_b32 v{vRD}, {((ct - 1) ^ ct) << 5}, v{vRD}"] if ks == 0 and ct > 0 else []
        return L + [f"ds_read_b64_tr_b16 {q(buf(i) + 2*u, 2)}, v{vRD} offset:{ks*4096 + u*512}" for u in range(2)]
    def head(): return [f"v_add_u32 v{vRD}, s{sRDS}, v{vRB}"] + [x for i in range(4) for x in rd(i)]

    DWR = [BB + 16, BB + 24]
    S = BB; Q = BB + 4; vTK = BB + 8; vW2 = BB + 10; vXR = BB + 12; vT = BB + 13; vFL = BB + 14
    KSO = [6, 7, 8, 9, 10, 11, 5, 4, 3, 2, 1, 0]
    def dwrd(m): return [f"ds_read_b128 {q(DWR[m % 2] + 4*j)}, v{vDW} offset:{KSO[m % 12]*128 + j*16}" for j in range(2)]
    def xaddr():
        return [f"v_and_b32 v{vT}, 15, v0", f"v_lshlrev_b32 v{vXR}, 7, v{vT}", f"v_bfe_u32 v{vT}, v0, 1, 2", f"v_bfe_u32 v{vFL}, v0, 4, 2",
                f"v_xor_b32 v{vT}, v{vT}, v{vFL}", f"v_lshl_add_u32 v{vXR}, v{vT}, 4, v{vXR}", f"v_add_u32 v{vT}, s{sCW2}, v{vXR}", f"v_add_u32 v{vXR}, s{sCW}, v{vXR}"]
    def xread(n):
        tt, kp = divmod(n, 6); kp = KPO[kp]
        return [f"ds_read_b128 {q(XN + 48*tt + 8*kp + 4*e)}, v{(vXR, vT)[n // 3 % 2]} offset:{(n % 3) * 2048 + e * 64}" for e in range(2)]
    a.ext(xaddr())
    a.label("K1_ln")
    a.ext(dwrd(0))
    def yreg(tt, d): return XN + 48*tt + 2*d if d < 24 else ACC + 2*(d - 24)
    for tt in range(3):
        for m in range(12):
            n = tt * 6 + m // 2; ks = KSO[m]
            if m % 2 == 0:
                if tt == 0: a(f"s_cbranch_vccnz K1_ta{n}")
                a(f"s_waitcnt vmcnt({2 * min(5, 17 - n) + (6 if n > 14 else 0)})")
                a.ext(xread(n))
                if tt == 0: a.label(f"K1_ta{n}")
            last = tt == 2 and m == 11
            if not last: a.ext(dwrd(m + 1))
            a(f"s_waitcnt lgkmcnt({0 if last else 2})")
            if m % 2 == 0:
                if tt == 0:
                    a(f"s_cbranch_vccnz K1_tb{n}")
                    a.ext(xdma(n + 6, OPT["x_nt"]))
                    a.label(f"K1_tb{n}")
                elif n + 6 < 18: a.ext(xdma(n + 6))
                if n in (14, 17):
                    for p in dma(): a.ext(p)
            D = DWR[m % 2]
            for jj in (3, 2, 1, 0):
                d = 4 * ks + jj; x = XN + 48*tt + d; y = yreg(tt, d)
                a(f"v_dot2_f32_bf16 v{y+1}, v{x}, v{D+2*jj+1}, 0")
                a(f"v_dot2_f32_bf16 v{y}, v{x}, v{D+2*jj}, 0")
            for jj in (3, 2, 1, 0):
                y = q(yreg(tt, 4 * ks + jj), 2); s_ = q(S + 2*(jj % 2), 2); q_ = q(Q + 2*(jj % 2), 2)
                if m == 0 and jj >= 2:
                    a(f"v_pk_mul_f32 {s_}, {y}, 1.0 op_sel_hi:[1,0]")
                    a(f"v_pk_mul_f32 {q_}, {y}, {y}")
                else:
                    a(f"v_pk_add_f32 {s_}, {s_}, {y}")
                    a(f"v_pk_fma_f32 {q_}, {y}, {y}, {q_}")
        a(f"v_pk_add_f32 {q(S,2)}, {q(S,2)}, {q(S+2,2)}")
        a(f"v_pk_add_f32 {q(Q,2)}, {q(Q,2)}, {q(Q+2,2)}")
        a(f"v_add_f32 v{S}, v{S}, v{S+1}")
        a(f"v_add_f32 v{Q}, v{Q}, v{Q+1}")
        for sw in ("v_permlane16_swap_b32", "v_permlane32_swap_b32"):
            a(f"v_mov_b32 v{S+1}, v{S}"); a(f"v_mov_b32 v{Q+1}, v{Q}")
            a("s_nop 0")
            a(f"{sw} v{S}, v{S+1}"); a(f"{sw} v{Q}, v{Q+1}")
            a(f"v_add_f32 v{S}, v{S}, v{S+1}"); a(f"v_add_f32 v{Q}, v{Q}, v{Q+1}")
        a(f"v_mul_f32 v{S}, {f32(-1.0 / C)}, v{S}")
        a(f"v_mul_f32 v{Q}, {f32(1.0 / C)}, v{Q}")
        a(f"v_fma_f32 v{Q}, -v{S}, v{S}, v{Q}")
        a(f"v_max_f32 v{Q}, 0, v{Q}")
        a(f"v_add_f32 v{Q}, {f32(1e-5)}, v{Q}")
        a(f"v_rsq_f32 v{Q}, v{Q}")
        a("s_nop 0")
        a(f"v_mul_f32 v{Q}, {f32(ALPHA)}, v{Q}")
        a(f"v_mul_f32 v{S}, v{S}, v{Q}")
        for d0 in range(0, 48, 4):
            for d in range(d0, d0 + 4):
                y = q(yreg(tt, d), 2)
                a(f"v_pk_fma_f32 {y}, {y}, {q(Q,2)}, {q(S,2)} op_sel_hi:[1,0,0]")
            for d in range(d0, d0 + 4):
                a(f"v_cvt_pk_bf16_f32 v{XN + 48*tt + d}, v{yreg(tt, d)}, v{yreg(tt, d) + 1}")
    a(f"s_cmp_lg_u32 s{sI}, 0")
    a("s_cbranch_scc1 K1_chk")
    if OPT["w1warm"]:
        a(f"s_lshr_b32 s{sT0}, s2, 3")
        a(f"s_lshl_b32 s{sT0}, s{sT0}, 3")
        a(f"s_add_u32 s{sT0}, s{sT0}, s{sWV}")
        a(f"s_mul_i32 s{sT0}, s{sT0}, 4608")
        a(f"v_and_b32 v{ACC}, 63, v0")
        a(f"v_min_u32 v{ACC}, 35, v{ACC}")
        a(f"v_lshlrev_b32 v{ACC}, 7, v{ACC}")
        a(f"s_mov_b32 m0, {L_DW + 2048}")
        a("s_waitcnt vmcnt(0)")
        a(f"buffer_load_dword v{ACC}, s[{sW1}:{sW1+3}], s{sT0} offen lds")
    a(f"v_readfirstlane_b32 s{sTK}, v{BB+8}")
    a("s_nop 3")
    a(f"s_cmp_lg_u32 s{sTK}, 0")
    a("s_cbranch_scc1 K1_flag")
    srd(a, 60, sWSlo, sWShi, NREP * 6144, SSQ)
    a(f"s_and_b32 s{sT0}, s2, {NREP - 1}")
    a(f"s_mul_i32 s{sT1}, s{sT0}, 6144")
    a(f"s_add_u32 s{sT2}, s{sT1}, 4096")
    for i in range(4): a(f"v_mov_b32 v{ACC+i}, 0")
    a(f"v_lshlrev_b32 v{ACC+4}, 4, v0")
    for k in range(6): a(f"buffer_store_dwordx4 {q(ACC)}, v{ACC+4}, s[60:63], s{(sT1, sT2)[k // 4]} offen offset:{(k % 4) * 1024} sc0 sc1")
    a(f"v_lshlrev_b32 v{ACC+5}, 8, v0")
    a(f"v_mov_b32 v{ACC+6}, 1")
    a(f"s_lshl_b32 s{sT0}, s{sT0}, 2")
    a("s_waitcnt vmcnt(0)")
    a(f"buffer_store_dword v{ACC+6}, v{ACC+5}, s[{sDB}:{sDB+3}], s{sT0} offen offset:64 sc0 sc1")
    a("s_branch K1_flag")
    a.label("K1_chk")
    a(f"v_readfirstlane_b32 s{sT1}, v{vFL+1}")
    a("s_nop 3")
    a(f"s_cmp_lg_u32 s{sT1}, 0")
    a("s_cbranch_scc1 K1_flag")
    a(f"v_mov_b32 v{vFL}, 0")
    a(f"buffer_load_dword v{vFL+1}, v{vFL}, s[{sDB}:{sDB+3}], s{sT2} offen offset:64 sc0 sc1")
    a("s_waitcnt vmcnt(0)")
    a("s_branch K1_chk")
    a.label("K1_flag")
    if OPT["w1warm"]:
        a(f"s_cmp_eq_u32 s{sI}, 0")
        a("s_cbranch_scc1 K1_fl2")
    a("s_waitcnt vmcnt(0)")
    a.label("K1_fl2")
    stamp2(a, 2, 5, sI)
    a("s_barrier")
    stamp2(a, 3, 6, sI)
    a.ext(head())
    if OPT["mst"]:
        a(f"s_mov_b32 s{sH+2}, 0")
        a(f"s_mov_b32 s{sST0}, 0")
        a(f"s_mov_b32 s{sST1}, 0")
    a(f"s_cmp_eq_u32 s{sGRP}, 0")
    a("s_cbranch_scc1 K1_regA")
    a("s_barrier")
    a("s_branch K1_regB")

    def accr(ct, tt): return ACC + (((ct >> 1) * 3 + tt) * 2 + (ct & 1)) * 4
    NT = OPT["ntail"]
    MST = OPT["mst"]
    def store(kind, cp, tt):
        keep = kind == "regk" or (kind != "tail" and (OPT["stm"] >> (cp * 3 + tt)) & 1)
        return (f"buffer_store_dwordx4 {q(ACC + (cp * 3 + tt) * 8 + 4 * MST)}, v{vST}, s[{sH}:{sH+3}], s{(sST0, sST1)[cp]} offen offset:{tt*1024}"
                + (" nt" if OPT["st_nt"] and not keep else ["", " sc1", " sc0 sc1", " sc0"][OPT["kf"]]))
    def step(kind, grp):
        tag = kind + "AB"[grp]
        BG = OPT["bg"] if grp == 0 else OPT["bgb"]
        if kind == "tail":
            a.label(f"K1_pre{tag}")
            if OPT["npf"]:
                a("s_getpc_b64 s[60:61]")
                a.label(f"K1_pc{tag}")
                a(f"v_lshlrev_b32 v{TMP}, 7, v0")
                a(f"v_min_u32 v{TMP}, K3_end-K1_fin, v{TMP}")
                a(f"v_add_u32 v{TMP}, K1_fin-K1_pc{tag}, v{TMP}")
                a(f"v_mov_b32 v{TMP+3}, s61")
                a(f"v_add_co_u32 v{TMP+2}, vcc, s60, v{TMP}")
                a(f"s_mov_b32 m0, {L_DW + 2048}")
                a("s_nop 0")
                a(f"v_addc_co_u32 v{TMP+3}, vcc, 0, v{TMP+3}, vcc")
                a(f"global_load_lds_dword {q(TMP+2, 2)}, off")
        a(".p2align 6")
        a.label(f"K1_{tag}")
        a(f"s_setprio {OPT['pm']}")
        P = dma()
        misc = [[f"s_add_u32 s{sRDS}, s{sRDS}, 49152", f"s_cmp_eq_u32 s{sRDS}, 147456", f"s_cselect_b32 s{sRDS}, 0, s{sRDS}",
                 f"s_mul_i32 s{sST0}, s{sSIG}, {2 * CHUNK_H}", f"s_add_u32 s{sST0}, s{sST0}, s{sHB}"],
                [f"s_cmp_eq_u32 s{sSIG}, s{sDSP}", f"s_cselect_b32 s{sH}, s{sOUTlo}, s{sWSlo}", f"s_cselect_b32 s{sH+1}, s{sOUThi}, s{sWShi}",
                 f"s_cselect_b32 s{sST0}, s59, s{sST0}", f"s_mov_b32 s{sT1}, {XBYTES}", f"s_cselect_b32 s{sH+2}, s{sT1}, {TAIL}"],
                [f"s_add_u32 s{sST1}, s{sST0}, {CHUNK_H}", f"s_add_u32 s{sI}, s{sI}, 1"]]
        def atoms(L):
            out = []; hold = False
            for x in L:
                if hold: out[-1].append(x)
                else: out.append([x])
                if x.startswith("s_cbranch"): hold = True
                if x.endswith(":"): hold = False
            return out
        early = atoms([x for m_ in misc for x in m_])
        if kind == "pre":
            late = [f"s_mov_b32 s{sCW}, s{sDSL}", f"s_mov_b32 s{sXB}, s{sXN}", f"s_add_u32 s{sCW2}, s{sDSL}, 49152",
                    f"s_cmp_ge_u32 s{sCW2}, 147456", f"s_cselect_b32 s{sCW2}, s{sD0}, s{sCW2}"] + [x for n_ in range(3) for x in xdma(n_, OPT["xp_nt"])]
        elif kind == "last": late = [x for n_ in range(3, 6) for x in xdma(n_, OPT["xp_nt"])]
        else: late = [x for p in P for x in p]
        late = atoms(late)
        if MST:
            ST = [[store(kind, cp, tt)] for cp in range(2) for tt in range(3)]
            ind = early[:3] + early[-1:]; dep = early[3:-1]
            if grp == 0:
                early = [ST[0], ind[0], ind[1], ST[1], ind[2], ind[3], ST[2], [], ST[3], [], ST[4], [], ST[5]] + dep[:2]
                late = late + dep[2:]
            else:
                seq = late + ind
                lastd = max(z for z, x in enumerate(seq) if x[0].startswith("buffer"))
                for z, pos in reversed(list(enumerate([0, 3, 6, lastd + 2, lastd + 3 + (len(late) > lastd + 3), lastd + 4 + 2 * (len(late) > lastd + 3)]))): seq.insert(pos, ST[z])
                early, late = seq + dep, []
            nafter = 3
        elif grp == 1: early, late = late + early, []
        nse = sum(1 for x in early if x and x[0].startswith("buffer_store"))
        SPR = OPT["spr"]
        for g in range(12):
            a("s_waitcnt lgkmcnt(0)")
            k = 0
            ct = g // 3
            R = [x for j in range(4) for x in rd((g + 1) * 4 + j)] if g < 11 else []
            xo = None
            if len(R) == 9: R = R[1:]
            if 0 < g + 2 < 12 and (g + 2) % 3 == 0: xo = rd((g + 2) * 4)[0]
            if OPT["rpg"] == 2: R = [R[2*z] + "\n" + R[2*z+1] for z in range(len(R) // 2)]
            if OPT["rpg"] == 3: R = [R[0] + "\n" + R[1], R[2] + "\n" + R[3]] + R[4:] if R else R
            for tt in range(3):
                for j in range(4):
                    i = g * 4 + j; ks = i % 12
                    c = "0" if ks == 0 else q(accr(ct, tt))
                    a(f"v_mfma_f32_16x16x32_bf16 {q(accr(ct, tt))}, {q(XN + 48*tt + 4*ks)}, {q(buf(i))}, {c}")
                    if k < len(R): a(R[k])
                    elif k == 11 and xo: a(xo)
                    elif g == BG and grp == 0 and k == 9:
                        assert not early
                        if kind != "last" and not OPT["k1nv"] & 1: a(f"s_waitcnt vmcnt({nse if MST else 6})")
                        a("s_barrier")
                        early, late = late, []
                    else:
                        for _ in range(SPR):
                            if early:
                                at = early.pop(0); a.ext(at)
                                if at and at[0].startswith("buffer_store"): assert g < (3 if f"s{sST0} " in at[0] else 9), (g, at)
                                if not at or at[0].startswith("buffer"): break
                    k += 1
        assert not early and not late
        a(f"s_setprio {OPT['pg0']}")
        if kind == "last": a.ext(xaddr())
        def gbar():
            if kind == "tail":
                a(f"s_cmp_eq_u32 s{sI}, 36")
                a(f"s_cbranch_scc1 K1_nogb")
            if kind != "pre" and not OPT["k1nv"] & 2: a(f"s_waitcnt vmcnt({nafter if MST else nb - len(pend)})")
            a("s_barrier")
            if kind == "tail": a.label("K1_nogb")
        nb = 0; pend = []
        for cp in range(2):
            for tt in range(3):
                b = ACC + (cp * 3 + tt) * 8
                GB = gelu_batch(b, TMP, SS + 2 * cp, tt == 0, sC0, sC0H)
                if OPT["gbo"] and nb == OPT["gb"] and grp == 1 and kind != "last":
                    a.ext(GB[:OPT["gbo"]]); gbar(); a.ext(GB[OPT["gbo"]:])
                else: a.ext(GB)
                if not MST or kind == "last": pend.append(store(kind, cp, tt))
                if kind == "last" or nb + 1 >= OPT["lst"]:
                    a.ext(pend); pend = []
                if kind == "last":
                    a(f"s_waitcnt vmcnt({13 + 3 * nb if nb < 3 else 11 + nb})")
                    a.ext(xread(nb))
                    a("s_waitcnt lgkmcnt(0)")
                    a.ext(xdma(nb + 6, OPT["xp_nt"]))
                nb += 1
                if nb == OPT["gb"] and grp == 1 and kind != "last" and not OPT["gbo"]: gbar()
                if nb == OPT["gp"]: a(f"s_setprio {OPT['pg1']}")
                if nb == OPT["hd"] and kind != "last": a.ext(head())
            if not OPT["sdot"]:
                a(f"v_permlane16_swap_b32 v{SS+2*cp}, v{SS+2*cp+1}")
                if cp == 0: a("s_nop 0")
                a(f"v_add_f32 v{SS+2*cp}, v{SS+2*cp}, v{SS+2*cp+1}")
        if OPT["sdot"]:
            for tt in range(3):
                for i in range(2):
                    for c in range(4):
                        p = ACC + ((c >> 1) * 3 + tt) * 8 + 2 * (c & 1) + i + 4 * MST
                        a(f"v_dot2_f32_bf16 v{SS+c}, v{p}, v{p}, 0" if tt == 0 and i == 0 else (f"v_dot2_f32_bf16 v{SS+c}, v{p}, v{p}, v{SS+c}" if OPT["sdot"] == 1 else f"v_dot2c_f32_bf16 v{SS+c}, v{p}, v{p}"))
                    if pend: a(pend.pop(0))
                    if OPT["hd"] == 7 and kind != "last":
                        H_ = head(); z = tt * 2 + i
                        a.ext(H_[:3] if z == 0 else H_[1 + 2 * z: 3 + 2 * z])
            a(f"s_add_u32 s{sT1}, s{sSIG}, 1")
            a(f"v_permlane16_swap_b32 v{SS}, v{SS+1}")
            a(f"s_cmp_eq_u32 s{sT1}, s{sSHI}")
            a(f"v_permlane16_swap_b32 v{SS+2}, v{SS+3}")
            a(f"v_add_f32 v{SS}, v{SS}, v{SS+1}")
            a(f"v_add_f32 v{SS+2}, v{SS+2}, v{SS+3}")
        else:
            a(f"s_add_u32 s{sT1}, s{sSIG}, 1")
            a(f"s_cmp_eq_u32 s{sT1}, s{sSHI}")
        a(f"s_cselect_b32 s{sT1}, s{sSLO}, s{sT1}")
        a("s_nop 0")
        a(f"v_permlane32_swap_b32 v{SS}, v{SS+2}")
        a(f"v_add_f32 v{SS}, v{SS}, v{SS+2}")
        a(f"s_set_gpr_idx_on s{sSIG}, gpr_idx(SRC0,DST)")
        a(f"s_mov_b32 s{sSIG}, s{sT1}")
        a(f"v_add_f32 v{SQ}, v{SQ}, v{SS}")
        a("s_set_gpr_idx_off")
        if kind in ("reg", "regk"):
            g_ = "AB"[grp]
            if OPT["kmask"]:
                a(f"s_cmp_eq_u32 s{sI}, s{sEND}")
                a(f"s_cbranch_scc1 K1_out{g_}")
                a(f"s_bitcmp1_b32 s{sKM}, s{sSIG}")
                a(f"s_cbranch_scc{int(kind == 'regk')} K1_{tag}")
                if kind == "reg": a(f"s_branch K1_regk{g_}")
            else:
                a(f"s_cmp_lg_u32 s{sI}, s{sEND}")
                a(f"s_cbranch_scc1 K1_{tag}")
            if kind == "reg":
                a.label(f"K1_out{g_}")
                a(f"s_cmp_eq_u32 s{sI}, {36 - NT}")
                a(f"s_cbranch_scc1 K1_pretail{g_}")
        elif kind == "pre":
            pass
        elif kind == "last":
            a("s_branch K1_sw")
        else:
            a(f"s_cmp_lg_u32 s{sI}, 36")
            a(f"s_cbranch_scc1 K1_{tag}")
            a("s_branch K1_fin")
    for grp in range(2):
        for kind in (("regk",) if OPT["kmask"] else ()) + ("reg", "pre", "last", "tail"): step(kind, grp)
    a.label("K1_sw")
    a("s_setprio 0")
    a("s_mov_b64 vcc, -1")
    stamp(a, 4)
    a(f"s_mov_b32 s{sEND}, {36 - NT}")
    a(f"s_mov_b32 s{sSLO}, s{sSLN}")
    a(f"s_mov_b32 s{sSHI}, s{sSHN}")
    a(f"s_add_u32 s{sSIG}, s{sSLO}, s{sSG0}")
    a(f"s_mov_b32 s{sHB}, s{sHN}")
    a(f"s_mov_b32 s{sDSP}, s{sDSN}")
    a(f"s_and_b32 s{sT2}, s2, {NREP - 1}")
    a(f"s_lshl_b32 s{sT2}, s{sT2}, 2")
    a("s_waitcnt lgkmcnt(0)")
    a(f"v_mov_b32 v{vFL}, 0")
    a(f"buffer_load_dword v{vFL+1}, v{vFL}, s[{sDB}:{sDB+3}], s{sT2} offen offset:64 sc0 sc1")
    if OPT["w2pf"]:
        a("s_load_dwordx2 s[60:61], s[0:1], 24")
        a(f"s_mov_b32 s62, {C * F * 2}")
        a("s_mov_b32 s63, 0x00020000")
        a(f"s_mul_i32 s{sT0}, s2, 4608")
        a(f"v_lshlrev_b32 v{BB+10}, 7, v0")
        a(f"v_min_u32 v{BB+10}, 4480, v{BB+10}")
        a("s_waitcnt lgkmcnt(0)")
        a(f"s_cmp_lg_u32 s{sWV}, 0")
        a("s_cbranch_scc1 K1_ln")
        a(f"buffer_load_dword v{BB+11}, v{BB+10}, s[60:63], s{sT0} offen")
    a("s_branch K1_ln")
    a.label("K1_fin")
    a("s_setprio 0")
    if MST:
        for cp in range(2):
            for tt in range(3): a(store("tail", cp, tt))
    stamp(a, 7)
    a(f"s_and_b32 s{sT0}, s2, {NREP - 1}")
    a(f"s_waitcnt vmcnt(6) lgkmcnt(0)")
    a("s_barrier")
    a("v_and_b32 v1, 63, v0")
    a("v_lshlrev_b32 v1, 2, v1")
    a(f"v_add_u32 v1, s{sD0}, v1")
    for k in range(24): a(f"ds_write_b32 v1, v{SQ+k} offset:{k*256}")
    a("v_lshlrev_b32 v1, 2, v0")
    a("s_waitcnt lgkmcnt(0)")
    a("s_barrier")
    for k in range(3):
        for w in range(8): a(f"ds_read_b32 v{XN+8*k+w}, v1 offset:{w*6144 + k*2048}")
    srd(a, 60, sWSlo, sWShi, NREP * 6144, SSQ)
    a(f"s_mul_i32 s{sT0}, s{sT0}, 6144")
    a(f"s_add_u32 s{sT1}, s{sT0}, 4096")
    a("s_waitcnt lgkmcnt(0)")
    for st in (4, 2, 1):
        for k in range(3):
            for w in range(st): a(f"v_add_f32 v{XN+8*k+w}, v{XN+8*k+w}, v{XN+8*k+w+st}")
    a(f"buffer_atomic_add_f32 v{XN}, v1, s[60:63], s{sT0} offen")
    a(f"buffer_atomic_add_f32 v{XN+8}, v1, s[60:63], s{sT0} offen offset:2048")
    a(f"buffer_atomic_add_f32 v{XN+16}, v1, s[60:63], s{sT1} offen")
    if OPT["stamp"]: a("s_waitcnt vmcnt(0)")
    stamp(a, 8)
    stamp_dump(a, 9, sWV, "K1", 0)
    a.label("K1_end")
    a("s_endpgm")
    return a, desc("gemm1_kernel", 256, 100), f"; @launch kernel=gemm1_kernel grid=(256,1,1) block=(512,1,1) lds={L_DW + 4096}"

T1B = 46 * CHUNK_H; T2B = 94 * CHUNK_H
def k3r():
    REG = 3 * 192 * 768
    a = Asm()
    ACC = 16; HB = 160; WB = 184; SEL = 208; BIAS = 216; XT = 240
    vD0, vWR, vHR0, vHR1, vXR, vOUT, vWB0, vHB0, vHB1 = 1, 4, 5, 6, 7, 8, 9, 10, 11
    L_H = 73728; L_X = 147456
    sD, sO = 8, 12
    (sWV, sTH, sCQ, sSrc, sDst, sSlot, sDLo, sDEnd, sT0, sT1, sWS, sHS, sPASS, sOB, sEV, sT2, sJd, sLag, sSrc3, sSrcL, sSrcL3, sLim, sHalf, sDP, sHlo, sHhi) = range(30, 56)
    STG = OPT["stg"]; NB = (5 * STG + 1 + 3) // 4 * 4
    kernel_start(a, "gemm2_kernel")
    a("s_cmp_ge_u32 s2, 256")
    a("s_cbranch_scc1 K3_end")
    stamp(a, 0)
    a("s_load_dwordx2 s[4:5], s[0:1], 0")
    a("s_load_dwordx2 s[6:7], s[0:1], 48")
    a("s_load_dwordx2 s[24:25], s[0:1], 64")
    code_prefetch(a, "gemm2_kernel", "K3_end", 100, 60)
    a("v_lshrrev_b32 v16, 6, v0")
    a("v_and_b32 v17, 63, v0")
    a(f"v_readfirstlane_b32 s{sWV}, v16")
    a(f"v_lshlrev_b32 v{vD0}, 4, v17")
    a(f"v_add_u32 v{vD0+1}, 1024, v{vD0}")
    a(f"v_add_u32 v{vD0+2}, 2048, v{vD0}")
    a("v_and_b32 v18, 15, v17")
    a("v_lshrrev_b32 v19, 4, v17")
    a("v_mul_u32_u24 v20, 24, v18")
    a(f"s_lshr_b32 s{sTH}, s{sWV}, 2")
    a(f"s_and_b32 s{sCQ}, s{sWV}, 3")
    a(f"s_mov_b32 s{sD+3}, 0x00020000")
    a(f"s_mov_b32 s{sO+3}, 0x00020000")
    a(f"s_mov_b32 s{sO+2}, 0")
    a(f"s_mul_i32 s{sT0}, s2, {REG}")
    a(f"s_and_b32 s{sHalf}, s{sWV}, 1")
    a(f"s_mul_i32 s{sHalf}, s{sHalf}, 6144")
    a(f"s_mul_i32 s{sT1}, s2, {HSTRIDE}")
    a(f"s_mov_b32 s{sJd}, 0")
    a(f"s_mov_b32 s{sLag}, 0")
    a(f"s_mov_b32 s{sDP}, 0")
    a(f"s_mov_b32 s{sSrc}, s{sHalf}")
    a("s_waitcnt lgkmcnt(0)")
    a(f"s_add_u32 s{sO}, s6, s{sT0}")
    a(f"s_addc_u32 s{sO+1}, s7, 0")
    a(f"s_add_u32 s{sHlo}, s24, s{sT1}")
    a(f"s_addc_u32 s{sHhi}, s25, 0")
    srd(a, 16, 24, 25, 1536 * NBP, B2)
    a(f"s_mul_i32 s{sT1}, s{sCQ}, 384")
    for p in range(NBP):
        a(f"buffer_load_dwordx3 {q(24 + 8*p, 3)}, v20, s[16:19], s{sT1} offen")
        a(f"buffer_load_dwordx3 {q(28 + 8*p, 3)}, v20, s[16:19], s{sT1} offen offset:12")
        if p < NBP - 1: a(f"s_add_u32 s{sT1}, s{sT1}, 1536")

    nt = " nt" if OPT["h_nt"] else ""
    def pieces_w():
        P = []
        for k in range(6):
            pre = [f"s_mov_b32 m0, s{sDst}", f"s_add_u32 s{sT2}, s{sSrc}, 3072"] if k == 0 else ["s_add_u32 m0, m0, 1024", "s_nop 0"]
            P.append(pre + [f"buffer_load_dwordx4 v{vD0 + k % 3}, s[{sD}:{sD+3}], s{sSrc if k < 3 else sT2} offen lds"])
        P[5] += [f"s_add_u32 s{sDst}, s{sDst}, 24576", f"s_cmp_eq_u32 s{sDst}, s{sDEnd}", f"s_cselect_b32 s{sDst}, s{sDLo}, s{sDst}",
                 f"s_add_u32 s{sSrc}, s{sSrc}, 24576", f"s_cmp_ge_u32 s{sSrc}, 1179648", f"s_cselect_b32 s{sSrc}, s{sDLo}, s{sSrc}"]
        return P
    uid = [0]
    def pieces_h():
        P = []
        for k in range(6):
            if k == 0:
                P.append([f"s_mov_b32 m0, s{sDst}", f"s_add_u32 s{sSrc3}, s{sSrc}, 3072",
                          f"buffer_load_dwordx4 v{vD0}, s[{sD}:{sD+3}], s{sSrc} offen{nt} lds",
                          f"s_sub_u32 s{sSrcL}, s{sSrc}, s{sLag}", f"s_sub_u32 s{sSrcL3}, s{sSrc3}, s{sLag}"])
            else:
                P.append(["s_add_u32 m0, m0, 1024", f"s_cmp_lt_u32 s{sJd}, {STG * k}",
                          f"s_cselect_b32 s{sT2}, s{sSrcL if k < 3 else sSrcL3}, s{sSrc if k < 3 else sSrc3}",
                          f"buffer_load_dwordx4 v{vD0 + k % 3}, s[{sD}:{sD+3}], s{sT2} offen{nt} lds"])
        uid[0] += 1; u = uid[0]
        P[5] += [f"s_add_u32 s{sDst}, s{sDst}, s{sSlot}", f"s_cmp_eq_u32 s{sDst}, s{sDEnd}", f"s_cselect_b32 s{sDst}, s{sDLo}, s{sDst}",
                 f"s_add_u32 s{sSrc}, s{sSrc}, 12288", f"s_cmp_ge_u32 s{sSrc}, s{sLim}", f"s_cselect_b32 s{sD+2}, 0, s{sD+2}",
                 f"s_add_u32 s{sJd}, s{sJd}, 1", f"s_cmp_lt_u32 s{sJd}, 46", f"s_cbranch_scc1 K3_av{u}",
                 f"s_add_u32 s{sT2}, s{sJd}, s{sDP}", f"s_cmp_lg_u32 s{sT2}, 46", f"s_cbranch_scc1 K3_aw{u}",
                 f"s_mov_b32 s{sD}, s{sO}", f"s_mov_b32 s{sD+1}, s{sO+1}", f"s_mov_b32 s{sD+2}, {REG}", f"s_add_u32 s{sSrc}, s{sHalf}, {2 * 192 * 768}",
                 f"K3_aw{u}:", f"s_cmp_lg_u32 s{sJd}, 48", f"s_cbranch_scc1 K3_av{u}",
                 f"s_mov_b32 s{sJd}, 0", f"s_mov_b32 s{sLag}, {48 * CHUNK_H}", f"s_cmp_lg_u32 s{sDP}, 0", f"s_cbranch_scc1 K3_av{u}",
                 f"s_mov_b32 s{sDP}, 100", f"s_mov_b32 s{sLag}, {46 * CHUNK_H}", f"s_mov_b32 s{sD}, s{sHlo}", f"s_mov_b32 s{sD+1}, s{sHhi}",
                 f"s_mov_b32 s{sD+2}, {HSTRIDE}", f"s_add_u32 s{sSrc}, s{sHalf}, {T1B}",
                 f"K3_av{u}:"]
        return P

    a(f"s_cmp_lt_u32 s{sWV}, 4")
    a("s_cbranch_scc1 K3_rw")
    a(f"s_cmp_ge_u32 s{sWV}, 6")
    a("s_cbranch_scc1 K3_rx")
    a(f"s_mov_b32 s{sD}, s{sHlo}")
    a(f"s_mov_b32 s{sD+1}, s{sHhi}")
    a(f"s_mov_b32 s{sD+2}, {HSTRIDE}")
    a(f"s_add_u32 s{sDLo}, s{sHalf}, {L_H}")
    a(f"s_mov_b32 s{sDst}, s{sDLo}")
    a(f"s_add_u32 s{sDEnd}, s{sDLo}, 73728")
    a(f"s_mov_b32 s{sSlot}, {CHUNK_H}")
    a(f"s_mov_b32 s{sLim}, -1")
    a(f"s_mov_b32 s{sT1}, 5")
    a.label("K3_hpro")
    for p in pieces_h(): a.ext(p)
    a(f"s_sub_u32 s{sT1}, s{sT1}, 1")
    a(f"s_cmp_lg_u32 s{sT1}, 0")
    a("s_cbranch_scc1 K3_hpro")
    a("s_mov_b64 s[56:57], 0")
    a("s_branch K3_rdone")
    a.label("K3_rx")
    a(f"s_add_u32 s{sD}, s4, s{sT0}")
    a(f"s_addc_u32 s{sD+1}, s5, 0")
    a(f"s_mov_b32 s{sD+2}, {REG}")
    for m in range(3):
        v = vD0 + m
        a(f"v_mul_u32_u24 v20, 43691, v{v}")
        a("v_lshrrev_b32 v20, 25, v20")
        a("v_mul_u32_u24 v21, 864, v20")
        a(f"v_sub_u32 v21, v{v}, v21")
        a("v_add_u32 v22, 768, v21")
        a("v_cmp_gt_i32 vcc, 0, v21")
        a("v_mul_u32_u24 v20, 768, v20")
        a("s_nop 0")
        a("v_cndmask_b32 v21, v21, v22, vcc")
        a(f"v_add_u32 v{v}, v20, v21")
    a(f"s_add_u32 s{sDLo}, s{sHalf}, {L_X}")
    a(f"s_mov_b32 s{sDEnd}, 0")
    a(f"s_mov_b32 s{sSlot}, 0")
    a(f"s_mov_b32 s{sDst}, s{sDLo}")
    a(f"s_mov_b32 s{sLim}, {REG}")
    a("s_mov_b64 s[56:57], -1")
    a("s_branch K3_rdone")
    a.label("K3_rw")
    a(f"s_add_u32 s{sD}, s24, {W2F}")
    a(f"s_addc_u32 s{sD+1}, s25, 0")
    a(f"s_mov_b32 s{sD+2}, 1179648")
    a(f"s_mul_i32 s{sDLo}, s{sCQ}, 6144")
    a(f"s_add_u32 s{sDEnd}, s{sDLo}, 73728")
    a(f"s_mov_b32 s{sDst}, s{sDLo}")
    a(f"s_mov_b32 s{sSrc}, s{sDLo}")
    for _ in range(2):
        for p in pieces_w(): a.ext(p)
    a("s_mov_b64 s[56:57], 0")
    a.label("K3_rdone")
    a(f"v_mul_u32_u24 v{vOUT}, 3072, v19")
    a("v_mul_u32_u24 v21, 12, v18")
    a(f"s_mul_i32 s{sT0}, s{sTH}, {96 * 768}")
    a(f"s_mul_i32 s{sT1}, s{sCQ}, 192")
    a(f"s_add_u32 s{sT0}, s{sT0}, s{sT1}")
    a(f"v_add3_u32 v{vOUT}, v{vOUT}, v21, s{sT0}")
    a(f"s_mul_i32 s{sT0}, s{sCQ}, 6144")
    a(f"v_lshl_add_u32 v{vWB0}, v17, 4, s{sT0}")
    a("v_and_b32 v21, 3, v18")
    a("v_lshrrev_b32 v22, 2, v18")
    a("v_and_b32 v23, 2, v19")
    a("v_xor_b32 v23, v23, v21")
    a("v_lshl_add_u32 v22, v23, 2, v22")
    a("v_lshl_add_u32 v22, v21, 4, v22")
    a("v_lshlrev_b32 v22, 4, v22")
    a("v_and_b32 v23, 1, v19")
    a("v_lshl_add_u32 v22, v23, 3, v22")
    a(f"s_mul_i32 s{sT0}, s{sTH}, 6144")
    a(f"s_add_u32 s{sT0}, s{sT0}, {L_H}")
    a(f"v_add_u32 v{vHB0}, s{sT0}, v22")
    a(f"v_xor_b32 v{vHB1}, 64, v{vHB0}")
    a(f"s_lshl_b32 s{sT0}, s{sCQ}, 2")
    a("v_lshl_add_u32 v22, v21, 1, v19")
    a(f"v_add_u32 v22, s{sT0}, v22")
    a("v_and_b32 v22, 15, v22")
    a("v_mul_u32_u24 v22, 48, v22")
    a("v_mul_u32_u24 v23, 768, v18")
    a(f"v_add_u32 v22, {L_X}, v22")
    a(f"v_add_u32 v{vXR}, v22, v23")
    a("v_lshrrev_b32 v22, 2, v18")
    a("v_cmp_eq_u32 vcc, v22, v19")
    a("v_mov_b32 v23, 0x3f80")
    a("s_nop 0")
    a("v_cndmask_b32 v23, 0, v23, vcc")
    for e in range(4):
        a(f"v_cmp_eq_u32 vcc, {e}, v21")
        a("s_nop 1")
        a(f"v_cndmask_b32 v{SEL+e}, 0, v23, vcc")
        a(f"v_lshlrev_b32 v{SEL+4+e}, 16, v{SEL+e}")
    a("s_mov_b64 vcc, s[56:57]")
    a(f"s_mov_b32 s{sWS}, 0")
    a(f"s_mov_b32 s{sHS}, 0")
    a(f"s_mov_b32 s{sPASS}, 0")
    a(f"s_mov_b32 s{sOB}, 0")
    a("s_waitcnt vmcnt(24)")
    a(f"s_cmp_eq_u32 s{sSlot}, {CHUNK_H}" if False else f"s_sub_u32 s{sT0}, s{sWV}, 4")
    a(f"s_cmp_lt_u32 s{sT0}, 2")
    a("s_cbranch_scc1 K3_pw")
    a("s_waitcnt vmcnt(6)")
    a("s_cbranch_vccz K3_pw")
    a("s_waitcnt vmcnt(0)")
    a.label("K3_pw")
    for p in range(1, NBP):
        for n in range(6):
            src = 24 + n if n < 3 else 25 + n
            a(f"v_add_f32 v{src}, v{src}, v{src + 8*p}")
    for n in range(6):
        src = 24 + n if n < 3 else 25 + n
        for r in range(4): a(f"v_mov_b32 v{BIAS+4*n+r}, v{src}")
    stamp(a, 1)

    def accr(n, t): return ACC + (t * 6 + n) * 4
    ofl = ["", " nt", " sc1", " sc0 sc1", " sc0"][OPT["out_nt"]]
    def mini(t):
        L = [f"s_add_u32 s{sT1}, s{sOB}, {t * 12288}"]
        for r in range(4):
            tq = XT + 4 * r if STG % 2 == 0 else (12, 252)[r % 2]
            for j in range(3): L.append(f"v_cvt_pk_bf16_f32 v{tq+j}, v{accr(2*j, t)+r}, v{accr(2*j+1, t)+r}")
            if not OPT["k3nost"]: L.append(f"buffer_store_dwordx3 {q(tq, 3)}, v{vOUT}, s[{sO}:{sO+3}], s{sT1} offen offset:{r*768}" + ofl)
        return L
    def step(grp, u, bnd):
        u4 = u % 4; tag = f"{grp}{'b' if bnd else 'l'}{u}"
        L = [f"v_add_u32 v{vWR}, s{sWS}, v{vWB0}", f"v_add_u32 v{vHR0}, s{sHS}, v{vHB0}", f"v_add_u32 v{vHR1}, s{sHS}, v{vHB1}"]
        R = []
        for t in range(6):
            R.append(f"ds_read_b128 {q(WB + 4*t)}, v{vWR} offset:{t*1024}")
            R.append(f"ds_read_b64_tr_b16 {q(HB + 4*t, 2)}, v{vHR0} offset:{t*1024}")
            R.append(f"ds_read_b64_tr_b16 {q(HB + 4*t + 2, 2)}, v{vHR1} offset:{t*1024}")
        P = pieces_w() if grp == 0 else pieces_h()
        def gd(X, z): return X if grp == 0 or u4 == 0 else [f"s_cbranch_vccnz K3_s{tag}{z}"] + X + [f"K3_s{tag}{z}:"]
        L += gd(P[0], "a") + R[:6] + gd(P[1], "b") + R[6:12] + gd(P[2], "c") + R[12:]
        if u4 == 3:
            L += [f"s_sub_u32 s{sT0}, s{sEV}, {6*grp}", f"s_cmp_lt_u32 s{sT0}, 6", f"s_cbranch_scc0 K3_xr{tag}"]
            for p in range(3):
                L.append(f"ds_read2_b32 {q(XT + 4*p, 2)}, v{vXR} offset0:{p} offset1:{p+3}")
                L.append(f"ds_read2_b32 {q(XT + 4*p + 2, 2)}, v{vXR} offset0:{p+6} offset1:{p+9}")
            L.append(f"K3_xr{tag}:")
        L += gd(P[3] + P[4] + P[5], "d")
        L += [f"s_add_u32 s{sWS}, s{sWS}, 24576", f"s_cmp_eq_u32 s{sWS}, 73728", f"s_cselect_b32 s{sWS}, 0, s{sWS}",
              f"s_add_u32 s{sHS}, s{sHS}, 12288", f"s_cmp_eq_u32 s{sHS}, 73728", f"s_cselect_b32 s{sHS}, 0, s{sHS}"]
        tb = u // STG if bnd and u % STG == 0 and u // STG < 6 else None
        def nst(back):
            if not bnd or OPT["k3nost"]: return 0
            return 4 * sum(1 for w in range(max(0, u - back), u + 1 - grp) if w % STG == 0 and w // STG < 6)
        if tb == 5:
            a(f"s_cmp_eq_u32 s{sPASS}, 3")
            a("s_cbranch_scc1 K3_fin")
        a.ext(L)
        if grp == 0:
            a("s_waitcnt lgkmcnt(0)")
            a(f"s_setprio {OPT['k3pa']}")
        else:
            if u4 == 2:
                a(f"s_cbranch_vccz K3_nx{tag}")
                a(f"s_waitcnt vmcnt({nst(2)})")
                a.label(f"K3_nx{tag}")
            a(f"s_waitcnt vmcnt({24 + nst(4)}) lgkmcnt(0)")
            a("s_barrier")
            a(f"s_setprio {OPT['k3pb']}")
        if u4 == 3:
            a(f"s_cmp_lt_u32 s{sT0}, 6")
            a(f"s_cbranch_scc0 K3_xd{tag}")
            ts = range(6) if not bnd else [t for t in range(6) if t + 6 * grp == u // 4]
            for t in ts:
                if t != ts[-1]:
                    a(f"s_cmp_lg_u32 s{sT0}, {t}")
                    a(f"s_cbranch_scc1 K3_x{tag}_{t+1}")
                for n in range(6):
                    a(f"v_mfma_f32_16x16x32_bf16 {q(accr(n, t))}, {q(XT + 4*(n >> 1))}, {q(SEL + 4*(n & 1))}, {q(accr(n, t))}")
                if t != ts[-1]:
                    a(f"s_branch K3_xd{tag}")
                    a.label(f"K3_x{tag}_{t+1}")
            a.label(f"K3_xd{tag}")
            a(f"s_add_u32 s{sEV}, s{sEV}, 1")
        def mf(t): return [f"v_mfma_f32_16x16x32_bf16 {q(accr(n, t))}, {q(HB + 4*t)}, {q(WB + 4*n)}, {q(BIAS + 4*n) if t == tb else q(accr(n, t))}" for n in range(6)]
        bar = [f"s_waitcnt vmcnt({6 + nst(1)})", "s_barrier"] if grp == 0 else []
        ns = u // STG + 1 if bnd else 6
        def full():
            order = [t for t in range(6) if t != tb] + ([tb] if tb is not None else [])
            Ms = [[x] for t in order for x in mf(t)]
            if tb is not None:
                E = mini(tb)
                pos = OPT["mp0"]
                for x in E:
                    Ms[pos].append(x)
                    if not x.startswith("s_"): pos += 1
                    if x.startswith("buffer"): pos += OPT["mpd"]
                assert pos <= 29
            e = OPT["k3eb"] if grp == 0 else 0
            Ms[35 - e] += (["s_setprio 3"] if e else []) + bar
            a.ext([x for m in Ms for x in m])
        if ns >= 6:
            full()
        else:
            a(f"s_sub_u32 s{sT2}, s{sPASS}, 1")
            a(f"s_cmp_lt_u32 s{sT2}, 2")
            a(f"s_cbranch_scc0 K3_m0{tag}")
            full()
            a(f"s_branch K3_m3{tag}")
            a.label(f"K3_m0{tag}")
            if tb is not None: a.ext(mini(tb))
            a(f"s_cmp_eq_u32 s{sPASS}, 3")
            a(f"s_cbranch_scc1 K3_m1{tag}")
            for t in range(ns): a.ext(mf(t))
            a(f"s_branch K3_m2{tag}")
            a.label(f"K3_m1{tag}")
            for t in range(ns, 6): a.ext(mf(t))
            a.label(f"K3_m2{tag}")
            a.ext(bar)
            a.label(f"K3_m3{tag}")
        a("s_setprio 0")

    a("s_barrier")
    a(f"s_cmp_lg_u32 s{sTH}, 0")
    a("s_cbranch_scc1 K3_1_tile")
    for grp in range(2):
        a.label(f"K3_{grp}_tile")
        a(f"s_cmp_eq_u32 s{sPASS}, 3")
        a(f"s_cselect_b32 s{sEV}, 100, 0")
        for u in range(NB): step(grp, u, True)
        if OPT["stamp"]: stamp2(a, 2, 4, sPASS)
        a(".p2align 6")
        a.label(f"K3_{grp}_loop")
        for u in range(4): step(grp, u, False)
        a(f"s_cmp_lg_u32 s{sEV}, 12")
        a(f"s_cbranch_scc1 K3_{grp}_loop")
        if OPT["stamp"]: stamp2(a, 3, 5, sPASS)
        a(f"s_mul_i32 s{sOB}, s{sPASS}, {192 * 768}")
        a(f"s_add_u32 s{sPASS}, s{sPASS}, 1")
        a(f"s_mov_b32 s{sO+2}, {REG}")
        a(f"s_branch K3_{grp}_tile")
    a.label("K3_fin")
    stamp(a, 6)
    a("s_nop 7")
    a.ext(mini(5))
    if OPT["stamp"]: a("s_waitcnt vmcnt(0)")
    stamp(a, 7)
    stamp_dump(a, 8, sWV, "K3", 1)
    a.label("K3_end")
    a("s_endpgm")
    return a, desc("gemm2_kernel", 256, 100), f"; @launch kernel=gemm2_kernel grid=(256,1,1) block=(512,1,1) lds={L_X + 12288}"

def k3():
    a = Asm()
    ACC = 16; HB = 160; WB = 184; SEL = 208; BIAS = 216; XT = 240
    KC = OPT['k3c']
    if KC: WB = 208; SEL = 232
    HL = OPT["k3sw"] >> 1 & 1
    HV = 24 - OPT["k3he"] - 6 * HL
    BV = [12, 13, 14, 15, 252, 253]
    vD0, vWR, vHR0, vHR1, vXR, vOUT, vWB0, vHB0, vHB1 = 1, 4, 5, 6, 7, 8, 9, 10, 11
    L_H = 73728; L_X = 147456
    sD, sO = 8, 12
    (sWV, sTH, sCQ, sSrc, sDst, sSlot, sDLo, sDEnd, sLeft, sT0, sT1, sWS, sHS, sJ, sOB, sEV, sNR, sT2, sFIRST) = range(30, 49)
    REG = 3 * 192 * 768
    kernel_start(a, "gemm2_kernel")
    a("s_cmp_ge_u32 s2, 256")
    a("s_cbranch_scc1 K3_end")
    stamp(a, 0)
    a("s_load_dwordx2 s[4:5], s[0:1], 0")
    a("s_load_dwordx2 s[6:7], s[0:1], 48")
    a("s_load_dwordx2 s[24:25], s[0:1], 64")
    code_prefetch(a, "gemm2_kernel", "K3_end", 100, 60)
    a("v_lshrrev_b32 v16, 6, v0")
    a("v_and_b32 v17, 63, v0")
    a(f"v_readfirstlane_b32 s{sWV}, v16")
    a(f"v_lshlrev_b32 v{vD0}, 4, v17")
    a(f"v_add_u32 v{vD0+1}, 1024, v{vD0}")
    a(f"v_add_u32 v{vD0+2}, 2048, v{vD0}")
    a("v_and_b32 v18, 15, v17")
    a("v_lshrrev_b32 v19, 4, v17")
    a(f"s_lshr_b32 s{sT0}, s2, 4")
    a(f"s_lshl_b32 s{sT0}, s{sT0}, 4")
    a(f"s_and_b32 s{sT1}, s2, 7")
    a(f"s_lshl_b32 s{sT1}, s{sT1}, 1")
    a(f"s_add_u32 s{sT0}, s{sT0}, s{sT1}")
    a(f"s_bfe_u32 s{sT1}, s2, 0x10003")
    a(f"s_add_u32 s3, s{sT0}, s{sT1}")
    a(f"s_lshr_b32 s{sTH}, s{sWV}, 2")
    a(f"s_and_b32 s{sCQ}, s{sWV}, 3")
    a(f"s_mov_b32 s{sD+3}, 0x00020000")
    a(f"s_mov_b32 s{sO+3}, 0x00020000")
    a(f"s_mov_b32 s{sO+2}, {REG}")
    a(f"s_mul_i32 s{sT0}, s3, {REG}")
    a(f"s_and_b32 s{sT1}, s{sWV}, 1")
    a(f"s_mul_i32 s{sT1}, s{sT1}, 6144")
    a("s_waitcnt lgkmcnt(0)")
    a(f"s_add_u32 s{sO}, s6, s{sT0}")
    a(f"s_addc_u32 s{sO+1}, s7, 0")

    srd(a, 16, 24, 25, 1536 * NBP, B2)
    a("v_mul_u32_u24 v20, 24, v18")
    a(f"s_mul_i32 s{sT2}, s{sCQ}, 384")
    for p in range(NBP):
        a(f"buffer_load_dwordx3 {q(24 + 8*p, 3)}, v20, s[16:19], s{sT2} offen")
        a(f"buffer_load_dwordx3 {q(28 + 8*p, 3)}, v20, s[16:19], s{sT2} offen offset:12")
        if p < NBP - 1: a(f"s_add_u32 s{sT2}, s{sT2}, 1536")

    def pieces(srd_, sfx=""):
        P = []
        for k in range(6):
            if k == 0: pre = [f"s_mov_b32 m0, s{sDst}", f"s_add_u32 s{sT2}, s{sSrc}, 3072"]
            else: pre = ["s_add_u32 m0, m0, 1024", "s_nop 0"]
            so = sSrc if k < 3 else sT2
            P.append(pre + [f"buffer_load_dwordx4 v{vD0 + k % 3}, s[{srd_}:{srd_+3}], s{so} offen{sfx} lds"])
        return P
    def advance_w():
        return [f"s_add_u32 s{sDst}, s{sDst}, 24576", f"s_cmp_eq_u32 s{sDst}, s{sDEnd}", f"s_cselect_b32 s{sDst}, s{sDLo}, s{sDst}",
                f"s_sub_u32 s{sSrc}, s{sSrc}, 24576", f"s_cselect_b32 s{sT2}, 1179648, 0", f"s_add_u32 s{sSrc}, s{sSrc}, s{sT2}"]
    def advance_h():
        return [f"s_add_u32 s{sDst}, s{sDst}, s{sSlot}", f"s_cmp_eq_u32 s{sDst}, s{sDEnd}", f"s_cselect_b32 s{sDst}, s{sDLo}, s{sDst}",
                f"s_sub_u32 s{sSrc}, s{sSrc}, 12288", f"s_cselect_b32 s{sD+2}, 0, s{sD+2}", f"s_cselect_b32 s{sSrc}, 0, s{sSrc}"]
    nt = " nt" if OPT["h_nt"] else ""
    wnt = " nt" if OPT["w_nt"] else ""

    a(f"s_cmp_lt_u32 s{sWV}, 4")
    a("s_cbranch_scc1 K3_rw")
    a(f"s_cmp_ge_u32 s{sWV}, 6")
    a("s_cbranch_scc1 K3_rx")
    a(f"s_add_u32 s{sDLo}, s{sT1}, {L_H}")
    a(f"s_mov_b32 s{sDst}, s{sDLo}")
    a(f"s_add_u32 s{sSrc}, s{sT1}, {CHUNK_H}")
    for p in pieces(sO, nt): a.ext(p)
    a(f"s_add_u32 s{sDst}, s{sDst}, {CHUNK_H}")
    a(f"s_mov_b32 s{sSrc}, s{sT1}")
    for p in pieces(sO, nt): a.ext(p)
    a(f"s_mul_i32 s{sT0}, s3, {HSTRIDE}")
    a(f"s_add_u32 s{sD}, s24, s{sT0}")
    a(f"s_addc_u32 s{sD+1}, s25, 0")
    a(f"s_mov_b32 s{sD+2}, {0 if OPT['k3noh'] else HSTRIDE}")
    a(f"s_add_u32 s{sDEnd}, s{sDLo}, 73728")
    a(f"s_mov_b32 s{sSlot}, {CHUNK_H}")
    a(f"s_add_u32 s{sDst}, s{sDst}, {CHUNK_H}")
    a(f"s_add_u32 s{sSrc}, s{sT1}, {HSTRIDE - CHUNK_H}")
    for _ in range(3 - HL if OPT["k3bl"] else 4):
        for p in pieces(sD, nt): a.ext(p)
        a.ext(advance_h())
    for p in pieces(sD, nt)[:6 - OPT["k3he"]]: a.ext(p)
    a("s_mov_b64 vcc, 0")
    a("s_branch K3_rdone")
    a.label("K3_rx")
    a(f"s_add_u32 s{sD}, s4, s{sT0}")
    a(f"s_addc_u32 s{sD+1}, s5, 0")
    a(f"s_mov_b32 s{sD+2}, {0 if OPT['k3nox'] else REG}")
    for m in range(3):
        v = vD0 + m
        a(f"v_mul_u32_u24 v20, 43691, v{v}")
        a("v_lshrrev_b32 v20, 25, v20")
        a("v_mul_u32_u24 v21, 864, v20")
        a(f"v_sub_u32 v21, v{v}, v21")
        a("v_add_u32 v22, 768, v21")
        a("v_cmp_gt_i32 vcc, 0, v21")
        a("v_mul_u32_u24 v20, 768, v20")
        a("s_nop 0")
        a("v_cndmask_b32 v21, v21, v22, vcc")
        a(f"v_add_u32 v{v}, v20, v21")
    a(f"s_add_u32 s{sDLo}, s{sT1}, {L_X}")
    a(f"s_mov_b32 s{sDEnd}, 0")
    a(f"s_mov_b32 s{sSlot}, 0")
    a(f"s_mov_b32 s{sDst}, s{sDLo}")
    a(f"s_add_u32 s{sSrc}, s{sT1}, {35 * 12288}")
    if OPT["wwarm"]:
        srd(a, 60, 24, 25, 1179648, W2F)
        a(f"s_lshr_b32 s{sT2}, s2, 3")
        a(f"s_mul_i32 s{sT2}, s{sT2}, 36864")
        a(f"s_mul_i32 s{sT0}, s{sT1}, 3")
        a(f"s_add_u32 s{sT2}, s{sT2}, s{sT0}")
        a("v_lshlrev_b32 v20, 7, v17")
        for i in range(3):
            a(f"buffer_load_dword v{100 + i}, v20, s[60:63], s{sT2} offen")
            a(f"s_add_u32 s{sT2}, s{sT2}, 6144" if False else f"s_add_u32 s{sT2}, s{sT2}, 8192")
    if not OPT["k3bl"]:
        for p in pieces(sD, nt): a.ext(p)
        a.ext(advance_h())
    a("s_mov_b64 vcc, -1")
    a("s_branch K3_rdone")
    a.label("K3_rw")
    a(f"s_add_u32 s{sD}, s24, {W2F}")
    a(f"s_addc_u32 s{sD+1}, s25, 0")
    a(f"s_mov_b32 s{sD+2}, {0 if OPT['k3now'] else 1179648}")
    a(f"s_mul_i32 s{sDLo}, s{sCQ}, 6144")
    a(f"s_add_u32 s{sDEnd}, s{sDLo}, 73728")
    a(f"s_mov_b32 s{sSlot}, 0")
    a(f"s_mov_b32 s{sDst}, s{sDLo}")
    a(f"s_add_u32 s{sSrc}, s{sDLo}, {47 * 24576}")
    for _ in range(5 if OPT["k3skipw"] else 2):
        for p in pieces(sD, wnt): a.ext(p)
        a.ext(advance_w())
    a("s_mov_b64 vcc, 0")
    a.label("K3_rdone")
    a("s_mov_b64 s[50:51], vcc")
    a(f"v_mul_u32_u24 v{vOUT}, 3072, v19")
    a("v_mul_u32_u24 v21, 12, v18")
    a(f"s_mul_i32 s{sT0}, s{sTH}, {96 * 768}")
    a(f"s_mul_i32 s{sT1}, s{sCQ}, 192")
    a(f"s_add_u32 s{sT0}, s{sT0}, s{sT1}")
    a(f"v_add3_u32 v{vOUT}, v{vOUT}, v21, s{sT0}")
    if OPT["outlin"]:
        a(f"v_mul_u32_u24 v{vOUT}, 12, v17")
        a(f"s_mul_i32 s{sT0}, s{sWV}, 18432")
        a(f"v_add_u32 v{vOUT}, s{sT0}, v{vOUT}")
    a(f"s_mul_i32 s{sT0}, s{sCQ}, 6144")
    a(f"v_lshl_add_u32 v{vWB0}, v17, 4, s{sT0}")
    a("v_and_b32 v21, 3, v18")
    a("v_lshrrev_b32 v22, 2, v18")
    a("v_and_b32 v23, 2, v19")
    a("v_xor_b32 v23, v23, v21")
    a("v_lshl_add_u32 v22, v23, 2, v22")
    a("v_lshl_add_u32 v22, v21, 4, v22")
    a("v_lshlrev_b32 v22, 4, v22")
    a("v_and_b32 v23, 1, v19")
    a("v_lshl_add_u32 v22, v23, 3, v22")
    a(f"s_mul_i32 s{sT0}, s{sTH}, 6144")
    a(f"s_add_u32 s{sT0}, s{sT0}, {L_H}")
    a(f"v_add_u32 v{vHB0}, s{sT0}, v22")
    a(f"v_xor_b32 v{vHB1}, 64, v{vHB0}")
    a(f"s_lshl_b32 s{sT0}, s{sCQ}, 2")
    a("v_lshl_add_u32 v22, v21, 1, v19")
    a(f"v_add_u32 v22, s{sT0}, v22")
    a("v_and_b32 v22, 15, v22")
    a("v_mul_u32_u24 v22, 48, v22")
    a("v_mul_u32_u24 v23, 768, v18")
    a(f"v_add_u32 v22, {L_X}, v22")
    a(f"v_add_u32 v{vXR}, v22, v23")
    a("v_lshrrev_b32 v22, 2, v18")
    a("v_cmp_eq_u32 vcc, v22, v19")
    a("v_mov_b32 v23, 0x3f80")
    a("s_nop 0")
    a("v_cndmask_b32 v23, 0, v23, vcc")
    for e in range(4):
        a(f"v_cmp_eq_u32 vcc, {e}, v21")
        a("s_nop 1")
        a(f"v_cndmask_b32 v{SEL+e}, 0, v23, vcc")
        a(f"v_lshlrev_b32 v{SEL+4+e}, 16, v{SEL+e}")
    a("s_mov_b64 vcc, s[50:51]")
    a(f"s_mov_b32 s{sWS}, 0")
    a(f"s_mov_b32 s{sHS}, 0")
    a(f"s_mov_b32 s{sJ}, 0")
    a(f"s_mov_b32 s{sOB}, {2 * 192 * 768}")
    a(f"s_mov_b32 s{sEV}, 11")
    a(f"s_waitcnt vmcnt({HV if KC else 24})")
    a(f"s_sub_u32 s{sT0}, s{sWV}, 4")
    a(f"s_cmp_lt_u32 s{sT0}, 2")
    a("s_cbranch_scc1 K3_pw")
    a("s_waitcnt vmcnt(6)")
    a("s_cbranch_vccz K3_pw")
    a("s_waitcnt vmcnt(0)")
    a.label("K3_pw")
    for p in range(1, NBP):
        for n in range(6):
            src = 24 + n if n < 3 else 25 + n
            a(f"v_add_f32 v{src}, v{src}, v{src + 8*p}")
    for n in range(6):
        src = 24 + n if n < 3 else 25 + n
        if KC: a(f"v_mov_b32 v{BV[n]}, v{src}")
        else:
            for r in range(4): a(f"v_mov_b32 v{BIAS+4*n+r}, v{src}")

    stamp(a, 1)

    def accr(n, t): return ACC + (t * 6 + n) * 4
    pieces0 = pieces
    def pieces(srd_, sfx="", _p=pieces0):
        P = _p(srd_, sfx)
        if OPT["k3skiph"] and sfx != "": P = [[x for x in p if not x.startswith("buffer")] for p in P]
        if OPT["k3skipw"] and sfx == "": P = [[x for x in p if not x.startswith("buffer")] if i >= 6 - OPT["k3skipw"] else p for i, p in enumerate(P)]
        return P
    def Lseg(u4, grp, tag):
        L = [f"v_add_u32 v{vWR}, s{sWS}, v{vWB0}", f"v_add_u32 v{vHR0}, s{sHS}, v{vHB0}", f"v_add_u32 v{vHR1}, s{sHS}, v{vHB1}"]
        R = []
        for t in range(6):
            R.append(f"ds_read_b128 {q(WB + 4*t)}, v{vWR} offset:{t*1024}")
            R.append(f"ds_read_b64_tr_b16 {q(HB + 4*t, 2)}, v{vHR0} offset:{t*1024}")
            R.append(f"ds_read_b64_tr_b16 {q(HB + 4*t + 2, 2)}, v{vHR1} offset:{t*1024}")
        if KC:
            R = [f"ds_read_b128 {q(WB + 4*t)}, v{vWR} offset:{t*1024}" for t in range(6)]
            if u4 % 2 == 0:
                for t in range(6):
                    for c in range(2):
                        R.append(f"ds_read_b64_tr_b16 {q(HB + 24*c + 4*t, 2)}, v{vHR0} offset:{c*12288 + t*1024}")
                        R.append(f"ds_read_b64_tr_b16 {q(HB + 24*c + 4*t + 2, 2)}, v{vHR1} offset:{c*12288 + t*1024}")
                if grp == 1 and OPT["k3lm"]: R = R[:30 - 4 * OPT["k3lm"]]
            else: L = L[:1]
            P = pieces(sD, wnt if grp == 0 else nt); P[5] = P[5] + (advance_w() if grp == 0 else advance_h())
            def gd(X, z): return X if grp == 0 or u4 == 0 else [f"s_cbranch_vccnz K3_{tag}sl{u4}{z}"] + X + [f"K3_{tag}sl{u4}{z}:"]
            na = 6 if grp == 1 or u4 % 2 or (tag == "f" and u4 == 0) else OPT["k3ne"]
            HE = OPT["k3he"]
            if grp == 1 and HE < 6:
                def gh(X, z): return [f"s_cbranch_vccnz K3_{tag}sl{u4}{z}"] + X + [f"K3_{tag}sl{u4}{z}:"] if X else []
                def gx(X, z): return [f"s_cbranch_vccz K3_{tag}sx{u4}{z}"] + X + [f"K3_{tag}sx{u4}{z}:"]
                if u4 % 2 == 0:
                    for m in range(6):
                        if m >= 6 - HE: L += gh(P[m], "abcdef"[m])
                        if u4 == 0: L += gx(P[m], "abcdef"[m])
                        L += R[6*m:6*m+6]
                    if HE == 0: L += gh(advance_h(), "g")
                else:
                    P2 = pieces(sD, nt)
                    L += gh(P[0], "a") + R + gh([x for p in P[1:] + P2[:6 - HE] for x in p], "b")
            elif u4 % 2 == 0:
                for m in range(5):
                    if m < na: L += gd(P[m], "abcde"[m])
                    L += R[6*m:6*m+6]
                if na == 6: L += gd(P[5], "f")
            else:
                L += gd(P[0], "a") + R + gd([x for p in P[1:] for x in p], "b")
        elif grp == 0:
            P = pieces(sD, wnt); P[5] = P[5] + advance_w()
            na = 6 if tag == "f" and u4 == 0 else OPT["k3na"]
            pos = [0, 6, 12, 18, 18, 18]
            for k in range(19):
                for m in range(na):
                    if pos[m] == k: L += P[m]
                if k < 18: L.append(R[k])
        elif OPT["k3bl"]:
            P = pieces(sD, nt); P[5] = P[5] + advance_h()
            def gd(X, z): return X if u4 == 0 else [f"s_cbranch_vccnz K3_{tag}sl{u4}{z}"] + X + [f"K3_{tag}sl{u4}{z}:"]
            if OPT["k3pre"]: L = R[15:] + gd(P[0] + P[1] + P[2] + P[3] + P[4] + P[5], "d")
            else: L += gd(P[0], "a") + R[:6] + gd(P[1], "b") + R[6:12] + gd(P[2], "c") + R[12:] + gd(P[3] + P[4] + P[5], "d")
        else:
            L += R
        if u4 == 3:
            lab = f"K3_{grp}{tag}_xr"
            L += [f"s_sub_u32 s{sT0}, s{sEV}, {6*grp - (100 if OPT['k3nev'] == 1 else 0)}", f"s_cmp_lt_u32 s{sT0}, {0 if OPT['k3nev'] == 2 else 6}", f"s_cbranch_scc0 {lab}"]
            for p in range(3):
                L.append(f"ds_read2_b32 {q(XT + 4*p, 2)}, v{vXR} offset0:{p} offset1:{p+3}")
                L.append(f"ds_read2_b32 {q(XT + 4*p + 2, 2)}, v{vXR} offset0:{p+6} offset1:{p+9}")
            L.append(lab + ":")
        L += [f"s_add_u32 s{sWS}, s{sWS}, 24576", f"s_cmp_eq_u32 s{sWS}, 73728", f"s_cselect_b32 s{sWS}, 0, s{sWS}",
              f"s_add_u32 s{sHS}, s{sHS}, {24576 if KC else 12288}", f"s_cmp_eq_u32 s{sHS}, 73728", f"s_cselect_b32 s{sHS}, 0, s{sHS}"][:3 if KC and u4 % 2 else 6]
        return L
    def pre_reads():
        AD = [f"v_add_u32 v{vWR}, s{sWS}, v{vWB0}", f"v_add_u32 v{vHR0}, s{sHS}, v{vHB0}", f"v_add_u32 v{vHR1}, s{sHS}, v{vHB1}"]
        R = []
        for t in range(6):
            R.append(f"ds_read_b128 {q(WB + 4*t)}, v{vWR} offset:{t*1024}")
            R.append(f"ds_read_b64_tr_b16 {q(HB + 4*t, 2)}, v{vHR0} offset:{t*1024}")
            R.append(f"ds_read_b64_tr_b16 {q(HB + 4*t + 2, 2)}, v{vHR1} offset:{t*1024}")
        return AD, R
    def vmwait(strict, loose, lab):
        if (OPT["k3nv"] >> {6: 0, 0: 1}.get(strict, 2)) & 1: return []
        if loose is None or OPT["k3nost"]: return [f"s_waitcnt vmcnt({strict})"]
        return [f"s_waitcnt vmcnt({loose})", f"s_cmp_lg_u32 s{sJ}, 0", f"s_cbranch_scc1 {lab}", f"s_waitcnt vmcnt({strict})", lab + ":"]
    def Mseg(u4, grp, tag):
        first = tag == "f" and u4 == 0
        Ms = []
        for t in range(6):
            for n in range(6):
                c = q(BIAS + 4*n) if first else q(accr(n, t))
                Ms.append([f"v_mfma_f32_16x16x32_bf16 {q(accr(n, t))}, {q(HB + 4*t)}, {q(WB + 4*n)}, {c}"])
        if KC:
            Ms = []
            for t in range(6):
                for n3 in range(3):
                    for c in range(2):
                        ac = q(accr(3 * (u4 % 2) + n3, t))
                        Ms.append([f"v_mfma_f32_16x16x32_bf16 {ac}, {q(HB + 24*c + 4*t)}, {q(WB + 12*c + 4*n3)}, {q(XT + 4*n3) if tag == 'f' and u4 < 2 and c == 0 else ac}"])
        if KC and u4 % 2 == 0 and (OPT["k3sw"] >> grp) & 1:
            lm = OPT["k3lm"] * grp
            late = []
            for t in range(6 - lm, 6):
                for c in range(2):
                    late += [f"ds_read_b64_tr_b16 {q(HB + 24*c + 4*t, 2)}, v{vHR0} offset:{c*12288 + t*1024}", f"ds_read_b64_tr_b16 {q(HB + 24*c + 4*t + 2, 2)}, v{vHR1} offset:{c*12288 + t*1024}"]
            for i, x in enumerate(late): Ms[i].append(x)
            for t in range(1, 6):
                issued = 30 - 4 * lm + min(len(late), 6 * t)
                n = issued - (10 + 4 * t)
                assert n >= 0
                if n < 15 or lm: Ms[6 * t] = [f"s_waitcnt lgkmcnt({min(15, n)})"] + Ms[6 * t]
        if grp == 0:
            P = pieces(sD, wnt); P[5] = P[5] + advance_w()
            na = 6 if first or (KC and u4 % 2) else OPT["k3ne" if KC else "k3na"]
            for m in range(na, 6): Ms[1 + (m - na) * OPT["k3as"]] += P[m]
            e = OPT["k3eb"]
            loose = 30 if tag == "f" and u4 < 2 else None
            Ms[35 - e] += (["s_setprio 3"] if e else []) + vmwait(6, loose, f"K3_0{tag}_vw{u4}") + ["s_barrier"]
        elif not OPT["k3bl"]:
            P = pieces(sD, nt); P[5] = P[5] + advance_h()
            for m in range(0, 6, 2):
                X = P[m] + P[m + 1]
                if u4 != 3: X = [f"s_cbranch_vccnz K3_{tag}sd{u4}{m}"] + X + [f"K3_{tag}sd{u4}{m}:"]
                Ms[OPT["k3b0"] + (m // 2) * OPT["k3bs"]] += X
        if grp == 1 and OPT["k3pre"]:
            AD, R = pre_reads()
            Ms[0].append(AD[1]); Ms[1].append(AD[2]); Ms[2].append(AD[0])
            for t in range(5):
                Ms[6 * t + 6].append(R[3 * t + 1]); Ms[6 * t + 7].append(R[3 * t + 2])
                Ms[31 + t].append(R[3 * t])
        return [x for m in Ms for x in m]
    def Xseg(grp, tag):
        g = f"{grp}{tag}"
        L = [f"s_cmp_lt_u32 s{sT0}, 6", f"s_cbranch_scc0 K3_{g}_xdone"]
        for t in range(6):
            if t < 5: L += [f"s_cmp_lg_u32 s{sT0}, {t}", f"s_cbranch_scc1 K3_{g}_x{t+1}"]
            for n in range(6):
                L.append(f"v_mfma_f32_16x16x32_bf16 {q(accr(n, t))}, {q(XT + 4*(n >> 1))}, {q(SEL + 4*(n & 1))}, {q(accr(n, t))}")
            if t < 5: L += [f"s_branch K3_{g}_xdone", f"K3_{g}_x{t+1}:"]
        L += [f"K3_{g}_xdone:", f"s_sub_u32 s{sEV}, s{sEV}, 1"]
        return L
    ofl = ["", " nt", " sc1", " sc0 sc1", " sc0"][OPT["out_nt"]]
    def epilogue(final=False):
        L = ["s_nop 7"]
        idx = 0
        for t in range(6):
            L.append(f"s_mov_b32 s{sT1}, s{sOB}" if t == 0 else f"s_add_u32 s{sT1}, s{sT1}, {3072 if OPT['outlin'] else 12288}")
            for r in range(4):
                tq = XT + 4 * (idx % (3 if KC else 4)); idx += 1
                for j in range(3): L.append(f"v_cvt_pk_bf16_f32 v{tq+j}, v{accr(2*j, t)+r}, v{accr(2*j+1, t)+r}")
                if not OPT["k3nost"]: L.append(f"buffer_store_dwordx3 {q(tq, 3)}, v{vOUT}, s[{sO}:{sO+3}], s{sT1} offen offset:{r*768}" + ofl)
        L += [f"s_sub_u32 s{sOB}, s{sOB}, {192 * 768}"]
        return L
    def block(grp, tag):
        if OPT["prof"] == 2: a.label(f"K3_np{tag}{grp}")
        if OPT["prof"] == 1 and grp == 1:
            a(f"s_cmp_lg_u32 s{sWV}, 7")
            a(f"s_cbranch_scc1 K3_np{tag}")
            a("s_memrealtime s[90:91]")
            a("s_waitcnt lgkmcnt(0)")
            a("v_mov_b32 v12, s90")
            a("v_mov_b32 v13, 0")
            a("buffer_store_dword v12, v13, s[84:87], s83 offen")
            a("s_add_u32 s83, s83, 4")
            a.label(f"K3_np{tag}")
        for u4 in range(4):
            a.ext(Lseg(u4, grp, tag))
            if OPT["prof"] == 2 and u4 == 0 and grp == OPT["latw"] // 4:
                a(f"s_cmp_lg_u32 s{sWV}, {OPT['latw']}")
                a(f"s_cbranch_scc1 K3_nq{tag}")
                a("s_memrealtime s[92:93]")
                a("s_waitcnt vmcnt(0) lgkmcnt(0)")
                a("s_memrealtime s[94:95]")
                a("s_waitcnt lgkmcnt(0)")
                a("s_sub_u32 s94, s94, s92")
                a("s_add_u32 s82, s82, s94")
                a("v_mov_b32 v12, s82")
                a("v_mov_b32 v13, 0")
                a("buffer_store_dword v12, v13, s[84:87], s83 offen")
                a("s_add_u32 s83, s83, 4")
                a.label(f"K3_nq{tag}")
            if tag == "f" and u4 == 0:
                a(f"s_cmp_eq_u32 s{sJ}, 0")
                a(f"s_cbranch_scc1 K3_{grp}_noep")
                if OPT["stamp"]:
                    a(f"s_sub_u32 s96, s{sJ}, 48")
                    stamp2(a, 2, 4, 96)
                a.ext(epilogue())
                stamp2(a, 3, 5, 96)
                a.label(f"K3_{grp}_noep")
            if KC and tag == "f" and u4 < 2:
                a("s_nop 1")
                for i in range(12): a(f"v_mov_b32 v{XT+i}, v{BV[3*u4 + i//4]}")
            def waits(z=""):
                stg_ = KC and u4 % 2 == 0 and (OPT["k3sw"] >> grp) & 1
                lw = f"s_waitcnt lgkmcnt({min(15, 20 - 4 * OPT['k3lm'] * grp) if stg_ else 0})"
                if grp == 0: return [lw, f"s_setprio {OPT['k3pa']}"]
                W = []
                if u4 == 2: W += [f"s_cbranch_vccz K3_{tag}nx"] + vmwait(0, 24 if tag == "f" else None, "K3_fxw") + [f"K3_{tag}nx:"]
                if not KC: W += vmwait(24, 48 if tag == "f" else None, f"K3_fh{u4}{z}")
                elif u4 % 2: W += vmwait(HV, (HV + 24 if u4 == 1 or not HL else None) if tag == "f" else None, f"K3_fh{u4}{z}")
                return W + [lw, "s_barrier", f"s_setprio {OPT['k3pb']}"]
            if u4 == 3 and OPT["k3xd"]:
                g = f"{grp}{tag}"
                a(f"s_sub_u32 s{sEV}, s{sEV}, 1")
                a(f"s_cmp_lt_u32 s{sT0}, 6")
                a(f"s_cbranch_scc0 K3_{g}_xn")
                for t in range(6):
                    if t < 5:
                        a(f"s_cmp_lg_u32 s{sT0}, {t}")
                        a(f"s_cbranch_scc1 K3_{g}_x{t+1}")
                    a.ext(waits(str(t)))
                    for n in range(6):
                        a(f"v_mfma_f32_16x16x32_bf16 {q(accr(n, t))}, {q(XT + 4*(n >> 1))}, {q(SEL + 4*(n & 1))}, {q(accr(n, t))}")
                    a(f"s_branch K3_{g}_xdone")
                    if t < 5: a.label(f"K3_{g}_x{t+1}")
                a.label(f"K3_{g}_xn")
                a.ext(waits())
                a.label(f"K3_{g}_xdone")
            else:
                a.ext(waits())
                if u4 == 3: a.ext(Xseg(grp, tag))
            a.ext(Mseg(u4, grp, tag))
            a(f"s_setprio {OPT['k3pl']}")

    if OPT["prof"]:
        srd(a, 84, 24, 25, 65536, TAIL + (5 << 20))
        a("s_lshl_b32 s83, s2, 8")
        a("s_mov_b32 s82, 0")
    a("s_barrier")
    if OPT["k3pre"]:
        AD, R = pre_reads(); a.ext(AD + R[:15])
    a(f"s_cmp_lg_u32 s{sTH}, 0")
    a("s_cbranch_scc1 K3_1_tile")
    for grp in range(2):
        a.label(f"K3_{grp}_tile")
        a(f"s_mov_b32 s{sEV}, 11")
        block(grp, "f")
        a(".p2align 6")
        a.label(f"K3_{grp}_loop")
        block(grp, "l")
        a(f"s_cmp_lg_u32 s{sEV}, -1")
        a(f"s_cbranch_scc1 K3_{grp}_loop")
        a(f"s_add_u32 s{sJ}, s{sJ}, 48")
        a(f"s_cmp_lg_u32 s{sJ}, 144")
        a(f"s_cbranch_scc1 K3_{grp}_tile")
        if grp == 0:
            a("s_branch K3_fin0")
    a.label("K3_fin0")
    stamp(a, 6)
    a.ext(epilogue(True))
    a.label("K3_fin")
    if OPT["stamp"]: a("s_waitcnt vmcnt(0)")
    stamp(a, 7)
    stamp_dump(a, 8, sWV, "K3", 1)
    if OPT["stamp"] == 2:
        a("s_cmp_lg_u32 s2, 5")
        a("s_cbranch_scc1 K3_end")
        a(f"s_cmp_lg_u32 s{sWV}, 0")
        a("s_cbranch_scc1 K3_end")
        a("s_load_dwordx2 s[20:21], s[0:1], 56")
        a(f"s_add_u32 s88, s24, {TAIL + (4 << 20)}")
        a("s_addc_u32 s89, s25, 0")
        a("s_mov_b32 s90, 196608")
        a("s_mov_b32 s91, 0x00020000")
        a("v_and_b32 v1, 63, v0")
        a("v_lshlrev_b32 v2, 3, v1")
        a("v_cmp_gt_u32 vcc, 9, v1")
        a("v_add_u32 v3, 65536-72, v2")
        a("s_nop 0")
        a("v_cndmask_b32 v2, v3, v2, vcc")
        a("buffer_load_dword v4, v2, s[88:91], 0 offen offset:1280")
        a("s_mov_b32 s22, 64")
        a("s_mov_b32 s23, 0x00020000")
        a("v_lshlrev_b32 v2, 2, v1")
        a("s_waitcnt vmcnt(0) lgkmcnt(0)")
        a("v_readfirstlane_b32 s92, v4")
        a("s_nop 3")
        a("v_subrev_u32 v4, s92, v4")
        a("buffer_store_dword v4, v2, s[20:23], 0 offen")
    a.label("K3_end")
    a("s_endpgm")
    return a, desc("gemm2_kernel", 256, 100), f"; @launch kernel=gemm2_kernel grid=(256,1,1) block=(512,1,1) lds={L_X + 12288}"

def main():
    ks = [k1(), k2(), k3r() if OPT['roll'] else k3()]
    errs = []
    for a, _, l in ks: errs += check(a.lines, l.split("=")[1].split()[0])
    for a, _, l in ks:
        for i, x in enumerate(a.lines):
            if x.startswith("s_set_gpr_idx_on"): assert a.lines[i + 3] == "s_set_gpr_idx_off", "gpr idx not closed"
    for e in errs: print(e, file=sys.stderr)
    hdr = open("standalone__modern_conv_block_slak__vision.s.ref").read().split("\n")
    hdr = [l for l in hdr if l.startswith(";") and "@launch" not in l and "Override" not in l and "grid=ceil" not in l]
    out = "\n".join(hdr) + "\n" + "\n".join(l for _, _, l in ks) + "\n"
    out += '.amdgcn_target "amdgcn-amd-amdhsa--gfx950"\n.text\n'
    for a, _, _ in ks: out += a.text()
    out += '.section .rodata,"a"\n'
    for _, d, _ in ks: out += d
    open(sys.argv[1], "w").write(out)
    print("written", sys.argv[1], len(out), "bytes; hazards:", len(errs))
main()
```

```python
import sys, struct, math
from asmlib import Asm, check

OPT = dict(f16=1, st_nt=1, h_nt=1, w_nt=0, out_nt=0, x_nt=1, xp_nt=1, ord=4, ntail=1, k3skipw=0, kf=0, k3pre=0, prof=0, roll=0, stg=1, mp0=2, mpd=2, ipf=0, k3pl=0, wwarm=0, latw=7, dwarm=1, sdot=2, k3c=1, k3ne=6, k3nv=0, k3skiph=0, npf=1, kmask=0, k1nv=0, w1warm=1, k3he=6, k3xd=1, k3nev=0, k3sw=1, k3lm=0, spr=1, rpg=1, hd=7, lst=5, mst=1, gbo=0, k3n=1, k3wa=5, k3ro=1, k3df=0, k3n0=9, k3n1=6, sgap=2, bgb=-1, stamp=0, denorm=3, pm=3, pg0=0, pg1=1, bg=4, gb=3, gp=2, stm=7, stm0=7, w2pf=1, sga=7,
           k3pa=1, k3pb=2, k3eb=0, k3nost=0, k3noh=0, k3nox=0, k3now=0, k3na=6, k3as=5, k3b0=18, k3bs=5, k3bl=1, outlin=0, nostore=0)
for a in sys.argv[2:]:
    k, v = a.split("="); OPT[k] = int(v, 0)

def f32(x): return "0x%08x" % struct.unpack("<I", struct.pack("<f", x))[0]
def f16bits(x): return struct.unpack("<H", struct.pack("<e", x))[0]

M = 147456; C = 384; F = 1536
XBYTES = M * C * 2
WSBYTES = 452984832
TILE_H = 589824; CHUNK_H = 12288; HSTRIDE = 3 * TILE_H - 2 * CHUNK_H
TAIL = 256 * HSTRIDE
W2F = TAIL + 1179648; B2 = TAIL; SSQ = TAIL + 2363392
NREP = 8
K1c = 2.0 * math.sqrt(2.0 / math.pi) * math.log2(math.e)
K3c = K1c * 0.044715
if OPT["f16"]:
    C0 = 1258.0 / 256.0
    ALPHA = K1c / C0
else:
    ALPHA = K3c ** (1.0 / 3.0)
    C0 = K1c / ALPHA

def srd(a, d, lo, hi, nrec, off=0):
    if off:
        a(f"s_add_u32 s{d}, s{lo}, {off}")
        a(f"s_addc_u32 s{d+1}, s{hi}, 0")
    else:
        a(f"s_mov_b32 s{d}, s{lo}")
        a(f"s_mov_b32 s{d+1}, s{hi}")
    a(f"s_mov_b32 s{d+2}, {nrec}")
    a(f"s_mov_b32 s{d+3}, 0x00020000")

def stamp(a, idx, base=64):
    if not OPT["stamp"]: return
    a("s_memrealtime s[90:91]")
    a("s_memtime s[92:93]")
    a("s_waitcnt lgkmcnt(0)")
    a(f"s_mov_b32 s{base+2*idx}, s90")
    a(f"s_mov_b32 s{base+2*idx+1}, s92")

def stamp2(a, ia, ib, creg, base=64):
    if not OPT["stamp"]: return
    a("s_memrealtime s[90:91]")
    a("s_memtime s[92:93]")
    a("s_waitcnt lgkmcnt(0)")
    a(f"s_cmp_eq_u32 s{creg}, 0")
    a(f"s_cselect_b32 s{base+2*ia}, s90, s{base+2*ia}")
    a(f"s_cselect_b32 s{base+2*ia+1}, s92, s{base+2*ia+1}")
    a(f"s_cselect_b32 s{base+2*ib}, s{base+2*ib}, s90")
    a(f"s_cselect_b32 s{base+2*ib+1}, s{base+2*ib+1}, s92")

def stamp_dump(a, n, wave_sgpr, tag, kidx, base=64):
    if not OPT["stamp"]: return
    a(f"s_and_b32 s94, s{wave_sgpr}, 3")
    a("s_cmp_lg_u32 s94, 0")
    a(f"s_cbranch_scc1 {tag}_nodump")
    a("s_load_dwordx2 s[90:91], s[0:1], 64")
    a("s_waitcnt lgkmcnt(0)")
    a(f"s_add_u32 s88, s90, {TAIL + (4 << 20) + kidx * 65536}")
    a("s_addc_u32 s89, s91, 0")
    a("s_mov_b32 s90, 65536")
    a("s_mov_b32 s91, 0x00020000")
    a(f"s_lshl_b32 s94, s{wave_sgpr}, 5")
    a("s_lshl_b32 s95, s2, 8")
    a("s_add_u32 s94, s94, s95")
    a("v_mov_b32 v8, 0")
    for i in range(n):
        a(f"v_mov_b32 v10, s{base+2*i}")
        a(f"v_mov_b32 v11, s{base+2*i+1}")
        a(f"buffer_store_dwordx2 v[10:11], v8, s[88:91], s94 offen offset:{i*8}")
        a("s_waitcnt vmcnt(0)")
    a.label(f"{tag}_nodump")

def q(r, n=4): return f"v[{r}:{r+n-1}]"

def kernel_start(a, name):
    a(f".globl {name}")
    a(".p2align 8")
    a(f".type {name},@function")
    a.label(name)

def code_prefetch(a, start, end, vt, st):
    if not OPT["ipf"]: return
    a(f"s_getpc_b64 s[{st}:{st+1}]")
    a(f"s_and_b32 s{st}, s{st}, 0xffffff00")
    a(f"s_mov_b32 s{st+2}, {end}-{start}")
    a(f"s_mov_b32 s{st+3}, 0x00020000")
    a(f"v_lshlrev_b32 v{vt}, 7, v0")
    a(f"buffer_load_dword v{vt}, v{vt}, s[{st}:{st+3}], 0 offen")

def desc(name, vgpr, sgpr=96):
    acc = min(256, (vgpr + 3) // 4 * 4)
    return f""".p2align 6
.amdhsa_kernel {name}
  .amdhsa_next_free_vgpr {vgpr}
  .amdhsa_next_free_sgpr {sgpr}
  .amdhsa_accum_offset {acc}
  .amdhsa_group_segment_fixed_size 0
  .amdhsa_kernarg_size 72
  .amdhsa_user_sgpr_count 2
  .amdhsa_user_sgpr_kernarg_segment_ptr 1
  .amdhsa_system_sgpr_workgroup_id_x 1
  .amdhsa_float_denorm_mode_32 {OPT['denorm']}
.end_amdhsa_kernel
"""

def gelu_batch(b, TMP, SSr, first, sC0, sC0H):
    L = []
    R = [b + i for i in range(8)]
    if not OPT["f16"]:
        T = [TMP + i for i in range(8)]
        for v, t in zip(R, T): L.append(f"v_fma_f32 v{t}, -v{v}, v{v}, s{sC0}")
        for v, t in zip(R, T): L.append(f"v_mul_f32 v{t}, v{t}, v{v}")
        for t in T: L.append(f"v_exp_f32 v{t}, v{t}")
        for t in T: L.append(f"v_add_f32 v{t}, 1.0, v{t}")
        for t in T: L.append(f"v_rcp_f32 v{t}, v{t}")
        for v, t in zip(R, T): L.append(f"v_mul_f32 v{t}, v{v}, v{t}")
        Gv = T
    else:
        H = [TMP + i for i in range(4)]; Pp = [TMP + 4 + i for i in range(4)]
        for i in range(4): L.append(f"v_cvt_pk_f16_f32 v{H[i]}, v{R[2*i]}, v{R[2*i+1]}")
        for i in range(4): L.append(f"v_pk_fma_f16 v{Pp[i]}, v{H[i]}, v{H[i]}, s{sC0H} neg_lo:[1,0,0] neg_hi:[1,0,0]")
        for i in range(4): L.append(f"v_pk_mul_f16 v{Pp[i]}, v{Pp[i]}, v{H[i]}")
        for i in range(4): L.append(f"v_exp_f16 v{H[i]}, v{Pp[i]}")
        for i in range(4): L.append(f"v_exp_f16_sdwa v{H[i]}, v{Pp[i]} dst_sel:WORD_1 dst_unused:UNUSED_PRESERVE src0_sel:WORD_1")
        for i in range(4): L.append(f"v_pk_add_f16 v{H[i]}, v{H[i]}, 1.0 op_sel_hi:[1,0]")
        for i in range(4): L.append(f"v_rcp_f16 v{Pp[i]}, v{H[i]}")
        for i in range(4): L.append(f"v_rcp_f16_sdwa v{H[i]}, v{H[i]} dst_sel:DWORD dst_unused:UNUSED_PAD src0_sel:WORD_1")
        for i in range(4): L.append(f"v_fma_mix_f32 v{R[2*i]}, v{R[2*i]}, v{Pp[i]}, 0 op_sel_hi:[0,1,0]")
        for i in range(4): L.append(f"v_fma_mix_f32 v{R[2*i+1]}, v{R[2*i+1]}, v{H[i]}, 0 op_sel_hi:[0,1,0]")
        Gv = R
    for e in (0, 4, 1, 5, 2, 6, 3, 7) if not OPT['sdot'] else ():
        s_ = SSr + e // 4
        L.append(f"v_mul_f32 v{s_}, v{Gv[e]}, v{Gv[e]}" if first and e % 4 == 0 else f"v_fmac_f32 v{s_}, v{Gv[e]}, v{Gv[e]}")
    if OPT["mst"]:
        for i in (3, 2, 1, 0): L.append(f"v_cvt_pk_bf16_f32 v{b+4+i}, v{Gv[2*i]}, v{Gv[2*i+1]}")
    else:
        for i in range(4): L.append(f"v_cvt_pk_bf16_f32 v{b+i}, v{Gv[2*i]}, v{Gv[2*i+1]}")
    return L

NBP = 6
def k2():
    a = Asm()
    kernel_start(a, "mid_kernel")
    a("s_cmp_ge_u32 s2, 24")
    a("s_cbranch_scc1 K2_end")
    stamp(a, 0)
    a("s_load_dwordx4 s[4:7], s[0:1], 24")
    a("s_load_dwordx2 s[8:9], s[0:1], 40")
    a("s_load_dwordx2 s[10:11], s[0:1], 64")
    a("v_lshrrev_b32 v1, 6, v0")
    a("v_and_b32 v2, 63, v0")
    a("v_readfirstlane_b32 s3, v1")
    a("v_mul_u32_u24 v5, 12, v0")
    a("s_lshr_b32 s30, s2, 2")
    a("s_and_b32 s32, s2, 3")
    a("s_lshl_b32 s31, s30, 3")
    a("s_add_u32 s31, s31, s3")
    a("s_mul_i32 s33, s32, 192")
    a(f"s_mul_i32 s34, s31, {32 * 768}")
    a("s_add_u32 s33, s33, s34")
    a("v_lshrrev_b32 v3, 4, v2")
    a("v_and_b32 v4, 1, v3")
    a("v_lshlrev_b32 v4, 4, v4")
    a("v_lshrrev_b32 v3, 1, v3")
    a("v_lshl_add_u32 v3, v3, 3, v4")
    a("v_mul_u32_u24 v7, 768, v3")
    a("v_and_b32 v6, 15, v2")
    a("v_mul_u32_u24 v4, 12, v6")
    a("v_add_u32 v7, v4, v7")
    a("s_lshl_b32 s35, s31, 6")
    a("v_lshlrev_b32 v4, 1, v3")
    a("s_waitcnt lgkmcnt(0)")
    srd(a, 24, 10, 11, WSBYTES - TAIL, TAIL)
    a(f"s_mov_b32 s34, {SSQ - TAIL}")
    for r in range(NREP):
        a(f"buffer_load_dwordx3 {q(32+4*r, 3)}, v5, s[24:27], s34 offen")
        if r < NREP - 1: a("s_add_u32 s34, s34, 6144")
    srd(a, 12, 4, 5, C * F * 2)
    srd(a, 16, 6, 7, F * 2)
    srd(a, 20, 8, 9, F * 2)
    W = 64; U = 96
    for e in range(8):
        if e == 4: a("s_add_u32 s33, s33, 3072")
        a(f"buffer_load_dwordx3 {q(W + 4*e, 3)}, v7, s[12:15], s33 offen offset:{(e % 4) * 768}")
    a("buffer_load_dwordx4 v[16:19], v4, s[16:19], s35 offen")
    a("buffer_load_dwordx4 v[12:15], v4, s[20:23], s35 offen")
    a("s_waitcnt vmcnt(10)")
    stamp(a, 1)
    for st in (4, 2, 1):
        for r in range(st):
            for k in range(3): a(f"v_add_f32 v{32+4*r+k}, v{32+4*r+k}, v{32+4*(r+st)+k}")
    a(f"s_mov_b32 s36, {f32(1.0 / (ALPHA * ALPHA))}")
    a(f"v_mov_b32 v20, {f32(1e-6)}")
    for k in range(3): a(f"v_fma_f32 v{32+k}, v{32+k}, s36, v20")
    for k in range(3): a(f"v_sqrt_f32 v{32+k}, v{32+k}")
    a("s_nop 0")
    for k in range(3): a(f"ds_write_b32 v5, v{32+k} offset:{4*k}")
    a("v_add_f32 v21, v32, v33")
    a("v_add_f32 v21, v21, v34")
    for ctl in ("row_shr:1", "row_shr:2", "row_shr:4", "row_shr:8"):
        a("s_nop 1")
        a(f"v_add_f32_dpp v21, v21, v21 {ctl} row_mask:0xf bank_mask:0xf bound_ctrl:0")
    a("s_nop 1")
    a("v_readlane_b32 s40, v21, 15")
    a("v_readlane_b32 s41, v21, 31")
    a("v_readlane_b32 s42, v21, 47")
    a("v_readlane_b32 s43, v21, 63")
    a("s_nop 1")
    a("v_mov_b32 v22, s40")
    a("v_add_f32 v22, s41, v22")
    a("v_add_f32 v22, s42, v22")
    a("v_add_f32 v22, s43, v22")
    a("s_lshl_b32 s37, s3, 2")
    a("v_mov_b32 v23, s37")
    a("ds_write_b32 v23, v22 offset:6144")
    a("s_waitcnt lgkmcnt(0)")
    a("s_barrier")
    stamp(a, 2)
    a("v_mov_b32 v23, 0")
    a("ds_read_b128 v[24:27], v23 offset:6144")
    a("ds_read_b128 v[28:31], v23 offset:6160")
    a("s_lshl_b32 s37, s31, 7")
    a("v_lshlrev_b32 v4, 2, v3")
    a("v_add_u32 v4, s37, v4")
    a("ds_read_b128 v[32:35], v4")
    a("ds_read_b128 v[36:39], v4 offset:16")
    a("s_waitcnt vmcnt(0)")
    for e in range(8):
        for d in range(3):
            a(f"v_lshlrev_b32 v{U + 6*e + 2*d}, 16, v{W + 4*e + d}")
            a(f"v_and_b32 v{U + 6*e + 2*d + 1}, 0xffff0000, v{W + 4*e + d}")
    a("s_waitcnt lgkmcnt(0)")
    for st in (4, 2, 1):
        for r in range(st): a(f"v_add_f32 v{24+r}, v{24+r}, v{24+r+st}")
    a(f"v_mul_f32 v24, {f32(1.0 / F)}, v24")
    a(f"v_add_f32 v24, {f32(1e-6)}, v24")
    a("v_rcp_f32 v24, v24")
    a(f"s_mov_b32 s36, {f32(1.0 / ALPHA)}")
    for e in range(8):
        src = 16 + e // 2
        a(f"v_lshlrev_b32 v40, 16, v{src}" if e % 2 == 0 else f"v_and_b32 v40, 0xffff0000, v{src}")
        a(f"v_mul_f32 v{32+e}, v{32+e}, v24")
        a(f"v_fma_f32 v{32+e}, v{32+e}, v40, 1.0")
        a(f"v_mul_f32 v{32+e}, s36, v{32+e}")
    if OPT["k3c"]:
        a("s_sub_u32 s44, 47, s31")
        a("s_and_b32 s45, s44, 1")
        a("s_andn2_b32 s44, s44, 1")
        a("s_sub_u32 s44, 47, s44")
        a("s_mul_i32 s33, s44, 24")
        a("s_mul_i32 s45, s45, 3")
        a("s_add_u32 s33, s33, s45")
    else:
        a("s_mul_i32 s33, s31, 24")
    a("s_mul_i32 s46, s32, 6")
    a("s_add_u32 s33, s33, s46")
    a("s_lshl_b32 s33, s33, 10")
    a(f"s_add_u32 s33, s33, {W2F - TAIL}")
    a("s_sub_u32 s34, s33, 24576" if OPT["k3c"] else "s_add_u32 s34, s33, 3072")
    a("v_lshlrev_b32 v43, 4, v2")
    for n in range(6):
        T = 44 + 8 * (n % 2); O = W + 4 * n
        for e in range(8): a(f"v_mul_f32 v{T+e}, v{U + 6*e + n}, v{32+e}")
        for i in range(4): a(f"v_cvt_pk_bf16_f32 v{O+i}, v{T+2*i}, v{T+2*i+1}")
        a(f"buffer_store_dwordx4 {q(O)}, v43, s[24:27], s{33 + n // 3} offen offset:{(n % 3) * 1024}")
    for e in range(8):
        a(f"v_lshlrev_b32 v41, 16, v{12 + e // 2}" if e % 2 == 0 else f"v_and_b32 v41, 0xffff0000, v{12 + e // 2}")
        for n in range(6): a(f"v_mul_f32 v{24+n}, v41, v{U + n}" if e == 0 else f"v_fmac_f32 v{24+n}, v41, v{U + 6*e + n}")
    a("v_mul_u32_u24 v43, 24, v0")
    for d in range(3): a(f"ds_write_b64 v43, {q(24 + 2*d, 2)} offset:{6400 + 8*d}")
    a("s_waitcnt lgkmcnt(0)")
    a("s_barrier")
    a("s_cmp_ge_u32 s3, 2")
    a("s_cbranch_scc1 K2_end")
    a("v_lshlrev_b32 v43, 2, v0")
    for w in range(32): a(f"ds_read_b32 v{U + w}, v43 offset:{6400 + 384*w}")
    a("s_waitcnt lgkmcnt(0)")
    for st in (16, 8, 4, 2, 1):
        for r in range(st): a(f"v_add_f32 v{U+r}, v{U+r}, v{U+r+st}")
    a("s_mul_i32 s39, s30, 1536")
    a("s_mul_i32 s38, s32, 384")
    a("s_add_u32 s38, s38, s39")
    a(f"s_add_u32 s38, s38, {B2 - TAIL}")
    a("v_cmp_gt_u32 vcc, 96, v0")
    a("s_and_saveexec_b64 s[40:41], vcc")
    a(f"buffer_store_dword v{U}, v43, s[24:27], s38 offen")
    a("s_mov_b64 exec, s[40:41]")
    if OPT["stamp"]: a("s_waitcnt vmcnt(0)")
    stamp(a, 3)
    stamp_dump(a, 4, 3, "K2", 2)
    a.label("K2_end")
    a("s_endpgm")
    return a, desc("mid_kernel", 144, 100 if OPT["stamp"] else 56), "; @launch kernel=mid_kernel grid=(24,1,1) block=(512,1,1) lds=19200"

def k1():
    a = Asm()
    XN = 8; ACC = 152; BB = 200; SQ = 232
    TMP = BB + 16; SS = BB + 24
    vDE, vXS, vRD, vST, vDW, vDO, vRB = 1, 2, 3, 4, 5, 6, 7
    L_DW = 147456
    sX, sW1, sH, sDB = 8, 12, 16, 20
    sWSlo, sWShi, sOUTlo, sOUThi, sDBlo, sDBhi = 24, 25, 26, 27, 28, 29
    (sWV, sGRP, sI, sEND, sRDS, sDSL, sT0, sT1, sC0, sHB, sXB, sREG, sSIG, sT2, sC0H, sDSR, sD0, sST0, sST1, sXN, sDS0, sTK,
     sSLO, sSHI, sDLO, sDHI, sSG0, sCW, sXU) = range(30, 59)
    sHN, sSLN, sSHN, sDSP, sDSN, sDCN, sCW2, sKM = 82, 83, 84, 85, 86, 87, 3, 97
    REG = 3 * 192 * 768
    kernel_start(a, "gemm1_kernel")
    a("s_cmp_ge_u32 s2, 256")
    a("s_cbranch_scc1 K1_end")
    stamp(a, 0)
    a("s_load_dwordx4 s[4:7], s[0:1], 0")
    a(f"s_load_dwordx2 s[{sW1}:{sW1+1}], s[0:1], 16")
    a(f"s_load_dwordx2 s[{sOUTlo}:{sOUThi}], s[0:1], 48")
    a(f"s_load_dwordx2 s[{sDBlo}:{sDBhi}], s[0:1], 56")
    a(f"s_load_dwordx2 s[{sWSlo}:{sWShi}], s[0:1], 64")
    code_prefetch(a, "gemm1_kernel", "K1_end", BB + 20, 60)
    a("v_lshrrev_b32 v8, 6, v0")
    a("v_and_b32 v9, 63, v0")
    a(f"v_readfirstlane_b32 s{sWV}, v8")
    a("v_lshrrev_b32 v12, 3, v9")
    a("v_and_b32 v13, 7, v9")
    a("v_lshrrev_b32 v14, 1, v12")
    a("v_xor_b32 v14, v14, v13")
    a(f"v_mul_u32_u24 v{vXS}, 768, v12")
    a(f"v_lshl_add_u32 v{vXS}, v14, 4, v{vXS}")
    a(f"s_lshr_b32 s{sT0}, s2, 4")
    a(f"s_and_b32 s{sSG0}, s{sT0}, {OPT['sga']}")
    a(f"s_lshl_b32 s{sT0}, s{sT0}, 4")
    a(f"s_and_b32 s{sT1}, s2, 7")
    a(f"s_lshl_b32 s{sT1}, s{sT1}, 1")
    a(f"s_add_u32 s{sT0}, s{sT0}, s{sT1}")
    a(f"s_bfe_u32 s{sT1}, s2, 0x10003")
    a(f"s_add_u32 s{sREG}, s{sT0}, s{sT1}")
    a(f"s_mul_i32 s{sSLO}, s{sT1}, 12")
    a(f"s_add_u32 s{sSHI}, s{sSLO}, 12")
    a(f"s_lshr_b32 s{sGRP}, s{sWV}, 2")
    a(f"s_and_b32 s{sT1}, s{sWV}, 3")
    a(f"s_add_u32 s{sT0}, s{sT0}, s{sGRP}")
    a(f"s_mul_i32 s{sXB}, s{sT0}, {REG}")
    a(f"s_mul_i32 s{sT2}, s{sT1}, {48 * 768}")
    a(f"s_add_u32 s{sXB}, s{sXB}, s{sT2}")
    if not OPT["roll"]: a(f"s_add_u32 s{sXB}, s{sXB}, {2 * 192 * 768}")
    a(f"s_mul_i32 s{sHB}, s{sT0}, {HSTRIDE}")
    if not OPT["roll"]: a(f"s_add_u32 s{sHB}, s{sHB}, {2 * TILE_H}")
    a(f"s_mul_i32 s59, s{sT0}, {REG}")
    if OPT["roll"]: a(f"s_add_u32 s59, s59, {2 * 192 * 768}")
    a(f"s_mul_i32 s{sXN}, s{sREG}, {REG}")
    a(f"s_add_u32 s{sT2}, s{sWV}, 4" if OPT["roll"] else f"s_xor_b32 s{sT2}, s{sWV}, 4")
    a(f"s_mul_i32 s{sT2}, s{sT2}, {48 * 768}")
    a(f"s_add_u32 s{sXN}, s{sXN}, s{sT2}")
    a(f"s_mul_i32 s{sHN}, s{sREG}, {HSTRIDE}")
    a(f"s_xor_b32 s{sT2}, s{sGRP}, {0 if OPT['roll'] else 1}")
    a(f"s_mul_i32 s{sT2}, s{sT2}, {TILE_H}")
    a(f"s_add_u32 s{sHN}, s{sHN}, s{sT2}")
    if OPT["roll"]: a(f"s_add_u32 s{sHN}, s{sHN}, {46 * CHUNK_H}")
    a(f"s_mov_b32 s{sSLN}, 0")
    a(f"s_mov_b32 s{sSHN}, 24")
    a(f"s_mov_b32 s{sDSP}, 23")
    a(f"s_mov_b32 s{sDSN}, -1")
    if OPT["ord"]:
        a(f"s_bitcmp1_b32 s2, {OPT['ord']}")
        a("s_cbranch_scc0 K1_noswap")
        for x, y in ((sXB, sXN), (sHB, sHN), (sSLO, sSLN), (sSHI, sSHN), (sDSP, sDSN)):
            a(f"s_mov_b32 s{sT2}, s{x}"); a(f"s_mov_b32 s{x}, s{y}"); a(f"s_mov_b32 s{y}, s{sT2}")
        a.label("K1_noswap")
    a(f"s_mul_i32 s{sD0}, s{sWV}, 6144")
    a(f"s_mov_b32 s{sCW}, s{sD0}")
    a(f"s_add_u32 s{sCW2}, s{sD0}, 49152")
    a("s_waitcnt lgkmcnt(0)")
    srd(a, sX, 4, 5, XBYTES)

    KPO = [3, 4, 5, 2, 1, 0]
    def xdma(n, pol=None):
        if pol is None:
            if OPT["x_nt"] == OPT["xp_nt"]: return xdma(n, OPT["x_nt"])
            return [f"s_cbranch_vccnz K1_xa{n}"] + xdma(n, OPT["x_nt"]) + [f"s_branch K1_xb{n}", f"K1_xa{n}:"] + xdma(n, OPT["xp_nt"]) + [f"K1_xb{n}:"]
        xnt = " nt" if pol else ""
        tt, kp = divmod(n, 6); kp = KPO[kp]
        return [f"s_add_u32 m0, s{(sCW, sCW2)[n // 3 % 2]}, {(n % 3) * 2048}", f"s_add_u32 s{sXU}, s{sXB}, {tt * 12288 + kp * 128}",
                f"buffer_load_dwordx4 v{vXS}, s[{sX}:{sX+3}], s{sXU} offen{xnt} lds",
                "s_add_u32 m0, m0, 1024", f"s_add_u32 s{sXU}, s{sXU}, 6144",
                f"buffer_load_dwordx4 v{vXS}, s[{sX}:{sX+3}], s{sXU} offen{xnt} lds"]
    srd(a, sH, 6, 7, C * 2)
    a(f"v_lshlrev_b32 v{ACC+4}, 2, v0")
    a(f"buffer_load_dword v{ACC}, v{ACC+4}, s[{sH}:{sH+3}], 0 offen")
    for n in range(6): a.ext(xdma(n, OPT['x_nt']))
    a('s_mov_b64 vcc, 0')

    a("v_and_b32 v10, 15, v9")
    a("v_lshrrev_b32 v11, 4, v9")
    a(f"v_lshlrev_b32 v{vST}, 2, v11")
    a(f"v_xor_b32 v{vST}, v{vST}, v9")
    a(f"v_lshlrev_b32 v{vST}, 4, v{vST}")
    a(f"s_mul_i32 s{sT2}, s{sT1}, 3072")
    a(f"v_add_u32 v{vST}, s{sT2}, v{vST}")
    a(f"v_lshlrev_b32 v{vDW}, 5, v11")
    a(f"v_add_u32 v{vDW}, {L_DW}, v{vDW}")
    a("v_and_b32 v14, 2, v12")
    a("v_xor_b32 v13, v13, v14")
    a(f"v_mul_u32_u24 v{vDE}, 3072, v12")
    a(f"v_lshl_add_u32 v{vDE}, v13, 4, v{vDE}")
    a(f"v_xor_b32 v{vDO}, 64, v{vDE}")
    a("v_lshrrev_b32 v12, 2, v10")
    a("v_lshl_add_u32 v13, v11, 3, v12")
    a(f"v_lshlrev_b32 v{vRB}, 7, v13")
    a("v_lshrrev_b32 v12, 1, v12")
    a("v_and_b32 v13, 1, v11")
    a("v_lshl_add_u32 v12, v13, 1, v12")
    a(f"v_lshl_add_u32 v{vRB}, v12, 5, v{vRB}")
    a("v_and_b32 v12, 3, v10")
    a(f"v_lshl_add_u32 v{vRB}, v12, 3, v{vRB}")
    a(f"s_mov_b32 s{sC0}, {f32(-C0)}")
    h = f16bits(-C0); a(f"s_mov_b32 s{sC0H}, 0x{h:04x}{h:04x}")
    a(f"s_mul_i32 s{sDS0}, s{sWV}, {6 * 24576}")
    a(f"s_add_u32 s{sSIG}, s{sSLO}, s{sSG0}")
    a(f"s_lshl_b32 s{sDLO}, s{sSLO}, 7")
    a(f"s_add_u32 s{sDLO}, s{sDLO}, s{sDS0}")
    a(f"s_lshl_b32 s{sDHI}, s{sSHI}, 7")
    a(f"s_add_u32 s{sDHI}, s{sDHI}, s{sDS0}")
    a(f"s_lshl_b32 s{sDSR}, s{sSG0}, 7")
    a(f"s_add_u32 s{sDSR}, s{sDSR}, s{sDLO}")
    a(f"s_mov_b32 s{sDSL}, s{sD0}")
    a(f"s_mov_b32 s{sTK}, 1")
    a(f"s_mov_b32 s{sW1+2}, {C * F * 2}")
    a(f"s_mov_b32 s{sW1+3}, 0x00020000")
    srd(a, sDB, sDBlo, sDBhi, 256)

    uid = [0]
    def dma():
        P = []
        for k in range(6):
            pre = [f"s_mov_b32 m0, s{sDSL}", f"s_mov_b32 s{sT0}, s{sDSR}"] if k == 0 else ["s_add_u32 m0, m0, 1024", f"s_add_u32 s{sT0}, s{sT0}, 24576"]
            P.append(pre + [f"buffer_load_dwordx4 v{(vDE, vDO)[k % 2]}, s[{sW1}:{sW1+3}], s{sT0} offen lds"])
        P[5] += [f"s_add_u32 s{sDSL}, s{sDSL}, 49152", f"s_cmp_ge_u32 s{sDSL}, 147456", f"s_cselect_b32 s{sDSL}, s{sD0}, s{sDSL}",
                 f"s_add_u32 s{sDSR}, s{sDSR}, 128", f"s_cmp_eq_u32 s{sDSR}, s{sDHI}", f"s_cselect_b32 s{sDSR}, s{sDLO}, s{sDSR}"]
        uid[0] += 1
        P[5] += [f"s_sub_u32 s{sDCN}, s{sDCN}, 1", f"s_cmp_lg_u32 s{sDCN}, 0", f"s_cbranch_scc1 K1_ds{uid[0]}",
                 f"s_lshl_b32 s{sDLO}, s{sSLN}, 7", f"s_add_u32 s{sDLO}, s{sDLO}, s{sDS0}", f"s_lshl_b32 s{sDHI}, s{sSHN}, 7", f"s_add_u32 s{sDHI}, s{sDHI}, s{sDS0}",
                 f"s_lshl_b32 s{sDSR}, s{sSG0}, 7", f"s_add_u32 s{sDSR}, s{sDSR}, s{sDLO}", f"K1_ds{uid[0]}:"]
        return P

    a(f"v_lshlrev_b32 v{ACC+4}, 3, v0")
    a(f"v_add_u32 v{ACC+4}, {L_DW}, v{ACC+4}")
    a("s_waitcnt vmcnt(12)")
    a(f"v_and_b32 v{ACC+2}, 0xffff, v{ACC}")
    a(f"v_and_b32 v{ACC+3}, 0xffff0000, v{ACC}")
    a(f"ds_write_b64 v{ACC+4}, {q(ACC+2, 2)}")
    a(f"v_mov_b32 v{BB+8}, 1")
    a(f"s_cmp_lg_u32 s{sWV}, 0")
    a("s_cbranch_scc1 K1_pj")
    a(f"v_lshlrev_b32 v{ACC+5}, 8, v0")
    a(f"s_and_b32 s{sT0}, s2, {NREP - 1}")
    a(f"s_lshl_b32 s{sT0}, s{sT0}, 2")
    a(f"buffer_atomic_add v{BB+8}, v{ACC+5}, s[{sDB}:{sDB+3}], s{sT0} offen sc0")
    a.label("K1_pj")
    for r in range(SQ, SQ + 24): a(f"v_mov_b32 v{r}, 0")
    srd(a, sH, sWSlo, sWShi, TAIL)
    a(f"s_mov_b32 s{sI}, 0")
    a(f"s_sub_u32 s{sEND}, s{sSHI}, s{sSLO}")
    a(f"s_mov_b32 s{sRDS}, 0")
    a(f"s_mov_b32 s{sKM}, {OPT['kmask']}")
    a(f"s_mov_b32 s{sDCN}, s{sEND}")
    a(f"s_sub_u32 s{sEND}, s{sEND}, 2")
    a("s_waitcnt lgkmcnt(0)")
    a("s_barrier")
    stamp(a, 1)

    def buf(i): return BB + 4 * (i % 8)
    def rd(i):
        ct, ks = divmod(i, 12)
        L = [f"v_xor_b32 v{vRD}, {((ct - 1) ^ ct) << 5}, v{vRD}"] if ks == 0 and ct > 0 else []
        return L + [f"ds_read_b64_tr_b16 {q(buf(i) + 2*u, 2)}, v{vRD} offset:{ks*4096 + u*512}" for u in range(2)]
    def head(): return [f"v_add_u32 v{vRD}, s{sRDS}, v{vRB}"] + [x for i in range(4) for x in rd(i)]

    DWR = [BB + 16, BB + 24]
    S = BB; Q = BB + 4; vTK = BB + 8; vW2 = BB + 10; vXR = BB + 12; vT = BB + 13; vFL = BB + 14
    KSO = [6, 7, 8, 9, 10, 11, 5, 4, 3, 2, 1, 0]
    def dwrd(m): return [f"ds_read_b128 {q(DWR[m % 2] + 4*j)}, v{vDW} offset:{KSO[m % 12]*128 + j*16}" for j in range(2)]
    def xaddr():
        return [f"v_and_b32 v{vT}, 15, v0", f"v_lshlrev_b32 v{vXR}, 7, v{vT}", f"v_bfe_u32 v{vT}, v0, 1, 2", f"v_bfe_u32 v{vFL}, v0, 4, 2",
                f"v_xor_b32 v{vT}, v{vT}, v{vFL}", f"v_lshl_add_u32 v{vXR}, v{vT}, 4, v{vXR}", f"v_add_u32 v{vT}, s{sCW2}, v{vXR}", f"v_add_u32 v{vXR}, s{sCW}, v{vXR}"]
    def xread(n):
        tt, kp = divmod(n, 6); kp = KPO[kp]
        return [f"ds_read_b128 {q(XN + 48*tt + 8*kp + 4*e)}, v{(vXR, vT)[n // 3 % 2]} offset:{(n % 3) * 2048 + e * 64}" for e in range(2)]
    a.ext(xaddr())
    a.label("K1_ln")
    a.ext(dwrd(0))
    def yreg(tt, d): return XN + 48*tt + 2*d if d < 24 else ACC + 2*(d - 24)
    for tt in range(3):
        for m in range(12):
            n = tt * 6 + m // 2; ks = KSO[m]
            if m % 2 == 0:
                if tt == 0: a(f"s_cbranch_vccnz K1_ta{n}")
                a(f"s_waitcnt vmcnt({2 * min(5, 17 - n) + (6 if n > 14 else 0)})")
                a.ext(xread(n))
                if tt == 0: a.label(f"K1_ta{n}")
            last = tt == 2 and m == 11
            if not last: a.ext(dwrd(m + 1))
            a(f"s_waitcnt lgkmcnt({0 if last else 2})")
            if m % 2 == 0:
                if tt == 0:
                    a(f"s_cbranch_vccnz K1_tb{n}")
                    a.ext(xdma(n + 6, OPT["x_nt"]))
                    a.label(f"K1_tb{n}")
                elif n + 6 < 18: a.ext(xdma(n + 6))
                if n in (14, 17):
                    for p in dma(): a.ext(p)
            D = DWR[m % 2]
            for jj in (3, 2, 1, 0):
                d = 4 * ks + jj; x = XN + 48*tt + d; y = yreg(tt, d)
                a(f"v_dot2_f32_bf16 v{y+1}, v{x}, v{D+2*jj+1}, 0")
                a(f"v_dot2_f32_bf16 v{y}, v{x}, v{D+2*jj}, 0")
            for jj in (3, 2, 1, 0):
                y = q(yreg(tt, 4 * ks + jj), 2); s_ = q(S + 2*(jj % 2), 2); q_ = q(Q + 2*(jj % 2), 2)
                if m == 0 and jj >= 2:
                    a(f"v_pk_mul_f32 {s_}, {y}, 1.0 op_sel_hi:[1,0]")
                    a(f"v_pk_mul_f32 {q_}, {y}, {y}")
                else:
                    a(f"v_pk_add_f32 {s_}, {s_}, {y}")
                    a(f"v_pk_fma_f32 {q_}, {y}, {y}, {q_}")
        a(f"v_pk_add_f32 {q(S,2)}, {q(S,2)}, {q(S+2,2)}")
        a(f"v_pk_add_f32 {q(Q,2)}, {q(Q,2)}, {q(Q+2,2)}")
        a(f"v_add_f32 v{S}, v{S}, v{S+1}")
        a(f"v_add_f32 v{Q}, v{Q}, v{Q+1}")
        for sw in ("v_permlane16_swap_b32", "v_permlane32_swap_b32"):
            a(f"v_mov_b32 v{S+1}, v{S}"); a(f"v_mov_b32 v{Q+1}, v{Q}")
            a("s_nop 0")
            a(f"{sw} v{S}, v{S+1}"); a(f"{sw} v{Q}, v{Q+1}")
            a(f"v_add_f32 v{S}, v{S}, v{S+1}"); a(f"v_add_f32 v{Q}, v{Q}, v{Q+1}")
        a(f"v_mul_f32 v{S}, {f32(-1.0 / C)}, v{S}")
        a(f"v_mul_f32 v{Q}, {f32(1.0 / C)}, v{Q}")
        a(f"v_fma_f32 v{Q}, -v{S}, v{S}, v{Q}")
        a(f"v_max_f32 v{Q}, 0, v{Q}")
        a(f"v_add_f32 v{Q}, {f32(1e-5)}, v{Q}")
        a(f"v_rsq_f32 v{Q}, v{Q}")
        a("s_nop 0")
        a(f"v_mul_f32 v{Q}, {f32(ALPHA)}, v{Q}")
        a(f"v_mul_f32 v{S}, v{S}, v{Q}")
        for d0 in range(0, 48, 4):
            for d in range(d0, d0 + 4):
                y = q(yreg(tt, d), 2)
                a(f"v_pk_fma_f32 {y}, {y}, {q(Q,2)}, {q(S,2)} op_sel_hi:[1,0,0]")
            for d in range(d0, d0 + 4):
                a(f"v_cvt_pk_bf16_f32 v{XN + 48*tt + d}, v{yreg(tt, d)}, v{yreg(tt, d) + 1}")
    a(f"s_cmp_lg_u32 s{sI}, 0")
    a("s_cbranch_scc1 K1_chk")
    if OPT["w1warm"]:
        a(f"s_lshr_b32 s{sT0}, s2, 3")
        a(f"s_lshl_b32 s{sT0}, s{sT0}, 3")
        a(f"s_add_u32 s{sT0}, s{sT0}, s{sWV}")
        a(f"s_mul_i32 s{sT0}, s{sT0}, 4608")
        a(f"v_and_b32 v{ACC}, 63, v0")
        a(f"v_min_u32 v{ACC}, 35, v{ACC}")
        a(f"v_lshlrev_b32 v{ACC}, 7, v{ACC}")
        a(f"s_mov_b32 m0, {L_DW + 2048}")
        a("s_waitcnt vmcnt(0)")
        a(f"buffer_load_dword v{ACC}, s[{sW1}:{sW1+3}], s{sT0} offen lds")
    a(f"v_readfirstlane_b32 s{sTK}, v{BB+8}")
    a("s_nop 3")
    a(f"s_cmp_lg_u32 s{sTK}, 0")
    a("s_cbranch_scc1 K1_flag")
    srd(a, 60, sWSlo, sWShi, NREP * 6144, SSQ)
    a(f"s_and_b32 s{sT0}, s2, {NREP - 1}")
    a(f"s_mul_i32 s{sT1}, s{sT0}, 6144")
    a(f"s_add_u32 s{sT2}, s{sT1}, 4096")
    for i in range(4): a(f"v_mov_b32 v{ACC+i}, 0")
    a(f"v_lshlrev_b32 v{ACC+4}, 4, v0")
    for k in range(6): a(f"buffer_store_dwordx4 {q(ACC)}, v{ACC+4}, s[60:63], s{(sT1, sT2)[k // 4]} offen offset:{(k % 4) * 1024} sc0 sc1")
    a(f"v_lshlrev_b32 v{ACC+5}, 8, v0")
    a(f"v_mov_b32 v{ACC+6}, 1")
    a(f"s_lshl_b32 s{sT0}, s{sT0}, 2")
    a("s_waitcnt vmcnt(0)")
    a(f"buffer_store_dword v{ACC+6}, v{ACC+5}, s[{sDB}:{sDB+3}], s{sT0} offen offset:64 sc0 sc1")
    a("s_branch K1_flag")
    a.label("K1_chk")
    a(f"v_readfirstlane_b32 s{sT1}, v{vFL+1}")
    a("s_nop 3")
    a(f"s_cmp_lg_u32 s{sT1}, 0")
    a("s_cbranch_scc1 K1_flag")
    a(f"v_mov_b32 v{vFL}, 0")
    a(f"buffer_load_dword v{vFL+1}, v{vFL}, s[{sDB}:{sDB+3}], s{sT2} offen offset:64 sc0 sc1")
    a("s_waitcnt vmcnt(0)")
    a("s_branch K1_chk")
    a.label("K1_flag")
    if OPT["w1warm"]:
        a(f"s_cmp_eq_u32 s{sI}, 0")
        a("s_cbranch_scc1 K1_fl2")
    a("s_waitcnt vmcnt(0)")
    a.label("K1_fl2")
    stamp2(a, 2, 5, sI)
    a("s_barrier")
    stamp2(a, 3, 6, sI)
    a.ext(head())
    if OPT["mst"]:
        a(f"s_mov_b32 s{sH+2}, 0")
        a(f"s_mov_b32 s{sST0}, 0")
        a(f"s_mov_b32 s{sST1}, 0")
    a(f"s_cmp_eq_u32 s{sGRP}, 0")
    a("s_cbranch_scc1 K1_regA")
    a("s_barrier")
    a("s_branch K1_regB")

    def accr(ct, tt): return ACC + (((ct >> 1) * 3 + tt) * 2 + (ct & 1)) * 4
    NT = OPT["ntail"]
    MST = OPT["mst"]
    def store(kind, cp, tt):
        keep = kind == "regk" or (kind != "tail" and (OPT["stm"] >> (cp * 3 + tt)) & 1)
        return (f"buffer_store_dwordx4 {q(ACC + (cp * 3 + tt) * 8 + 4 * MST)}, v{vST}, s[{sH}:{sH+3}], s{(sST0, sST1)[cp]} offen offset:{tt*1024}"
                + (" nt" if OPT["st_nt"] and not keep else ["", " sc1", " sc0 sc1", " sc0"][OPT["kf"]]))
    def step(kind, grp):
        tag = kind + "AB"[grp]
        BG = OPT["bg"] if grp == 0 else OPT["bgb"]
        if kind == "tail":
            a.label(f"K1_pre{tag}")
            if OPT["npf"]:
                a("s_getpc_b64 s[60:61]")
                a.label(f"K1_pc{tag}")
                a(f"v_lshlrev_b32 v{TMP}, 7, v0")
                a(f"v_min_u32 v{TMP}, K3_end-K1_fin, v{TMP}")
                a(f"v_add_u32 v{TMP}, K1_fin-K1_pc{tag}, v{TMP}")
                a(f"v_mov_b32 v{TMP+3}, s61")
                a(f"v_add_co_u32 v{TMP+2}, vcc, s60, v{TMP}")
                a(f"s_mov_b32 m0, {L_DW + 2048}")
                a("s_nop 0")
                a(f"v_addc_co_u32 v{TMP+3}, vcc, 0, v{TMP+3}, vcc")
                a(f"global_load_lds_dword {q(TMP+2, 2)}, off")
        a(".p2align 6")
        a.label(f"K1_{tag}")
        a(f"s_setprio {OPT['pm']}")
        P = dma()
        misc = [[f"s_add_u32 s{sRDS}, s{sRDS}, 49152", f"s_cmp_eq_u32 s{sRDS}, 147456", f"s_cselect_b32 s{sRDS}, 0, s{sRDS}",
                 f"s_mul_i32 s{sST0}, s{sSIG}, {2 * CHUNK_H}", f"s_add_u32 s{sST0}, s{sST0}, s{sHB}"],
                [f"s_cmp_eq_u32 s{sSIG}, s{sDSP}", f"s_cselect_b32 s{sH}, s{sOUTlo}, s{sWSlo}", f"s_cselect_b32 s{sH+1}, s{sOUThi}, s{sWShi}",
                 f"s_cselect_b32 s{sST0}, s59, s{sST0}", f"s_mov_b32 s{sT1}, {XBYTES}", f"s_cselect_b32 s{sH+2}, s{sT1}, {TAIL}"],
                [f"s_add_u32 s{sST1}, s{sST0}, {CHUNK_H}", f"s_add_u32 s{sI}, s{sI}, 1"]]
        def atoms(L):
            out = []; hold = False
            for x in L:
                if hold: out[-1].append(x)
                else: out.append([x])
                if x.startswith("s_cbranch"): hold = True
                if x.endswith(":"): hold = False
            return out
        early = atoms([x for m_ in misc for x in m_])
        if kind == "pre":
            late = [f"s_mov_b32 s{sCW}, s{sDSL}", f"s_mov_b32 s{sXB}, s{sXN}", f"s_add_u32 s{sCW2}, s{sDSL}, 49152",
                    f"s_cmp_ge_u32 s{sCW2}, 147456", f"s_cselect_b32 s{sCW2}, s{sD0}, s{sCW2}"] + [x for n_ in range(3) for x in xdma(n_, OPT["xp_nt"])]
        elif kind == "last": late = [x for n_ in range(3, 6) for x in xdma(n_, OPT["xp_nt"])]
        else: late = [x for p in P for x in p]
        late = atoms(late)
        if MST:
            ST = [[store(kind, cp, tt)] for cp in range(2) for tt in range(3)]
            ind = early[:3] + early[-1:]; dep = early[3:-1]
            if grp == 0:
                early = [ST[0], ind[0], ind[1], ST[1], ind[2], ind[3], ST[2], [], ST[3], [], ST[4], [], ST[5]] + dep[:2]
                late = late + dep[2:]
            else:
                seq = late + ind
                lastd = max(z for z, x in enumerate(seq) if x[0].startswith("buffer"))
                for z, pos in reversed(list(enumerate([0, 3, 6, lastd + 2, lastd + 3 + (len(late) > lastd + 3), lastd + 4 + 2 * (len(late) > lastd + 3)]))): seq.insert(pos, ST[z])
                early, late = seq + dep, []
            nafter = 3
        elif grp == 1: early, late = late + early, []
        nse = sum(1 for x in early if x and x[0].startswith("buffer_store"))
        SPR = OPT["spr"]
        for g in range(12):
            a("s_waitcnt lgkmcnt(0)")
            k = 0
            ct = g // 3
            R = [x for j in range(4) for x in rd((g + 1) * 4 + j)] if g < 11 else []
            xo = None
            if len(R) == 9: R = R[1:]
            if 0 < g + 2 < 12 and (g + 2) % 3 == 0: xo = rd((g + 2) * 4)[0]
            if OPT["rpg"] == 2: R = [R[2*z] + "\n" + R[2*z+1] for z in range(len(R) // 2)]
            if OPT["rpg"] == 3: R = [R[0] + "\n" + R[1], R[2] + "\n" + R[3]] + R[4:] if R else R
            for tt in range(3):
                for j in range(4):
                    i = g * 4 + j; ks = i % 12
                    c = "0" if ks == 0 else q(accr(ct, tt))
                    a(f"v_mfma_f32_16x16x32_bf16 {q(accr(ct, tt))}, {q(XN + 48*tt + 4*ks)}, {q(buf(i))}, {c}")
                    if k < len(R): a(R[k])
                    elif k == 11 and xo: a(xo)
                    elif g == BG and grp == 0 and k == 9:
                        assert not early
                        if kind != "last" and not OPT["k1nv"] & 1: a(f"s_waitcnt vmcnt({nse if MST else 6})")
                        a("s_barrier")
                        early, late = late, []
                    else:
                        for _ in range(SPR):
                            if early:
                                at = early.pop(0); a.ext(at)
                                if at and at[0].startswith("buffer_store"): assert g < (3 if f"s{sST0} " in at[0] else 9), (g, at)
                                if not at or at[0].startswith("buffer"): break
                    k += 1
        assert not early and not late
        a(f"s_setprio {OPT['pg0']}")
        if kind == "last": a.ext(xaddr())
        def gbar():
            if kind == "tail":
                a(f"s_cmp_eq_u32 s{sI}, 36")
                a(f"s_cbranch_scc1 K1_nogb")
            if kind != "pre" and not OPT["k1nv"] & 2: a(f"s_waitcnt vmcnt({nafter if MST else nb - len(pend)})")
            a("s_barrier")
            if kind == "tail": a.label("K1_nogb")
        nb = 0; pend = []
        for cp in range(2):
            for tt in range(3):
                b = ACC + (cp * 3 + tt) * 8
                GB = gelu_batch(b, TMP, SS + 2 * cp, tt == 0, sC0, sC0H)
                if OPT["gbo"] and nb == OPT["gb"] and grp == 1 and kind != "last":
                    a.ext(GB[:OPT["gbo"]]); gbar(); a.ext(GB[OPT["gbo"]:])
                else: a.ext(GB)
                if not MST or kind == "last": pend.append(store(kind, cp, tt))
                if kind == "last" or nb + 1 >= OPT["lst"]:
                    a.ext(pend); pend = []
                if kind == "last":
                    a(f"s_waitcnt vmcnt({13 + 3 * nb if nb < 3 else 11 + nb})")
                    a.ext(xread(nb))
                    a("s_waitcnt lgkmcnt(0)")
                    a.ext(xdma(nb + 6, OPT["xp_nt"]))
                nb += 1
                if nb == OPT["gb"] and grp == 1 and kind != "last" and not OPT["gbo"]: gbar()
                if nb == OPT["gp"]: a(f"s_setprio {OPT['pg1']}")
                if nb == OPT["hd"] and kind != "last": a.ext(head())
            if not OPT["sdot"]:
                a(f"v_permlane16_swap_b32 v{SS+2*cp}, v{SS+2*cp+1}")
                if cp == 0: a("s_nop 0")
                a(f"v_add_f32 v{SS+2*cp}, v{SS+2*cp}, v{SS+2*cp+1}")
        if OPT["sdot"]:
            for tt in range(3):
                for i in range(2):
                    for c in range(4):
                        p = ACC + ((c >> 1) * 3 + tt) * 8 + 2 * (c & 1) + i + 4 * MST
                        a(f"v_dot2_f32_bf16 v{SS+c}, v{p}, v{p}, 0" if tt == 0 and i == 0 else (f"v_dot2_f32_bf16 v{SS+c}, v{p}, v{p}, v{SS+c}" if OPT["sdot"] == 1 else f"v_dot2c_f32_bf16 v{SS+c}, v{p}, v{p}"))
                    if pend: a(pend.pop(0))
                    if OPT["hd"] == 7 and kind != "last":
                        H_ = head(); z = tt * 2 + i
                        a.ext(H_[:3] if z == 0 else H_[1 + 2 * z: 3 + 2 * z])
            a(f"s_add_u32 s{sT1}, s{sSIG}, 1")
            a(f"v_permlane16_swap_b32 v{SS}, v{SS+1}")
            a(f"s_cmp_eq_u32 s{sT1}, s{sSHI}")
            a(f"v_permlane16_swap_b32 v{SS+2}, v{SS+3}")
            a(f"v_add_f32 v{SS}, v{SS}, v{SS+1}")
            a(f"v_add_f32 v{SS+2}, v{SS+2}, v{SS+3}")
        else:
            a(f"s_add_u32 s{sT1}, s{sSIG}, 1")
            a(f"s_cmp_eq_u32 s{sT1}, s{sSHI}")
        a(f"s_cselect_b32 s{sT1}, s{sSLO}, s{sT1}")
        a("s_nop 0")
        a(f"v_permlane32_swap_b32 v{SS}, v{SS+2}")
        a(f"v_add_f32 v{SS}, v{SS}, v{SS+2}")
        a(f"s_set_gpr_idx_on s{sSIG}, gpr_idx(SRC0,DST)")
        a(f"s_mov_b32 s{sSIG}, s{sT1}")
        a(f"v_add_f32 v{SQ}, v{SQ}, v{SS}")
        a("s_set_gpr_idx_off")
        if kind in ("reg", "regk"):
            g_ = "AB"[grp]
            if OPT["kmask"]:
                a(f"s_cmp_eq_u32 s{sI}, s{sEND}")
                a(f"s_cbranch_scc1 K1_out{g_}")
                a(f"s_bitcmp1_b32 s{sKM}, s{sSIG}")
                a(f"s_cbranch_scc{int(kind == 'regk')} K1_{tag}")
                if kind == "reg": a(f"s_branch K1_regk{g_}")
            else:
                a(f"s_cmp_lg_u32 s{sI}, s{sEND}")
                a(f"s_cbranch_scc1 K1_{tag}")
            if kind == "reg":
                a.label(f"K1_out{g_}")
                a(f"s_cmp_eq_u32 s{sI}, {36 - NT}")
                a(f"s_cbranch_scc1 K1_pretail{g_}")
        elif kind == "pre":
            pass
        elif kind == "last":
            a("s_branch K1_sw")
        else:
            a(f"s_cmp_lg_u32 s{sI}, 36")
            a(f"s_cbranch_scc1 K1_{tag}")
            a("s_branch K1_fin")
    for grp in range(2):
        for kind in (("regk",) if OPT["kmask"] else ()) + ("reg", "pre", "last", "tail"): step(kind, grp)
    a.label("K1_sw")
    a("s_setprio 0")
    a("s_mov_b64 vcc, -1")
    stamp(a, 4)
    a(f"s_mov_b32 s{sEND}, {36 - NT}")
    a(f"s_mov_b32 s{sSLO}, s{sSLN}")
    a(f"s_mov_b32 s{sSHI}, s{sSHN}")
    a(f"s_add_u32 s{sSIG}, s{sSLO}, s{sSG0}")
    a(f"s_mov_b32 s{sHB}, s{sHN}")
    a(f"s_mov_b32 s{sDSP}, s{sDSN}")
    a(f"s_and_b32 s{sT2}, s2, {NREP - 1}")
    a(f"s_lshl_b32 s{sT2}, s{sT2}, 2")
    a("s_waitcnt lgkmcnt(0)")
    a(f"v_mov_b32 v{vFL}, 0")
    a(f"buffer_load_dword v{vFL+1}, v{vFL}, s[{sDB}:{sDB+3}], s{sT2} offen offset:64 sc0 sc1")
    if OPT["w2pf"]:
        a("s_load_dwordx2 s[60:61], s[0:1], 24")
        a(f"s_mov_b32 s62, {C * F * 2}")
        a("s_mov_b32 s63, 0x00020000")
        a(f"s_mul_i32 s{sT0}, s2, 4608")
        a(f"v_lshlrev_b32 v{BB+10}, 7, v0")
        a(f"v_min_u32 v{BB+10}, 4480, v{BB+10}")
        a("s_waitcnt lgkmcnt(0)")
        a(f"s_cmp_lg_u32 s{sWV}, 0")
        a("s_cbranch_scc1 K1_ln")
        a(f"buffer_load_dword v{BB+11}, v{BB+10}, s[60:63], s{sT0} offen")
    a("s_branch K1_ln")
    a.label("K1_fin")
    a("s_setprio 0")
    if MST:
        for cp in range(2):
            for tt in range(3): a(store("tail", cp, tt))
    stamp(a, 7)
    a(f"s_and_b32 s{sT0}, s2, {NREP - 1}")
    a(f"s_waitcnt vmcnt(6) lgkmcnt(0)")
    a("s_barrier")
    a("v_and_b32 v1, 63, v0")
    a("v_lshlrev_b32 v1, 2, v1")
    a(f"v_add_u32 v1, s{sD0}, v1")
    for k in range(24): a(f"ds_write_b32 v1, v{SQ+k} offset:{k*256}")
    a("v_lshlrev_b32 v1, 2, v0")
    a("s_waitcnt lgkmcnt(0)")
    a("s_barrier")
    for k in range(3):
        for w in range(8): a(f"ds_read_b32 v{XN+8*k+w}, v1 offset:{w*6144 + k*2048}")
    srd(a, 60, sWSlo, sWShi, NREP * 6144, SSQ)
    a(f"s_mul_i32 s{sT0}, s{sT0}, 6144")
    a(f"s_add_u32 s{sT1}, s{sT0}, 4096")
    a("s_waitcnt lgkmcnt(0)")
    for st in (4, 2, 1):
        for k in range(3):
            for w in range(st): a(f"v_add_f32 v{XN+8*k+w}, v{XN+8*k+w}, v{XN+8*k+w+st}")
    a(f"buffer_atomic_add_f32 v{XN}, v1, s[60:63], s{sT0} offen")
    a(f"buffer_atomic_add_f32 v{XN+8}, v1, s[60:63], s{sT0} offen offset:2048")
    a(f"buffer_atomic_add_f32 v{XN+16}, v1, s[60:63], s{sT1} offen")
    if OPT["stamp"]: a("s_waitcnt vmcnt(0)")
    stamp(a, 8)
    stamp_dump(a, 9, sWV, "K1", 0)
    a.label("K1_end")
    a("s_endpgm")
    return a, desc("gemm1_kernel", 256, 100), f"; @launch kernel=gemm1_kernel grid=(256,1,1) block=(512,1,1) lds={L_DW + 4096}"

T1B = 46 * CHUNK_H; T2B = 94 * CHUNK_H
def k3r():
    REG = 3 * 192 * 768
    a = Asm()
    ACC = 16; HB = 160; WB = 184; SEL = 208; BIAS = 216; XT = 240
    vD0, vWR, vHR0, vHR1, vXR, vOUT, vWB0, vHB0, vHB1 = 1, 4, 5, 6, 7, 8, 9, 10, 11
    L_H = 73728; L_X = 147456
    sD, sO = 8, 12
    (sWV, sTH, sCQ, sSrc, sDst, sSlot, sDLo, sDEnd, sT0, sT1, sWS, sHS, sPASS, sOB, sEV, sT2, sJd, sLag, sSrc3, sSrcL, sSrcL3, sLim, sHalf, sDP, sHlo, sHhi) = range(30, 56)
    STG = OPT["stg"]; NB = (5 * STG + 1 + 3) // 4 * 4
    kernel_start(a, "gemm2_kernel")
    a("s_cmp_ge_u32 s2, 256")
    a("s_cbranch_scc1 K3_end")
    stamp(a, 0)
    a("s_load_dwordx2 s[4:5], s[0:1], 0")
    a("s_load_dwordx2 s[6:7], s[0:1], 48")
    a("s_load_dwordx2 s[24:25], s[0:1], 64")
    code_prefetch(a, "gemm2_kernel", "K3_end", 100, 60)
    a("v_lshrrev_b32 v16, 6, v0")
    a("v_and_b32 v17, 63, v0")
    a(f"v_readfirstlane_b32 s{sWV}, v16")
    a(f"v_lshlrev_b32 v{vD0}, 4, v17")
    a(f"v_add_u32 v{vD0+1}, 1024, v{vD0}")
    a(f"v_add_u32 v{vD0+2}, 2048, v{vD0}")
    a("v_and_b32 v18, 15, v17")
    a("v_lshrrev_b32 v19, 4, v17")
    a("v_mul_u32_u24 v20, 24, v18")
    a(f"s_lshr_b32 s{sTH}, s{sWV}, 2")
    a(f"s_and_b32 s{sCQ}, s{sWV}, 3")
    a(f"s_mov_b32 s{sD+3}, 0x00020000")
    a(f"s_mov_b32 s{sO+3}, 0x00020000")
    a(f"s_mov_b32 s{sO+2}, 0")
    a(f"s_mul_i32 s{sT0}, s2, {REG}")
    a(f"s_and_b32 s{sHalf}, s{sWV}, 1")
    a(f"s_mul_i32 s{sHalf}, s{sHalf}, 6144")
    a(f"s_mul_i32 s{sT1}, s2, {HSTRIDE}")
    a(f"s_mov_b32 s{sJd}, 0")
    a(f"s_mov_b32 s{sLag}, 0")
    a(f"s_mov_b32 s{sDP}, 0")
    a(f"s_mov_b32 s{sSrc}, s{sHalf}")
    a("s_waitcnt lgkmcnt(0)")
    a(f"s_add_u32 s{sO}, s6, s{sT0}")
    a(f"s_addc_u32 s{sO+1}, s7, 0")
    a(f"s_add_u32 s{sHlo}, s24, s{sT1}")
    a(f"s_addc_u32 s{sHhi}, s25, 0")
    srd(a, 16, 24, 25, 1536 * NBP, B2)
    a(f"s_mul_i32 s{sT1}, s{sCQ}, 384")
    for p in range(NBP):
        a(f"buffer_load_dwordx3 {q(24 + 8*p, 3)}, v20, s[16:19], s{sT1} offen")
        a(f"buffer_load_dwordx3 {q(28 + 8*p, 3)}, v20, s[16:19], s{sT1} offen offset:12")
        if p < NBP - 1: a(f"s_add_u32 s{sT1}, s{sT1}, 1536")

    nt = " nt" if OPT["h_nt"] else ""
    def pieces_w():
        P = []
        for k in range(6):
            pre = [f"s_mov_b32 m0, s{sDst}", f"s_add_u32 s{sT2}, s{sSrc}, 3072"] if k == 0 else ["s_add_u32 m0, m0, 1024", "s_nop 0"]
            P.append(pre + [f"buffer_load_dwordx4 v{vD0 + k % 3}, s[{sD}:{sD+3}], s{sSrc if k < 3 else sT2} offen lds"])
        P[5] += [f"s_add_u32 s{sDst}, s{sDst}, 24576", f"s_cmp_eq_u32 s{sDst}, s{sDEnd}", f"s_cselect_b32 s{sDst}, s{sDLo}, s{sDst}",
                 f"s_add_u32 s{sSrc}, s{sSrc}, 24576", f"s_cmp_ge_u32 s{sSrc}, 1179648", f"s_cselect_b32 s{sSrc}, s{sDLo}, s{sSrc}"]
        return P
    uid = [0]
    def pieces_h():
        P = []
        for k in range(6):
            if k == 0:
                P.append([f"s_mov_b32 m0, s{sDst}", f"s_add_u32 s{sSrc3}, s{sSrc}, 3072",
                          f"buffer_load_dwordx4 v{vD0}, s[{sD}:{sD+3}], s{sSrc} offen{nt} lds",
                          f"s_sub_u32 s{sSrcL}, s{sSrc}, s{sLag}", f"s_sub_u32 s{sSrcL3}, s{sSrc3}, s{sLag}"])
            else:
                P.append(["s_add_u32 m0, m0, 1024", f"s_cmp_lt_u32 s{sJd}, {STG * k}",
                          f"s_cselect_b32 s{sT2}, s{sSrcL if k < 3 else sSrcL3}, s{sSrc if k < 3 else sSrc3}",
                          f"buffer_load_dwordx4 v{vD0 + k % 3}, s[{sD}:{sD+3}], s{sT2} offen{nt} lds"])
        uid[0] += 1; u = uid[0]
        P[5] += [f"s_add_u32 s{sDst}, s{sDst}, s{sSlot}", f"s_cmp_eq_u32 s{sDst}, s{sDEnd}", f"s_cselect_b32 s{sDst}, s{sDLo}, s{sDst}",
                 f"s_add_u32 s{sSrc}, s{sSrc}, 12288", f"s_cmp_ge_u32 s{sSrc}, s{sLim}", f"s_cselect_b32 s{sD+2}, 0, s{sD+2}",
                 f"s_add_u32 s{sJd}, s{sJd}, 1", f"s_cmp_lt_u32 s{sJd}, 46", f"s_cbranch_scc1 K3_av{u}",
                 f"s_add_u32 s{sT2}, s{sJd}, s{sDP}", f"s_cmp_lg_u32 s{sT2}, 46", f"s_cbranch_scc1 K3_aw{u}",
                 f"s_mov_b32 s{sD}, s{sO}", f"s_mov_b32 s{sD+1}, s{sO+1}", f"s_mov_b32 s{sD+2}, {REG}", f"s_add_u32 s{sSrc}, s{sHalf}, {2 * 192 * 768}",
                 f"K3_aw{u}:", f"s_cmp_lg_u32 s{sJd}, 48", f"s_cbranch_scc1 K3_av{u}",
                 f"s_mov_b32 s{sJd}, 0", f"s_mov_b32 s{sLag}, {48 * CHUNK_H}", f"s_cmp_lg_u32 s{sDP}, 0", f"s_cbranch_scc1 K3_av{u}",
                 f"s_mov_b32 s{sDP}, 100", f"s_mov_b32 s{sLag}, {46 * CHUNK_H}", f"s_mov_b32 s{sD}, s{sHlo}", f"s_mov_b32 s{sD+1}, s{sHhi}",
                 f"s_mov_b32 s{sD+2}, {HSTRIDE}", f"s_add_u32 s{sSrc}, s{sHalf}, {T1B}",
                 f"K3_av{u}:"]
        return P

    a(f"s_cmp_lt_u32 s{sWV}, 4")
    a("s_cbranch_scc1 K3_rw")
    a(f"s_cmp_ge_u32 s{sWV}, 6")
    a("s_cbranch_scc1 K3_rx")
    a(f"s_mov_b32 s{sD}, s{sHlo}")
    a(f"s_mov_b32 s{sD+1}, s{sHhi}")
    a(f"s_mov_b32 s{sD+2}, {HSTRIDE}")
    a(f"s_add_u32 s{sDLo}, s{sHalf}, {L_H}")
    a(f"s_mov_b32 s{sDst}, s{sDLo}")
    a(f"s_add_u32 s{sDEnd}, s{sDLo}, 73728")
    a(f"s_mov_b32 s{sSlot}, {CHUNK_H}")
    a(f"s_mov_b32 s{sLim}, -1")
    a(f"s_mov_b32 s{sT1}, 5")
    a.label("K3_hpro")
    for p in pieces_h(): a.ext(p)
    a(f"s_sub_u32 s{sT1}, s{sT1}, 1")
    a(f"s_cmp_lg_u32 s{sT1}, 0")
    a("s_cbranch_scc1 K3_hpro")
    a("s_mov_b64 s[56:57], 0")
    a("s_branch K3_rdone")
    a.label("K3_rx")
    a(f"s_add_u32 s{sD}, s4, s{sT0}")
    a(f"s_addc_u32 s{sD+1}, s5, 0")
    a(f"s_mov_b32 s{sD+2}, {REG}")
    for m in range(3):
        v = vD0 + m
        a(f"v_mul_u32_u24 v20, 43691, v{v}")
        a("v_lshrrev_b32 v20, 25, v20")
        a("v_mul_u32_u24 v21, 864, v20")
        a(f"v_sub_u32 v21, v{v}, v21")
        a("v_add_u32 v22, 768, v21")
        a("v_cmp_gt_i32 vcc, 0, v21")
        a("v_mul_u32_u24 v20, 768, v20")
        a("s_nop 0")
        a("v_cndmask_b32 v21, v21, v22, vcc")
        a(f"v_add_u32 v{v}, v20, v21")
    a(f"s_add_u32 s{sDLo}, s{sHalf}, {L_X}")
    a(f"s_mov_b32 s{sDEnd}, 0")
    a(f"s_mov_b32 s{sSlot}, 0")
    a(f"s_mov_b32 s{sDst}, s{sDLo}")
    a(f"s_mov_b32 s{sLim}, {REG}")
    a("s_mov_b64 s[56:57], -1")
    a("s_branch K3_rdone")
    a.label("K3_rw")
    a(f"s_add_u32 s{sD}, s24, {W2F}")
    a(f"s_addc_u32 s{sD+1}, s25, 0")
    a(f"s_mov_b32 s{sD+2}, 1179648")
    a(f"s_mul_i32 s{sDLo}, s{sCQ}, 6144")
    a(f"s_add_u32 s{sDEnd}, s{sDLo}, 73728")
    a(f"s_mov_b32 s{sDst}, s{sDLo}")
    a(f"s_mov_b32 s{sSrc}, s{sDLo}")
    for _ in range(2):
        for p in pieces_w(): a.ext(p)
    a("s_mov_b64 s[56:57], 0")
    a.label("K3_rdone")
    a(f"v_mul_u32_u24 v{vOUT}, 3072, v19")
    a("v_mul_u32_u24 v21, 12, v18")
    a(f"s_mul_i32 s{sT0}, s{sTH}, {96 * 768}")
    a(f"s_mul_i32 s{sT1}, s{sCQ}, 192")
    a(f"s_add_u32 s{sT0}, s{sT0}, s{sT1}")
    a(f"v_add3_u32 v{vOUT}, v{vOUT}, v21, s{sT0}")
    a(f"s_mul_i32 s{sT0}, s{sCQ}, 6144")
    a(f"v_lshl_add_u32 v{vWB0}, v17, 4, s{sT0}")
    a("v_and_b32 v21, 3, v18")
    a("v_lshrrev_b32 v22, 2, v18")
    a("v_and_b32 v23, 2, v19")
    a("v_xor_b32 v23, v23, v21")
    a("v_lshl_add_u32 v22, v23, 2, v22")
    a("v_lshl_add_u32 v22, v21, 4, v22")
    a("v_lshlrev_b32 v22, 4, v22")
    a("v_and_b32 v23, 1, v19")
    a("v_lshl_add_u32 v22, v23, 3, v22")
    a(f"s_mul_i32 s{sT0}, s{sTH}, 6144")
    a(f"s_add_u32 s{sT0}, s{sT0}, {L_H}")
    a(f"v_add_u32 v{vHB0}, s{sT0}, v22")
    a(f"v_xor_b32 v{vHB1}, 64, v{vHB0}")
    a(f"s_lshl_b32 s{sT0}, s{sCQ}, 2")
    a("v_lshl_add_u32 v22, v21, 1, v19")
    a(f"v_add_u32 v22, s{sT0}, v22")
    a("v_and_b32 v22, 15, v22")
    a("v_mul_u32_u24 v22, 48, v22")
    a("v_mul_u32_u24 v23, 768, v18")
    a(f"v_add_u32 v22, {L_X}, v22")
    a(f"v_add_u32 v{vXR}, v22, v23")
    a("v_lshrrev_b32 v22, 2, v18")
    a("v_cmp_eq_u32 vcc, v22, v19")
    a("v_mov_b32 v23, 0x3f80")
    a("s_nop 0")
    a("v_cndmask_b32 v23, 0, v23, vcc")
    for e in range(4):
        a(f"v_cmp_eq_u32 vcc, {e}, v21")
        a("s_nop 1")
        a(f"v_cndmask_b32 v{SEL+e}, 0, v23, vcc")
        a(f"v_lshlrev_b32 v{SEL+4+e}, 16, v{SEL+e}")
    a("s_mov_b64 vcc, s[56:57]")
    a(f"s_mov_b32 s{sWS}, 0")
    a(f"s_mov_b32 s{sHS}, 0")
    a(f"s_mov_b32 s{sPASS}, 0")
    a(f"s_mov_b32 s{sOB}, 0")
    a("s_waitcnt vmcnt(24)")
    a(f"s_cmp_eq_u32 s{sSlot}, {CHUNK_H}" if False else f"s_sub_u32 s{sT0}, s{sWV}, 4")
    a(f"s_cmp_lt_u32 s{sT0}, 2")
    a("s_cbranch_scc1 K3_pw")
    a("s_waitcnt vmcnt(6)")
    a("s_cbranch_vccz K3_pw")
    a("s_waitcnt vmcnt(0)")
    a.label("K3_pw")
    for p in range(1, NBP):
        for n in range(6):
            src = 24 + n if n < 3 else 25 + n
            a(f"v_add_f32 v{src}, v{src}, v{src + 8*p}")
    for n in range(6):
        src = 24 + n if n < 3 else 25 + n
        for r in range(4): a(f"v_mov_b32 v{BIAS+4*n+r}, v{src}")
    stamp(a, 1)

    def accr(n, t): return ACC + (t * 6 + n) * 4
    ofl = ["", " nt", " sc1", " sc0 sc1", " sc0"][OPT["out_nt"]]
    def mini(t):
        L = [f"s_add_u32 s{sT1}, s{sOB}, {t * 12288}"]
        for r in range(4):
            tq = XT + 4 * r if STG % 2 == 0 else (12, 252)[r % 2]
            for j in range(3): L.append(f"v_cvt_pk_bf16_f32 v{tq+j}, v{accr(2*j, t)+r}, v{accr(2*j+1, t)+r}")
            if not OPT["k3nost"]: L.append(f"buffer_store_dwordx3 {q(tq, 3)}, v{vOUT}, s[{sO}:{sO+3}], s{sT1} offen offset:{r*768}" + ofl)
        return L
    def step(grp, u, bnd):
        u4 = u % 4; tag = f"{grp}{'b' if bnd else 'l'}{u}"
        L = [f"v_add_u32 v{vWR}, s{sWS}, v{vWB0}", f"v_add_u32 v{vHR0}, s{sHS}, v{vHB0}", f"v_add_u32 v{vHR1}, s{sHS}, v{vHB1}"]
        R = []
        for t in range(6):
            R.append(f"ds_read_b128 {q(WB + 4*t)}, v{vWR} offset:{t*1024}")
            R.append(f"ds_read_b64_tr_b16 {q(HB + 4*t, 2)}, v{vHR0} offset:{t*1024}")
            R.append(f"ds_read_b64_tr_b16 {q(HB + 4*t + 2, 2)}, v{vHR1} offset:{t*1024}")
        P = pieces_w() if grp == 0 else pieces_h()
        def gd(X, z): return X if grp == 0 or u4 == 0 else [f"s_cbranch_vccnz K3_s{tag}{z}"] + X + [f"K3_s{tag}{z}:"]
        L += gd(P[0], "a") + R[:6] + gd(P[1], "b") + R[6:12] + gd(P[2], "c") + R[12:]
        if u4 == 3:
            L += [f"s_sub_u32 s{sT0}, s{sEV}, {6*grp}", f"s_cmp_lt_u32 s{sT0}, 6", f"s_cbranch_scc0 K3_xr{tag}"]
            for p in range(3):
                L.append(f"ds_read2_b32 {q(XT + 4*p, 2)}, v{vXR} offset0:{p} offset1:{p+3}")
                L.append(f"ds_read2_b32 {q(XT + 4*p + 2, 2)}, v{vXR} offset0:{p+6} offset1:{p+9}")
            L.append(f"K3_xr{tag}:")
        L += gd(P[3] + P[4] + P[5], "d")
        L += [f"s_add_u32 s{sWS}, s{sWS}, 24576", f"s_cmp_eq_u32 s{sWS}, 73728", f"s_cselect_b32 s{sWS}, 0, s{sWS}",
              f"s_add_u32 s{sHS}, s{sHS}, 12288", f"s_cmp_eq_u32 s{sHS}, 73728", f"s_cselect_b32 s{sHS}, 0, s{sHS}"]
        tb = u // STG if bnd and u % STG == 0 and u // STG < 6 else None
        def nst(back):
            if not bnd or OPT["k3nost"]: return 0
            return 4 * sum(1 for w in range(max(0, u - back), u + 1 - grp) if w % STG == 0 and w // STG < 6)
        if tb == 5:
            a(f"s_cmp_eq_u32 s{sPASS}, 3")
            a("s_cbranch_scc1 K3_fin")
        a.ext(L)
        if grp == 0:
            a("s_waitcnt lgkmcnt(0)")
            a(f"s_setprio {OPT['k3pa']}")
        else:
            if u4 == 2:
                a(f"s_cbranch_vccz K3_nx{tag}")
                a(f"s_waitcnt vmcnt({nst(2)})")
                a.label(f"K3_nx{tag}")
            a(f"s_waitcnt vmcnt({24 + nst(4)}) lgkmcnt(0)")
            a("s_barrier")
            a(f"s_setprio {OPT['k3pb']}")
        if u4 == 3:
            a(f"s_cmp_lt_u32 s{sT0}, 6")
            a(f"s_cbranch_scc0 K3_xd{tag}")
            ts = range(6) if not bnd else [t for t in range(6) if t + 6 * grp == u // 4]
            for t in ts:
                if t != ts[-1]:
                    a(f"s_cmp_lg_u32 s{sT0}, {t}")
                    a(f"s_cbranch_scc1 K3_x{tag}_{t+1}")
                for n in range(6):
                    a(f"v_mfma_f32_16x16x32_bf16 {q(accr(n, t))}, {q(XT + 4*(n >> 1))}, {q(SEL + 4*(n & 1))}, {q(accr(n, t))}")
                if t != ts[-1]:
                    a(f"s_branch K3_xd{tag}")
                    a.label(f"K3_x{tag}_{t+1}")
            a.label(f"K3_xd{tag}")
            a(f"s_add_u32 s{sEV}, s{sEV}, 1")
        def mf(t): return [f"v_mfma_f32_16x16x32_bf16 {q(accr(n, t))}, {q(HB + 4*t)}, {q(WB + 4*n)}, {q(BIAS + 4*n) if t == tb else q(accr(n, t))}" for n in range(6)]
        bar = [f"s_waitcnt vmcnt({6 + nst(1)})", "s_barrier"] if grp == 0 else []
        ns = u // STG + 1 if bnd else 6
        def full():
            order = [t for t in range(6) if t != tb] + ([tb] if tb is not None else [])
            Ms = [[x] for t in order for x in mf(t)]
            if tb is not None:
                E = mini(tb)
                pos = OPT["mp0"]
                for x in E:
                    Ms[pos].append(x)
                    if not x.startswith("s_"): pos += 1
                    if x.startswith("buffer"): pos += OPT["mpd"]
                assert pos <= 29
            e = OPT["k3eb"] if grp == 0 else 0
            Ms[35 - e] += (["s_setprio 3"] if e else []) + bar
            a.ext([x for m in Ms for x in m])
        if ns >= 6:
            full()
        else:
            a(f"s_sub_u32 s{sT2}, s{sPASS}, 1")
            a(f"s_cmp_lt_u32 s{sT2}, 2")
            a(f"s_cbranch_scc0 K3_m0{tag}")
            full()
            a(f"s_branch K3_m3{tag}")
            a.label(f"K3_m0{tag}")
            if tb is not None: a.ext(mini(tb))
            a(f"s_cmp_eq_u32 s{sPASS}, 3")
            a(f"s_cbranch_scc1 K3_m1{tag}")
            for t in range(ns): a.ext(mf(t))
            a(f"s_branch K3_m2{tag}")
            a.label(f"K3_m1{tag}")
            for t in range(ns, 6): a.ext(mf(t))
            a.label(f"K3_m2{tag}")
            a.ext(bar)
            a.label(f"K3_m3{tag}")
        a("s_setprio 0")

    a("s_barrier")
    a(f"s_cmp_lg_u32 s{sTH}, 0")
    a("s_cbranch_scc1 K3_1_tile")
    for grp in range(2):
        a.label(f"K3_{grp}_tile")
        a(f"s_cmp_eq_u32 s{sPASS}, 3")
        a(f"s_cselect_b32 s{sEV}, 100, 0")
        for u in range(NB): step(grp, u, True)
        if OPT["stamp"]: stamp2(a, 2, 4, sPASS)
        a(".p2align 6")
        a.label(f"K3_{grp}_loop")
        for u in range(4): step(grp, u, False)
        a(f"s_cmp_lg_u32 s{sEV}, 12")
        a(f"s_cbranch_scc1 K3_{grp}_loop")
        if OPT["stamp"]: stamp2(a, 3, 5, sPASS)
        a(f"s_mul_i32 s{sOB}, s{sPASS}, {192 * 768}")
        a(f"s_add_u32 s{sPASS}, s{sPASS}, 1")
        a(f"s_mov_b32 s{sO+2}, {REG}")
        a(f"s_branch K3_{grp}_tile")
    a.label("K3_fin")
    stamp(a, 6)
    a("s_nop 7")
    a.ext(mini(5))
    if OPT["stamp"]: a("s_waitcnt vmcnt(0)")
    stamp(a, 7)
    stamp_dump(a, 8, sWV, "K3", 1)
    a.label("K3_end")
    a("s_endpgm")
    return a, desc("gemm2_kernel", 256, 100), f"; @launch kernel=gemm2_kernel grid=(256,1,1) block=(512,1,1) lds={L_X + 12288}"

def k3n():
    a = Asm()
    ACC = 16; HB = 160; WB = 208; SEL = 232; XT = 240
    BV = [12, 13, 14, 15, 252, 253]
    vD0, vWR, vHR0, vHR1, vXR, vOUT, vWB0, vHB0, vHB1 = 1, 4, 5, 6, 7, 8, 9, 10, 11
    L_H = 73728; L_X = 147456
    sD, sO, sE = 8, 12, 20
    (sWV, sTH, sCQ, sSrc, sDst, sDLo, sDEnd, sT0, sT1, sWS, sHS, sJ, sOB, sEV, sT2, sSrc4, sDst4, sESrc, sEDst, sELo, sEEnd) = range(30, 51)
    REG = 3 * 192 * 768
    NA = OPT["k3wa"]; NE = (24 - 4 * NA) // 2
    kernel_start(a, "gemm2_kernel")
    a("s_cmp_ge_u32 s2, 256")
    a("s_cbranch_scc1 K3_end")
    stamp(a, 0)
    a("s_load_dwordx2 s[4:5], s[0:1], 0")
    a("s_load_dwordx2 s[6:7], s[0:1], 48")
    a("s_load_dwordx2 s[24:25], s[0:1], 64")
    a("v_lshrrev_b32 v16, 6, v0")
    a("v_and_b32 v17, 63, v0")
    a(f"v_readfirstlane_b32 s{sWV}, v16")
    a(f"v_lshlrev_b32 v{vD0}, 4, v17")
    a(f"v_mov_b32 v254, v{vD0}")
    a(f"v_add_u32 v{vD0+1}, 1024, v{vD0}")
    a(f"v_add_u32 v{vD0+2}, 2048, v{vD0}")
    a("v_and_b32 v18, 15, v17")
    a("v_lshrrev_b32 v19, 4, v17")
    a("v_mul_u32_u24 v20, 24, v18")
    a(f"s_lshr_b32 s{sTH}, s{sWV}, 2")
    a(f"s_and_b32 s{sCQ}, s{sWV}, 3")
    for s_ in (sD, sO, sE): a(f"s_mov_b32 s{s_+3}, 0x00020000")
    a(f"s_mov_b32 s{sO+2}, {REG}")
    DF = OPT["k3df"]; N0 = OPT["k3n0"]; N1 = OPT["k3n1"]; N2 = 18 - N0 - N1
    a(f"s_mul_i32 s{sT0}, s2, {REG}")
    a(f"s_and_b32 s{sT1}, s{sWV}, 1")
    a(f"s_mul_i32 s{sELo}, s{sT1}, {NE * 1024}")
    a(f"s_add_u32 s{sELo}, s{sELo}, {4 * NA * 1024}")
    a(f"s_mul_i32 s{sT1}, s{sT1}, 6144")
    a("s_waitcnt lgkmcnt(0)")
    a(f"s_add_u32 s{sO}, s6, s{sT0}")
    a(f"s_addc_u32 s{sO+1}, s7, 0")
    a(f"s_add_u32 s{sE}, s24, {W2F}")
    a(f"s_addc_u32 s{sE+1}, s25, 0")
    a(f"s_mov_b32 s{sE+2}, 1179648")
    srd(a, 16, 24, 25, 1536 * NBP, B2)
    a(f"s_mul_i32 s{sT2}, s{sCQ}, 384")
    for p in range(NBP):
        a(f"buffer_load_dwordx3 {q(24 + 8*p, 3)}, v20, s[16:19], s{sT2} offen")
        a(f"buffer_load_dwordx3 {q(28 + 8*p, 3)}, v20, s[16:19], s{sT2} offen offset:12")
        if p < NBP - 1: a(f"s_add_u32 s{sT2}, s{sT2}, 1536")

    nt = " nt" if OPT["h_nt"] else ""
    def lin(srd_, n, sfx, src=sSrc, dst=sDst):
        P = []
        for k in range(n):
            pre = [f"s_mov_b32 m0, s{dst}"] if k == 0 else [f"s_mov_b32 m0, s{sDst4}"] if k == 4 else []
            P.append((pre, f"buffer_load_dwordx4 v254, s[{srd_}:{srd_+3}], s{src if k < 4 else sSrc4} offen offset:{(k % 4) * 1024}{sfx} lds"))
        return P
    def flat(P): return [x for pre, ld in P for x in pre + (["s_nop 0"] if pre else []) + [ld]]
    def four(): return [f"s_add_u32 s{sSrc4}, s{sSrc}, 4096", f"s_add_u32 s{sDst4}, s{sDst}, 4096"]
    def adv_w(src=sSrc, dst=sDst, lo=sDLo, end=sDEnd):
        return [f"s_add_u32 s{dst}, s{dst}, 24576", f"s_cmp_eq_u32 s{dst}, s{end}", f"s_cselect_b32 s{dst}, s{lo}, s{dst}",
                f"s_sub_u32 s{src}, s{src}, 24576", f"s_cselect_b32 s{sT2}, 1179648, 0", f"s_add_u32 s{src}, s{src}, s{sT2}"]
    def adv_src(): return [f"s_sub_u32 s{sSrc}, s{sSrc}, 12288", f"s_cselect_b32 s{sD+2}, 0, s{sD+2}", f"s_cselect_b32 s{sSrc}, 0, s{sSrc}"]
    def adv_h(): return [f"s_add_u32 s{sDst}, s{sDst}, 12288", f"s_cmp_eq_u32 s{sDst}, s{sDEnd}", f"s_cselect_b32 s{sDst}, s{sDLo}, s{sDst}"] + adv_src() + four()
    def xp():
        P = []
        for k in range(6):
            pre = [f"s_add_u32 m0, s{sDst}, {k * 1024}"]
            P.append((pre, f"buffer_load_dwordx4 v{vD0 + k % 3}, s[{sD}:{sD+3}], s{sSrc if k < 3 else sSrc4} offen{nt} lds"))
        return P
    def adv_x(): return adv_src() + [f"s_add_u32 s{sSrc4}, s{sSrc}, 3072"]

    a(f"s_cmp_lt_u32 s{sWV}, 4")
    a("s_cbranch_scc1 K3_rw")
    a(f"s_cmp_ge_u32 s{sWV}, 6")
    a("s_cbranch_scc1 K3_rx")
    a(f"s_add_u32 s{sDLo}, s{sT1}, {L_H}")
    a(f"s_mov_b32 s{sDst}, s{sDLo}")
    a(f"s_add_u32 s{sSrc}, s{sT1}, {CHUNK_H}")
    a.ext(four()); a.ext(flat(lin(sO, 6, nt)))
    a(f"s_add_u32 s{sDst}, s{sDst}, {CHUNK_H}")
    a(f"s_mov_b32 s{sSrc}, s{sT1}")
    a.ext(four()); a.ext(flat(lin(sO, 6, nt)))
    a(f"s_mul_i32 s{sT0}, s2, {HSTRIDE}")
    a(f"s_add_u32 s{sD}, s24, s{sT0}")
    a(f"s_addc_u32 s{sD+1}, s25, 0")
    a(f"s_mov_b32 s{sD+2}, {HSTRIDE}")
    a(f"s_add_u32 s{sDEnd}, s{sDLo}, 73728")
    a(f"s_add_u32 s{sDst}, s{sDst}, {CHUNK_H}")
    a(f"s_add_u32 s{sSrc}, s{sT1}, {HSTRIDE - CHUNK_H}")
    a.ext(four())
    for _ in range(3):
        a.ext(flat(lin(sD, 6, nt))); a.ext(adv_h())
    a("s_branch K3_rdone")
    a.label("K3_rx")
    a(f"s_add_u32 s{sEEnd}, s{sELo}, 73728")
    a(f"s_mov_b32 s{sEDst}, s{sELo}")
    a(f"s_add_u32 s{sESrc}, s{sELo}, {47 * 24576}")
    if NE:
        for _ in range(2):
            a.ext(flat(lin(sE, NE, "", sESrc, sEDst))); a.ext(adv_w(sESrc, sEDst, sELo, sEEnd))
    a(f"s_add_u32 s{sD}, s4, s{sT0}")
    a(f"s_addc_u32 s{sD+1}, s5, 0")
    a(f"s_mov_b32 s{sD+2}, {REG}")
    for m in range(3):
        v = vD0 + m
        a(f"v_mul_u32_u24 v20, 43691, v{v}")
        a("v_lshrrev_b32 v20, 25, v20")
        a("v_mul_u32_u24 v21, 864, v20")
        a(f"v_sub_u32 v21, v{v}, v21")
        a("v_add_u32 v22, 768, v21")
        a("v_cmp_gt_i32 vcc, 0, v21")
        a("v_mul_u32_u24 v20, 768, v20")
        a("s_nop 0")
        a("v_cndmask_b32 v21, v21, v22, vcc")
        a(f"v_add_u32 v{v}, v20, v21")
    a(f"s_add_u32 s{sDst}, s{sT1}, {L_X}")
    a(f"s_add_u32 s{sSrc}, s{sT1}, {35 * 12288}")
    a(f"s_add_u32 s{sSrc4}, s{sSrc}, 3072")
    if OPT["wwarm"]:
        a(f"s_lshr_b32 s{sT2}, s2, 3")
        a(f"s_mul_i32 s{sT2}, s{sT2}, 36864")
        a(f"s_mul_i32 s{sT0}, s{sT1}, 3")
        a(f"s_add_u32 s{sT2}, s{sT2}, s{sT0}")
        a("v_lshlrev_b32 v20, 7, v17")
        a(f"s_mov_b32 m0, {L_X}")
        for i in range(3):
            a(f"s_add_u32 s{sT0}, s{sT2}, {min(i * 8192, 18432 - 8192)}")
            a(f"buffer_load_dword v20, s[{sE}:{sE+3}], s{sT0} offen lds")
    a("s_branch K3_rdone")
    a.label("K3_rw")
    for i_ in range(3): a(f"s_mov_b32 s{sD+i_}, s{sE+i_}")
    a(f"s_mul_i32 s{sDLo}, s{sCQ}, {NA * 1024}")
    a(f"s_add_u32 s{sDEnd}, s{sDLo}, 73728")
    a(f"s_mov_b32 s{sDst}, s{sDLo}")
    a(f"s_add_u32 s{sSrc}, s{sDLo}, {47 * 24576}")
    a.ext(four())
    for _ in range(2):
        a.ext(flat(lin(sD, NA, ""))); a.ext(adv_w() + four())
    a.label("K3_rdone")
    a(f"v_mul_u32_u24 v{vOUT}, 3072, v19")
    a("v_mul_u32_u24 v21, 12, v18")
    a(f"s_mul_i32 s{sT0}, s{sTH}, {96 * 768}")
    a(f"s_mul_i32 s{sT1}, s{sCQ}, 192")
    a(f"s_add_u32 s{sT0}, s{sT0}, s{sT1}")
    a(f"v_add3_u32 v{vOUT}, v{vOUT}, v21, s{sT0}")
    a(f"s_mul_i32 s{sT0}, s{sCQ}, 6144")
    a(f"v_lshl_add_u32 v{vWB0}, v17, 4, s{sT0}")
    a("v_and_b32 v21, 3, v18")
    a("v_lshrrev_b32 v22, 2, v18")
    a("v_and_b32 v23, 2, v19")
    a("v_xor_b32 v23, v23, v21")
    a("v_lshl_add_u32 v22, v23, 2, v22")
    a("v_lshl_add_u32 v22, v21, 4, v22")
    a("v_lshlrev_b32 v22, 4, v22")
    a("v_and_b32 v23, 1, v19")
    a("v_lshl_add_u32 v22, v23, 3, v22")
    a(f"s_mul_i32 s{sT0}, s{sTH}, 6144")
    a(f"s_add_u32 s{sT0}, s{sT0}, {L_H}")
    a(f"v_add_u32 v{vHB0}, s{sT0}, v22")
    a(f"v_xor_b32 v{vHB1}, 64, v{vHB0}")
    a(f"s_lshl_b32 s{sT0}, s{sCQ}, 2")
    a("v_lshl_add_u32 v22, v21, 1, v19")
    a(f"v_add_u32 v22, s{sT0}, v22")
    a("v_and_b32 v22, 15, v22")
    a("v_mul_u32_u24 v22, 48, v22")
    a("v_mul_u32_u24 v23, 768, v18")
    a(f"v_add_u32 v22, {L_X}, v22")
    a(f"v_add_u32 v{vXR}, v22, v23")
    a("v_lshrrev_b32 v22, 2, v18")
    a("v_cmp_eq_u32 vcc, v22, v19")
    a("v_mov_b32 v23, 0x3f80")
    a("s_nop 0")
    a("v_cndmask_b32 v23, 0, v23, vcc")
    for e in range(4):
        a(f"v_cmp_eq_u32 vcc, {e}, v21")
        a("s_nop 1")
        a(f"v_cndmask_b32 v{SEL+e}, 0, v23, vcc")
        a(f"v_lshlrev_b32 v{SEL+4+e}, 16, v{SEL+e}")
    a(f"s_mov_b32 s{sWS}, 0")
    a(f"s_mov_b32 s{sHS}, 0")
    a(f"s_mov_b32 s{sJ}, 0")
    a(f"s_mov_b32 s{sOB}, {2 * 192 * 768}")
    if DF: a(f"s_mov_b32 s{sO+2}, 0")
    a(f"v_mov_b32 v{vWR}, v{vWB0}")
    a(f"v_mov_b32 v{vHR0}, v{vHB0}")
    a(f"v_mov_b32 v{vHR1}, v{vHB1}")
    a("s_waitcnt vmcnt(18)")
    a(f"s_sub_u32 s{sT0}, s{sWV}, 4")
    a(f"s_cmp_lt_u32 s{sT0}, 2")
    a("s_cbranch_scc1 K3_pw")
    a(f"s_waitcnt vmcnt({min(NA, NE) if NE else NA})" if NE else f"s_waitcnt vmcnt({NA})")
    if not NE:
        a(f"s_cmp_lt_u32 s{sWV}, 4")
        a("s_cbranch_scc1 K3_pw")
        a("s_waitcnt vmcnt(0)")
    a.label("K3_pw")
    for p in range(1, NBP):
        for n in range(6):
            src = 24 + n if n < 3 else 25 + n
            a(f"v_add_f32 v{src}, v{src}, v{src + 8*p}")
    for n in range(6): a(f"v_mov_b32 v{BV[n]}, v{24 + n if n < 3 else 25 + n}")
    stamp(a, 1)

    def accr(n, t): return ACC + (t * 6 + n) * 4
    def vmwait(strict, loose, lab):
        if loose is None or OPT["k3nost"]: return [f"s_waitcnt vmcnt({strict})"]
        return [f"s_waitcnt vmcnt({loose})", f"s_cmp_lg_u32 s{sJ}, 0", f"s_cbranch_scc1 {lab}", f"s_waitcnt vmcnt({strict})", lab + ":"]
    def epilogue():
        L = ["s_nop 7"]
        idx = 0
        for t in range(6):
            L.append(f"s_mov_b32 s{sT1}, s{sOB}" if t == 0 else f"s_add_u32 s{sT1}, s{sT1}, 12288")
            for r in range(4):
                tq = XT + 4 * (idx % 3); idx += 1
                for j in range(3): L.append(f"v_cvt_pk_bf16_f32 v{tq+j}, v{accr(2*j, t)+r}, v{accr(2*j+1, t)+r}")
                if not OPT["k3nost"]: L.append(f"buffer_store_dwordx3 {q(tq, 3)}, v{vOUT}, s[{sO}:{sO+3}], s{sT1} offen offset:{r*768}")
        L += [f"s_sub_u32 s{sOB}, s{sOB}, {192 * 768}"]
        return L
    sOT = list(range(52, 58))
    def pack():
        L = ["s_nop 7"] + [f"s_add_u32 s{sOT[t]}, s{sOB}, {t * 12288}" for t in range(6)]
        for t in range(6):
            R = accr(3, t); tq = XT + 4 * (t % 3)
            def cv(dst, r, j): return f"v_cvt_pk_bf16_f32 v{dst}, v{accr(2*j, t)+r}, v{accr(2*j+1, t)+r}"
            L += [cv(tq + j, 3, j) for j in range(3)]
            L.append(f"buffer_store_dwordx3 {q(tq, 3)}, v{vOUT}, s[{sO}:{sO+3}], s{sOT[t]} offen offset:{3*768}")
            L += [cv(R + 4*r + j, r, j) for r, j in ((2, 2), (1, 2), (1, 1), (2, 1), (0, 1), (0, 2), (0, 0), (1, 0), (2, 0))]
        return L
    def dstores(): return [f"buffer_store_dwordx3 {q(accr(3, t) + 4*r, 3)}, v{vOUT}, s[{sO}:{sO+3}], s{sOT[t]} offen offset:{r*768}" for t in range(6) for r in range(3)]
    def block(role, tag):
        grp = int(role != "w"); f = tag == "f"
        if OPT["prof"] and role == "x":
            a(f"s_cmp_lg_u32 s{sWV}, 7")
            a(f"s_cbranch_scc1 K3_np{tag}")
            a("s_memtime s[90:91]")
            a("s_waitcnt lgkmcnt(0)")
            a("v_mov_b32 v255, s90")
            a("v_mov_b32 v0, 0")
            a("buffer_store_dword v255, v0, s[84:87], s83 offen")
            a("s_add_u32 s83, s83, 4")
            a.label(f"K3_np{tag}")
        for u4 in range(4):
            g = f"{role}{tag}{u4}"
            R = [f"ds_read_b128 {q(WB + 4*t)}, v{vWR} offset:{t*1024}" for t in range(6)]
            if u4 % 2 == 0:
                for t in range(6):
                    for c in range(2):
                        R.append(f"ds_read_b64_tr_b16 {q(HB + 24*c + 4*t, 2)}, v{vHR0} offset:{c*12288 + t*1024}")
                        R.append(f"ds_read_b64_tr_b16 {q(HB + 24*c + 4*t + 2, 2)}, v{vHR1} offset:{c*12288 + t*1024}")
            if role == "w": P = lin(sD, NA, ""); post = adv_w() + four()
            elif role == "h": P = lin(sD, 6, nt); post = adv_h()
            else:
                P = lin(sE, NE, "", sESrc, sEDst) + (xp() if u4 == 0 else [])
                post = (adv_w(sESrc, sEDst, sELo, sEEnd) if NE else []) + (adv_x() if u4 == 0 else [])
            per = max(1, len(R) // max(1, len(P))) if u4 % 2 == 0 else OPT["k3ro"]
            if u4 == 3:
                a(f"s_cmp_lt_u32 s{sT0}, 6")
                a(f"s_cbranch_scc0 K3_{g}_xr")
                for p in range(3):
                    a(f"ds_read2_b32 {q(XT + 4*p, 2)}, v{vXR} offset0:{p} offset1:{p+3}")
                    a(f"ds_read2_b32 {q(XT + 4*p + 2, 2)}, v{vXR} offset0:{p+6} offset1:{p+9}")
                a.label(f"K3_{g}_xr")
            ri = 0
            for pre, ld in P:
                a.ext(pre)
                if ri < len(R): a.ext(R[ri:ri + per]); ri += per
                elif pre: a("s_nop 0")
                a(ld)
            a.ext(R[ri:])
            if u4 == 3:
                a(f"s_cmp_lt_u32 s{sT0}, 6")
                a(f"s_cbranch_scc0 K3_{g}_xn")
            if f and DF:
                if u4 == 0:
                    if OPT["stamp"]:
                        a(f"s_sub_u32 s96, s{sJ}, 48")
                        stamp2(a, 2, 4, 96)
                    a.ext(pack())
                    stamp2(a, 3, 5, 96)
                if u4 == 1: a.ext(dstores()[N0:N0 + N1])
            elif f and u4 == 0:
                a(f"s_cmp_eq_u32 s{sJ}, 0")
                a(f"s_cbranch_scc1 K3_{role}_noep")
                if OPT["stamp"]:
                    a(f"s_sub_u32 s96, s{sJ}, 48")
                    stamp2(a, 2, 4, 96)
                a.ext(epilogue())
                stamp2(a, 3, 5, 96)
                a.label(f"K3_{role}_noep")
            if f and u4 < 2:
                a("s_nop 1")
                for i in range(12): a(f"v_mov_b32 v{XT+i}, v{BV[3*u4 + i//4]}")
            def waits(z=""):
                if grp == 0: return [f"s_waitcnt lgkmcnt({15 if u4 % 2 == 0 else 0})", f"s_setprio {OPT['k3pa']}"]
                W = []
                if f and DF:
                    if role == "h" and u4 % 2: W = [f"s_waitcnt vmcnt({18 + (6 + N0 + N1 if u4 == 1 else 24)})"]
                    if role == "x":
                        assert NE
                        W = [f"s_waitcnt vmcnt({NE + (12, 12 + N0 + N1, N1 + N2, 0)[u4]})"]
                    return W + ["s_waitcnt lgkmcnt(0)", "s_barrier", f"s_setprio {OPT['k3pb']}"]
                if role == "h" and u4 % 2: W = vmwait(18, 42 if f else None, f"K3_v{g}{z}")
                if role == "x":
                    n = NE + (6 if u4 in (0, 1) else 0)
                    if NE: W = vmwait(n, n + 24 if f and u4 < 2 else None, f"K3_v{g}{z}")
                    elif u4 == 2: W = vmwait(0, 24 if f else None, f"K3_v{g}{z}")
                return W + ["s_waitcnt lgkmcnt(0)", "s_barrier", f"s_setprio {OPT['k3pb']}"]
            if u4 == 3:
                for t in range(6):
                    if t < 5:
                        a(f"s_cmp_lg_u32 s{sT0}, {t}")
                        a(f"s_cbranch_scc1 K3_{g}_x{t+1}")
                    a.ext(waits(str(t)))
                    for n in range(6):
                        a(f"v_mfma_f32_16x16x32_bf16 {q(accr(n, t))}, {q(XT + 4*(n >> 1))}, {q(SEL + 4*(n & 1))}, {q(accr(n, t))}")
                    a(f"s_branch K3_{g}_xd")
                    if t < 5: a.label(f"K3_{g}_x{t+1}")
                a.label(f"K3_{g}_xn")
                a.ext(waits())
                a.label(f"K3_{g}_xd")
            else: a.ext(waits())
            post = post + [f"s_add_u32 s{sWS}, s{sWS}, 24576", f"s_cmp_eq_u32 s{sWS}, 73728", f"s_cselect_b32 s{sWS}, 0, s{sWS}", f"v_add_u32 v{vWR}, s{sWS}, v{vWB0}"]
            if u4 % 2: post += [f"s_add_u32 s{sHS}, s{sHS}, 24576", f"s_cmp_eq_u32 s{sHS}, 73728", f"s_cselect_b32 s{sHS}, 0, s{sHS}",
                                f"v_add_u32 v{vHR0}, s{sHS}, v{vHB0}", f"v_add_u32 v{vHR1}, s{sHS}, v{vHB1}"]
            if u4 == 2: post += [f"s_sub_u32 s{sT0}, s{sEV}, {6*grp}", f"s_sub_u32 s{sEV}, s{sEV}, 1"]
            ds = []; dstep = 4
            if f and DF and u4 == 0: ds = dstores()[:N0]; dstep = 36 // N0
            if f and DF and u4 == 1:
                ds = dstores()[N0 + N1:]
                for z in range(len(ds)): assert (N0 + N1 + z) // 3 * 6 > z * dstep + 3
                post += [f"s_cmp_lg_u32 s{sJ}, 0", f"s_cselect_b32 s{sT2}, {192 * 768}, 0", f"s_sub_u32 s{sOB}, s{sOB}, s{sT2}"]
            if f and DF and u4 == 2: post += [f"s_mov_b32 s{sO+2}, {REG}"]
            k = 0
            for t in range(6):
                if grp == 0 and u4 % 2 == 0 and t >= 2: a(f"s_waitcnt lgkmcnt({20 - 4*t})")
                for n3 in range(3):
                    for c in range(2):
                        ac = q(accr(3 * (u4 % 2) + n3, t))
                        a(f"v_mfma_f32_16x16x32_bf16 {ac}, {q(HB + 24*c + 4*t)}, {q(WB + 12*c + 4*n3)}, {q(XT + 4*n3) if f and u4 < 2 and c == 0 else ac}")
                        if ds and k % dstep == 1: a(ds.pop(0))
                        elif k >= 2 and post: a(post.pop(0))
                        k += 1
            assert not post and not ds
            a("s_setprio 0")
            if grp == 0:
                if f and DF: a(f"s_waitcnt vmcnt({NA + (6 + N0, 24, N1 + N2, 0)[u4]})")
                else: a.ext(vmwait(NA, NA + 24 if f and u4 < 2 else None, f"K3_v{g}"))
                a("s_barrier")

    if OPT["prof"]:
        srd(a, 84, 24, 25, 65536, TAIL + (5 << 20))
        a("s_lshl_b32 s83, s2, 8")
    a("s_barrier")
    a(f"s_cmp_ge_u32 s{sWV}, 6")
    a("s_cbranch_scc1 K3_x_tile")
    a(f"s_cmp_ge_u32 s{sWV}, 4")
    a("s_cbranch_scc1 K3_h_tile")
    for role in "whx":
        a.label(f"K3_{role}_tile")
        a(f"s_mov_b32 s{sEV}, 11")
        block(role, "f")
        a(".p2align 6")
        a.label(f"K3_{role}_loop")
        block(role, "l")
        a(f"s_cmp_lg_u32 s{sEV}, -1")
        a(f"s_cbranch_scc1 K3_{role}_loop")
        a(f"s_add_u32 s{sJ}, s{sJ}, 48")
        a(f"s_cmp_lg_u32 s{sJ}, 144")
        a(f"s_cbranch_scc1 K3_{role}_tile")
        if role != "x": a("s_branch K3_fin")
    a.label("K3_fin")
    stamp(a, 6)
    a.ext(epilogue())
    if OPT["stamp"]: a("s_waitcnt vmcnt(0)")
    stamp(a, 7)
    stamp_dump(a, 8, sWV, "K3", 1)
    a.label("K3_end")
    a("s_endpgm")
    return a, desc("gemm2_kernel", 256, 100), f"; @launch kernel=gemm2_kernel grid=(256,1,1) block=(512,1,1) lds={L_X + 12288}"

def k3():
    a = Asm()
    ACC = 16; HB = 160; WB = 184; SEL = 208; BIAS = 216; XT = 240
    KC = OPT['k3c']
    if KC: WB = 208; SEL = 232
    HL = OPT["k3sw"] >> 1 & 1
    HV = 24 - OPT["k3he"] - 6 * HL
    BV = [12, 13, 14, 15, 252, 253]
    vD0, vWR, vHR0, vHR1, vXR, vOUT, vWB0, vHB0, vHB1 = 1, 4, 5, 6, 7, 8, 9, 10, 11
    L_H = 73728; L_X = 147456
    sD, sO = 8, 12
    (sWV, sTH, sCQ, sSrc, sDst, sSlot, sDLo, sDEnd, sLeft, sT0, sT1, sWS, sHS, sJ, sOB, sEV, sNR, sT2, sFIRST) = range(30, 49)
    REG = 3 * 192 * 768
    kernel_start(a, "gemm2_kernel")
    a("s_cmp_ge_u32 s2, 256")
    a("s_cbranch_scc1 K3_end")
    stamp(a, 0)
    a("s_load_dwordx2 s[4:5], s[0:1], 0")
    a("s_load_dwordx2 s[6:7], s[0:1], 48")
    a("s_load_dwordx2 s[24:25], s[0:1], 64")
    code_prefetch(a, "gemm2_kernel", "K3_end", 100, 60)
    a("v_lshrrev_b32 v16, 6, v0")
    a("v_and_b32 v17, 63, v0")
    a(f"v_readfirstlane_b32 s{sWV}, v16")
    a(f"v_lshlrev_b32 v{vD0}, 4, v17")
    a(f"v_add_u32 v{vD0+1}, 1024, v{vD0}")
    a(f"v_add_u32 v{vD0+2}, 2048, v{vD0}")
    a("v_and_b32 v18, 15, v17")
    a("v_lshrrev_b32 v19, 4, v17")
    a(f"s_lshr_b32 s{sT0}, s2, 4")
    a(f"s_lshl_b32 s{sT0}, s{sT0}, 4")
    a(f"s_and_b32 s{sT1}, s2, 7")
    a(f"s_lshl_b32 s{sT1}, s{sT1}, 1")
    a(f"s_add_u32 s{sT0}, s{sT0}, s{sT1}")
    a(f"s_bfe_u32 s{sT1}, s2, 0x10003")
    a(f"s_add_u32 s3, s{sT0}, s{sT1}")
    a(f"s_lshr_b32 s{sTH}, s{sWV}, 2")
    a(f"s_and_b32 s{sCQ}, s{sWV}, 3")
    a(f"s_mov_b32 s{sD+3}, 0x00020000")
    a(f"s_mov_b32 s{sO+3}, 0x00020000")
    a(f"s_mov_b32 s{sO+2}, {REG}")
    a(f"s_mul_i32 s{sT0}, s3, {REG}")
    a(f"s_and_b32 s{sT1}, s{sWV}, 1")
    a(f"s_mul_i32 s{sT1}, s{sT1}, 6144")
    a("s_waitcnt lgkmcnt(0)")
    a(f"s_add_u32 s{sO}, s6, s{sT0}")
    a(f"s_addc_u32 s{sO+1}, s7, 0")

    srd(a, 16, 24, 25, 1536 * NBP, B2)
    a("v_mul_u32_u24 v20, 24, v18")
    a(f"s_mul_i32 s{sT2}, s{sCQ}, 384")
    for p in range(NBP):
        a(f"buffer_load_dwordx3 {q(24 + 8*p, 3)}, v20, s[16:19], s{sT2} offen")
        a(f"buffer_load_dwordx3 {q(28 + 8*p, 3)}, v20, s[16:19], s{sT2} offen offset:12")
        if p < NBP - 1: a(f"s_add_u32 s{sT2}, s{sT2}, 1536")

    def pieces(srd_, sfx=""):
        P = []
        for k in range(6):
            if k == 0: pre = [f"s_mov_b32 m0, s{sDst}", f"s_add_u32 s{sT2}, s{sSrc}, 3072"]
            else: pre = ["s_add_u32 m0, m0, 1024", "s_nop 0"]
            so = sSrc if k < 3 else sT2
            P.append(pre + [f"buffer_load_dwordx4 v{vD0 + k % 3}, s[{srd_}:{srd_+3}], s{so} offen{sfx} lds"])
        return P
    def advance_w():
        return [f"s_add_u32 s{sDst}, s{sDst}, 24576", f"s_cmp_eq_u32 s{sDst}, s{sDEnd}", f"s_cselect_b32 s{sDst}, s{sDLo}, s{sDst}",
                f"s_sub_u32 s{sSrc}, s{sSrc}, 24576", f"s_cselect_b32 s{sT2}, 1179648, 0", f"s_add_u32 s{sSrc}, s{sSrc}, s{sT2}"]
    def advance_h():
        return [f"s_add_u32 s{sDst}, s{sDst}, s{sSlot}", f"s_cmp_eq_u32 s{sDst}, s{sDEnd}", f"s_cselect_b32 s{sDst}, s{sDLo}, s{sDst}",
                f"s_sub_u32 s{sSrc}, s{sSrc}, 12288", f"s_cselect_b32 s{sD+2}, 0, s{sD+2}", f"s_cselect_b32 s{sSrc}, 0, s{sSrc}"]
    nt = " nt" if OPT["h_nt"] else ""
    wnt = " nt" if OPT["w_nt"] else ""

    a(f"s_cmp_lt_u32 s{sWV}, 4")
    a("s_cbranch_scc1 K3_rw")
    a(f"s_cmp_ge_u32 s{sWV}, 6")
    a("s_cbranch_scc1 K3_rx")
    a(f"s_add_u32 s{sDLo}, s{sT1}, {L_H}")
    a(f"s_mov_b32 s{sDst}, s{sDLo}")
    a(f"s_add_u32 s{sSrc}, s{sT1}, {CHUNK_H}")
    for p in pieces(sO, nt): a.ext(p)
    a(f"s_add_u32 s{sDst}, s{sDst}, {CHUNK_H}")
    a(f"s_mov_b32 s{sSrc}, s{sT1}")
    for p in pieces(sO, nt): a.ext(p)
    a(f"s_mul_i32 s{sT0}, s3, {HSTRIDE}")
    a(f"s_add_u32 s{sD}, s24, s{sT0}")
    a(f"s_addc_u32 s{sD+1}, s25, 0")
    a(f"s_mov_b32 s{sD+2}, {0 if OPT['k3noh'] else HSTRIDE}")
    a(f"s_add_u32 s{sDEnd}, s{sDLo}, 73728")
    a(f"s_mov_b32 s{sSlot}, {CHUNK_H}")
    a(f"s_add_u32 s{sDst}, s{sDst}, {CHUNK_H}")
    a(f"s_add_u32 s{sSrc}, s{sT1}, {HSTRIDE - CHUNK_H}")
    for _ in range(3 - HL if OPT["k3bl"] else 4):
        for p in pieces(sD, nt): a.ext(p)
        a.ext(advance_h())
    for p in pieces(sD, nt)[:6 - OPT["k3he"]]: a.ext(p)
    a("s_mov_b64 vcc, 0")
    a("s_branch K3_rdone")
    a.label("K3_rx")
    a(f"s_add_u32 s{sD}, s4, s{sT0}")
    a(f"s_addc_u32 s{sD+1}, s5, 0")
    a(f"s_mov_b32 s{sD+2}, {0 if OPT['k3nox'] else REG}")
    for m in range(3):
        v = vD0 + m
        a(f"v_mul_u32_u24 v20, 43691, v{v}")
        a("v_lshrrev_b32 v20, 25, v20")
        a("v_mul_u32_u24 v21, 864, v20")
        a(f"v_sub_u32 v21, v{v}, v21")
        a("v_add_u32 v22, 768, v21")
        a("v_cmp_gt_i32 vcc, 0, v21")
        a("v_mul_u32_u24 v20, 768, v20")
        a("s_nop 0")
        a("v_cndmask_b32 v21, v21, v22, vcc")
        a(f"v_add_u32 v{v}, v20, v21")
    a(f"s_add_u32 s{sDLo}, s{sT1}, {L_X}")
    a(f"s_mov_b32 s{sDEnd}, 0")
    a(f"s_mov_b32 s{sSlot}, 0")
    a(f"s_mov_b32 s{sDst}, s{sDLo}")
    a(f"s_add_u32 s{sSrc}, s{sT1}, {35 * 12288}")
    if OPT["wwarm"]:
        srd(a, 60, 24, 25, 1179648, W2F)
        a(f"s_lshr_b32 s{sT2}, s2, 3")
        a(f"s_mul_i32 s{sT2}, s{sT2}, 36864")
        a(f"s_mul_i32 s{sT0}, s{sT1}, 3")
        a(f"s_add_u32 s{sT2}, s{sT2}, s{sT0}")
        a("v_lshlrev_b32 v20, 7, v17")
        for i in range(3):
            a(f"buffer_load_dword v{100 + i}, v20, s[60:63], s{sT2} offen")
            a(f"s_add_u32 s{sT2}, s{sT2}, 6144" if False else f"s_add_u32 s{sT2}, s{sT2}, 8192")
    if not OPT["k3bl"]:
        for p in pieces(sD, nt): a.ext(p)
        a.ext(advance_h())
    a("s_mov_b64 vcc, -1")
    a("s_branch K3_rdone")
    a.label("K3_rw")
    a(f"s_add_u32 s{sD}, s24, {W2F}")
    a(f"s_addc_u32 s{sD+1}, s25, 0")
    a(f"s_mov_b32 s{sD+2}, {0 if OPT['k3now'] else 1179648}")
    a(f"s_mul_i32 s{sDLo}, s{sCQ}, 6144")
    a(f"s_add_u32 s{sDEnd}, s{sDLo}, 73728")
    a(f"s_mov_b32 s{sSlot}, 0")
    a(f"s_mov_b32 s{sDst}, s{sDLo}")
    a(f"s_add_u32 s{sSrc}, s{sDLo}, {47 * 24576}")
    for _ in range(5 if OPT["k3skipw"] else 2):
        for p in pieces(sD, wnt): a.ext(p)
        a.ext(advance_w())
    a("s_mov_b64 vcc, 0")
    a.label("K3_rdone")
    a("s_mov_b64 s[50:51], vcc")
    a(f"v_mul_u32_u24 v{vOUT}, 3072, v19")
    a("v_mul_u32_u24 v21, 12, v18")
    a(f"s_mul_i32 s{sT0}, s{sTH}, {96 * 768}")
    a(f"s_mul_i32 s{sT1}, s{sCQ}, 192")
    a(f"s_add_u32 s{sT0}, s{sT0}, s{sT1}")
    a(f"v_add3_u32 v{vOUT}, v{vOUT}, v21, s{sT0}")
    if OPT["outlin"]:
        a(f"v_mul_u32_u24 v{vOUT}, 12, v17")
        a(f"s_mul_i32 s{sT0}, s{sWV}, 18432")
        a(f"v_add_u32 v{vOUT}, s{sT0}, v{vOUT}")
    a(f"s_mul_i32 s{sT0}, s{sCQ}, 6144")
    a(f"v_lshl_add_u32 v{vWB0}, v17, 4, s{sT0}")
    a("v_and_b32 v21, 3, v18")
    a("v_lshrrev_b32 v22, 2, v18")
    a("v_and_b32 v23, 2, v19")
    a("v_xor_b32 v23, v23, v21")
    a("v_lshl_add_u32 v22, v23, 2, v22")
    a("v_lshl_add_u32 v22, v21, 4, v22")
    a("v_lshlrev_b32 v22, 4, v22")
    a("v_and_b32 v23, 1, v19")
    a("v_lshl_add_u32 v22, v23, 3, v22")
    a(f"s_mul_i32 s{sT0}, s{sTH}, 6144")
    a(f"s_add_u32 s{sT0}, s{sT0}, {L_H}")
    a(f"v_add_u32 v{vHB0}, s{sT0}, v22")
    a(f"v_xor_b32 v{vHB1}, 64, v{vHB0}")
    a(f"s_lshl_b32 s{sT0}, s{sCQ}, 2")
    a("v_lshl_add_u32 v22, v21, 1, v19")
    a(f"v_add_u32 v22, s{sT0}, v22")
    a("v_and_b32 v22, 15, v22")
    a("v_mul_u32_u24 v22, 48, v22")
    a("v_mul_u32_u24 v23, 768, v18")
    a(f"v_add_u32 v22, {L_X}, v22")
    a(f"v_add_u32 v{vXR}, v22, v23")
    a("v_lshrrev_b32 v22, 2, v18")
    a("v_cmp_eq_u32 vcc, v22, v19")
    a("v_mov_b32 v23, 0x3f80")
    a("s_nop 0")
    a("v_cndmask_b32 v23, 0, v23, vcc")
    for e in range(4):
        a(f"v_cmp_eq_u32 vcc, {e}, v21")
        a("s_nop 1")
        a(f"v_cndmask_b32 v{SEL+e}, 0, v23, vcc")
        a(f"v_lshlrev_b32 v{SEL+4+e}, 16, v{SEL+e}")
    a("s_mov_b64 vcc, s[50:51]")
    a(f"s_mov_b32 s{sWS}, 0")
    a(f"s_mov_b32 s{sHS}, 0")
    a(f"s_mov_b32 s{sJ}, 0")
    a(f"s_mov_b32 s{sOB}, {2 * 192 * 768}")
    a(f"s_mov_b32 s{sEV}, 11")
    a(f"s_waitcnt vmcnt({HV if KC else 24})")
    a(f"s_sub_u32 s{sT0}, s{sWV}, 4")
    a(f"s_cmp_lt_u32 s{sT0}, 2")
    a("s_cbranch_scc1 K3_pw")
    a("s_waitcnt vmcnt(6)")
    a("s_cbranch_vccz K3_pw")
    a("s_waitcnt vmcnt(0)")
    a.label("K3_pw")
    for p in range(1, NBP):
        for n in range(6):
            src = 24 + n if n < 3 else 25 + n
            a(f"v_add_f32 v{src}, v{src}, v{src + 8*p}")
    for n in range(6):
        src = 24 + n if n < 3 else 25 + n
        if KC: a(f"v_mov_b32 v{BV[n]}, v{src}")
        else:
            for r in range(4): a(f"v_mov_b32 v{BIAS+4*n+r}, v{src}")

    stamp(a, 1)

    def accr(n, t): return ACC + (t * 6 + n) * 4
    pieces0 = pieces
    def pieces(srd_, sfx="", _p=pieces0):
        P = _p(srd_, sfx)
        if OPT["k3skiph"] and sfx != "": P = [[x for x in p if not x.startswith("buffer")] for p in P]
        if OPT["k3skipw"] and sfx == "": P = [[x for x in p if not x.startswith("buffer")] if i >= 6 - OPT["k3skipw"] else p for i, p in enumerate(P)]
        return P
    def Lseg(u4, grp, tag):
        L = [f"v_add_u32 v{vWR}, s{sWS}, v{vWB0}", f"v_add_u32 v{vHR0}, s{sHS}, v{vHB0}", f"v_add_u32 v{vHR1}, s{sHS}, v{vHB1}"]
        R = []
        for t in range(6):
            R.append(f"ds_read_b128 {q(WB + 4*t)}, v{vWR} offset:{t*1024}")
            R.append(f"ds_read_b64_tr_b16 {q(HB + 4*t, 2)}, v{vHR0} offset:{t*1024}")
            R.append(f"ds_read_b64_tr_b16 {q(HB + 4*t + 2, 2)}, v{vHR1} offset:{t*1024}")
        if KC:
            R = [f"ds_read_b128 {q(WB + 4*t)}, v{vWR} offset:{t*1024}" for t in range(6)]
            if u4 % 2 == 0:
                for t in range(6):
                    for c in range(2):
                        R.append(f"ds_read_b64_tr_b16 {q(HB + 24*c + 4*t, 2)}, v{vHR0} offset:{c*12288 + t*1024}")
                        R.append(f"ds_read_b64_tr_b16 {q(HB + 24*c + 4*t + 2, 2)}, v{vHR1} offset:{c*12288 + t*1024}")
                if grp == 1 and OPT["k3lm"]: R = R[:30 - 4 * OPT["k3lm"]]
            else: L = L[:1]
            P = pieces(sD, wnt if grp == 0 else nt); P[5] = P[5] + (advance_w() if grp == 0 else advance_h())
            def gd(X, z): return X if grp == 0 or u4 == 0 else [f"s_cbranch_vccnz K3_{tag}sl{u4}{z}"] + X + [f"K3_{tag}sl{u4}{z}:"]
            na = 6 if grp == 1 or u4 % 2 or (tag == "f" and u4 == 0) else OPT["k3ne"]
            HE = OPT["k3he"]
            if grp == 1 and HE < 6:
                def gh(X, z): return [f"s_cbranch_vccnz K3_{tag}sl{u4}{z}"] + X + [f"K3_{tag}sl{u4}{z}:"] if X else []
                def gx(X, z): return [f"s_cbranch_vccz K3_{tag}sx{u4}{z}"] + X + [f"K3_{tag}sx{u4}{z}:"]
                if u4 % 2 == 0:
                    for m in range(6):
                        if m >= 6 - HE: L += gh(P[m], "abcdef"[m])
                        if u4 == 0: L += gx(P[m], "abcdef"[m])
                        L += R[6*m:6*m+6]
                    if HE == 0: L += gh(advance_h(), "g")
                else:
                    P2 = pieces(sD, nt)
                    L += gh(P[0], "a") + R + gh([x for p in P[1:] + P2[:6 - HE] for x in p], "b")
            elif u4 % 2 == 0:
                for m in range(5):
                    if m < na: L += gd(P[m], "abcde"[m])
                    L += R[6*m:6*m+6]
                if na == 6: L += gd(P[5], "f")
            else:
                L += gd(P[0], "a") + R + gd([x for p in P[1:] for x in p], "b")
        elif grp == 0:
            P = pieces(sD, wnt); P[5] = P[5] + advance_w()
            na = 6 if tag == "f" and u4 == 0 else OPT["k3na"]
            pos = [0, 6, 12, 18, 18, 18]
            for k in range(19):
                for m in range(na):
                    if pos[m] == k: L += P[m]
                if k < 18: L.append(R[k])
        elif OPT["k3bl"]:
            P = pieces(sD, nt); P[5] = P[5] + advance_h()
            def gd(X, z): return X if u4 == 0 else [f"s_cbranch_vccnz K3_{tag}sl{u4}{z}"] + X + [f"K3_{tag}sl{u4}{z}:"]
            if OPT["k3pre"]: L = R[15:] + gd(P[0] + P[1] + P[2] + P[3] + P[4] + P[5], "d")
            else: L += gd(P[0], "a") + R[:6] + gd(P[1], "b") + R[6:12] + gd(P[2], "c") + R[12:] + gd(P[3] + P[4] + P[5], "d")
        else:
            L += R
        if u4 == 3:
            lab = f"K3_{grp}{tag}_xr"
            L += [f"s_sub_u32 s{sT0}, s{sEV}, {6*grp - (100 if OPT['k3nev'] == 1 else 0)}", f"s_cmp_lt_u32 s{sT0}, {0 if OPT['k3nev'] == 2 else 6}", f"s_cbranch_scc0 {lab}"]
            for p in range(3):
                L.append(f"ds_read2_b32 {q(XT + 4*p, 2)}, v{vXR} offset0:{p} offset1:{p+3}")
                L.append(f"ds_read2_b32 {q(XT + 4*p + 2, 2)}, v{vXR} offset0:{p+6} offset1:{p+9}")
            L.append(lab + ":")
        L += [f"s_add_u32 s{sWS}, s{sWS}, 24576", f"s_cmp_eq_u32 s{sWS}, 73728", f"s_cselect_b32 s{sWS}, 0, s{sWS}",
              f"s_add_u32 s{sHS}, s{sHS}, {24576 if KC else 12288}", f"s_cmp_eq_u32 s{sHS}, 73728", f"s_cselect_b32 s{sHS}, 0, s{sHS}"][:3 if KC and u4 % 2 else 6]
        return L
    def pre_reads():
        AD = [f"v_add_u32 v{vWR}, s{sWS}, v{vWB0}", f"v_add_u32 v{vHR0}, s{sHS}, v{vHB0}", f"v_add_u32 v{vHR1}, s{sHS}, v{vHB1}"]
        R = []
        for t in range(6):
            R.append(f"ds_read_b128 {q(WB + 4*t)}, v{vWR} offset:{t*1024}")
            R.append(f"ds_read_b64_tr_b16 {q(HB + 4*t, 2)}, v{vHR0} offset:{t*1024}")
            R.append(f"ds_read_b64_tr_b16 {q(HB + 4*t + 2, 2)}, v{vHR1} offset:{t*1024}")
        return AD, R
    def vmwait(strict, loose, lab):
        if (OPT["k3nv"] >> {6: 0, 0: 1}.get(strict, 2)) & 1: return []
        if loose is None or OPT["k3nost"]: return [f"s_waitcnt vmcnt({strict})"]
        return [f"s_waitcnt vmcnt({loose})", f"s_cmp_lg_u32 s{sJ}, 0", f"s_cbranch_scc1 {lab}", f"s_waitcnt vmcnt({strict})", lab + ":"]
    def Mseg(u4, grp, tag):
        first = tag == "f" and u4 == 0
        Ms = []
        for t in range(6):
            for n in range(6):
                c = q(BIAS + 4*n) if first else q(accr(n, t))
                Ms.append([f"v_mfma_f32_16x16x32_bf16 {q(accr(n, t))}, {q(HB + 4*t)}, {q(WB + 4*n)}, {c}"])
        if KC:
            Ms = []
            for t in range(6):
                for n3 in range(3):
                    for c in range(2):
                        ac = q(accr(3 * (u4 % 2) + n3, t))
                        Ms.append([f"v_mfma_f32_16x16x32_bf16 {ac}, {q(HB + 24*c + 4*t)}, {q(WB + 12*c + 4*n3)}, {q(XT + 4*n3) if tag == 'f' and u4 < 2 and c == 0 else ac}"])
        if KC and u4 % 2 == 0 and (OPT["k3sw"] >> grp) & 1:
            lm = OPT["k3lm"] * grp
            late = []
            for t in range(6 - lm, 6):
                for c in range(2):
                    late += [f"ds_read_b64_tr_b16 {q(HB + 24*c + 4*t, 2)}, v{vHR0} offset:{c*12288 + t*1024}", f"ds_read_b64_tr_b16 {q(HB + 24*c + 4*t + 2, 2)}, v{vHR1} offset:{c*12288 + t*1024}"]
            for i, x in enumerate(late): Ms[i].append(x)
            for t in range(1, 6):
                issued = 30 - 4 * lm + min(len(late), 6 * t)
                n = issued - (10 + 4 * t)
                assert n >= 0
                if n < 15 or lm: Ms[6 * t] = [f"s_waitcnt lgkmcnt({min(15, n)})"] + Ms[6 * t]
        if grp == 0:
            P = pieces(sD, wnt); P[5] = P[5] + advance_w()
            na = 6 if first or (KC and u4 % 2) else OPT["k3ne" if KC else "k3na"]
            for m in range(na, 6): Ms[1 + (m - na) * OPT["k3as"]] += P[m]
            e = OPT["k3eb"]
            loose = 30 if tag == "f" and u4 < 2 else None
            Ms[35 - e] += (["s_setprio 3"] if e else []) + vmwait(6, loose, f"K3_0{tag}_vw{u4}") + ["s_barrier"]
        elif not OPT["k3bl"]:
            P = pieces(sD, nt); P[5] = P[5] + advance_h()
            for m in range(0, 6, 2):
                X = P[m] + P[m + 1]
                if u4 != 3: X = [f"s_cbranch_vccnz K3_{tag}sd{u4}{m}"] + X + [f"K3_{tag}sd{u4}{m}:"]
                Ms[OPT["k3b0"] + (m // 2) * OPT["k3bs"]] += X
        if grp == 1 and OPT["k3pre"]:
            AD, R = pre_reads()
            Ms[0].append(AD[1]); Ms[1].append(AD[2]); Ms[2].append(AD[0])
            for t in range(5):
                Ms[6 * t + 6].append(R[3 * t + 1]); Ms[6 * t + 7].append(R[3 * t + 2])
                Ms[31 + t].append(R[3 * t])
        return [x for m in Ms for x in m]
    def Xseg(grp, tag):
        g = f"{grp}{tag}"
        L = [f"s_cmp_lt_u32 s{sT0}, 6", f"s_cbranch_scc0 K3_{g}_xdone"]
        for t in range(6):
            if t < 5: L += [f"s_cmp_lg_u32 s{sT0}, {t}", f"s_cbranch_scc1 K3_{g}_x{t+1}"]
            for n in range(6):
                L.append(f"v_mfma_f32_16x16x32_bf16 {q(accr(n, t))}, {q(XT + 4*(n >> 1))}, {q(SEL + 4*(n & 1))}, {q(accr(n, t))}")
            if t < 5: L += [f"s_branch K3_{g}_xdone", f"K3_{g}_x{t+1}:"]
        L += [f"K3_{g}_xdone:", f"s_sub_u32 s{sEV}, s{sEV}, 1"]
        return L
    ofl = ["", " nt", " sc1", " sc0 sc1", " sc0"][OPT["out_nt"]]
    def epilogue(final=False):
        L = ["s_nop 7"]
        idx = 0
        for t in range(6):
            L.append(f"s_mov_b32 s{sT1}, s{sOB}" if t == 0 else f"s_add_u32 s{sT1}, s{sT1}, {3072 if OPT['outlin'] else 12288}")
            for r in range(4):
                tq = XT + 4 * (idx % (3 if KC else 4)); idx += 1
                for j in range(3): L.append(f"v_cvt_pk_bf16_f32 v{tq+j}, v{accr(2*j, t)+r}, v{accr(2*j+1, t)+r}")
                if not OPT["k3nost"]: L.append(f"buffer_store_dwordx3 {q(tq, 3)}, v{vOUT}, s[{sO}:{sO+3}], s{sT1} offen offset:{r*768}" + ofl)
        L += [f"s_sub_u32 s{sOB}, s{sOB}, {192 * 768}"]
        return L
    def block(grp, tag):
        if OPT["prof"] == 2: a.label(f"K3_np{tag}{grp}")
        if OPT["prof"] == 1 and grp == 1:
            a(f"s_cmp_lg_u32 s{sWV}, 7")
            a(f"s_cbranch_scc1 K3_np{tag}")
            a("s_memrealtime s[90:91]")
            a("s_waitcnt lgkmcnt(0)")
            a("v_mov_b32 v12, s90")
            a("v_mov_b32 v13, 0")
            a("buffer_store_dword v12, v13, s[84:87], s83 offen")
            a("s_add_u32 s83, s83, 4")
            a.label(f"K3_np{tag}")
        for u4 in range(4):
            a.ext(Lseg(u4, grp, tag))
            if OPT["prof"] == 2 and u4 == 0 and grp == OPT["latw"] // 4:
                a(f"s_cmp_lg_u32 s{sWV}, {OPT['latw']}")
                a(f"s_cbranch_scc1 K3_nq{tag}")
                a("s_memrealtime s[92:93]")
                a("s_waitcnt vmcnt(0) lgkmcnt(0)")
                a("s_memrealtime s[94:95]")
                a("s_waitcnt lgkmcnt(0)")
                a("s_sub_u32 s94, s94, s92")
                a("s_add_u32 s82, s82, s94")
                a("v_mov_b32 v12, s82")
                a("v_mov_b32 v13, 0")
                a("buffer_store_dword v12, v13, s[84:87], s83 offen")
                a("s_add_u32 s83, s83, 4")
                a.label(f"K3_nq{tag}")
            if tag == "f" and u4 == 0:
                a(f"s_cmp_eq_u32 s{sJ}, 0")
                a(f"s_cbranch_scc1 K3_{grp}_noep")
                if OPT["stamp"]:
                    a(f"s_sub_u32 s96, s{sJ}, 48")
                    stamp2(a, 2, 4, 96)
                a.ext(epilogue())
                stamp2(a, 3, 5, 96)
                a.label(f"K3_{grp}_noep")
            if KC and tag == "f" and u4 < 2:
                a("s_nop 1")
                for i in range(12): a(f"v_mov_b32 v{XT+i}, v{BV[3*u4 + i//4]}")
            def waits(z=""):
                stg_ = KC and u4 % 2 == 0 and (OPT["k3sw"] >> grp) & 1
                lw = f"s_waitcnt lgkmcnt({min(15, 20 - 4 * OPT['k3lm'] * grp) if stg_ else 0})"
                if grp == 0: return [lw, f"s_setprio {OPT['k3pa']}"]
                W = []
                if u4 == 2: W += [f"s_cbranch_vccz K3_{tag}nx"] + vmwait(0, 24 if tag == "f" else None, "K3_fxw") + [f"K3_{tag}nx:"]
                if not KC: W += vmwait(24, 48 if tag == "f" else None, f"K3_fh{u4}{z}")
                elif u4 % 2: W += vmwait(HV, (HV + 24 if u4 == 1 or not HL else None) if tag == "f" else None, f"K3_fh{u4}{z}")
                return W + [lw, "s_barrier", f"s_setprio {OPT['k3pb']}"]
            if u4 == 3 and OPT["k3xd"]:
                g = f"{grp}{tag}"
                a(f"s_sub_u32 s{sEV}, s{sEV}, 1")
                a(f"s_cmp_lt_u32 s{sT0}, 6")
                a(f"s_cbranch_scc0 K3_{g}_xn")
                for t in range(6):
                    if t < 5:
                        a(f"s_cmp_lg_u32 s{sT0}, {t}")
                        a(f"s_cbranch_scc1 K3_{g}_x{t+1}")
                    a.ext(waits(str(t)))
                    for n in range(6):
                        a(f"v_mfma_f32_16x16x32_bf16 {q(accr(n, t))}, {q(XT + 4*(n >> 1))}, {q(SEL + 4*(n & 1))}, {q(accr(n, t))}")
                    a(f"s_branch K3_{g}_xdone")
                    if t < 5: a.label(f"K3_{g}_x{t+1}")
                a.label(f"K3_{g}_xn")
                a.ext(waits())
                a.label(f"K3_{g}_xdone")
            else:
                a.ext(waits())
                if u4 == 3: a.ext(Xseg(grp, tag))
            a.ext(Mseg(u4, grp, tag))
            a(f"s_setprio {OPT['k3pl']}")

    if OPT["prof"]:
        srd(a, 84, 24, 25, 65536, TAIL + (5 << 20))
        a("s_lshl_b32 s83, s2, 8")
        a("s_mov_b32 s82, 0")
    a("s_barrier")
    if OPT["k3pre"]:
        AD, R = pre_reads(); a.ext(AD + R[:15])
    a(f"s_cmp_lg_u32 s{sTH}, 0")
    a("s_cbranch_scc1 K3_1_tile")
    for grp in range(2):
        a.label(f"K3_{grp}_tile")
        a(f"s_mov_b32 s{sEV}, 11")
        block(grp, "f")
        a(".p2align 6")
        a.label(f"K3_{grp}_loop")
        block(grp, "l")
        a(f"s_cmp_lg_u32 s{sEV}, -1")
        a(f"s_cbranch_scc1 K3_{grp}_loop")
        a(f"s_add_u32 s{sJ}, s{sJ}, 48")
        a(f"s_cmp_lg_u32 s{sJ}, 144")
        a(f"s_cbranch_scc1 K3_{grp}_tile")
        if grp == 0:
            a("s_branch K3_fin0")
    a.label("K3_fin0")
    stamp(a, 6)
    a.ext(epilogue(True))
    a.label("K3_fin")
    if OPT["stamp"]: a("s_waitcnt vmcnt(0)")
    stamp(a, 7)
    stamp_dump(a, 8, sWV, "K3", 1)
    if OPT["stamp"] == 2:
        a("s_cmp_lg_u32 s2, 5")
        a("s_cbranch_scc1 K3_end")
        a(f"s_cmp_lg_u32 s{sWV}, 0")
        a("s_cbranch_scc1 K3_end")
        a("s_load_dwordx2 s[20:21], s[0:1], 56")
        a(f"s_add_u32 s88, s24, {TAIL + (4 << 20)}")
        a("s_addc_u32 s89, s25, 0")
        a("s_mov_b32 s90, 196608")
        a("s_mov_b32 s91, 0x00020000")
        a("v_and_b32 v1, 63, v0")
        a("v_lshlrev_b32 v2, 3, v1")
        a("v_cmp_gt_u32 vcc, 9, v1")
        a("v_add_u32 v3, 65536-72, v2")
        a("s_nop 0")
        a("v_cndmask_b32 v2, v3, v2, vcc")
        a("buffer_load_dword v4, v2, s[88:91], 0 offen offset:1280")
        a("s_mov_b32 s22, 64")
        a("s_mov_b32 s23, 0x00020000")
        a("v_lshlrev_b32 v2, 2, v1")
        a("s_waitcnt vmcnt(0) lgkmcnt(0)")
        a("v_readfirstlane_b32 s92, v4")
        a("s_nop 3")
        a("v_subrev_u32 v4, s92, v4")
        a("buffer_store_dword v4, v2, s[20:23], 0 offen")
    a.label("K3_end")
    a("s_endpgm")
    return a, desc("gemm2_kernel", 256, 100), f"; @launch kernel=gemm2_kernel grid=(256,1,1) block=(512,1,1) lds={L_X + 12288}"

def main():
    ks = [k1(), k2(), k3n() if OPT['k3n'] else k3r() if OPT['roll'] else k3()]
    errs = []
    for a, _, l in ks: errs += check(a.lines, l.split("=")[1].split()[0])
    for a, _, l in ks:
        for i, x in enumerate(a.lines):
            if x.startswith("s_set_gpr_idx_on"): assert a.lines[i + 3] == "s_set_gpr_idx_off", "gpr idx not closed"
    for e in errs: print(e, file=sys.stderr)
    hdr = open("standalone__modern_conv_block_slak__vision.s.ref").read().split("\n")
    hdr = [l for l in hdr if l.startswith(";") and "@launch" not in l and "Override" not in l and "grid=ceil" not in l]
    out = "\n".join(hdr) + "\n" + "\n".join(l for _, _, l in ks) + "\n"
    out += '.amdgcn_target "amdgcn-amd-amdhsa--gfx950"\n.text\n'
    for a, _, _ in ks: out += a.text()
    out += '.section .rodata,"a"\n'
    for _, d, _ in ks: out += d
    open(sys.argv[1], "w").write(out)
    print("written", sys.argv[1], len(out), "bytes; hazards:", len(errs))
main()
```

```python
import sys, struct, math
from asmlib import Asm, check

OPT = dict(f16=1, st_nt=1, h_nt=1, w_nt=0, out_nt=0, x_nt=1, xp_nt=1, ord=4, ntail=2, k3skipw=0, kf=0, k3pre=0, prof=0, roll=0, stg=1, mp0=2, mpd=2, ipf=0, k3pl=0, wwarm=0, latw=7, dwarm=1, sdot=2, k3c=1, k3ne=6, k3nv=0, k3skiph=0, npf=1, kmask=0, k1nv=0, w1warm=1, k3he=6, k3xd=1, k3nev=0, k3sw=1, k3lm=0, spr=1, rpg=1, hd=7, lst=5, mst=1, gbo=0, k3n=1, k3wa=5, k3ro=1, k3df=0, k2pf=0, k2nt=0, wb=0, fuse=1, k3n0=9, k3n1=6, sgap=2, bgb=-1, stamp=0, denorm=3, pm=3, pg0=0, pg1=1, bg=4, gb=3, gp=2, stm=7, stm0=7, w2pf=1, sga=0,
           k3pa=1, k3pb=2, k3eb=0, k3nost=0, k3noh=0, k3nox=0, k3now=0, k3na=6, k3as=5, k3b0=18, k3bs=5, k3bl=1, outlin=0, nostore=0)
for a in sys.argv[2:]:
    k, v = a.split("="); OPT[k] = int(v, 0)

def f32(x): return "0x%08x" % struct.unpack("<I", struct.pack("<f", x))[0]
def f16bits(x): return struct.unpack("<H", struct.pack("<e", x))[0]

M = 147456; C = 384; F = 1536
XBYTES = M * C * 2
WSBYTES = 452984832
TILE_H = 589824; CHUNK_H = 12288; HSTRIDE = 3 * TILE_H - 2 * CHUNK_H
TAIL = 256 * HSTRIDE
W2F = TAIL + 1179648; B2 = TAIL; SSQ = TAIL + 2363392
NREP = 8
K1c = 2.0 * math.sqrt(2.0 / math.pi) * math.log2(math.e)
K3c = K1c * 0.044715
if OPT["f16"]:
    C0 = 1258.0 / 256.0
    ALPHA = K1c / C0
else:
    ALPHA = K3c ** (1.0 / 3.0)
    C0 = K1c / ALPHA

def srd(a, d, lo, hi, nrec, off=0):
    if off:
        a(f"s_add_u32 s{d}, s{lo}, {off}")
        a(f"s_addc_u32 s{d+1}, s{hi}, 0")
    else:
        a(f"s_mov_b32 s{d}, s{lo}")
        a(f"s_mov_b32 s{d+1}, s{hi}")
    a(f"s_mov_b32 s{d+2}, {nrec}")
    a(f"s_mov_b32 s{d+3}, 0x00020000")

def stamp(a, idx, base=64):
    if not OPT["stamp"]: return
    a("s_memrealtime s[90:91]")
    a("s_memtime s[92:93]")
    a("s_waitcnt lgkmcnt(0)")
    a(f"s_mov_b32 s{base+2*idx}, s90")
    a(f"s_mov_b32 s{base+2*idx+1}, s92")

def stamp2(a, ia, ib, creg, base=64):
    if not OPT["stamp"]: return
    a("s_memrealtime s[90:91]")
    a("s_memtime s[92:93]")
    a("s_waitcnt lgkmcnt(0)")
    a(f"s_cmp_eq_u32 s{creg}, 0")
    a(f"s_cselect_b32 s{base+2*ia}, s90, s{base+2*ia}")
    a(f"s_cselect_b32 s{base+2*ia+1}, s92, s{base+2*ia+1}")
    a(f"s_cselect_b32 s{base+2*ib}, s{base+2*ib}, s90")
    a(f"s_cselect_b32 s{base+2*ib+1}, s{base+2*ib+1}, s92")

def stamp_dump(a, n, wave_sgpr, tag, kidx, base=64):
    if not OPT["stamp"]: return
    a(f"s_and_b32 s94, s{wave_sgpr}, 3")
    a("s_cmp_lg_u32 s94, 0")
    a(f"s_cbranch_scc1 {tag}_nodump")
    a("s_load_dwordx2 s[90:91], s[0:1], 64")
    a("s_waitcnt lgkmcnt(0)")
    a(f"s_add_u32 s88, s90, {TAIL + (4 << 20) + kidx * 65536}")
    a("s_addc_u32 s89, s91, 0")
    a("s_mov_b32 s90, 65536")
    a("s_mov_b32 s91, 0x00020000")
    a(f"s_lshl_b32 s94, s{wave_sgpr}, 5")
    a("s_lshl_b32 s95, s2, 8")
    a("s_add_u32 s94, s94, s95")
    a("v_mov_b32 v8, 0")
    for i in range(n):
        a(f"v_mov_b32 v10, s{base+2*i}")
        a(f"v_mov_b32 v11, s{base+2*i+1}")
        a(f"buffer_store_dwordx2 v[10:11], v8, s[88:91], s94 offen offset:{i*8}")
        a("s_waitcnt vmcnt(0)")
    a.label(f"{tag}_nodump")

def q(r, n=4): return f"v[{r}:{r+n-1}]"

def kernel_start(a, name):
    a(f".globl {name}")
    a(".p2align 8")
    a(f".type {name},@function")
    a.label(name)

def code_prefetch(a, start, end, vt, st):
    if not OPT["ipf"]: return
    a(f"s_getpc_b64 s[{st}:{st+1}]")
    a(f"s_and_b32 s{st}, s{st}, 0xffffff00")
    a(f"s_mov_b32 s{st+2}, {end}-{start}")
    a(f"s_mov_b32 s{st+3}, 0x00020000")
    a(f"v_lshlrev_b32 v{vt}, 7, v0")
    a(f"buffer_load_dword v{vt}, v{vt}, s[{st}:{st+3}], 0 offen")

def desc(name, vgpr, sgpr=96):
    acc = min(256, (vgpr + 3) // 4 * 4)
    return f""".p2align 6
.amdhsa_kernel {name}
  .amdhsa_next_free_vgpr {vgpr}
  .amdhsa_next_free_sgpr {sgpr}
  .amdhsa_accum_offset {acc}
  .amdhsa_group_segment_fixed_size 0
  .amdhsa_kernarg_size 72
  .amdhsa_user_sgpr_count 2
  .amdhsa_user_sgpr_kernarg_segment_ptr 1
  .amdhsa_system_sgpr_workgroup_id_x 1
  .amdhsa_float_denorm_mode_32 {OPT['denorm']}
.end_amdhsa_kernel
"""

def gelu_batch(b, TMP, SSr, first, sC0, sC0H):
    L = []
    R = [b + i for i in range(8)]
    if not OPT["f16"]:
        T = [TMP + i for i in range(8)]
        for v, t in zip(R, T): L.append(f"v_fma_f32 v{t}, -v{v}, v{v}, s{sC0}")
        for v, t in zip(R, T): L.append(f"v_mul_f32 v{t}, v{t}, v{v}")
        for t in T: L.append(f"v_exp_f32 v{t}, v{t}")
        for t in T: L.append(f"v_add_f32 v{t}, 1.0, v{t}")
        for t in T: L.append(f"v_rcp_f32 v{t}, v{t}")
        for v, t in zip(R, T): L.append(f"v_mul_f32 v{t}, v{v}, v{t}")
        Gv = T
    else:
        H = [TMP + i for i in range(4)]; Pp = [TMP + 4 + i for i in range(4)]
        for i in range(4): L.append(f"v_cvt_pk_f16_f32 v{H[i]}, v{R[2*i]}, v{R[2*i+1]}")
        for i in range(4): L.append(f"v_pk_fma_f16 v{Pp[i]}, v{H[i]}, v{H[i]}, s{sC0H} neg_lo:[1,0,0] neg_hi:[1,0,0]")
        for i in range(4): L.append(f"v_pk_mul_f16 v{Pp[i]}, v{Pp[i]}, v{H[i]}")
        for i in range(4): L.append(f"v_exp_f16 v{H[i]}, v{Pp[i]}")
        for i in range(4): L.append(f"v_exp_f16_sdwa v{H[i]}, v{Pp[i]} dst_sel:WORD_1 dst_unused:UNUSED_PRESERVE src0_sel:WORD_1")
        for i in range(4): L.append(f"v_pk_add_f16 v{H[i]}, v{H[i]}, 1.0 op_sel_hi:[1,0]")
        for i in range(4): L.append(f"v_rcp_f16 v{Pp[i]}, v{H[i]}")
        for i in range(4): L.append(f"v_rcp_f16_sdwa v{H[i]}, v{H[i]} dst_sel:DWORD dst_unused:UNUSED_PAD src0_sel:WORD_1")
        for i in range(4): L.append(f"v_fma_mix_f32 v{R[2*i]}, v{R[2*i]}, v{Pp[i]}, 0 op_sel_hi:[0,1,0]")
        for i in range(4): L.append(f"v_fma_mix_f32 v{R[2*i+1]}, v{R[2*i+1]}, v{H[i]}, 0 op_sel_hi:[0,1,0]")
        Gv = R
    for e in (0, 4, 1, 5, 2, 6, 3, 7) if not OPT['sdot'] else ():
        s_ = SSr + e // 4
        L.append(f"v_mul_f32 v{s_}, v{Gv[e]}, v{Gv[e]}" if first and e % 4 == 0 else f"v_fmac_f32 v{s_}, v{Gv[e]}, v{Gv[e]}")
    if OPT["mst"]:
        for i in (3, 2, 1, 0): L.append(f"v_cvt_pk_bf16_f32 v{b+4+i}, v{Gv[2*i]}, v{Gv[2*i+1]}")
    else:
        for i in range(4): L.append(f"v_cvt_pk_bf16_f32 v{b+i}, v{Gv[2*i]}, v{Gv[2*i+1]}")
    return L

NBP = 6
def k2(a=None):
    inl = a is not None
    if not inl:
        a = Asm()
        kernel_start(a, "mid_kernel")
    if not inl:
        a(f"s_cmp_ge_u32 s2, {24 + 256 * (OPT['k2pf'] > 0)}")
        a("s_cbranch_scc1 K2_end")
    if OPT["k2pf"]:
        a("s_cmp_lt_u32 s2, 24")
        a("s_cbranch_scc1 K2_main")
        a("s_load_dwordx2 s[4:5], s[0:1], 48")
        a("s_load_dwordx2 s[6:7], s[0:1], 64")
        a("s_sub_u32 s3, s2, 24")
        a(f"s_mul_i32 s30, s3, {3 * 192 * 768}")
        a(f"s_mul_i32 s31, s3, {HSTRIDE}")
        a(f"s_add_u32 s31, s31, {HSTRIDE - (OPT['k2pf'] - 2) * CHUNK_H}")
        a("v_lshlrev_b32 v1, 7, v0")
        a(f"v_subrev_u32 v2, {2 * CHUNK_H}, v1")
        a("s_waitcnt lgkmcnt(0)")
        a("s_add_u32 s8, s4, s30")
        a("s_addc_u32 s9, s5, 0")
        a(f"s_mov_b32 s10, {2 * CHUNK_H}")
        a("s_mov_b32 s11, 0x00020000")
        a("s_add_u32 s12, s6, s31")
        a("s_addc_u32 s13, s7, 0")
        a(f"s_mov_b32 s14, {(OPT['k2pf'] - 2) * CHUNK_H}")
        a("s_mov_b32 s15, 0x00020000")
        fl = " nt" if OPT["k2nt"] else ""
        a("buffer_load_dword v3, v1, s[8:11], 0 offen" + fl)
        a("buffer_load_dword v4, v2, s[12:15], 0 offen" + fl)
        a("s_endpgm")
        a.label("K2_main")
    if not inl: stamp(a, 0)
    a("s_load_dwordx4 s[4:7], s[0:1], 24")
    a("s_load_dwordx2 s[8:9], s[0:1], 40")
    a("s_load_dwordx2 s[10:11], s[0:1], 64")
    a("v_lshrrev_b32 v1, 6, v0")
    a("v_and_b32 v2, 63, v0")
    a("v_readfirstlane_b32 s3, v1")
    a("v_mul_u32_u24 v5, 12, v0")
    a("s_lshr_b32 s30, s2, 2")
    a("s_and_b32 s32, s2, 3")
    a("s_lshl_b32 s31, s30, 3")
    a("s_add_u32 s31, s31, s3")
    a("s_mul_i32 s33, s32, 192")
    a(f"s_mul_i32 s34, s31, {32 * 768}")
    a("s_add_u32 s33, s33, s34")
    a("v_lshrrev_b32 v3, 4, v2")
    a("v_and_b32 v4, 1, v3")
    a("v_lshlrev_b32 v4, 4, v4")
    a("v_lshrrev_b32 v3, 1, v3")
    a("v_lshl_add_u32 v3, v3, 3, v4")
    a("v_mul_u32_u24 v7, 768, v3")
    a("v_and_b32 v6, 15, v2")
    a("v_mul_u32_u24 v4, 12, v6")
    a("v_add_u32 v7, v4, v7")
    a("s_lshl_b32 s35, s31, 6")
    a("v_lshlrev_b32 v4, 1, v3")
    a("s_waitcnt lgkmcnt(0)")
    srd(a, 24, 10, 11, WSBYTES - TAIL, TAIL)
    def ssq_loads(fl):
        a(f"s_mov_b32 s34, {SSQ - TAIL}")
        for r in range(NREP):
            a(f"buffer_load_dwordx3 {q(32+4*r, 3)}, v5, s[24:27], s34 offen{fl}")
            if r < NREP - 1: a("s_add_u32 s34, s34, 6144")
    if not inl: ssq_loads("")
    srd(a, 12, 4, 5, C * F * 2)
    srd(a, 16, 6, 7, F * 2)
    srd(a, 20, 8, 9, F * 2)
    W = 64; U = 96
    for e in range(8):
        if e == 4: a("s_add_u32 s33, s33, 3072")
        a(f"buffer_load_dwordx3 {q(W + 4*e, 3)}, v7, s[12:15], s33 offen offset:{(e % 4) * 768}")
    a("buffer_load_dwordx4 v[16:19], v4, s[16:19], s35 offen")
    a("buffer_load_dwordx4 v[12:15], v4, s[20:23], s35 offen")
    if inl:
        a("v_mov_b32 v8, 0")
        a("s_cmp_lg_u32 s3, 0")
        a("s_cbranch_scc1 K2_seen")
        a("s_cmp_eq_u32 s2, 23")
        a("s_cbranch_scc1 K2_seen")
        a.label("K2_poll")
        a("buffer_load_dword v9, v8, s[48:51], 0 offen offset:128 sc0 sc1")
        a("s_waitcnt vmcnt(0)")
        a("v_readfirstlane_b32 s44, v9")
        a("s_nop 3")
        a("s_cmp_lt_u32 s44, 256")
        a("s_cbranch_scc1 K2_poll")
        a.label("K2_seen")
        a("s_barrier")
        ssq_loads(" sc0 sc1")
        a("s_waitcnt vmcnt(0)")
    else: a("s_waitcnt vmcnt(10)")
    if not inl: stamp(a, 1)
    for st in (4, 2, 1):
        for r in range(st):
            for k in range(3): a(f"v_add_f32 v{32+4*r+k}, v{32+4*r+k}, v{32+4*(r+st)+k}")
    a(f"s_mov_b32 s36, {f32(1.0 / (ALPHA * ALPHA))}")
    a(f"v_mov_b32 v20, {f32(1e-6)}")
    for k in range(3): a(f"v_fma_f32 v{32+k}, v{32+k}, s36, v20")
    for k in range(3): a(f"v_sqrt_f32 v{32+k}, v{32+k}")
    a("s_nop 0")
    for k in range(3): a(f"ds_write_b32 v5, v{32+k} offset:{4*k}")
    a("v_add_f32 v21, v32, v33")
    a("v_add_f32 v21, v21, v34")
    for ctl in ("row_shr:1", "row_shr:2", "row_shr:4", "row_shr:8"):
        a("s_nop 1")
        a(f"v_add_f32_dpp v21, v21, v21 {ctl} row_mask:0xf bank_mask:0xf bound_ctrl:0")
    a("s_nop 1")
    a("v_readlane_b32 s40, v21, 15")
    a("v_readlane_b32 s41, v21, 31")
    a("v_readlane_b32 s42, v21, 47")
    a("v_readlane_b32 s43, v21, 63")
    a("s_nop 1")
    a("v_mov_b32 v22, s40")
    a("v_add_f32 v22, s41, v22")
    a("v_add_f32 v22, s42, v22")
    a("v_add_f32 v22, s43, v22")
    a("s_lshl_b32 s37, s3, 2")
    a("v_mov_b32 v23, s37")
    a("ds_write_b32 v23, v22 offset:6144")
    a("s_waitcnt lgkmcnt(0)")
    a("s_barrier")
    if not inl: stamp(a, 2)
    a("v_mov_b32 v23, 0")
    a("ds_read_b128 v[24:27], v23 offset:6144")
    a("ds_read_b128 v[28:31], v23 offset:6160")
    a("s_lshl_b32 s37, s31, 7")
    a("v_lshlrev_b32 v4, 2, v3")
    a("v_add_u32 v4, s37, v4")
    a("ds_read_b128 v[32:35], v4")
    a("ds_read_b128 v[36:39], v4 offset:16")
    a("s_waitcnt vmcnt(0)")
    for e in range(8):
        for d in range(3):
            a(f"v_lshlrev_b32 v{U + 6*e + 2*d}, 16, v{W + 4*e + d}")
            a(f"v_and_b32 v{U + 6*e + 2*d + 1}, 0xffff0000, v{W + 4*e + d}")
    a("s_waitcnt lgkmcnt(0)")
    for st in (4, 2, 1):
        for r in range(st): a(f"v_add_f32 v{24+r}, v{24+r}, v{24+r+st}")
    a(f"v_mul_f32 v24, {f32(1.0 / F)}, v24")
    a(f"v_add_f32 v24, {f32(1e-6)}, v24")
    a("v_rcp_f32 v24, v24")
    a(f"s_mov_b32 s36, {f32(1.0 / ALPHA)}")
    for e in range(8):
        src = 16 + e // 2
        a(f"v_lshlrev_b32 v40, 16, v{src}" if e % 2 == 0 else f"v_and_b32 v40, 0xffff0000, v{src}")
        a(f"v_mul_f32 v{32+e}, v{32+e}, v24")
        a(f"v_fma_f32 v{32+e}, v{32+e}, v40, 1.0")
        a(f"v_mul_f32 v{32+e}, s36, v{32+e}")
    if OPT["k3c"]:
        a("s_sub_u32 s44, 47, s31")
        a("s_and_b32 s45, s44, 1")
        a("s_andn2_b32 s44, s44, 1")
        a("s_sub_u32 s44, 47, s44")
        a("s_mul_i32 s33, s44, 24")
        a("s_mul_i32 s45, s45, 3")
        a("s_add_u32 s33, s33, s45")
    else:
        a("s_mul_i32 s33, s31, 24")
    a("s_mul_i32 s46, s32, 6")
    a("s_add_u32 s33, s33, s46")
    a("s_lshl_b32 s33, s33, 10")
    a(f"s_add_u32 s33, s33, {W2F - TAIL}")
    a("s_sub_u32 s34, s33, 24576" if OPT["k3c"] else "s_add_u32 s34, s33, 3072")
    a("v_lshlrev_b32 v43, 4, v2")
    for n in range(6):
        T = 44 + 8 * (n % 2); O = W + 4 * n
        for e in range(8): a(f"v_mul_f32 v{T+e}, v{U + 6*e + n}, v{32+e}")
        for i in range(4): a(f"v_cvt_pk_bf16_f32 v{O+i}, v{T+2*i}, v{T+2*i+1}")
        a(f"buffer_store_dwordx4 {q(O)}, v43, s[24:27], s{33 + n // 3} offen offset:{(n % 3) * 1024}")
    for e in range(8):
        a(f"v_lshlrev_b32 v41, 16, v{12 + e // 2}" if e % 2 == 0 else f"v_and_b32 v41, 0xffff0000, v{12 + e // 2}")
        for n in range(6): a(f"v_mul_f32 v{24+n}, v41, v{U + n}" if e == 0 else f"v_fmac_f32 v{24+n}, v41, v{U + 6*e + n}")
    a("v_mul_u32_u24 v43, 24, v0")
    for d in range(3): a(f"ds_write_b64 v43, {q(24 + 2*d, 2)} offset:{6400 + 8*d}")
    a("s_waitcnt lgkmcnt(0)")
    a("s_barrier")
    a("s_cmp_ge_u32 s3, 2")
    a("s_cbranch_scc1 K2_end")
    a("v_lshlrev_b32 v43, 2, v0")
    for w in range(32): a(f"ds_read_b32 v{U + w}, v43 offset:{6400 + 384*w}")
    a("s_waitcnt lgkmcnt(0)")
    for st in (16, 8, 4, 2, 1):
        for r in range(st): a(f"v_add_f32 v{U+r}, v{U+r}, v{U+r+st}")
    a("s_mul_i32 s39, s30, 1536")
    a("s_mul_i32 s38, s32, 384")
    a("s_add_u32 s38, s38, s39")
    a(f"s_add_u32 s38, s38, {B2 - TAIL}")
    a("v_cmp_gt_u32 vcc, 96, v0")
    a("s_and_saveexec_b64 s[40:41], vcc")
    a(f"buffer_store_dword v{U}, v43, s[24:27], s38 offen")
    a("s_mov_b64 exec, s[40:41]")
    if OPT["stamp"]: a("s_waitcnt vmcnt(0)")
    if not inl: stamp(a, 3)
    if not inl: stamp_dump(a, 4, 3, "K2", 2)
    a.label("K2_end")
    a("s_endpgm")
    if inl: return
    return a, desc("mid_kernel", 144, 100 if OPT["stamp"] else 56), f"; @launch kernel=mid_kernel grid=({24 + 256 * (OPT['k2pf'] > 0)},1,1) block=(512,1,1) lds=19200"

def k1():
    a = Asm()
    XN = 8; ACC = 152; BB = 200; SQ = 232
    TMP = BB + 16; SS = BB + 24
    vDE, vXS, vRD, vST, vDW, vDO, vRB = 1, 2, 3, 4, 5, 6, 7
    L_DW = 147456
    sX, sW1, sH, sDB = 8, 12, 16, 20
    sWSlo, sWShi, sOUTlo, sOUThi, sDBlo, sDBhi = 24, 25, 26, 27, 28, 29
    (sWV, sGRP, sI, sEND, sRDS, sDSL, sT0, sT1, sC0, sHB, sXB, sREG, sSIG, sT2, sC0H, sDSR, sD0, sST0, sST1, sXN, sDS0, sTK,
     sSLO, sSHI, sDLO, sDHI, sSG0, sCW, sXU) = range(30, 59)
    sHN, sSLN, sSHN, sDSP, sDSN, sDCN, sCW2, sKM = 82, 83, 84, 85, 86, 87, 3, 97
    REG = 3 * 192 * 768
    kernel_start(a, "gemm1_kernel")
    a("s_cmp_ge_u32 s2, 256")
    a("s_cbranch_scc1 K1_end")
    stamp(a, 0)
    a("s_load_dwordx4 s[4:7], s[0:1], 0")
    a(f"s_load_dwordx2 s[{sW1}:{sW1+1}], s[0:1], 16")
    a(f"s_load_dwordx2 s[{sOUTlo}:{sOUThi}], s[0:1], 48")
    a(f"s_load_dwordx2 s[{sDBlo}:{sDBhi}], s[0:1], 56")
    a(f"s_load_dwordx2 s[{sWSlo}:{sWShi}], s[0:1], 64")
    code_prefetch(a, "gemm1_kernel", "K1_end", BB + 20, 60)
    a("v_lshrrev_b32 v8, 6, v0")
    a("v_and_b32 v9, 63, v0")
    a(f"v_readfirstlane_b32 s{sWV}, v8")
    a("v_lshrrev_b32 v12, 3, v9")
    a("v_and_b32 v13, 7, v9")
    a("v_lshrrev_b32 v14, 1, v12")
    a("v_xor_b32 v14, v14, v13")
    a(f"v_mul_u32_u24 v{vXS}, 768, v12")
    a(f"v_lshl_add_u32 v{vXS}, v14, 4, v{vXS}")
    a(f"s_lshr_b32 s{sT0}, s2, 4")
    a(f"s_and_b32 s{sSG0}, s{sT0}, {OPT['sga']}")
    a(f"s_lshl_b32 s{sT0}, s{sT0}, 4")
    a(f"s_and_b32 s{sT1}, s2, 7")
    a(f"s_lshl_b32 s{sT1}, s{sT1}, 1")
    a(f"s_add_u32 s{sT0}, s{sT0}, s{sT1}")
    a(f"s_bfe_u32 s{sT1}, s2, 0x10003")
    a(f"s_add_u32 s{sREG}, s{sT0}, s{sT1}")
    a(f"s_mul_i32 s{sSLO}, s{sT1}, 12")
    a(f"s_add_u32 s{sSHI}, s{sSLO}, 12")
    a(f"s_lshr_b32 s{sGRP}, s{sWV}, 2")
    a(f"s_and_b32 s{sT1}, s{sWV}, 3")
    a(f"s_add_u32 s{sT0}, s{sT0}, s{sGRP}")
    a(f"s_mul_i32 s{sXB}, s{sT0}, {REG}")
    a(f"s_mul_i32 s{sT2}, s{sT1}, {48 * 768}")
    a(f"s_add_u32 s{sXB}, s{sXB}, s{sT2}")
    if not OPT["roll"]: a(f"s_add_u32 s{sXB}, s{sXB}, {2 * 192 * 768}")
    a(f"s_mul_i32 s{sHB}, s{sT0}, {HSTRIDE}")
    if not OPT["roll"]: a(f"s_add_u32 s{sHB}, s{sHB}, {2 * TILE_H}")
    a(f"s_mul_i32 s59, s{sT0}, {REG}")
    if OPT["roll"]: a(f"s_add_u32 s59, s59, {2 * 192 * 768}")
    a(f"s_mul_i32 s{sXN}, s{sREG}, {REG}")
    a(f"s_add_u32 s{sT2}, s{sWV}, 4" if OPT["roll"] else f"s_xor_b32 s{sT2}, s{sWV}, 4")
    a(f"s_mul_i32 s{sT2}, s{sT2}, {48 * 768}")
    a(f"s_add_u32 s{sXN}, s{sXN}, s{sT2}")
    a(f"s_mul_i32 s{sHN}, s{sREG}, {HSTRIDE}")
    a(f"s_xor_b32 s{sT2}, s{sGRP}, {0 if OPT['roll'] else 1}")
    a(f"s_mul_i32 s{sT2}, s{sT2}, {TILE_H}")
    a(f"s_add_u32 s{sHN}, s{sHN}, s{sT2}")
    if OPT["roll"]: a(f"s_add_u32 s{sHN}, s{sHN}, {46 * CHUNK_H}")
    a(f"s_mov_b32 s{sSLN}, 0")
    a(f"s_mov_b32 s{sSHN}, 24")
    a(f"s_mov_b32 s{sDSP}, 23")
    a(f"s_mov_b32 s{sDSN}, -1")
    if OPT["ord"]:
        a(f"s_bitcmp1_b32 s2, {OPT['ord']}")
        a("s_cbranch_scc0 K1_noswap")
        for x, y in ((sXB, sXN), (sHB, sHN), (sSLO, sSLN), (sSHI, sSHN), (sDSP, sDSN)):
            a(f"s_mov_b32 s{sT2}, s{x}"); a(f"s_mov_b32 s{x}, s{y}"); a(f"s_mov_b32 s{y}, s{sT2}")
        a.label("K1_noswap")
    a(f"s_mul_i32 s{sD0}, s{sWV}, 6144")
    a(f"s_mov_b32 s{sCW}, s{sD0}")
    a(f"s_add_u32 s{sCW2}, s{sD0}, 49152")
    a("s_waitcnt lgkmcnt(0)")
    srd(a, sX, 4, 5, XBYTES)

    KPO = [3, 4, 5, 2, 1, 0]
    def xdma(n, pol=None):
        if pol is None:
            if OPT["x_nt"] == OPT["xp_nt"]: return xdma(n, OPT["x_nt"])
            return [f"s_cbranch_vccnz K1_xa{n}"] + xdma(n, OPT["x_nt"]) + [f"s_branch K1_xb{n}", f"K1_xa{n}:"] + xdma(n, OPT["xp_nt"]) + [f"K1_xb{n}:"]
        xnt = " nt" if pol else ""
        tt, kp = divmod(n, 6); kp = KPO[kp]
        return [f"s_add_u32 m0, s{(sCW, sCW2)[n // 3 % 2]}, {(n % 3) * 2048}", f"s_add_u32 s{sXU}, s{sXB}, {tt * 12288 + kp * 128}",
                f"buffer_load_dwordx4 v{vXS}, s[{sX}:{sX+3}], s{sXU} offen{xnt} lds",
                "s_add_u32 m0, m0, 1024", f"s_add_u32 s{sXU}, s{sXU}, 6144",
                f"buffer_load_dwordx4 v{vXS}, s[{sX}:{sX+3}], s{sXU} offen{xnt} lds"]
    srd(a, sH, 6, 7, C * 2)
    a(f"v_lshlrev_b32 v{ACC+4}, 2, v0")
    a(f"buffer_load_dword v{ACC}, v{ACC+4}, s[{sH}:{sH+3}], 0 offen")
    for n in range(6): a.ext(xdma(n, OPT['x_nt']))
    a('s_mov_b64 vcc, 0')

    a("v_and_b32 v10, 15, v9")
    a("v_lshrrev_b32 v11, 4, v9")
    a(f"v_lshlrev_b32 v{vST}, 2, v11")
    a(f"v_xor_b32 v{vST}, v{vST}, v9")
    a(f"v_lshlrev_b32 v{vST}, 4, v{vST}")
    a(f"s_mul_i32 s{sT2}, s{sT1}, 3072")
    a(f"v_add_u32 v{vST}, s{sT2}, v{vST}")
    a(f"v_lshlrev_b32 v{vDW}, 5, v11")
    a(f"v_add_u32 v{vDW}, {L_DW}, v{vDW}")
    a("v_and_b32 v14, 2, v12")
    a("v_xor_b32 v13, v13, v14")
    a(f"v_mul_u32_u24 v{vDE}, 3072, v12")
    a(f"v_lshl_add_u32 v{vDE}, v13, 4, v{vDE}")
    a(f"v_xor_b32 v{vDO}, 64, v{vDE}")
    a("v_lshrrev_b32 v12, 2, v10")
    a("v_lshl_add_u32 v13, v11, 3, v12")
    a(f"v_lshlrev_b32 v{vRB}, 7, v13")
    a("v_lshrrev_b32 v12, 1, v12")
    a("v_and_b32 v13, 1, v11")
    a("v_lshl_add_u32 v12, v13, 1, v12")
    a(f"v_lshl_add_u32 v{vRB}, v12, 5, v{vRB}")
    a("v_and_b32 v12, 3, v10")
    a(f"v_lshl_add_u32 v{vRB}, v12, 3, v{vRB}")
    a(f"s_mov_b32 s{sC0}, {f32(-C0)}")
    h = f16bits(-C0); a(f"s_mov_b32 s{sC0H}, 0x{h:04x}{h:04x}")
    a(f"s_mul_i32 s{sDS0}, s{sWV}, {6 * 24576}")
    a(f"s_add_u32 s{sSIG}, s{sSLO}, s{sSG0}")
    a(f"s_lshl_b32 s{sDLO}, s{sSLO}, 7")
    a(f"s_add_u32 s{sDLO}, s{sDLO}, s{sDS0}")
    a(f"s_lshl_b32 s{sDHI}, s{sSHI}, 7")
    a(f"s_add_u32 s{sDHI}, s{sDHI}, s{sDS0}")
    a(f"s_lshl_b32 s{sDSR}, s{sSG0}, 7")
    a(f"s_add_u32 s{sDSR}, s{sDSR}, s{sDLO}")
    a(f"s_mov_b32 s{sDSL}, s{sD0}")
    a(f"s_mov_b32 s{sTK}, 1")
    a(f"s_mov_b32 s{sW1+2}, {C * F * 2}")
    a(f"s_mov_b32 s{sW1+3}, 0x00020000")
    srd(a, sDB, sDBlo, sDBhi, 256)

    uid = [0]
    def dma():
        P = []
        for k in range(6):
            pre = [f"s_mov_b32 m0, s{sDSL}", f"s_mov_b32 s{sT0}, s{sDSR}"] if k == 0 else ["s_add_u32 m0, m0, 1024", f"s_add_u32 s{sT0}, s{sT0}, 24576"]
            P.append(pre + [f"buffer_load_dwordx4 v{(vDE, vDO)[k % 2]}, s[{sW1}:{sW1+3}], s{sT0} offen lds"])
        P[5] += [f"s_add_u32 s{sDSL}, s{sDSL}, 49152", f"s_cmp_ge_u32 s{sDSL}, 147456", f"s_cselect_b32 s{sDSL}, s{sD0}, s{sDSL}",
                 f"s_add_u32 s{sDSR}, s{sDSR}, 128", f"s_cmp_eq_u32 s{sDSR}, s{sDHI}", f"s_cselect_b32 s{sDSR}, s{sDLO}, s{sDSR}"]
        uid[0] += 1
        P[5] += [f"s_sub_u32 s{sDCN}, s{sDCN}, 1", f"s_cmp_lg_u32 s{sDCN}, 0", f"s_cbranch_scc1 K1_ds{uid[0]}",
                 f"s_lshl_b32 s{sDLO}, s{sSLN}, 7", f"s_add_u32 s{sDLO}, s{sDLO}, s{sDS0}", f"s_lshl_b32 s{sDHI}, s{sSHN}, 7", f"s_add_u32 s{sDHI}, s{sDHI}, s{sDS0}",
                 f"s_lshl_b32 s{sDSR}, s{sSG0}, 7", f"s_add_u32 s{sDSR}, s{sDSR}, s{sDLO}", f"K1_ds{uid[0]}:"]
        return P

    a(f"v_lshlrev_b32 v{ACC+4}, 3, v0")
    a(f"v_add_u32 v{ACC+4}, {L_DW}, v{ACC+4}")
    a("s_waitcnt vmcnt(12)")
    a(f"v_and_b32 v{ACC+2}, 0xffff, v{ACC}")
    a(f"v_and_b32 v{ACC+3}, 0xffff0000, v{ACC}")
    a(f"ds_write_b64 v{ACC+4}, {q(ACC+2, 2)}")
    a(f"v_mov_b32 v{BB+8}, 1")
    a(f"s_cmp_lg_u32 s{sWV}, 0")
    a("s_cbranch_scc1 K1_pj")
    a(f"v_lshlrev_b32 v{ACC+5}, 8, v0")
    a(f"s_and_b32 s{sT0}, s2, {NREP - 1}")
    a(f"s_lshl_b32 s{sT0}, s{sT0}, 2")
    a(f"buffer_atomic_add v{BB+8}, v{ACC+5}, s[{sDB}:{sDB+3}], s{sT0} offen sc0")
    a.label("K1_pj")
    for r in range(SQ, SQ + 24): a(f"v_mov_b32 v{r}, 0")
    srd(a, sH, sWSlo, sWShi, TAIL)
    a(f"s_mov_b32 s{sI}, 0")
    a(f"s_sub_u32 s{sEND}, s{sSHI}, s{sSLO}")
    a(f"s_mov_b32 s{sRDS}, 0")
    a(f"s_mov_b32 s{sKM}, {OPT['kmask']}")
    a(f"s_mov_b32 s{sDCN}, s{sEND}")
    a(f"s_sub_u32 s{sEND}, s{sEND}, 2")
    a("s_waitcnt lgkmcnt(0)")
    a("s_barrier")
    stamp(a, 1)

    def buf(i): return BB + 4 * (i % 8)
    def rd(i):
        ct, ks = divmod(i, 12)
        L = [f"v_xor_b32 v{vRD}, {((ct - 1) ^ ct) << 5}, v{vRD}"] if ks == 0 and ct > 0 else []
        return L + [f"ds_read_b64_tr_b16 {q(buf(i) + 2*u, 2)}, v{vRD} offset:{ks*4096 + u*512}" for u in range(2)]
    def head(): return [f"v_add_u32 v{vRD}, s{sRDS}, v{vRB}"] + [x for i in range(4) for x in rd(i)]

    DWR = [BB + 16, BB + 24]
    S = BB; Q = BB + 4; vTK = BB + 8; vW2 = BB + 10; vXR = BB + 12; vT = BB + 13; vFL = BB + 14
    KSO = [6, 7, 8, 9, 10, 11, 5, 4, 3, 2, 1, 0]
    def dwrd(m): return [f"ds_read_b128 {q(DWR[m % 2] + 4*j)}, v{vDW} offset:{KSO[m % 12]*128 + j*16}" for j in range(2)]
    def xaddr():
        return [f"v_and_b32 v{vT}, 15, v0", f"v_lshlrev_b32 v{vXR}, 7, v{vT}", f"v_bfe_u32 v{vT}, v0, 1, 2", f"v_bfe_u32 v{vFL}, v0, 4, 2",
                f"v_xor_b32 v{vT}, v{vT}, v{vFL}", f"v_lshl_add_u32 v{vXR}, v{vT}, 4, v{vXR}", f"v_add_u32 v{vT}, s{sCW2}, v{vXR}", f"v_add_u32 v{vXR}, s{sCW}, v{vXR}"]
    def xread(n):
        tt, kp = divmod(n, 6); kp = KPO[kp]
        return [f"ds_read_b128 {q(XN + 48*tt + 8*kp + 4*e)}, v{(vXR, vT)[n // 3 % 2]} offset:{(n % 3) * 2048 + e * 64}" for e in range(2)]
    a.ext(xaddr())
    a.label("K1_ln")
    a.ext(dwrd(0))
    def yreg(tt, d): return XN + 48*tt + 2*d if d < 24 else ACC + 2*(d - 24)
    for tt in range(3):
        for m in range(12):
            n = tt * 6 + m // 2; ks = KSO[m]
            if m % 2 == 0:
                if tt == 0: a(f"s_cbranch_vccnz K1_ta{n}")
                a(f"s_waitcnt vmcnt({2 * min(5, 17 - n) + (6 if n > 14 else 0)})")
                a.ext(xread(n))
                if tt == 0: a.label(f"K1_ta{n}")
            last = tt == 2 and m == 11
            if not last: a.ext(dwrd(m + 1))
            a(f"s_waitcnt lgkmcnt({0 if last else 2})")
            if m % 2 == 0:
                if tt == 0:
                    a(f"s_cbranch_vccnz K1_tb{n}")
                    a.ext(xdma(n + 6, OPT["x_nt"]))
                    a.label(f"K1_tb{n}")
                elif n + 6 < 18: a.ext(xdma(n + 6))
                if n in (14, 17):
                    for p in dma(): a.ext(p)
            D = DWR[m % 2]
            for jj in (3, 2, 1, 0):
                d = 4 * ks + jj; x = XN + 48*tt + d; y = yreg(tt, d)
                a(f"v_dot2_f32_bf16 v{y+1}, v{x}, v{D+2*jj+1}, 0")
                a(f"v_dot2_f32_bf16 v{y}, v{x}, v{D+2*jj}, 0")
            for jj in (3, 2, 1, 0):
                y = q(yreg(tt, 4 * ks + jj), 2); s_ = q(S + 2*(jj % 2), 2); q_ = q(Q + 2*(jj % 2), 2)
                if m == 0 and jj >= 2:
                    a(f"v_pk_mul_f32 {s_}, {y}, 1.0 op_sel_hi:[1,0]")
                    a(f"v_pk_mul_f32 {q_}, {y}, {y}")
                else:
                    a(f"v_pk_add_f32 {s_}, {s_}, {y}")
                    a(f"v_pk_fma_f32 {q_}, {y}, {y}, {q_}")
        a(f"v_pk_add_f32 {q(S,2)}, {q(S,2)}, {q(S+2,2)}")
        a(f"v_pk_add_f32 {q(Q,2)}, {q(Q,2)}, {q(Q+2,2)}")
        a(f"v_add_f32 v{S}, v{S}, v{S+1}")
        a(f"v_add_f32 v{Q}, v{Q}, v{Q+1}")
        for sw in ("v_permlane16_swap_b32", "v_permlane32_swap_b32"):
            a(f"v_mov_b32 v{S+1}, v{S}"); a(f"v_mov_b32 v{Q+1}, v{Q}")
            a("s_nop 0")
            a(f"{sw} v{S}, v{S+1}"); a(f"{sw} v{Q}, v{Q+1}")
            a(f"v_add_f32 v{S}, v{S}, v{S+1}"); a(f"v_add_f32 v{Q}, v{Q}, v{Q+1}")
        a(f"v_mul_f32 v{S}, {f32(-1.0 / C)}, v{S}")
        a(f"v_mul_f32 v{Q}, {f32(1.0 / C)}, v{Q}")
        a(f"v_fma_f32 v{Q}, -v{S}, v{S}, v{Q}")
        a(f"v_max_f32 v{Q}, 0, v{Q}")
        a(f"v_add_f32 v{Q}, {f32(1e-5)}, v{Q}")
        a(f"v_rsq_f32 v{Q}, v{Q}")
        a("s_nop 0")
        a(f"v_mul_f32 v{Q}, {f32(ALPHA)}, v{Q}")
        a(f"v_mul_f32 v{S}, v{S}, v{Q}")
        for d0 in range(0, 48, 4):
            for d in range(d0, d0 + 4):
                y = q(yreg(tt, d), 2)
                a(f"v_pk_fma_f32 {y}, {y}, {q(Q,2)}, {q(S,2)} op_sel_hi:[1,0,0]")
            for d in range(d0, d0 + 4):
                a(f"v_cvt_pk_bf16_f32 v{XN + 48*tt + d}, v{yreg(tt, d)}, v{yreg(tt, d) + 1}")
    a(f"s_cmp_lg_u32 s{sI}, 0")
    a("s_cbranch_scc1 K1_chk")
    if OPT["w1warm"]:
        a(f"s_lshr_b32 s{sT0}, s2, 3")
        a(f"s_lshl_b32 s{sT0}, s{sT0}, 3")
        a(f"s_add_u32 s{sT0}, s{sT0}, s{sWV}")
        a(f"s_mul_i32 s{sT0}, s{sT0}, 4608")
        a(f"v_and_b32 v{ACC}, 63, v0")
        a(f"v_min_u32 v{ACC}, 35, v{ACC}")
        a(f"v_lshlrev_b32 v{ACC}, 7, v{ACC}")
        a(f"s_mov_b32 m0, {L_DW + 2048}")
        a("s_waitcnt vmcnt(0)")
        a(f"buffer_load_dword v{ACC}, s[{sW1}:{sW1+3}], s{sT0} offen lds")
    a(f"v_readfirstlane_b32 s{sTK}, v{BB+8}")
    a("s_nop 3")
    a(f"s_cmp_lg_u32 s{sTK}, 0")
    a("s_cbranch_scc1 K1_flag")
    srd(a, 60, sWSlo, sWShi, NREP * 6144, SSQ)
    a(f"s_and_b32 s{sT0}, s2, {NREP - 1}")
    a(f"s_mul_i32 s{sT1}, s{sT0}, 6144")
    a(f"s_add_u32 s{sT2}, s{sT1}, 4096")
    for i in range(4): a(f"v_mov_b32 v{ACC+i}, 0")
    a(f"v_lshlrev_b32 v{ACC+4}, 4, v0")
    for k in range(6): a(f"buffer_store_dwordx4 {q(ACC)}, v{ACC+4}, s[60:63], s{(sT1, sT2)[k // 4]} offen offset:{(k % 4) * 1024} sc0 sc1")
    a(f"v_lshlrev_b32 v{ACC+5}, 8, v0")
    a(f"v_mov_b32 v{ACC+6}, 1")
    a(f"s_lshl_b32 s{sT0}, s{sT0}, 2")
    a("s_waitcnt vmcnt(0)")
    a(f"buffer_store_dword v{ACC+6}, v{ACC+5}, s[{sDB}:{sDB+3}], s{sT0} offen offset:64 sc0 sc1")
    a("s_branch K1_flag")
    a.label("K1_chk")
    a(f"v_readfirstlane_b32 s{sT1}, v{vFL+1}")
    a("s_nop 3")
    a(f"s_cmp_lg_u32 s{sT1}, 0")
    a("s_cbranch_scc1 K1_flag")
    a(f"v_mov_b32 v{vFL}, 0")
    a(f"buffer_load_dword v{vFL+1}, v{vFL}, s[{sDB}:{sDB+3}], s{sT2} offen offset:64 sc0 sc1")
    a("s_waitcnt vmcnt(0)")
    a("s_branch K1_chk")
    a.label("K1_flag")
    if OPT["w1warm"]:
        a(f"s_cmp_eq_u32 s{sI}, 0")
        a("s_cbranch_scc1 K1_fl2")
    a("s_waitcnt vmcnt(0)")
    a.label("K1_fl2")
    stamp2(a, 2, 5, sI)
    a("s_barrier")
    stamp2(a, 3, 6, sI)
    a.ext(head())
    if OPT["mst"]:
        a(f"s_mov_b32 s{sH+2}, 0")
        a(f"s_mov_b32 s{sST0}, 0")
        a(f"s_mov_b32 s{sST1}, 0")
    a(f"s_cmp_eq_u32 s{sGRP}, 0")
    a("s_cbranch_scc1 K1_regA")
    a("s_barrier")
    a("s_branch K1_regB")

    def accr(ct, tt): return ACC + (((ct >> 1) * 3 + tt) * 2 + (ct & 1)) * 4
    NT = OPT["ntail"]
    MST = OPT["mst"]
    def store(kind, cp, tt):
        keep = kind == "regk" or (kind != "tail" and (OPT["stm"] >> (cp * 3 + tt)) & 1)
        return (f"buffer_store_dwordx4 {q(ACC + (cp * 3 + tt) * 8 + 4 * MST)}, v{vST}, s[{sH}:{sH+3}], s{(sST0, sST1)[cp]} offen offset:{tt*1024}"
                + (" nt" if OPT["st_nt"] and not keep else ["", " sc1", " sc0 sc1", " sc0"][OPT["kf"]]))
    def step(kind, grp):
        tag = kind + "AB"[grp]
        BG = OPT["bg"] if grp == 0 else OPT["bgb"]
        if kind == "tail":
            a.label(f"K1_pre{tag}")
            if OPT["npf"]:
                a("s_getpc_b64 s[60:61]")
                a.label(f"K1_pc{tag}")
                a(f"v_lshlrev_b32 v{TMP}, 7, v0")
                a(f"v_min_u32 v{TMP}, K3_end-K1_fin, v{TMP}")
                a(f"v_add_u32 v{TMP}, K1_fin-K1_pc{tag}, v{TMP}")
                a(f"v_mov_b32 v{TMP+3}, s61")
                a(f"v_add_co_u32 v{TMP+2}, vcc, s60, v{TMP}")
                a(f"s_mov_b32 m0, {L_DW + 2048}")
                a("s_nop 0")
                a(f"v_addc_co_u32 v{TMP+3}, vcc, 0, v{TMP+3}, vcc")
                a(f"global_load_lds_dword {q(TMP+2, 2)}, off")
            if OPT["wb"] and grp == 1:
                assert NT <= 2
                a(f"s_cmp_lg_u32 s{sWV}, 4")
                a(f"s_cbranch_scc1 K1_{tag}")
                a(f"s_cmp_ge_u32 s2, {OPT['wb']}")
                a(f"s_cbranch_scc1 K1_{tag}")
                a("buffer_wbl2 sc1")
        a(".p2align 6")
        a.label(f"K1_{tag}")
        a(f"s_setprio {OPT['pm']}")
        P = dma()
        misc = [[f"s_add_u32 s{sRDS}, s{sRDS}, 49152", f"s_cmp_eq_u32 s{sRDS}, 147456", f"s_cselect_b32 s{sRDS}, 0, s{sRDS}",
                 f"s_mul_i32 s{sST0}, s{sSIG}, {2 * CHUNK_H}", f"s_add_u32 s{sST0}, s{sST0}, s{sHB}"],
                [f"s_cmp_eq_u32 s{sSIG}, s{sDSP}", f"s_cselect_b32 s{sH}, s{sOUTlo}, s{sWSlo}", f"s_cselect_b32 s{sH+1}, s{sOUThi}, s{sWShi}",
                 f"s_cselect_b32 s{sST0}, s59, s{sST0}", f"s_mov_b32 s{sT1}, {XBYTES}", f"s_cselect_b32 s{sH+2}, s{sT1}, {TAIL}"],
                [f"s_add_u32 s{sST1}, s{sST0}, {CHUNK_H}", f"s_add_u32 s{sI}, s{sI}, 1"]]
        def atoms(L):
            out = []; hold = False
            for x in L:
                if hold: out[-1].append(x)
                else: out.append([x])
                if x.startswith("s_cbranch"): hold = True
                if x.endswith(":"): hold = False
            return out
        early = atoms([x for m_ in misc for x in m_])
        if kind == "pre":
            late = [f"s_mov_b32 s{sCW}, s{sDSL}", f"s_mov_b32 s{sXB}, s{sXN}", f"s_add_u32 s{sCW2}, s{sDSL}, 49152",
                    f"s_cmp_ge_u32 s{sCW2}, 147456", f"s_cselect_b32 s{sCW2}, s{sD0}, s{sCW2}"] + [x for n_ in range(3) for x in xdma(n_, OPT["xp_nt"])]
        elif kind == "last": late = [x for n_ in range(3, 6) for x in xdma(n_, OPT["xp_nt"])]
        elif kind == "tail" and NT <= 2: late = ["s_nop 0"] * 8
        else: late = [x for p in P for x in p]
        late = atoms(late)
        if MST:
            ST = [[store(kind, cp, tt)] for cp in range(2) for tt in range(3)]
            ind = early[:3] + early[-1:]; dep = early[3:-1]
            if grp == 0:
                early = [ST[0], ind[0], ind[1], ST[1], ind[2], ind[3], ST[2], [], ST[3], [], ST[4], [], ST[5]] + dep[:2]
                late = late + dep[2:]
            else:
                seq = late + ind
                lastd = max([z for z, x in enumerate(seq) if x[0].startswith("buffer")] or [6])
                for z, pos in reversed(list(enumerate([0, 3, 6, lastd + 2, lastd + 3 + (len(late) > lastd + 3), lastd + 4 + 2 * (len(late) > lastd + 3)]))): seq.insert(pos, ST[z])
                early, late = seq + dep, []
            nafter = 3
        elif grp == 1: early, late = late + early, []
        nse = sum(1 for x in early if x and x[0].startswith("buffer_store"))
        SPR = OPT["spr"]
        for g in range(12):
            a("s_waitcnt lgkmcnt(0)")
            k = 0
            ct = g // 3
            R = [x for j in range(4) for x in rd((g + 1) * 4 + j)] if g < 11 else []
            xo = None
            if len(R) == 9: R = R[1:]
            if 0 < g + 2 < 12 and (g + 2) % 3 == 0: xo = rd((g + 2) * 4)[0]
            if OPT["rpg"] == 2: R = [R[2*z] + "\n" + R[2*z+1] for z in range(len(R) // 2)]
            if OPT["rpg"] == 3: R = [R[0] + "\n" + R[1], R[2] + "\n" + R[3]] + R[4:] if R else R
            for tt in range(3):
                for j in range(4):
                    i = g * 4 + j; ks = i % 12
                    c = "0" if ks == 0 else q(accr(ct, tt))
                    a(f"v_mfma_f32_16x16x32_bf16 {q(accr(ct, tt))}, {q(XN + 48*tt + 4*ks)}, {q(buf(i))}, {c}")
                    if k < len(R): a(R[k])
                    elif k == 11 and xo: a(xo)
                    elif g == BG and grp == 0 and k == 9:
                        assert not early
                        if kind != "last" and not OPT["k1nv"] & 1: a(f"s_waitcnt vmcnt({nse if MST else 6})")
                        a("s_barrier")
                        early, late = late, []
                    else:
                        for _ in range(SPR):
                            if early:
                                at = early.pop(0); a.ext(at)
                                if at and at[0].startswith("buffer_store"): assert g < (3 if f"s{sST0} " in at[0] else 9), (g, at)
                                if not at or at[0].startswith("buffer"): break
                    k += 1
        assert not early and not late
        a(f"s_setprio {OPT['pg0']}")
        if kind == "last": a.ext(xaddr())
        def gbar():
            if kind == "tail":
                a(f"s_cmp_eq_u32 s{sI}, 36")
                a(f"s_cbranch_scc1 K1_nogb")
            if kind != "pre" and not (kind == "tail" and NT <= 2) and not OPT["k1nv"] & 2: a(f"s_waitcnt vmcnt({nafter if MST else nb - len(pend)})")
            a("s_barrier")
            if kind == "tail": a.label("K1_nogb")
        nb = 0; pend = []
        for cp in range(2):
            for tt in range(3):
                b = ACC + (cp * 3 + tt) * 8
                GB = gelu_batch(b, TMP, SS + 2 * cp, tt == 0, sC0, sC0H)
                if OPT["gbo"] and nb == OPT["gb"] and grp == 1 and kind != "last":
                    a.ext(GB[:OPT["gbo"]]); gbar(); a.ext(GB[OPT["gbo"]:])
                else: a.ext(GB)
                if not MST or kind == "last": pend.append(store(kind, cp, tt))
                if kind == "last" or nb + 1 >= OPT["lst"]:
                    a.ext(pend); pend = []
                if kind == "last":
                    a(f"s_waitcnt vmcnt({13 + 3 * nb if nb < 3 else 11 + nb})")
                    a.ext(xread(nb))
                    a("s_waitcnt lgkmcnt(0)")
                    a.ext(xdma(nb + 6, OPT["xp_nt"]))
                nb += 1
                if nb == OPT["gb"] and grp == 1 and kind != "last" and not OPT["gbo"]: gbar()
                if nb == OPT["gp"]: a(f"s_setprio {OPT['pg1']}")
                if nb == OPT["hd"] and kind != "last": a.ext(head())
            if not OPT["sdot"]:
                a(f"v_permlane16_swap_b32 v{SS+2*cp}, v{SS+2*cp+1}")
                if cp == 0: a("s_nop 0")
                a(f"v_add_f32 v{SS+2*cp}, v{SS+2*cp}, v{SS+2*cp+1}")
        if OPT["sdot"]:
            for tt in range(3):
                for i in range(2):
                    for c in range(4):
                        p = ACC + ((c >> 1) * 3 + tt) * 8 + 2 * (c & 1) + i + 4 * MST
                        a(f"v_dot2_f32_bf16 v{SS+c}, v{p}, v{p}, 0" if tt == 0 and i == 0 else (f"v_dot2_f32_bf16 v{SS+c}, v{p}, v{p}, v{SS+c}" if OPT["sdot"] == 1 else f"v_dot2c_f32_bf16 v{SS+c}, v{p}, v{p}"))
                    if pend: a(pend.pop(0))
                    if OPT["hd"] == 7 and kind != "last":
                        H_ = head(); z = tt * 2 + i
                        a.ext(H_[:3] if z == 0 else H_[1 + 2 * z: 3 + 2 * z])
            a(f"s_add_u32 s{sT1}, s{sSIG}, 1")
            a(f"v_permlane16_swap_b32 v{SS}, v{SS+1}")
            a(f"s_cmp_eq_u32 s{sT1}, s{sSHI}")
            a(f"v_permlane16_swap_b32 v{SS+2}, v{SS+3}")
            a(f"v_add_f32 v{SS}, v{SS}, v{SS+1}")
            a(f"v_add_f32 v{SS+2}, v{SS+2}, v{SS+3}")
        else:
            a(f"s_add_u32 s{sT1}, s{sSIG}, 1")
            a(f"s_cmp_eq_u32 s{sT1}, s{sSHI}")
        a(f"s_cselect_b32 s{sT1}, s{sSLO}, s{sT1}")
        a("s_nop 0")
        a(f"v_permlane32_swap_b32 v{SS}, v{SS+2}")
        a(f"v_add_f32 v{SS}, v{SS}, v{SS+2}")
        a(f"s_set_gpr_idx_on s{sSIG}, gpr_idx(SRC0,DST)")
        a(f"s_mov_b32 s{sSIG}, s{sT1}")
        a(f"v_add_f32 v{SQ}, v{SQ}, v{SS}")
        a("s_set_gpr_idx_off")
        if kind in ("reg", "regk"):
            g_ = "AB"[grp]
            if OPT["kmask"]:
                a(f"s_cmp_eq_u32 s{sI}, s{sEND}")
                a(f"s_cbranch_scc1 K1_out{g_}")
                a(f"s_bitcmp1_b32 s{sKM}, s{sSIG}")
                a(f"s_cbranch_scc{int(kind == 'regk')} K1_{tag}")
                if kind == "reg": a(f"s_branch K1_regk{g_}")
            else:
                a(f"s_cmp_lg_u32 s{sI}, s{sEND}")
                a(f"s_cbranch_scc1 K1_{tag}")
            if kind == "reg":
                a.label(f"K1_out{g_}")
                a(f"s_cmp_eq_u32 s{sI}, {36 - NT}")
                a(f"s_cbranch_scc1 K1_pretail{g_}")
        elif kind == "pre":
            pass
        elif kind == "last":
            a("s_branch K1_sw")
        else:
            a(f"s_cmp_lg_u32 s{sI}, 36")
            a(f"s_cbranch_scc1 K1_{tag}")
            a("s_branch K1_fin")
    for grp in range(2):
        for kind in (("regk",) if OPT["kmask"] else ()) + ("reg", "pre", "last", "tail"): step(kind, grp)
    a.label("K1_sw")
    a("s_setprio 0")
    a("s_mov_b64 vcc, -1")
    stamp(a, 4)
    a(f"s_mov_b32 s{sEND}, {36 - NT}")
    a(f"s_mov_b32 s{sSLO}, s{sSLN}")
    a(f"s_mov_b32 s{sSHI}, s{sSHN}")
    a(f"s_add_u32 s{sSIG}, s{sSLO}, s{sSG0}")
    a(f"s_mov_b32 s{sHB}, s{sHN}")
    a(f"s_mov_b32 s{sDSP}, s{sDSN}")
    a(f"s_and_b32 s{sT2}, s2, {NREP - 1}")
    a(f"s_lshl_b32 s{sT2}, s{sT2}, 2")
    a("s_waitcnt lgkmcnt(0)")
    a(f"v_mov_b32 v{vFL}, 0")
    a(f"buffer_load_dword v{vFL+1}, v{vFL}, s[{sDB}:{sDB+3}], s{sT2} offen offset:64 sc0 sc1")
    if OPT["w2pf"]:
        a("s_load_dwordx2 s[60:61], s[0:1], 24")
        a(f"s_mov_b32 s62, {C * F * 2}")
        a("s_mov_b32 s63, 0x00020000")
        a(f"s_mul_i32 s{sT0}, s2, 4608")
        a(f"v_lshlrev_b32 v{BB+10}, 7, v0")
        a(f"v_min_u32 v{BB+10}, 4480, v{BB+10}")
        a("s_waitcnt lgkmcnt(0)")
        a(f"s_cmp_lg_u32 s{sWV}, 0")
        a("s_cbranch_scc1 K1_ln")
        a(f"buffer_load_dword v{BB+11}, v{BB+10}, s[60:63], s{sT0} offen")
    a("s_branch K1_ln")
    a.label("K1_fin")
    a("s_setprio 0")
    if MST:
        for cp in range(2):
            for tt in range(3): a(store("tail", cp, tt))
    stamp(a, 7)
    a(f"s_and_b32 s{sT0}, s2, {NREP - 1}")
    a("s_waitcnt lgkmcnt(0)" if NT <= 2 else "s_waitcnt vmcnt(6) lgkmcnt(0)")
    a("s_barrier")
    a("v_and_b32 v1, 63, v0")
    a("v_lshlrev_b32 v1, 2, v1")
    a(f"v_add_u32 v1, s{sD0}, v1")
    for k in range(24): a(f"ds_write_b32 v1, v{SQ+k} offset:{k*256}")
    a("v_lshlrev_b32 v1, 2, v0")
    a("s_waitcnt lgkmcnt(0)")
    a("s_barrier")
    for k in range(3):
        for w in range(8): a(f"ds_read_b32 v{XN+8*k+w}, v1 offset:{w*6144 + k*2048}")
    srd(a, 60, sWSlo, sWShi, NREP * 6144, SSQ)
    a(f"s_mul_i32 s{sT0}, s{sT0}, 6144")
    a(f"s_add_u32 s{sT1}, s{sT0}, 4096")
    a("s_waitcnt lgkmcnt(0)")
    for st in (4, 2, 1):
        for k in range(3):
            for w in range(st): a(f"v_add_f32 v{XN+8*k+w}, v{XN+8*k+w}, v{XN+8*k+w+st}")
    a(f"buffer_atomic_add_f32 v{XN}, v1, s[60:63], s{sT0} offen")
    a(f"buffer_atomic_add_f32 v{XN+8}, v1, s[60:63], s{sT0} offen offset:2048")
    a(f"buffer_atomic_add_f32 v{XN+16}, v1, s[60:63], s{sT1} offen")
    if OPT["stamp"]: a("s_waitcnt vmcnt(0)")
    stamp(a, 8)
    stamp_dump(a, 9, sWV, "K1", 0)
    if OPT["fuse"]:
        a("s_waitcnt vmcnt(0)")
        a("s_barrier")
        for i_ in range(4): a(f"s_mov_b32 s{48+i_}, s{sDB+i_}" if i_ < 3 else f"s_mov_b32 s51, 0x00020000")
        a(f"s_cmp_lg_u32 s{sWV}, 0")
        a("s_cbranch_scc1 K1_tk")
        a("v_lshlrev_b32 v2, 8, v0")
        a("v_mov_b32 v3, 1")
        a("buffer_atomic_add v3, v2, s[48:51], 0 offen offset:128 sc0")
        a(f"v_mov_b32 v2, {L_DW}")
        a("s_waitcnt vmcnt(0)")
        a("v_readfirstlane_b32 s2, v3")
        a("s_nop 1")
        a("v_mov_b32 v3, s2")
        a("ds_write_b32 v2, v3")
        a("s_waitcnt lgkmcnt(0)")
        a.label("K1_tk")
        a("s_barrier")
        a(f"v_mov_b32 v2, {L_DW}")
        a("ds_read_b32 v3, v2")
        a("s_waitcnt lgkmcnt(0)")
        a("v_readfirstlane_b32 s2, v3")
        a("s_nop 3")
        a("s_sub_u32 s2, s2, 232")
        a("s_cmp_ge_u32 s2, 24")
        a("s_cbranch_scc1 K1_end")
        k2(a)
    a.label("K1_end")
    a("s_endpgm")
    return a, desc("gemm1_kernel", 256, 100), f"; @launch kernel=gemm1_kernel grid=(256,1,1) block=(512,1,1) lds={L_DW + 4096}"

T1B = 46 * CHUNK_H; T2B = 94 * CHUNK_H
def k3r():
    REG = 3 * 192 * 768
    a = Asm()
    ACC = 16; HB = 160; WB = 184; SEL = 208; BIAS = 216; XT = 240
    vD0, vWR, vHR0, vHR1, vXR, vOUT, vWB0, vHB0, vHB1 = 1, 4, 5, 6, 7, 8, 9, 10, 11
    L_H = 73728; L_X = 147456
    sD, sO = 8, 12
    (sWV, sTH, sCQ, sSrc, sDst, sSlot, sDLo, sDEnd, sT0, sT1, sWS, sHS, sPASS, sOB, sEV, sT2, sJd, sLag, sSrc3, sSrcL, sSrcL3, sLim, sHalf, sDP, sHlo, sHhi) = range(30, 56)
    STG = OPT["stg"]; NB = (5 * STG + 1 + 3) // 4 * 4
    kernel_start(a, "gemm2_kernel")
    a("s_cmp_ge_u32 s2, 256")
    a("s_cbranch_scc1 K3_end")
    stamp(a, 0)
    a("s_load_dwordx2 s[4:5], s[0:1], 0")
    a("s_load_dwordx2 s[6:7], s[0:1], 48")
    a("s_load_dwordx2 s[24:25], s[0:1], 64")
    code_prefetch(a, "gemm2_kernel", "K3_end", 100, 60)
    a("v_lshrrev_b32 v16, 6, v0")
    a("v_and_b32 v17, 63, v0")
    a(f"v_readfirstlane_b32 s{sWV}, v16")
    a(f"v_lshlrev_b32 v{vD0}, 4, v17")
    a(f"v_add_u32 v{vD0+1}, 1024, v{vD0}")
    a(f"v_add_u32 v{vD0+2}, 2048, v{vD0}")
    a("v_and_b32 v18, 15, v17")
    a("v_lshrrev_b32 v19, 4, v17")
    a("v_mul_u32_u24 v20, 24, v18")
    a(f"s_lshr_b32 s{sTH}, s{sWV}, 2")
    a(f"s_and_b32 s{sCQ}, s{sWV}, 3")
    a(f"s_mov_b32 s{sD+3}, 0x00020000")
    a(f"s_mov_b32 s{sO+3}, 0x00020000")
    a(f"s_mov_b32 s{sO+2}, 0")
    a(f"s_mul_i32 s{sT0}, s2, {REG}")
    a(f"s_and_b32 s{sHalf}, s{sWV}, 1")
    a(f"s_mul_i32 s{sHalf}, s{sHalf}, 6144")
    a(f"s_mul_i32 s{sT1}, s2, {HSTRIDE}")
    a(f"s_mov_b32 s{sJd}, 0")
    a(f"s_mov_b32 s{sLag}, 0")
    a(f"s_mov_b32 s{sDP}, 0")
    a(f"s_mov_b32 s{sSrc}, s{sHalf}")
    a("s_waitcnt lgkmcnt(0)")
    a(f"s_add_u32 s{sO}, s6, s{sT0}")
    a(f"s_addc_u32 s{sO+1}, s7, 0")
    a(f"s_add_u32 s{sHlo}, s24, s{sT1}")
    a(f"s_addc_u32 s{sHhi}, s25, 0")
    srd(a, 16, 24, 25, 1536 * NBP, B2)
    a(f"s_mul_i32 s{sT1}, s{sCQ}, 384")
    for p in range(NBP):
        a(f"buffer_load_dwordx3 {q(24 + 8*p, 3)}, v20, s[16:19], s{sT1} offen")
        a(f"buffer_load_dwordx3 {q(28 + 8*p, 3)}, v20, s[16:19], s{sT1} offen offset:12")
        if p < NBP - 1: a(f"s_add_u32 s{sT1}, s{sT1}, 1536")

    nt = " nt" if OPT["h_nt"] else ""
    def pieces_w():
        P = []
        for k in range(6):
            pre = [f"s_mov_b32 m0, s{sDst}", f"s_add_u32 s{sT2}, s{sSrc}, 3072"] if k == 0 else ["s_add_u32 m0, m0, 1024", "s_nop 0"]
            P.append(pre + [f"buffer_load_dwordx4 v{vD0 + k % 3}, s[{sD}:{sD+3}], s{sSrc if k < 3 else sT2} offen lds"])
        P[5] += [f"s_add_u32 s{sDst}, s{sDst}, 24576", f"s_cmp_eq_u32 s{sDst}, s{sDEnd}", f"s_cselect_b32 s{sDst}, s{sDLo}, s{sDst}",
                 f"s_add_u32 s{sSrc}, s{sSrc}, 24576", f"s_cmp_ge_u32 s{sSrc}, 1179648", f"s_cselect_b32 s{sSrc}, s{sDLo}, s{sSrc}"]
        return P
    uid = [0]
    def pieces_h():
        P = []
        for k in range(6):
            if k == 0:
                P.append([f"s_mov_b32 m0, s{sDst}", f"s_add_u32 s{sSrc3}, s{sSrc}, 3072",
                          f"buffer_load_dwordx4 v{vD0}, s[{sD}:{sD+3}], s{sSrc} offen{nt} lds",
                          f"s_sub_u32 s{sSrcL}, s{sSrc}, s{sLag}", f"s_sub_u32 s{sSrcL3}, s{sSrc3}, s{sLag}"])
            else:
                P.append(["s_add_u32 m0, m0, 1024", f"s_cmp_lt_u32 s{sJd}, {STG * k}",
                          f"s_cselect_b32 s{sT2}, s{sSrcL if k < 3 else sSrcL3}, s{sSrc if k < 3 else sSrc3}",
                          f"buffer_load_dwordx4 v{vD0 + k % 3}, s[{sD}:{sD+3}], s{sT2} offen{nt} lds"])
        uid[0] += 1; u = uid[0]
        P[5] += [f"s_add_u32 s{sDst}, s{sDst}, s{sSlot}", f"s_cmp_eq_u32 s{sDst}, s{sDEnd}", f"s_cselect_b32 s{sDst}, s{sDLo}, s{sDst}",
                 f"s_add_u32 s{sSrc}, s{sSrc}, 12288", f"s_cmp_ge_u32 s{sSrc}, s{sLim}", f"s_cselect_b32 s{sD+2}, 0, s{sD+2}",
                 f"s_add_u32 s{sJd}, s{sJd}, 1", f"s_cmp_lt_u32 s{sJd}, 46", f"s_cbranch_scc1 K3_av{u}",
                 f"s_add_u32 s{sT2}, s{sJd}, s{sDP}", f"s_cmp_lg_u32 s{sT2}, 46", f"s_cbranch_scc1 K3_aw{u}",
                 f"s_mov_b32 s{sD}, s{sO}", f"s_mov_b32 s{sD+1}, s{sO+1}", f"s_mov_b32 s{sD+2}, {REG}", f"s_add_u32 s{sSrc}, s{sHalf}, {2 * 192 * 768}",
                 f"K3_aw{u}:", f"s_cmp_lg_u32 s{sJd}, 48", f"s_cbranch_scc1 K3_av{u}",
                 f"s_mov_b32 s{sJd}, 0", f"s_mov_b32 s{sLag}, {48 * CHUNK_H}", f"s_cmp_lg_u32 s{sDP}, 0", f"s_cbranch_scc1 K3_av{u}",
                 f"s_mov_b32 s{sDP}, 100", f"s_mov_b32 s{sLag}, {46 * CHUNK_H}", f"s_mov_b32 s{sD}, s{sHlo}", f"s_mov_b32 s{sD+1}, s{sHhi}",
                 f"s_mov_b32 s{sD+2}, {HSTRIDE}", f"s_add_u32 s{sSrc}, s{sHalf}, {T1B}",
                 f"K3_av{u}:"]
        return P

    a(f"s_cmp_lt_u32 s{sWV}, 4")
    a("s_cbranch_scc1 K3_rw")
    a(f"s_cmp_ge_u32 s{sWV}, 6")
    a("s_cbranch_scc1 K3_rx")
    a(f"s_mov_b32 s{sD}, s{sHlo}")
    a(f"s_mov_b32 s{sD+1}, s{sHhi}")
    a(f"s_mov_b32 s{sD+2}, {HSTRIDE}")
    a(f"s_add_u32 s{sDLo}, s{sHalf}, {L_H}")
    a(f"s_mov_b32 s{sDst}, s{sDLo}")
    a(f"s_add_u32 s{sDEnd}, s{sDLo}, 73728")
    a(f"s_mov_b32 s{sSlot}, {CHUNK_H}")
    a(f"s_mov_b32 s{sLim}, -1")
    a(f"s_mov_b32 s{sT1}, 5")
    a.label("K3_hpro")
    for p in pieces_h(): a.ext(p)
    a(f"s_sub_u32 s{sT1}, s{sT1}, 1")
    a(f"s_cmp_lg_u32 s{sT1}, 0")
    a("s_cbranch_scc1 K3_hpro")
    a("s_mov_b64 s[56:57], 0")
    a("s_branch K3_rdone")
    a.label("K3_rx")
    a(f"s_add_u32 s{sD}, s4, s{sT0}")
    a(f"s_addc_u32 s{sD+1}, s5, 0")
    a(f"s_mov_b32 s{sD+2}, {REG}")
    for m in range(3):
        v = vD0 + m
        a(f"v_mul_u32_u24 v20, 43691, v{v}")
        a("v_lshrrev_b32 v20, 25, v20")
        a("v_mul_u32_u24 v21, 864, v20")
        a(f"v_sub_u32 v21, v{v}, v21")
        a("v_add_u32 v22, 768, v21")
        a("v_cmp_gt_i32 vcc, 0, v21")
        a("v_mul_u32_u24 v20, 768, v20")
        a("s_nop 0")
        a("v_cndmask_b32 v21, v21, v22, vcc")
        a(f"v_add_u32 v{v}, v20, v21")
    a(f"s_add_u32 s{sDLo}, s{sHalf}, {L_X}")
    a(f"s_mov_b32 s{sDEnd}, 0")
    a(f"s_mov_b32 s{sSlot}, 0")
    a(f"s_mov_b32 s{sDst}, s{sDLo}")
    a(f"s_mov_b32 s{sLim}, {REG}")
    a("s_mov_b64 s[56:57], -1")
    a("s_branch K3_rdone")
    a.label("K3_rw")
    a(f"s_add_u32 s{sD}, s24, {W2F}")
    a(f"s_addc_u32 s{sD+1}, s25, 0")
    a(f"s_mov_b32 s{sD+2}, 1179648")
    a(f"s_mul_i32 s{sDLo}, s{sCQ}, 6144")
    a(f"s_add_u32 s{sDEnd}, s{sDLo}, 73728")
    a(f"s_mov_b32 s{sDst}, s{sDLo}")
    a(f"s_mov_b32 s{sSrc}, s{sDLo}")
    for _ in range(2):
        for p in pieces_w(): a.ext(p)
    a("s_mov_b64 s[56:57], 0")
    a.label("K3_rdone")
    a(f"v_mul_u32_u24 v{vOUT}, 3072, v19")
    a("v_mul_u32_u24 v21, 12, v18")
    a(f"s_mul_i32 s{sT0}, s{sTH}, {96 * 768}")
    a(f"s_mul_i32 s{sT1}, s{sCQ}, 192")
    a(f"s_add_u32 s{sT0}, s{sT0}, s{sT1}")
    a(f"v_add3_u32 v{vOUT}, v{vOUT}, v21, s{sT0}")
    a(f"s_mul_i32 s{sT0}, s{sCQ}, 6144")
    a(f"v_lshl_add_u32 v{vWB0}, v17, 4, s{sT0}")
    a("v_and_b32 v21, 3, v18")
    a("v_lshrrev_b32 v22, 2, v18")
    a("v_and_b32 v23, 2, v19")
    a("v_xor_b32 v23, v23, v21")
    a("v_lshl_add_u32 v22, v23, 2, v22")
    a("v_lshl_add_u32 v22, v21, 4, v22")
    a("v_lshlrev_b32 v22, 4, v22")
    a("v_and_b32 v23, 1, v19")
    a("v_lshl_add_u32 v22, v23, 3, v22")
    a(f"s_mul_i32 s{sT0}, s{sTH}, 6144")
    a(f"s_add_u32 s{sT0}, s{sT0}, {L_H}")
    a(f"v_add_u32 v{vHB0}, s{sT0}, v22")
    a(f"v_xor_b32 v{vHB1}, 64, v{vHB0}")
    a(f"s_lshl_b32 s{sT0}, s{sCQ}, 2")
    a("v_lshl_add_u32 v22, v21, 1, v19")
    a(f"v_add_u32 v22, s{sT0}, v22")
    a("v_and_b32 v22, 15, v22")
    a("v_mul_u32_u24 v22, 48, v22")
    a("v_mul_u32_u24 v23, 768, v18")
    a(f"v_add_u32 v22, {L_X}, v22")
    a(f"v_add_u32 v{vXR}, v22, v23")
    a("v_lshrrev_b32 v22, 2, v18")
    a("v_cmp_eq_u32 vcc, v22, v19")
    a("v_mov_b32 v23, 0x3f80")
    a("s_nop 0")
    a("v_cndmask_b32 v23, 0, v23, vcc")
    for e in range(4):
        a(f"v_cmp_eq_u32 vcc, {e}, v21")
        a("s_nop 1")
        a(f"v_cndmask_b32 v{SEL+e}, 0, v23, vcc")
        a(f"v_lshlrev_b32 v{SEL+4+e}, 16, v{SEL+e}")
    a("s_mov_b64 vcc, s[56:57]")
    a(f"s_mov_b32 s{sWS}, 0")
    a(f"s_mov_b32 s{sHS}, 0")
    a(f"s_mov_b32 s{sPASS}, 0")
    a(f"s_mov_b32 s{sOB}, 0")
    a("s_waitcnt vmcnt(24)")
    a(f"s_cmp_eq_u32 s{sSlot}, {CHUNK_H}" if False else f"s_sub_u32 s{sT0}, s{sWV}, 4")
    a(f"s_cmp_lt_u32 s{sT0}, 2")
    a("s_cbranch_scc1 K3_pw")
    a("s_waitcnt vmcnt(6)")
    a("s_cbranch_vccz K3_pw")
    a("s_waitcnt vmcnt(0)")
    a.label("K3_pw")
    for p in range(1, NBP):
        for n in range(6):
            src = 24 + n if n < 3 else 25 + n
            a(f"v_add_f32 v{src}, v{src}, v{src + 8*p}")
    for n in range(6):
        src = 24 + n if n < 3 else 25 + n
        for r in range(4): a(f"v_mov_b32 v{BIAS+4*n+r}, v{src}")
    stamp(a, 1)

    def accr(n, t): return ACC + (t * 6 + n) * 4
    ofl = ["", " nt", " sc1", " sc0 sc1", " sc0"][OPT["out_nt"]]
    def mini(t):
        L = [f"s_add_u32 s{sT1}, s{sOB}, {t * 12288}"]
        for r in range(4):
            tq = XT + 4 * r if STG % 2 == 0 else (12, 252)[r % 2]
            for j in range(3): L.append(f"v_cvt_pk_bf16_f32 v{tq+j}, v{accr(2*j, t)+r}, v{accr(2*j+1, t)+r}")
            if not OPT["k3nost"]: L.append(f"buffer_store_dwordx3 {q(tq, 3)}, v{vOUT}, s[{sO}:{sO+3}], s{sT1} offen offset:{r*768}" + ofl)
        return L
    def step(grp, u, bnd):
        u4 = u % 4; tag = f"{grp}{'b' if bnd else 'l'}{u}"
        L = [f"v_add_u32 v{vWR}, s{sWS}, v{vWB0}", f"v_add_u32 v{vHR0}, s{sHS}, v{vHB0}", f"v_add_u32 v{vHR1}, s{sHS}, v{vHB1}"]
        R = []
        for t in range(6):
            R.append(f"ds_read_b128 {q(WB + 4*t)}, v{vWR} offset:{t*1024}")
            R.append(f"ds_read_b64_tr_b16 {q(HB + 4*t, 2)}, v{vHR0} offset:{t*1024}")
            R.append(f"ds_read_b64_tr_b16 {q(HB + 4*t + 2, 2)}, v{vHR1} offset:{t*1024}")
        P = pieces_w() if grp == 0 else pieces_h()
        def gd(X, z): return X if grp == 0 or u4 == 0 else [f"s_cbranch_vccnz K3_s{tag}{z}"] + X + [f"K3_s{tag}{z}:"]
        L += gd(P[0], "a") + R[:6] + gd(P[1], "b") + R[6:12] + gd(P[2], "c") + R[12:]
        if u4 == 3:
            L += [f"s_sub_u32 s{sT0}, s{sEV}, {6*grp}", f"s_cmp_lt_u32 s{sT0}, 6", f"s_cbranch_scc0 K3_xr{tag}"]
            for p in range(3):
                L.append(f"ds_read2_b32 {q(XT + 4*p, 2)}, v{vXR} offset0:{p} offset1:{p+3}")
                L.append(f"ds_read2_b32 {q(XT + 4*p + 2, 2)}, v{vXR} offset0:{p+6} offset1:{p+9}")
            L.append(f"K3_xr{tag}:")
        L += gd(P[3] + P[4] + P[5], "d")
        L += [f"s_add_u32 s{sWS}, s{sWS}, 24576", f"s_cmp_eq_u32 s{sWS}, 73728", f"s_cselect_b32 s{sWS}, 0, s{sWS}",
              f"s_add_u32 s{sHS}, s{sHS}, 12288", f"s_cmp_eq_u32 s{sHS}, 73728", f"s_cselect_b32 s{sHS}, 0, s{sHS}"]
        tb = u // STG if bnd and u % STG == 0 and u // STG < 6 else None
        def nst(back):
            if not bnd or OPT["k3nost"]: return 0
            return 4 * sum(1 for w in range(max(0, u - back), u + 1 - grp) if w % STG == 0 and w // STG < 6)
        if tb == 5:
            a(f"s_cmp_eq_u32 s{sPASS}, 3")
            a("s_cbranch_scc1 K3_fin")
        a.ext(L)
        if grp == 0:
            a("s_waitcnt lgkmcnt(0)")
            a(f"s_setprio {OPT['k3pa']}")
        else:
            if u4 == 2:
                a(f"s_cbranch_vccz K3_nx{tag}")
                a(f"s_waitcnt vmcnt({nst(2)})")
                a.label(f"K3_nx{tag}")
            a(f"s_waitcnt vmcnt({24 + nst(4)}) lgkmcnt(0)")
            a("s_barrier")
            a(f"s_setprio {OPT['k3pb']}")
        if u4 == 3:
            a(f"s_cmp_lt_u32 s{sT0}, 6")
            a(f"s_cbranch_scc0 K3_xd{tag}")
            ts = range(6) if not bnd else [t for t in range(6) if t + 6 * grp == u // 4]
            for t in ts:
                if t != ts[-1]:
                    a(f"s_cmp_lg_u32 s{sT0}, {t}")
                    a(f"s_cbranch_scc1 K3_x{tag}_{t+1}")
                for n in range(6):
                    a(f"v_mfma_f32_16x16x32_bf16 {q(accr(n, t))}, {q(XT + 4*(n >> 1))}, {q(SEL + 4*(n & 1))}, {q(accr(n, t))}")
                if t != ts[-1]:
                    a(f"s_branch K3_xd{tag}")
                    a.label(f"K3_x{tag}_{t+1}")
            a.label(f"K3_xd{tag}")
            a(f"s_add_u32 s{sEV}, s{sEV}, 1")
        def mf(t): return [f"v_mfma_f32_16x16x32_bf16 {q(accr(n, t))}, {q(HB + 4*t)}, {q(WB + 4*n)}, {q(BIAS + 4*n) if t == tb else q(accr(n, t))}" for n in range(6)]
        bar = [f"s_waitcnt vmcnt({6 + nst(1)})", "s_barrier"] if grp == 0 else []
        ns = u // STG + 1 if bnd else 6
        def full():
            order = [t for t in range(6) if t != tb] + ([tb] if tb is not None else [])
            Ms = [[x] for t in order for x in mf(t)]
            if tb is not None:
                E = mini(tb)
                pos = OPT["mp0"]
                for x in E:
                    Ms[pos].append(x)
                    if not x.startswith("s_"): pos += 1
                    if x.startswith("buffer"): pos += OPT["mpd"]
                assert pos <= 29
            e = OPT["k3eb"] if grp == 0 else 0
            Ms[35 - e] += (["s_setprio 3"] if e else []) + bar
            a.ext([x for m in Ms for x in m])
        if ns >= 6:
            full()
        else:
            a(f"s_sub_u32 s{sT2}, s{sPASS}, 1")
            a(f"s_cmp_lt_u32 s{sT2}, 2")
            a(f"s_cbranch_scc0 K3_m0{tag}")
            full()
            a(f"s_branch K3_m3{tag}")
            a.label(f"K3_m0{tag}")
            if tb is not None: a.ext(mini(tb))
            a(f"s_cmp_eq_u32 s{sPASS}, 3")
            a(f"s_cbranch_scc1 K3_m1{tag}")
            for t in range(ns): a.ext(mf(t))
            a(f"s_branch K3_m2{tag}")
            a.label(f"K3_m1{tag}")
            for t in range(ns, 6): a.ext(mf(t))
            a.label(f"K3_m2{tag}")
            a.ext(bar)
            a.label(f"K3_m3{tag}")
        a("s_setprio 0")

    a("s_barrier")
    a(f"s_cmp_lg_u32 s{sTH}, 0")
    a("s_cbranch_scc1 K3_1_tile")
    for grp in range(2):
        a.label(f"K3_{grp}_tile")
        a(f"s_cmp_eq_u32 s{sPASS}, 3")
        a(f"s_cselect_b32 s{sEV}, 100, 0")
        for u in range(NB): step(grp, u, True)
        if OPT["stamp"]: stamp2(a, 2, 4, sPASS)
        a(".p2align 6")
        a.label(f"K3_{grp}_loop")
        for u in range(4): step(grp, u, False)
        a(f"s_cmp_lg_u32 s{sEV}, 12")
        a(f"s_cbranch_scc1 K3_{grp}_loop")
        if OPT["stamp"]: stamp2(a, 3, 5, sPASS)
        a(f"s_mul_i32 s{sOB}, s{sPASS}, {192 * 768}")
        a(f"s_add_u32 s{sPASS}, s{sPASS}, 1")
        a(f"s_mov_b32 s{sO+2}, {REG}")
        a(f"s_branch K3_{grp}_tile")
    a.label("K3_fin")
    stamp(a, 6)
    a("s_nop 7")
    a.ext(mini(5))
    if OPT["stamp"]: a("s_waitcnt vmcnt(0)")
    stamp(a, 7)
    stamp_dump(a, 8, sWV, "K3", 1)
    a.label("K3_end")
    a("s_endpgm")
    return a, desc("gemm2_kernel", 256, 100), f"; @launch kernel=gemm2_kernel grid=(256,1,1) block=(512,1,1) lds={L_X + 12288}"

def k3n():
    a = Asm()
    ACC = 16; HB = 160; WB = 208; SEL = 232; XT = 240
    BV = [12, 13, 14, 15, 252, 253]
    vD0, vWR, vHR0, vHR1, vXR, vOUT, vWB0, vHB0, vHB1 = 1, 4, 5, 6, 7, 8, 9, 10, 11
    L_H = 73728; L_X = 147456
    sD, sO, sE = 8, 12, 20
    (sWV, sTH, sCQ, sSrc, sDst, sDLo, sDEnd, sT0, sT1, sWS, sHS, sJ, sOB, sEV, sT2, sSrc4, sDst4, sESrc, sEDst, sELo, sEEnd) = range(30, 51)
    REG = 3 * 192 * 768
    NA = OPT["k3wa"]; NE = (24 - 4 * NA) // 2
    kernel_start(a, "gemm2_kernel")
    a("s_cmp_ge_u32 s2, 256")
    a("s_cbranch_scc1 K3_end")
    stamp(a, 0)
    a("s_load_dwordx2 s[4:5], s[0:1], 0")
    a("s_load_dwordx2 s[6:7], s[0:1], 48")
    a("s_load_dwordx2 s[24:25], s[0:1], 64")
    a("v_lshrrev_b32 v16, 6, v0")
    a("v_and_b32 v17, 63, v0")
    a(f"v_readfirstlane_b32 s{sWV}, v16")
    a(f"v_lshlrev_b32 v{vD0}, 4, v17")
    a(f"v_mov_b32 v254, v{vD0}")
    a(f"v_add_u32 v{vD0+1}, 1024, v{vD0}")
    a(f"v_add_u32 v{vD0+2}, 2048, v{vD0}")
    a("v_and_b32 v18, 15, v17")
    a("v_lshrrev_b32 v19, 4, v17")
    a("v_mul_u32_u24 v20, 24, v18")
    a(f"s_lshr_b32 s{sTH}, s{sWV}, 2")
    a(f"s_and_b32 s{sCQ}, s{sWV}, 3")
    for s_ in (sD, sO, sE): a(f"s_mov_b32 s{s_+3}, 0x00020000")
    a(f"s_mov_b32 s{sO+2}, {REG}")
    DF = OPT["k3df"]; N0 = OPT["k3n0"]; N1 = OPT["k3n1"]; N2 = 18 - N0 - N1
    a(f"s_mul_i32 s{sT0}, s2, {REG}")
    a(f"s_and_b32 s{sT1}, s{sWV}, 1")
    a(f"s_mul_i32 s{sELo}, s{sT1}, {NE * 1024}")
    a(f"s_add_u32 s{sELo}, s{sELo}, {4 * NA * 1024}")
    a(f"s_mul_i32 s{sT1}, s{sT1}, 6144")
    a("s_waitcnt lgkmcnt(0)")
    a(f"s_add_u32 s{sO}, s6, s{sT0}")
    a(f"s_addc_u32 s{sO+1}, s7, 0")
    a(f"s_add_u32 s{sE}, s24, {W2F}")
    a(f"s_addc_u32 s{sE+1}, s25, 0")
    a(f"s_mov_b32 s{sE+2}, 1179648")
    srd(a, 16, 24, 25, 1536 * NBP, B2)
    a(f"s_mul_i32 s{sT2}, s{sCQ}, 384")
    for p in range(NBP):
        a(f"buffer_load_dwordx3 {q(24 + 8*p, 3)}, v20, s[16:19], s{sT2} offen")
        a(f"buffer_load_dwordx3 {q(28 + 8*p, 3)}, v20, s[16:19], s{sT2} offen offset:12")
        if p < NBP - 1: a(f"s_add_u32 s{sT2}, s{sT2}, 1536")

    nt = " nt" if OPT["h_nt"] else ""
    def lin(srd_, n, sfx, src=sSrc, dst=sDst):
        P = []
        for k in range(n):
            pre = [f"s_mov_b32 m0, s{dst}"] if k == 0 else [f"s_mov_b32 m0, s{sDst4}"] if k == 4 else []
            P.append((pre, f"buffer_load_dwordx4 v254, s[{srd_}:{srd_+3}], s{src if k < 4 else sSrc4} offen offset:{(k % 4) * 1024}{sfx} lds"))
        return P
    def flat(P): return [x for pre, ld in P for x in pre + (["s_nop 0"] if pre else []) + [ld]]
    def four(): return [f"s_add_u32 s{sSrc4}, s{sSrc}, 4096", f"s_add_u32 s{sDst4}, s{sDst}, 4096"]
    def adv_w(src=sSrc, dst=sDst, lo=sDLo, end=sDEnd):
        return [f"s_add_u32 s{dst}, s{dst}, 24576", f"s_cmp_eq_u32 s{dst}, s{end}", f"s_cselect_b32 s{dst}, s{lo}, s{dst}",
                f"s_sub_u32 s{src}, s{src}, 24576", f"s_cselect_b32 s{sT2}, 1179648, 0", f"s_add_u32 s{src}, s{src}, s{sT2}"]
    def adv_src(): return [f"s_sub_u32 s{sSrc}, s{sSrc}, 12288", f"s_cselect_b32 s{sD+2}, 0, s{sD+2}", f"s_cselect_b32 s{sSrc}, 0, s{sSrc}"]
    def adv_h(): return [f"s_add_u32 s{sDst}, s{sDst}, 12288", f"s_cmp_eq_u32 s{sDst}, s{sDEnd}", f"s_cselect_b32 s{sDst}, s{sDLo}, s{sDst}"] + adv_src() + four()
    def xp():
        P = []
        for k in range(6):
            pre = [f"s_add_u32 m0, s{sDst}, {k * 1024}"]
            P.append((pre, f"buffer_load_dwordx4 v{vD0 + k % 3}, s[{sD}:{sD+3}], s{sSrc if k < 3 else sSrc4} offen{nt} lds"))
        return P
    def adv_x(): return adv_src() + [f"s_add_u32 s{sSrc4}, s{sSrc}, 3072"]

    a(f"s_cmp_lt_u32 s{sWV}, 4")
    a("s_cbranch_scc1 K3_rw")
    a(f"s_cmp_ge_u32 s{sWV}, 6")
    a("s_cbranch_scc1 K3_rx")
    a(f"s_add_u32 s{sDLo}, s{sT1}, {L_H}")
    a(f"s_mov_b32 s{sDst}, s{sDLo}")
    a(f"s_add_u32 s{sSrc}, s{sT1}, {CHUNK_H}")
    a.ext(four()); a.ext(flat(lin(sO, 6, nt)))
    a(f"s_add_u32 s{sDst}, s{sDst}, {CHUNK_H}")
    a(f"s_mov_b32 s{sSrc}, s{sT1}")
    a.ext(four()); a.ext(flat(lin(sO, 6, nt)))
    a(f"s_mul_i32 s{sT0}, s2, {HSTRIDE}")
    a(f"s_add_u32 s{sD}, s24, s{sT0}")
    a(f"s_addc_u32 s{sD+1}, s25, 0")
    a(f"s_mov_b32 s{sD+2}, {HSTRIDE}")
    a(f"s_add_u32 s{sDEnd}, s{sDLo}, 73728")
    a(f"s_add_u32 s{sDst}, s{sDst}, {CHUNK_H}")
    a(f"s_add_u32 s{sSrc}, s{sT1}, {HSTRIDE - CHUNK_H}")
    a.ext(four())
    for _ in range(3):
        a.ext(flat(lin(sD, 6, nt))); a.ext(adv_h())
    a("s_branch K3_rdone")
    a.label("K3_rx")
    a(f"s_add_u32 s{sEEnd}, s{sELo}, 73728")
    a(f"s_mov_b32 s{sEDst}, s{sELo}")
    a(f"s_add_u32 s{sESrc}, s{sELo}, {47 * 24576}")
    if NE:
        for _ in range(2):
            a.ext(flat(lin(sE, NE, "", sESrc, sEDst))); a.ext(adv_w(sESrc, sEDst, sELo, sEEnd))
    a(f"s_add_u32 s{sD}, s4, s{sT0}")
    a(f"s_addc_u32 s{sD+1}, s5, 0")
    a(f"s_mov_b32 s{sD+2}, {REG}")
    for m in range(3):
        v = vD0 + m
        a(f"v_mul_u32_u24 v20, 43691, v{v}")
        a("v_lshrrev_b32 v20, 25, v20")
        a("v_mul_u32_u24 v21, 864, v20")
        a(f"v_sub_u32 v21, v{v}, v21")
        a("v_add_u32 v22, 768, v21")
        a("v_cmp_gt_i32 vcc, 0, v21")
        a("v_mul_u32_u24 v20, 768, v20")
        a("s_nop 0")
        a("v_cndmask_b32 v21, v21, v22, vcc")
        a(f"v_add_u32 v{v}, v20, v21")
    a(f"s_add_u32 s{sDst}, s{sT1}, {L_X}")
    a(f"s_add_u32 s{sSrc}, s{sT1}, {35 * 12288}")
    a(f"s_add_u32 s{sSrc4}, s{sSrc}, 3072")
    if OPT["wwarm"]:
        a(f"s_lshr_b32 s{sT2}, s2, 3")
        a(f"s_mul_i32 s{sT2}, s{sT2}, 36864")
        a(f"s_mul_i32 s{sT0}, s{sT1}, 3")
        a(f"s_add_u32 s{sT2}, s{sT2}, s{sT0}")
        a("v_lshlrev_b32 v20, 7, v17")
        a(f"s_mov_b32 m0, {L_X}")
        for i in range(3):
            a(f"s_add_u32 s{sT0}, s{sT2}, {min(i * 8192, 18432 - 8192)}")
            a(f"buffer_load_dword v20, s[{sE}:{sE+3}], s{sT0} offen lds")
    a("s_branch K3_rdone")
    a.label("K3_rw")
    for i_ in range(3): a(f"s_mov_b32 s{sD+i_}, s{sE+i_}")
    a(f"s_mul_i32 s{sDLo}, s{sCQ}, {NA * 1024}")
    a(f"s_add_u32 s{sDEnd}, s{sDLo}, 73728")
    a(f"s_mov_b32 s{sDst}, s{sDLo}")
    a(f"s_add_u32 s{sSrc}, s{sDLo}, {47 * 24576}")
    a.ext(four())
    for _ in range(2):
        a.ext(flat(lin(sD, NA, ""))); a.ext(adv_w() + four())
    a.label("K3_rdone")
    a(f"v_mul_u32_u24 v{vOUT}, 3072, v19")
    a("v_mul_u32_u24 v21, 12, v18")
    a(f"s_mul_i32 s{sT0}, s{sTH}, {96 * 768}")
    a(f"s_mul_i32 s{sT1}, s{sCQ}, 192")
    a(f"s_add_u32 s{sT0}, s{sT0}, s{sT1}")
    a(f"v_add3_u32 v{vOUT}, v{vOUT}, v21, s{sT0}")
    a(f"s_mul_i32 s{sT0}, s{sCQ}, 6144")
    a(f"v_lshl_add_u32 v{vWB0}, v17, 4, s{sT0}")
    a("v_and_b32 v21, 3, v18")
    a("v_lshrrev_b32 v22, 2, v18")
    a("v_and_b32 v23, 2, v19")
    a("v_xor_b32 v23, v23, v21")
    a("v_lshl_add_u32 v22, v23, 2, v22")
    a("v_lshl_add_u32 v22, v21, 4, v22")
    a("v_lshlrev_b32 v22, 4, v22")
    a("v_and_b32 v23, 1, v19")
    a("v_lshl_add_u32 v22, v23, 3, v22")
    a(f"s_mul_i32 s{sT0}, s{sTH}, 6144")
    a(f"s_add_u32 s{sT0}, s{sT0}, {L_H}")
    a(f"v_add_u32 v{vHB0}, s{sT0}, v22")
    a(f"v_xor_b32 v{vHB1}, 64, v{vHB0}")
    a(f"s_lshl_b32 s{sT0}, s{sCQ}, 2")
    a("v_lshl_add_u32 v22, v21, 1, v19")
    a(f"v_add_u32 v22, s{sT0}, v22")
    a("v_and_b32 v22, 15, v22")
    a("v_mul_u32_u24 v22, 48, v22")
    a("v_mul_u32_u24 v23, 768, v18")
    a(f"v_add_u32 v22, {L_X}, v22")
    a(f"v_add_u32 v{vXR}, v22, v23")
    a("v_lshrrev_b32 v22, 2, v18")
    a("v_cmp_eq_u32 vcc, v22, v19")
    a("v_mov_b32 v23, 0x3f80")
    a("s_nop 0")
    a("v_cndmask_b32 v23, 0, v23, vcc")
    for e in range(4):
        a(f"v_cmp_eq_u32 vcc, {e}, v21")
        a("s_nop 1")
        a(f"v_cndmask_b32 v{SEL+e}, 0, v23, vcc")
        a(f"v_lshlrev_b32 v{SEL+4+e}, 16, v{SEL+e}")
    a(f"s_mov_b32 s{sWS}, 0")
    a(f"s_mov_b32 s{sHS}, 0")
    a(f"s_mov_b32 s{sJ}, 0")
    a(f"s_mov_b32 s{sOB}, {2 * 192 * 768}")
    if DF: a(f"s_mov_b32 s{sO+2}, 0")
    a(f"v_mov_b32 v{vWR}, v{vWB0}")
    a(f"v_mov_b32 v{vHR0}, v{vHB0}")
    a(f"v_mov_b32 v{vHR1}, v{vHB1}")
    a("s_waitcnt vmcnt(18)")
    a(f"s_sub_u32 s{sT0}, s{sWV}, 4")
    a(f"s_cmp_lt_u32 s{sT0}, 2")
    a("s_cbranch_scc1 K3_pw")
    a(f"s_waitcnt vmcnt({min(NA, NE) if NE else NA})" if NE else f"s_waitcnt vmcnt({NA})")
    if not NE:
        a(f"s_cmp_lt_u32 s{sWV}, 4")
        a("s_cbranch_scc1 K3_pw")
        a("s_waitcnt vmcnt(0)")
    a.label("K3_pw")
    for p in range(1, NBP):
        for n in range(6):
            src = 24 + n if n < 3 else 25 + n
            a(f"v_add_f32 v{src}, v{src}, v{src + 8*p}")
    for n in range(6): a(f"v_mov_b32 v{BV[n]}, v{24 + n if n < 3 else 25 + n}")
    stamp(a, 1)

    def accr(n, t): return ACC + (t * 6 + n) * 4
    def vmwait(strict, loose, lab):
        if loose is None or OPT["k3nost"]: return [f"s_waitcnt vmcnt({strict})"]
        return [f"s_waitcnt vmcnt({loose})", f"s_cmp_lg_u32 s{sJ}, 0", f"s_cbranch_scc1 {lab}", f"s_waitcnt vmcnt({strict})", lab + ":"]
    def epilogue():
        L = ["s_nop 7"]
        idx = 0
        for t in range(6):
            L.append(f"s_mov_b32 s{sT1}, s{sOB}" if t == 0 else f"s_add_u32 s{sT1}, s{sT1}, 12288")
            for r in range(4):
                tq = XT + 4 * (idx % 3); idx += 1
                for j in range(3): L.append(f"v_cvt_pk_bf16_f32 v{tq+j}, v{accr(2*j, t)+r}, v{accr(2*j+1, t)+r}")
                if not OPT["k3nost"]: L.append(f"buffer_store_dwordx3 {q(tq, 3)}, v{vOUT}, s[{sO}:{sO+3}], s{sT1} offen offset:{r*768}")
        L += [f"s_sub_u32 s{sOB}, s{sOB}, {192 * 768}"]
        return L
    sOT = list(range(52, 58))
    def pack():
        L = ["s_nop 7"] + [f"s_add_u32 s{sOT[t]}, s{sOB}, {t * 12288}" for t in range(6)]
        for t in range(6):
            R = accr(3, t); tq = XT + 4 * (t % 3)
            def cv(dst, r, j): return f"v_cvt_pk_bf16_f32 v{dst}, v{accr(2*j, t)+r}, v{accr(2*j+1, t)+r}"
            L += [cv(tq + j, 3, j) for j in range(3)]
            L.append(f"buffer_store_dwordx3 {q(tq, 3)}, v{vOUT}, s[{sO}:{sO+3}], s{sOT[t]} offen offset:{3*768}")
            L += [cv(R + 4*r + j, r, j) for r, j in ((2, 2), (1, 2), (1, 1), (2, 1), (0, 1), (0, 2), (0, 0), (1, 0), (2, 0))]
        return L
    def dstores(): return [f"buffer_store_dwordx3 {q(accr(3, t) + 4*r, 3)}, v{vOUT}, s[{sO}:{sO+3}], s{sOT[t]} offen offset:{r*768}" for t in range(6) for r in range(3)]
    def block(role, tag):
        grp = int(role != "w"); f = tag == "f"
        if OPT["prof"] and role == "x":
            a(f"s_cmp_lg_u32 s{sWV}, 7")
            a(f"s_cbranch_scc1 K3_np{tag}")
            a("s_memtime s[90:91]")
            a("s_waitcnt lgkmcnt(0)")
            a("v_mov_b32 v255, s90")
            a("v_mov_b32 v0, 0")
            a("buffer_store_dword v255, v0, s[84:87], s83 offen")
            a("s_add_u32 s83, s83, 4")
            a.label(f"K3_np{tag}")
        for u4 in range(4):
            g = f"{role}{tag}{u4}"
            R = [f"ds_read_b128 {q(WB + 4*t)}, v{vWR} offset:{t*1024}" for t in range(6)]
            if u4 % 2 == 0:
                for t in range(6):
                    for c in range(2):
                        R.append(f"ds_read_b64_tr_b16 {q(HB + 24*c + 4*t, 2)}, v{vHR0} offset:{c*12288 + t*1024}")
                        R.append(f"ds_read_b64_tr_b16 {q(HB + 24*c + 4*t + 2, 2)}, v{vHR1} offset:{c*12288 + t*1024}")
            if role == "w": P = lin(sD, NA, ""); post = adv_w() + four()
            elif role == "h": P = lin(sD, 6, nt); post = adv_h()
            else:
                P = lin(sE, NE, "", sESrc, sEDst) + (xp() if u4 == 0 else [])
                post = (adv_w(sESrc, sEDst, sELo, sEEnd) if NE else []) + (adv_x() if u4 == 0 else [])
            per = max(1, len(R) // max(1, len(P))) if u4 % 2 == 0 else OPT["k3ro"]
            if u4 == 3:
                a(f"s_cmp_lt_u32 s{sT0}, 6")
                a(f"s_cbranch_scc0 K3_{g}_xr")
                for p in range(3):
                    a(f"ds_read2_b32 {q(XT + 4*p, 2)}, v{vXR} offset0:{p} offset1:{p+3}")
                    a(f"ds_read2_b32 {q(XT + 4*p + 2, 2)}, v{vXR} offset0:{p+6} offset1:{p+9}")
                a.label(f"K3_{g}_xr")
            ri = 0
            for pre, ld in P:
                a.ext(pre)
                if ri < len(R): a.ext(R[ri:ri + per]); ri += per
                elif pre: a("s_nop 0")
                a(ld)
            a.ext(R[ri:])
            if u4 == 3:
                a(f"s_cmp_lt_u32 s{sT0}, 6")
                a(f"s_cbranch_scc0 K3_{g}_xn")
            if f and DF:
                if u4 == 0:
                    if OPT["stamp"]:
                        a(f"s_sub_u32 s96, s{sJ}, 48")
                        stamp2(a, 2, 4, 96)
                    a.ext(pack())
                    stamp2(a, 3, 5, 96)
                if u4 == 1: a.ext(dstores()[N0:N0 + N1])
            elif f and u4 == 0:
                a(f"s_cmp_eq_u32 s{sJ}, 0")
                a(f"s_cbranch_scc1 K3_{role}_noep")
                if OPT["stamp"]:
                    a(f"s_sub_u32 s96, s{sJ}, 48")
                    stamp2(a, 2, 4, 96)
                a.ext(epilogue())
                stamp2(a, 3, 5, 96)
                a.label(f"K3_{role}_noep")
            if f and u4 < 2:
                a("s_nop 1")
                for i in range(12): a(f"v_mov_b32 v{XT+i}, v{BV[3*u4 + i//4]}")
            def waits(z=""):
                if grp == 0: return [f"s_waitcnt lgkmcnt({15 if u4 % 2 == 0 else 0})", f"s_setprio {OPT['k3pa']}"]
                W = []
                if f and DF:
                    if role == "h" and u4 % 2: W = [f"s_waitcnt vmcnt({18 + (6 + N0 + N1 if u4 == 1 else 24)})"]
                    if role == "x":
                        assert NE
                        W = [f"s_waitcnt vmcnt({NE + (12, 12 + N0 + N1, N1 + N2, 0)[u4]})"]
                    return W + ["s_waitcnt lgkmcnt(0)", "s_barrier", f"s_setprio {OPT['k3pb']}"]
                if role == "h" and u4 % 2: W = vmwait(18, 42 if f else None, f"K3_v{g}{z}")
                if role == "x":
                    n = NE + (6 if u4 in (0, 1) else 0)
                    if NE: W = vmwait(n, n + 24 if f and u4 < 2 else None, f"K3_v{g}{z}")
                    elif u4 == 2: W = vmwait(0, 24 if f else None, f"K3_v{g}{z}")
                return W + ["s_waitcnt lgkmcnt(0)", "s_barrier", f"s_setprio {OPT['k3pb']}"]
            if u4 == 3:
                for t in range(6):
                    if t < 5:
                        a(f"s_cmp_lg_u32 s{sT0}, {t}")
                        a(f"s_cbranch_scc1 K3_{g}_x{t+1}")
                    a.ext(waits(str(t)))
                    for n in range(6):
                        a(f"v_mfma_f32_16x16x32_bf16 {q(accr(n, t))}, {q(XT + 4*(n >> 1))}, {q(SEL + 4*(n & 1))}, {q(accr(n, t))}")
                    a(f"s_branch K3_{g}_xd")
                    if t < 5: a.label(f"K3_{g}_x{t+1}")
                a.label(f"K3_{g}_xn")
                a.ext(waits())
                a.label(f"K3_{g}_xd")
            else: a.ext(waits())
            post = post + [f"s_add_u32 s{sWS}, s{sWS}, 24576", f"s_cmp_eq_u32 s{sWS}, 73728", f"s_cselect_b32 s{sWS}, 0, s{sWS}", f"v_add_u32 v{vWR}, s{sWS}, v{vWB0}"]
            if u4 % 2: post += [f"s_add_u32 s{sHS}, s{sHS}, 24576", f"s_cmp_eq_u32 s{sHS}, 73728", f"s_cselect_b32 s{sHS}, 0, s{sHS}",
                                f"v_add_u32 v{vHR0}, s{sHS}, v{vHB0}", f"v_add_u32 v{vHR1}, s{sHS}, v{vHB1}"]
            if u4 == 2: post += [f"s_sub_u32 s{sT0}, s{sEV}, {6*grp}", f"s_sub_u32 s{sEV}, s{sEV}, 1"]
            ds = []; dstep = 4
            if f and DF and u4 == 0: ds = dstores()[:N0]; dstep = 36 // N0
            if f and DF and u4 == 1:
                ds = dstores()[N0 + N1:]
                for z in range(len(ds)): assert (N0 + N1 + z) // 3 * 6 > z * dstep + 3
                post += [f"s_cmp_lg_u32 s{sJ}, 0", f"s_cselect_b32 s{sT2}, {192 * 768}, 0", f"s_sub_u32 s{sOB}, s{sOB}, s{sT2}"]
            if f and DF and u4 == 2: post += [f"s_mov_b32 s{sO+2}, {REG}"]
            k = 0
            for t in range(6):
                if grp == 0 and u4 % 2 == 0 and t >= 2: a(f"s_waitcnt lgkmcnt({20 - 4*t})")
                for n3 in range(3):
                    for c in range(2):
                        ac = q(accr(3 * (u4 % 2) + n3, t))
                        a(f"v_mfma_f32_16x16x32_bf16 {ac}, {q(HB + 24*c + 4*t)}, {q(WB + 12*c + 4*n3)}, {q(XT + 4*n3) if f and u4 < 2 and c == 0 else ac}")
                        if ds and k % dstep == 1: a(ds.pop(0))
                        elif k >= 2 and post: a(post.pop(0))
                        k += 1
            assert not post and not ds
            a("s_setprio 0")
            if grp == 0:
                if f and DF: a(f"s_waitcnt vmcnt({NA + (6 + N0, 24, N1 + N2, 0)[u4]})")
                else: a.ext(vmwait(NA, NA + 24 if f and u4 < 2 else None, f"K3_v{g}"))
                a("s_barrier")

    if OPT["prof"]:
        srd(a, 84, 24, 25, 65536, TAIL + (5 << 20))
        a("s_lshl_b32 s83, s2, 8")
    a("s_barrier")
    a(f"s_cmp_ge_u32 s{sWV}, 6")
    a("s_cbranch_scc1 K3_x_tile")
    a(f"s_cmp_ge_u32 s{sWV}, 4")
    a("s_cbranch_scc1 K3_h_tile")
    for role in "whx":
        a.label(f"K3_{role}_tile")
        a(f"s_mov_b32 s{sEV}, 11")
        block(role, "f")
        a(".p2align 6")
        a.label(f"K3_{role}_loop")
        block(role, "l")
        a(f"s_cmp_lg_u32 s{sEV}, -1")
        a(f"s_cbranch_scc1 K3_{role}_loop")
        a(f"s_add_u32 s{sJ}, s{sJ}, 48")
        a(f"s_cmp_lg_u32 s{sJ}, 144")
        a(f"s_cbranch_scc1 K3_{role}_tile")
        if role != "x": a("s_branch K3_fin")
    a.label("K3_fin")
    stamp(a, 6)
    a.ext(epilogue())
    if OPT["stamp"]: a("s_waitcnt vmcnt(0)")
    stamp(a, 7)
    stamp_dump(a, 8, sWV, "K3", 1)
    a.label("K3_end")
    a("s_endpgm")
    return a, desc("gemm2_kernel", 256, 100), f"; @launch kernel=gemm2_kernel grid=(256,1,1) block=(512,1,1) lds={L_X + 12288}"

def k3():
    a = Asm()
    ACC = 16; HB = 160; WB = 184; SEL = 208; BIAS = 216; XT = 240
    KC = OPT['k3c']
    if KC: WB = 208; SEL = 232
    HL = OPT["k3sw"] >> 1 & 1
    HV = 24 - OPT["k3he"] - 6 * HL
    BV = [12, 13, 14, 15, 252, 253]
    vD0, vWR, vHR0, vHR1, vXR, vOUT, vWB0, vHB0, vHB1 = 1, 4, 5, 6, 7, 8, 9, 10, 11
    L_H = 73728; L_X = 147456
    sD, sO = 8, 12
    (sWV, sTH, sCQ, sSrc, sDst, sSlot, sDLo, sDEnd, sLeft, sT0, sT1, sWS, sHS, sJ, sOB, sEV, sNR, sT2, sFIRST) = range(30, 49)
    REG = 3 * 192 * 768
    kernel_start(a, "gemm2_kernel")
    a("s_cmp_ge_u32 s2, 256")
    a("s_cbranch_scc1 K3_end")
    stamp(a, 0)
    a("s_load_dwordx2 s[4:5], s[0:1], 0")
    a("s_load_dwordx2 s[6:7], s[0:1], 48")
    a("s_load_dwordx2 s[24:25], s[0:1], 64")
    code_prefetch(a, "gemm2_kernel", "K3_end", 100, 60)
    a("v_lshrrev_b32 v16, 6, v0")
    a("v_and_b32 v17, 63, v0")
    a(f"v_readfirstlane_b32 s{sWV}, v16")
    a(f"v_lshlrev_b32 v{vD0}, 4, v17")
    a(f"v_add_u32 v{vD0+1}, 1024, v{vD0}")
    a(f"v_add_u32 v{vD0+2}, 2048, v{vD0}")
    a("v_and_b32 v18, 15, v17")
    a("v_lshrrev_b32 v19, 4, v17")
    a(f"s_lshr_b32 s{sT0}, s2, 4")
    a(f"s_lshl_b32 s{sT0}, s{sT0}, 4")
    a(f"s_and_b32 s{sT1}, s2, 7")
    a(f"s_lshl_b32 s{sT1}, s{sT1}, 1")
    a(f"s_add_u32 s{sT0}, s{sT0}, s{sT1}")
    a(f"s_bfe_u32 s{sT1}, s2, 0x10003")
    a(f"s_add_u32 s3, s{sT0}, s{sT1}")
    a(f"s_lshr_b32 s{sTH}, s{sWV}, 2")
    a(f"s_and_b32 s{sCQ}, s{sWV}, 3")
    a(f"s_mov_b32 s{sD+3}, 0x00020000")
    a(f"s_mov_b32 s{sO+3}, 0x00020000")
    a(f"s_mov_b32 s{sO+2}, {REG}")
    a(f"s_mul_i32 s{sT0}, s3, {REG}")
    a(f"s_and_b32 s{sT1}, s{sWV}, 1")
    a(f"s_mul_i32 s{sT1}, s{sT1}, 6144")
    a("s_waitcnt lgkmcnt(0)")
    a(f"s_add_u32 s{sO}, s6, s{sT0}")
    a(f"s_addc_u32 s{sO+1}, s7, 0")

    srd(a, 16, 24, 25, 1536 * NBP, B2)
    a("v_mul_u32_u24 v20, 24, v18")
    a(f"s_mul_i32 s{sT2}, s{sCQ}, 384")
    for p in range(NBP):
        a(f"buffer_load_dwordx3 {q(24 + 8*p, 3)}, v20, s[16:19], s{sT2} offen")
        a(f"buffer_load_dwordx3 {q(28 + 8*p, 3)}, v20, s[16:19], s{sT2} offen offset:12")
        if p < NBP - 1: a(f"s_add_u32 s{sT2}, s{sT2}, 1536")

    def pieces(srd_, sfx=""):
        P = []
        for k in range(6):
            if k == 0: pre = [f"s_mov_b32 m0, s{sDst}", f"s_add_u32 s{sT2}, s{sSrc}, 3072"]
            else: pre = ["s_add_u32 m0, m0, 1024", "s_nop 0"]
            so = sSrc if k < 3 else sT2
            P.append(pre + [f"buffer_load_dwordx4 v{vD0 + k % 3}, s[{srd_}:{srd_+3}], s{so} offen{sfx} lds"])
        return P
    def advance_w():
        return [f"s_add_u32 s{sDst}, s{sDst}, 24576", f"s_cmp_eq_u32 s{sDst}, s{sDEnd}", f"s_cselect_b32 s{sDst}, s{sDLo}, s{sDst}",
                f"s_sub_u32 s{sSrc}, s{sSrc}, 24576", f"s_cselect_b32 s{sT2}, 1179648, 0", f"s_add_u32 s{sSrc}, s{sSrc}, s{sT2}"]
    def advance_h():
        return [f"s_add_u32 s{sDst}, s{sDst}, s{sSlot}", f"s_cmp_eq_u32 s{sDst}, s{sDEnd}", f"s_cselect_b32 s{sDst}, s{sDLo}, s{sDst}",
                f"s_sub_u32 s{sSrc}, s{sSrc}, 12288", f"s_cselect_b32 s{sD+2}, 0, s{sD+2}", f"s_cselect_b32 s{sSrc}, 0, s{sSrc}"]
    nt = " nt" if OPT["h_nt"] else ""
    wnt = " nt" if OPT["w_nt"] else ""

    a(f"s_cmp_lt_u32 s{sWV}, 4")
    a("s_cbranch_scc1 K3_rw")
    a(f"s_cmp_ge_u32 s{sWV}, 6")
    a("s_cbranch_scc1 K3_rx")
    a(f"s_add_u32 s{sDLo}, s{sT1}, {L_H}")
    a(f"s_mov_b32 s{sDst}, s{sDLo}")
    a(f"s_add_u32 s{sSrc}, s{sT1}, {CHUNK_H}")
    for p in pieces(sO, nt): a.ext(p)
    a(f"s_add_u32 s{sDst}, s{sDst}, {CHUNK_H}")
    a(f"s_mov_b32 s{sSrc}, s{sT1}")
    for p in pieces(sO, nt): a.ext(p)
    a(f"s_mul_i32 s{sT0}, s3, {HSTRIDE}")
    a(f"s_add_u32 s{sD}, s24, s{sT0}")
    a(f"s_addc_u32 s{sD+1}, s25, 0")
    a(f"s_mov_b32 s{sD+2}, {0 if OPT['k3noh'] else HSTRIDE}")
    a(f"s_add_u32 s{sDEnd}, s{sDLo}, 73728")
    a(f"s_mov_b32 s{sSlot}, {CHUNK_H}")
    a(f"s_add_u32 s{sDst}, s{sDst}, {CHUNK_H}")
    a(f"s_add_u32 s{sSrc}, s{sT1}, {HSTRIDE - CHUNK_H}")
    for _ in range(3 - HL if OPT["k3bl"] else 4):
        for p in pieces(sD, nt): a.ext(p)
        a.ext(advance_h())
    for p in pieces(sD, nt)[:6 - OPT["k3he"]]: a.ext(p)
    a("s_mov_b64 vcc, 0")
    a("s_branch K3_rdone")
    a.label("K3_rx")
    a(f"s_add_u32 s{sD}, s4, s{sT0}")
    a(f"s_addc_u32 s{sD+1}, s5, 0")
    a(f"s_mov_b32 s{sD+2}, {0 if OPT['k3nox'] else REG}")
    for m in range(3):
        v = vD0 + m
        a(f"v_mul_u32_u24 v20, 43691, v{v}")
        a("v_lshrrev_b32 v20, 25, v20")
        a("v_mul_u32_u24 v21, 864, v20")
        a(f"v_sub_u32 v21, v{v}, v21")
        a("v_add_u32 v22, 768, v21")
        a("v_cmp_gt_i32 vcc, 0, v21")
        a("v_mul_u32_u24 v20, 768, v20")
        a("s_nop 0")
        a("v_cndmask_b32 v21, v21, v22, vcc")
        a(f"v_add_u32 v{v}, v20, v21")
    a(f"s_add_u32 s{sDLo}, s{sT1}, {L_X}")
    a(f"s_mov_b32 s{sDEnd}, 0")
    a(f"s_mov_b32 s{sSlot}, 0")
    a(f"s_mov_b32 s{sDst}, s{sDLo}")
    a(f"s_add_u32 s{sSrc}, s{sT1}, {35 * 12288}")
    if OPT["wwarm"]:
        srd(a, 60, 24, 25, 1179648, W2F)
        a(f"s_lshr_b32 s{sT2}, s2, 3")
        a(f"s_mul_i32 s{sT2}, s{sT2}, 36864")
        a(f"s_mul_i32 s{sT0}, s{sT1}, 3")
        a(f"s_add_u32 s{sT2}, s{sT2}, s{sT0}")
        a("v_lshlrev_b32 v20, 7, v17")
        for i in range(3):
            a(f"buffer_load_dword v{100 + i}, v20, s[60:63], s{sT2} offen")
            a(f"s_add_u32 s{sT2}, s{sT2}, 6144" if False else f"s_add_u32 s{sT2}, s{sT2}, 8192")
    if not OPT["k3bl"]:
        for p in pieces(sD, nt): a.ext(p)
        a.ext(advance_h())
    a("s_mov_b64 vcc, -1")
    a("s_branch K3_rdone")
    a.label("K3_rw")
    a(f"s_add_u32 s{sD}, s24, {W2F}")
    a(f"s_addc_u32 s{sD+1}, s25, 0")
    a(f"s_mov_b32 s{sD+2}, {0 if OPT['k3now'] else 1179648}")
    a(f"s_mul_i32 s{sDLo}, s{sCQ}, 6144")
    a(f"s_add_u32 s{sDEnd}, s{sDLo}, 73728")
    a(f"s_mov_b32 s{sSlot}, 0")
    a(f"s_mov_b32 s{sDst}, s{sDLo}")
    a(f"s_add_u32 s{sSrc}, s{sDLo}, {47 * 24576}")
    for _ in range(5 if OPT["k3skipw"] else 2):
        for p in pieces(sD, wnt): a.ext(p)
        a.ext(advance_w())
    a("s_mov_b64 vcc, 0")
    a.label("K3_rdone")
    a("s_mov_b64 s[50:51], vcc")
    a(f"v_mul_u32_u24 v{vOUT}, 3072, v19")
    a("v_mul_u32_u24 v21, 12, v18")
    a(f"s_mul_i32 s{sT0}, s{sTH}, {96 * 768}")
    a(f"s_mul_i32 s{sT1}, s{sCQ}, 192")
    a(f"s_add_u32 s{sT0}, s{sT0}, s{sT1}")
    a(f"v_add3_u32 v{vOUT}, v{vOUT}, v21, s{sT0}")
    if OPT["outlin"]:
        a(f"v_mul_u32_u24 v{vOUT}, 12, v17")
        a(f"s_mul_i32 s{sT0}, s{sWV}, 18432")
        a(f"v_add_u32 v{vOUT}, s{sT0}, v{vOUT}")
    a(f"s_mul_i32 s{sT0}, s{sCQ}, 6144")
    a(f"v_lshl_add_u32 v{vWB0}, v17, 4, s{sT0}")
    a("v_and_b32 v21, 3, v18")
    a("v_lshrrev_b32 v22, 2, v18")
    a("v_and_b32 v23, 2, v19")
    a("v_xor_b32 v23, v23, v21")
    a("v_lshl_add_u32 v22, v23, 2, v22")
    a("v_lshl_add_u32 v22, v21, 4, v22")
    a("v_lshlrev_b32 v22, 4, v22")
    a("v_and_b32 v23, 1, v19")
    a("v_lshl_add_u32 v22, v23, 3, v22")
    a(f"s_mul_i32 s{sT0}, s{sTH}, 6144")
    a(f"s_add_u32 s{sT0}, s{sT0}, {L_H}")
    a(f"v_add_u32 v{vHB0}, s{sT0}, v22")
    a(f"v_xor_b32 v{vHB1}, 64, v{vHB0}")
    a(f"s_lshl_b32 s{sT0}, s{sCQ}, 2")
    a("v_lshl_add_u32 v22, v21, 1, v19")
    a(f"v_add_u32 v22, s{sT0}, v22")
    a("v_and_b32 v22, 15, v22")
    a("v_mul_u32_u24 v22, 48, v22")
    a("v_mul_u32_u24 v23, 768, v18")
    a(f"v_add_u32 v22, {L_X}, v22")
    a(f"v_add_u32 v{vXR}, v22, v23")
    a("v_lshrrev_b32 v22, 2, v18")
    a("v_cmp_eq_u32 vcc, v22, v19")
    a("v_mov_b32 v23, 0x3f80")
    a("s_nop 0")
    a("v_cndmask_b32 v23, 0, v23, vcc")
    for e in range(4):
        a(f"v_cmp_eq_u32 vcc, {e}, v21")
        a("s_nop 1")
        a(f"v_cndmask_b32 v{SEL+e}, 0, v23, vcc")
        a(f"v_lshlrev_b32 v{SEL+4+e}, 16, v{SEL+e}")
    a("s_mov_b64 vcc, s[50:51]")
    a(f"s_mov_b32 s{sWS}, 0")
    a(f"s_mov_b32 s{sHS}, 0")
    a(f"s_mov_b32 s{sJ}, 0")
    a(f"s_mov_b32 s{sOB}, {2 * 192 * 768}")
    a(f"s_mov_b32 s{sEV}, 11")
    a(f"s_waitcnt vmcnt({HV if KC else 24})")
    a(f"s_sub_u32 s{sT0}, s{sWV}, 4")
    a(f"s_cmp_lt_u32 s{sT0}, 2")
    a("s_cbranch_scc1 K3_pw")
    a("s_waitcnt vmcnt(6)")
    a("s_cbranch_vccz K3_pw")
    a("s_waitcnt vmcnt(0)")
    a.label("K3_pw")
    for p in range(1, NBP):
        for n in range(6):
            src = 24 + n if n < 3 else 25 + n
            a(f"v_add_f32 v{src}, v{src}, v{src + 8*p}")
    for n in range(6):
        src = 24 + n if n < 3 else 25 + n
        if KC: a(f"v_mov_b32 v{BV[n]}, v{src}")
        else:
            for r in range(4): a(f"v_mov_b32 v{BIAS+4*n+r}, v{src}")

    stamp(a, 1)

    def accr(n, t): return ACC + (t * 6 + n) * 4
    pieces0 = pieces
    def pieces(srd_, sfx="", _p=pieces0):
        P = _p(srd_, sfx)
        if OPT["k3skiph"] and sfx != "": P = [[x for x in p if not x.startswith("buffer")] for p in P]
        if OPT["k3skipw"] and sfx == "": P = [[x for x in p if not x.startswith("buffer")] if i >= 6 - OPT["k3skipw"] else p for i, p in enumerate(P)]
        return P
    def Lseg(u4, grp, tag):
        L = [f"v_add_u32 v{vWR}, s{sWS}, v{vWB0}", f"v_add_u32 v{vHR0}, s{sHS}, v{vHB0}", f"v_add_u32 v{vHR1}, s{sHS}, v{vHB1}"]
        R = []
        for t in range(6):
            R.append(f"ds_read_b128 {q(WB + 4*t)}, v{vWR} offset:{t*1024}")
            R.append(f"ds_read_b64_tr_b16 {q(HB + 4*t, 2)}, v{vHR0} offset:{t*1024}")
            R.append(f"ds_read_b64_tr_b16 {q(HB + 4*t + 2, 2)}, v{vHR1} offset:{t*1024}")
        if KC:
            R = [f"ds_read_b128 {q(WB + 4*t)}, v{vWR} offset:{t*1024}" for t in range(6)]
            if u4 % 2 == 0:
                for t in range(6):
                    for c in range(2):
                        R.append(f"ds_read_b64_tr_b16 {q(HB + 24*c + 4*t, 2)}, v{vHR0} offset:{c*12288 + t*1024}")
                        R.append(f"ds_read_b64_tr_b16 {q(HB + 24*c + 4*t + 2, 2)}, v{vHR1} offset:{c*12288 + t*1024}")
                if grp == 1 and OPT["k3lm"]: R = R[:30 - 4 * OPT["k3lm"]]
            else: L = L[:1]
            P = pieces(sD, wnt if grp == 0 else nt); P[5] = P[5] + (advance_w() if grp == 0 else advance_h())
            def gd(X, z): return X if grp == 0 or u4 == 0 else [f"s_cbranch_vccnz K3_{tag}sl{u4}{z}"] + X + [f"K3_{tag}sl{u4}{z}:"]
            na = 6 if grp == 1 or u4 % 2 or (tag == "f" and u4 == 0) else OPT["k3ne"]
            HE = OPT["k3he"]
            if grp == 1 and HE < 6:
                def gh(X, z): return [f"s_cbranch_vccnz K3_{tag}sl{u4}{z}"] + X + [f"K3_{tag}sl{u4}{z}:"] if X else []
                def gx(X, z): return [f"s_cbranch_vccz K3_{tag}sx{u4}{z}"] + X + [f"K3_{tag}sx{u4}{z}:"]
                if u4 % 2 == 0:
                    for m in range(6):
                        if m >= 6 - HE: L += gh(P[m], "abcdef"[m])
                        if u4 == 0: L += gx(P[m], "abcdef"[m])
                        L += R[6*m:6*m+6]
                    if HE == 0: L += gh(advance_h(), "g")
                else:
                    P2 = pieces(sD, nt)
                    L += gh(P[0], "a") + R + gh([x for p in P[1:] + P2[:6 - HE] for x in p], "b")
            elif u4 % 2 == 0:
                for m in range(5):
                    if m < na: L += gd(P[m], "abcde"[m])
                    L += R[6*m:6*m+6]
                if na == 6: L += gd(P[5], "f")
            else:
                L += gd(P[0], "a") + R + gd([x for p in P[1:] for x in p], "b")
        elif grp == 0:
            P = pieces(sD, wnt); P[5] = P[5] + advance_w()
            na = 6 if tag == "f" and u4 == 0 else OPT["k3na"]
            pos = [0, 6, 12, 18, 18, 18]
            for k in range(19):
                for m in range(na):
                    if pos[m] == k: L += P[m]
                if k < 18: L.append(R[k])
        elif OPT["k3bl"]:
            P = pieces(sD, nt); P[5] = P[5] + advance_h()
            def gd(X, z): return X if u4 == 0 else [f"s_cbranch_vccnz K3_{tag}sl{u4}{z}"] + X + [f"K3_{tag}sl{u4}{z}:"]
            if OPT["k3pre"]: L = R[15:] + gd(P[0] + P[1] + P[2] + P[3] + P[4] + P[5], "d")
            else: L += gd(P[0], "a") + R[:6] + gd(P[1], "b") + R[6:12] + gd(P[2], "c") + R[12:] + gd(P[3] + P[4] + P[5], "d")
        else:
            L += R
        if u4 == 3:
            lab = f"K3_{grp}{tag}_xr"
            L += [f"s_sub_u32 s{sT0}, s{sEV}, {6*grp - (100 if OPT['k3nev'] == 1 else 0)}", f"s_cmp_lt_u32 s{sT0}, {0 if OPT['k3nev'] == 2 else 6}", f"s_cbranch_scc0 {lab}"]
            for p in range(3):
                L.append(f"ds_read2_b32 {q(XT + 4*p, 2)}, v{vXR} offset0:{p} offset1:{p+3}")
                L.append(f"ds_read2_b32 {q(XT + 4*p + 2, 2)}, v{vXR} offset0:{p+6} offset1:{p+9}")
            L.append(lab + ":")
        L += [f"s_add_u32 s{sWS}, s{sWS}, 24576", f"s_cmp_eq_u32 s{sWS}, 73728", f"s_cselect_b32 s{sWS}, 0, s{sWS}",
              f"s_add_u32 s{sHS}, s{sHS}, {24576 if KC else 12288}", f"s_cmp_eq_u32 s{sHS}, 73728", f"s_cselect_b32 s{sHS}, 0, s{sHS}"][:3 if KC and u4 % 2 else 6]
        return L
    def pre_reads():
        AD = [f"v_add_u32 v{vWR}, s{sWS}, v{vWB0}", f"v_add_u32 v{vHR0}, s{sHS}, v{vHB0}", f"v_add_u32 v{vHR1}, s{sHS}, v{vHB1}"]
        R = []
        for t in range(6):
            R.append(f"ds_read_b128 {q(WB + 4*t)}, v{vWR} offset:{t*1024}")
            R.append(f"ds_read_b64_tr_b16 {q(HB + 4*t, 2)}, v{vHR0} offset:{t*1024}")
            R.append(f"ds_read_b64_tr_b16 {q(HB + 4*t + 2, 2)}, v{vHR1} offset:{t*1024}")
        return AD, R
    def vmwait(strict, loose, lab):
        if (OPT["k3nv"] >> {6: 0, 0: 1}.get(strict, 2)) & 1: return []
        if loose is None or OPT["k3nost"]: return [f"s_waitcnt vmcnt({strict})"]
        return [f"s_waitcnt vmcnt({loose})", f"s_cmp_lg_u32 s{sJ}, 0", f"s_cbranch_scc1 {lab}", f"s_waitcnt vmcnt({strict})", lab + ":"]
    def Mseg(u4, grp, tag):
        first = tag == "f" and u4 == 0
        Ms = []
        for t in range(6):
            for n in range(6):
                c = q(BIAS + 4*n) if first else q(accr(n, t))
                Ms.append([f"v_mfma_f32_16x16x32_bf16 {q(accr(n, t))}, {q(HB + 4*t)}, {q(WB + 4*n)}, {c}"])
        if KC:
            Ms = []
            for t in range(6):
                for n3 in range(3):
                    for c in range(2):
                        ac = q(accr(3 * (u4 % 2) + n3, t))
                        Ms.append([f"v_mfma_f32_16x16x32_bf16 {ac}, {q(HB + 24*c + 4*t)}, {q(WB + 12*c + 4*n3)}, {q(XT + 4*n3) if tag == 'f' and u4 < 2 and c == 0 else ac}"])
        if KC and u4 % 2 == 0 and (OPT["k3sw"] >> grp) & 1:
            lm = OPT["k3lm"] * grp
            late = []
            for t in range(6 - lm, 6):
                for c in range(2):
                    late += [f"ds_read_b64_tr_b16 {q(HB + 24*c + 4*t, 2)}, v{vHR0} offset:{c*12288 + t*1024}", f"ds_read_b64_tr_b16 {q(HB + 24*c + 4*t + 2, 2)}, v{vHR1} offset:{c*12288 + t*1024}"]
            for i, x in enumerate(late): Ms[i].append(x)
            for t in range(1, 6):
                issued = 30 - 4 * lm + min(len(late), 6 * t)
                n = issued - (10 + 4 * t)
                assert n >= 0
                if n < 15 or lm: Ms[6 * t] = [f"s_waitcnt lgkmcnt({min(15, n)})"] + Ms[6 * t]
        if grp == 0:
            P = pieces(sD, wnt); P[5] = P[5] + advance_w()
            na = 6 if first or (KC and u4 % 2) else OPT["k3ne" if KC else "k3na"]
            for m in range(na, 6): Ms[1 + (m - na) * OPT["k3as"]] += P[m]
            e = OPT["k3eb"]
            loose = 30 if tag == "f" and u4 < 2 else None
            Ms[35 - e] += (["s_setprio 3"] if e else []) + vmwait(6, loose, f"K3_0{tag}_vw{u4}") + ["s_barrier"]
        elif not OPT["k3bl"]:
            P = pieces(sD, nt); P[5] = P[5] + advance_h()
            for m in range(0, 6, 2):
                X = P[m] + P[m + 1]
                if u4 != 3: X = [f"s_cbranch_vccnz K3_{tag}sd{u4}{m}"] + X + [f"K3_{tag}sd{u4}{m}:"]
                Ms[OPT["k3b0"] + (m // 2) * OPT["k3bs"]] += X
        if grp == 1 and OPT["k3pre"]:
            AD, R = pre_reads()
            Ms[0].append(AD[1]); Ms[1].append(AD[2]); Ms[2].append(AD[0])
            for t in range(5):
                Ms[6 * t + 6].append(R[3 * t + 1]); Ms[6 * t + 7].append(R[3 * t + 2])
                Ms[31 + t].append(R[3 * t])
        return [x for m in Ms for x in m]
    def Xseg(grp, tag):
        g = f"{grp}{tag}"
        L = [f"s_cmp_lt_u32 s{sT0}, 6", f"s_cbranch_scc0 K3_{g}_xdone"]
        for t in range(6):
            if t < 5: L += [f"s_cmp_lg_u32 s{sT0}, {t}", f"s_cbranch_scc1 K3_{g}_x{t+1}"]
            for n in range(6):
                L.append(f"v_mfma_f32_16x16x32_bf16 {q(accr(n, t))}, {q(XT + 4*(n >> 1))}, {q(SEL + 4*(n & 1))}, {q(accr(n, t))}")
            if t < 5: L += [f"s_branch K3_{g}_xdone", f"K3_{g}_x{t+1}:"]
        L += [f"K3_{g}_xdone:", f"s_sub_u32 s{sEV}, s{sEV}, 1"]
        return L
    ofl = ["", " nt", " sc1", " sc0 sc1", " sc0"][OPT["out_nt"]]
    def epilogue(final=False):
        L = ["s_nop 7"]
        idx = 0
        for t in range(6):
            L.append(f"s_mov_b32 s{sT1}, s{sOB}" if t == 0 else f"s_add_u32 s{sT1}, s{sT1}, {3072 if OPT['outlin'] else 12288}")
            for r in range(4):
                tq = XT + 4 * (idx % (3 if KC else 4)); idx += 1
                for j in range(3): L.append(f"v_cvt_pk_bf16_f32 v{tq+j}, v{accr(2*j, t)+r}, v{accr(2*j+1, t)+r}")
                if not OPT["k3nost"]: L.append(f"buffer_store_dwordx3 {q(tq, 3)}, v{vOUT}, s[{sO}:{sO+3}], s{sT1} offen offset:{r*768}" + ofl)
        L += [f"s_sub_u32 s{sOB}, s{sOB}, {192 * 768}"]
        return L
    def block(grp, tag):
        if OPT["prof"] == 2: a.label(f"K3_np{tag}{grp}")
        if OPT["prof"] == 1 and grp == 1:
            a(f"s_cmp_lg_u32 s{sWV}, 7")
            a(f"s_cbranch_scc1 K3_np{tag}")
            a("s_memrealtime s[90:91]")
            a("s_waitcnt lgkmcnt(0)")
            a("v_mov_b32 v12, s90")
            a("v_mov_b32 v13, 0")
            a("buffer_store_dword v12, v13, s[84:87], s83 offen")
            a("s_add_u32 s83, s83, 4")
            a.label(f"K3_np{tag}")
        for u4 in range(4):
            a.ext(Lseg(u4, grp, tag))
            if OPT["prof"] == 2 and u4 == 0 and grp == OPT["latw"] // 4:
                a(f"s_cmp_lg_u32 s{sWV}, {OPT['latw']}")
                a(f"s_cbranch_scc1 K3_nq{tag}")
                a("s_memrealtime s[92:93]")
                a("s_waitcnt vmcnt(0) lgkmcnt(0)")
                a("s_memrealtime s[94:95]")
                a("s_waitcnt lgkmcnt(0)")
                a("s_sub_u32 s94, s94, s92")
                a("s_add_u32 s82, s82, s94")
                a("v_mov_b32 v12, s82")
                a("v_mov_b32 v13, 0")
                a("buffer_store_dword v12, v13, s[84:87], s83 offen")
                a("s_add_u32 s83, s83, 4")
                a.label(f"K3_nq{tag}")
            if tag == "f" and u4 == 0:
                a(f"s_cmp_eq_u32 s{sJ}, 0")
                a(f"s_cbranch_scc1 K3_{grp}_noep")
                if OPT["stamp"]:
                    a(f"s_sub_u32 s96, s{sJ}, 48")
                    stamp2(a, 2, 4, 96)
                a.ext(epilogue())
                stamp2(a, 3, 5, 96)
                a.label(f"K3_{grp}_noep")
            if KC and tag == "f" and u4 < 2:
                a("s_nop 1")
                for i in range(12): a(f"v_mov_b32 v{XT+i}, v{BV[3*u4 + i//4]}")
            def waits(z=""):
                stg_ = KC and u4 % 2 == 0 and (OPT["k3sw"] >> grp) & 1
                lw = f"s_waitcnt lgkmcnt({min(15, 20 - 4 * OPT['k3lm'] * grp) if stg_ else 0})"
                if grp == 0: return [lw, f"s_setprio {OPT['k3pa']}"]
                W = []
                if u4 == 2: W += [f"s_cbranch_vccz K3_{tag}nx"] + vmwait(0, 24 if tag == "f" else None, "K3_fxw") + [f"K3_{tag}nx:"]
                if not KC: W += vmwait(24, 48 if tag == "f" else None, f"K3_fh{u4}{z}")
                elif u4 % 2: W += vmwait(HV, (HV + 24 if u4 == 1 or not HL else None) if tag == "f" else None, f"K3_fh{u4}{z}")
                return W + [lw, "s_barrier", f"s_setprio {OPT['k3pb']}"]
            if u4 == 3 and OPT["k3xd"]:
                g = f"{grp}{tag}"
                a(f"s_sub_u32 s{sEV}, s{sEV}, 1")
                a(f"s_cmp_lt_u32 s{sT0}, 6")
                a(f"s_cbranch_scc0 K3_{g}_xn")
                for t in range(6):
                    if t < 5:
                        a(f"s_cmp_lg_u32 s{sT0}, {t}")
                        a(f"s_cbranch_scc1 K3_{g}_x{t+1}")
                    a.ext(waits(str(t)))
                    for n in range(6):
                        a(f"v_mfma_f32_16x16x32_bf16 {q(accr(n, t))}, {q(XT + 4*(n >> 1))}, {q(SEL + 4*(n & 1))}, {q(accr(n, t))}")
                    a(f"s_branch K3_{g}_xdone")
                    if t < 5: a.label(f"K3_{g}_x{t+1}")
                a.label(f"K3_{g}_xn")
                a.ext(waits())
                a.label(f"K3_{g}_xdone")
            else:
                a.ext(waits())
                if u4 == 3: a.ext(Xseg(grp, tag))
            a.ext(Mseg(u4, grp, tag))
            a(f"s_setprio {OPT['k3pl']}")

    if OPT["prof"]:
        srd(a, 84, 24, 25, 65536, TAIL + (5 << 20))
        a("s_lshl_b32 s83, s2, 8")
        a("s_mov_b32 s82, 0")
    a("s_barrier")
    if OPT["k3pre"]:
        AD, R = pre_reads(); a.ext(AD + R[:15])
    a(f"s_cmp_lg_u32 s{sTH}, 0")
    a("s_cbranch_scc1 K3_1_tile")
    for grp in range(2):
        a.label(f"K3_{grp}_tile")
        a(f"s_mov_b32 s{sEV}, 11")
        block(grp, "f")
        a(".p2align 6")
        a.label(f"K3_{grp}_loop")
        block(grp, "l")
        a(f"s_cmp_lg_u32 s{sEV}, -1")
        a(f"s_cbranch_scc1 K3_{grp}_loop")
        a(f"s_add_u32 s{sJ}, s{sJ}, 48")
        a(f"s_cmp_lg_u32 s{sJ}, 144")
        a(f"s_cbranch_scc1 K3_{grp}_tile")
        if grp == 0:
            a("s_branch K3_fin0")
    a.label("K3_fin0")
    stamp(a, 6)
    a.ext(epilogue(True))
    a.label("K3_fin")
    if OPT["stamp"]: a("s_waitcnt vmcnt(0)")
    stamp(a, 7)
    stamp_dump(a, 8, sWV, "K3", 1)
    if OPT["stamp"] == 2:
        a("s_cmp_lg_u32 s2, 5")
        a("s_cbranch_scc1 K3_end")
        a(f"s_cmp_lg_u32 s{sWV}, 0")
        a("s_cbranch_scc1 K3_end")
        a("s_load_dwordx2 s[20:21], s[0:1], 56")
        a(f"s_add_u32 s88, s24, {TAIL + (4 << 20)}")
        a("s_addc_u32 s89, s25, 0")
        a("s_mov_b32 s90, 196608")
        a("s_mov_b32 s91, 0x00020000")
        a("v_and_b32 v1, 63, v0")
        a("v_lshlrev_b32 v2, 3, v1")
        a("v_cmp_gt_u32 vcc, 9, v1")
        a("v_add_u32 v3, 65536-72, v2")
        a("s_nop 0")
        a("v_cndmask_b32 v2, v3, v2, vcc")
        a("buffer_load_dword v4, v2, s[88:91], 0 offen offset:1280")
        a("s_mov_b32 s22, 64")
        a("s_mov_b32 s23, 0x00020000")
        a("v_lshlrev_b32 v2, 2, v1")
        a("s_waitcnt vmcnt(0) lgkmcnt(0)")
        a("v_readfirstlane_b32 s92, v4")
        a("s_nop 3")
        a("v_subrev_u32 v4, s92, v4")
        a("buffer_store_dword v4, v2, s[20:23], 0 offen")
    a.label("K3_end")
    a("s_endpgm")
    return a, desc("gemm2_kernel", 256, 100), f"; @launch kernel=gemm2_kernel grid=(256,1,1) block=(512,1,1) lds={L_X + 12288}"

def main():
    ks = [k1()] + ([] if OPT['fuse'] else [k2()]) + [k3n() if OPT['k3n'] else k3r() if OPT['roll'] else k3()]
    errs = []
    for a, _, l in ks: errs += check(a.lines, l.split("=")[1].split()[0])
    for a, _, l in ks:
        for i, x in enumerate(a.lines):
            if x.startswith("s_set_gpr_idx_on"): assert a.lines[i + 3] == "s_set_gpr_idx_off", "gpr idx not closed"
    for e in errs: print(e, file=sys.stderr)
    hdr = open("standalone__modern_conv_block_slak__vision.s.ref").read().split("\n")
    hdr = [l for l in hdr if l.startswith(";") and "@launch" not in l and "Override" not in l and "grid=ceil" not in l]
    out = "\n".join(hdr) + "\n" + "\n".join(l for _, _, l in ks) + "\n"
    out += '.amdgcn_target "amdgcn-amd-amdhsa--gfx950"\n.text\n'
    for a, _, _ in ks: out += a.text()
    out += '.section .rodata,"a"\n'
    for _, d, _ in ks: out += d
    open(sys.argv[1], "w").write(out)
    print("written", sys.argv[1], len(out), "bytes; hazards:", len(errs))
main()
```

```python
import sys, struct, math
from asmlib import Asm, check

OPT = dict(f16=1, st_nt=1, h_nt=1, w_nt=0, out_nt=0, x_nt=1, xp_nt=1, ord=4, ntail=2, k3skipw=0, kf=0, k3pre=0, prof=0, roll=0, stg=1, mp0=2, mpd=2, ipf=0, k3pl=0, wwarm=0, latw=7, dwarm=1, sdot=2, k3c=1, k3ne=6, k3nv=0, k3skiph=0, npf=1, kmask=0, k1nv=0, w1warm=1, k3he=6, k3xd=1, k3nev=0, k3sw=1, k3lm=0, spr=1, rpg=1, hd=7, lst=5, mst=1, gbo=0, k3n=1, k3wa=5, k3ro=1, k3df=0, k2pf=0, k2nt=0, wb=0, fuse=1, fw=0, k3n0=9, k3n1=6, sgap=2, bgb=-1, stamp=0, denorm=3, pm=3, pg0=0, pg1=1, bg=4, gb=3, gp=2, stm=7, stm0=7, w2pf=1, sga=0,
           k3pa=1, k3pb=2, k3eb=0, k3nost=0, k3noh=0, k3nox=0, k3now=0, k3na=6, k3as=5, k3b0=18, k3bs=5, k3bl=1, outlin=0, nostore=0)
for a in sys.argv[2:]:
    k, v = a.split("="); OPT[k] = int(v, 0)

def f32(x): return "0x%08x" % struct.unpack("<I", struct.pack("<f", x))[0]
def f16bits(x): return struct.unpack("<H", struct.pack("<e", x))[0]

M = 147456; C = 384; F = 1536
XBYTES = M * C * 2
WSBYTES = 452984832
TILE_H = 589824; CHUNK_H = 12288; HSTRIDE = 3 * TILE_H - 2 * CHUNK_H
TAIL = 256 * HSTRIDE
W2F = TAIL + 1179648; B2 = TAIL; SSQ = TAIL + 2363392
NREP = 8
K1c = 2.0 * math.sqrt(2.0 / math.pi) * math.log2(math.e)
K3c = K1c * 0.044715
if OPT["f16"]:
    C0 = 1258.0 / 256.0
    ALPHA = K1c / C0
else:
    ALPHA = K3c ** (1.0 / 3.0)
    C0 = K1c / ALPHA

def srd(a, d, lo, hi, nrec, off=0):
    if off:
        a(f"s_add_u32 s{d}, s{lo}, {off}")
        a(f"s_addc_u32 s{d+1}, s{hi}, 0")
    else:
        a(f"s_mov_b32 s{d}, s{lo}")
        a(f"s_mov_b32 s{d+1}, s{hi}")
    a(f"s_mov_b32 s{d+2}, {nrec}")
    a(f"s_mov_b32 s{d+3}, 0x00020000")

def stamp(a, idx, base=64):
    if not OPT["stamp"]: return
    a("s_memrealtime s[90:91]")
    a("s_memtime s[92:93]")
    a("s_waitcnt lgkmcnt(0)")
    a(f"s_mov_b32 s{base+2*idx}, s90")
    a(f"s_mov_b32 s{base+2*idx+1}, s92")

def stamp2(a, ia, ib, creg, base=64):
    if not OPT["stamp"]: return
    a("s_memrealtime s[90:91]")
    a("s_memtime s[92:93]")
    a("s_waitcnt lgkmcnt(0)")
    a(f"s_cmp_eq_u32 s{creg}, 0")
    a(f"s_cselect_b32 s{base+2*ia}, s90, s{base+2*ia}")
    a(f"s_cselect_b32 s{base+2*ia+1}, s92, s{base+2*ia+1}")
    a(f"s_cselect_b32 s{base+2*ib}, s{base+2*ib}, s90")
    a(f"s_cselect_b32 s{base+2*ib+1}, s{base+2*ib+1}, s92")

def stamp_dump(a, n, wave_sgpr, tag, kidx, base=64):
    if not OPT["stamp"]: return
    a(f"s_and_b32 s94, s{wave_sgpr}, 3")
    a("s_cmp_lg_u32 s94, 0")
    a(f"s_cbranch_scc1 {tag}_nodump")
    a("s_load_dwordx2 s[90:91], s[0:1], 64")
    a("s_waitcnt lgkmcnt(0)")
    a(f"s_add_u32 s88, s90, {TAIL + (4 << 20) + kidx * 65536}")
    a("s_addc_u32 s89, s91, 0")
    a("s_mov_b32 s90, 65536")
    a("s_mov_b32 s91, 0x00020000")
    a(f"s_lshl_b32 s94, s{wave_sgpr}, 5")
    a("s_lshl_b32 s95, s2, 8")
    a("s_add_u32 s94, s94, s95")
    a("v_mov_b32 v8, 0")
    for i in range(n):
        a(f"v_mov_b32 v10, s{base+2*i}")
        a(f"v_mov_b32 v11, s{base+2*i+1}")
        a(f"buffer_store_dwordx2 v[10:11], v8, s[88:91], s94 offen offset:{i*8}")
        a("s_waitcnt vmcnt(0)")
    a.label(f"{tag}_nodump")

def q(r, n=4): return f"v[{r}:{r+n-1}]"

def kernel_start(a, name):
    a(f".globl {name}")
    a(".p2align 8")
    a(f".type {name},@function")
    a.label(name)

def code_prefetch(a, start, end, vt, st):
    if not OPT["ipf"]: return
    a(f"s_getpc_b64 s[{st}:{st+1}]")
    a(f"s_and_b32 s{st}, s{st}, 0xffffff00")
    a(f"s_mov_b32 s{st+2}, {end}-{start}")
    a(f"s_mov_b32 s{st+3}, 0x00020000")
    a(f"v_lshlrev_b32 v{vt}, 7, v0")
    a(f"buffer_load_dword v{vt}, v{vt}, s[{st}:{st+3}], 0 offen")

def desc(name, vgpr, sgpr=96):
    acc = min(256, (vgpr + 3) // 4 * 4)
    return f""".p2align 6
.amdhsa_kernel {name}
  .amdhsa_next_free_vgpr {vgpr}
  .amdhsa_next_free_sgpr {sgpr}
  .amdhsa_accum_offset {acc}
  .amdhsa_group_segment_fixed_size 0
  .amdhsa_kernarg_size 72
  .amdhsa_user_sgpr_count 2
  .amdhsa_user_sgpr_kernarg_segment_ptr 1
  .amdhsa_system_sgpr_workgroup_id_x 1
  .amdhsa_float_denorm_mode_32 {OPT['denorm']}
.end_amdhsa_kernel
"""

def gelu_batch(b, TMP, SSr, first, sC0, sC0H):
    L = []
    R = [b + i for i in range(8)]
    if not OPT["f16"]:
        T = [TMP + i for i in range(8)]
        for v, t in zip(R, T): L.append(f"v_fma_f32 v{t}, -v{v}, v{v}, s{sC0}")
        for v, t in zip(R, T): L.append(f"v_mul_f32 v{t}, v{t}, v{v}")
        for t in T: L.append(f"v_exp_f32 v{t}, v{t}")
        for t in T: L.append(f"v_add_f32 v{t}, 1.0, v{t}")
        for t in T: L.append(f"v_rcp_f32 v{t}, v{t}")
        for v, t in zip(R, T): L.append(f"v_mul_f32 v{t}, v{v}, v{t}")
        Gv = T
    else:
        H = [TMP + i for i in range(4)]; Pp = [TMP + 4 + i for i in range(4)]
        for i in range(4): L.append(f"v_cvt_pk_f16_f32 v{H[i]}, v{R[2*i]}, v{R[2*i+1]}")
        for i in range(4): L.append(f"v_pk_fma_f16 v{Pp[i]}, v{H[i]}, v{H[i]}, s{sC0H} neg_lo:[1,0,0] neg_hi:[1,0,0]")
        for i in range(4): L.append(f"v_pk_mul_f16 v{Pp[i]}, v{Pp[i]}, v{H[i]}")
        for i in range(4): L.append(f"v_exp_f16 v{H[i]}, v{Pp[i]}")
        for i in range(4): L.append(f"v_exp_f16_sdwa v{H[i]}, v{Pp[i]} dst_sel:WORD_1 dst_unused:UNUSED_PRESERVE src0_sel:WORD_1")
        for i in range(4): L.append(f"v_pk_add_f16 v{H[i]}, v{H[i]}, 1.0 op_sel_hi:[1,0]")
        for i in range(4): L.append(f"v_rcp_f16 v{Pp[i]}, v{H[i]}")
        for i in range(4): L.append(f"v_rcp_f16_sdwa v{H[i]}, v{H[i]} dst_sel:DWORD dst_unused:UNUSED_PAD src0_sel:WORD_1")
        for i in range(4): L.append(f"v_fma_mix_f32 v{R[2*i]}, v{R[2*i]}, v{Pp[i]}, 0 op_sel_hi:[0,1,0]")
        for i in range(4): L.append(f"v_fma_mix_f32 v{R[2*i+1]}, v{R[2*i+1]}, v{H[i]}, 0 op_sel_hi:[0,1,0]")
        Gv = R
    for e in (0, 4, 1, 5, 2, 6, 3, 7) if not OPT['sdot'] else ():
        s_ = SSr + e // 4
        L.append(f"v_mul_f32 v{s_}, v{Gv[e]}, v{Gv[e]}" if first and e % 4 == 0 else f"v_fmac_f32 v{s_}, v{Gv[e]}, v{Gv[e]}")
    if OPT["mst"]:
        for i in (3, 2, 1, 0): L.append(f"v_cvt_pk_bf16_f32 v{b+4+i}, v{Gv[2*i]}, v{Gv[2*i+1]}")
    else:
        for i in range(4): L.append(f"v_cvt_pk_bf16_f32 v{b+i}, v{Gv[2*i]}, v{Gv[2*i+1]}")
    return L

NBP = 6
def k2(a=None):
    inl = a is not None
    if not inl:
        a = Asm()
        kernel_start(a, "mid_kernel")
    if not inl:
        a(f"s_cmp_ge_u32 s2, {24 + 256 * (OPT['k2pf'] > 0)}")
        a("s_cbranch_scc1 K2_end")
    if OPT["k2pf"]:
        a("s_cmp_lt_u32 s2, 24")
        a("s_cbranch_scc1 K2_main")
        a("s_load_dwordx2 s[4:5], s[0:1], 48")
        a("s_load_dwordx2 s[6:7], s[0:1], 64")
        a("s_sub_u32 s3, s2, 24")
        a(f"s_mul_i32 s30, s3, {3 * 192 * 768}")
        a(f"s_mul_i32 s31, s3, {HSTRIDE}")
        a(f"s_add_u32 s31, s31, {HSTRIDE - (OPT['k2pf'] - 2) * CHUNK_H}")
        a("v_lshlrev_b32 v1, 7, v0")
        a(f"v_subrev_u32 v2, {2 * CHUNK_H}, v1")
        a("s_waitcnt lgkmcnt(0)")
        a("s_add_u32 s8, s4, s30")
        a("s_addc_u32 s9, s5, 0")
        a(f"s_mov_b32 s10, {2 * CHUNK_H}")
        a("s_mov_b32 s11, 0x00020000")
        a("s_add_u32 s12, s6, s31")
        a("s_addc_u32 s13, s7, 0")
        a(f"s_mov_b32 s14, {(OPT['k2pf'] - 2) * CHUNK_H}")
        a("s_mov_b32 s15, 0x00020000")
        fl = " nt" if OPT["k2nt"] else ""
        a("buffer_load_dword v3, v1, s[8:11], 0 offen" + fl)
        a("buffer_load_dword v4, v2, s[12:15], 0 offen" + fl)
        a("s_endpgm")
        a.label("K2_main")
    if not inl: stamp(a, 0)
    a("s_load_dwordx4 s[4:7], s[0:1], 24")
    a("s_load_dwordx2 s[8:9], s[0:1], 40")
    a("s_load_dwordx2 s[10:11], s[0:1], 64")
    a("v_lshrrev_b32 v1, 6, v0")
    a("v_and_b32 v2, 63, v0")
    a("v_readfirstlane_b32 s3, v1")
    a("v_mul_u32_u24 v5, 12, v0")
    a("s_lshr_b32 s30, s2, 2")
    a("s_and_b32 s32, s2, 3")
    a("s_lshl_b32 s31, s30, 3")
    a("s_add_u32 s31, s31, s3")
    a("s_mul_i32 s33, s32, 192")
    a(f"s_mul_i32 s34, s31, {32 * 768}")
    a("s_add_u32 s33, s33, s34")
    a("v_lshrrev_b32 v3, 4, v2")
    a("v_and_b32 v4, 1, v3")
    a("v_lshlrev_b32 v4, 4, v4")
    a("v_lshrrev_b32 v3, 1, v3")
    a("v_lshl_add_u32 v3, v3, 3, v4")
    a("v_mul_u32_u24 v7, 768, v3")
    a("v_and_b32 v6, 15, v2")
    a("v_mul_u32_u24 v4, 12, v6")
    a("v_add_u32 v7, v4, v7")
    a("s_lshl_b32 s35, s31, 6")
    a("v_lshlrev_b32 v4, 1, v3")
    a("s_waitcnt lgkmcnt(0)")
    srd(a, 24, 10, 11, WSBYTES - TAIL, TAIL)
    def ssq_loads(fl):
        a(f"s_mov_b32 s34, {SSQ - TAIL}")
        for r in range(NREP):
            a(f"buffer_load_dwordx3 {q(32+4*r, 3)}, v5, s[24:27], s34 offen{fl}")
            if r < NREP - 1: a("s_add_u32 s34, s34, 6144")
    if not inl: ssq_loads("")
    srd(a, 12, 4, 5, C * F * 2)
    srd(a, 16, 6, 7, F * 2)
    srd(a, 20, 8, 9, F * 2)
    W = 64; U = 96
    for e in range(8):
        if e == 4: a("s_add_u32 s33, s33, 3072")
        a(f"buffer_load_dwordx3 {q(W + 4*e, 3)}, v7, s[12:15], s33 offen offset:{(e % 4) * 768}")
    a("buffer_load_dwordx4 v[16:19], v4, s[16:19], s35 offen")
    a("buffer_load_dwordx4 v[12:15], v4, s[20:23], s35 offen")
    Z = 144 if inl else U
    def unpack():
        a("s_waitcnt vmcnt(0)")
        for e in range(8):
            for d in range(3):
                a(f"v_lshlrev_b32 v{U + 6*e + 2*d}, 16, v{W + 4*e + d}")
                a(f"v_and_b32 v{U + 6*e + 2*d + 1}, 0xffff0000, v{W + 4*e + d}")
    def biasp():
        for e in range(8):
            a(f"v_lshlrev_b32 v41, 16, v{12 + e // 2}" if e % 2 == 0 else f"v_and_b32 v41, 0xffff0000, v{12 + e // 2}")
            for n in range(6): a(f"v_mul_f32 v{24+n}, v41, v{U + n}" if e == 0 else f"v_fmac_f32 v{24+n}, v41, v{U + 6*e + n}")
        a("v_mul_u32_u24 v43, 24, v0")
        for d in range(3): a(f"ds_write_b64 v43, {q(24 + 2*d, 2)} offset:{6400 + 8*d}")
        a("s_waitcnt lgkmcnt(0)")
        a("s_barrier")
        a("s_cmp_ge_u32 s3, 2")
        a("s_cbranch_scc1 " + ("K2_nb" if inl else "K2_end"))
        a("v_lshlrev_b32 v43, 2, v0")
        for w in range(32): a(f"ds_read_b32 v{Z + w}, v43 offset:{6400 + 384*w}")
        a("s_waitcnt lgkmcnt(0)")
        for st in (16, 8, 4, 2, 1):
            for r in range(st): a(f"v_add_f32 v{Z+r}, v{Z+r}, v{Z+r+st}")
        a("s_mul_i32 s39, s30, 1536")
        a("s_mul_i32 s38, s32, 384")
        a("s_add_u32 s38, s38, s39")
        a(f"s_add_u32 s38, s38, {B2 - TAIL}")
        a("v_cmp_gt_u32 vcc, 96, v0")
        a("s_and_saveexec_b64 s[40:41], vcc")
        a(f"buffer_store_dword v{Z}, v43, s[24:27], s38 offen")
        a("s_mov_b64 exec, s[40:41]")
        if inl: a.label("K2_nb")
    if inl:
        unpack(); biasp()
        a("v_mov_b32 v8, 0")
        a("s_cmp_lg_u32 s3, 0")
        a("s_cbranch_scc1 K2_seen")
        a.label("K2_poll")
        a("buffer_load_dword v9, v8, s[48:51], 0 offen offset:128 sc0 sc1")
        a("s_waitcnt vmcnt(0)")
        a("v_readfirstlane_b32 s44, v9")
        a("s_nop 3")
        a("s_cmp_lt_u32 s44, 256")
        a("s_cbranch_scc1 K2_poll")
        a.label("K2_seen")
        a("s_barrier")
        ssq_loads(" sc0 sc1")
        a("s_waitcnt vmcnt(0)")
    else: a("s_waitcnt vmcnt(10)")
    if not inl: stamp(a, 1)
    for st in (4, 2, 1):
        for r in range(st):
            for k in range(3): a(f"v_add_f32 v{32+4*r+k}, v{32+4*r+k}, v{32+4*(r+st)+k}")
    a(f"s_mov_b32 s36, {f32(1.0 / (ALPHA * ALPHA))}")
    a(f"v_mov_b32 v20, {f32(1e-6)}")
    for k in range(3): a(f"v_fma_f32 v{32+k}, v{32+k}, s36, v20")
    for k in range(3): a(f"v_sqrt_f32 v{32+k}, v{32+k}")
    a("s_nop 0")
    for k in range(3): a(f"ds_write_b32 v5, v{32+k} offset:{4*k}")
    a("v_add_f32 v21, v32, v33")
    a("v_add_f32 v21, v21, v34")
    for ctl in ("row_shr:1", "row_shr:2", "row_shr:4", "row_shr:8"):
        a("s_nop 1")
        a(f"v_add_f32_dpp v21, v21, v21 {ctl} row_mask:0xf bank_mask:0xf bound_ctrl:0")
    a("s_nop 1")
    a("v_readlane_b32 s40, v21, 15")
    a("v_readlane_b32 s41, v21, 31")
    a("v_readlane_b32 s42, v21, 47")
    a("v_readlane_b32 s43, v21, 63")
    a("s_nop 1")
    a("v_mov_b32 v22, s40")
    a("v_add_f32 v22, s41, v22")
    a("v_add_f32 v22, s42, v22")
    a("v_add_f32 v22, s43, v22")
    a("s_lshl_b32 s37, s3, 2")
    a("v_mov_b32 v23, s37")
    a("ds_write_b32 v23, v22 offset:6144")
    a("s_waitcnt lgkmcnt(0)")
    a("s_barrier")
    if not inl: stamp(a, 2)
    a("v_mov_b32 v23, 0")
    a("ds_read_b128 v[24:27], v23 offset:6144")
    a("ds_read_b128 v[28:31], v23 offset:6160")
    a("s_lshl_b32 s37, s31, 7")
    a("v_lshlrev_b32 v4, 2, v3")
    a("v_add_u32 v4, s37, v4")
    a("ds_read_b128 v[32:35], v4")
    a("ds_read_b128 v[36:39], v4 offset:16")
    if not inl: unpack()
    a("s_waitcnt lgkmcnt(0)")
    for st in (4, 2, 1):
        for r in range(st): a(f"v_add_f32 v{24+r}, v{24+r}, v{24+r+st}")
    a(f"v_mul_f32 v24, {f32(1.0 / F)}, v24")
    a(f"v_add_f32 v24, {f32(1e-6)}, v24")
    a("v_rcp_f32 v24, v24")
    a(f"s_mov_b32 s36, {f32(1.0 / ALPHA)}")
    for e in range(8):
        src = 16 + e // 2
        a(f"v_lshlrev_b32 v40, 16, v{src}" if e % 2 == 0 else f"v_and_b32 v40, 0xffff0000, v{src}")
        a(f"v_mul_f32 v{32+e}, v{32+e}, v24")
        a(f"v_fma_f32 v{32+e}, v{32+e}, v40, 1.0")
        a(f"v_mul_f32 v{32+e}, s36, v{32+e}")
    if OPT["k3c"]:
        a("s_sub_u32 s44, 47, s31")
        a("s_and_b32 s45, s44, 1")
        a("s_andn2_b32 s44, s44, 1")
        a("s_sub_u32 s44, 47, s44")
        a("s_mul_i32 s33, s44, 24")
        a("s_mul_i32 s45, s45, 3")
        a("s_add_u32 s33, s33, s45")
    else:
        a("s_mul_i32 s33, s31, 24")
    a("s_mul_i32 s46, s32, 6")
    a("s_add_u32 s33, s33, s46")
    a("s_lshl_b32 s33, s33, 10")
    a(f"s_add_u32 s33, s33, {W2F - TAIL}")
    a("s_sub_u32 s34, s33, 24576" if OPT["k3c"] else "s_add_u32 s34, s33, 3072")
    a("v_lshlrev_b32 v43, 4, v2")
    for n in range(6):
        T = 44 + 8 * (n % 2); O = W + 4 * n
        for e in range(8): a(f"v_mul_f32 v{T+e}, v{U + 6*e + n}, v{32+e}")
        for i in range(4): a(f"v_cvt_pk_bf16_f32 v{O+i}, v{T+2*i}, v{T+2*i+1}")
        a(f"buffer_store_dwordx4 {q(O)}, v43, s[24:27], s{33 + n // 3} offen offset:{(n % 3) * 1024}")
    if not inl: biasp()
    if OPT["stamp"]: a("s_waitcnt vmcnt(0)")
    if not inl: stamp(a, 3)
    if not inl: stamp_dump(a, 4, 3, "K2", 2)
    a.label("K2_end")
    a("s_endpgm")
    if inl: return
    return a, desc("mid_kernel", 144, 100 if OPT["stamp"] else 56), f"; @launch kernel=mid_kernel grid=({24 + 256 * (OPT['k2pf'] > 0)},1,1) block=(512,1,1) lds=19200"

def k1():
    a = Asm()
    XN = 8; ACC = 152; BB = 200; SQ = 232
    TMP = BB + 16; SS = BB + 24
    vDE, vXS, vRD, vST, vDW, vDO, vRB = 1, 2, 3, 4, 5, 6, 7
    L_DW = 147456
    sX, sW1, sH, sDB = 8, 12, 16, 20
    sWSlo, sWShi, sOUTlo, sOUThi, sDBlo, sDBhi = 24, 25, 26, 27, 28, 29
    (sWV, sGRP, sI, sEND, sRDS, sDSL, sT0, sT1, sC0, sHB, sXB, sREG, sSIG, sT2, sC0H, sDSR, sD0, sST0, sST1, sXN, sDS0, sTK,
     sSLO, sSHI, sDLO, sDHI, sSG0, sCW, sXU) = range(30, 59)
    sHN, sSLN, sSHN, sDSP, sDSN, sDCN, sCW2, sKM = 82, 83, 84, 85, 86, 87, 3, 97
    REG = 3 * 192 * 768
    kernel_start(a, "gemm1_kernel")
    a("s_cmp_ge_u32 s2, 256")
    a("s_cbranch_scc1 K1_end")
    stamp(a, 0)
    a("s_load_dwordx4 s[4:7], s[0:1], 0")
    a(f"s_load_dwordx2 s[{sW1}:{sW1+1}], s[0:1], 16")
    a(f"s_load_dwordx2 s[{sOUTlo}:{sOUThi}], s[0:1], 48")
    a(f"s_load_dwordx2 s[{sDBlo}:{sDBhi}], s[0:1], 56")
    a(f"s_load_dwordx2 s[{sWSlo}:{sWShi}], s[0:1], 64")
    code_prefetch(a, "gemm1_kernel", "K1_end", BB + 20, 60)
    a("v_lshrrev_b32 v8, 6, v0")
    a("v_and_b32 v9, 63, v0")
    a(f"v_readfirstlane_b32 s{sWV}, v8")
    a("v_lshrrev_b32 v12, 3, v9")
    a("v_and_b32 v13, 7, v9")
    a("v_lshrrev_b32 v14, 1, v12")
    a("v_xor_b32 v14, v14, v13")
    a(f"v_mul_u32_u24 v{vXS}, 768, v12")
    a(f"v_lshl_add_u32 v{vXS}, v14, 4, v{vXS}")
    a(f"s_lshr_b32 s{sT0}, s2, 4")
    a(f"s_and_b32 s{sSG0}, s{sT0}, {OPT['sga']}")
    a(f"s_lshl_b32 s{sT0}, s{sT0}, 4")
    a(f"s_and_b32 s{sT1}, s2, 7")
    a(f"s_lshl_b32 s{sT1}, s{sT1}, 1")
    a(f"s_add_u32 s{sT0}, s{sT0}, s{sT1}")
    a(f"s_bfe_u32 s{sT1}, s2, 0x10003")
    a(f"s_add_u32 s{sREG}, s{sT0}, s{sT1}")
    a(f"s_mul_i32 s{sSLO}, s{sT1}, 12")
    a(f"s_add_u32 s{sSHI}, s{sSLO}, 12")
    a(f"s_lshr_b32 s{sGRP}, s{sWV}, 2")
    a(f"s_and_b32 s{sT1}, s{sWV}, 3")
    a(f"s_add_u32 s{sT0}, s{sT0}, s{sGRP}")
    a(f"s_mul_i32 s{sXB}, s{sT0}, {REG}")
    a(f"s_mul_i32 s{sT2}, s{sT1}, {48 * 768}")
    a(f"s_add_u32 s{sXB}, s{sXB}, s{sT2}")
    if not OPT["roll"]: a(f"s_add_u32 s{sXB}, s{sXB}, {2 * 192 * 768}")
    a(f"s_mul_i32 s{sHB}, s{sT0}, {HSTRIDE}")
    if not OPT["roll"]: a(f"s_add_u32 s{sHB}, s{sHB}, {2 * TILE_H}")
    a(f"s_mul_i32 s59, s{sT0}, {REG}")
    if OPT["roll"]: a(f"s_add_u32 s59, s59, {2 * 192 * 768}")
    a(f"s_mul_i32 s{sXN}, s{sREG}, {REG}")
    a(f"s_add_u32 s{sT2}, s{sWV}, 4" if OPT["roll"] else f"s_xor_b32 s{sT2}, s{sWV}, 4")
    a(f"s_mul_i32 s{sT2}, s{sT2}, {48 * 768}")
    a(f"s_add_u32 s{sXN}, s{sXN}, s{sT2}")
    a(f"s_mul_i32 s{sHN}, s{sREG}, {HSTRIDE}")
    a(f"s_xor_b32 s{sT2}, s{sGRP}, {0 if OPT['roll'] else 1}")
    a(f"s_mul_i32 s{sT2}, s{sT2}, {TILE_H}")
    a(f"s_add_u32 s{sHN}, s{sHN}, s{sT2}")
    if OPT["roll"]: a(f"s_add_u32 s{sHN}, s{sHN}, {46 * CHUNK_H}")
    a(f"s_mov_b32 s{sSLN}, 0")
    a(f"s_mov_b32 s{sSHN}, 24")
    a(f"s_mov_b32 s{sDSP}, 23")
    a(f"s_mov_b32 s{sDSN}, -1")
    if OPT["ord"]:
        a(f"s_bitcmp1_b32 s2, {OPT['ord']}")
        a("s_cbranch_scc0 K1_noswap")
        for x, y in ((sXB, sXN), (sHB, sHN), (sSLO, sSLN), (sSHI, sSHN), (sDSP, sDSN)):
            a(f"s_mov_b32 s{sT2}, s{x}"); a(f"s_mov_b32 s{x}, s{y}"); a(f"s_mov_b32 s{y}, s{sT2}")
        a.label("K1_noswap")
    a(f"s_mul_i32 s{sD0}, s{sWV}, 6144")
    a(f"s_mov_b32 s{sCW}, s{sD0}")
    a(f"s_add_u32 s{sCW2}, s{sD0}, 49152")
    a("s_waitcnt lgkmcnt(0)")
    srd(a, sX, 4, 5, XBYTES)

    KPO = [3, 4, 5, 2, 1, 0]
    def xdma(n, pol=None):
        if pol is None:
            if OPT["x_nt"] == OPT["xp_nt"]: return xdma(n, OPT["x_nt"])
            return [f"s_cbranch_vccnz K1_xa{n}"] + xdma(n, OPT["x_nt"]) + [f"s_branch K1_xb{n}", f"K1_xa{n}:"] + xdma(n, OPT["xp_nt"]) + [f"K1_xb{n}:"]
        xnt = " nt" if pol else ""
        tt, kp = divmod(n, 6); kp = KPO[kp]
        return [f"s_add_u32 m0, s{(sCW, sCW2)[n // 3 % 2]}, {(n % 3) * 2048}", f"s_add_u32 s{sXU}, s{sXB}, {tt * 12288 + kp * 128}",
                f"buffer_load_dwordx4 v{vXS}, s[{sX}:{sX+3}], s{sXU} offen{xnt} lds",
                "s_add_u32 m0, m0, 1024", f"s_add_u32 s{sXU}, s{sXU}, 6144",
                f"buffer_load_dwordx4 v{vXS}, s[{sX}:{sX+3}], s{sXU} offen{xnt} lds"]
    srd(a, sH, 6, 7, C * 2)
    a(f"v_lshlrev_b32 v{ACC+4}, 2, v0")
    a(f"buffer_load_dword v{ACC}, v{ACC+4}, s[{sH}:{sH+3}], 0 offen")
    for n in range(6): a.ext(xdma(n, OPT['x_nt']))
    a('s_mov_b64 vcc, 0')

    a("v_and_b32 v10, 15, v9")
    a("v_lshrrev_b32 v11, 4, v9")
    a(f"v_lshlrev_b32 v{vST}, 2, v11")
    a(f"v_xor_b32 v{vST}, v{vST}, v9")
    a(f"v_lshlrev_b32 v{vST}, 4, v{vST}")
    a(f"s_mul_i32 s{sT2}, s{sT1}, 3072")
    a(f"v_add_u32 v{vST}, s{sT2}, v{vST}")
    a(f"v_lshlrev_b32 v{vDW}, 5, v11")
    a(f"v_add_u32 v{vDW}, {L_DW}, v{vDW}")
    a("v_and_b32 v14, 2, v12")
    a("v_xor_b32 v13, v13, v14")
    a(f"v_mul_u32_u24 v{vDE}, 3072, v12")
    a(f"v_lshl_add_u32 v{vDE}, v13, 4, v{vDE}")
    a(f"v_xor_b32 v{vDO}, 64, v{vDE}")
    a("v_lshrrev_b32 v12, 2, v10")
    a("v_lshl_add_u32 v13, v11, 3, v12")
    a(f"v_lshlrev_b32 v{vRB}, 7, v13")
    a("v_lshrrev_b32 v12, 1, v12")
    a("v_and_b32 v13, 1, v11")
    a("v_lshl_add_u32 v12, v13, 1, v12")
    a(f"v_lshl_add_u32 v{vRB}, v12, 5, v{vRB}")
    a("v_and_b32 v12, 3, v10")
    a(f"v_lshl_add_u32 v{vRB}, v12, 3, v{vRB}")
    a(f"s_mov_b32 s{sC0}, {f32(-C0)}")
    h = f16bits(-C0); a(f"s_mov_b32 s{sC0H}, 0x{h:04x}{h:04x}")
    a(f"s_mul_i32 s{sDS0}, s{sWV}, {6 * 24576}")
    a(f"s_add_u32 s{sSIG}, s{sSLO}, s{sSG0}")
    a(f"s_lshl_b32 s{sDLO}, s{sSLO}, 7")
    a(f"s_add_u32 s{sDLO}, s{sDLO}, s{sDS0}")
    a(f"s_lshl_b32 s{sDHI}, s{sSHI}, 7")
    a(f"s_add_u32 s{sDHI}, s{sDHI}, s{sDS0}")
    a(f"s_lshl_b32 s{sDSR}, s{sSG0}, 7")
    a(f"s_add_u32 s{sDSR}, s{sDSR}, s{sDLO}")
    a(f"s_mov_b32 s{sDSL}, s{sD0}")
    a(f"s_mov_b32 s{sTK}, 1")
    a(f"s_mov_b32 s{sW1+2}, {C * F * 2}")
    a(f"s_mov_b32 s{sW1+3}, 0x00020000")
    srd(a, sDB, sDBlo, sDBhi, 256)

    uid = [0]
    def dma():
        P = []
        for k in range(6):
            pre = [f"s_mov_b32 m0, s{sDSL}", f"s_mov_b32 s{sT0}, s{sDSR}"] if k == 0 else ["s_add_u32 m0, m0, 1024", f"s_add_u32 s{sT0}, s{sT0}, 24576"]
            P.append(pre + [f"buffer_load_dwordx4 v{(vDE, vDO)[k % 2]}, s[{sW1}:{sW1+3}], s{sT0} offen lds"])
        P[5] += [f"s_add_u32 s{sDSL}, s{sDSL}, 49152", f"s_cmp_ge_u32 s{sDSL}, 147456", f"s_cselect_b32 s{sDSL}, s{sD0}, s{sDSL}",
                 f"s_add_u32 s{sDSR}, s{sDSR}, 128", f"s_cmp_eq_u32 s{sDSR}, s{sDHI}", f"s_cselect_b32 s{sDSR}, s{sDLO}, s{sDSR}"]
        uid[0] += 1
        P[5] += [f"s_sub_u32 s{sDCN}, s{sDCN}, 1", f"s_cmp_lg_u32 s{sDCN}, 0", f"s_cbranch_scc1 K1_ds{uid[0]}",
                 f"s_lshl_b32 s{sDLO}, s{sSLN}, 7", f"s_add_u32 s{sDLO}, s{sDLO}, s{sDS0}", f"s_lshl_b32 s{sDHI}, s{sSHN}, 7", f"s_add_u32 s{sDHI}, s{sDHI}, s{sDS0}",
                 f"s_lshl_b32 s{sDSR}, s{sSG0}, 7", f"s_add_u32 s{sDSR}, s{sDSR}, s{sDLO}", f"K1_ds{uid[0]}:"]
        return P

    a(f"v_lshlrev_b32 v{ACC+4}, 3, v0")
    a(f"v_add_u32 v{ACC+4}, {L_DW}, v{ACC+4}")
    a("s_waitcnt vmcnt(12)")
    a(f"v_and_b32 v{ACC+2}, 0xffff, v{ACC}")
    a(f"v_and_b32 v{ACC+3}, 0xffff0000, v{ACC}")
    a(f"ds_write_b64 v{ACC+4}, {q(ACC+2, 2)}")
    a(f"v_mov_b32 v{BB+8}, 1")
    a(f"s_cmp_lg_u32 s{sWV}, 0")
    a("s_cbranch_scc1 K1_pj")
    a(f"v_lshlrev_b32 v{ACC+5}, 8, v0")
    a(f"s_and_b32 s{sT0}, s2, {NREP - 1}")
    a(f"s_lshl_b32 s{sT0}, s{sT0}, 2")
    a(f"buffer_atomic_add v{BB+8}, v{ACC+5}, s[{sDB}:{sDB+3}], s{sT0} offen sc0")
    a.label("K1_pj")
    for r in range(SQ, SQ + 24): a(f"v_mov_b32 v{r}, 0")
    srd(a, sH, sWSlo, sWShi, TAIL)
    a(f"s_mov_b32 s{sI}, 0")
    a(f"s_sub_u32 s{sEND}, s{sSHI}, s{sSLO}")
    a(f"s_mov_b32 s{sRDS}, 0")
    a(f"s_mov_b32 s{sKM}, {OPT['kmask']}")
    a(f"s_mov_b32 s{sDCN}, s{sEND}")
    a(f"s_sub_u32 s{sEND}, s{sEND}, 2")
    a("s_waitcnt lgkmcnt(0)")
    a("s_barrier")
    stamp(a, 1)

    def buf(i): return BB + 4 * (i % 8)
    def rd(i):
        ct, ks = divmod(i, 12)
        L = [f"v_xor_b32 v{vRD}, {((ct - 1) ^ ct) << 5}, v{vRD}"] if ks == 0 and ct > 0 else []
        return L + [f"ds_read_b64_tr_b16 {q(buf(i) + 2*u, 2)}, v{vRD} offset:{ks*4096 + u*512}" for u in range(2)]
    def head(): return [f"v_add_u32 v{vRD}, s{sRDS}, v{vRB}"] + [x for i in range(4) for x in rd(i)]

    DWR = [BB + 16, BB + 24]
    S = BB; Q = BB + 4; vTK = BB + 8; vW2 = BB + 10; vXR = BB + 12; vT = BB + 13; vFL = BB + 14
    KSO = [6, 7, 8, 9, 10, 11, 5, 4, 3, 2, 1, 0]
    def dwrd(m): return [f"ds_read_b128 {q(DWR[m % 2] + 4*j)}, v{vDW} offset:{KSO[m % 12]*128 + j*16}" for j in range(2)]
    def xaddr():
        return [f"v_and_b32 v{vT}, 15, v0", f"v_lshlrev_b32 v{vXR}, 7, v{vT}", f"v_bfe_u32 v{vT}, v0, 1, 2", f"v_bfe_u32 v{vFL}, v0, 4, 2",
                f"v_xor_b32 v{vT}, v{vT}, v{vFL}", f"v_lshl_add_u32 v{vXR}, v{vT}, 4, v{vXR}", f"v_add_u32 v{vT}, s{sCW2}, v{vXR}", f"v_add_u32 v{vXR}, s{sCW}, v{vXR}"]
    def xread(n):
        tt, kp = divmod(n, 6); kp = KPO[kp]
        return [f"ds_read_b128 {q(XN + 48*tt + 8*kp + 4*e)}, v{(vXR, vT)[n // 3 % 2]} offset:{(n % 3) * 2048 + e * 64}" for e in range(2)]
    a.ext(xaddr())
    a.label("K1_ln")
    a.ext(dwrd(0))
    def yreg(tt, d): return XN + 48*tt + 2*d if d < 24 else ACC + 2*(d - 24)
    for tt in range(3):
        for m in range(12):
            n = tt * 6 + m // 2; ks = KSO[m]
            if m % 2 == 0:
                if tt == 0: a(f"s_cbranch_vccnz K1_ta{n}")
                a(f"s_waitcnt vmcnt({2 * min(5, 17 - n) + (6 if n > 14 else 0)})")
                a.ext(xread(n))
                if tt == 0: a.label(f"K1_ta{n}")
            last = tt == 2 and m == 11
            if not last: a.ext(dwrd(m + 1))
            a(f"s_waitcnt lgkmcnt({0 if last else 2})")
            if m % 2 == 0:
                if tt == 0:
                    a(f"s_cbranch_vccnz K1_tb{n}")
                    a.ext(xdma(n + 6, OPT["x_nt"]))
                    a.label(f"K1_tb{n}")
                elif n + 6 < 18: a.ext(xdma(n + 6))
                if n in (14, 17):
                    for p in dma(): a.ext(p)
            D = DWR[m % 2]
            for jj in (3, 2, 1, 0):
                d = 4 * ks + jj; x = XN + 48*tt + d; y = yreg(tt, d)
                a(f"v_dot2_f32_bf16 v{y+1}, v{x}, v{D+2*jj+1}, 0")
                a(f"v_dot2_f32_bf16 v{y}, v{x}, v{D+2*jj}, 0")
            for jj in (3, 2, 1, 0):
                y = q(yreg(tt, 4 * ks + jj), 2); s_ = q(S + 2*(jj % 2), 2); q_ = q(Q + 2*(jj % 2), 2)
                if m == 0 and jj >= 2:
                    a(f"v_pk_mul_f32 {s_}, {y}, 1.0 op_sel_hi:[1,0]")
                    a(f"v_pk_mul_f32 {q_}, {y}, {y}")
                else:
                    a(f"v_pk_add_f32 {s_}, {s_}, {y}")
                    a(f"v_pk_fma_f32 {q_}, {y}, {y}, {q_}")
        a(f"v_pk_add_f32 {q(S,2)}, {q(S,2)}, {q(S+2,2)}")
        a(f"v_pk_add_f32 {q(Q,2)}, {q(Q,2)}, {q(Q+2,2)}")
        a(f"v_add_f32 v{S}, v{S}, v{S+1}")
        a(f"v_add_f32 v{Q}, v{Q}, v{Q+1}")
        for sw in ("v_permlane16_swap_b32", "v_permlane32_swap_b32"):
            a(f"v_mov_b32 v{S+1}, v{S}"); a(f"v_mov_b32 v{Q+1}, v{Q}")
            a("s_nop 0")
            a(f"{sw} v{S}, v{S+1}"); a(f"{sw} v{Q}, v{Q+1}")
            a(f"v_add_f32 v{S}, v{S}, v{S+1}"); a(f"v_add_f32 v{Q}, v{Q}, v{Q+1}")
        a(f"v_mul_f32 v{S}, {f32(-1.0 / C)}, v{S}")
        a(f"v_mul_f32 v{Q}, {f32(1.0 / C)}, v{Q}")
        a(f"v_fma_f32 v{Q}, -v{S}, v{S}, v{Q}")
        a(f"v_max_f32 v{Q}, 0, v{Q}")
        a(f"v_add_f32 v{Q}, {f32(1e-5)}, v{Q}")
        a(f"v_rsq_f32 v{Q}, v{Q}")
        a("s_nop 0")
        a(f"v_mul_f32 v{Q}, {f32(ALPHA)}, v{Q}")
        a(f"v_mul_f32 v{S}, v{S}, v{Q}")
        for d0 in range(0, 48, 4):
            for d in range(d0, d0 + 4):
                y = q(yreg(tt, d), 2)
                a(f"v_pk_fma_f32 {y}, {y}, {q(Q,2)}, {q(S,2)} op_sel_hi:[1,0,0]")
            for d in range(d0, d0 + 4):
                a(f"v_cvt_pk_bf16_f32 v{XN + 48*tt + d}, v{yreg(tt, d)}, v{yreg(tt, d) + 1}")
    a(f"s_cmp_lg_u32 s{sI}, 0")
    a("s_cbranch_scc1 K1_chk")
    if OPT["w1warm"]:
        a(f"s_lshr_b32 s{sT0}, s2, 3")
        a(f"s_lshl_b32 s{sT0}, s{sT0}, 3")
        a(f"s_add_u32 s{sT0}, s{sT0}, s{sWV}")
        a(f"s_mul_i32 s{sT0}, s{sT0}, 4608")
        a(f"v_and_b32 v{ACC}, 63, v0")
        a(f"v_min_u32 v{ACC}, 35, v{ACC}")
        a(f"v_lshlrev_b32 v{ACC}, 7, v{ACC}")
        a(f"s_mov_b32 m0, {L_DW + 2048}")
        a("s_waitcnt vmcnt(0)")
        a(f"buffer_load_dword v{ACC}, s[{sW1}:{sW1+3}], s{sT0} offen lds")
    a(f"v_readfirstlane_b32 s{sTK}, v{BB+8}")
    a("s_nop 3")
    a(f"s_cmp_lg_u32 s{sTK}, 0")
    a("s_cbranch_scc1 K1_flag")
    srd(a, 60, sWSlo, sWShi, NREP * 6144, SSQ)
    a(f"s_and_b32 s{sT0}, s2, {NREP - 1}")
    a(f"s_mul_i32 s{sT1}, s{sT0}, 6144")
    a(f"s_add_u32 s{sT2}, s{sT1}, 4096")
    for i in range(4): a(f"v_mov_b32 v{ACC+i}, 0")
    a(f"v_lshlrev_b32 v{ACC+4}, 4, v0")
    for k in range(6): a(f"buffer_store_dwordx4 {q(ACC)}, v{ACC+4}, s[60:63], s{(sT1, sT2)[k // 4]} offen offset:{(k % 4) * 1024} sc0 sc1")
    a(f"v_lshlrev_b32 v{ACC+5}, 8, v0")
    a(f"v_mov_b32 v{ACC+6}, 1")
    a(f"s_lshl_b32 s{sT0}, s{sT0}, 2")
    a("s_waitcnt vmcnt(0)")
    a(f"buffer_store_dword v{ACC+6}, v{ACC+5}, s[{sDB}:{sDB+3}], s{sT0} offen offset:64 sc0 sc1")
    a("s_branch K1_flag")
    a.label("K1_chk")
    a(f"v_readfirstlane_b32 s{sT1}, v{vFL+1}")
    a("s_nop 3")
    a(f"s_cmp_lg_u32 s{sT1}, 0")
    a("s_cbranch_scc1 K1_flag")
    a(f"v_mov_b32 v{vFL}, 0")
    a(f"buffer_load_dword v{vFL+1}, v{vFL}, s[{sDB}:{sDB+3}], s{sT2} offen offset:64 sc0 sc1")
    a("s_waitcnt vmcnt(0)")
    a("s_branch K1_chk")
    a.label("K1_flag")
    if OPT["w1warm"]:
        a(f"s_cmp_eq_u32 s{sI}, 0")
        a("s_cbranch_scc1 K1_fl2")
    a("s_waitcnt vmcnt(0)")
    a.label("K1_fl2")
    stamp2(a, 2, 5, sI)
    a("s_barrier")
    stamp2(a, 3, 6, sI)
    a.ext(head())
    if OPT["mst"]:
        a(f"s_mov_b32 s{sH+2}, 0")
        a(f"s_mov_b32 s{sST0}, 0")
        a(f"s_mov_b32 s{sST1}, 0")
    a(f"s_cmp_eq_u32 s{sGRP}, 0")
    a("s_cbranch_scc1 K1_regA")
    a("s_barrier")
    a("s_branch K1_regB")

    def accr(ct, tt): return ACC + (((ct >> 1) * 3 + tt) * 2 + (ct & 1)) * 4
    NT = OPT["ntail"]
    MST = OPT["mst"]
    def store(kind, cp, tt):
        keep = kind == "regk" or (kind != "tail" and (OPT["stm"] >> (cp * 3 + tt)) & 1)
        return (f"buffer_store_dwordx4 {q(ACC + (cp * 3 + tt) * 8 + 4 * MST)}, v{vST}, s[{sH}:{sH+3}], s{(sST0, sST1)[cp]} offen offset:{tt*1024}"
                + (" nt" if OPT["st_nt"] and not keep else ["", " sc1", " sc0 sc1", " sc0"][OPT["kf"]]))
    def step(kind, grp):
        tag = kind + "AB"[grp]
        BG = OPT["bg"] if grp == 0 else OPT["bgb"]
        if kind == "tail":
            a.label(f"K1_pre{tag}")
            if OPT["npf"]:
                a("s_getpc_b64 s[60:61]")
                a.label(f"K1_pc{tag}")
                a(f"v_lshlrev_b32 v{TMP}, 7, v0")
                a(f"v_min_u32 v{TMP}, K3_end-K1_fin, v{TMP}")
                a(f"v_add_u32 v{TMP}, K1_fin-K1_pc{tag}, v{TMP}")
                a(f"v_mov_b32 v{TMP+3}, s61")
                a(f"v_add_co_u32 v{TMP+2}, vcc, s60, v{TMP}")
                a(f"s_mov_b32 m0, {L_DW + 2048}")
                a("s_nop 0")
                a(f"v_addc_co_u32 v{TMP+3}, vcc, 0, v{TMP+3}, vcc")
                a(f"global_load_lds_dword {q(TMP+2, 2)}, off")
            if OPT["wb"] and grp == 1:
                assert NT <= 2
                a(f"s_cmp_lg_u32 s{sWV}, 4")
                a(f"s_cbranch_scc1 K1_{tag}")
                a(f"s_cmp_ge_u32 s2, {OPT['wb']}")
                a(f"s_cbranch_scc1 K1_{tag}")
                a("buffer_wbl2 sc1")
        a(".p2align 6")
        a.label(f"K1_{tag}")
        a(f"s_setprio {OPT['pm']}")
        P = dma()
        misc = [[f"s_add_u32 s{sRDS}, s{sRDS}, 49152", f"s_cmp_eq_u32 s{sRDS}, 147456", f"s_cselect_b32 s{sRDS}, 0, s{sRDS}",
                 f"s_mul_i32 s{sST0}, s{sSIG}, {2 * CHUNK_H}", f"s_add_u32 s{sST0}, s{sST0}, s{sHB}"],
                [f"s_cmp_eq_u32 s{sSIG}, s{sDSP}", f"s_cselect_b32 s{sH}, s{sOUTlo}, s{sWSlo}", f"s_cselect_b32 s{sH+1}, s{sOUThi}, s{sWShi}",
                 f"s_cselect_b32 s{sST0}, s59, s{sST0}", f"s_mov_b32 s{sT1}, {XBYTES}", f"s_cselect_b32 s{sH+2}, s{sT1}, {TAIL}"],
                [f"s_add_u32 s{sST1}, s{sST0}, {CHUNK_H}", f"s_add_u32 s{sI}, s{sI}, 1"]]
        def atoms(L):
            out = []; hold = False
            for x in L:
                if hold: out[-1].append(x)
                else: out.append([x])
                if x.startswith("s_cbranch"): hold = True
                if x.endswith(":"): hold = False
            return out
        early = atoms([x for m_ in misc for x in m_])
        if kind == "pre":
            late = [f"s_mov_b32 s{sCW}, s{sDSL}", f"s_mov_b32 s{sXB}, s{sXN}", f"s_add_u32 s{sCW2}, s{sDSL}, 49152",
                    f"s_cmp_ge_u32 s{sCW2}, 147456", f"s_cselect_b32 s{sCW2}, s{sD0}, s{sCW2}"] + [x for n_ in range(3) for x in xdma(n_, OPT["xp_nt"])]
        elif kind == "last": late = [x for n_ in range(3, 6) for x in xdma(n_, OPT["xp_nt"])]
        elif kind == "tail" and NT <= 2: late = ["s_nop 0"] * 8
        else: late = [x for p in P for x in p]
        late = atoms(late)
        if MST:
            ST = [[store(kind, cp, tt)] for cp in range(2) for tt in range(3)]
            ind = early[:3] + early[-1:]; dep = early[3:-1]
            if grp == 0:
                early = [ST[0], ind[0], ind[1], ST[1], ind[2], ind[3], ST[2], [], ST[3], [], ST[4], [], ST[5]] + dep[:2]
                late = late + dep[2:]
            else:
                seq = late + ind
                lastd = max([z for z, x in enumerate(seq) if x[0].startswith("buffer")] or [6])
                for z, pos in reversed(list(enumerate([0, 3, 6, lastd + 2, lastd + 3 + (len(late) > lastd + 3), lastd + 4 + 2 * (len(late) > lastd + 3)]))): seq.insert(pos, ST[z])
                early, late = seq + dep, []
            nafter = 3
        elif grp == 1: early, late = late + early, []
        nse = sum(1 for x in early if x and x[0].startswith("buffer_store"))
        SPR = OPT["spr"]
        for g in range(12):
            a("s_waitcnt lgkmcnt(0)")
            k = 0
            ct = g // 3
            R = [x for j in range(4) for x in rd((g + 1) * 4 + j)] if g < 11 else []
            xo = None
            if len(R) == 9: R = R[1:]
            if 0 < g + 2 < 12 and (g + 2) % 3 == 0: xo = rd((g + 2) * 4)[0]
            if OPT["rpg"] == 2: R = [R[2*z] + "\n" + R[2*z+1] for z in range(len(R) // 2)]
            if OPT["rpg"] == 3: R = [R[0] + "\n" + R[1], R[2] + "\n" + R[3]] + R[4:] if R else R
            for tt in range(3):
                for j in range(4):
                    i = g * 4 + j; ks = i % 12
                    c = "0" if ks == 0 else q(accr(ct, tt))
                    a(f"v_mfma_f32_16x16x32_bf16 {q(accr(ct, tt))}, {q(XN + 48*tt + 4*ks)}, {q(buf(i))}, {c}")
                    if k < len(R): a(R[k])
                    elif k == 11 and xo: a(xo)
                    elif g == BG and grp == 0 and k == 9:
                        assert not early
                        if kind != "last" and not OPT["k1nv"] & 1: a(f"s_waitcnt vmcnt({nse if MST else 6})")
                        a("s_barrier")
                        early, late = late, []
                    else:
                        for _ in range(SPR):
                            if early:
                                at = early.pop(0); a.ext(at)
                                if at and at[0].startswith("buffer_store"): assert g < (3 if f"s{sST0} " in at[0] else 9), (g, at)
                                if not at or at[0].startswith("buffer"): break
                    k += 1
        assert not early and not late
        a(f"s_setprio {OPT['pg0']}")
        if kind == "last": a.ext(xaddr())
        def gbar():
            if kind == "tail":
                a(f"s_cmp_eq_u32 s{sI}, 36")
                a(f"s_cbranch_scc1 K1_nogb")
            if kind != "pre" and not (kind == "tail" and NT <= 2) and not OPT["k1nv"] & 2: a(f"s_waitcnt vmcnt({nafter if MST else nb - len(pend)})")
            a("s_barrier")
            if kind == "tail": a.label("K1_nogb")
        nb = 0; pend = []
        for cp in range(2):
            for tt in range(3):
                b = ACC + (cp * 3 + tt) * 8
                GB = gelu_batch(b, TMP, SS + 2 * cp, tt == 0, sC0, sC0H)
                if OPT["gbo"] and nb == OPT["gb"] and grp == 1 and kind != "last":
                    a.ext(GB[:OPT["gbo"]]); gbar(); a.ext(GB[OPT["gbo"]:])
                else: a.ext(GB)
                if not MST or kind == "last": pend.append(store(kind, cp, tt))
                if kind == "last" or nb + 1 >= OPT["lst"]:
                    a.ext(pend); pend = []
                if kind == "last":
                    a(f"s_waitcnt vmcnt({13 + 3 * nb if nb < 3 else 11 + nb})")
                    a.ext(xread(nb))
                    a("s_waitcnt lgkmcnt(0)")
                    a.ext(xdma(nb + 6, OPT["xp_nt"]))
                nb += 1
                if nb == OPT["gb"] and grp == 1 and kind != "last" and not OPT["gbo"]: gbar()
                if nb == OPT["gp"]: a(f"s_setprio {OPT['pg1']}")
                if nb == OPT["hd"] and kind != "last": a.ext(head())
            if not OPT["sdot"]:
                a(f"v_permlane16_swap_b32 v{SS+2*cp}, v{SS+2*cp+1}")
                if cp == 0: a("s_nop 0")
                a(f"v_add_f32 v{SS+2*cp}, v{SS+2*cp}, v{SS+2*cp+1}")
        if OPT["sdot"]:
            for tt in range(3):
                for i in range(2):
                    for c in range(4):
                        p = ACC + ((c >> 1) * 3 + tt) * 8 + 2 * (c & 1) + i + 4 * MST
                        a(f"v_dot2_f32_bf16 v{SS+c}, v{p}, v{p}, 0" if tt == 0 and i == 0 else (f"v_dot2_f32_bf16 v{SS+c}, v{p}, v{p}, v{SS+c}" if OPT["sdot"] == 1 else f"v_dot2c_f32_bf16 v{SS+c}, v{p}, v{p}"))
                    if pend: a(pend.pop(0))
                    if OPT["hd"] == 7 and kind != "last":
                        H_ = head(); z = tt * 2 + i
                        a.ext(H_[:3] if z == 0 else H_[1 + 2 * z: 3 + 2 * z])
            a(f"s_add_u32 s{sT1}, s{sSIG}, 1")
            a(f"v_permlane16_swap_b32 v{SS}, v{SS+1}")
            a(f"s_cmp_eq_u32 s{sT1}, s{sSHI}")
            a(f"v_permlane16_swap_b32 v{SS+2}, v{SS+3}")
            a(f"v_add_f32 v{SS}, v{SS}, v{SS+1}")
            a(f"v_add_f32 v{SS+2}, v{SS+2}, v{SS+3}")
        else:
            a(f"s_add_u32 s{sT1}, s{sSIG}, 1")
            a(f"s_cmp_eq_u32 s{sT1}, s{sSHI}")
        a(f"s_cselect_b32 s{sT1}, s{sSLO}, s{sT1}")
        a("s_nop 0")
        a(f"v_permlane32_swap_b32 v{SS}, v{SS+2}")
        a(f"v_add_f32 v{SS}, v{SS}, v{SS+2}")
        a(f"s_set_gpr_idx_on s{sSIG}, gpr_idx(SRC0,DST)")
        a(f"s_mov_b32 s{sSIG}, s{sT1}")
        a(f"v_add_f32 v{SQ}, v{SQ}, v{SS}")
        a("s_set_gpr_idx_off")
        if kind in ("reg", "regk"):
            g_ = "AB"[grp]
            if OPT["kmask"]:
                a(f"s_cmp_eq_u32 s{sI}, s{sEND}")
                a(f"s_cbranch_scc1 K1_out{g_}")
                a(f"s_bitcmp1_b32 s{sKM}, s{sSIG}")
                a(f"s_cbranch_scc{int(kind == 'regk')} K1_{tag}")
                if kind == "reg": a(f"s_branch K1_regk{g_}")
            else:
                a(f"s_cmp_lg_u32 s{sI}, s{sEND}")
                a(f"s_cbranch_scc1 K1_{tag}")
            if kind == "reg":
                a.label(f"K1_out{g_}")
                a(f"s_cmp_eq_u32 s{sI}, {36 - NT}")
                a(f"s_cbranch_scc1 K1_pretail{g_}")
        elif kind == "pre":
            pass
        elif kind == "last":
            a("s_branch K1_sw")
        else:
            a(f"s_cmp_lg_u32 s{sI}, 36")
            a(f"s_cbranch_scc1 K1_{tag}")
            a("s_branch K1_fin")
    for grp in range(2):
        for kind in (("regk",) if OPT["kmask"] else ()) + ("reg", "pre", "last", "tail"): step(kind, grp)
    a.label("K1_sw")
    a("s_setprio 0")
    a("s_mov_b64 vcc, -1")
    stamp(a, 4)
    a(f"s_mov_b32 s{sEND}, {36 - NT}")
    a(f"s_mov_b32 s{sSLO}, s{sSLN}")
    a(f"s_mov_b32 s{sSHI}, s{sSHN}")
    a(f"s_add_u32 s{sSIG}, s{sSLO}, s{sSG0}")
    a(f"s_mov_b32 s{sHB}, s{sHN}")
    a(f"s_mov_b32 s{sDSP}, s{sDSN}")
    a(f"s_and_b32 s{sT2}, s2, {NREP - 1}")
    a(f"s_lshl_b32 s{sT2}, s{sT2}, 2")
    a("s_waitcnt lgkmcnt(0)")
    a(f"v_mov_b32 v{vFL}, 0")
    a(f"buffer_load_dword v{vFL+1}, v{vFL}, s[{sDB}:{sDB+3}], s{sT2} offen offset:64 sc0 sc1")
    if OPT["w2pf"]:
        a("s_load_dwordx2 s[60:61], s[0:1], 24")
        a(f"s_mov_b32 s62, {C * F * 2}")
        a("s_mov_b32 s63, 0x00020000")
        a(f"s_mul_i32 s{sT0}, s2, 4608")
        a(f"v_lshlrev_b32 v{BB+10}, 7, v0")
        a(f"v_min_u32 v{BB+10}, 4480, v{BB+10}")
        a("s_waitcnt lgkmcnt(0)")
        a(f"s_cmp_lg_u32 s{sWV}, 0")
        a("s_cbranch_scc1 K1_ln")
        a(f"buffer_load_dword v{BB+11}, v{BB+10}, s[60:63], s{sT0} offen")
    a("s_branch K1_ln")
    a.label("K1_fin")
    a("s_setprio 0")
    if MST:
        for cp in range(2):
            for tt in range(3): a(store("tail", cp, tt))
    stamp(a, 7)
    a(f"s_and_b32 s{sT0}, s2, {NREP - 1}")
    a("s_waitcnt lgkmcnt(0)" if NT <= 2 else "s_waitcnt vmcnt(6) lgkmcnt(0)")
    a("s_barrier")
    a("v_and_b32 v1, 63, v0")
    a("v_lshlrev_b32 v1, 2, v1")
    a(f"v_add_u32 v1, s{sD0}, v1")
    for k in range(24): a(f"ds_write_b32 v1, v{SQ+k} offset:{k*256}")
    a("v_lshlrev_b32 v1, 2, v0")
    a("s_waitcnt lgkmcnt(0)")
    a("s_barrier")
    for k in range(3):
        for w in range(8): a(f"ds_read_b32 v{XN+8*k+w}, v1 offset:{w*6144 + k*2048}")
    srd(a, 60, sWSlo, sWShi, NREP * 6144, SSQ)
    a(f"s_mul_i32 s{sT0}, s{sT0}, 6144")
    a(f"s_add_u32 s{sT1}, s{sT0}, 4096")
    a("s_waitcnt lgkmcnt(0)")
    for st in (4, 2, 1):
        for k in range(3):
            for w in range(st): a(f"v_add_f32 v{XN+8*k+w}, v{XN+8*k+w}, v{XN+8*k+w+st}")
    a(f"buffer_atomic_add_f32 v{XN}, v1, s[60:63], s{sT0} offen")
    a(f"buffer_atomic_add_f32 v{XN+8}, v1, s[60:63], s{sT0} offen offset:2048")
    a(f"buffer_atomic_add_f32 v{XN+16}, v1, s[60:63], s{sT1} offen")
    if OPT["stamp"]: a("s_waitcnt vmcnt(0)")
    stamp(a, 8)
    stamp_dump(a, 9, sWV, "K1", 0)
    if OPT["fuse"]:
        a("s_waitcnt vmcnt(0)")
        a("s_barrier")
        for i_ in range(4): a(f"s_mov_b32 s{48+i_}, s{sDB+i_}" if i_ < 3 else f"s_mov_b32 s51, 0x00020000")
        a(f"s_cmp_lg_u32 s{sWV}, 0")
        a("s_cbranch_scc1 K1_tk")
        a("v_lshlrev_b32 v2, 8, v0")
        a("v_mov_b32 v3, 1")
        a("buffer_atomic_add v3, v2, s[48:51], 0 offen offset:128 sc0")
        a(f"v_mov_b32 v2, {L_DW}")
        a("s_waitcnt vmcnt(0)")
        a("v_readfirstlane_b32 s2, v3")
        a("s_nop 1")
        a("v_mov_b32 v3, s2")
        a("ds_write_b32 v2, v3")
        a("s_waitcnt lgkmcnt(0)")
        a.label("K1_tk")
        a("s_barrier")
        a(f"v_mov_b32 v2, {L_DW}")
        a("ds_read_b32 v3, v2")
        a("s_waitcnt lgkmcnt(0)")
        a("v_readfirstlane_b32 s2, v3")
        a("s_nop 3")
        if OPT["fw"]: a(f"s_sub_u32 s2, s2, {OPT['fw']}")
        a("s_cmp_ge_u32 s2, 24")
        a("s_cbranch_scc1 K1_end")
        k2(a)
    a.label("K1_end")
    a("s_endpgm")
    return a, desc("gemm1_kernel", 256, 100), f"; @launch kernel=gemm1_kernel grid=(256,1,1) block=(512,1,1) lds={L_DW + 4096}"

T1B = 46 * CHUNK_H; T2B = 94 * CHUNK_H
def k3r():
    REG = 3 * 192 * 768
    a = Asm()
    ACC = 16; HB = 160; WB = 184; SEL = 208; BIAS = 216; XT = 240
    vD0, vWR, vHR0, vHR1, vXR, vOUT, vWB0, vHB0, vHB1 = 1, 4, 5, 6, 7, 8, 9, 10, 11
    L_H = 73728; L_X = 147456
    sD, sO = 8, 12
    (sWV, sTH, sCQ, sSrc, sDst, sSlot, sDLo, sDEnd, sT0, sT1, sWS, sHS, sPASS, sOB, sEV, sT2, sJd, sLag, sSrc3, sSrcL, sSrcL3, sLim, sHalf, sDP, sHlo, sHhi) = range(30, 56)
    STG = OPT["stg"]; NB = (5 * STG + 1 + 3) // 4 * 4
    kernel_start(a, "gemm2_kernel")
    a("s_cmp_ge_u32 s2, 256")
    a("s_cbranch_scc1 K3_end")
    stamp(a, 0)
    a("s_load_dwordx2 s[4:5], s[0:1], 0")
    a("s_load_dwordx2 s[6:7], s[0:1], 48")
    a("s_load_dwordx2 s[24:25], s[0:1], 64")
    code_prefetch(a, "gemm2_kernel", "K3_end", 100, 60)
    a("v_lshrrev_b32 v16, 6, v0")
    a("v_and_b32 v17, 63, v0")
    a(f"v_readfirstlane_b32 s{sWV}, v16")
    a(f"v_lshlrev_b32 v{vD0}, 4, v17")
    a(f"v_add_u32 v{vD0+1}, 1024, v{vD0}")
    a(f"v_add_u32 v{vD0+2}, 2048, v{vD0}")
    a("v_and_b32 v18, 15, v17")
    a("v_lshrrev_b32 v19, 4, v17")
    a("v_mul_u32_u24 v20, 24, v18")
    a(f"s_lshr_b32 s{sTH}, s{sWV}, 2")
    a(f"s_and_b32 s{sCQ}, s{sWV}, 3")
    a(f"s_mov_b32 s{sD+3}, 0x00020000")
    a(f"s_mov_b32 s{sO+3}, 0x00020000")
    a(f"s_mov_b32 s{sO+2}, 0")
    a(f"s_mul_i32 s{sT0}, s2, {REG}")
    a(f"s_and_b32 s{sHalf}, s{sWV}, 1")
    a(f"s_mul_i32 s{sHalf}, s{sHalf}, 6144")
    a(f"s_mul_i32 s{sT1}, s2, {HSTRIDE}")
    a(f"s_mov_b32 s{sJd}, 0")
    a(f"s_mov_b32 s{sLag}, 0")
    a(f"s_mov_b32 s{sDP}, 0")
    a(f"s_mov_b32 s{sSrc}, s{sHalf}")
    a("s_waitcnt lgkmcnt(0)")
    a(f"s_add_u32 s{sO}, s6, s{sT0}")
    a(f"s_addc_u32 s{sO+1}, s7, 0")
    a(f"s_add_u32 s{sHlo}, s24, s{sT1}")
    a(f"s_addc_u32 s{sHhi}, s25, 0")
    srd(a, 16, 24, 25, 1536 * NBP, B2)
    a(f"s_mul_i32 s{sT1}, s{sCQ}, 384")
    for p in range(NBP):
        a(f"buffer_load_dwordx3 {q(24 + 8*p, 3)}, v20, s[16:19], s{sT1} offen")
        a(f"buffer_load_dwordx3 {q(28 + 8*p, 3)}, v20, s[16:19], s{sT1} offen offset:12")
        if p < NBP - 1: a(f"s_add_u32 s{sT1}, s{sT1}, 1536")

    nt = " nt" if OPT["h_nt"] else ""
    def pieces_w():
        P = []
        for k in range(6):
            pre = [f"s_mov_b32 m0, s{sDst}", f"s_add_u32 s{sT2}, s{sSrc}, 3072"] if k == 0 else ["s_add_u32 m0, m0, 1024", "s_nop 0"]
            P.append(pre + [f"buffer_load_dwordx4 v{vD0 + k % 3}, s[{sD}:{sD+3}], s{sSrc if k < 3 else sT2} offen lds"])
        P[5] += [f"s_add_u32 s{sDst}, s{sDst}, 24576", f"s_cmp_eq_u32 s{sDst}, s{sDEnd}", f"s_cselect_b32 s{sDst}, s{sDLo}, s{sDst}",
                 f"s_add_u32 s{sSrc}, s{sSrc}, 24576", f"s_cmp_ge_u32 s{sSrc}, 1179648", f"s_cselect_b32 s{sSrc}, s{sDLo}, s{sSrc}"]
        return P
    uid = [0]
    def pieces_h():
        P = []
        for k in range(6):
            if k == 0:
                P.append([f"s_mov_b32 m0, s{sDst}", f"s_add_u32 s{sSrc3}, s{sSrc}, 3072",
                          f"buffer_load_dwordx4 v{vD0}, s[{sD}:{sD+3}], s{sSrc} offen{nt} lds",
                          f"s_sub_u32 s{sSrcL}, s{sSrc}, s{sLag}", f"s_sub_u32 s{sSrcL3}, s{sSrc3}, s{sLag}"])
            else:
                P.append(["s_add_u32 m0, m0, 1024", f"s_cmp_lt_u32 s{sJd}, {STG * k}",
                          f"s_cselect_b32 s{sT2}, s{sSrcL if k < 3 else sSrcL3}, s{sSrc if k < 3 else sSrc3}",
                          f"buffer_load_dwordx4 v{vD0 + k % 3}, s[{sD}:{sD+3}], s{sT2} offen{nt} lds"])
        uid[0] += 1; u = uid[0]
        P[5] += [f"s_add_u32 s{sDst}, s{sDst}, s{sSlot}", f"s_cmp_eq_u32 s{sDst}, s{sDEnd}", f"s_cselect_b32 s{sDst}, s{sDLo}, s{sDst}",
                 f"s_add_u32 s{sSrc}, s{sSrc}, 12288", f"s_cmp_ge_u32 s{sSrc}, s{sLim}", f"s_cselect_b32 s{sD+2}, 0, s{sD+2}",
                 f"s_add_u32 s{sJd}, s{sJd}, 1", f"s_cmp_lt_u32 s{sJd}, 46", f"s_cbranch_scc1 K3_av{u}",
                 f"s_add_u32 s{sT2}, s{sJd}, s{sDP}", f"s_cmp_lg_u32 s{sT2}, 46", f"s_cbranch_scc1 K3_aw{u}",
                 f"s_mov_b32 s{sD}, s{sO}", f"s_mov_b32 s{sD+1}, s{sO+1}", f"s_mov_b32 s{sD+2}, {REG}", f"s_add_u32 s{sSrc}, s{sHalf}, {2 * 192 * 768}",
                 f"K3_aw{u}:", f"s_cmp_lg_u32 s{sJd}, 48", f"s_cbranch_scc1 K3_av{u}",
                 f"s_mov_b32 s{sJd}, 0", f"s_mov_b32 s{sLag}, {48 * CHUNK_H}", f"s_cmp_lg_u32 s{sDP}, 0", f"s_cbranch_scc1 K3_av{u}",
                 f"s_mov_b32 s{sDP}, 100", f"s_mov_b32 s{sLag}, {46 * CHUNK_H}", f"s_mov_b32 s{sD}, s{sHlo}", f"s_mov_b32 s{sD+1}, s{sHhi}",
                 f"s_mov_b32 s{sD+2}, {HSTRIDE}", f"s_add_u32 s{sSrc}, s{sHalf}, {T1B}",
                 f"K3_av{u}:"]
        return P

    a(f"s_cmp_lt_u32 s{sWV}, 4")
    a("s_cbranch_scc1 K3_rw")
    a(f"s_cmp_ge_u32 s{sWV}, 6")
    a("s_cbranch_scc1 K3_rx")
    a(f"s_mov_b32 s{sD}, s{sHlo}")
    a(f"s_mov_b32 s{sD+1}, s{sHhi}")
    a(f"s_mov_b32 s{sD+2}, {HSTRIDE}")
    a(f"s_add_u32 s{sDLo}, s{sHalf}, {L_H}")
    a(f"s_mov_b32 s{sDst}, s{sDLo}")
    a(f"s_add_u32 s{sDEnd}, s{sDLo}, 73728")
    a(f"s_mov_b32 s{sSlot}, {CHUNK_H}")
    a(f"s_mov_b32 s{sLim}, -1")
    a(f"s_mov_b32 s{sT1}, 5")
    a.label("K3_hpro")
    for p in pieces_h(): a.ext(p)
    a(f"s_sub_u32 s{sT1}, s{sT1}, 1")
    a(f"s_cmp_lg_u32 s{sT1}, 0")
    a("s_cbranch_scc1 K3_hpro")
    a("s_mov_b64 s[56:57], 0")
    a("s_branch K3_rdone")
    a.label("K3_rx")
    a(f"s_add_u32 s{sD}, s4, s{sT0}")
    a(f"s_addc_u32 s{sD+1}, s5, 0")
    a(f"s_mov_b32 s{sD+2}, {REG}")
    for m in range(3):
        v = vD0 + m
        a(f"v_mul_u32_u24 v20, 43691, v{v}")
        a("v_lshrrev_b32 v20, 25, v20")
        a("v_mul_u32_u24 v21, 864, v20")
        a(f"v_sub_u32 v21, v{v}, v21")
        a("v_add_u32 v22, 768, v21")
        a("v_cmp_gt_i32 vcc, 0, v21")
        a("v_mul_u32_u24 v20, 768, v20")
        a("s_nop 0")
        a("v_cndmask_b32 v21, v21, v22, vcc")
        a(f"v_add_u32 v{v}, v20, v21")
    a(f"s_add_u32 s{sDLo}, s{sHalf}, {L_X}")
    a(f"s_mov_b32 s{sDEnd}, 0")
    a(f"s_mov_b32 s{sSlot}, 0")
    a(f"s_mov_b32 s{sDst}, s{sDLo}")
    a(f"s_mov_b32 s{sLim}, {REG}")
    a("s_mov_b64 s[56:57], -1")
    a("s_branch K3_rdone")
    a.label("K3_rw")
    a(f"s_add_u32 s{sD}, s24, {W2F}")
    a(f"s_addc_u32 s{sD+1}, s25, 0")
    a(f"s_mov_b32 s{sD+2}, 1179648")
    a(f"s_mul_i32 s{sDLo}, s{sCQ}, 6144")
    a(f"s_add_u32 s{sDEnd}, s{sDLo}, 73728")
    a(f"s_mov_b32 s{sDst}, s{sDLo}")
    a(f"s_mov_b32 s{sSrc}, s{sDLo}")
    for _ in range(2):
        for p in pieces_w(): a.ext(p)
    a("s_mov_b64 s[56:57], 0")
    a.label("K3_rdone")
    a(f"v_mul_u32_u24 v{vOUT}, 3072, v19")
    a("v_mul_u32_u24 v21, 12, v18")
    a(f"s_mul_i32 s{sT0}, s{sTH}, {96 * 768}")
    a(f"s_mul_i32 s{sT1}, s{sCQ}, 192")
    a(f"s_add_u32 s{sT0}, s{sT0}, s{sT1}")
    a(f"v_add3_u32 v{vOUT}, v{vOUT}, v21, s{sT0}")
    a(f"s_mul_i32 s{sT0}, s{sCQ}, 6144")
    a(f"v_lshl_add_u32 v{vWB0}, v17, 4, s{sT0}")
    a("v_and_b32 v21, 3, v18")
    a("v_lshrrev_b32 v22, 2, v18")
    a("v_and_b32 v23, 2, v19")
    a("v_xor_b32 v23, v23, v21")
    a("v_lshl_add_u32 v22, v23, 2, v22")
    a("v_lshl_add_u32 v22, v21, 4, v22")
    a("v_lshlrev_b32 v22, 4, v22")
    a("v_and_b32 v23, 1, v19")
    a("v_lshl_add_u32 v22, v23, 3, v22")
    a(f"s_mul_i32 s{sT0}, s{sTH}, 6144")
    a(f"s_add_u32 s{sT0}, s{sT0}, {L_H}")
    a(f"v_add_u32 v{vHB0}, s{sT0}, v22")
    a(f"v_xor_b32 v{vHB1}, 64, v{vHB0}")
    a(f"s_lshl_b32 s{sT0}, s{sCQ}, 2")
    a("v_lshl_add_u32 v22, v21, 1, v19")
    a(f"v_add_u32 v22, s{sT0}, v22")
    a("v_and_b32 v22, 15, v22")
    a("v_mul_u32_u24 v22, 48, v22")
    a("v_mul_u32_u24 v23, 768, v18")
    a(f"v_add_u32 v22, {L_X}, v22")
    a(f"v_add_u32 v{vXR}, v22, v23")
    a("v_lshrrev_b32 v22, 2, v18")
    a("v_cmp_eq_u32 vcc, v22, v19")
    a("v_mov_b32 v23, 0x3f80")
    a("s_nop 0")
    a("v_cndmask_b32 v23, 0, v23, vcc")
    for e in range(4):
        a(f"v_cmp_eq_u32 vcc, {e}, v21")
        a("s_nop 1")
        a(f"v_cndmask_b32 v{SEL+e}, 0, v23, vcc")
        a(f"v_lshlrev_b32 v{SEL+4+e}, 16, v{SEL+e}")
    a("s_mov_b64 vcc, s[56:57]")
    a(f"s_mov_b32 s{sWS}, 0")
    a(f"s_mov_b32 s{sHS}, 0")
    a(f"s_mov_b32 s{sPASS}, 0")
    a(f"s_mov_b32 s{sOB}, 0")
    a("s_waitcnt vmcnt(24)")
    a(f"s_cmp_eq_u32 s{sSlot}, {CHUNK_H}" if False else f"s_sub_u32 s{sT0}, s{sWV}, 4")
    a(f"s_cmp_lt_u32 s{sT0}, 2")
    a("s_cbranch_scc1 K3_pw")
    a("s_waitcnt vmcnt(6)")
    a("s_cbranch_vccz K3_pw")
    a("s_waitcnt vmcnt(0)")
    a.label("K3_pw")
    for p in range(1, NBP):
        for n in range(6):
            src = 24 + n if n < 3 else 25 + n
            a(f"v_add_f32 v{src}, v{src}, v{src + 8*p}")
    for n in range(6):
        src = 24 + n if n < 3 else 25 + n
        for r in range(4): a(f"v_mov_b32 v{BIAS+4*n+r}, v{src}")
    stamp(a, 1)

    def accr(n, t): return ACC + (t * 6 + n) * 4
    ofl = ["", " nt", " sc1", " sc0 sc1", " sc0"][OPT["out_nt"]]
    def mini(t):
        L = [f"s_add_u32 s{sT1}, s{sOB}, {t * 12288}"]
        for r in range(4):
            tq = XT + 4 * r if STG % 2 == 0 else (12, 252)[r % 2]
            for j in range(3): L.append(f"v_cvt_pk_bf16_f32 v{tq+j}, v{accr(2*j, t)+r}, v{accr(2*j+1, t)+r}")
            if not OPT["k3nost"]: L.append(f"buffer_store_dwordx3 {q(tq, 3)}, v{vOUT}, s[{sO}:{sO+3}], s{sT1} offen offset:{r*768}" + ofl)
        return L
    def step(grp, u, bnd):
        u4 = u % 4; tag = f"{grp}{'b' if bnd else 'l'}{u}"
        L = [f"v_add_u32 v{vWR}, s{sWS}, v{vWB0}", f"v_add_u32 v{vHR0}, s{sHS}, v{vHB0}", f"v_add_u32 v{vHR1}, s{sHS}, v{vHB1}"]
        R = []
        for t in range(6):
            R.append(f"ds_read_b128 {q(WB + 4*t)}, v{vWR} offset:{t*1024}")
            R.append(f"ds_read_b64_tr_b16 {q(HB + 4*t, 2)}, v{vHR0} offset:{t*1024}")
            R.append(f"ds_read_b64_tr_b16 {q(HB + 4*t + 2, 2)}, v{vHR1} offset:{t*1024}")
        P = pieces_w() if grp == 0 else pieces_h()
        def gd(X, z): return X if grp == 0 or u4 == 0 else [f"s_cbranch_vccnz K3_s{tag}{z}"] + X + [f"K3_s{tag}{z}:"]
        L += gd(P[0], "a") + R[:6] + gd(P[1], "b") + R[6:12] + gd(P[2], "c") + R[12:]
        if u4 == 3:
            L += [f"s_sub_u32 s{sT0}, s{sEV}, {6*grp}", f"s_cmp_lt_u32 s{sT0}, 6", f"s_cbranch_scc0 K3_xr{tag}"]
            for p in range(3):
                L.append(f"ds_read2_b32 {q(XT + 4*p, 2)}, v{vXR} offset0:{p} offset1:{p+3}")
                L.append(f"ds_read2_b32 {q(XT + 4*p + 2, 2)}, v{vXR} offset0:{p+6} offset1:{p+9}")
            L.append(f"K3_xr{tag}:")
        L += gd(P[3] + P[4] + P[5], "d")
        L += [f"s_add_u32 s{sWS}, s{sWS}, 24576", f"s_cmp_eq_u32 s{sWS}, 73728", f"s_cselect_b32 s{sWS}, 0, s{sWS}",
              f"s_add_u32 s{sHS}, s{sHS}, 12288", f"s_cmp_eq_u32 s{sHS}, 73728", f"s_cselect_b32 s{sHS}, 0, s{sHS}"]
        tb = u // STG if bnd and u % STG == 0 and u // STG < 6 else None
        def nst(back):
            if not bnd or OPT["k3nost"]: return 0
            return 4 * sum(1 for w in range(max(0, u - back), u + 1 - grp) if w % STG == 0 and w // STG < 6)
        if tb == 5:
            a(f"s_cmp_eq_u32 s{sPASS}, 3")
            a("s_cbranch_scc1 K3_fin")
        a.ext(L)
        if grp == 0:
            a("s_waitcnt lgkmcnt(0)")
            a(f"s_setprio {OPT['k3pa']}")
        else:
            if u4 == 2:
                a(f"s_cbranch_vccz K3_nx{tag}")
                a(f"s_waitcnt vmcnt({nst(2)})")
                a.label(f"K3_nx{tag}")
            a(f"s_waitcnt vmcnt({24 + nst(4)}) lgkmcnt(0)")
            a("s_barrier")
            a(f"s_setprio {OPT['k3pb']}")
        if u4 == 3:
            a(f"s_cmp_lt_u32 s{sT0}, 6")
            a(f"s_cbranch_scc0 K3_xd{tag}")
            ts = range(6) if not bnd else [t for t in range(6) if t + 6 * grp == u // 4]
            for t in ts:
                if t != ts[-1]:
                    a(f"s_cmp_lg_u32 s{sT0}, {t}")
                    a(f"s_cbranch_scc1 K3_x{tag}_{t+1}")
                for n in range(6):
                    a(f"v_mfma_f32_16x16x32_bf16 {q(accr(n, t))}, {q(XT + 4*(n >> 1))}, {q(SEL + 4*(n & 1))}, {q(accr(n, t))}")
                if t != ts[-1]:
                    a(f"s_branch K3_xd{tag}")
                    a.label(f"K3_x{tag}_{t+1}")
            a.label(f"K3_xd{tag}")
            a(f"s_add_u32 s{sEV}, s{sEV}, 1")
        def mf(t): return [f"v_mfma_f32_16x16x32_bf16 {q(accr(n, t))}, {q(HB + 4*t)}, {q(WB + 4*n)}, {q(BIAS + 4*n) if t == tb else q(accr(n, t))}" for n in range(6)]
        bar = [f"s_waitcnt vmcnt({6 + nst(1)})", "s_barrier"] if grp == 0 else []
        ns = u // STG + 1 if bnd else 6
        def full():
            order = [t for t in range(6) if t != tb] + ([tb] if tb is not None else [])
            Ms = [[x] for t in order for x in mf(t)]
            if tb is not None:
                E = mini(tb)
                pos = OPT["mp0"]
                for x in E:
                    Ms[pos].append(x)
                    if not x.startswith("s_"): pos += 1
                    if x.startswith("buffer"): pos += OPT["mpd"]
                assert pos <= 29
            e = OPT["k3eb"] if grp == 0 else 0
            Ms[35 - e] += (["s_setprio 3"] if e else []) + bar
            a.ext([x for m in Ms for x in m])
        if ns >= 6:
            full()
        else:
            a(f"s_sub_u32 s{sT2}, s{sPASS}, 1")
            a(f"s_cmp_lt_u32 s{sT2}, 2")
            a(f"s_cbranch_scc0 K3_m0{tag}")
            full()
            a(f"s_branch K3_m3{tag}")
            a.label(f"K3_m0{tag}")
            if tb is not None: a.ext(mini(tb))
            a(f"s_cmp_eq_u32 s{sPASS}, 3")
            a(f"s_cbranch_scc1 K3_m1{tag}")
            for t in range(ns): a.ext(mf(t))
            a(f"s_branch K3_m2{tag}")
            a.label(f"K3_m1{tag}")
            for t in range(ns, 6): a.ext(mf(t))
            a.label(f"K3_m2{tag}")
            a.ext(bar)
            a.label(f"K3_m3{tag}")
        a("s_setprio 0")

    a("s_barrier")
    a(f"s_cmp_lg_u32 s{sTH}, 0")
    a("s_cbranch_scc1 K3_1_tile")
    for grp in range(2):
        a.label(f"K3_{grp}_tile")
        a(f"s_cmp_eq_u32 s{sPASS}, 3")
        a(f"s_cselect_b32 s{sEV}, 100, 0")
        for u in range(NB): step(grp, u, True)
        if OPT["stamp"]: stamp2(a, 2, 4, sPASS)
        a(".p2align 6")
        a.label(f"K3_{grp}_loop")
        for u in range(4): step(grp, u, False)
        a(f"s_cmp_lg_u32 s{sEV}, 12")
        a(f"s_cbranch_scc1 K3_{grp}_loop")
        if OPT["stamp"]: stamp2(a, 3, 5, sPASS)
        a(f"s_mul_i32 s{sOB}, s{sPASS}, {192 * 768}")
        a(f"s_add_u32 s{sPASS}, s{sPASS}, 1")
        a(f"s_mov_b32 s{sO+2}, {REG}")
        a(f"s_branch K3_{grp}_tile")
    a.label("K3_fin")
    stamp(a, 6)
    a("s_nop 7")
    a.ext(mini(5))
    if OPT["stamp"]: a("s_waitcnt vmcnt(0)")
    stamp(a, 7)
    stamp_dump(a, 8, sWV, "K3", 1)
    a.label("K3_end")
    a("s_endpgm")
    return a, desc("gemm2_kernel", 256, 100), f"; @launch kernel=gemm2_kernel grid=(256,1,1) block=(512,1,1) lds={L_X + 12288}"

def k3n():
    a = Asm()
    ACC = 16; HB = 160; WB = 208; SEL = 232; XT = 240
    BV = [12, 13, 14, 15, 252, 253]
    vD0, vWR, vHR0, vHR1, vXR, vOUT, vWB0, vHB0, vHB1 = 1, 4, 5, 6, 7, 8, 9, 10, 11
    L_H = 73728; L_X = 147456
    sD, sO, sE = 8, 12, 20
    (sWV, sTH, sCQ, sSrc, sDst, sDLo, sDEnd, sT0, sT1, sWS, sHS, sJ, sOB, sEV, sT2, sSrc4, sDst4, sESrc, sEDst, sELo, sEEnd) = range(30, 51)
    REG = 3 * 192 * 768
    NA = OPT["k3wa"]; NE = (24 - 4 * NA) // 2
    kernel_start(a, "gemm2_kernel")
    a("s_cmp_ge_u32 s2, 256")
    a("s_cbranch_scc1 K3_end")
    stamp(a, 0)
    a("s_load_dwordx2 s[4:5], s[0:1], 0")
    a("s_load_dwordx2 s[6:7], s[0:1], 48")
    a("s_load_dwordx2 s[24:25], s[0:1], 64")
    a("v_lshrrev_b32 v16, 6, v0")
    a("v_and_b32 v17, 63, v0")
    a(f"v_readfirstlane_b32 s{sWV}, v16")
    a(f"v_lshlrev_b32 v{vD0}, 4, v17")
    a(f"v_mov_b32 v254, v{vD0}")
    a(f"v_add_u32 v{vD0+1}, 1024, v{vD0}")
    a(f"v_add_u32 v{vD0+2}, 2048, v{vD0}")
    a("v_and_b32 v18, 15, v17")
    a("v_lshrrev_b32 v19, 4, v17")
    a("v_mul_u32_u24 v20, 24, v18")
    a(f"s_lshr_b32 s{sTH}, s{sWV}, 2")
    a(f"s_and_b32 s{sCQ}, s{sWV}, 3")
    for s_ in (sD, sO, sE): a(f"s_mov_b32 s{s_+3}, 0x00020000")
    a(f"s_mov_b32 s{sO+2}, {REG}")
    DF = OPT["k3df"]; N0 = OPT["k3n0"]; N1 = OPT["k3n1"]; N2 = 18 - N0 - N1
    a(f"s_mul_i32 s{sT0}, s2, {REG}")
    a(f"s_and_b32 s{sT1}, s{sWV}, 1")
    a(f"s_mul_i32 s{sELo}, s{sT1}, {NE * 1024}")
    a(f"s_add_u32 s{sELo}, s{sELo}, {4 * NA * 1024}")
    a(f"s_mul_i32 s{sT1}, s{sT1}, 6144")
    a("s_waitcnt lgkmcnt(0)")
    a(f"s_add_u32 s{sO}, s6, s{sT0}")
    a(f"s_addc_u32 s{sO+1}, s7, 0")
    a(f"s_add_u32 s{sE}, s24, {W2F}")
    a(f"s_addc_u32 s{sE+1}, s25, 0")
    a(f"s_mov_b32 s{sE+2}, 1179648")
    srd(a, 16, 24, 25, 1536 * NBP, B2)
    a(f"s_mul_i32 s{sT2}, s{sCQ}, 384")
    for p in range(NBP):
        a(f"buffer_load_dwordx3 {q(24 + 8*p, 3)}, v20, s[16:19], s{sT2} offen")
        a(f"buffer_load_dwordx3 {q(28 + 8*p, 3)}, v20, s[16:19], s{sT2} offen offset:12")
        if p < NBP - 1: a(f"s_add_u32 s{sT2}, s{sT2}, 1536")

    nt = " nt" if OPT["h_nt"] else ""
    def lin(srd_, n, sfx, src=sSrc, dst=sDst):
        P = []
        for k in range(n):
            pre = [f"s_mov_b32 m0, s{dst}"] if k == 0 else [f"s_mov_b32 m0, s{sDst4}"] if k == 4 else []
            P.append((pre, f"buffer_load_dwordx4 v254, s[{srd_}:{srd_+3}], s{src if k < 4 else sSrc4} offen offset:{(k % 4) * 1024}{sfx} lds"))
        return P
    def flat(P): return [x for pre, ld in P for x in pre + (["s_nop 0"] if pre else []) + [ld]]
    def four(): return [f"s_add_u32 s{sSrc4}, s{sSrc}, 4096", f"s_add_u32 s{sDst4}, s{sDst}, 4096"]
    def adv_w(src=sSrc, dst=sDst, lo=sDLo, end=sDEnd):
        return [f"s_add_u32 s{dst}, s{dst}, 24576", f"s_cmp_eq_u32 s{dst}, s{end}", f"s_cselect_b32 s{dst}, s{lo}, s{dst}",
                f"s_sub_u32 s{src}, s{src}, 24576", f"s_cselect_b32 s{sT2}, 1179648, 0", f"s_add_u32 s{src}, s{src}, s{sT2}"]
    def adv_src(): return [f"s_sub_u32 s{sSrc}, s{sSrc}, 12288", f"s_cselect_b32 s{sD+2}, 0, s{sD+2}", f"s_cselect_b32 s{sSrc}, 0, s{sSrc}"]
    def adv_h(): return [f"s_add_u32 s{sDst}, s{sDst}, 12288", f"s_cmp_eq_u32 s{sDst}, s{sDEnd}", f"s_cselect_b32 s{sDst}, s{sDLo}, s{sDst}"] + adv_src() + four()
    def xp():
        P = []
        for k in range(6):
            pre = [f"s_add_u32 m0, s{sDst}, {k * 1024}"]
            P.append((pre, f"buffer_load_dwordx4 v{vD0 + k % 3}, s[{sD}:{sD+3}], s{sSrc if k < 3 else sSrc4} offen{nt} lds"))
        return P
    def adv_x(): return adv_src() + [f"s_add_u32 s{sSrc4}, s{sSrc}, 3072"]

    a(f"s_cmp_lt_u32 s{sWV}, 4")
    a("s_cbranch_scc1 K3_rw")
    a(f"s_cmp_ge_u32 s{sWV}, 6")
    a("s_cbranch_scc1 K3_rx")
    a(f"s_add_u32 s{sDLo}, s{sT1}, {L_H}")
    a(f"s_mov_b32 s{sDst}, s{sDLo}")
    a(f"s_add_u32 s{sSrc}, s{sT1}, {CHUNK_H}")
    a.ext(four()); a.ext(flat(lin(sO, 6, nt)))
    a(f"s_add_u32 s{sDst}, s{sDst}, {CHUNK_H}")
    a(f"s_mov_b32 s{sSrc}, s{sT1}")
    a.ext(four()); a.ext(flat(lin(sO, 6, nt)))
    a(f"s_mul_i32 s{sT0}, s2, {HSTRIDE}")
    a(f"s_add_u32 s{sD}, s24, s{sT0}")
    a(f"s_addc_u32 s{sD+1}, s25, 0")
    a(f"s_mov_b32 s{sD+2}, {HSTRIDE}")
    a(f"s_add_u32 s{sDEnd}, s{sDLo}, 73728")
    a(f"s_add_u32 s{sDst}, s{sDst}, {CHUNK_H}")
    a(f"s_add_u32 s{sSrc}, s{sT1}, {HSTRIDE - CHUNK_H}")
    a.ext(four())
    for _ in range(3):
        a.ext(flat(lin(sD, 6, nt))); a.ext(adv_h())
    a("s_branch K3_rdone")
    a.label("K3_rx")
    a(f"s_add_u32 s{sEEnd}, s{sELo}, 73728")
    a(f"s_mov_b32 s{sEDst}, s{sELo}")
    a(f"s_add_u32 s{sESrc}, s{sELo}, {47 * 24576}")
    if NE:
        for _ in range(2):
            a.ext(flat(lin(sE, NE, "", sESrc, sEDst))); a.ext(adv_w(sESrc, sEDst, sELo, sEEnd))
    a(f"s_add_u32 s{sD}, s4, s{sT0}")
    a(f"s_addc_u32 s{sD+1}, s5, 0")
    a(f"s_mov_b32 s{sD+2}, {REG}")
    for m in range(3):
        v = vD0 + m
        a(f"v_mul_u32_u24 v20, 43691, v{v}")
        a("v_lshrrev_b32 v20, 25, v20")
        a("v_mul_u32_u24 v21, 864, v20")
        a(f"v_sub_u32 v21, v{v}, v21")
        a("v_add_u32 v22, 768, v21")
        a("v_cmp_gt_i32 vcc, 0, v21")
        a("v_mul_u32_u24 v20, 768, v20")
        a("s_nop 0")
        a("v_cndmask_b32 v21, v21, v22, vcc")
        a(f"v_add_u32 v{v}, v20, v21")
    a(f"s_add_u32 s{sDst}, s{sT1}, {L_X}")
    a(f"s_add_u32 s{sSrc}, s{sT1}, {35 * 12288}")
    a(f"s_add_u32 s{sSrc4}, s{sSrc}, 3072")
    if OPT["wwarm"]:
        a(f"s_lshr_b32 s{sT2}, s2, 3")
        a(f"s_mul_i32 s{sT2}, s{sT2}, 36864")
        a(f"s_mul_i32 s{sT0}, s{sT1}, 3")
        a(f"s_add_u32 s{sT2}, s{sT2}, s{sT0}")
        a("v_lshlrev_b32 v20, 7, v17")
        a(f"s_mov_b32 m0, {L_X}")
        for i in range(3):
            a(f"s_add_u32 s{sT0}, s{sT2}, {min(i * 8192, 18432 - 8192)}")
            a(f"buffer_load_dword v20, s[{sE}:{sE+3}], s{sT0} offen lds")
    a("s_branch K3_rdone")
    a.label("K3_rw")
    for i_ in range(3): a(f"s_mov_b32 s{sD+i_}, s{sE+i_}")
    a(f"s_mul_i32 s{sDLo}, s{sCQ}, {NA * 1024}")
    a(f"s_add_u32 s{sDEnd}, s{sDLo}, 73728")
    a(f"s_mov_b32 s{sDst}, s{sDLo}")
    a(f"s_add_u32 s{sSrc}, s{sDLo}, {47 * 24576}")
    a.ext(four())
    for _ in range(2):
        a.ext(flat(lin(sD, NA, ""))); a.ext(adv_w() + four())
    a.label("K3_rdone")
    a(f"v_mul_u32_u24 v{vOUT}, 3072, v19")
    a("v_mul_u32_u24 v21, 12, v18")
    a(f"s_mul_i32 s{sT0}, s{sTH}, {96 * 768}")
    a(f"s_mul_i32 s{sT1}, s{sCQ}, 192")
    a(f"s_add_u32 s{sT0}, s{sT0}, s{sT1}")
    a(f"v_add3_u32 v{vOUT}, v{vOUT}, v21, s{sT0}")
    a(f"s_mul_i32 s{sT0}, s{sCQ}, 6144")
    a(f"v_lshl_add_u32 v{vWB0}, v17, 4, s{sT0}")
    a("v_and_b32 v21, 3, v18")
    a("v_lshrrev_b32 v22, 2, v18")
    a("v_and_b32 v23, 2, v19")
    a("v_xor_b32 v23, v23, v21")
    a("v_lshl_add_u32 v22, v23, 2, v22")
    a("v_lshl_add_u32 v22, v21, 4, v22")
    a("v_lshlrev_b32 v22, 4, v22")
    a("v_and_b32 v23, 1, v19")
    a("v_lshl_add_u32 v22, v23, 3, v22")
    a(f"s_mul_i32 s{sT0}, s{sTH}, 6144")
    a(f"s_add_u32 s{sT0}, s{sT0}, {L_H}")
    a(f"v_add_u32 v{vHB0}, s{sT0}, v22")
    a(f"v_xor_b32 v{vHB1}, 64, v{vHB0}")
    a(f"s_lshl_b32 s{sT0}, s{sCQ}, 2")
    a("v_lshl_add_u32 v22, v21, 1, v19")
    a(f"v_add_u32 v22, s{sT0}, v22")
    a("v_and_b32 v22, 15, v22")
    a("v_mul_u32_u24 v22, 48, v22")
    a("v_mul_u32_u24 v23, 768, v18")
    a(f"v_add_u32 v22, {L_X}, v22")
    a(f"v_add_u32 v{vXR}, v22, v23")
    a("v_lshrrev_b32 v22, 2, v18")
    a("v_cmp_eq_u32 vcc, v22, v19")
    a("v_mov_b32 v23, 0x3f80")
    a("s_nop 0")
    a("v_cndmask_b32 v23, 0, v23, vcc")
    for e in range(4):
        a(f"v_cmp_eq_u32 vcc, {e}, v21")
        a("s_nop 1")
        a(f"v_cndmask_b32 v{SEL+e}, 0, v23, vcc")
        a(f"v_lshlrev_b32 v{SEL+4+e}, 16, v{SEL+e}")
    a(f"s_mov_b32 s{sWS}, 0")
    a(f"s_mov_b32 s{sHS}, 0")
    a(f"s_mov_b32 s{sJ}, 0")
    a(f"s_mov_b32 s{sOB}, {2 * 192 * 768}")
    if DF: a(f"s_mov_b32 s{sO+2}, 0")
    a(f"v_mov_b32 v{vWR}, v{vWB0}")
    a(f"v_mov_b32 v{vHR0}, v{vHB0}")
    a(f"v_mov_b32 v{vHR1}, v{vHB1}")
    a("s_waitcnt vmcnt(18)")
    a(f"s_sub_u32 s{sT0}, s{sWV}, 4")
    a(f"s_cmp_lt_u32 s{sT0}, 2")
    a("s_cbranch_scc1 K3_pw")
    a(f"s_waitcnt vmcnt({min(NA, NE) if NE else NA})" if NE else f"s_waitcnt vmcnt({NA})")
    if not NE:
        a(f"s_cmp_lt_u32 s{sWV}, 4")
        a("s_cbranch_scc1 K3_pw")
        a("s_waitcnt vmcnt(0)")
    a.label("K3_pw")
    for p in range(1, NBP):
        for n in range(6):
            src = 24 + n if n < 3 else 25 + n
            a(f"v_add_f32 v{src}, v{src}, v{src + 8*p}")
    for n in range(6): a(f"v_mov_b32 v{BV[n]}, v{24 + n if n < 3 else 25 + n}")
    stamp(a, 1)

    def accr(n, t): return ACC + (t * 6 + n) * 4
    def vmwait(strict, loose, lab):
        if loose is None or OPT["k3nost"]: return [f"s_waitcnt vmcnt({strict})"]
        return [f"s_waitcnt vmcnt({loose})", f"s_cmp_lg_u32 s{sJ}, 0", f"s_cbranch_scc1 {lab}", f"s_waitcnt vmcnt({strict})", lab + ":"]
    def epilogue():
        L = ["s_nop 7"]
        idx = 0
        for t in range(6):
            L.append(f"s_mov_b32 s{sT1}, s{sOB}" if t == 0 else f"s_add_u32 s{sT1}, s{sT1}, 12288")
            for r in range(4):
                tq = XT + 4 * (idx % 3); idx += 1
                for j in range(3): L.append(f"v_cvt_pk_bf16_f32 v{tq+j}, v{accr(2*j, t)+r}, v{accr(2*j+1, t)+r}")
                if not OPT["k3nost"]: L.append(f"buffer_store_dwordx3 {q(tq, 3)}, v{vOUT}, s[{sO}:{sO+3}], s{sT1} offen offset:{r*768}")
        L += [f"s_sub_u32 s{sOB}, s{sOB}, {192 * 768}"]
        return L
    sOT = list(range(52, 58))
    def pack():
        L = ["s_nop 7"] + [f"s_add_u32 s{sOT[t]}, s{sOB}, {t * 12288}" for t in range(6)]
        for t in range(6):
            R = accr(3, t); tq = XT + 4 * (t % 3)
            def cv(dst, r, j): return f"v_cvt_pk_bf16_f32 v{dst}, v{accr(2*j, t)+r}, v{accr(2*j+1, t)+r}"
            L += [cv(tq + j, 3, j) for j in range(3)]
            L.append(f"buffer_store_dwordx3 {q(tq, 3)}, v{vOUT}, s[{sO}:{sO+3}], s{sOT[t]} offen offset:{3*768}")
            L += [cv(R + 4*r + j, r, j) for r, j in ((2, 2), (1, 2), (1, 1), (2, 1), (0, 1), (0, 2), (0, 0), (1, 0), (2, 0))]
        return L
    def dstores(): return [f"buffer_store_dwordx3 {q(accr(3, t) + 4*r, 3)}, v{vOUT}, s[{sO}:{sO+3}], s{sOT[t]} offen offset:{r*768}" for t in range(6) for r in range(3)]
    def block(role, tag):
        grp = int(role != "w"); f = tag == "f"
        if OPT["prof"] and role == "x":
            a(f"s_cmp_lg_u32 s{sWV}, 7")
            a(f"s_cbranch_scc1 K3_np{tag}")
            a("s_memtime s[90:91]")
            a("s_waitcnt lgkmcnt(0)")
            a("v_mov_b32 v255, s90")
            a("v_mov_b32 v0, 0")
            a("buffer_store_dword v255, v0, s[84:87], s83 offen")
            a("s_add_u32 s83, s83, 4")
            a.label(f"K3_np{tag}")
        for u4 in range(4):
            g = f"{role}{tag}{u4}"
            R = [f"ds_read_b128 {q(WB + 4*t)}, v{vWR} offset:{t*1024}" for t in range(6)]
            if u4 % 2 == 0:
                for t in range(6):
                    for c in range(2):
                        R.append(f"ds_read_b64_tr_b16 {q(HB + 24*c + 4*t, 2)}, v{vHR0} offset:{c*12288 + t*1024}")
                        R.append(f"ds_read_b64_tr_b16 {q(HB + 24*c + 4*t + 2, 2)}, v{vHR1} offset:{c*12288 + t*1024}")
            if role == "w": P = lin(sD, NA, ""); post = adv_w() + four()
            elif role == "h": P = lin(sD, 6, nt); post = adv_h()
            else:
                P = lin(sE, NE, "", sESrc, sEDst) + (xp() if u4 == 0 else [])
                post = (adv_w(sESrc, sEDst, sELo, sEEnd) if NE else []) + (adv_x() if u4 == 0 else [])
            per = max(1, len(R) // max(1, len(P))) if u4 % 2 == 0 else OPT["k3ro"]
            if u4 == 3:
                a(f"s_cmp_lt_u32 s{sT0}, 6")
                a(f"s_cbranch_scc0 K3_{g}_xr")
                for p in range(3):
                    a(f"ds_read2_b32 {q(XT + 4*p, 2)}, v{vXR} offset0:{p} offset1:{p+3}")
                    a(f"ds_read2_b32 {q(XT + 4*p + 2, 2)}, v{vXR} offset0:{p+6} offset1:{p+9}")
                a.label(f"K3_{g}_xr")
            ri = 0
            for pre, ld in P:
                a.ext(pre)
                if ri < len(R): a.ext(R[ri:ri + per]); ri += per
                elif pre: a("s_nop 0")
                a(ld)
            a.ext(R[ri:])
            if u4 == 3:
                a(f"s_cmp_lt_u32 s{sT0}, 6")
                a(f"s_cbranch_scc0 K3_{g}_xn")
            if f and DF:
                if u4 == 0:
                    if OPT["stamp"]:
                        a(f"s_sub_u32 s96, s{sJ}, 48")
                        stamp2(a, 2, 4, 96)
                    a.ext(pack())
                    stamp2(a, 3, 5, 96)
                if u4 == 1: a.ext(dstores()[N0:N0 + N1])
            elif f and u4 == 0:
                a(f"s_cmp_eq_u32 s{sJ}, 0")
                a(f"s_cbranch_scc1 K3_{role}_noep")
                if OPT["stamp"]:
                    a(f"s_sub_u32 s96, s{sJ}, 48")
                    stamp2(a, 2, 4, 96)
                a.ext(epilogue())
                stamp2(a, 3, 5, 96)
                a.label(f"K3_{role}_noep")
            if f and u4 < 2:
                a("s_nop 1")
                for i in range(12): a(f"v_mov_b32 v{XT+i}, v{BV[3*u4 + i//4]}")
            def waits(z=""):
                if grp == 0: return [f"s_waitcnt lgkmcnt({15 if u4 % 2 == 0 else 0})", f"s_setprio {OPT['k3pa']}"]
                W = []
                if f and DF:
                    if role == "h" and u4 % 2: W = [f"s_waitcnt vmcnt({18 + (6 + N0 + N1 if u4 == 1 else 24)})"]
                    if role == "x":
                        assert NE
                        W = [f"s_waitcnt vmcnt({NE + (12, 12 + N0 + N1, N1 + N2, 0)[u4]})"]
                    return W + ["s_waitcnt lgkmcnt(0)", "s_barrier", f"s_setprio {OPT['k3pb']}"]
                if role == "h" and u4 % 2: W = vmwait(18, 42 if f else None, f"K3_v{g}{z}")
                if role == "x":
                    n = NE + (6 if u4 in (0, 1) else 0)
                    if NE: W = vmwait(n, n + 24 if f and u4 < 2 else None, f"K3_v{g}{z}")
                    elif u4 == 2: W = vmwait(0, 24 if f else None, f"K3_v{g}{z}")
                return W + ["s_waitcnt lgkmcnt(0)", "s_barrier", f"s_setprio {OPT['k3pb']}"]
            if u4 == 3:
                for t in range(6):
                    if t < 5:
                        a(f"s_cmp_lg_u32 s{sT0}, {t}")
                        a(f"s_cbranch_scc1 K3_{g}_x{t+1}")
                    a.ext(waits(str(t)))
                    for n in range(6):
                        a(f"v_mfma_f32_16x16x32_bf16 {q(accr(n, t))}, {q(XT + 4*(n >> 1))}, {q(SEL + 4*(n & 1))}, {q(accr(n, t))}")
                    a(f"s_branch K3_{g}_xd")
                    if t < 5: a.label(f"K3_{g}_x{t+1}")
                a.label(f"K3_{g}_xn")
                a.ext(waits())
                a.label(f"K3_{g}_xd")
            else: a.ext(waits())
            post = post + [f"s_add_u32 s{sWS}, s{sWS}, 24576", f"s_cmp_eq_u32 s{sWS}, 73728", f"s_cselect_b32 s{sWS}, 0, s{sWS}", f"v_add_u32 v{vWR}, s{sWS}, v{vWB0}"]
            if u4 % 2: post += [f"s_add_u32 s{sHS}, s{sHS}, 24576", f"s_cmp_eq_u32 s{sHS}, 73728", f"s_cselect_b32 s{sHS}, 0, s{sHS}",
                                f"v_add_u32 v{vHR0}, s{sHS}, v{vHB0}", f"v_add_u32 v{vHR1}, s{sHS}, v{vHB1}"]
            if u4 == 2: post += [f"s_sub_u32 s{sT0}, s{sEV}, {6*grp}", f"s_sub_u32 s{sEV}, s{sEV}, 1"]
            ds = []; dstep = 4
            if f and DF and u4 == 0: ds = dstores()[:N0]; dstep = 36 // N0
            if f and DF and u4 == 1:
                ds = dstores()[N0 + N1:]
                for z in range(len(ds)): assert (N0 + N1 + z) // 3 * 6 > z * dstep + 3
                post += [f"s_cmp_lg_u32 s{sJ}, 0", f"s_cselect_b32 s{sT2}, {192 * 768}, 0", f"s_sub_u32 s{sOB}, s{sOB}, s{sT2}"]
            if f and DF and u4 == 2: post += [f"s_mov_b32 s{sO+2}, {REG}"]
            k = 0
            for t in range(6):
                if grp == 0 and u4 % 2 == 0 and t >= 2: a(f"s_waitcnt lgkmcnt({20 - 4*t})")
                for n3 in range(3):
                    for c in range(2):
                        ac = q(accr(3 * (u4 % 2) + n3, t))
                        a(f"v_mfma_f32_16x16x32_bf16 {ac}, {q(HB + 24*c + 4*t)}, {q(WB + 12*c + 4*n3)}, {q(XT + 4*n3) if f and u4 < 2 and c == 0 else ac}")
                        if ds and k % dstep == 1: a(ds.pop(0))
                        elif k >= 2 and post: a(post.pop(0))
                        k += 1
            assert not post and not ds
            a("s_setprio 0")
            if grp == 0:
                if f and DF: a(f"s_waitcnt vmcnt({NA + (6 + N0, 24, N1 + N2, 0)[u4]})")
                else: a.ext(vmwait(NA, NA + 24 if f and u4 < 2 else None, f"K3_v{g}"))
                a("s_barrier")

    if OPT["prof"]:
        srd(a, 84, 24, 25, 65536, TAIL + (5 << 20))
        a("s_lshl_b32 s83, s2, 8")
    a("s_barrier")
    a(f"s_cmp_ge_u32 s{sWV}, 6")
    a("s_cbranch_scc1 K3_x_tile")
    a(f"s_cmp_ge_u32 s{sWV}, 4")
    a("s_cbranch_scc1 K3_h_tile")
    for role in "whx":
        a.label(f"K3_{role}_tile")
        a(f"s_mov_b32 s{sEV}, 11")
        block(role, "f")
        a(".p2align 6")
        a.label(f"K3_{role}_loop")
        block(role, "l")
        a(f"s_cmp_lg_u32 s{sEV}, -1")
        a(f"s_cbranch_scc1 K3_{role}_loop")
        a(f"s_add_u32 s{sJ}, s{sJ}, 48")
        a(f"s_cmp_lg_u32 s{sJ}, 144")
        a(f"s_cbranch_scc1 K3_{role}_tile")
        if role != "x": a("s_branch K3_fin")
    a.label("K3_fin")
    stamp(a, 6)
    a.ext(epilogue())
    if OPT["stamp"]: a("s_waitcnt vmcnt(0)")
    stamp(a, 7)
    stamp_dump(a, 8, sWV, "K3", 1)
    a.label("K3_end")
    a("s_endpgm")
    return a, desc("gemm2_kernel", 256, 100), f"; @launch kernel=gemm2_kernel grid=(256,1,1) block=(512,1,1) lds={L_X + 12288}"

def k3():
    a = Asm()
    ACC = 16; HB = 160; WB = 184; SEL = 208; BIAS = 216; XT = 240
    KC = OPT['k3c']
    if KC: WB = 208; SEL = 232
    HL = OPT["k3sw"] >> 1 & 1
    HV = 24 - OPT["k3he"] - 6 * HL
    BV = [12, 13, 14, 15, 252, 253]
    vD0, vWR, vHR0, vHR1, vXR, vOUT, vWB0, vHB0, vHB1 = 1, 4, 5, 6, 7, 8, 9, 10, 11
    L_H = 73728; L_X = 147456
    sD, sO = 8, 12
    (sWV, sTH, sCQ, sSrc, sDst, sSlot, sDLo, sDEnd, sLeft, sT0, sT1, sWS, sHS, sJ, sOB, sEV, sNR, sT2, sFIRST) = range(30, 49)
    REG = 3 * 192 * 768
    kernel_start(a, "gemm2_kernel")
    a("s_cmp_ge_u32 s2, 256")
    a("s_cbranch_scc1 K3_end")
    stamp(a, 0)
    a("s_load_dwordx2 s[4:5], s[0:1], 0")
    a("s_load_dwordx2 s[6:7], s[0:1], 48")
    a("s_load_dwordx2 s[24:25], s[0:1], 64")
    code_prefetch(a, "gemm2_kernel", "K3_end", 100, 60)
    a("v_lshrrev_b32 v16, 6, v0")
    a("v_and_b32 v17, 63, v0")
    a(f"v_readfirstlane_b32 s{sWV}, v16")
    a(f"v_lshlrev_b32 v{vD0}, 4, v17")
    a(f"v_add_u32 v{vD0+1}, 1024, v{vD0}")
    a(f"v_add_u32 v{vD0+2}, 2048, v{vD0}")
    a("v_and_b32 v18, 15, v17")
    a("v_lshrrev_b32 v19, 4, v17")
    a(f"s_lshr_b32 s{sT0}, s2, 4")
    a(f"s_lshl_b32 s{sT0}, s{sT0}, 4")
    a(f"s_and_b32 s{sT1}, s2, 7")
    a(f"s_lshl_b32 s{sT1}, s{sT1}, 1")
    a(f"s_add_u32 s{sT0}, s{sT0}, s{sT1}")
    a(f"s_bfe_u32 s{sT1}, s2, 0x10003")
    a(f"s_add_u32 s3, s{sT0}, s{sT1}")
    a(f"s_lshr_b32 s{sTH}, s{sWV}, 2")
    a(f"s_and_b32 s{sCQ}, s{sWV}, 3")
    a(f"s_mov_b32 s{sD+3}, 0x00020000")
    a(f"s_mov_b32 s{sO+3}, 0x00020000")
    a(f"s_mov_b32 s{sO+2}, {REG}")
    a(f"s_mul_i32 s{sT0}, s3, {REG}")
    a(f"s_and_b32 s{sT1}, s{sWV}, 1")
    a(f"s_mul_i32 s{sT1}, s{sT1}, 6144")
    a("s_waitcnt lgkmcnt(0)")
    a(f"s_add_u32 s{sO}, s6, s{sT0}")
    a(f"s_addc_u32 s{sO+1}, s7, 0")

    srd(a, 16, 24, 25, 1536 * NBP, B2)
    a("v_mul_u32_u24 v20, 24, v18")
    a(f"s_mul_i32 s{sT2}, s{sCQ}, 384")
    for p in range(NBP):
        a(f"buffer_load_dwordx3 {q(24 + 8*p, 3)}, v20, s[16:19], s{sT2} offen")
        a(f"buffer_load_dwordx3 {q(28 + 8*p, 3)}, v20, s[16:19], s{sT2} offen offset:12")
        if p < NBP - 1: a(f"s_add_u32 s{sT2}, s{sT2}, 1536")

    def pieces(srd_, sfx=""):
        P = []
        for k in range(6):
            if k == 0: pre = [f"s_mov_b32 m0, s{sDst}", f"s_add_u32 s{sT2}, s{sSrc}, 3072"]
            else: pre = ["s_add_u32 m0, m0, 1024", "s_nop 0"]
            so = sSrc if k < 3 else sT2
            P.append(pre + [f"buffer_load_dwordx4 v{vD0 + k % 3}, s[{srd_}:{srd_+3}], s{so} offen{sfx} lds"])
        return P
    def advance_w():
        return [f"s_add_u32 s{sDst}, s{sDst}, 24576", f"s_cmp_eq_u32 s{sDst}, s{sDEnd}", f"s_cselect_b32 s{sDst}, s{sDLo}, s{sDst}",
                f"s_sub_u32 s{sSrc}, s{sSrc}, 24576", f"s_cselect_b32 s{sT2}, 1179648, 0", f"s_add_u32 s{sSrc}, s{sSrc}, s{sT2}"]
    def advance_h():
        return [f"s_add_u32 s{sDst}, s{sDst}, s{sSlot}", f"s_cmp_eq_u32 s{sDst}, s{sDEnd}", f"s_cselect_b32 s{sDst}, s{sDLo}, s{sDst}",
                f"s_sub_u32 s{sSrc}, s{sSrc}, 12288", f"s_cselect_b32 s{sD+2}, 0, s{sD+2}", f"s_cselect_b32 s{sSrc}, 0, s{sSrc}"]
    nt = " nt" if OPT["h_nt"] else ""
    wnt = " nt" if OPT["w_nt"] else ""

    a(f"s_cmp_lt_u32 s{sWV}, 4")
    a("s_cbranch_scc1 K3_rw")
    a(f"s_cmp_ge_u32 s{sWV}, 6")
    a("s_cbranch_scc1 K3_rx")
    a(f"s_add_u32 s{sDLo}, s{sT1}, {L_H}")
    a(f"s_mov_b32 s{sDst}, s{sDLo}")
    a(f"s_add_u32 s{sSrc}, s{sT1}, {CHUNK_H}")
    for p in pieces(sO, nt): a.ext(p)
    a(f"s_add_u32 s{sDst}, s{sDst}, {CHUNK_H}")
    a(f"s_mov_b32 s{sSrc}, s{sT1}")
    for p in pieces(sO, nt): a.ext(p)
    a(f"s_mul_i32 s{sT0}, s3, {HSTRIDE}")
    a(f"s_add_u32 s{sD}, s24, s{sT0}")
    a(f"s_addc_u32 s{sD+1}, s25, 0")
    a(f"s_mov_b32 s{sD+2}, {0 if OPT['k3noh'] else HSTRIDE}")
    a(f"s_add_u32 s{sDEnd}, s{sDLo}, 73728")
    a(f"s_mov_b32 s{sSlot}, {CHUNK_H}")
    a(f"s_add_u32 s{sDst}, s{sDst}, {CHUNK_H}")
    a(f"s_add_u32 s{sSrc}, s{sT1}, {HSTRIDE - CHUNK_H}")
    for _ in range(3 - HL if OPT["k3bl"] else 4):
        for p in pieces(sD, nt): a.ext(p)
        a.ext(advance_h())
    for p in pieces(sD, nt)[:6 - OPT["k3he"]]: a.ext(p)
    a("s_mov_b64 vcc, 0")
    a("s_branch K3_rdone")
    a.label("K3_rx")
    a(f"s_add_u32 s{sD}, s4, s{sT0}")
    a(f"s_addc_u32 s{sD+1}, s5, 0")
    a(f"s_mov_b32 s{sD+2}, {0 if OPT['k3nox'] else REG}")
    for m in range(3):
        v = vD0 + m
        a(f"v_mul_u32_u24 v20, 43691, v{v}")
        a("v_lshrrev_b32 v20, 25, v20")
        a("v_mul_u32_u24 v21, 864, v20")
        a(f"v_sub_u32 v21, v{v}, v21")
        a("v_add_u32 v22, 768, v21")
        a("v_cmp_gt_i32 vcc, 0, v21")
        a("v_mul_u32_u24 v20, 768, v20")
        a("s_nop 0")
        a("v_cndmask_b32 v21, v21, v22, vcc")
        a(f"v_add_u32 v{v}, v20, v21")
    a(f"s_add_u32 s{sDLo}, s{sT1}, {L_X}")
    a(f"s_mov_b32 s{sDEnd}, 0")
    a(f"s_mov_b32 s{sSlot}, 0")
    a(f"s_mov_b32 s{sDst}, s{sDLo}")
    a(f"s_add_u32 s{sSrc}, s{sT1}, {35 * 12288}")
    if OPT["wwarm"]:
        srd(a, 60, 24, 25, 1179648, W2F)
        a(f"s_lshr_b32 s{sT2}, s2, 3")
        a(f"s_mul_i32 s{sT2}, s{sT2}, 36864")
        a(f"s_mul_i32 s{sT0}, s{sT1}, 3")
        a(f"s_add_u32 s{sT2}, s{sT2}, s{sT0}")
        a("v_lshlrev_b32 v20, 7, v17")
        for i in range(3):
            a(f"buffer_load_dword v{100 + i}, v20, s[60:63], s{sT2} offen")
            a(f"s_add_u32 s{sT2}, s{sT2}, 6144" if False else f"s_add_u32 s{sT2}, s{sT2}, 8192")
    if not OPT["k3bl"]:
        for p in pieces(sD, nt): a.ext(p)
        a.ext(advance_h())
    a("s_mov_b64 vcc, -1")
    a("s_branch K3_rdone")
    a.label("K3_rw")
    a(f"s_add_u32 s{sD}, s24, {W2F}")
    a(f"s_addc_u32 s{sD+1}, s25, 0")
    a(f"s_mov_b32 s{sD+2}, {0 if OPT['k3now'] else 1179648}")
    a(f"s_mul_i32 s{sDLo}, s{sCQ}, 6144")
    a(f"s_add_u32 s{sDEnd}, s{sDLo}, 73728")
    a(f"s_mov_b32 s{sSlot}, 0")
    a(f"s_mov_b32 s{sDst}, s{sDLo}")
    a(f"s_add_u32 s{sSrc}, s{sDLo}, {47 * 24576}")
    for _ in range(5 if OPT["k3skipw"] else 2):
        for p in pieces(sD, wnt): a.ext(p)
        a.ext(advance_w())
    a("s_mov_b64 vcc, 0")
    a.label("K3_rdone")
    a("s_mov_b64 s[50:51], vcc")
    a(f"v_mul_u32_u24 v{vOUT}, 3072, v19")
    a("v_mul_u32_u24 v21, 12, v18")
    a(f"s_mul_i32 s{sT0}, s{sTH}, {96 * 768}")
    a(f"s_mul_i32 s{sT1}, s{sCQ}, 192")
    a(f"s_add_u32 s{sT0}, s{sT0}, s{sT1}")
    a(f"v_add3_u32 v{vOUT}, v{vOUT}, v21, s{sT0}")
    if OPT["outlin"]:
        a(f"v_mul_u32_u24 v{vOUT}, 12, v17")
        a(f"s_mul_i32 s{sT0}, s{sWV}, 18432")
        a(f"v_add_u32 v{vOUT}, s{sT0}, v{vOUT}")
    a(f"s_mul_i32 s{sT0}, s{sCQ}, 6144")
    a(f"v_lshl_add_u32 v{vWB0}, v17, 4, s{sT0}")
    a("v_and_b32 v21, 3, v18")
    a("v_lshrrev_b32 v22, 2, v18")
    a("v_and_b32 v23, 2, v19")
    a("v_xor_b32 v23, v23, v21")
    a("v_lshl_add_u32 v22, v23, 2, v22")
    a("v_lshl_add_u32 v22, v21, 4, v22")
    a("v_lshlrev_b32 v22, 4, v22")
    a("v_and_b32 v23, 1, v19")
    a("v_lshl_add_u32 v22, v23, 3, v22")
    a(f"s_mul_i32 s{sT0}, s{sTH}, 6144")
    a(f"s_add_u32 s{sT0}, s{sT0}, {L_H}")
    a(f"v_add_u32 v{vHB0}, s{sT0}, v22")
    a(f"v_xor_b32 v{vHB1}, 64, v{vHB0}")
    a(f"s_lshl_b32 s{sT0}, s{sCQ}, 2")
    a("v_lshl_add_u32 v22, v21, 1, v19")
    a(f"v_add_u32 v22, s{sT0}, v22")
    a("v_and_b32 v22, 15, v22")
    a("v_mul_u32_u24 v22, 48, v22")
    a("v_mul_u32_u24 v23, 768, v18")
    a(f"v_add_u32 v22, {L_X}, v22")
    a(f"v_add_u32 v{vXR}, v22, v23")
    a("v_lshrrev_b32 v22, 2, v18")
    a("v_cmp_eq_u32 vcc, v22, v19")
    a("v_mov_b32 v23, 0x3f80")
    a("s_nop 0")
    a("v_cndmask_b32 v23, 0, v23, vcc")
    for e in range(4):
        a(f"v_cmp_eq_u32 vcc, {e}, v21")
        a("s_nop 1")
        a(f"v_cndmask_b32 v{SEL+e}, 0, v23, vcc")
        a(f"v_lshlrev_b32 v{SEL+4+e}, 16, v{SEL+e}")
    a("s_mov_b64 vcc, s[50:51]")
    a(f"s_mov_b32 s{sWS}, 0")
    a(f"s_mov_b32 s{sHS}, 0")
    a(f"s_mov_b32 s{sJ}, 0")
    a(f"s_mov_b32 s{sOB}, {2 * 192 * 768}")
    a(f"s_mov_b32 s{sEV}, 11")
    a(f"s_waitcnt vmcnt({HV if KC else 24})")
    a(f"s_sub_u32 s{sT0}, s{sWV}, 4")
    a(f"s_cmp_lt_u32 s{sT0}, 2")
    a("s_cbranch_scc1 K3_pw")
    a("s_waitcnt vmcnt(6)")
    a("s_cbranch_vccz K3_pw")
    a("s_waitcnt vmcnt(0)")
    a.label("K3_pw")
    for p in range(1, NBP):
        for n in range(6):
            src = 24 + n if n < 3 else 25 + n
            a(f"v_add_f32 v{src}, v{src}, v{src + 8*p}")
    for n in range(6):
        src = 24 + n if n < 3 else 25 + n
        if KC: a(f"v_mov_b32 v{BV[n]}, v{src}")
        else:
            for r in range(4): a(f"v_mov_b32 v{BIAS+4*n+r}, v{src}")

    stamp(a, 1)

    def accr(n, t): return ACC + (t * 6 + n) * 4
    pieces0 = pieces
    def pieces(srd_, sfx="", _p=pieces0):
        P = _p(srd_, sfx)
        if OPT["k3skiph"] and sfx != "": P = [[x for x in p if not x.startswith("buffer")] for p in P]
        if OPT["k3skipw"] and sfx == "": P = [[x for x in p if not x.startswith("buffer")] if i >= 6 - OPT["k3skipw"] else p for i, p in enumerate(P)]
        return P
    def Lseg(u4, grp, tag):
        L = [f"v_add_u32 v{vWR}, s{sWS}, v{vWB0}", f"v_add_u32 v{vHR0}, s{sHS}, v{vHB0}", f"v_add_u32 v{vHR1}, s{sHS}, v{vHB1}"]
        R = []
        for t in range(6):
            R.append(f"ds_read_b128 {q(WB + 4*t)}, v{vWR} offset:{t*1024}")
            R.append(f"ds_read_b64_tr_b16 {q(HB + 4*t, 2)}, v{vHR0} offset:{t*1024}")
            R.append(f"ds_read_b64_tr_b16 {q(HB + 4*t + 2, 2)}, v{vHR1} offset:{t*1024}")
        if KC:
            R = [f"ds_read_b128 {q(WB + 4*t)}, v{vWR} offset:{t*1024}" for t in range(6)]
            if u4 % 2 == 0:
                for t in range(6):
                    for c in range(2):
                        R.append(f"ds_read_b64_tr_b16 {q(HB + 24*c + 4*t, 2)}, v{vHR0} offset:{c*12288 + t*1024}")
                        R.append(f"ds_read_b64_tr_b16 {q(HB + 24*c + 4*t + 2, 2)}, v{vHR1} offset:{c*12288 + t*1024}")
                if grp == 1 and OPT["k3lm"]: R = R[:30 - 4 * OPT["k3lm"]]
            else: L = L[:1]
            P = pieces(sD, wnt if grp == 0 else nt); P[5] = P[5] + (advance_w() if grp == 0 else advance_h())
            def gd(X, z): return X if grp == 0 or u4 == 0 else [f"s_cbranch_vccnz K3_{tag}sl{u4}{z}"] + X + [f"K3_{tag}sl{u4}{z}:"]
            na = 6 if grp == 1 or u4 % 2 or (tag == "f" and u4 == 0) else OPT["k3ne"]
            HE = OPT["k3he"]
            if grp == 1 and HE < 6:
                def gh(X, z): return [f"s_cbranch_vccnz K3_{tag}sl{u4}{z}"] + X + [f"K3_{tag}sl{u4}{z}:"] if X else []
                def gx(X, z): return [f"s_cbranch_vccz K3_{tag}sx{u4}{z}"] + X + [f"K3_{tag}sx{u4}{z}:"]
                if u4 % 2 == 0:
                    for m in range(6):
                        if m >= 6 - HE: L += gh(P[m], "abcdef"[m])
                        if u4 == 0: L += gx(P[m], "abcdef"[m])
                        L += R[6*m:6*m+6]
                    if HE == 0: L += gh(advance_h(), "g")
                else:
                    P2 = pieces(sD, nt)
                    L += gh(P[0], "a") + R + gh([x for p in P[1:] + P2[:6 - HE] for x in p], "b")
            elif u4 % 2 == 0:
                for m in range(5):
                    if m < na: L += gd(P[m], "abcde"[m])
                    L += R[6*m:6*m+6]
                if na == 6: L += gd(P[5], "f")
            else:
                L += gd(P[0], "a") + R + gd([x for p in P[1:] for x in p], "b")
        elif grp == 0:
            P = pieces(sD, wnt); P[5] = P[5] + advance_w()
            na = 6 if tag == "f" and u4 == 0 else OPT["k3na"]
            pos = [0, 6, 12, 18, 18, 18]
            for k in range(19):
                for m in range(na):
                    if pos[m] == k: L += P[m]
                if k < 18: L.append(R[k])
        elif OPT["k3bl"]:
            P = pieces(sD, nt); P[5] = P[5] + advance_h()
            def gd(X, z): return X if u4 == 0 else [f"s_cbranch_vccnz K3_{tag}sl{u4}{z}"] + X + [f"K3_{tag}sl{u4}{z}:"]
            if OPT["k3pre"]: L = R[15:] + gd(P[0] + P[1] + P[2] + P[3] + P[4] + P[5], "d")
            else: L += gd(P[0], "a") + R[:6] + gd(P[1], "b") + R[6:12] + gd(P[2], "c") + R[12:] + gd(P[3] + P[4] + P[5], "d")
        else:
            L += R
        if u4 == 3:
            lab = f"K3_{grp}{tag}_xr"
            L += [f"s_sub_u32 s{sT0}, s{sEV}, {6*grp - (100 if OPT['k3nev'] == 1 else 0)}", f"s_cmp_lt_u32 s{sT0}, {0 if OPT['k3nev'] == 2 else 6}", f"s_cbranch_scc0 {lab}"]
            for p in range(3):
                L.append(f"ds_read2_b32 {q(XT + 4*p, 2)}, v{vXR} offset0:{p} offset1:{p+3}")
                L.append(f"ds_read2_b32 {q(XT + 4*p + 2, 2)}, v{vXR} offset0:{p+6} offset1:{p+9}")
            L.append(lab + ":")
        L += [f"s_add_u32 s{sWS}, s{sWS}, 24576", f"s_cmp_eq_u32 s{sWS}, 73728", f"s_cselect_b32 s{sWS}, 0, s{sWS}",
              f"s_add_u32 s{sHS}, s{sHS}, {24576 if KC else 12288}", f"s_cmp_eq_u32 s{sHS}, 73728", f"s_cselect_b32 s{sHS}, 0, s{sHS}"][:3 if KC and u4 % 2 else 6]
        return L
    def pre_reads():
        AD = [f"v_add_u32 v{vWR}, s{sWS}, v{vWB0}", f"v_add_u32 v{vHR0}, s{sHS}, v{vHB0}", f"v_add_u32 v{vHR1}, s{sHS}, v{vHB1}"]
        R = []
        for t in range(6):
            R.append(f"ds_read_b128 {q(WB + 4*t)}, v{vWR} offset:{t*1024}")
            R.append(f"ds_read_b64_tr_b16 {q(HB + 4*t, 2)}, v{vHR0} offset:{t*1024}")
            R.append(f"ds_read_b64_tr_b16 {q(HB + 4*t + 2, 2)}, v{vHR1} offset:{t*1024}")
        return AD, R
    def vmwait(strict, loose, lab):
        if (OPT["k3nv"] >> {6: 0, 0: 1}.get(strict, 2)) & 1: return []
        if loose is None or OPT["k3nost"]: return [f"s_waitcnt vmcnt({strict})"]
        return [f"s_waitcnt vmcnt({loose})", f"s_cmp_lg_u32 s{sJ}, 0", f"s_cbranch_scc1 {lab}", f"s_waitcnt vmcnt({strict})", lab + ":"]
    def Mseg(u4, grp, tag):
        first = tag == "f" and u4 == 0
        Ms = []
        for t in range(6):
            for n in range(6):
                c = q(BIAS + 4*n) if first else q(accr(n, t))
                Ms.append([f"v_mfma_f32_16x16x32_bf16 {q(accr(n, t))}, {q(HB + 4*t)}, {q(WB + 4*n)}, {c}"])
        if KC:
            Ms = []
            for t in range(6):
                for n3 in range(3):
                    for c in range(2):
                        ac = q(accr(3 * (u4 % 2) + n3, t))
                        Ms.append([f"v_mfma_f32_16x16x32_bf16 {ac}, {q(HB + 24*c + 4*t)}, {q(WB + 12*c + 4*n3)}, {q(XT + 4*n3) if tag == 'f' and u4 < 2 and c == 0 else ac}"])
        if KC and u4 % 2 == 0 and (OPT["k3sw"] >> grp) & 1:
            lm = OPT["k3lm"] * grp
            late = []
            for t in range(6 - lm, 6):
                for c in range(2):
                    late += [f"ds_read_b64_tr_b16 {q(HB + 24*c + 4*t, 2)}, v{vHR0} offset:{c*12288 + t*1024}", f"ds_read_b64_tr_b16 {q(HB + 24*c + 4*t + 2, 2)}, v{vHR1} offset:{c*12288 + t*1024}"]
            for i, x in enumerate(late): Ms[i].append(x)
            for t in range(1, 6):
                issued = 30 - 4 * lm + min(len(late), 6 * t)
                n = issued - (10 + 4 * t)
                assert n >= 0
                if n < 15 or lm: Ms[6 * t] = [f"s_waitcnt lgkmcnt({min(15, n)})"] + Ms[6 * t]
        if grp == 0:
            P = pieces(sD, wnt); P[5] = P[5] + advance_w()
            na = 6 if first or (KC and u4 % 2) else OPT["k3ne" if KC else "k3na"]
            for m in range(na, 6): Ms[1 + (m - na) * OPT["k3as"]] += P[m]
            e = OPT["k3eb"]
            loose = 30 if tag == "f" and u4 < 2 else None
            Ms[35 - e] += (["s_setprio 3"] if e else []) + vmwait(6, loose, f"K3_0{tag}_vw{u4}") + ["s_barrier"]
        elif not OPT["k3bl"]:
            P = pieces(sD, nt); P[5] = P[5] + advance_h()
            for m in range(0, 6, 2):
                X = P[m] + P[m + 1]
                if u4 != 3: X = [f"s_cbranch_vccnz K3_{tag}sd{u4}{m}"] + X + [f"K3_{tag}sd{u4}{m}:"]
                Ms[OPT["k3b0"] + (m // 2) * OPT["k3bs"]] += X
        if grp == 1 and OPT["k3pre"]:
            AD, R = pre_reads()
            Ms[0].append(AD[1]); Ms[1].append(AD[2]); Ms[2].append(AD[0])
            for t in range(5):
                Ms[6 * t + 6].append(R[3 * t + 1]); Ms[6 * t + 7].append(R[3 * t + 2])
                Ms[31 + t].append(R[3 * t])
        return [x for m in Ms for x in m]
    def Xseg(grp, tag):
        g = f"{grp}{tag}"
        L = [f"s_cmp_lt_u32 s{sT0}, 6", f"s_cbranch_scc0 K3_{g}_xdone"]
        for t in range(6):
            if t < 5: L += [f"s_cmp_lg_u32 s{sT0}, {t}", f"s_cbranch_scc1 K3_{g}_x{t+1}"]
            for n in range(6):
                L.append(f"v_mfma_f32_16x16x32_bf16 {q(accr(n, t))}, {q(XT + 4*(n >> 1))}, {q(SEL + 4*(n & 1))}, {q(accr(n, t))}")
            if t < 5: L += [f"s_branch K3_{g}_xdone", f"K3_{g}_x{t+1}:"]
        L += [f"K3_{g}_xdone:", f"s_sub_u32 s{sEV}, s{sEV}, 1"]
        return L
    ofl = ["", " nt", " sc1", " sc0 sc1", " sc0"][OPT["out_nt"]]
    def epilogue(final=False):
        L = ["s_nop 7"]
        idx = 0
        for t in range(6):
            L.append(f"s_mov_b32 s{sT1}, s{sOB}" if t == 0 else f"s_add_u32 s{sT1}, s{sT1}, {3072 if OPT['outlin'] else 12288}")
            for r in range(4):
                tq = XT + 4 * (idx % (3 if KC else 4)); idx += 1
                for j in range(3): L.append(f"v_cvt_pk_bf16_f32 v{tq+j}, v{accr(2*j, t)+r}, v{accr(2*j+1, t)+r}")
                if not OPT["k3nost"]: L.append(f"buffer_store_dwordx3 {q(tq, 3)}, v{vOUT}, s[{sO}:{sO+3}], s{sT1} offen offset:{r*768}" + ofl)
        L += [f"s_sub_u32 s{sOB}, s{sOB}, {192 * 768}"]
        return L
    def block(grp, tag):
        if OPT["prof"] == 2: a.label(f"K3_np{tag}{grp}")
        if OPT["prof"] == 1 and grp == 1:
            a(f"s_cmp_lg_u32 s{sWV}, 7")
            a(f"s_cbranch_scc1 K3_np{tag}")
            a("s_memrealtime s[90:91]")
            a("s_waitcnt lgkmcnt(0)")
            a("v_mov_b32 v12, s90")
            a("v_mov_b32 v13, 0")
            a("buffer_store_dword v12, v13, s[84:87], s83 offen")
            a("s_add_u32 s83, s83, 4")
            a.label(f"K3_np{tag}")
        for u4 in range(4):
            a.ext(Lseg(u4, grp, tag))
            if OPT["prof"] == 2 and u4 == 0 and grp == OPT["latw"] // 4:
                a(f"s_cmp_lg_u32 s{sWV}, {OPT['latw']}")
                a(f"s_cbranch_scc1 K3_nq{tag}")
                a("s_memrealtime s[92:93]")
                a("s_waitcnt vmcnt(0) lgkmcnt(0)")
                a("s_memrealtime s[94:95]")
                a("s_waitcnt lgkmcnt(0)")
                a("s_sub_u32 s94, s94, s92")
                a("s_add_u32 s82, s82, s94")
                a("v_mov_b32 v12, s82")
                a("v_mov_b32 v13, 0")
                a("buffer_store_dword v12, v13, s[84:87], s83 offen")
                a("s_add_u32 s83, s83, 4")
                a.label(f"K3_nq{tag}")
            if tag == "f" and u4 == 0:
                a(f"s_cmp_eq_u32 s{sJ}, 0")
                a(f"s_cbranch_scc1 K3_{grp}_noep")
                if OPT["stamp"]:
                    a(f"s_sub_u32 s96, s{sJ}, 48")
                    stamp2(a, 2, 4, 96)
                a.ext(epilogue())
                stamp2(a, 3, 5, 96)
                a.label(f"K3_{grp}_noep")
            if KC and tag == "f" and u4 < 2:
                a("s_nop 1")
                for i in range(12): a(f"v_mov_b32 v{XT+i}, v{BV[3*u4 + i//4]}")
            def waits(z=""):
                stg_ = KC and u4 % 2 == 0 and (OPT["k3sw"] >> grp) & 1
                lw = f"s_waitcnt lgkmcnt({min(15, 20 - 4 * OPT['k3lm'] * grp) if stg_ else 0})"
                if grp == 0: return [lw, f"s_setprio {OPT['k3pa']}"]
                W = []
                if u4 == 2: W += [f"s_cbranch_vccz K3_{tag}nx"] + vmwait(0, 24 if tag == "f" else None, "K3_fxw") + [f"K3_{tag}nx:"]
                if not KC: W += vmwait(24, 48 if tag == "f" else None, f"K3_fh{u4}{z}")
                elif u4 % 2: W += vmwait(HV, (HV + 24 if u4 == 1 or not HL else None) if tag == "f" else None, f"K3_fh{u4}{z}")
                return W + [lw, "s_barrier", f"s_setprio {OPT['k3pb']}"]
            if u4 == 3 and OPT["k3xd"]:
                g = f"{grp}{tag}"
                a(f"s_sub_u32 s{sEV}, s{sEV}, 1")
                a(f"s_cmp_lt_u32 s{sT0}, 6")
                a(f"s_cbranch_scc0 K3_{g}_xn")
                for t in range(6):
                    if t < 5:
                        a(f"s_cmp_lg_u32 s{sT0}, {t}")
                        a(f"s_cbranch_scc1 K3_{g}_x{t+1}")
                    a.ext(waits(str(t)))
                    for n in range(6):
                        a(f"v_mfma_f32_16x16x32_bf16 {q(accr(n, t))}, {q(XT + 4*(n >> 1))}, {q(SEL + 4*(n & 1))}, {q(accr(n, t))}")
                    a(f"s_branch K3_{g}_xdone")
                    if t < 5: a.label(f"K3_{g}_x{t+1}")
                a.label(f"K3_{g}_xn")
                a.ext(waits())
                a.label(f"K3_{g}_xdone")
            else:
                a.ext(waits())
                if u4 == 3: a.ext(Xseg(grp, tag))
            a.ext(Mseg(u4, grp, tag))
            a(f"s_setprio {OPT['k3pl']}")

    if OPT["prof"]:
        srd(a, 84, 24, 25, 65536, TAIL + (5 << 20))
        a("s_lshl_b32 s83, s2, 8")
        a("s_mov_b32 s82, 0")
    a("s_barrier")
    if OPT["k3pre"]:
        AD, R = pre_reads(); a.ext(AD + R[:15])
    a(f"s_cmp_lg_u32 s{sTH}, 0")
    a("s_cbranch_scc1 K3_1_tile")
    for grp in range(2):
        a.label(f"K3_{grp}_tile")
        a(f"s_mov_b32 s{sEV}, 11")
        block(grp, "f")
        a(".p2align 6")
        a.label(f"K3_{grp}_loop")
        block(grp, "l")
        a(f"s_cmp_lg_u32 s{sEV}, -1")
        a(f"s_cbranch_scc1 K3_{grp}_loop")
        a(f"s_add_u32 s{sJ}, s{sJ}, 48")
        a(f"s_cmp_lg_u32 s{sJ}, 144")
        a(f"s_cbranch_scc1 K3_{grp}_tile")
        if grp == 0:
            a("s_branch K3_fin0")
    a.label("K3_fin0")
    stamp(a, 6)
    a.ext(epilogue(True))
    a.label("K3_fin")
    if OPT["stamp"]: a("s_waitcnt vmcnt(0)")
    stamp(a, 7)
    stamp_dump(a, 8, sWV, "K3", 1)
    if OPT["stamp"] == 2:
        a("s_cmp_lg_u32 s2, 5")
        a("s_cbranch_scc1 K3_end")
        a(f"s_cmp_lg_u32 s{sWV}, 0")
        a("s_cbranch_scc1 K3_end")
        a("s_load_dwordx2 s[20:21], s[0:1], 56")
        a(f"s_add_u32 s88, s24, {TAIL + (4 << 20)}")
        a("s_addc_u32 s89, s25, 0")
        a("s_mov_b32 s90, 196608")
        a("s_mov_b32 s91, 0x00020000")
        a("v_and_b32 v1, 63, v0")
        a("v_lshlrev_b32 v2, 3, v1")
        a("v_cmp_gt_u32 vcc, 9, v1")
        a("v_add_u32 v3, 65536-72, v2")
        a("s_nop 0")
        a("v_cndmask_b32 v2, v3, v2, vcc")
        a("buffer_load_dword v4, v2, s[88:91], 0 offen offset:1280")
        a("s_mov_b32 s22, 64")
        a("s_mov_b32 s23, 0x00020000")
        a("v_lshlrev_b32 v2, 2, v1")
        a("s_waitcnt vmcnt(0) lgkmcnt(0)")
        a("v_readfirstlane_b32 s92, v4")
        a("s_nop 3")
        a("v_subrev_u32 v4, s92, v4")
        a("buffer_store_dword v4, v2, s[20:23], 0 offen")
    a.label("K3_end")
    a("s_endpgm")
    return a, desc("gemm2_kernel", 256, 100), f"; @launch kernel=gemm2_kernel grid=(256,1,1) block=(512,1,1) lds={L_X + 12288}"

def main():
    ks = [k1()] + ([] if OPT['fuse'] else [k2()]) + [k3n() if OPT['k3n'] else k3r() if OPT['roll'] else k3()]
    errs = []
    for a, _, l in ks: errs += check(a.lines, l.split("=")[1].split()[0])
    for a, _, l in ks:
        for i, x in enumerate(a.lines):
            if x.startswith("s_set_gpr_idx_on"): assert a.lines[i + 3] == "s_set_gpr_idx_off", "gpr idx not closed"
    for e in errs: print(e, file=sys.stderr)
    hdr = open("standalone__modern_conv_block_slak__vision.s.ref").read().split("\n")
    hdr = [l for l in hdr if l.startswith(";") and "@launch" not in l and "Override" not in l and "grid=ceil" not in l]
    out = "\n".join(hdr) + "\n" + "\n".join(l for _, _, l in ks) + "\n"
    out += '.amdgcn_target "amdgcn-amd-amdhsa--gfx950"\n.text\n'
    for a, _, _ in ks: out += a.text()
    out += '.section .rodata,"a"\n'
    for _, d, _ in ks: out += d
    open(sys.argv[1], "w").write(out)
    print("written", sys.argv[1], len(out), "bytes; hazards:", len(errs))
main()
```
